```python
import torch

def _softmax(x, axis=-1):
    return torch.softmax(x, dim=axis)
def _gelu(x):
    return torch.nn.functional.gelu(x, approximate="tanh")
def _silu(x):
    return torch.nn.functional.silu(x)
def _sigmoid(x):
    return torch.sigmoid(x)
def _layernorm(x, axis=-1, eps=1e-5):
    m = x.mean(dim=axis, keepdim=True)
    v = x.var(dim=axis, keepdim=True, unbiased=False)
    return (x - m) / torch.sqrt(v + eps)
def _scatter_add(tgt, idx, src, axis=0):
    return tgt.clone().index_add_(axis, idx, src)
def _segment_sum(src, seg, n):
    out = torch.zeros((n,) + src.shape[1:], dtype=src.dtype)
    return out.index_add_(0, seg, src)
def _pad(x, pw):
    flat = tuple(v for pair in reversed(pw) for v in pair)
    return torch.nn.functional.pad(x, flat)

kernel_name = 'concat_heads__gqa_block_cached__mha_block_cached__near_ridge'

def setup_inputs():

    _w = (lambda a: (lambda t: t.to(torch.bfloat16) if t.is_floating_point() else t)(torch.as_tensor(a)))
    def _A_setup():
        B, Sq, D = 16, 48, 576
        Hq, Hkv, Sk, Dh = 32, 16, 48, 128
        assert Hq % Hkv == 0, (Hq, Hkv)
        return {
            "x": _w((lambda *s: torch.randn(*s, dtype=torch.bfloat16) * 0.8)(B, Sq, D)),
            "k_cache": _w((lambda *s: torch.randn(*s, dtype=torch.bfloat16) * 0.8)(B, Hkv, Sk, Dh)),
            "v_cache": _w((lambda *s: torch.randn(*s, dtype=torch.bfloat16) * 0.05)(B, Hkv, Sk, Dh)),
            "wq": _w((lambda *s: torch.randn(*s, dtype=torch.bfloat16) * 0.8)(D, Hq * Dh) * (D ** -0.5)),
            "wo": _w((lambda *s: torch.randn(*s, dtype=torch.bfloat16) * 0.05)(Hq * Dh, D) * ((Hq * Dh) ** -0.5)),
        }
    _A_in = _A_setup()

    def _B_setup():
        B, Sq, D = 16, 48, 576
        H, Sk, Dh = 32, 48, 128
        return {
            "x": _w((lambda *s: torch.randn(*s, dtype=torch.bfloat16) * 0.8)(B, Sq, D)),
            "k_cache": _w((lambda *s: torch.randn(*s, dtype=torch.bfloat16) * 0.8)(B, H, Sk, Dh)),
            "v_cache": _w((lambda *s: torch.randn(*s, dtype=torch.bfloat16) * 0.05)(B, H, Sk, Dh)),
            "wq": _w((lambda *s: torch.randn(*s, dtype=torch.bfloat16) * 0.8)(D, H * Dh) * (D ** -0.5)),
            "wo": _w((lambda *s: torch.randn(*s, dtype=torch.bfloat16) * 0.05)(H * Dh, D) * ((H * Dh) ** -0.5)),
        }
    _B_in = _B_setup()

    return {
        "A_x": _A_in["x"],
        "A_k_cache": _A_in["k_cache"],
        "A_v_cache": _A_in["v_cache"],
        "A_wq": _A_in["wq"],
        "A_wo": _A_in["wo"],
        "B_x": _B_in["x"],
        "B_k_cache": _B_in["k_cache"],
        "B_v_cache": _B_in["v_cache"],
        "B_wq": _B_in["wq"],
        "B_wo": _B_in["wo"],
    }

def reference(A_x, A_k_cache, A_v_cache, A_wq, A_wo, B_x, B_k_cache, B_v_cache, B_wq, B_wo):
    def _A_ref(x, k_cache, v_cache, wq, wo):
        B, Sq, D = x.shape
        Hq, Dh = 32, 128
        Hkv = k_cache.shape[1]
        rep = Hq // Hkv
        q = (lambda x, *d: x.permute(*d))((x @ wq).reshape(B, Sq, Hq, Dh), 0, 2, 1, 3)
        k = (lambda x, n, axis: torch.repeat_interleave(x, n, dim=axis))(k_cache, rep, axis=1)
        v = (lambda x, n, axis: torch.repeat_interleave(x, n, dim=axis))(v_cache, rep, axis=1)
        scores = torch.einsum("bhqd,bhkd->bhqk", q, k) * (Dh ** -0.5)
        p = _softmax(scores, axis=-1)
        o = torch.einsum("bhqk,bhkd->bhqd", p, v)
        return (lambda x, *d: x.permute(*d))(o, 0, 2, 1, 3).reshape(B, Sq, Hq * Dh) @ wo

    def _B_ref(x, k_cache, v_cache, wq, wo):
        B, Sq, D = x.shape
        H, Dh = 32, 128
        q = (lambda x, *d: x.permute(*d))((x @ wq).reshape(B, Sq, H, Dh), 0, 2, 1, 3)
        scores = torch.einsum("bhqd,bhkd->bhqk", q, k_cache) * (Dh ** -0.5)
        p = _softmax(scores, axis=-1)
        o = torch.einsum("bhqk,bhkd->bhqd", p, v_cache)
        return (lambda x, *d: x.permute(*d))(o, 0, 2, 1, 3).reshape(B, Sq, H * Dh) @ wo

    a = _A_ref(A_x, A_k_cache, A_v_cache, A_wq, A_wo)
    b = _B_ref(B_x, B_k_cache, B_v_cache, B_wq, B_wo)
    return torch.concatenate([a, b], axis=-1)
```

```python
import re

def vr(b, n=1):
    return f"v{b}" if n == 1 else f"v[{b}:{b+n-1}]"
def sr(b, n=1):
    return f"s{b}" if n == 1 else f"s[{b}:{b+n-1}]"

_VRE = re.compile(r"\bv\[(\d+):(\d+)\]|\bv(\d+)\b")
_SRE = re.compile(r"\bs\[(\d+):(\d+)\]|\bs(\d+)\b")
def vregs(op):
    out = set()
    for m in _VRE.finditer(op):
        if m.group(3) is not None: out.add(int(m.group(3)))
        else: out.update(range(int(m.group(1)), int(m.group(2)) + 1))
    return out
def sregs(op):
    out = set()
    for m in _SRE.finditer(op):
        if m.group(3) is not None: out.add(int(m.group(3)))
        else: out.update(range(int(m.group(1)), int(m.group(2)) + 1))
    if re.search(r"\bvcc(_lo|_hi)?\b", op): out.add('vcc')
    if re.search(r"\bm0\b", op): out.add('m0')
    if re.search(r"\bexec\b", op): out.add('exec')
    return out

TRANS = ("v_exp_f32", "v_log_f32", "v_rcp_f32", "v_rsq_f32", "v_sqrt_f32", "v_sin_f32", "v_cos_f32")

class Rec:
    __slots__ = ("kind", "vw", "vrd", "sw", "srd", "pos", "shape", "srcc", "wide")

class Asm:
    def __init__(self):
        self.L = []
        self.hist = []
        self.pos = 0
        self.lgkm = []
        self.vm = []
        self.smem = False
        self.nops = 0
        self.lcap = 15
    def raw(self, s): self.L.append(s)
    def comment(self, s): self.L.append("    ; " + s)
    def label(self, name):
        self.L.append(name + ":")
    def flush_hazards(self, n=10):
        self.nop(n)
    def reset_state(self):
        self.hist = []; self.lgkm = []; self.vm = []
    def nop(self, n):
        while n > 0:
            k = min(n, 16)
            self.L.append(f"    s_nop {k-1}")
            self.pos += k; n -= k; self.nops += k
    def _need(self, r):
        need = 0
        for h in self.hist:
            d = self.pos - h.pos - 1
            w = 0
            hk, k = h.kind, r.kind
            if hk in ("valu", "trans", "perm"):
                if k == "mfma" and (h.vw & r.vrd): w = max(w, 2)
                if k == "perm" and (h.vw & r.vrd): w = max(w, 2)
                if k == "rfl" and (h.vw & r.vrd): w = max(w, 1)
                if hk == "trans" and k in ("valu", "perm", "rfl", "mfma") and (h.vw & r.vrd): w = max(w, 1)
            if hk in ("valu", "rfl", "trans"):
                if h.sw:
                    if k in ("vmem", "dma") and (h.sw & r.srd): w = max(w, 5)
                    if k in ("valu", "trans", "perm", "mfma") and (h.sw & r.srd): w = max(w, 2)
                    if k == "salu" and (h.sw & r.srd): w = max(w, 1)
                    if 'exec' in h.sw and k == "mfma": w = max(w, 4)
            if hk == "mfma":
                if k == "mfma":
                    ab = r.vrd - r.srcc
                    if h.vw & ab: w = max(w, 8)
                    if h.vw & r.srcc:
                        if h.vw == r.srcc and h.shape == r.shape: pass
                        else: w = max(w, 6)
                    elif h.vw & r.vw: w = max(w, 8)
                else:
                    if h.vw & (r.vrd | r.vw): w = max(w, 8)
                    if k in ("valu", "trans", "perm") and (h.srcc & r.vw): w = max(w, 3)
            if hk == "salu" and 'm0' in h.sw and k == "dma": w = max(w, 1)
            if hk in ("vmem", "ds") and h.wide and (h.wide & r.vw): w = max(w, 2)
            need = max(need, w - d)
        return need
    def _waits(self, r):
        touched = r.vrd | r.vw
        idx = -1
        for i, (dst, tag) in enumerate(self.lgkm):
            if dst and (dst & touched): idx = i
        n_l = None
        if idx >= 0:
            n_l = min(self.lcap, len(self.lgkm) - 1 - idx)
        idx = -1
        for i, (dst, tag) in enumerate(self.vm):
            if dst and (dst & touched): idx = i
        n_v = None
        if idx >= 0:
            n_v = min(63, len(self.vm) - 1 - idx)
        if n_l is not None or n_v is not None:
            self.waitcnt(vm=n_v, lgkm=n_l)
    def waitcnt(self, vm=None, lgkm=None):
        parts = []
        if vm is not None:
            parts.append(f"vmcnt({vm})")
            if len(self.vm) > vm: self.vm = self.vm[len(self.vm) - vm:] if vm else []
        if lgkm is not None:
            parts.append(f"lgkmcnt({lgkm})")
            if len(self.lgkm) > lgkm: self.lgkm = self.lgkm[len(self.lgkm) - lgkm:] if lgkm else []
        self.L.append("    s_waitcnt " + " ".join(parts))
        self.pos += 1
    def wait_vm_tag(self, tag):
        idx = -1
        for i, (d, t) in enumerate(self.vm):
            if t == tag: idx = i
        if idx >= 0:
            n = len(self.vm) - 1 - idx
            assert n <= 63, n
            self.waitcnt(vm=n)
    def _emit(self, text, kind, vw=(), vrd=(), sw=(), srd=(), shape=None, srcc=(), wide=()):
        r = Rec()
        r.kind = kind; r.vw = set(vw); r.vrd = set(vrd); r.sw = set(sw); r.srd = set(srd)
        r.shape = shape; r.srcc = set(srcc); r.wide = set(wide)
        self._waits(r)
        n = self._need(r)
        if n > 0: self.nop(n)
        r.pos = self.pos
        self.L.append("    " + text)
        self.pos += 1
        self.hist.append(r)
        if len(self.hist) > 24: self.hist.pop(0)
    def s(self, text):
        op, _, rest = text.partition(" ")
        ops = [o.strip() for o in rest.split(",")] if rest else []
        sw = set(); srd = set()
        if op.startswith(("s_cmp", "s_cbranch", "s_branch", "s_barrier", "s_setprio", "s_sleep", "s_endpgm", "s_bitcmp")):
            for o in ops: srd |= sregs(o)
        else:
            if ops: sw = sregs(ops[0])
            for o in ops[1:]: srd |= sregs(o)
            if "saveexec" in op: sw.add('exec')
        self._emit(text, "salu", sw=sw, srd=srd)
    def v(self, text):
        op, _, rest = text.partition(" ")
        rest_main = re.split(r"\s+(op_sel|neg_|clamp|quad_perm|row_|bank_mask|bound_ctrl)", rest)[0]
        ops = [o.strip() for o in rest_main.split(",")]
        kind = "valu"
        if op in TRANS: kind = "trans"
        vw = set(); vrd = set(); sw = set(); srd = set()
        if op.startswith("v_permlane"):
            kind = "perm"; vw = vregs(ops[0]) | vregs(ops[1]); vrd = set(vw)
        elif op.startswith(("v_readfirstlane", "v_readlane")):
            kind = "rfl"; sw = sregs(ops[0]); vrd = vregs(ops[1])
        elif op.startswith("v_cmp"):
            sw = sregs(ops[0])
            for o in ops[1:]: vrd |= vregs(o); srd |= sregs(o)
        else:
            vw = vregs(ops[0])
            for o in ops[1:]: vrd |= vregs(o); srd |= sregs(o)
            if op.startswith(("v_fmac", "v_pk_fmac")): vrd |= vw
        self._emit(text, kind, vw=vw, vrd=vrd, sw=sw, srd=srd)
    def mfma(self, d, a, b, c=None, k=32):
        n = 4 if k == 32 else 2
        cs = "0" if c is None else vr(c, 4)
        text = f"v_mfma_f32_16x16x{k}_bf16 {vr(d,4)}, {vr(a,n)}, {vr(b,n)}, {cs}"
        srcc = set() if c is None else set(range(c, c + 4))
        rd = set(range(a, a + n)) | set(range(b, b + n)) | srcc
        self._emit(text, "mfma", vw=range(d, d + 4), vrd=rd, shape=k, srcc=srcc)
    def ds_read(self, op, d, n, addr, off=0, tag=None):
        assert 0 <= off < 65536, off
        text = f"{op} {vr(d,n)}, {vr(addr)}" + (f" offset:{off}" if off else "")
        self._emit(text, "ds", vw=range(d, d + n), vrd=[addr])
        self.lgkm.append((set(range(d, d + n)), tag))
    def ds_write(self, op, addr, s, n, off=0):
        assert 0 <= off < 65536, off
        text = f"{op} {vr(addr)}, {vr(s,n)}" + (f" offset:{off}" if off else "")
        self._emit(text, "ds", vrd=[addr] + list(range(s, s + n)), wide=range(s, s + n) if n >= 3 else ())
        self.lgkm.append((None, None))
    def bload(self, d, n, voff, srd, soff, off=0, flags="", tag=None):
        assert 0 <= off < 4096
        op = {1: "buffer_load_dword", 2: "buffer_load_dwordx2", 4: "buffer_load_dwordx4"}[n]
        text = f"{op} {vr(d,n)}, {vr(voff)}, {sr(srd,4)}, {soff} offen" + (f" offset:{off}" if off else "") + (" " + flags if flags else "")
        self._emit(text, "vmem", vw=range(d, d + n), vrd=[voff], srd=set(range(srd, srd + 4)) | sregs(str(soff)))
        self.vm.append((set(range(d, d + n)), tag))
    def dma(self, voff, srd, soff, flags="", tag=None):
        text = f"buffer_load_dwordx4 {vr(voff)}, {sr(srd,4)}, {soff} offen" + (" " + flags if flags else "") + " lds"
        self._emit(text, "dma", vrd=[voff], srd=set(range(srd, srd + 4)) | sregs(str(soff)) | {'m0'})
        self.vm.append((None, tag))
    def bstore(self, s, n, voff, srd, soff, off=0, flags="", tag=None):
        assert 0 <= off < 4096
        op = {1: "buffer_store_dword", 2: "buffer_store_dwordx2", 4: "buffer_store_dwordx4"}[n]
        text = f"{op} {vr(s,n)}, {vr(voff)}, {sr(srd,4)}, {soff} offen" + (f" offset:{off}" if off else "") + (" " + flags if flags else "")
        self._emit(text, "vmem", vrd=[voff] + list(range(s, s + n)), srd=set(range(srd, srd + 4)) | sregs(str(soff)),
                   wide=range(s, s + n) if n >= 3 else ())
        self.vm.append((None, tag))
    def barrier(self):
        self.s("s_barrier")
    def text(self):
        return "\n".join(self.L) + "\n"
```

```python
import sys
from asm import *

NAME = "concat_heads__gqa_block_cached__mha_block_cached__near_ridge"
SLOT = 52224
UNITKV = 13056
WS_O = 0
WS_PART = 16 << 20
WS_BYTES = 32 << 20
SC = 0.08838834764831845 * 1.4426950408889634

import struct
def f2u(x): return struct.unpack("<I", struct.pack("<f", x))[0]

S_X, S_K, S_V, S_WQ, S_WO, S_OUT, S_WS = 36, 40, 44, 48, 52, 56, 60
S_BR, S_KQ, S_HP, S_BP, S_W = 68, 69, 70, 71, 72

class Cfg:
    ld_x = ""; ld_wq = ""; ld_kv = ""; ld_wo = ""; st_o = ""; ld_o = ""; st_p = ""; ld_p = ""

def srd(a, base, lo, hi, size):
    a.s(f"s_mov_b32 s{base}, s{lo}")
    a.s(f"s_mov_b32 s{base+1}, s{hi}")
    a.s(f"s_mov_b32 s{base+2}, {size}")
    a.s(f"s_mov_b32 s{base+3}, 0x20000")

def prologue(a, endlabel, need):
    a.s("s_cmp_ge_u32 s2, 256")
    a.s(f"s_cbranch_scc1 {endlabel}")
    a.raw("    s_load_dwordx16 s[8:23], s[0:1], 0")
    a.raw("    s_load_dwordx8 s[24:31], s[0:1], 64")
    a.raw("    s_load_dwordx2 s[32:33], s[0:1], 96")
    a.v("v_and_b32 v1, 63, v0")
    a.v("v_lshrrev_b32 v15, 6, v0")
    a.s(f"s_and_b32 s{S_KQ}, s2, 3")
    a.s(f"s_bfe_u32 s{S_BR}, s2, 0x10002")
    a.s(f"s_bfe_u32 s{S_HP}, s2, 0x20003")
    a.s(f"s_lshr_b32 s{S_BP}, s2, 5")
    a.v(f"v_readfirstlane_b32 s{S_W}, v15")
    a.raw("    s_waitcnt lgkmcnt(0)")
    a.s(f"s_cmp_eq_u32 s{S_BR}, 0")
    for (dst, pa, pb, key) in ((S_X, 8, 18, 'x'), (S_K, 10, 20, 'k'), (S_V, 12, 22, 'v'), (S_WQ, 14, 24, 'wq'), (S_WO, 16, 26, 'wo')):
        if key not in need: continue
        a.s(f"s_cselect_b64 s[{dst}:{dst+1}], s[{pa}:{pa+1}], s[{pb}:{pb+1}]")
        if key in ('k', 'v'):
            a.s(f"s_cselect_b32 s{dst+2}, 3145728, 6291456") if False else None
            a.s(f"s_mov_b32 s{dst+2}, 6291456")
            a.s(f"s_cselect_b32 s{dst+2}, 3145728, s{dst+2}")
        else:
            a.s(f"s_mov_b32 s{dst+2}, {884736 if key == 'x' else 4718592}")
        a.s(f"s_mov_b32 s{dst+3}, 0x20000")
    if 'out' in need: srd(a, S_OUT, 28, 29, 1769472)
    if 'ws' in need: srd(a, S_WS, 32, 33, WS_BYTES)

def p1_loader(a, cfg):
    a.s(f"s_sub_u32 s73, s{S_W}, 4")
    a.s("s_and_b32 s74, s73, 1")
    a.s("s_lshr_b32 s75, s73, 1")
    a.v("v_lshrrev_b32 v4, 5, v1")
    a.s("s_lshl_b32 s76, s74, 1")
    a.s("s_lshl_b32 s77, s75, 2")
    a.s("s_or_b32 s76, s76, s77")
    a.v("v_or_b32 v5, s76, v4")
    a.v("v_bfe_u32 v6, v1, 1, 4")
    a.v("v_xor_b32 v6, v6, v5")
    a.v("v_lshlrev_b32 v6, 5, v6")
    a.v("v_and_b32 v7, 1, v1")
    a.v("v_lshl_add_u32 v6, v7, 4, v6")
    a.v("v_lshl_add_u32 v2, v4, 13, v6")
    a.s("s_lshl_b32 s76, s75, 16")
    a.s("s_lshl_b32 s77, s74, 14")
    a.s("s_add_u32 s76, s76, s77")
    a.s(f"s_lshl_b32 s77, s{S_KQ}, 11")
    a.s("s_add_u32 s76, s76, s77")
    a.s(f"s_lshl_b32 s77, s{S_HP}, 9")
    a.s("s_add_u32 s76, s76, s77")
    a.v("v_add_u32 v2, s76, v2")
    a.v("v_lshrrev_b32 v4, 3, v1")
    a.v("v_mul_u32_u24 v4, 1152, v4")
    a.v("v_lshrrev_b32 v5, 4, v1")
    a.s("s_lshl_b32 s76, s74, 2")
    a.v("v_or_b32 v5, s76, v5")
    a.v("v_and_b32 v6, 7, v1")
    a.v("v_xor_b32 v6, v6, v5")
    a.v("v_lshl_add_u32 v3, v6, 4, v4")
    a.s(f"s_mul_i32 s76, s{S_BP}, {96*1152}")
    a.s(f"s_mul_i32 s77, s74, {8*1152}")
    a.s("s_add_u32 s76, s76, s77")
    a.s(f"s_mul_i32 s77, s75, {48*1152}")
    a.s("s_add_u32 s76, s76, s77")
    a.v("v_add_u32 v3, s76, v3")
    a.s("s_lshl_b32 s78, s75, 12")
    a.s("s_lshl_b32 s77, s74, 10")
    a.s("s_add_u32 s78, s78, s77")
    a.s("s_mul_i32 s79, s75, 6144")
    a.s("s_add_u32 s79, s79, s77")
    a.s("s_add_u32 s79, s79, 32768")
    a.s(f"s_lshl_b32 s76, s{S_BP}, 1")
    a.s("s_add_u32 s76, s76, s74")
    a.s(f"s_lshl_b32 s77, s{S_KQ}, 3")
    a.s(f"s_lshl_b32 s81, s{S_HP}, 1")
    a.s("s_add_u32 s77, s77, s81")
    a.s("s_add_u32 s77, s77, s75")
    a.s("s_lshl_b32 s76, s76, 5")
    a.s("s_add_u32 s76, s76, s77")
    a.s(f"s_xor_b32 s77, s{S_BR}, 1")
    a.s("s_lshr_b32 s76, s76, s77")
    a.s("s_mul_i32 s80, s76, 12288")
    a.v("v_lshlrev_b32 v8, 4, v1")
    a.v("v_lshrrev_b32 v4, 4, v1")
    a.v("v_mul_u32_u24 v4, 272, v4")
    a.v("v_and_b32 v5, 15, v1")
    a.v("v_lshl_add_u32 v9, v5, 4, v4")
    a.s(f"s_mul_i32 s76, s73, {UNITKV}")
    a.v("v_add_u32 v9, s76, v9")
    a.v(f"v_add_u32 v10, {SLOT}, v9")
    KREG, VREG = 16, 64
    def stage(s):
        slot = (s % 3) * SLOT
        for z in range(3):
            a.s(f"s_add_u32 m0, s79, {slot + z*2048}")
            a.s(f"s_mov_b32 s82, {s*128 + z*16*1152}")
            a.dma(3, S_X, "s82", cfg.ld_x, tag=("st", s))
        for i4 in range(2):
            for i3 in range(2):
                for i1 in range(2):
                    a.s(f"s_add_u32 m0, s78, {slot + i4*16384 + i3*8192 + i1*2048}")
                    a.s(f"s_mov_b32 s82, {(s*64 + 32*i4 + 16*i3 + 4*i1)*8192}")
                    a.dma(2, S_WQ, "s82", cfg.ld_wq, tag=("st", s))
    kvq = [(S_K, KREG, i) for i in range(12)] + [(S_V, VREG, i) for i in range(12)]
    def kv(n):
        for _ in range(n):
            if not kvq: return
            srdb, rb, i = kvq.pop(0)
            a.s(f"s_add_u32 s83, s80, {(i//4)*4096}")
            a.bload(rb + 4*i, 4, 8, srdb, "s83", off=(i % 4)*1024, flags=cfg.ld_kv)
    stage(0); stage(1); stage(2); kv(3)
    for g in range(9):
        a.wait_vm_tag(("st", g))
        a.barrier()
        if 1 <= g <= 6: stage(g + 2)
        kv(3)
        if g == 7:
            for i in range(12): a.ds_write("ds_write_b128", 9, KREG + 4*i, 4, off=i*1088)
        if g == 8:
            for i in range(12): a.ds_write("ds_write_b128", 10, VREG + 4*i, 4, off=i*1088)
    a.waitcnt(lgkm=0)
    a.barrier()
    a.barrier()

def xlane_reduce(a, op, regs, tmps):
    for sw in ("v_permlane32_swap_b32", "v_permlane16_swap_b32"):
        for r, t in zip(regs, tmps): a.v(f"v_mov_b32 v{t}, v{r}")
        for r, t in zip(regs, tmps): a.v(f"{sw} v{r}, v{t}")
        for r, t in zip(regs, tmps): a.v(f"{op} v{r}, v{r}, v{t}")

def p1_compute(a, cfg):
    ACC = 16; WF = 112; XF = 144; KF = 168; AS = 216; VF = 112
    accQ = lambda t, mt: ACC + (t*3 + mt)*4
    Wf = lambda t: WF + 4*t
    Xf = lambda par, mt: XF + par*12 + mt*4
    Kf = lambda kt, kp: KF + (kt*4 + kp)*4
    accS = lambda kt, mt: AS + (kt*3 + mt)*4
    Vf = lambda t: VF + 6*t
    accO = lambda mt, t: ACC + (mt*8 + t)*4
    a.s(f"s_and_b32 s74, s{S_W}, 1")
    a.s(f"s_lshr_b32 s75, s{S_W}, 1")
    a.v("v_lshrrev_b32 v160, 4, v1")
    a.v("v_bfe_u32 v161, v1, 2, 2")
    a.v("v_and_b32 v162, 3, v1")
    a.v("v_and_b32 v163, 15, v1")
    a.v("v_lshl_add_u32 v164, v160, 3, v161")
    a.v("v_lshlrev_b32 v164, 9, v164")
    a.v("v_and_b32 v165, 1, v160")
    a.v("v_lshl_or_b32 v165, v165, 2, v161")
    a.v("v_lshl_add_u32 v164, v165, 5, v164")
    a.v("v_lshl_add_u32 v164, v162, 3, v164")
    a.s("s_lshl_b32 s76, s75, 8")
    a.v("v_add_u32 v2, s76, v164")
    for t in range(1, 8): a.v(f"v_xor_b32 v{2+t}, {32*t}, v2")
    a.v("v_lshrrev_b32 v164, 1, v163")
    a.v("v_xor_b32 v164, v164, v160")
    a.v("v_lshlrev_b32 v164, 4, v164")
    a.v("v_lshl_add_u32 v164, v163, 7, v164")
    a.s("s_mul_i32 s76, s74, 6144")
    a.s("s_add_u32 s76, s76, 32768")
    a.v("v_add_u32 v10, s76, v164")
    a.v("v_xor_b32 v11, 64, v10")
    a.s(f"s_mul_i32 s76, s{S_W}, {UNITKV}")
    a.v("v_mul_u32_u24 v164, 272, v163")
    a.v("v_lshl_add_u32 v164, v160, 3, v164")
    a.v("v_add_u32 v12, s76, v164")
    a.v("v_lshl_add_u32 v164, v160, 2, v161")
    a.v("v_mul_u32_u24 v164, 272, v164")
    a.v("v_lshl_add_u32 v164, v162, 3, v164")
    a.s(f"s_add_u32 s76, s76, {SLOT}")
    a.v("v_add_u32 v13, s76, v164")
    a.v("v_lshlrev_b32 v14, 4, v1")
    a.s(f"s_lshl_b32 s76, s{S_BR}, 4")
    a.s(f"s_lshl_b32 s77, s{S_BP}, 1")
    a.s("s_add_u32 s76, s76, s77")
    a.s("s_add_u32 s76, s76, s74")
    a.s("s_lshl_b32 s76, s76, 5")
    a.s(f"s_lshl_b32 s77, s{S_KQ}, 3")
    a.s("s_add_u32 s76, s76, s77")
    a.s(f"s_lshl_b32 s77, s{S_HP}, 1")
    a.s("s_add_u32 s76, s76, s77")
    a.s("s_add_u32 s76, s76, s75")
    a.s("s_mul_i32 s80, s76, 12288")
    a.s(f"s_mov_b32 s81, {f2u(SC)}")
    for r in range(96): a.v(f"v_mov_b32 v{ACC+r}, 0")
    def rdW(t, ks):
        a.ds_read("ds_read_b64_tr_b16", Wf(t), 2, 2+t, off=ks*16384)
        a.ds_read("ds_read_b64_tr_b16", Wf(t)+2, 2, 2+t, off=ks*16384 + 2048)
    def rdX(mt, ks):
        a.ds_read("ds_read_b128", Xf(ks, mt), 4, 10+ks, off=mt*2048)
    def rdK(i):
        kt, kp = divmod(i, 4)
        a.ds_read("ds_read_b64", Kf(kt, kp), 2, 12, off=kt*4352 + 64*kp)
        a.ds_read("ds_read_b64", Kf(kt, kp)+2, 2, 12, off=kt*4352 + 64*kp + 32)
    def grp(t, ks):
        for mt in range(3): a.mfma(accQ(t, mt), Wf(t), Xf(ks, mt), accQ(t, mt))
    def cvtQ(kp):
        for mt in range(3):
            r = accQ(2*kp, mt); s_ = accQ(2*kp+1, mt)
            a.v(f"v_cvt_pk_bf16_f32 v{r}, v{r}, v{r+1}")
            a.v(f"v_cvt_pk_bf16_f32 v{r+1}, v{r+2}, v{r+3}")
            a.v(f"v_cvt_pk_bf16_f32 v{r+2}, v{s_}, v{s_+1}")
            a.v(f"v_cvt_pk_bf16_f32 v{r+3}, v{s_+2}, v{s_+3}")
    a.barrier()
    for mt in range(3): rdX(mt, 0)
    for t in range(8): rdW(t, 0)
    for s in range(9):
        last = s == 8
        for t in range(8):
            grp(t, 0)
            if t < 3: rdX(t, 1)
            rdW(t, 1)
        delta = SLOT if (s + 1) % 3 else -2*SLOT
        for t in range(8):
            grp(t, 1)
            if t == 1:
                a.waitcnt(lgkm=0)
                a.barrier()
            if not last:
                if t < 1: continue
                ts = [0, 1] if t == 1 else [t]
                if t == 1:
                    for r in (10, 11): a.v(f"v_add_u32 v{r}, {delta & 0xffffffff}, v{r}")
                for tt in ts: a.v(f"v_add_u32 v{2+tt}, {delta & 0xffffffff}, v{2+tt}")
                if 1 <= t <= 3: rdX(t-1, 0)
                for tt in ts: rdW(tt, 0)
            else:
                if t >= 1 and t <= 6:
                    rdK(2*(t-1)); rdK(2*(t-1)+1)
                if t in (3, 5, 7): cvtQ((t-3)//2)
    a.waitcnt(lgkm=0)
    a.barrier()
    cvtQ(3)
    for t in range(8):
        for kt in range(3):
            a.ds_read("ds_read_b64_tr_b16", Vf(t) + 2*kt, 2, 13, off=kt*4352 + t*32)
    for kp in range(4):
        for kt in range(3):
            for mt in range(3):
                a.mfma(accS(kt, mt), Kf(kt, kp), accQ(2*kp, mt), None if kp == 0 else accS(kt, mt))
    MX = [160, 161, 162]; TM = [163, 164, 165]; SM = [166, 167, 252]
    vals = lambda mt: [accS(kt, mt) + r for kt in range(3) for r in range(4)]
    for mt in range(3):
        v = vals(mt); a.v(f"v_max3_f32 v{MX[mt]}, v{v[0]}, v{v[1]}, v{v[2]}")
    for i in range(3, 11, 2):
        for mt in range(3):
            v = vals(mt); a.v(f"v_max3_f32 v{MX[mt]}, v{MX[mt]}, v{v[i]}, v{v[i+1]}")
    for mt in range(3):
        v = vals(mt); a.v(f"v_max_f32 v{MX[mt]}, v{MX[mt]}, v{v[11]}")
    xlane_reduce(a, "v_max_f32", MX, TM)
    for mt in range(3): a.v(f"v_mul_f32 v{MX[mt]}, s81, v{MX[mt]}")
    for i in range(12):
        for mt in range(3):
            v = vals(mt); a.v(f"v_fma_f32 v{v[i]}, v{v[i]}, s81, -v{MX[mt]}")
    for i in range(12):
        for mt in range(3):
            v = vals(mt); a.v(f"v_exp_f32 v{v[i]}, v{v[i]}")
    for mt in range(3):
        v = vals(mt); a.v(f"v_add_f32 v{SM[mt]}, v{v[0]}, v{v[1]}")
    for i in range(2, 12):
        for mt in range(3):
            v = vals(mt); a.v(f"v_add_f32 v{SM[mt]}, v{SM[mt]}, v{v[i]}")
    xlane_reduce(a, "v_add_f32", SM, TM)
    for mt in range(3): a.v(f"v_rcp_f32 v{SM[mt]}, v{SM[mt]}")
    for i in range(12):
        for mt in range(3):
            v = vals(mt); a.v(f"v_mul_f32 v{v[i]}, v{v[i]}, v{SM[mt]}")
    for mt in range(3):
        r0, r1, r2 = accS(0, mt), accS(1, mt), accS(2, mt)
        a.v(f"v_cvt_pk_bf16_f32 v{r0}, v{r0}, v{r0+1}")
        a.v(f"v_cvt_pk_bf16_f32 v{r0+1}, v{r0+2}, v{r0+3}")
        a.v(f"v_cvt_pk_bf16_f32 v{r0+2}, v{r1}, v{r1+1}")
        a.v(f"v_cvt_pk_bf16_f32 v{r0+3}, v{r1+2}, v{r1+3}")
        a.v(f"v_cvt_pk_bf16_f32 v{r2}, v{r2}, v{r2+1}")
        a.v(f"v_cvt_pk_bf16_f32 v{r2+1}, v{r2+2}, v{r2+3}")
    for mt in range(3):
        for t in range(8): a.mfma(accO(mt, t), Vf(t), accS(0, mt), None)
        for t in range(8): a.mfma(accO(mt, t), Vf(t)+4, accS(2, mt), accO(mt, t), k=16)
    for mt in range(3):
        for kp in range(4):
            r = accO(mt, 2*kp); s_ = accO(mt, 2*kp+1)
            a.v(f"v_cvt_pk_bf16_f32 v{r}, v{r}, v{r+1}")
            a.v(f"v_cvt_pk_bf16_f32 v{r+1}, v{r+2}, v{r+3}")
            a.v(f"v_cvt_pk_bf16_f32 v{r+2}, v{s_}, v{s_+1}")
            a.v(f"v_cvt_pk_bf16_f32 v{r+3}, v{s_+2}, v{s_+3}")
            f = kp*3 + mt
            a.s(f"s_add_u32 s82, s80, {(f//4)*4096 + WS_O}")
            a.bstore(r, 4, 14, S_WS, "s82", off=(f % 4)*1024, flags=cfg.st_o)

def kernel1(cfg):
    a = Asm()
    prologue(a, "L1_end", {'x', 'k', 'v', 'wq', 'ws'})
    a.s(f"s_cmp_ge_u32 s{S_W}, 4")
    a.s("s_cbranch_scc1 L1_loader")
    p1_compute(a, cfg)
    a.s("s_endpgm")
    a.label("L1_loader")
    a.reset_state()
    p1_loader(a, cfg)
    a.label("L1_end")
    a.s("s_endpgm")
    return a

RSTR = 304
RHALF = 96*RSTR
def p2_loader(a, cfg, slot0=0):
    a.s(f"s_sub_u32 s73, s{S_W}, 4")
    a.s("s_and_b32 s74, s73, 1")
    a.s("s_lshr_b32 s75, s73, 1")
    a.s(f"s_lshl_b32 s76, s{S_KQ}, 10")
    a.s("s_lshl_b32 s77, s75, 7")
    a.s("s_add_u32 s76, s76, s77")
    a.s("s_lshl_b32 s77, s74, 5")
    a.s("s_add_u32 s76, s76, s77")
    a.s("s_mul_i32 s76, s76, 1152")
    a.s(f"s_mul_i32 s77, s{S_HP}, 288")
    a.s("s_and_b32 s77, s77, 0xffffffc0")
    a.s("s_add_u32 s76, s76, s77")
    for u in range(320): assert (u*3277) >> 16 == u // 20
    for y in range(5):
        a.v(f"v_add_u32 v10, {y*64}, v1")
        a.v("v_mul_u32_u24 v11, 3277, v10")
        a.v("v_lshrrev_b32 v11, 16, v11")
        a.v("v_mul_u32_u24 v12, 20, v11")
        a.v("v_sub_u32 v12, v10, v12")
        a.v("v_bfe_u32 v13, v11, 2, 1")
        a.v("v_lshlrev_b32 v13, 1, v13")
        a.v("v_xor_b32 v12, v12, v13")
        a.v("v_mul_u32_u24 v11, 1152, v11")
        a.v("v_lshl_add_u32 v11, v12, 4, v11")
        a.v(f"v_add_u32 v{2+y}, s76, v11")
    a.s("s_mul_i32 s78, s73, 10240")
    def stage(z):
        p, k2 = divmod(z, 2)
        slot = ((slot0 + z) % 3) * SLOT
        a.s(f"s_add_u32 s79, s{S_HP}, {p}")
        a.s("s_and_b32 s79, s79, 3")
        a.s(f"s_mul_i32 s79, s79, {256*1152}")
        for z2 in range(2):
            a.s(f"s_add_u32 s82, s79, {(k2*64 + z2*16)*1152}")
            for y in range(5):
                a.s(f"s_add_u32 m0, s78, {slot + z2*5120 + y*1024}")
                a.dma(2+y, S_WO, "s82", cfg.ld_wo, tag=("wo", z))
    stage(0); stage(1); stage(2)
    for g in range(8):
        a.wait_vm_tag(("wo", g))
        a.barrier()
        if 1 <= g <= 5: stage(g + 2)

def p2_compute(a, cfg, slot0=0):
    ACC = 16; WF = 124; OF = [160, 208]
    acc = lambda mt, t: ACC + (mt*9 + t)*4
    Wf = lambda t: WF + 4*t
    of = lambda buf, kp, mt: OF[buf] + (kp*3 + mt)*4
    a.s(f"s_and_b32 s74, s{S_W}, 1")
    a.s(f"s_lshr_b32 s75, s{S_W}, 1")
    a.v("v_lshrrev_b32 v4, 4, v1")
    a.v("v_bfe_u32 v5, v1, 2, 2")
    a.v("v_and_b32 v6, 3, v1")
    a.v("v_lshl_add_u32 v7, v4, 2, v5")
    a.v("v_mul_u32_u24 v7, 320, v7")
    a.v("v_lshl_add_u32 v7, v6, 3, v7")
    a.s("s_mul_i32 s76, s75, 20480")
    a.s(f"s_add_u32 s76, s76, {(slot0 % 3)*SLOT}")
    a.v("v_add_u32 v7, s76, v7")
    a.s(f"s_and_b32 s77, s{S_HP}, 1")
    a.v("v_and_b32 v8, 1, v4")
    a.v("v_xor_b32 v9, s77, v8")
    a.v("v_lshl_add_u32 v2, v9, 5, v7")
    a.s("s_add_u32 s77, s77, 1")
    a.v("v_xor_b32 v9, s77, v8")
    a.v("v_lshl_add_u32 v3, v9, 5, v7")
    a.v("v_subrev_u32 v3, 32, v3")
    a.v("v_lshlrev_b32 v14, 4, v1")
    zlast = 7
    regA = ((slot0 + zlast + 1) % 3) * SLOT
    regB = ((slot0 + zlast + 2) % 3) * SLOT
    a.v("v_and_b32 v9, 15, v1")
    a.v(f"v_mul_u32_u24 v9, {RSTR}, v9")
    a.v("v_lshl_add_u32 v9, v4, 3, v9")
    a.s(f"s_mul_i32 s76, s74, {48*RSTR}")
    a.s("s_cmp_eq_u32 s75, 0")
    a.s(f"s_mov_b32 s77, {regB}")
    a.s(f"s_cselect_b32 s77, {regA}, s77")
    a.s("s_add_u32 s76, s76, s77")
    a.v("v_add_u32 v12, s76, v9")
    a.s(f"s_lshl_b32 s76, s{S_BR}, 4")
    a.s(f"s_lshl_b32 s77, s{S_BP}, 1")
    a.s("s_add_u32 s76, s76, s77")
    a.s("s_add_u32 s76, s76, s74")
    a.s("s_lshl_b32 s76, s76, 5")
    a.s(f"s_lshl_b32 s77, s{S_KQ}, 3")
    a.s("s_add_u32 s76, s76, s77")
    a.s("s_add_u32 s76, s76, s75")
    a.s("s_mul_i32 s80, s76, 12288")
    def headbase(p):
        a.s(f"s_add_u32 s81, s{S_HP}, {p}")
        a.s("s_and_b32 s81, s81, 3")
        a.s(f"s_mul_i32 s81, s81, {2*12288}")
        a.s("s_add_u32 s81, s81, s80")
    def ldO(p, f):
        kp, mt = divmod(f, 3)
        a.s(f"s_add_u32 s82, s81, {(f//4)*4096 + WS_O}")
        a.bload(of(p & 1, kp, mt), 4, 14, S_WS, "s82", off=(f % 4)*1024, flags=cfg.ld_o)
    for p in range(2):
        headbase(p)
        for f in range(12): ldO(p, f)
    for r in range(108): a.v(f"v_mov_b32 v{ACC+r}, 0")
    def rdW(t, ks):
        a.ds_read("ds_read_b64_tr_b16", Wf(t), 2, 2 + (t & 1), off=ks*10240 + 32*t)
        a.ds_read("ds_read_b64_tr_b16", Wf(t)+2, 2, 2 + (t & 1), off=ks*10240 + 5120 + 32*t)
    a.barrier()
    for t in range(9): rdW(t, 0)
    for z in range(8):
        p, k2 = divmod(z, 2)
        last = z == 7
        for ks in range(2):
            kp = k2*2 + ks
            for t in range(9):
                for mt in range(3): a.mfma(acc(mt, t), Wf(t), of(p & 1, kp, mt), acc(mt, t))
                if ks == 0:
                    rdW(t, 1)
                elif not last:
                    if t == 1:
                        a.waitcnt(lgkm=0)
                        a.barrier()
                        delta = SLOT if (slot0 + z + 1) % 3 else -2*SLOT
                        for r in (2, 3): a.v(f"v_add_u32 v{r}, {delta & 0xffffffff}, v{r}")
                        rdW(0, 0); rdW(1, 0)
                    elif t > 1: rdW(t, 0)
            if p < 2:
                if kp == 0: headbase(p + 2)
                for mt in range(3): ldO(p + 2, kp*3 + mt)
    for mt in range(3):
        for t in range(9):
            r = acc(mt, t)
            a.v(f"v_cvt_pk_bf16_f32 v{r}, v{r}, v{r+1}")
            a.v(f"v_cvt_pk_bf16_f32 v{r+1}, v{r+2}, v{r+3}")
            a.ds_write("ds_write_b64", 12, r, 2, off=mt*16*RSTR + 32*t)
    a.waitcnt(lgkm=0)
    return regA, regB

def t18(a, vrow, vcc_):
    for u in range(512): assert (u*3641) >> 16 == u // 18
    a.v(f"v_mul_u32_u24 v{vrow}, 3641, v0")
    a.v(f"v_lshrrev_b32 v{vrow}, 16, v{vrow}")
    a.v(f"v_mul_u32_u24 v{vcc_}, 18, v{vrow}")
    a.v(f"v_sub_u32 v{vcc_}, v0, v{vcc_}")

def unpack_add(a, dst, src, first):
    for i in range(4):
        if first:
            a.v(f"v_lshlrev_b32 v{dst+2*i}, 16, v{src+i}")
            a.v(f"v_and_b32 v{dst+2*i+1}, 0xffff0000, v{src+i}")
        else:
            a.v(f"v_lshlrev_b32 v60, 16, v{src+i}")
            a.v(f"v_and_b32 v61, 0xffff0000, v{src+i}")
            a.v(f"v_add_f32 v{dst+2*i}, v{dst+2*i}, v60")
            a.v(f"v_add_f32 v{dst+2*i+1}, v{dst+2*i+1}, v61")

def p2_publish(a, cfg, regA, regB, endlabel):
    t18(a, 4, 5)
    a.v(f"v_mul_u32_u24 v6, {RSTR}, v4")
    a.v("v_lshl_add_u32 v6, v5, 4, v6")
    a.v(f"v_add_u32 v7, {regB}, v6")
    a.v(f"v_add_u32 v6, {regA}, v6")
    a.v("v_lshlrev_b32 v8, 4, v0")
    a.s("s_movk_i32 s76, 432")
    a.v("v_cmp_gt_u32 vcc, s76, v0")
    a.barrier()
    a.s("s_and_saveexec_b64 s[84:85], vcc")
    a.s(f"s_cbranch_execz {endlabel}")
    for d in range(4):
        a.ds_read("ds_read_b128", 16 + 8*d, 4, 6, off=d*24*RSTR)
        a.ds_read("ds_read_b128", 20 + 8*d, 4, 7, off=d*24*RSTR)
    a.s("s_and_b32 s76, s2, 0xfc")
    a.s("s_lshl_b32 s76, s76, 2")
    a.s(f"s_add_u32 s76, s76, s{S_KQ}")
    a.s("s_mul_i32 s76, s76, 6912")
    for d in range(4):
        unpack_add(a, 48, 16 + 8*d, True)
        unpack_add(a, 48, 20 + 8*d, False)
        for i in range(4): a.v(f"v_cvt_pk_bf16_f32 v{64+4*d+i}, v{48+2*i}, v{49+2*i}")
        a.s(f"s_add_u32 s77, s76, {WS_PART + d*4*6912}")
        a.bstore(64 + 4*d, 4, 8, S_WS, "s77", flags=cfg.st_p)

def kernel2(cfg):
    a = Asm()
    prologue(a, "L2_end", {'wo', 'ws'})
    a.s(f"s_cmp_ge_u32 s{S_W}, 4")
    a.s("s_cbranch_scc1 L2_loader")
    regA, regB = p2_compute(a, cfg)
    a.s("s_branch L2_pub")
    a.label("L2_loader")
    a.reset_state()
    p2_loader(a, cfg)
    a.label("L2_pub")
    a.reset_state()
    a.nop(8)
    p2_publish(a, cfg, regA, regB, "L2_end")
    a.label("L2_end")
    a.s("s_endpgm")
    return a

def kernel3(cfg):
    a = Asm()
    prologue(a, "L3_end", {'out', 'ws'})
    t18(a, 4, 5)
    a.v("v_lshlrev_b32 v8, 4, v0")
    a.v("v_mul_u32_u24 v6, 2304, v4")
    a.v("v_lshl_add_u32 v6, v5, 4, v6")
    a.s(f"s_mul_i32 s76, s{S_BP}, 96")
    a.s(f"s_mul_i32 s77, s{S_KQ}, 24")
    a.s("s_add_u32 s76, s76, s77")
    a.s("s_mul_i32 s76, s76, 2304")
    a.s(f"s_mul_i32 s77, s{S_BR}, 1152")
    a.s("s_add_u32 s76, s76, s77")
    a.s(f"s_mul_i32 s77, s{S_HP}, 288")
    a.s("s_add_u32 s76, s76, s77")
    a.s("s_movk_i32 s78, 432")
    a.v("v_cmp_gt_u32 vcc, s78, v0")
    a.s("s_and_saveexec_b64 s[84:85], vcc")
    a.s("s_cbranch_execz L3_end")
    a.s(f"s_mul_i32 s79, s2, {4*6912}")
    for d in range(4):
        a.s(f"s_add_u32 s77, s79, {WS_PART + d*6912}")
        a.bload(16 + 4*d, 4, 8, S_WS, "s77", flags=cfg.ld_p)
    for d in range(4): unpack_add(a, 48, 16 + 4*d, d == 0)
    for i in range(4): a.v(f"v_cvt_pk_bf16_f32 v{64+i}, v{48+2*i}, v{49+2*i}")
    a.bstore(64, 4, 6, S_OUT, "s76")
    a.label("L3_end")
    a.s("s_endpgm")
    return a

def kd(name, vgpr):
    return f""".amdhsa_kernel {name}
  .amdhsa_next_free_vgpr {vgpr}
  .amdhsa_next_free_sgpr 96
  .amdhsa_accum_offset {vgpr}
  .amdhsa_group_segment_fixed_size 0
  .amdhsa_kernarg_size 104
  .amdhsa_user_sgpr_count 2
  .amdhsa_user_sgpr_kernarg_segment_ptr 1
  .amdhsa_system_sgpr_workgroup_id_x 1
.end_amdhsa_kernel
"""

def build(cfg):
    ks = [("p1_kernel", kernel1(cfg), 256, 163840, 512), ("p2_kernel", kernel2(cfg), 256, 163840, 512), ("p3_kernel", kernel3(cfg), 80, 0, 448)]
    out = []
    for n, _, _, lds, blk in ks:
        out.append(f"; @launch kernel={n} grid=(256,1,1) block=({blk},1,1) lds={lds}")
    out.append('.amdgcn_target "amdgcn-amd-amdhsa--gfx950"')
    out.append(".text")
    for n, a, _, _, _ in ks:
        out += [f".globl {n}", ".p2align 8", f".type {n},@function", f"{n}:", a.text()]
    out.append('.section .rodata,"a"')
    for n, _, vg, _, _ in ks:
        out.append(".p2align 6")
        out.append(kd(n, vg))
    return "\n".join(out)

if __name__ == "__main__":
    cfg = Cfg()
    for kv in sys.argv[2:]:
        k, v = kv.split("="); setattr(cfg, k, v.replace("_", " "))
    open(sys.argv[1], "w").write(build(cfg))
```

```python
import sys, struct
from asm import *

NAME = "concat_heads__gqa_block_cached__mha_block_cached__near_ridge"
SLOT = 52224
KSTR, VSTR = 1040, 1056
KUNIT, VUNIT = 12*KSTR, 12*VSTR
LDS_NONCE = 3*SLOT
WS_O = 0
WS_PART = 16 << 20
WS_FLAG1 = 14 << 20
WS_FLAG2 = 15 << 20
WS_STAMP = 24 << 20
WS_BYTES = 32 << 20
RSTR = 304
SC = 0.08838834764831845 * 1.4426950408889634
SPIN_MAX = 1 << 17
def f2u(x): return struct.unpack("<I", struct.pack("<f", x))[0]

S_X, S_K, S_V, S_WQ, S_WO, S_OUT, S_WS, S_DBG = 36, 40, 44, 48, 52, 56, 60, 64
S_BR, S_KQ, S_HP, S_BP, S_W = 68, 69, 70, 71, 72

class Cfg:
    stamps = False
    ld_x = ""; ld_wq = ""; ld_kv = ""; ld_wo = ""
    skew = 9; touch = True; prio = 0; lcap = 15
    barpos = 3
    x_nodma = False

NST = 12
def stamp(a, cfg, i):
    if cfg.stamps:
        r = 4 if i == 0 else 8 + 2*(i-1)
        a.raw(f"    s_memrealtime s[{r}:{r+1}]"); a.pos += 1
def stamp_out(a, cfg):
    if not cfg.stamps: return
    a.raw("    s_waitcnt lgkmcnt(0)")
    a.s("s_mov_b64 exec, 1")
    a.s("s_lshl_b32 s3, s2, 3")
    a.s(f"s_add_u32 s3, s3, s{S_W}")
    a.s("s_lshl_b32 s3, s3, 6")
    a.s(f"s_add_u32 s3, s3, {WS_STAMP}")
    a.v("v_mov_b32 v1, 0")
    for i in range(NST):
        r = 4 if i == 0 else 8 + 2*(i-1)
        a.v(f"v_mov_b32 v2, s{r}")
        a.bstore(2, 1, 1, S_WS, "s3", off=4*i)
        a.nop(2)

def srd(a, base, lo, hi, size):
    a.s(f"s_mov_b32 s{base}, s{lo}")
    a.s(f"s_mov_b32 s{base+1}, s{hi}")
    a.s(f"s_mov_b32 s{base+2}, {size}")
    a.s(f"s_mov_b32 s{base+3}, 0x20000")

def prologue(a, cfg, endlabel):
    a.s("s_cmp_ge_u32 s2, 256")
    a.s(f"s_cbranch_scc1 {endlabel}")
    a.raw("    s_load_dwordx16 s[8:23], s[0:1], 0")
    a.raw("    s_load_dwordx8 s[24:31], s[0:1], 64")
    a.raw("    s_load_dwordx2 s[32:33], s[0:1], 96")
    a.v("v_and_b32 v1, 63, v0")
    a.v("v_lshrrev_b32 v15, 6, v0")
    a.s(f"s_and_b32 s{S_KQ}, s2, 3")
    a.s(f"s_bfe_u32 s{S_BR}, s2, 0x10002")
    a.s(f"s_bfe_u32 s{S_HP}, s2, 0x20003")
    a.s(f"s_lshr_b32 s{S_BP}, s2, 5")
    a.v(f"v_readfirstlane_b32 s{S_W}, v15")

def build_srds(a):
    a.raw("    s_waitcnt lgkmcnt(0)")
    a.s(f"s_cmp_eq_u32 s{S_BR}, 0")
    for (dst, pa, pb, key) in ((S_X, 8, 18, 'x'), (S_WQ, 14, 24, 'wq'), (S_K, 10, 20, 'k'), (S_V, 12, 22, 'v'), (S_WO, 16, 26, 'wo')):
        a.s(f"s_cselect_b64 s[{dst}:{dst+1}], s[{pa}:{pa+1}], s[{pb}:{pb+1}]")
        if key in ('k', 'v'):
            a.s(f"s_mov_b32 s{dst+2}, 6291456")
            a.s(f"s_cselect_b32 s{dst+2}, 3145728, s{dst+2}")
        else:
            a.s(f"s_mov_b32 s{dst+2}, {884736 if key == 'x' else 4718592}")
        a.s(f"s_mov_b32 s{dst+3}, 0x20000")
    srd(a, S_OUT, 28, 29, 1769472)
    srd(a, S_DBG, 30, 31, 256)
    srd(a, S_WS, 32, 33, WS_BYTES)

_lbl = [0]
def newlabel(p):
    _lbl[0] += 1
    return f"L{p}_{_lbl[0]}"

def poll_flags(a, vdata, vnonce, voff, soff, smask, stmp):
    L = newlabel("poll"); X = newlabel("pollx")
    a.s(f"s_mov_b32 exec_lo, s{smask}")
    a.s("s_mov_b32 exec_hi, 0")
    a.s(f"s_mov_b32 s{stmp}, 0")
    a.label(L)
    a.bload(vdata, 2, voff, S_WS, f"s{soff}", flags="sc1")
    a.s(f"s_add_u32 s{stmp}, s{stmp}, 1")
    a.s(f"s_cmp_gt_u32 s{stmp}, {SPIN_MAX}")
    a.waitcnt(vm=0)
    a.s(f"s_cbranch_scc1 {X}")
    a.v(f"v_cmp_ne_u64 vcc, v[{vdata}:{vdata+1}], v[{vnonce}:{vnonce+1}]")
    a.s(f"s_cbranch_vccnz {L}")
    a.label(X)
    a.s("s_mov_b64 exec, -1")

def loader(a, cfg):
    a.s(f"s_sub_u32 s73, s{S_W}, 4")
    a.s("s_and_b32 s74, s73, 1")
    a.s("s_lshr_b32 s75, s73, 1")
    a.v("v_lshrrev_b32 v4, 5, v1")
    a.s("s_lshl_b32 s76, s74, 1")
    a.s("s_lshl_b32 s77, s75, 2")
    a.s("s_or_b32 s76, s76, s77")
    a.v("v_or_b32 v5, s76, v4")
    a.v("v_bfe_u32 v6, v1, 1, 4")
    a.v("v_xor_b32 v6, v6, v5")
    a.v("v_lshlrev_b32 v6, 5, v6")
    a.v("v_and_b32 v7, 1, v1")
    a.v("v_lshl_add_u32 v6, v7, 4, v6")
    a.v("v_lshl_add_u32 v2, v4, 13, v6")
    a.s("s_lshl_b32 s76, s75, 16")
    a.s("s_lshl_b32 s77, s74, 14")
    a.s("s_add_u32 s76, s76, s77")
    a.s(f"s_lshl_b32 s77, s{S_KQ}, 11")
    a.s("s_add_u32 s76, s76, s77")
    a.s(f"s_lshl_b32 s77, s{S_HP}, 9")
    a.s("s_add_u32 s76, s76, s77")
    a.v("v_add_u32 v2, s76, v2")
    a.v("v_lshrrev_b32 v4, 3, v1")
    a.v("v_mul_u32_u24 v4, 1152, v4")
    a.v("v_lshrrev_b32 v5, 4, v1")
    a.s("s_lshl_b32 s76, s74, 2")
    a.v("v_or_b32 v5, s76, v5")
    a.v("v_and_b32 v6, 7, v1")
    a.v("v_xor_b32 v6, v6, v5")
    a.v("v_lshl_add_u32 v3, v6, 4, v4")
    a.s(f"s_mul_i32 s76, s{S_BP}, {96*1152}")
    a.s(f"s_mul_i32 s77, s74, {8*1152}")
    a.s("s_add_u32 s76, s76, s77")
    a.s(f"s_mul_i32 s77, s75, {48*1152}")
    a.s("s_add_u32 s76, s76, s77")
    a.v("v_add_u32 v3, s76, v3")
    a.s("s_lshl_b32 s78, s75, 12")
    a.s("s_lshl_b32 s77, s74, 10")
    a.s("s_add_u32 s78, s78, s77")
    a.s("s_mul_i32 s79, s75, 6144")
    a.s("s_add_u32 s79, s79, s77")
    a.s("s_add_u32 s79, s79, 32768")
    if cfg.skew == 3:
        a.s(f"s_add_u32 s84, s{S_HP}, s{S_BP}")
        a.s("s_mul_i32 s85, s84, 43")
        a.s("s_lshr_b32 s85, s85, 7")
        a.s("s_mul_i32 s85, s85, 3")
        a.s("s_sub_u32 s84, s84, s85")
        a.s("s_mul_i32 s84, s84, 3")
    elif cfg.skew == 4:
        a.s(f"s_add_u32 s84, s{S_HP}, s{S_BP}")
        a.s("s_and_b32 s84, s84, 3")
        a.s("s_lshl_b32 s84, s84, 1")
    elif cfg.skew:
        a.s(f"s_lshl_b32 s84, s{S_HP}, 1")
        a.s(f"s_add_u32 s84, s84, s{S_BP}")
        a.s("s_sub_u32 s85, s84, 9")
        a.s("s_cmp_ge_u32 s84, 9")
        a.s("s_cselect_b32 s84, s85, s84")
    else:
        a.s("s_mov_b32 s84, 0")
    build_srds(a)
    stamp(a, cfg, 1)
    def stage(s):
        slot = (s % 3) * SLOT
        a.s("s_lshl_b32 s85, s84, 7")
        a.s("s_lshl_b32 s86, s84, 19")
        for i4 in range(2):
            for i3 in range(2):
                for i1 in range(2):
                    a.s(f"s_add_u32 m0, s78, {slot + i4*16384 + i3*8192 + i1*2048}")
                    a.s(f"s_add_u32 s82, s86, {(32*i4 + 16*i3 + 4*i1)*8192}")
                    a.dma(2, S_WQ, "s82", cfg.ld_wq, tag=("st", s))
        for z in range(3):
            a.s(f"s_add_u32 m0, s79, {slot + z*2048}")
            a.s(f"s_add_u32 s82, s85, {z*16*1152}")
            a.dma(3, S_X, "s82", cfg.ld_x, tag=("st", s))
        a.s("s_add_u32 s84, s84, 1")
        a.s("s_cmp_eq_u32 s84, 9")
        a.s("s_cselect_b32 s84, 0, s84")
    a.v("v_mov_b32 v16, 0")
    stage(0)
    L = newlabel("nw")
    a.s("s_add_u32 s76, s2, s73")
    a.s("s_cmp_lg_u32 s76, 0")
    a.s(f"s_cbranch_scc1 {L}")
    a.raw("    s_memrealtime s[88:89]")
    a.raw("    s_waitcnt lgkmcnt(0)")
    a.s("s_or_b32 s88, s88, 1")
    a.v("v_mov_b32 v18, s88")
    a.v("v_mov_b32 v19, s89")
    a.s("s_mov_b64 exec, 1")
    a.raw(f"    buffer_store_dwordx2 v[18:19], v16, s[{S_DBG}:{S_DBG+3}], 0 offen sc1")
    a.s("s_mov_b64 exec, -1")
    a.label(L)
    stage(1)
    a.v("v_lshrrev_b32 v4, 4, v1")
    a.v("v_lshlrev_b32 v5, 2, v4")
    a.v("v_and_b32 v6, 15, v1")
    a.v("v_xor_b32 v6, v6, v5")
    a.v("v_lshlrev_b32 v6, 4, v6")
    a.v("v_lshl_add_u32 v8, v4, 8, v6")
    a.s(f"s_lshl_b32 s76, s{S_BP}, 1")
    a.s("s_add_u32 s76, s76, s74")
    a.s(f"s_lshl_b32 s77, s{S_KQ}, 3")
    a.s(f"s_lshl_b32 s81, s{S_HP}, 1")
    a.s("s_add_u32 s77, s77, s81")
    a.s("s_add_u32 s77, s77, s75")
    a.s("s_lshl_b32 s76, s76, 5")
    a.s("s_add_u32 s76, s76, s77")
    a.s(f"s_xor_b32 s77, s{S_BR}, 1")
    a.s("s_lshr_b32 s76, s76, s77")
    a.s("s_mul_i32 s80, s76, 12288")
    a.s("s_mul_i32 s76, s75, 6")
    a.s(f"s_cmp_eq_u32 s{S_BR}, 0")
    a.s("s_cselect_b32 s76, s76, 0")
    a.s("s_cselect_b32 s77, s74, s73")
    a.s("s_cselect_b32 s90, 0, -1")
    a.s("s_mul_i32 s77, s77, 12")
    a.s("s_add_u32 s77, s77, s76")
    a.s(f"s_mul_i32 s91, s77, {KSTR}")
    a.s(f"s_mul_i32 s92, s77, {VSTR}")
    a.s(f"s_add_u32 s92, s92, {SLOT}")
    a.s("s_lshl_b32 s76, s76, 10")
    a.s("s_add_u32 s80, s80, s76")
    a.s(f"s_lshl_b32 s76, s{S_KQ}, 10")
    a.s("s_lshl_b32 s77, s75, 7")
    a.s("s_add_u32 s76, s76, s77")
    a.s("s_lshl_b32 s77, s74, 5")
    a.s("s_add_u32 s76, s76, s77")
    a.s("s_mul_i32 s76, s76, 1152")
    a.s(f"s_mul_i32 s77, s{S_HP}, 288")
    a.s("s_and_b32 s77, s77, 0xffffffc0")
    a.s("s_add_u32 s76, s76, s77")
    for y in range(5):
        a.v(f"v_add_u32 v4, {y*64}, v1")
        a.v("v_mul_u32_u24 v5, 3277, v4")
        a.v("v_lshrrev_b32 v5, 16, v5")
        a.v("v_mul_u32_u24 v6, 20, v5")
        a.v("v_sub_u32 v6, v4, v6")
        a.v("v_bfe_u32 v7, v5, 2, 1")
        a.v("v_lshlrev_b32 v7, 1, v7")
        a.v("v_xor_b32 v6, v6, v7")
        a.v("v_mul_u32_u24 v5, 1152, v5")
        a.v("v_lshl_add_u32 v5, v6, 4, v5")
        a.v(f"v_add_u32 v{9+y}, s76, v5")
    a.s("s_mul_i32 s93, s73, 10240")
    a.v("v_lshlrev_b32 v14, 7, v1")
    a.s("s_lshr_b32 s76, s2, 3")
    a.s("s_lshl_b32 s76, s76, 2")
    a.s("s_add_u32 s76, s76, s73")
    a.s(f"s_mul_i32 s76, s76, {72*128}")
    a.s(f"s_mul_i32 s94, s{S_KQ}, {1024*1152}")
    a.s("s_add_u32 s94, s94, s76")
    a.v(f"v_mov_b32 v17, {LDS_NONCE}")
    def kvstage(g, srdb, sm0, stride):
        for i in range(12):
            if i == 6:
                a.s("s_mov_b32 exec_lo, s90"); a.s("s_mov_b32 exec_hi, s90")
            a.s(f"s_add_u32 m0, s{sm0}, {i*stride}")
            a.s(f"s_add_u32 s82, s80, {i*1024}")
            a.dma(8, srdb, "s82", cfg.ld_kv, tag=("st", g))
        a.s("s_mov_b64 exec, -1")
    def wostage(z):
        p, k2 = divmod(z, 2)
        slot = ((11 + z) % 3) * SLOT
        a.s(f"s_add_u32 s83, s{S_HP}, {p}")
        a.s("s_and_b32 s83, s83, 3")
        a.s(f"s_mul_i32 s83, s83, {256*1152}")
        for z2 in range(2):
            a.s(f"s_add_u32 s82, s83, {(k2*64 + z2*16)*1152}")
            for y in range(5):
                a.s(f"s_add_u32 m0, s93, {slot + z2*5120 + y*1024}")
                a.dma(9+y, S_WO, "s82", cfg.ld_wo, tag=("st", 11+z))
    def issue(g):
        if cfg.x_nodma and g != 10: return
        if g <= 8: stage(g)
        elif g == 9: kvstage(9, S_K, 91, KSTR)
        elif g == 10:
            kvstage(10, S_V, 92, VSTR)
            a.bload(18, 2, 16, S_DBG, "0", flags="sc1", tag="nonce")
            if cfg.touch:
                a.s("s_mov_b32 exec_lo, -1"); a.s("s_mov_b32 exec_hi, 15")
                a.bload(20, 1, 14, S_WO, "s94", tag="touch")
                a.s(f"s_add_u32 s94, s94, {36*128}")
                a.bload(21, 1, 14, S_WO, "s94", tag="touch")
                a.s("s_mov_b64 exec, -1")
        elif g <= 18: wostage(g - 11)
    stamp(a, cfg, 2)
    for g in range(19):
        a.wait_vm_tag(("st", g))
        if g == 0: stamp(a, cfg, 3)
        if g == 3: stamp(a, cfg, 4)
        if g == 8: stamp(a, cfg, 5)
        if g == 9: stamp(a, cfg, 6)
        if g == 10: stamp(a, cfg, 7)
        if g == 11:
            stamp(a, cfg, 8)
            Lok = newlabel("nok"); Lsp = newlabel("nsp")
            a.s("s_mov_b32 s77, 0")
            a.label(Lsp)
            a.v("v_readfirstlane_b32 s76, v18")
            a.s("s_cmp_lg_u32 s76, 0")
            a.s(f"s_cbranch_scc1 {Lok}")
            a.s("s_add_u32 s77, s77, 1")
            a.s(f"s_cmp_gt_u32 s77, {SPIN_MAX}")
            a.s(f"s_cbranch_scc1 {Lok}")
            a.raw(f"    buffer_load_dwordx2 v[18:19], v16, s[{S_DBG}:{S_DBG+3}], 0 offen sc1")
            a.raw("    s_waitcnt vmcnt(0)")
            a.s(f"s_branch {Lsp}")
            a.label(Lok)
            a.ds_write("ds_write_b64", 17, 18, 2)
            a.waitcnt(lgkm=0)
        if g == 15: stamp(a, cfg, 9)
        if g == 18: stamp(a, cfg, 10)
        a.barrier()
        if g == 0: issue(2)
        elif g + 2 <= 18: issue(g + 2)

def xlane_reduce(a, op, regs, tmps):
    for sw in ("v_permlane32_swap_b32", "v_permlane16_swap_b32"):
        for r, t in zip(regs, tmps): a.v(f"v_mov_b32 v{t}, v{r}")
        for r, t in zip(regs, tmps): a.v(f"{sw} v{r}, v{t}")
        for r, t in zip(regs, tmps): a.v(f"{op} v{r}, v{r}, v{t}")

class Fill:
    def __init__(self): self.q = []
    def add(self, *fs): self.q.extend(fs)
    def pop(self, n):
        for _ in range(n):
            if self.q: self.q.pop(0)()
    def drain(self): self.pop(len(self.q))

def compute(a, cfg):
    ACC = 16; WF = 112; XF = 144; KF = 168; AS = 216; VF = 112
    accQ = lambda t, mt: ACC + (t*3 + mt)*4
    Wf = lambda t: WF + 4*t
    Xf = lambda par, mt: XF + par*12 + mt*4
    Kf = lambda kt, kp: KF + (kt*4 + kp)*4
    accS = lambda kt, mt: AS + (kt*3 + mt)*4
    Vf = lambda t: VF + 6*t
    accO = lambda mt, t: ACC + (mt*8 + t)*4
    aW = lambda sl, t: 216 + sl*10 + t
    aX = lambda sl, ks: 216 + sl*10 + 8 + ks
    aK = lambda kp: 252 + kp
    aV = lambda th: 2 + th
    R = [13, 15]
    ofA = lambda kp, mt: 168 + (kp*3 + mt)*4
    def ofB(kp, mt):
        f = kp*3 + mt
        return 216 + f*4 if f < 10 else 160 + (f - 10)*4
    of = lambda buf, kp, mt: ofB(kp, mt) if buf else ofA(kp, mt)
    acc2 = lambda mt, t: 16 + (mt*9 + t)*4
    Wf2 = lambda t: 124 + 4*t

    if cfg.prio: a.s(f"s_setprio {cfg.prio}")
    a.s(f"s_and_b32 s74, s{S_W}, 1")
    a.s(f"s_lshr_b32 s75, s{S_W}, 1")
    a.v("v_lshrrev_b32 v160, 4, v1")
    a.v("v_bfe_u32 v161, v1, 2, 2")
    a.v("v_and_b32 v162, 3, v1")
    a.v("v_and_b32 v163, 15, v1")
    a.v("v_lshl_add_u32 v164, v160, 3, v161")
    a.v("v_lshlrev_b32 v164, 9, v164")
    a.v("v_and_b32 v165, 1, v160")
    a.v("v_lshl_or_b32 v166, v165, 2, v161")
    a.v("v_lshl_add_u32 v164, v166, 5, v164")
    a.v("v_lshl_add_u32 v164, v162, 3, v164")
    a.s("s_lshl_b32 s76, s75, 8")
    a.v(f"v_add_u32 v{aW(0,0)}, s76, v164")
    for t in range(1, 8): a.v(f"v_xor_b32 v{aW(0,t)}, {32*t}, v{aW(0,0)}")
    a.v("v_lshrrev_b32 v164, 1, v163")
    a.v("v_xor_b32 v164, v164, v160")
    a.v("v_lshlrev_b32 v164, 4, v164")
    a.v("v_lshl_add_u32 v164, v163, 7, v164")
    a.s("s_mul_i32 s76, s74, 6144")
    a.s("s_add_u32 s76, s76, 32768")
    a.v(f"v_add_u32 v{aX(0,0)}, s76, v164")
    a.v(f"v_xor_b32 v{aX(0,1)}, 64, v{aX(0,0)}")
    for sl in (1, 2):
        for i in range(10): a.v(f"v_add_u32 v{216+sl*10+i}, {sl*SLOT}, v{216+i}")
    a.s(f"s_cmp_eq_u32 s{S_BR}, 0")
    a.s(f"s_cselect_b32 s77, s74, s{S_W}")
    a.s(f"s_mul_i32 s76, s77, {KUNIT}")
    a.v(f"v_mul_u32_u24 v164, {KSTR}, v161")
    a.v("v_lshl_add_u32 v164, v162, 8, v164")
    a.v("v_lshl_add_u32 v164, v160, 3, v164")
    a.v("v_add_u32 v164, s76, v164")
    for kp in range(4):
        a.v(f"v_xor_b32 v167, {kp}, v162")
        a.v(f"v_lshl_add_u32 v{aK(kp)}, v167, 6, v164")
    a.s(f"s_mul_i32 s76, s77, {VUNIT}")
    a.s(f"s_add_u32 s76, s76, {SLOT}")
    a.v(f"v_mul_u32_u24 v164, {VSTR}, v160")
    a.v("v_lshl_add_u32 v164, v161, 8, v164")
    a.v("v_lshl_add_u32 v164, v162, 3, v164")
    a.v("v_add_u32 v164, s76, v164")
    for th in range(4):
        a.v(f"v_xor_b32 v167, {th}, v161")
        a.v(f"v_lshl_add_u32 v{aV(th)}, v167, 6, v164")
    a.v("v_lshl_add_u32 v164, v160, 2, v161")
    a.v("v_mul_u32_u24 v164, 320, v164")
    a.v("v_lshl_add_u32 v164, v162, 3, v164")
    a.s("s_mul_i32 s76, s75, 20480")
    a.s(f"s_add_u32 s76, s76, {2*SLOT}")
    a.v("v_add_u32 v164, s76, v164")
    a.s(f"s_and_b32 s77, s{S_HP}, 1")
    a.v("v_xor_b32 v167, s77, v165")
    a.v(f"v_lshl_add_u32 v{R[0]}, v167, 5, v164")
    a.s("s_add_u32 s77, s77, 1")
    a.v("v_xor_b32 v167, s77, v165")
    a.v(f"v_lshl_add_u32 v{R[1]}, v167, 5, v164")
    a.v(f"v_subrev_u32 v{R[1]}, 32, v{R[1]}")
    a.v("v_lshlrev_b32 v14, 4, v1")
    regA = ((11 + 7 + 1) % 3) * SLOT
    regB = ((11 + 7 + 2) % 3) * SLOT
    a.v(f"v_mul_u32_u24 v164, {RSTR}, v163")
    a.v("v_lshl_add_u32 v164, v160, 3, v164")
    a.s(f"s_mul_i32 s76, s74, {48*RSTR}")
    a.s("s_cmp_eq_u32 s75, 0")
    a.s(f"s_mov_b32 s77, {regB}")
    a.s(f"s_cselect_b32 s77, {regA}, s77")
    a.s("s_add_u32 s76, s76, s77")
    a.v("v_add_u32 v12, s76, v164")
    a.v("v_lshlrev_b32 v11, 3, v1")
    a.v(f"v_mov_b32 v10, {LDS_NONCE}")
    a.s(f"s_lshl_b32 s76, s{S_BR}, 4")
    a.s(f"s_lshl_b32 s77, s{S_BP}, 1")
    a.s("s_add_u32 s76, s76, s77")
    a.s("s_add_u32 s76, s76, s74")
    a.s("s_lshl_b32 s76, s76, 5")
    a.s(f"s_lshl_b32 s77, s{S_KQ}, 3")
    a.s("s_add_u32 s76, s76, s77")
    a.s("s_add_u32 s76, s76, s75")
    a.s("s_mul_i32 s80, s76, 12288")
    a.s(f"s_mov_b32 s83, {f2u(SC)}")
    a.s("s_and_b32 s76, s2, 7")
    a.s(f"s_lshl_b32 s77, s{S_BP}, 3")
    a.s("s_or_b32 s76, s76, s77")
    a.s("s_lshl_b32 s76, s76, 2")
    a.s(f"s_add_u32 s76, s76, s{S_W}")
    a.s("s_lshl_b32 s76, s76, 7")
    a.s(f"s_add_u32 s84, s76, {WS_FLAG1}")
    a.s(f"s_lshl_b32 s85, 1, s{S_HP}")
    a.s("s_xor_b32 s86, s85, 15")
    build_srds(a)

    ver = {}
    def rdW(s, t, ks, h):
        def f():
            a.ds_read("ds_read_b64_tr_b16", Wf(t)+2*h, 2, aW(s % 3, t), off=ks*16384 + h*2048); ver[("W", t, h)] = (s, ks)
        return f
    def rdX(s, mt, ks):
        def f():
            a.ds_read("ds_read_b128", Xf(ks, mt), 4, aX(s % 3, ks), off=mt*2048); ver[("X", ks, mt)] = s
        return f
    def chk1(s, ks, t, mt):
        assert ver[("W", t, 0)] == (s, ks) and ver[("W", t, 1)] == (s, ks) and ver[("X", ks, mt)] == s, (s, ks, t, mt)
    def rdK(kt, kp, e):
        return lambda: a.ds_read("ds_read_b64", Kf(kt, kp)+2*e, 2, aK(kp), off=kt*4*KSTR + 32*e)
    def cvt(d, s0, s1):
        return lambda: a.v(f"v_cvt_pk_bf16_f32 v{d}, v{s0}, v{s1}")
    def cvtQ(kp):
        out = []
        for mt in range(3):
            r = accQ(2*kp, mt); s_ = accQ(2*kp+1, mt)
            out += [cvt(r, r, r+1), cvt(r+1, r+2, r+3), cvt(r+2, s_, s_+1), cvt(r+3, s_+2, s_+3)]
        return out
    F = Fill()
    stamp(a, cfg, 1)
    a.barrier()
    stamp(a, cfg, 2)
    for mt in range(3): rdX(0, mt, 0)()
    for t in range(8): rdW(0, t, 0, 0)(); rdW(0, t, 0, 1)()
    BP = cfg.barpos
    for s in range(9):
        last = s == 8; sl = s; nsl = s + 1
        for mt in range(3): F.add(rdX(sl, mt, 1))
        for t in range(8):
            for mt in range(3):
                chk1(s, 0, t, mt)
                a.mfma(accQ(t, mt), Wf(t), Xf(0, mt), None if s == 0 else accQ(t, mt))
                F.pop(2 if len(F.q) > 2 else 1)
            F.add(rdW(sl, t, 1, 0), rdW(sl, t, 1, 1))
        for t in range(8):
            for mt in range(3):
                chk1(s, 1, t, mt)
                a.mfma(accQ(t, mt), Wf(t), Xf(1, mt), accQ(t, mt))
                F.pop(2 if len(F.q) > 2 else 1)
            if t == BP - 1:
                assert not F.q
                a.waitcnt(lgkm=0)
                a.barrier()
                if not last:
                    F.add(rdX(nsl, 0, 0), rdW(nsl, 0, 0, 0), rdW(nsl, 0, 0, 1), rdX(nsl, 1, 0), rdX(nsl, 2, 0))
                    for tt in range(1, BP): F.add(rdW(nsl, tt, 0, 0), rdW(nsl, tt, 0, 1))
                else:
                    for kp in range(4):
                        for kt in range(3): F.add(rdK(kt, kp, 0), rdK(kt, kp, 1))
            elif t >= BP and not last:
                F.add(rdW(nsl, t, 0, 0), rdW(nsl, t, 0, 1))
    F.drain()
    stamp(a, cfg, 3)
    for kp in range(4):
        for f in cvtQ(kp): f()
    a.waitcnt(lgkm=0)
    for kp in range(4):
        for kt in range(3):
            for mt in range(3):
                a.mfma(accS(kt, mt), Kf(kt, kp), accQ(2*kp, mt), None if kp == 0 else accS(kt, mt))
    MX = [160, 161, 162]; TM = [163, 164, 165]; SM = [166, 167, 6]
    vals = lambda mt: [accS(kt, mt) + r for kt in range(3) for r in range(4)]
    for mt in range(3):
        v = vals(mt); a.v(f"v_max3_f32 v{MX[mt]}, v{v[0]}, v{v[1]}, v{v[2]}")
    for i in range(3, 11, 2):
        for mt in range(3):
            v = vals(mt); a.v(f"v_max3_f32 v{MX[mt]}, v{MX[mt]}, v{v[i]}, v{v[i+1]}")
    for mt in range(3):
        v = vals(mt); a.v(f"v_max_f32 v{MX[mt]}, v{MX[mt]}, v{v[11]}")
    xlane_reduce(a, "v_max_f32", MX, TM)
    for mt in range(3): a.v(f"v_mul_f32 v{MX[mt]}, s83, v{MX[mt]}")
    for i in range(12):
        for mt in range(3):
            v = vals(mt); a.v(f"v_fma_f32 v{v[i]}, v{v[i]}, s83, -v{MX[mt]}")
    for i in range(12):
        for mt in range(3):
            v = vals(mt); a.v(f"v_exp_f32 v{v[i]}, v{v[i]}")
    a.barrier()
    for t in range(8):
        for kt in range(3):
            F.add(lambda t=t, kt=kt: a.ds_read("ds_read_b64_tr_b16", Vf(t) + 2*kt, 2, aV(t >> 1), off=kt*4*VSTR + (t & 1)*32))
    for mt in range(3):
        v = vals(mt); a.v(f"v_add_f32 v{SM[mt]}, v{v[0]}, v{v[1]}"); F.pop(1)
    for i in range(2, 12):
        for mt in range(3):
            v = vals(mt); a.v(f"v_add_f32 v{SM[mt]}, v{SM[mt]}, v{v[i]}"); F.pop(1)
    xlane_reduce(a, "v_add_f32", SM, TM)
    for mt in range(3): a.v(f"v_rcp_f32 v{SM[mt]}, v{SM[mt]}")
    for i in range(12):
        for mt in range(3):
            v = vals(mt); a.v(f"v_mul_f32 v{v[i]}, v{v[i]}, v{SM[mt]}")
    for mt in range(3):
        r0, r1, r2 = accS(0, mt), accS(1, mt), accS(2, mt)
        for f in (cvt(r0, r0, r0+1), cvt(r0+1, r0+2, r0+3), cvt(r0+2, r1, r1+1), cvt(r0+3, r1+2, r1+3), cvt(r2, r2, r2+1), cvt(r2+1, r2+2, r2+3)): f()
    stamp(a, cfg, 4)
    a.s(f"s_mul_i32 s81, s{S_HP}, {2*12288}")
    a.s("s_add_u32 s81, s81, s80")
    def ostore(mt, kp):
        r = accO(mt, 2*kp); s_ = accO(mt, 2*kp+1); d = ofA(kp, mt); f = kp*3 + mt
        return [cvt(d, r, r+1), cvt(d+1, r+2, r+3), cvt(d+2, s_, s_+1), cvt(d+3, s_+2, s_+3),
                lambda: a.s(f"s_add_u32 s82, s81, {(f//4)*4096 + WS_O}"),
                lambda: a.bstore(d, 4, 14, S_WS, "s82", off=(f % 4)*1024, flags="sc1")]
    for mt in range(3):
        for t in range(8):
            a.mfma(accO(mt, t), Vf(t), accS(0, mt), None); F.pop(2)
        for t in range(8):
            a.mfma(accO(mt, t), Vf(t)+4, accS(2, mt), accO(mt, t), k=16); F.pop(2)
        for kp in range(4): F.add(*ostore(mt, kp))
    def rdW2(z, t, ks, h):
        def f():
            a.ds_read("ds_read_b64_tr_b16", Wf2(t)+2*h, 2, R[t & 1], off=ks*10240 + h*5120 + 32*t); ver[("W2", t, h)] = (z, ks)
        return f
    for kp in range(4):
        for mt in range(3): ver[("O", 0, kp, mt)] = 0
    F.drain()
    stamp(a, cfg, 5)
    a.waitcnt(lgkm=0)
    a.barrier()
    stamp(a, cfg, 10)
    for t in range(9): rdW2(0, t, 0, 0)(); rdW2(0, t, 0, 1)()
    a.ds_read("ds_read_b64", 8, 2, 10)
    def headbase(p):
        return [lambda: a.s(f"s_add_u32 s81, s{S_HP}, {p}"), lambda: a.s("s_and_b32 s81, s81, 3"),
                lambda: a.s(f"s_mul_i32 s81, s81, {2*12288}"), lambda: a.s("s_add_u32 s81, s81, s80")]
    def ldO(p, f):
        kp, mt = divmod(f, 3)
        return [lambda: a.s(f"s_add_u32 s82, s81, {(f//4)*4096 + WS_O}"),
                lambda: (a.bload(of(p & 1, kp, mt), 4, 14, S_WS, "s82", off=(f % 4)*1024, flags="sc1"), ver.__setitem__(("O", p & 1, kp, mt), p))]
    for z in range(8):
        p, k2 = divmod(z, 2)
        last = z == 7
        if z == 2:
            F.drain()
            a.waitcnt(vm=0)
            stamp(a, cfg, 6)
            a.s("s_mov_b32 exec_lo, s85"); a.s("s_mov_b32 exec_hi, 0")
            a.bstore(8, 2, 11, S_WS, "s84", flags="sc1")
            poll_flags(a, 6, 8, 11, 84, 86, 76)
            stamp(a, cfg, 7)
            for pp in (1, 2):
                for f in headbase(pp): f()
                for fr in range(12):
                    for f in ldO(pp, fr): f()
        for ks in range(2):
            kp = k2*2 + ks
            for t in range(9):
                for mt in range(3):
                    assert ver[("W2", t, 0)] == (z, ks) and ver[("W2", t, 1)] == (z, ks) and ver[("O", p & 1, kp, mt)] == p
                    a.mfma(acc2(mt, t), Wf2(t), of(p & 1, kp, mt), None if (z == 0 and ks == 0) else acc2(mt, t))
                    F.pop(2 if len(F.q) > 2 else 1)
                if ks == 0:
                    F.add(rdW2(z, t, 1, 0), rdW2(z, t, 1, 1))
                elif not last:
                    if t == BP - 1:
                        F.drain()
                        a.waitcnt(lgkm=0)
                        a.barrier()
                        delta = SLOT if (11 + z + 1) % 3 else -2*SLOT
                        for r in R: F.add(lambda r=r, delta=delta: a.v(f"v_add_u32 v{r}, {delta & 0xffffffff}, v{r}"))
                        for tt in range(BP): F.add(rdW2(z+1, tt, 0, 0), rdW2(z+1, tt, 0, 1))
                    elif t >= BP: F.add(rdW2(z+1, t, 0, 0), rdW2(z+1, t, 0, 1))
            if p == 1:
                if kp == 0: F.add(*headbase(3))
                for mt in range(3): F.add(*ldO(3, kp*3 + mt))
    F.drain()
    stamp(a, cfg, 8)
    for mt in range(3):
        for t in range(9):
            r = acc2(mt, t)
            cvt(r, r, r+1)(); cvt(r+1, r+2, r+3)()
            a.ds_write("ds_write_b64", 12, r, 2, off=mt*16*RSTR + 32*t)
    a.waitcnt(lgkm=0)
    return regA, regB

def unpack_add(a, dst, src, first):
    for i in range(4):
        if first:
            a.v(f"v_lshlrev_b32 v{dst+2*i}, 16, v{src+i}")
            a.v(f"v_and_b32 v{dst+2*i+1}, 0xffff0000, v{src+i}")
        else:
            a.v(f"v_lshlrev_b32 v60, 16, v{src+i}")
            a.v(f"v_and_b32 v61, 0xffff0000, v{src+i}")
            a.v(f"v_add_f32 v{dst+2*i}, v{dst+2*i}, v60")
            a.v(f"v_add_f32 v{dst+2*i+1}, v{dst+2*i+1}, v61")

def tail(a, cfg, regA, regB, endlabel):
    for u in range(512): assert (u*3641) >> 16 == u // 18
    a.v("v_mul_u32_u24 v4, 3641, v0")
    a.v("v_lshrrev_b32 v4, 16, v4")
    a.v("v_mul_u32_u24 v5, 18, v4")
    a.v("v_sub_u32 v5, v0, v5")
    a.v(f"v_mul_u32_u24 v6, {RSTR}, v4")
    a.v("v_lshl_add_u32 v6, v5, 4, v6")
    a.v("v_mul_u32_u24 v7, 2304, v4")
    a.v("v_lshl_add_u32 v7, v5, 4, v7")
    a.v("v_lshlrev_b32 v3, 4, v0")
    a.v("v_and_b32 v1, 63, v0")
    a.v("v_lshlrev_b32 v11, 3, v1")
    a.v(f"v_mov_b32 v10, {LDS_NONCE}")
    lo = min(regA, regB); hi_off = abs(regB - regA)
    assert hi_off < 65536 or True
    for dl in range(4):
        a.s(f"s_add_u32 s76, s{S_KQ}, {dl}")
        a.s("s_and_b32 s76, s76, 3")
        a.s(f"s_mul_i32 s77, s76, {24*RSTR}")
        a.s(f"s_add_u32 s77, s77, {lo}")
        a.v(f"v_add_u32 v{12+dl}, s77, v6")
        a.s("s_and_b32 s77, s2, 0xfc")
        a.s("s_or_b32 s77, s77, s76")
        a.s("s_lshl_b32 s77, s77, 2")
        a.s(f"s_add_u32 s77, s77, s{S_KQ}")
        a.s("s_mul_i32 s77, s77, 6912")
        a.s(f"s_add_u32 s{88+dl}, s77, {WS_PART}")
        a.s("s_lshl_b32 s77, s2, 2")
        a.s("s_add_u32 s77, s77, s76")
        a.s("s_mul_i32 s77, s77, 6912")
        a.s(f"s_add_u32 s{92+dl}, s77, {WS_PART}")
    a.s("s_lshr_b32 s76, s2, 2")
    a.s("s_lshl_b32 s76, s76, 3")
    a.s(f"s_add_u32 s76, s76, s{S_W}")
    a.s("s_lshl_b32 s76, s76, 7")
    a.s(f"s_add_u32 s84, s76, {WS_FLAG2}")
    a.s(f"s_lshl_b32 s85, 1, s{S_KQ}")
    a.s("s_xor_b32 s86, s85, 15")
    a.s(f"s_mul_i32 s76, s{S_BP}, 96")
    a.s(f"s_mul_i32 s77, s{S_KQ}, 24")
    a.s("s_add_u32 s76, s76, s77")
    a.s("s_mul_i32 s76, s76, 2304")
    a.s(f"s_mul_i32 s77, s{S_BR}, 1152")
    a.s("s_add_u32 s76, s76, s77")
    a.s(f"s_mul_i32 s77, s{S_HP}, 288")
    a.s("s_add_u32 s87, s76, s77")
    a.s("s_movk_i32 s76, 432")
    a.v("v_cmp_gt_u32 s[78:79], s76, v0")
    a.barrier()
    a.s(f"s_cmp_eq_u32 s{S_W}, 7")
    a.s(f"s_cbranch_scc1 {endlabel}")
    a.ds_read("ds_read_b64", 8, 2, 10)
    assert hi_off < 65536
    for dl in (1, 2, 3, 0):
        a.ds_read("ds_read_b128", 16 + 8*dl, 4, 12+dl)
        a.ds_read("ds_read_b128", 20 + 8*dl, 4, 12+dl, off=hi_off)
    a.s("s_mov_b64 exec, s[78:79]")
    for dl in (1, 2, 3):
        unpack_add(a, 48, 16 + 8*dl, True)
        unpack_add(a, 48, 20 + 8*dl, False)
        for i in range(4): a.v(f"v_cvt_pk_bf16_f32 v{64+4*dl+i}, v{48+2*i}, v{49+2*i}")
        a.bstore(64 + 4*dl, 4, 3, S_WS, f"s{88+dl}", flags="sc1")
    unpack_add(a, 48, 16, True)
    unpack_add(a, 48, 20, False)
    a.waitcnt(vm=0)
    stamp(a, cfg, 9) if False else None
    a.s("s_mov_b32 exec_lo, s85"); a.s("s_mov_b32 exec_hi, 0")
    a.bstore(8, 2, 11, S_WS, "s84", flags="sc1")
    poll_flags(a, 62, 8, 11, 84, 86, 76)
    a.s("s_mov_b64 exec, s[78:79]")
    for dl in (1, 2, 3): a.bload(16 + 4*dl, 4, 3, S_WS, f"s{92+dl}", flags="sc1")
    for dl in (1, 2, 3): unpack_add(a, 48, 16 + 4*dl, False)
    for i in range(4): a.v(f"v_cvt_pk_bf16_f32 v{64+i}, v{48+2*i}, v{49+2*i}")
    a.bstore(64, 4, 7, S_OUT, "s87")

def kernel(cfg):
    a = Asm()
    a.lcap = cfg.lcap
    stamp(a, cfg, 0)
    prologue(a, cfg, "L_end")
    a.s(f"s_cmp_ge_u32 s{S_W}, 4")
    a.s("s_cbranch_scc1 L_loader")
    regA, regB = compute(a, cfg)
    stamp(a, cfg, 9)
    a.s("s_branch L_tail")
    a.label("L_loader")
    a.reset_state()
    loader(a, cfg)
    a.label("L_tail")
    a.reset_state()
    a.nop(4)
    tail(a, cfg, regA, regB, "L_end")
    if cfg.stamps: a.waitcnt(vm=0)
    stamp(a, cfg, 11)
    stamp_out(a, cfg)
    a.label("L_end")
    a.s("s_endpgm")
    return a

HEADER = open("cdna_kernels/" + NAME + ".s.ref").read().split("; Override launch")[0]

def build(cfg):
    n = NAME + "_kernel"
    a = kernel(cfg)
    return HEADER + f"""; @launch grid=(256,1,1) block=(512,1,1) lds=163840
.amdgcn_target "amdgcn-amd-amdhsa--gfx950"
.text
.globl {n}
.p2align 8
.type {n},@function
{n}:
{a.text()}
.section .rodata,"a"
.p2align 6
.amdhsa_kernel {n}
  .amdhsa_next_free_vgpr 256
  .amdhsa_next_free_sgpr 102
  .amdhsa_accum_offset 256
  .amdhsa_group_segment_fixed_size 0
  .amdhsa_kernarg_size 104
  .amdhsa_user_sgpr_count 2
  .amdhsa_user_sgpr_kernarg_segment_ptr 1
  .amdhsa_system_sgpr_workgroup_id_x 1
.end_amdhsa_kernel
"""

if __name__ == "__main__":
    cfg = Cfg()
    for kv in sys.argv[2:]:
        k, v = kv.split("=")
        cur = getattr(cfg, k)
        setattr(cfg, k, (v == "1") if isinstance(cur, bool) else int(v) if isinstance(cur, int) else v.replace("_", " "))
    open(sys.argv[1], "w").write(build(cfg))
```

```python
import sys, struct
from asm import *

NAME = "concat_heads__gqa_block_cached__mha_block_cached__near_ridge"
SLOT = 52224
KSTR, VSTR = 1040, 1056
KUNIT, VUNIT = 12*KSTR, 12*VSTR
LDS_NONCE = 3*SLOT
WS_O = 0
WS_PART = 16 << 20
WS_FLAG1 = 14 << 20
WS_FLAG2 = 15 << 20
WS_STAMP = 24 << 20
WS_BYTES = 32 << 20
RSTR = 304
SC = 0.08838834764831845 * 1.4426950408889634
SPIN_MAX = 1 << 17
def f2u(x): return struct.unpack("<I", struct.pack("<f", x))[0]

S_X, S_K, S_V, S_WQ, S_WO, S_OUT, S_WS, S_DBG = 36, 40, 44, 48, 52, 56, 60, 64
S_BR, S_KQ, S_HP, S_BP, S_W = 68, 69, 70, 71, 72

class Cfg:
    stamps = False
    ld_x = ""; ld_wq = ""; ld_kv = ""; ld_wo = ""
    skew = 9; touch = True; prio = 0; lcap = 15
    barpos = 3
    x_nodma = False
    dbgwg = -1; dbgwave = 0

NST = 12
def stamp(a, cfg, i):
    if cfg.stamps:
        r = 4 if i == 0 else 8 + 2*(i-1)
        a.raw(f"    s_memrealtime s[{r}:{r+1}]"); a.pos += 1
def stamp_out(a, cfg):
    if not cfg.stamps: return
    a.raw("    s_waitcnt lgkmcnt(0)")
    a.s("s_mov_b64 exec, 1")
    if cfg.dbgwg >= 0:
        a.s("s_lshl_b32 s3, s2, 3")
        a.s(f"s_add_u32 s3, s3, s{S_W}")
        a.s(f"s_cmp_lg_u32 s3, {cfg.dbgwg*8 + cfg.dbgwave}")
        a.s("s_cbranch_scc1 L_end")
        a.v("v_mov_b32 v1, 0")
        for i in range(NST):
            r = 4 if i == 0 else 8 + 2*(i-1)
            a.v(f"v_mov_b32 v2, s{r}")
            a.v(f"v_subrev_u32 v2, v8, v2")
            a.bstore(2, 1, 1, S_DBG, "0", off=8 + 4*i)
            a.nop(2)
        return
    a.s("s_lshl_b32 s3, s2, 3")
    a.s(f"s_add_u32 s3, s3, s{S_W}")
    a.s("s_lshl_b32 s3, s3, 6")
    a.s(f"s_add_u32 s3, s3, {WS_STAMP}")
    a.v("v_mov_b32 v1, 0")
    for i in range(NST):
        r = 4 if i == 0 else 8 + 2*(i-1)
        a.v(f"v_mov_b32 v2, s{r}")
        a.bstore(2, 1, 1, S_WS, "s3", off=4*i)
        a.nop(2)

def srd(a, base, lo, hi, size):
    a.s(f"s_mov_b32 s{base}, s{lo}")
    a.s(f"s_mov_b32 s{base+1}, s{hi}")
    a.s(f"s_mov_b32 s{base+2}, {size}")
    a.s(f"s_mov_b32 s{base+3}, 0x20000")

def prologue(a, cfg, endlabel):
    a.s("s_cmp_ge_u32 s2, 256")
    a.s(f"s_cbranch_scc1 {endlabel}")
    a.raw("    s_load_dwordx16 s[8:23], s[0:1], 0")
    a.raw("    s_load_dwordx8 s[24:31], s[0:1], 64")
    a.raw("    s_load_dwordx2 s[32:33], s[0:1], 96")
    a.v("v_and_b32 v1, 63, v0")
    a.v("v_lshrrev_b32 v15, 6, v0")
    a.s(f"s_and_b32 s{S_KQ}, s2, 3")
    a.s(f"s_bfe_u32 s{S_BR}, s2, 0x10002")
    a.s(f"s_bfe_u32 s{S_HP}, s2, 0x20003")
    a.s(f"s_lshr_b32 s{S_BP}, s2, 5")
    a.v(f"v_readfirstlane_b32 s{S_W}, v15")

def build_srds(a):
    a.raw("    s_waitcnt lgkmcnt(0)")
    a.s(f"s_cmp_eq_u32 s{S_BR}, 0")
    for (dst, pa, pb, key) in ((S_X, 8, 18, 'x'), (S_WQ, 14, 24, 'wq'), (S_K, 10, 20, 'k'), (S_V, 12, 22, 'v'), (S_WO, 16, 26, 'wo')):
        a.s(f"s_cselect_b64 s[{dst}:{dst+1}], s[{pa}:{pa+1}], s[{pb}:{pb+1}]")
        if key in ('k', 'v'):
            a.s(f"s_mov_b32 s{dst+2}, 6291456")
            a.s(f"s_cselect_b32 s{dst+2}, 3145728, s{dst+2}")
        else:
            a.s(f"s_mov_b32 s{dst+2}, {884736 if key == 'x' else 4718592}")
        a.s(f"s_mov_b32 s{dst+3}, 0x20000")
    srd(a, S_OUT, 28, 29, 1769472)
    srd(a, S_DBG, 30, 31, 256)
    srd(a, S_WS, 32, 33, WS_BYTES)

_lbl = [0]
def newlabel(p):
    _lbl[0] += 1
    return f"L{p}_{_lbl[0]}"

def poll_flags(a, vdata, vnonce, voff, soff, smask, stmp):
    L = newlabel("poll"); X = newlabel("pollx")
    a.s(f"s_mov_b32 exec_lo, s{smask}")
    a.s("s_mov_b32 exec_hi, 0")
    a.s(f"s_mov_b32 s{stmp}, 0")
    a.label(L)
    a.bload(vdata, 2, voff, S_WS, f"s{soff}", flags="sc1")
    a.s(f"s_add_u32 s{stmp}, s{stmp}, 1")
    a.s(f"s_cmp_gt_u32 s{stmp}, {SPIN_MAX}")
    a.waitcnt(vm=0)
    a.s(f"s_cbranch_scc1 {X}")
    a.v(f"v_cmp_ne_u64 vcc, v[{vdata}:{vdata+1}], v[{vnonce}:{vnonce+1}]")
    a.s(f"s_cbranch_vccnz {L}")
    a.label(X)
    a.s("s_mov_b64 exec, -1")

def loader(a, cfg):
    a.s(f"s_sub_u32 s73, s{S_W}, 4")
    a.s("s_and_b32 s74, s73, 1")
    a.s("s_lshr_b32 s75, s73, 1")
    a.v("v_lshrrev_b32 v4, 5, v1")
    a.s("s_lshl_b32 s76, s74, 1")
    a.s("s_lshl_b32 s77, s75, 2")
    a.s("s_or_b32 s76, s76, s77")
    a.v("v_or_b32 v5, s76, v4")
    a.v("v_bfe_u32 v6, v1, 1, 4")
    a.v("v_xor_b32 v6, v6, v5")
    a.v("v_lshlrev_b32 v6, 5, v6")
    a.v("v_and_b32 v7, 1, v1")
    a.v("v_lshl_add_u32 v6, v7, 4, v6")
    a.v("v_lshl_add_u32 v2, v4, 13, v6")
    a.s("s_lshl_b32 s76, s75, 16")
    a.s("s_lshl_b32 s77, s74, 14")
    a.s("s_add_u32 s76, s76, s77")
    a.s(f"s_lshl_b32 s77, s{S_KQ}, 11")
    a.s("s_add_u32 s76, s76, s77")
    a.s(f"s_lshl_b32 s77, s{S_HP}, 9")
    a.s("s_add_u32 s76, s76, s77")
    a.v("v_add_u32 v2, s76, v2")
    a.v("v_lshrrev_b32 v4, 3, v1")
    a.v("v_mul_u32_u24 v4, 1152, v4")
    a.v("v_lshrrev_b32 v5, 4, v1")
    a.s("s_lshl_b32 s76, s74, 2")
    a.v("v_or_b32 v5, s76, v5")
    a.v("v_and_b32 v6, 7, v1")
    a.v("v_xor_b32 v6, v6, v5")
    a.v("v_lshl_add_u32 v3, v6, 4, v4")
    a.s(f"s_mul_i32 s76, s{S_BP}, {96*1152}")
    a.s(f"s_mul_i32 s77, s74, {8*1152}")
    a.s("s_add_u32 s76, s76, s77")
    a.s(f"s_mul_i32 s77, s75, {48*1152}")
    a.s("s_add_u32 s76, s76, s77")
    a.v("v_add_u32 v3, s76, v3")
    a.s("s_lshl_b32 s78, s75, 12")
    a.s("s_lshl_b32 s77, s74, 10")
    a.s("s_add_u32 s78, s78, s77")
    a.s("s_mul_i32 s79, s75, 6144")
    a.s("s_add_u32 s79, s79, s77")
    a.s("s_add_u32 s79, s79, 32768")
    if cfg.skew == 3:
        a.s(f"s_add_u32 s84, s{S_HP}, s{S_BP}")
        a.s("s_mul_i32 s85, s84, 43")
        a.s("s_lshr_b32 s85, s85, 7")
        a.s("s_mul_i32 s85, s85, 3")
        a.s("s_sub_u32 s84, s84, s85")
        a.s("s_mul_i32 s84, s84, 3")
    elif cfg.skew == 4:
        a.s(f"s_add_u32 s84, s{S_HP}, s{S_BP}")
        a.s("s_and_b32 s84, s84, 3")
        a.s("s_lshl_b32 s84, s84, 1")
    elif cfg.skew:
        a.s(f"s_lshl_b32 s84, s{S_HP}, 1")
        a.s(f"s_add_u32 s84, s84, s{S_BP}")
        a.s("s_sub_u32 s85, s84, 9")
        a.s("s_cmp_ge_u32 s84, 9")
        a.s("s_cselect_b32 s84, s85, s84")
    else:
        a.s("s_mov_b32 s84, 0")
    build_srds(a)
    stamp(a, cfg, 1)
    def stage(s):
        slot = (s % 3) * SLOT
        a.s("s_lshl_b32 s85, s84, 7")
        a.s("s_lshl_b32 s86, s84, 19")
        for i4 in range(2):
            for i3 in range(2):
                for i1 in range(2):
                    a.s(f"s_add_u32 m0, s78, {slot + i4*16384 + i3*8192 + i1*2048}")
                    a.s(f"s_add_u32 s82, s86, {(32*i4 + 16*i3 + 4*i1)*8192}")
                    a.dma(2, S_WQ, "s82", cfg.ld_wq, tag=("st", s))
        for z in range(3):
            a.s(f"s_add_u32 m0, s79, {slot + z*2048}")
            a.s(f"s_add_u32 s82, s85, {z*16*1152}")
            a.dma(3, S_X, "s82", cfg.ld_x, tag=("st", s))
        a.s("s_add_u32 s84, s84, 1")
        a.s("s_cmp_eq_u32 s84, 9")
        a.s("s_cselect_b32 s84, 0, s84")
    a.v("v_mov_b32 v16, 0")
    stage(0)
    L = newlabel("nw")
    a.s("s_add_u32 s76, s2, s73")
    a.s("s_cmp_lg_u32 s76, 0")
    a.s(f"s_cbranch_scc1 {L}")
    a.raw("    s_memrealtime s[88:89]")
    a.raw("    s_waitcnt lgkmcnt(0)")
    a.s("s_or_b32 s88, s88, 1")
    a.v("v_mov_b32 v18, s88")
    a.v("v_mov_b32 v19, s89")
    a.s("s_mov_b64 exec, 1")
    a.raw(f"    buffer_store_dwordx2 v[18:19], v16, s[{S_DBG}:{S_DBG+3}], 0 offen sc1")
    a.s("s_mov_b64 exec, -1")
    a.label(L)
    stage(1)
    a.v("v_lshrrev_b32 v4, 4, v1")
    a.v("v_lshlrev_b32 v5, 2, v4")
    a.v("v_and_b32 v6, 15, v1")
    a.v("v_xor_b32 v6, v6, v5")
    a.v("v_lshlrev_b32 v6, 4, v6")
    a.v("v_lshl_add_u32 v8, v4, 8, v6")
    a.s(f"s_lshl_b32 s76, s{S_BP}, 1")
    a.s("s_add_u32 s76, s76, s74")
    a.s(f"s_lshl_b32 s77, s{S_KQ}, 3")
    a.s(f"s_lshl_b32 s81, s{S_HP}, 1")
    a.s("s_add_u32 s77, s77, s81")
    a.s("s_add_u32 s77, s77, s75")
    a.s("s_lshl_b32 s76, s76, 5")
    a.s("s_add_u32 s76, s76, s77")
    a.s(f"s_xor_b32 s77, s{S_BR}, 1")
    a.s("s_lshr_b32 s76, s76, s77")
    a.s("s_mul_i32 s80, s76, 12288")
    a.s("s_mul_i32 s76, s75, 6")
    a.s(f"s_cmp_eq_u32 s{S_BR}, 0")
    a.s("s_cselect_b32 s76, s76, 0")
    a.s("s_cselect_b32 s77, s74, s73")
    a.s("s_cselect_b32 s90, 0, -1")
    a.s("s_mul_i32 s77, s77, 12")
    a.s("s_add_u32 s77, s77, s76")
    a.s(f"s_mul_i32 s91, s77, {KSTR}")
    a.s(f"s_mul_i32 s92, s77, {VSTR}")
    a.s(f"s_add_u32 s92, s92, {SLOT}")
    a.s("s_lshl_b32 s76, s76, 10")
    a.s("s_add_u32 s80, s80, s76")
    a.s(f"s_lshl_b32 s76, s{S_KQ}, 10")
    a.s("s_lshl_b32 s77, s75, 7")
    a.s("s_add_u32 s76, s76, s77")
    a.s("s_lshl_b32 s77, s74, 5")
    a.s("s_add_u32 s76, s76, s77")
    a.s("s_mul_i32 s76, s76, 1152")
    a.s(f"s_mul_i32 s77, s{S_HP}, 288")
    a.s("s_and_b32 s77, s77, 0xffffffc0")
    a.s("s_add_u32 s76, s76, s77")
    for y in range(5):
        a.v(f"v_add_u32 v4, {y*64}, v1")
        a.v("v_mul_u32_u24 v5, 3277, v4")
        a.v("v_lshrrev_b32 v5, 16, v5")
        a.v("v_mul_u32_u24 v6, 20, v5")
        a.v("v_sub_u32 v6, v4, v6")
        a.v("v_bfe_u32 v7, v5, 2, 1")
        a.v("v_lshlrev_b32 v7, 1, v7")
        a.v("v_xor_b32 v6, v6, v7")
        a.v("v_mul_u32_u24 v5, 1152, v5")
        a.v("v_lshl_add_u32 v5, v6, 4, v5")
        a.v(f"v_add_u32 v{9+y}, s76, v5")
    a.s("s_mul_i32 s93, s73, 10240")
    a.v("v_lshlrev_b32 v14, 7, v1")
    a.s("s_lshr_b32 s76, s2, 3")
    a.s("s_lshl_b32 s76, s76, 2")
    a.s("s_add_u32 s76, s76, s73")
    a.s(f"s_mul_i32 s76, s76, {72*128}")
    a.s(f"s_mul_i32 s94, s{S_KQ}, {1024*1152}")
    a.s("s_add_u32 s94, s94, s76")
    a.v(f"v_mov_b32 v17, {LDS_NONCE}")
    def kvstage(g, srdb, sm0, stride):
        for i in range(12):
            if i == 6:
                a.s("s_mov_b32 exec_lo, s90"); a.s("s_mov_b32 exec_hi, s90")
            a.s(f"s_add_u32 m0, s{sm0}, {i*stride}")
            a.s(f"s_add_u32 s82, s80, {i*1024}")
            a.dma(8, srdb, "s82", cfg.ld_kv, tag=("st", g))
        a.s("s_mov_b64 exec, -1")
    def wostage(z):
        p, k2 = divmod(z, 2)
        slot = ((11 + z) % 3) * SLOT
        a.s(f"s_add_u32 s83, s{S_HP}, {p}")
        a.s("s_and_b32 s83, s83, 3")
        a.s(f"s_mul_i32 s83, s83, {256*1152}")
        for z2 in range(2):
            a.s(f"s_add_u32 s82, s83, {(k2*64 + z2*16)*1152}")
            for y in range(5):
                a.s(f"s_add_u32 m0, s93, {slot + z2*5120 + y*1024}")
                a.dma(9+y, S_WO, "s82", cfg.ld_wo, tag=("st", 11+z))
    def issue(g):
        if cfg.x_nodma and g != 10: return
        if g <= 8: stage(g)
        elif g == 9: kvstage(9, S_K, 91, KSTR)
        elif g == 10:
            kvstage(10, S_V, 92, VSTR)
            a.bload(18, 2, 16, S_DBG, "0", flags="sc1", tag="nonce")
            if cfg.touch:
                a.s("s_mov_b32 exec_lo, -1"); a.s("s_mov_b32 exec_hi, 15")
                a.bload(20, 1, 14, S_WO, "s94", tag="touch")
                a.s(f"s_add_u32 s94, s94, {36*128}")
                a.bload(21, 1, 14, S_WO, "s94", tag="touch")
                a.s("s_mov_b64 exec, -1")
        elif g <= 18: wostage(g - 11)
    stamp(a, cfg, 2)
    for g in range(19):
        a.wait_vm_tag(("st", g))
        if g == 0: stamp(a, cfg, 3)
        if g == 3: stamp(a, cfg, 4)
        if g == 8: stamp(a, cfg, 5)
        if g == 9: stamp(a, cfg, 6)
        if g == 10: stamp(a, cfg, 7)
        if g == 11:
            stamp(a, cfg, 8)
            Lok = newlabel("nok"); Lsp = newlabel("nsp")
            a.s("s_mov_b32 s77, 0")
            a.label(Lsp)
            a.v("v_readfirstlane_b32 s76, v18")
            a.s("s_cmp_lg_u32 s76, 0")
            a.s(f"s_cbranch_scc1 {Lok}")
            a.s("s_add_u32 s77, s77, 1")
            a.s(f"s_cmp_gt_u32 s77, {SPIN_MAX}")
            a.s(f"s_cbranch_scc1 {Lok}")
            a.raw(f"    buffer_load_dwordx2 v[18:19], v16, s[{S_DBG}:{S_DBG+3}], 0 offen sc1")
            a.raw("    s_waitcnt vmcnt(0)")
            a.s(f"s_branch {Lsp}")
            a.label(Lok)
            a.ds_write("ds_write_b64", 17, 18, 2)
            a.waitcnt(lgkm=0)
        if g == 15: stamp(a, cfg, 9)
        if g == 18: stamp(a, cfg, 10)
        a.barrier()
        if g == 0: issue(2)
        elif g + 2 <= 18: issue(g + 2)

def xlane_reduce(a, op, regs, tmps):
    for sw in ("v_permlane32_swap_b32", "v_permlane16_swap_b32"):
        for r, t in zip(regs, tmps): a.v(f"v_mov_b32 v{t}, v{r}")
        for r, t in zip(regs, tmps): a.v(f"{sw} v{r}, v{t}")
        for r, t in zip(regs, tmps): a.v(f"{op} v{r}, v{r}, v{t}")

class Fill:
    def __init__(self): self.q = []
    def add(self, *fs): self.q.extend(fs)
    def pop(self, n):
        for _ in range(n):
            if self.q: self.q.pop(0)()
    def drain(self): self.pop(len(self.q))

def compute(a, cfg):
    ACC = 16; WF = 112; XF = 144; KF = 168; AS = 216; VF = 112
    accQ = lambda t, mt: ACC + (t*3 + mt)*4
    Wf = lambda t: WF + 4*t
    Xf = lambda par, mt: XF + par*12 + mt*4
    Kf = lambda kt, kp: KF + (kt*4 + kp)*4
    accS = lambda kt, mt: AS + (kt*3 + mt)*4
    Vf = lambda t: VF + 6*t
    accO = lambda mt, t: ACC + (mt*8 + t)*4
    aW = lambda sl, t: 216 + sl*10 + t
    aX = lambda sl, ks: 216 + sl*10 + 8 + ks
    aK = lambda kp: 252 + kp
    aV = lambda th: 2 + th
    R = [13, 15]
    ofA = lambda kp, mt: 168 + (kp*3 + mt)*4
    def ofB(kp, mt):
        f = kp*3 + mt
        return 216 + f*4 if f < 10 else 160 + (f - 10)*4
    of = lambda buf, kp, mt: ofB(kp, mt) if buf else ofA(kp, mt)
    acc2 = lambda mt, t: 16 + (mt*9 + t)*4
    Wf2 = lambda t: 124 + 4*t

    if cfg.prio: a.s(f"s_setprio {cfg.prio}")
    a.s(f"s_and_b32 s74, s{S_W}, 1")
    a.s(f"s_lshr_b32 s75, s{S_W}, 1")
    a.v("v_lshrrev_b32 v160, 4, v1")
    a.v("v_bfe_u32 v161, v1, 2, 2")
    a.v("v_and_b32 v162, 3, v1")
    a.v("v_and_b32 v163, 15, v1")
    a.v("v_lshl_add_u32 v164, v160, 3, v161")
    a.v("v_lshlrev_b32 v164, 9, v164")
    a.v("v_and_b32 v165, 1, v160")
    a.v("v_lshl_or_b32 v166, v165, 2, v161")
    a.v("v_lshl_add_u32 v164, v166, 5, v164")
    a.v("v_lshl_add_u32 v164, v162, 3, v164")
    a.s("s_lshl_b32 s76, s75, 8")
    a.v(f"v_add_u32 v{aW(0,0)}, s76, v164")
    for t in range(1, 8): a.v(f"v_xor_b32 v{aW(0,t)}, {32*t}, v{aW(0,0)}")
    a.v("v_lshrrev_b32 v164, 1, v163")
    a.v("v_xor_b32 v164, v164, v160")
    a.v("v_lshlrev_b32 v164, 4, v164")
    a.v("v_lshl_add_u32 v164, v163, 7, v164")
    a.s("s_mul_i32 s76, s74, 6144")
    a.s("s_add_u32 s76, s76, 32768")
    a.v(f"v_add_u32 v{aX(0,0)}, s76, v164")
    a.v(f"v_xor_b32 v{aX(0,1)}, 64, v{aX(0,0)}")
    for sl in (1, 2):
        for i in range(10): a.v(f"v_add_u32 v{216+sl*10+i}, {sl*SLOT}, v{216+i}")
    a.s(f"s_cmp_eq_u32 s{S_BR}, 0")
    a.s(f"s_cselect_b32 s77, s74, s{S_W}")
    a.s(f"s_mul_i32 s76, s77, {KUNIT}")
    a.v(f"v_mul_u32_u24 v164, {KSTR}, v161")
    a.v("v_lshl_add_u32 v164, v162, 8, v164")
    a.v("v_lshl_add_u32 v164, v160, 3, v164")
    a.v("v_add_u32 v164, s76, v164")
    for kp in range(4):
        a.v(f"v_xor_b32 v167, {kp}, v162")
        a.v(f"v_lshl_add_u32 v{aK(kp)}, v167, 6, v164")
    a.s(f"s_mul_i32 s76, s77, {VUNIT}")
    a.s(f"s_add_u32 s76, s76, {SLOT}")
    a.v(f"v_mul_u32_u24 v164, {VSTR}, v160")
    a.v("v_lshl_add_u32 v164, v161, 8, v164")
    a.v("v_lshl_add_u32 v164, v162, 3, v164")
    a.v("v_add_u32 v164, s76, v164")
    for th in range(4):
        a.v(f"v_xor_b32 v167, {th}, v161")
        a.v(f"v_lshl_add_u32 v{aV(th)}, v167, 6, v164")
    a.v("v_lshl_add_u32 v164, v160, 2, v161")
    a.v("v_mul_u32_u24 v164, 320, v164")
    a.v("v_lshl_add_u32 v164, v162, 3, v164")
    a.s("s_mul_i32 s76, s75, 20480")
    a.s(f"s_add_u32 s76, s76, {2*SLOT}")
    a.v("v_add_u32 v164, s76, v164")
    a.s(f"s_and_b32 s77, s{S_HP}, 1")
    a.v("v_xor_b32 v167, s77, v165")
    a.v(f"v_lshl_add_u32 v{R[0]}, v167, 5, v164")
    a.s("s_add_u32 s77, s77, 1")
    a.v("v_xor_b32 v167, s77, v165")
    a.v(f"v_lshl_add_u32 v{R[1]}, v167, 5, v164")
    a.v(f"v_subrev_u32 v{R[1]}, 32, v{R[1]}")
    a.v("v_lshlrev_b32 v14, 4, v1")
    regA = ((11 + 7 + 1) % 3) * SLOT
    regB = ((11 + 7 + 2) % 3) * SLOT
    a.v(f"v_mul_u32_u24 v164, {RSTR}, v163")
    a.v("v_lshl_add_u32 v164, v160, 3, v164")
    a.s(f"s_mul_i32 s76, s74, {48*RSTR}")
    a.s("s_cmp_eq_u32 s75, 0")
    a.s(f"s_mov_b32 s77, {regB}")
    a.s(f"s_cselect_b32 s77, {regA}, s77")
    a.s("s_add_u32 s76, s76, s77")
    a.v("v_add_u32 v12, s76, v164")
    a.v("v_lshlrev_b32 v11, 3, v1")
    a.v(f"v_mov_b32 v10, {LDS_NONCE}")
    a.s(f"s_lshl_b32 s76, s{S_BR}, 4")
    a.s(f"s_lshl_b32 s77, s{S_BP}, 1")
    a.s("s_add_u32 s76, s76, s77")
    a.s("s_add_u32 s76, s76, s74")
    a.s("s_lshl_b32 s76, s76, 5")
    a.s(f"s_lshl_b32 s77, s{S_KQ}, 3")
    a.s("s_add_u32 s76, s76, s77")
    a.s("s_add_u32 s76, s76, s75")
    a.s("s_mul_i32 s80, s76, 12288")
    a.s(f"s_mov_b32 s83, {f2u(SC)}")
    a.s("s_and_b32 s76, s2, 7")
    a.s(f"s_lshl_b32 s77, s{S_BP}, 3")
    a.s("s_or_b32 s76, s76, s77")
    a.s("s_lshl_b32 s76, s76, 2")
    a.s(f"s_add_u32 s76, s76, s{S_W}")
    a.s("s_lshl_b32 s76, s76, 7")
    a.s(f"s_add_u32 s84, s76, {WS_FLAG1}")
    a.s(f"s_lshl_b32 s85, 1, s{S_HP}")
    a.s("s_xor_b32 s86, s85, 15")
    build_srds(a)

    ver = {}
    def rdW(s, t, ks, h):
        def f():
            a.ds_read("ds_read_b64_tr_b16", Wf(t)+2*h, 2, aW(s % 3, t), off=ks*16384 + h*2048); ver[("W", t, h)] = (s, ks)
        return f
    def rdX(s, mt, ks):
        def f():
            a.ds_read("ds_read_b128", Xf(ks, mt), 4, aX(s % 3, ks), off=mt*2048); ver[("X", ks, mt)] = s
        return f
    def chk1(s, ks, t, mt):
        assert ver[("W", t, 0)] == (s, ks) and ver[("W", t, 1)] == (s, ks) and ver[("X", ks, mt)] == s, (s, ks, t, mt)
    def rdK(kt, kp, e):
        return lambda: a.ds_read("ds_read_b64", Kf(kt, kp)+2*e, 2, aK(kp), off=kt*4*KSTR + 32*e)
    def cvt(d, s0, s1):
        return lambda: a.v(f"v_cvt_pk_bf16_f32 v{d}, v{s0}, v{s1}")
    def cvtQ(kp):
        out = []
        for mt in range(3):
            r = accQ(2*kp, mt); s_ = accQ(2*kp+1, mt)
            out += [cvt(r, r, r+1), cvt(r+1, r+2, r+3), cvt(r+2, s_, s_+1), cvt(r+3, s_+2, s_+3)]
        return out
    F = Fill()
    stamp(a, cfg, 1)
    a.barrier()
    stamp(a, cfg, 2)
    for mt in range(3): rdX(0, mt, 0)()
    for t in range(8): rdW(0, t, 0, 0)(); rdW(0, t, 0, 1)()
    BP = cfg.barpos
    for s in range(9):
        last = s == 8; sl = s; nsl = s + 1
        for mt in range(3): F.add(rdX(sl, mt, 1))
        for t in range(8):
            for mt in range(3):
                chk1(s, 0, t, mt)
                a.mfma(accQ(t, mt), Wf(t), Xf(0, mt), None if s == 0 else accQ(t, mt))
                F.pop(2 if len(F.q) > 2 else 1)
            F.add(rdW(sl, t, 1, 0), rdW(sl, t, 1, 1))
        for t in range(8):
            for mt in range(3):
                chk1(s, 1, t, mt)
                a.mfma(accQ(t, mt), Wf(t), Xf(1, mt), accQ(t, mt))
                F.pop(2 if len(F.q) > 2 else 1)
            if t == BP - 1:
                assert not F.q
                a.waitcnt(lgkm=0)
                a.barrier()
                if not last:
                    F.add(rdX(nsl, 0, 0), rdW(nsl, 0, 0, 0), rdW(nsl, 0, 0, 1), rdX(nsl, 1, 0), rdX(nsl, 2, 0))
                    for tt in range(1, BP): F.add(rdW(nsl, tt, 0, 0), rdW(nsl, tt, 0, 1))
                else:
                    for kp in range(4):
                        for kt in range(3): F.add(rdK(kt, kp, 0), rdK(kt, kp, 1))
            elif t >= BP and not last:
                F.add(rdW(nsl, t, 0, 0), rdW(nsl, t, 0, 1))
    F.drain()
    stamp(a, cfg, 3)
    for kp in range(4):
        for f in cvtQ(kp): f()
    a.waitcnt(lgkm=0)
    for kp in range(4):
        for kt in range(3):
            for mt in range(3):
                a.mfma(accS(kt, mt), Kf(kt, kp), accQ(2*kp, mt), None if kp == 0 else accS(kt, mt))
    MX = [160, 161, 162]; TM = [163, 164, 165]; SM = [166, 167, 6]
    vals = lambda mt: [accS(kt, mt) + r for kt in range(3) for r in range(4)]
    for mt in range(3):
        v = vals(mt); a.v(f"v_max3_f32 v{MX[mt]}, v{v[0]}, v{v[1]}, v{v[2]}")
    for i in range(3, 11, 2):
        for mt in range(3):
            v = vals(mt); a.v(f"v_max3_f32 v{MX[mt]}, v{MX[mt]}, v{v[i]}, v{v[i+1]}")
    for mt in range(3):
        v = vals(mt); a.v(f"v_max_f32 v{MX[mt]}, v{MX[mt]}, v{v[11]}")
    xlane_reduce(a, "v_max_f32", MX, TM)
    for mt in range(3): a.v(f"v_mul_f32 v{MX[mt]}, s83, v{MX[mt]}")
    for i in range(12):
        for mt in range(3):
            v = vals(mt); a.v(f"v_fma_f32 v{v[i]}, v{v[i]}, s83, -v{MX[mt]}")
    for i in range(12):
        for mt in range(3):
            v = vals(mt); a.v(f"v_exp_f32 v{v[i]}, v{v[i]}")
    a.barrier()
    for t in range(8):
        for kt in range(3):
            F.add(lambda t=t, kt=kt: a.ds_read("ds_read_b64_tr_b16", Vf(t) + 2*kt, 2, aV(t >> 1), off=kt*4*VSTR + (t & 1)*32))
    for mt in range(3):
        v = vals(mt); a.v(f"v_add_f32 v{SM[mt]}, v{v[0]}, v{v[1]}"); F.pop(1)
    for i in range(2, 12):
        for mt in range(3):
            v = vals(mt); a.v(f"v_add_f32 v{SM[mt]}, v{SM[mt]}, v{v[i]}"); F.pop(1)
    xlane_reduce(a, "v_add_f32", SM, TM)
    for mt in range(3): a.v(f"v_rcp_f32 v{SM[mt]}, v{SM[mt]}")
    for i in range(12):
        for mt in range(3):
            v = vals(mt); a.v(f"v_mul_f32 v{v[i]}, v{v[i]}, v{SM[mt]}")
    for mt in range(3):
        r0, r1, r2 = accS(0, mt), accS(1, mt), accS(2, mt)
        for f in (cvt(r0, r0, r0+1), cvt(r0+1, r0+2, r0+3), cvt(r0+2, r1, r1+1), cvt(r0+3, r1+2, r1+3), cvt(r2, r2, r2+1), cvt(r2+1, r2+2, r2+3)): f()
    stamp(a, cfg, 4)
    a.s(f"s_mul_i32 s81, s{S_HP}, {2*12288}")
    a.s("s_add_u32 s81, s81, s80")
    def ostore(mt, kp):
        r = accO(mt, 2*kp); s_ = accO(mt, 2*kp+1); d = ofA(kp, mt); f = kp*3 + mt
        return [cvt(d, r, r+1), cvt(d+1, r+2, r+3), cvt(d+2, s_, s_+1), cvt(d+3, s_+2, s_+3),
                lambda: a.s(f"s_add_u32 s82, s81, {(f//4)*4096 + WS_O}"),
                lambda: a.bstore(d, 4, 14, S_WS, "s82", off=(f % 4)*1024, flags="sc1")]
    for mt in range(3):
        for t in range(8):
            a.mfma(accO(mt, t), Vf(t), accS(0, mt), None); F.pop(2)
        for t in range(8):
            a.mfma(accO(mt, t), Vf(t)+4, accS(2, mt), accO(mt, t), k=16); F.pop(2)
        for kp in range(4): F.add(*ostore(mt, kp))
    def rdW2(z, t, ks, h):
        def f():
            a.ds_read("ds_read_b64_tr_b16", Wf2(t)+2*h, 2, R[t & 1], off=ks*10240 + h*5120 + 32*t); ver[("W2", t, h)] = (z, ks)
        return f
    for kp in range(4):
        for mt in range(3): ver[("O", 0, kp, mt)] = 0
    F.drain()
    stamp(a, cfg, 5)
    a.waitcnt(lgkm=0)
    a.barrier()
    stamp(a, cfg, 10)
    for t in range(9): rdW2(0, t, 0, 0)(); rdW2(0, t, 0, 1)()
    a.ds_read("ds_read_b64", 8, 2, 10)
    def headbase(p):
        return [lambda: a.s(f"s_add_u32 s81, s{S_HP}, {p}"), lambda: a.s("s_and_b32 s81, s81, 3"),
                lambda: a.s(f"s_mul_i32 s81, s81, {2*12288}"), lambda: a.s("s_add_u32 s81, s81, s80")]
    def ldO(p, f):
        kp, mt = divmod(f, 3)
        return [lambda: a.s(f"s_add_u32 s82, s81, {(f//4)*4096 + WS_O}"),
                lambda: (a.bload(of(p & 1, kp, mt), 4, 14, S_WS, "s82", off=(f % 4)*1024, flags="sc1"), ver.__setitem__(("O", p & 1, kp, mt), p))]
    for z in range(8):
        p, k2 = divmod(z, 2)
        last = z == 7
        if z == 2:
            F.drain()
            a.waitcnt(vm=0)
            stamp(a, cfg, 6)
            a.s("s_mov_b32 exec_lo, s85"); a.s("s_mov_b32 exec_hi, 0")
            a.bstore(8, 2, 11, S_WS, "s84", flags="sc1")
            poll_flags(a, 6, 8, 11, 84, 86, 76)
            stamp(a, cfg, 7)
            for pp in (1, 2):
                for f in headbase(pp): f()
                for fr in range(12):
                    for f in ldO(pp, fr): f()
        for ks in range(2):
            kp = k2*2 + ks
            for t in range(9):
                for mt in range(3):
                    assert ver[("W2", t, 0)] == (z, ks) and ver[("W2", t, 1)] == (z, ks) and ver[("O", p & 1, kp, mt)] == p
                    a.mfma(acc2(mt, t), Wf2(t), of(p & 1, kp, mt), None if (z == 0 and ks == 0) else acc2(mt, t))
                    F.pop(2 if len(F.q) > 2 else 1)
                if ks == 0:
                    F.add(rdW2(z, t, 1, 0), rdW2(z, t, 1, 1))
                elif not last:
                    if t == BP - 1:
                        F.drain()
                        a.waitcnt(lgkm=0)
                        a.barrier()
                        delta = SLOT if (11 + z + 1) % 3 else -2*SLOT
                        for r in R: F.add(lambda r=r, delta=delta: a.v(f"v_add_u32 v{r}, {delta & 0xffffffff}, v{r}"))
                        for tt in range(BP): F.add(rdW2(z+1, tt, 0, 0), rdW2(z+1, tt, 0, 1))
                    elif t >= BP: F.add(rdW2(z+1, t, 0, 0), rdW2(z+1, t, 0, 1))
            if p == 1:
                if kp == 0: F.add(*headbase(3))
                for mt in range(3): F.add(*ldO(3, kp*3 + mt))
    F.drain()
    stamp(a, cfg, 8)
    for mt in range(3):
        for t in range(9):
            r = acc2(mt, t)
            cvt(r, r, r+1)(); cvt(r+1, r+2, r+3)()
            a.ds_write("ds_write_b64", 12, r, 2, off=mt*16*RSTR + 32*t)
    a.waitcnt(lgkm=0)
    return regA, regB

def unpack_add(a, dst, src, first):
    for i in range(4):
        if first:
            a.v(f"v_lshlrev_b32 v{dst+2*i}, 16, v{src+i}")
            a.v(f"v_and_b32 v{dst+2*i+1}, 0xffff0000, v{src+i}")
        else:
            a.v(f"v_lshlrev_b32 v60, 16, v{src+i}")
            a.v(f"v_and_b32 v61, 0xffff0000, v{src+i}")
            a.v(f"v_add_f32 v{dst+2*i}, v{dst+2*i}, v60")
            a.v(f"v_add_f32 v{dst+2*i+1}, v{dst+2*i+1}, v61")

def tail(a, cfg, regA, regB, endlabel):
    for u in range(512): assert (u*3641) >> 16 == u // 18
    a.v("v_mul_u32_u24 v4, 3641, v0")
    a.v("v_lshrrev_b32 v4, 16, v4")
    a.v("v_mul_u32_u24 v5, 18, v4")
    a.v("v_sub_u32 v5, v0, v5")
    a.v(f"v_mul_u32_u24 v6, {RSTR}, v4")
    a.v("v_lshl_add_u32 v6, v5, 4, v6")
    a.v("v_mul_u32_u24 v7, 2304, v4")
    a.v("v_lshl_add_u32 v7, v5, 4, v7")
    a.v("v_lshlrev_b32 v3, 4, v0")
    a.v("v_and_b32 v1, 63, v0")
    a.v("v_lshlrev_b32 v11, 3, v1")
    a.v(f"v_mov_b32 v10, {LDS_NONCE}")
    lo = min(regA, regB); hi_off = abs(regB - regA)
    assert hi_off < 65536 or True
    for dl in range(4):
        a.s(f"s_add_u32 s76, s{S_KQ}, {dl}")
        a.s("s_and_b32 s76, s76, 3")
        a.s(f"s_mul_i32 s77, s76, {24*RSTR}")
        a.s(f"s_add_u32 s77, s77, {lo}")
        a.v(f"v_add_u32 v{12+dl}, s77, v6")
        a.s("s_and_b32 s77, s2, 0xfc")
        a.s("s_or_b32 s77, s77, s76")
        a.s("s_lshl_b32 s77, s77, 2")
        a.s(f"s_add_u32 s77, s77, s{S_KQ}")
        a.s("s_mul_i32 s77, s77, 6912")
        a.s(f"s_add_u32 s{88+dl}, s77, {WS_PART}")
        a.s("s_lshl_b32 s77, s2, 2")
        a.s("s_add_u32 s77, s77, s76")
        a.s("s_mul_i32 s77, s77, 6912")
        a.s(f"s_add_u32 s{92+dl}, s77, {WS_PART}")
    a.s("s_lshr_b32 s76, s2, 2")
    a.s("s_lshl_b32 s76, s76, 3")
    a.s(f"s_add_u32 s76, s76, s{S_W}")
    a.s("s_lshl_b32 s76, s76, 7")
    a.s(f"s_add_u32 s84, s76, {WS_FLAG2}")
    a.s(f"s_lshl_b32 s85, 1, s{S_KQ}")
    a.s("s_xor_b32 s86, s85, 15")
    a.s(f"s_mul_i32 s76, s{S_BP}, 96")
    a.s(f"s_mul_i32 s77, s{S_KQ}, 24")
    a.s("s_add_u32 s76, s76, s77")
    a.s("s_mul_i32 s76, s76, 2304")
    a.s(f"s_mul_i32 s77, s{S_BR}, 1152")
    a.s("s_add_u32 s76, s76, s77")
    a.s(f"s_mul_i32 s77, s{S_HP}, 288")
    a.s("s_add_u32 s87, s76, s77")
    a.s("s_movk_i32 s76, 432")
    a.v("v_cmp_gt_u32 s[78:79], s76, v0")
    a.barrier()
    a.s(f"s_cmp_eq_u32 s{S_W}, 7")
    a.s(f"s_cbranch_scc1 {endlabel}")
    a.ds_read("ds_read_b64", 8, 2, 10)
    assert hi_off < 65536
    for dl in (1, 2, 3, 0):
        a.ds_read("ds_read_b128", 16 + 8*dl, 4, 12+dl)
        a.ds_read("ds_read_b128", 20 + 8*dl, 4, 12+dl, off=hi_off)
    a.s("s_mov_b64 exec, s[78:79]")
    for dl in (1, 2, 3):
        unpack_add(a, 48, 16 + 8*dl, True)
        unpack_add(a, 48, 20 + 8*dl, False)
        for i in range(4): a.v(f"v_cvt_pk_bf16_f32 v{64+4*dl+i}, v{48+2*i}, v{49+2*i}")
        a.bstore(64 + 4*dl, 4, 3, S_WS, f"s{88+dl}", flags="sc1")
    unpack_add(a, 48, 16, True)
    unpack_add(a, 48, 20, False)
    a.waitcnt(vm=0)
    stamp(a, cfg, 9) if False else None
    a.s("s_mov_b32 exec_lo, s85"); a.s("s_mov_b32 exec_hi, 0")
    a.bstore(8, 2, 11, S_WS, "s84", flags="sc1")
    poll_flags(a, 62, 8, 11, 84, 86, 76)
    a.s("s_mov_b64 exec, s[78:79]")
    for dl in (1, 2, 3): a.bload(16 + 4*dl, 4, 3, S_WS, f"s{92+dl}", flags="sc1")
    for dl in (1, 2, 3): unpack_add(a, 48, 16 + 4*dl, False)
    for i in range(4): a.v(f"v_cvt_pk_bf16_f32 v{64+i}, v{48+2*i}, v{49+2*i}")
    a.bstore(64, 4, 7, S_OUT, "s87")

def kernel(cfg):
    a = Asm()
    a.lcap = cfg.lcap
    stamp(a, cfg, 0)
    prologue(a, cfg, "L_end")
    a.s(f"s_cmp_ge_u32 s{S_W}, 4")
    a.s("s_cbranch_scc1 L_loader")
    regA, regB = compute(a, cfg)
    stamp(a, cfg, 9)
    a.s("s_branch L_tail")
    a.label("L_loader")
    a.reset_state()
    loader(a, cfg)
    a.label("L_tail")
    a.reset_state()
    a.nop(4)
    tail(a, cfg, regA, regB, "L_end")
    if cfg.stamps: a.waitcnt(vm=0)
    stamp(a, cfg, 11)
    stamp_out(a, cfg)
    a.label("L_end")
    a.s("s_endpgm")
    return a

HEADER = open("cdna_kernels/" + NAME + ".s.ref").read().split("; Override launch")[0]

def build(cfg):
    n = NAME + "_kernel"
    a = kernel(cfg)
    return HEADER + f"""; @launch grid=(256,1,1) block=(512,1,1) lds=163840
.amdgcn_target "amdgcn-amd-amdhsa--gfx950"
.text
.globl {n}
.p2align 8
.type {n},@function
{n}:
{a.text()}
.section .rodata,"a"
.p2align 6
.amdhsa_kernel {n}
  .amdhsa_next_free_vgpr 256
  .amdhsa_next_free_sgpr 102
  .amdhsa_accum_offset 256
  .amdhsa_group_segment_fixed_size 0
  .amdhsa_kernarg_size 104
  .amdhsa_user_sgpr_count 2
  .amdhsa_user_sgpr_kernarg_segment_ptr 1
  .amdhsa_system_sgpr_workgroup_id_x 1
.end_amdhsa_kernel
"""

if __name__ == "__main__":
    cfg = Cfg()
    for kv in sys.argv[2:]:
        k, v = kv.split("=")
        cur = getattr(cfg, k)
        setattr(cfg, k, (v == "1") if isinstance(cur, bool) else int(v) if isinstance(cur, int) else v.replace("_", " "))
    open(sys.argv[1], "w").write(build(cfg))
```

```python
import sys, struct
from asm import *

NAME = "concat_heads__gqa_block_cached__mha_block_cached__near_ridge"
SLOT = 52224
KSTR, VSTR = 1040, 1056
KUNIT, VUNIT = 12*KSTR, 12*VSTR
LDS_NONCE = 3*SLOT
WS_O = 0
WS_PART = 16 << 20
WS_FLAG1 = 14 << 20
WS_FLAG2 = 15 << 20
WS_STAMP = 24 << 20
WS_BYTES = 32 << 20
RSTR = 304
SC = 0.08838834764831845 * 1.4426950408889634
SPIN_MAX = 1 << 17
def f2u(x): return struct.unpack("<I", struct.pack("<f", x))[0]

S_X, S_K, S_V, S_WQ, S_WO, S_OUT, S_WS, S_DBG = 36, 40, 44, 48, 52, 56, 60, 64
S_BR, S_KQ, S_HP, S_BP, S_W = 68, 69, 70, 71, 72

class Cfg:
    stamps = False
    ld_x = ""; ld_wq = ""; ld_kv = ""; ld_wo = ""
    skew = 9; touch = True; prio = 0; lcap = 15
    barpos = 3
    x_nodma = False
    dbgwg = -1; dbgwave = 0; x_hold = 0

NST = 12
def stamp(a, cfg, i):
    if cfg.stamps:
        r = 4 if i == 0 else 8 + 2*(i-1)
        a.raw(f"    s_memrealtime s[{r}:{r+1}]"); a.pos += 1
def stamp_out(a, cfg):
    if not cfg.stamps: return
    a.raw("    s_waitcnt lgkmcnt(0)")
    a.s("s_mov_b64 exec, 1")
    if cfg.dbgwg >= 0:
        a.s("s_lshl_b32 s3, s2, 3")
        a.s(f"s_add_u32 s3, s3, s{S_W}")
        a.s(f"s_cmp_lg_u32 s3, {cfg.dbgwg*8 + cfg.dbgwave}")
        a.s("s_cbranch_scc1 L_end")
        a.v("v_mov_b32 v1, 0")
        for i in range(NST):
            r = 4 if i == 0 else 8 + 2*(i-1)
            a.v(f"v_mov_b32 v2, s{r}")
            a.v(f"v_subrev_u32 v2, v8, v2")
            a.bstore(2, 1, 1, S_DBG, "0", off=8 + 4*i)
            a.nop(2)
        return
    a.s("s_lshl_b32 s3, s2, 3")
    a.s(f"s_add_u32 s3, s3, s{S_W}")
    a.s("s_lshl_b32 s3, s3, 6")
    a.s(f"s_add_u32 s3, s3, {WS_STAMP}")
    a.v("v_mov_b32 v1, 0")
    for i in range(NST):
        r = 4 if i == 0 else 8 + 2*(i-1)
        a.v(f"v_mov_b32 v2, s{r}")
        a.bstore(2, 1, 1, S_WS, "s3", off=4*i)
        a.nop(2)

def srd(a, base, lo, hi, size):
    a.s(f"s_mov_b32 s{base}, s{lo}")
    a.s(f"s_mov_b32 s{base+1}, s{hi}")
    a.s(f"s_mov_b32 s{base+2}, {size}")
    a.s(f"s_mov_b32 s{base+3}, 0x20000")

def prologue(a, cfg, endlabel):
    a.s("s_cmp_ge_u32 s2, 256")
    a.s(f"s_cbranch_scc1 {endlabel}")
    a.raw("    s_load_dwordx16 s[8:23], s[0:1], 0")
    a.raw("    s_load_dwordx8 s[24:31], s[0:1], 64")
    a.raw("    s_load_dwordx2 s[32:33], s[0:1], 96")
    a.v("v_and_b32 v1, 63, v0")
    a.v("v_lshrrev_b32 v15, 6, v0")
    a.s(f"s_and_b32 s{S_KQ}, s2, 3")
    a.s(f"s_bfe_u32 s{S_BR}, s2, 0x10002")
    a.s(f"s_bfe_u32 s{S_HP}, s2, 0x20003")
    a.s(f"s_lshr_b32 s{S_BP}, s2, 5")
    a.v(f"v_readfirstlane_b32 s{S_W}, v15")

def build_srds(a):
    a.raw("    s_waitcnt lgkmcnt(0)")
    a.s(f"s_cmp_eq_u32 s{S_BR}, 0")
    for (dst, pa, pb, key) in ((S_X, 8, 18, 'x'), (S_WQ, 14, 24, 'wq'), (S_K, 10, 20, 'k'), (S_V, 12, 22, 'v'), (S_WO, 16, 26, 'wo')):
        a.s(f"s_cselect_b64 s[{dst}:{dst+1}], s[{pa}:{pa+1}], s[{pb}:{pb+1}]")
        if key in ('k', 'v'):
            a.s(f"s_mov_b32 s{dst+2}, 6291456")
            a.s(f"s_cselect_b32 s{dst+2}, 3145728, s{dst+2}")
        else:
            a.s(f"s_mov_b32 s{dst+2}, {884736 if key == 'x' else 4718592}")
        a.s(f"s_mov_b32 s{dst+3}, 0x20000")
    srd(a, S_OUT, 28, 29, 1769472)
    srd(a, S_DBG, 30, 31, 256)
    srd(a, S_WS, 32, 33, WS_BYTES)

_lbl = [0]
def newlabel(p):
    _lbl[0] += 1
    return f"L{p}_{_lbl[0]}"

def poll_flags(a, vdata, vnonce, voff, soff, smask, stmp):
    L = newlabel("poll"); X = newlabel("pollx")
    a.s(f"s_mov_b32 exec_lo, s{smask}")
    a.s("s_mov_b32 exec_hi, 0")
    a.s(f"s_mov_b32 s{stmp}, 0")
    a.label(L)
    a.bload(vdata, 2, voff, S_WS, f"s{soff}", flags="sc1")
    a.s(f"s_add_u32 s{stmp}, s{stmp}, 1")
    a.s(f"s_cmp_gt_u32 s{stmp}, {SPIN_MAX}")
    a.waitcnt(vm=0)
    a.s(f"s_cbranch_scc1 {X}")
    a.v(f"v_cmp_ne_u64 vcc, v[{vdata}:{vdata+1}], v[{vnonce}:{vnonce+1}]")
    a.s(f"s_cbranch_vccnz {L}")
    a.label(X)
    a.s("s_mov_b64 exec, -1")

def loader(a, cfg):
    a.s(f"s_sub_u32 s73, s{S_W}, 4")
    a.s("s_and_b32 s74, s73, 1")
    a.s("s_lshr_b32 s75, s73, 1")
    a.v("v_lshrrev_b32 v4, 5, v1")
    a.s("s_lshl_b32 s76, s74, 1")
    a.s("s_lshl_b32 s77, s75, 2")
    a.s("s_or_b32 s76, s76, s77")
    a.v("v_or_b32 v5, s76, v4")
    a.v("v_bfe_u32 v6, v1, 1, 4")
    a.v("v_xor_b32 v6, v6, v5")
    a.v("v_lshlrev_b32 v6, 5, v6")
    a.v("v_and_b32 v7, 1, v1")
    a.v("v_lshl_add_u32 v6, v7, 4, v6")
    a.v("v_lshl_add_u32 v2, v4, 13, v6")
    a.s("s_lshl_b32 s76, s75, 16")
    a.s("s_lshl_b32 s77, s74, 14")
    a.s("s_add_u32 s76, s76, s77")
    a.s(f"s_lshl_b32 s77, s{S_KQ}, 11")
    a.s("s_add_u32 s76, s76, s77")
    a.s(f"s_lshl_b32 s77, s{S_HP}, 9")
    a.s("s_add_u32 s76, s76, s77")
    a.v("v_add_u32 v2, s76, v2")
    a.v("v_lshrrev_b32 v4, 3, v1")
    a.v("v_mul_u32_u24 v4, 1152, v4")
    a.v("v_lshrrev_b32 v5, 4, v1")
    a.s("s_lshl_b32 s76, s74, 2")
    a.v("v_or_b32 v5, s76, v5")
    a.v("v_and_b32 v6, 7, v1")
    a.v("v_xor_b32 v6, v6, v5")
    a.v("v_lshl_add_u32 v3, v6, 4, v4")
    a.s(f"s_mul_i32 s76, s{S_BP}, {96*1152}")
    a.s(f"s_mul_i32 s77, s74, {8*1152}")
    a.s("s_add_u32 s76, s76, s77")
    a.s(f"s_mul_i32 s77, s75, {48*1152}")
    a.s("s_add_u32 s76, s76, s77")
    a.v("v_add_u32 v3, s76, v3")
    a.s("s_lshl_b32 s78, s75, 12")
    a.s("s_lshl_b32 s77, s74, 10")
    a.s("s_add_u32 s78, s78, s77")
    a.s("s_mul_i32 s79, s75, 6144")
    a.s("s_add_u32 s79, s79, s77")
    a.s("s_add_u32 s79, s79, 32768")
    if cfg.skew == 3:
        a.s(f"s_add_u32 s84, s{S_HP}, s{S_BP}")
        a.s("s_mul_i32 s85, s84, 43")
        a.s("s_lshr_b32 s85, s85, 7")
        a.s("s_mul_i32 s85, s85, 3")
        a.s("s_sub_u32 s84, s84, s85")
        a.s("s_mul_i32 s84, s84, 3")
    elif cfg.skew == 4:
        a.s(f"s_add_u32 s84, s{S_HP}, s{S_BP}")
        a.s("s_and_b32 s84, s84, 3")
        a.s("s_lshl_b32 s84, s84, 1")
    elif cfg.skew:
        a.s(f"s_lshl_b32 s84, s{S_HP}, 1")
        a.s(f"s_add_u32 s84, s84, s{S_BP}")
        a.s("s_sub_u32 s85, s84, 9")
        a.s("s_cmp_ge_u32 s84, 9")
        a.s("s_cselect_b32 s84, s85, s84")
    else:
        a.s("s_mov_b32 s84, 0")
    build_srds(a)
    stamp(a, cfg, 1)
    def stage(s):
        slot = (s % 3) * SLOT
        a.s("s_lshl_b32 s85, s84, 7")
        a.s("s_lshl_b32 s86, s84, 19")
        for i4 in range(2):
            for i3 in range(2):
                for i1 in range(2):
                    a.s(f"s_add_u32 m0, s78, {slot + i4*16384 + i3*8192 + i1*2048}")
                    a.s(f"s_add_u32 s82, s86, {(32*i4 + 16*i3 + 4*i1)*8192}")
                    a.dma(2, S_WQ, "s82", cfg.ld_wq, tag=("st", s))
        for z in range(3):
            a.s(f"s_add_u32 m0, s79, {slot + z*2048}")
            a.s(f"s_add_u32 s82, s85, {z*16*1152}")
            a.dma(3, S_X, "s82", cfg.ld_x, tag=("st", s))
        a.s("s_add_u32 s84, s84, 1")
        a.s("s_cmp_eq_u32 s84, 9")
        a.s("s_cselect_b32 s84, 0, s84")
    a.v("v_mov_b32 v16, 0")
    stage(0)
    L = newlabel("nw")
    a.s("s_add_u32 s76, s2, s73")
    a.s("s_cmp_lg_u32 s76, 0")
    a.s(f"s_cbranch_scc1 {L}")
    a.raw("    s_memrealtime s[88:89]")
    a.raw("    s_waitcnt lgkmcnt(0)")
    a.s("s_or_b32 s88, s88, 1")
    a.v("v_mov_b32 v18, s88")
    a.v("v_mov_b32 v19, s89")
    a.s("s_mov_b64 exec, 1")
    a.raw(f"    buffer_store_dwordx2 v[18:19], v16, s[{S_DBG}:{S_DBG+3}], 0 offen sc1")
    a.s("s_mov_b64 exec, -1")
    a.label(L)
    stage(1)
    a.v("v_lshrrev_b32 v4, 4, v1")
    a.v("v_lshlrev_b32 v5, 2, v4")
    a.v("v_and_b32 v6, 15, v1")
    a.v("v_xor_b32 v6, v6, v5")
    a.v("v_lshlrev_b32 v6, 4, v6")
    a.v("v_lshl_add_u32 v8, v4, 8, v6")
    a.s(f"s_lshl_b32 s76, s{S_BP}, 1")
    a.s("s_add_u32 s76, s76, s74")
    a.s(f"s_lshl_b32 s77, s{S_KQ}, 3")
    a.s(f"s_lshl_b32 s81, s{S_HP}, 1")
    a.s("s_add_u32 s77, s77, s81")
    a.s("s_add_u32 s77, s77, s75")
    a.s("s_lshl_b32 s76, s76, 5")
    a.s("s_add_u32 s76, s76, s77")
    a.s(f"s_xor_b32 s77, s{S_BR}, 1")
    a.s("s_lshr_b32 s76, s76, s77")
    a.s("s_mul_i32 s80, s76, 12288")
    a.s("s_mul_i32 s76, s75, 6")
    a.s(f"s_cmp_eq_u32 s{S_BR}, 0")
    a.s("s_cselect_b32 s76, s76, 0")
    a.s("s_cselect_b32 s77, s74, s73")
    a.s("s_cselect_b32 s90, 0, -1")
    a.s("s_mul_i32 s77, s77, 12")
    a.s("s_add_u32 s77, s77, s76")
    a.s(f"s_mul_i32 s91, s77, {KSTR}")
    a.s(f"s_mul_i32 s92, s77, {VSTR}")
    a.s(f"s_add_u32 s92, s92, {SLOT}")
    a.s("s_lshl_b32 s76, s76, 10")
    a.s("s_add_u32 s80, s80, s76")
    a.s(f"s_lshl_b32 s76, s{S_KQ}, 10")
    a.s("s_lshl_b32 s77, s75, 7")
    a.s("s_add_u32 s76, s76, s77")
    a.s("s_lshl_b32 s77, s74, 5")
    a.s("s_add_u32 s76, s76, s77")
    a.s("s_mul_i32 s76, s76, 1152")
    a.s(f"s_mul_i32 s77, s{S_HP}, 288")
    a.s("s_and_b32 s77, s77, 0xffffffc0")
    a.s("s_add_u32 s76, s76, s77")
    for y in range(5):
        a.v(f"v_add_u32 v4, {y*64}, v1")
        a.v("v_mul_u32_u24 v5, 3277, v4")
        a.v("v_lshrrev_b32 v5, 16, v5")
        a.v("v_mul_u32_u24 v6, 20, v5")
        a.v("v_sub_u32 v6, v4, v6")
        a.v("v_bfe_u32 v7, v5, 2, 1")
        a.v("v_lshlrev_b32 v7, 1, v7")
        a.v("v_xor_b32 v6, v6, v7")
        a.v("v_mul_u32_u24 v5, 1152, v5")
        a.v("v_lshl_add_u32 v5, v6, 4, v5")
        a.v(f"v_add_u32 v{9+y}, s76, v5")
    a.s("s_mul_i32 s93, s73, 10240")
    a.v("v_lshlrev_b32 v14, 7, v1")
    a.s("s_lshr_b32 s76, s2, 3")
    a.s("s_lshl_b32 s76, s76, 2")
    a.s("s_add_u32 s76, s76, s73")
    a.s(f"s_mul_i32 s76, s76, {72*128}")
    a.s(f"s_mul_i32 s94, s{S_KQ}, {1024*1152}")
    a.s("s_add_u32 s94, s94, s76")
    a.v(f"v_mov_b32 v17, {LDS_NONCE}")
    def kvstage(g, srdb, sm0, stride):
        for i in range(12):
            if i == 6:
                a.s("s_mov_b32 exec_lo, s90"); a.s("s_mov_b32 exec_hi, s90")
            a.s(f"s_add_u32 m0, s{sm0}, {i*stride}")
            a.s(f"s_add_u32 s82, s80, {i*1024}")
            a.dma(8, srdb, "s82", cfg.ld_kv, tag=("st", g))
        a.s("s_mov_b64 exec, -1")
    def wostage(z):
        p, k2 = divmod(z, 2)
        slot = ((11 + z) % 3) * SLOT
        a.s(f"s_add_u32 s83, s{S_HP}, {p}")
        a.s("s_and_b32 s83, s83, 3")
        a.s(f"s_mul_i32 s83, s83, {256*1152}")
        for z2 in range(2):
            a.s(f"s_add_u32 s82, s83, {(k2*64 + z2*16)*1152}")
            for y in range(5):
                a.s(f"s_add_u32 m0, s93, {slot + z2*5120 + y*1024}")
                a.dma(9+y, S_WO, "s82", cfg.ld_wo, tag=("st", 11+z))
    def issue(g):
        if cfg.x_nodma and g != 10: return
        if g <= 8: stage(g)
        elif g == 9: kvstage(9, S_K, 91, KSTR)
        elif g == 10:
            kvstage(10, S_V, 92, VSTR)
            a.bload(18, 2, 16, S_DBG, "0", flags="sc1", tag="nonce")
            if cfg.touch:
                a.s("s_mov_b32 exec_lo, -1"); a.s("s_mov_b32 exec_hi, 15")
                a.bload(20, 1, 14, S_WO, "s94", tag="touch")
                a.s(f"s_add_u32 s94, s94, {36*128}")
                a.bload(21, 1, 14, S_WO, "s94", tag="touch")
                a.s("s_mov_b64 exec, -1")
        elif g <= 18: wostage(g - 11)
    stamp(a, cfg, 2)
    for g in range(19):
        a.wait_vm_tag(("st", g))
        if g == 0: stamp(a, cfg, 3)
        if g == 3: stamp(a, cfg, 4)
        if g == 8: stamp(a, cfg, 5)
        if g == 9: stamp(a, cfg, 6)
        if g == 10: stamp(a, cfg, 7)
        if g == 11:
            stamp(a, cfg, 8)
            Lok = newlabel("nok"); Lsp = newlabel("nsp")
            a.s("s_mov_b32 s77, 0")
            a.label(Lsp)
            a.v("v_readfirstlane_b32 s76, v18")
            a.s("s_cmp_lg_u32 s76, 0")
            a.s(f"s_cbranch_scc1 {Lok}")
            a.s("s_add_u32 s77, s77, 1")
            a.s(f"s_cmp_gt_u32 s77, {SPIN_MAX}")
            a.s(f"s_cbranch_scc1 {Lok}")
            a.raw(f"    buffer_load_dwordx2 v[18:19], v16, s[{S_DBG}:{S_DBG+3}], 0 offen sc1")
            a.raw("    s_waitcnt vmcnt(0)")
            a.s(f"s_branch {Lsp}")
            a.label(Lok)
            a.ds_write("ds_write_b64", 17, 18, 2)
            a.waitcnt(lgkm=0)
        if g == 15: stamp(a, cfg, 9)
        if g == 18: stamp(a, cfg, 10)
        a.barrier()
        if g == 0: issue(2)
        elif g + 2 <= 18: issue(g + 2)

def xlane_reduce(a, op, regs, tmps):
    for sw in ("v_permlane32_swap_b32", "v_permlane16_swap_b32"):
        for r, t in zip(regs, tmps): a.v(f"v_mov_b32 v{t}, v{r}")
        for r, t in zip(regs, tmps): a.v(f"{sw} v{r}, v{t}")
        for r, t in zip(regs, tmps): a.v(f"{op} v{r}, v{r}, v{t}")

class Fill:
    def __init__(self): self.q = []
    def add(self, *fs): self.q.extend(fs)
    def pop(self, n):
        for _ in range(n):
            if self.q: self.q.pop(0)()
    def drain(self): self.pop(len(self.q))

def compute(a, cfg):
    ACC = 16; WF = 112; XF = 144; KF = 168; AS = 216; VF = 112
    accQ = lambda t, mt: ACC + (t*3 + mt)*4
    Wf = lambda t: WF + 4*t
    Xf = lambda par, mt: XF + par*12 + mt*4
    Kf = lambda kt, kp: KF + (kt*4 + kp)*4
    accS = lambda kt, mt: AS + (kt*3 + mt)*4
    Vf = lambda t: VF + 6*t
    accO = lambda mt, t: ACC + (mt*8 + t)*4
    aW = lambda sl, t: 216 + sl*10 + t
    aX = lambda sl, ks: 216 + sl*10 + 8 + ks
    aK = lambda kp: 252 + kp
    aV = lambda th: 2 + th
    R = [13, 15]
    ofA = lambda kp, mt: 168 + (kp*3 + mt)*4
    def ofB(kp, mt):
        f = kp*3 + mt
        return 216 + f*4 if f < 10 else 160 + (f - 10)*4
    of = lambda buf, kp, mt: ofB(kp, mt) if buf else ofA(kp, mt)
    acc2 = lambda mt, t: 16 + (mt*9 + t)*4
    Wf2 = lambda t: 124 + 4*t

    if cfg.prio: a.s(f"s_setprio {cfg.prio}")
    a.s(f"s_and_b32 s74, s{S_W}, 1")
    a.s(f"s_lshr_b32 s75, s{S_W}, 1")
    a.v("v_lshrrev_b32 v160, 4, v1")
    a.v("v_bfe_u32 v161, v1, 2, 2")
    a.v("v_and_b32 v162, 3, v1")
    a.v("v_and_b32 v163, 15, v1")
    a.v("v_lshl_add_u32 v164, v160, 3, v161")
    a.v("v_lshlrev_b32 v164, 9, v164")
    a.v("v_and_b32 v165, 1, v160")
    a.v("v_lshl_or_b32 v166, v165, 2, v161")
    a.v("v_lshl_add_u32 v164, v166, 5, v164")
    a.v("v_lshl_add_u32 v164, v162, 3, v164")
    a.s("s_lshl_b32 s76, s75, 8")
    a.v(f"v_add_u32 v{aW(0,0)}, s76, v164")
    for t in range(1, 8): a.v(f"v_xor_b32 v{aW(0,t)}, {32*t}, v{aW(0,0)}")
    a.v("v_lshrrev_b32 v164, 1, v163")
    a.v("v_xor_b32 v164, v164, v160")
    a.v("v_lshlrev_b32 v164, 4, v164")
    a.v("v_lshl_add_u32 v164, v163, 7, v164")
    a.s("s_mul_i32 s76, s74, 6144")
    a.s("s_add_u32 s76, s76, 32768")
    a.v(f"v_add_u32 v{aX(0,0)}, s76, v164")
    a.v(f"v_xor_b32 v{aX(0,1)}, 64, v{aX(0,0)}")
    for sl in (1, 2):
        for i in range(10): a.v(f"v_add_u32 v{216+sl*10+i}, {sl*SLOT}, v{216+i}")
    a.s(f"s_cmp_eq_u32 s{S_BR}, 0")
    a.s(f"s_cselect_b32 s77, s74, s{S_W}")
    a.s(f"s_mul_i32 s76, s77, {KUNIT}")
    a.v(f"v_mul_u32_u24 v164, {KSTR}, v161")
    a.v("v_lshl_add_u32 v164, v162, 8, v164")
    a.v("v_lshl_add_u32 v164, v160, 3, v164")
    a.v("v_add_u32 v164, s76, v164")
    for kp in range(4):
        a.v(f"v_xor_b32 v167, {kp}, v162")
        a.v(f"v_lshl_add_u32 v{aK(kp)}, v167, 6, v164")
    a.s(f"s_mul_i32 s76, s77, {VUNIT}")
    a.s(f"s_add_u32 s76, s76, {SLOT}")
    a.v(f"v_mul_u32_u24 v164, {VSTR}, v160")
    a.v("v_lshl_add_u32 v164, v161, 8, v164")
    a.v("v_lshl_add_u32 v164, v162, 3, v164")
    a.v("v_add_u32 v164, s76, v164")
    for th in range(4):
        a.v(f"v_xor_b32 v167, {th}, v161")
        a.v(f"v_lshl_add_u32 v{aV(th)}, v167, 6, v164")
    a.v("v_lshl_add_u32 v164, v160, 2, v161")
    a.v("v_mul_u32_u24 v164, 320, v164")
    a.v("v_lshl_add_u32 v164, v162, 3, v164")
    a.s("s_mul_i32 s76, s75, 20480")
    a.s(f"s_add_u32 s76, s76, {2*SLOT}")
    a.v("v_add_u32 v164, s76, v164")
    a.s(f"s_and_b32 s77, s{S_HP}, 1")
    a.v("v_xor_b32 v167, s77, v165")
    a.v(f"v_lshl_add_u32 v{R[0]}, v167, 5, v164")
    a.s("s_add_u32 s77, s77, 1")
    a.v("v_xor_b32 v167, s77, v165")
    a.v(f"v_lshl_add_u32 v{R[1]}, v167, 5, v164")
    a.v(f"v_subrev_u32 v{R[1]}, 32, v{R[1]}")
    a.v("v_lshlrev_b32 v14, 4, v1")
    regA = ((11 + 7 + 1) % 3) * SLOT
    regB = ((11 + 7 + 2) % 3) * SLOT
    a.v(f"v_mul_u32_u24 v164, {RSTR}, v163")
    a.v("v_lshl_add_u32 v164, v160, 3, v164")
    a.s(f"s_mul_i32 s76, s74, {48*RSTR}")
    a.s("s_cmp_eq_u32 s75, 0")
    a.s(f"s_mov_b32 s77, {regB}")
    a.s(f"s_cselect_b32 s77, {regA}, s77")
    a.s("s_add_u32 s76, s76, s77")
    a.v("v_add_u32 v12, s76, v164")
    a.v("v_lshlrev_b32 v11, 3, v1")
    a.v(f"v_mov_b32 v10, {LDS_NONCE}")
    a.s(f"s_lshl_b32 s76, s{S_BR}, 4")
    a.s(f"s_lshl_b32 s77, s{S_BP}, 1")
    a.s("s_add_u32 s76, s76, s77")
    a.s("s_add_u32 s76, s76, s74")
    a.s("s_lshl_b32 s76, s76, 5")
    a.s(f"s_lshl_b32 s77, s{S_KQ}, 3")
    a.s("s_add_u32 s76, s76, s77")
    a.s("s_add_u32 s76, s76, s75")
    a.s("s_mul_i32 s80, s76, 12288")
    a.s(f"s_mov_b32 s83, {f2u(SC)}")
    a.s("s_and_b32 s76, s2, 7")
    a.s(f"s_lshl_b32 s77, s{S_BP}, 3")
    a.s("s_or_b32 s76, s76, s77")
    a.s("s_lshl_b32 s76, s76, 2")
    a.s(f"s_add_u32 s76, s76, s{S_W}")
    a.s("s_lshl_b32 s76, s76, 7")
    a.s(f"s_add_u32 s84, s76, {WS_FLAG1}")
    a.s(f"s_lshl_b32 s85, 1, s{S_HP}")
    a.s("s_xor_b32 s86, s85, 15")
    build_srds(a)

    ver = {}
    def rdW(s, t, ks, h):
        def f():
            a.ds_read("ds_read_b64_tr_b16", Wf(t)+2*h, 2, aW(s % 3, t), off=ks*16384 + h*2048); ver[("W", t, h)] = (s, ks)
        return f
    def rdX(s, mt, ks):
        def f():
            a.ds_read("ds_read_b128", Xf(ks, mt), 4, aX(s % 3, ks), off=mt*2048); ver[("X", ks, mt)] = s
        return f
    def chk1(s, ks, t, mt):
        assert ver[("W", t, 0)] == (s, ks) and ver[("W", t, 1)] == (s, ks) and ver[("X", ks, mt)] == s, (s, ks, t, mt)
    def rdK(kt, kp, e):
        return lambda: a.ds_read("ds_read_b64", Kf(kt, kp)+2*e, 2, aK(kp), off=kt*4*KSTR + 32*e)
    def cvt(d, s0, s1):
        return lambda: a.v(f"v_cvt_pk_bf16_f32 v{d}, v{s0}, v{s1}")
    def cvtQ(kp):
        out = []
        for mt in range(3):
            r = accQ(2*kp, mt); s_ = accQ(2*kp+1, mt)
            out += [cvt(r, r, r+1), cvt(r+1, r+2, r+3), cvt(r+2, s_, s_+1), cvt(r+3, s_+2, s_+3)]
        return out
    F = Fill()
    stamp(a, cfg, 1)
    a.barrier()
    stamp(a, cfg, 2)
    for mt in range(3): rdX(0, mt, 0)()
    for t in range(8): rdW(0, t, 0, 0)(); rdW(0, t, 0, 1)()
    BP = cfg.barpos
    for s in range(9):
        last = s == 8; sl = s; nsl = s + 1
        for mt in range(3): F.add(rdX(sl, mt, 1))
        for t in range(8):
            for mt in range(3):
                chk1(s, 0, t, mt)
                a.mfma(accQ(t, mt), Wf(t), Xf(0, mt), None if s == 0 else accQ(t, mt))
                F.pop(2 if len(F.q) > 2 else 1)
            F.add(rdW(sl, t, 1, 0), rdW(sl, t, 1, 1))
        for t in range(8):
            for mt in range(3):
                chk1(s, 1, t, mt)
                a.mfma(accQ(t, mt), Wf(t), Xf(1, mt), accQ(t, mt))
                F.pop(2 if len(F.q) > 2 else 1)
            if t == BP - 1:
                assert not F.q
                a.waitcnt(lgkm=0)
                a.barrier()
                if not last:
                    F.add(rdX(nsl, 0, 0), rdW(nsl, 0, 0, 0), rdW(nsl, 0, 0, 1), rdX(nsl, 1, 0), rdX(nsl, 2, 0))
                    for tt in range(1, BP): F.add(rdW(nsl, tt, 0, 0), rdW(nsl, tt, 0, 1))
                else:
                    for kp in range(4):
                        for kt in range(3): F.add(rdK(kt, kp, 0), rdK(kt, kp, 1))
            elif t >= BP and not last:
                F.add(rdW(nsl, t, 0, 0), rdW(nsl, t, 0, 1))
    F.drain()
    stamp(a, cfg, 3)
    for kp in range(4):
        for f in cvtQ(kp): f()
    a.waitcnt(lgkm=0)
    for kp in range(4):
        for kt in range(3):
            for mt in range(3):
                a.mfma(accS(kt, mt), Kf(kt, kp), accQ(2*kp, mt), None if kp == 0 else accS(kt, mt))
    MX = [160, 161, 162]; TM = [163, 164, 165]; SM = [166, 167, 6]
    vals = lambda mt: [accS(kt, mt) + r for kt in range(3) for r in range(4)]
    for mt in range(3):
        v = vals(mt); a.v(f"v_max3_f32 v{MX[mt]}, v{v[0]}, v{v[1]}, v{v[2]}")
    for i in range(3, 11, 2):
        for mt in range(3):
            v = vals(mt); a.v(f"v_max3_f32 v{MX[mt]}, v{MX[mt]}, v{v[i]}, v{v[i+1]}")
    for mt in range(3):
        v = vals(mt); a.v(f"v_max_f32 v{MX[mt]}, v{MX[mt]}, v{v[11]}")
    xlane_reduce(a, "v_max_f32", MX, TM)
    for mt in range(3): a.v(f"v_mul_f32 v{MX[mt]}, s83, v{MX[mt]}")
    for i in range(12):
        for mt in range(3):
            v = vals(mt); a.v(f"v_fma_f32 v{v[i]}, v{v[i]}, s83, -v{MX[mt]}")
    for i in range(12):
        for mt in range(3):
            v = vals(mt); a.v(f"v_exp_f32 v{v[i]}, v{v[i]}")
    a.barrier()
    for t in range(8):
        for kt in range(3):
            F.add(lambda t=t, kt=kt: a.ds_read("ds_read_b64_tr_b16", Vf(t) + 2*kt, 2, aV(t >> 1), off=kt*4*VSTR + (t & 1)*32))
    for mt in range(3):
        v = vals(mt); a.v(f"v_add_f32 v{SM[mt]}, v{v[0]}, v{v[1]}"); F.pop(1)
    for i in range(2, 12):
        for mt in range(3):
            v = vals(mt); a.v(f"v_add_f32 v{SM[mt]}, v{SM[mt]}, v{v[i]}"); F.pop(1)
    xlane_reduce(a, "v_add_f32", SM, TM)
    for mt in range(3): a.v(f"v_rcp_f32 v{SM[mt]}, v{SM[mt]}")
    for i in range(12):
        for mt in range(3):
            v = vals(mt); a.v(f"v_mul_f32 v{v[i]}, v{v[i]}, v{SM[mt]}")
    for mt in range(3):
        r0, r1, r2 = accS(0, mt), accS(1, mt), accS(2, mt)
        for f in (cvt(r0, r0, r0+1), cvt(r0+1, r0+2, r0+3), cvt(r0+2, r1, r1+1), cvt(r0+3, r1+2, r1+3), cvt(r2, r2, r2+1), cvt(r2+1, r2+2, r2+3)): f()
    stamp(a, cfg, 4)
    a.s(f"s_mul_i32 s81, s{S_HP}, {2*12288}")
    a.s("s_add_u32 s81, s81, s80")
    def ostore(mt, kp):
        r = accO(mt, 2*kp); s_ = accO(mt, 2*kp+1); d = ofA(kp, mt); f = kp*3 + mt
        return [cvt(d, r, r+1), cvt(d+1, r+2, r+3), cvt(d+2, s_, s_+1), cvt(d+3, s_+2, s_+3),
                lambda: a.s(f"s_add_u32 s82, s81, {(f//4)*4096 + WS_O}"),
                lambda: a.bstore(d, 4, 14, S_WS, "s82", off=(f % 4)*1024, flags="sc1")]
    for mt in range(3):
        for t in range(8):
            a.mfma(accO(mt, t), Vf(t), accS(0, mt), None); F.pop(2)
        for t in range(8):
            a.mfma(accO(mt, t), Vf(t)+4, accS(2, mt), accO(mt, t), k=16); F.pop(2)
        for kp in range(4): F.add(*ostore(mt, kp))
    def rdW2(z, t, ks, h):
        def f():
            a.ds_read("ds_read_b64_tr_b16", Wf2(t)+2*h, 2, R[t & 1], off=ks*10240 + h*5120 + 32*t); ver[("W2", t, h)] = (z, ks)
        return f
    for kp in range(4):
        for mt in range(3): ver[("O", 0, kp, mt)] = 0
    F.drain()
    stamp(a, cfg, 5)
    a.waitcnt(lgkm=0)
    a.barrier()
    stamp(a, cfg, 10)
    for t in range(9): rdW2(0, t, 0, 0)(); rdW2(0, t, 0, 1)()
    a.ds_read("ds_read_b64", 8, 2, 10)
    def headbase(p):
        return [lambda: a.s(f"s_add_u32 s81, s{S_HP}, {p}"), lambda: a.s("s_and_b32 s81, s81, 3"),
                lambda: a.s(f"s_mul_i32 s81, s81, {2*12288}"), lambda: a.s("s_add_u32 s81, s81, s80")]
    def ldO(p, f):
        kp, mt = divmod(f, 3)
        return [lambda: a.s(f"s_add_u32 s82, s81, {(f//4)*4096 + WS_O}"),
                lambda: (a.bload(of(p & 1, kp, mt), 4, 14, S_WS, "s82", off=(f % 4)*1024, flags="sc1"), ver.__setitem__(("O", p & 1, kp, mt), p))]
    for z in range(8):
        p, k2 = divmod(z, 2)
        last = z == 7
        if z == 2:
            F.drain()
            a.waitcnt(vm=0)
            stamp(a, cfg, 6)
            a.s("s_mov_b32 exec_lo, s85"); a.s("s_mov_b32 exec_hi, 0")
            a.bstore(8, 2, 11, S_WS, "s84", flags="sc1")
            poll_flags(a, 6, 8, 11, 84, 86, 76)
            stamp(a, cfg, 7)
            for pp in (1, 2):
                for f in headbase(pp): f()
                for fr in range(12):
                    for f in ldO(pp, fr): f()
        for ks in range(2):
            kp = k2*2 + ks
            for t in range(9):
                for mt in range(3):
                    assert ver[("W2", t, 0)] == (z, ks) and ver[("W2", t, 1)] == (z, ks) and ver[("O", p & 1, kp, mt)] == p
                    a.mfma(acc2(mt, t), Wf2(t), of(p & 1, kp, mt), None if (z == 0 and ks == 0) else acc2(mt, t))
                    F.pop(2 if len(F.q) > 2 else 1)
                if ks == 0:
                    F.add(rdW2(z, t, 1, 0), rdW2(z, t, 1, 1))
                elif not last:
                    if t == BP - 1:
                        F.drain()
                        a.waitcnt(lgkm=0)
                        a.barrier()
                        delta = SLOT if (11 + z + 1) % 3 else -2*SLOT
                        for r in R: F.add(lambda r=r, delta=delta: a.v(f"v_add_u32 v{r}, {delta & 0xffffffff}, v{r}"))
                        for tt in range(BP): F.add(rdW2(z+1, tt, 0, 0), rdW2(z+1, tt, 0, 1))
                    elif t >= BP: F.add(rdW2(z+1, t, 0, 0), rdW2(z+1, t, 0, 1))
            if p == 1:
                if kp == 0: F.add(*headbase(3))
                for mt in range(3): F.add(*ldO(3, kp*3 + mt))
    F.drain()
    stamp(a, cfg, 8)
    for mt in range(3):
        for t in range(9):
            r = acc2(mt, t)
            cvt(r, r, r+1)(); cvt(r+1, r+2, r+3)()
            a.ds_write("ds_write_b64", 12, r, 2, off=mt*16*RSTR + 32*t)
    a.waitcnt(lgkm=0)
    return regA, regB

def unpack_add(a, dst, src, first):
    for i in range(4):
        if first:
            a.v(f"v_lshlrev_b32 v{dst+2*i}, 16, v{src+i}")
            a.v(f"v_and_b32 v{dst+2*i+1}, 0xffff0000, v{src+i}")
        else:
            a.v(f"v_lshlrev_b32 v60, 16, v{src+i}")
            a.v(f"v_and_b32 v61, 0xffff0000, v{src+i}")
            a.v(f"v_add_f32 v{dst+2*i}, v{dst+2*i}, v60")
            a.v(f"v_add_f32 v{dst+2*i+1}, v{dst+2*i+1}, v61")

def tail(a, cfg, regA, regB, endlabel):
    for u in range(512): assert (u*3641) >> 16 == u // 18
    a.v("v_mul_u32_u24 v4, 3641, v0")
    a.v("v_lshrrev_b32 v4, 16, v4")
    a.v("v_mul_u32_u24 v5, 18, v4")
    a.v("v_sub_u32 v5, v0, v5")
    a.v(f"v_mul_u32_u24 v6, {RSTR}, v4")
    a.v("v_lshl_add_u32 v6, v5, 4, v6")
    a.v("v_mul_u32_u24 v7, 2304, v4")
    a.v("v_lshl_add_u32 v7, v5, 4, v7")
    a.v("v_lshlrev_b32 v3, 4, v0")
    a.v("v_and_b32 v1, 63, v0")
    a.v("v_lshlrev_b32 v11, 3, v1")
    a.v(f"v_mov_b32 v10, {LDS_NONCE}")
    lo = min(regA, regB); hi_off = abs(regB - regA)
    assert hi_off < 65536 or True
    for dl in range(4):
        a.s(f"s_add_u32 s76, s{S_KQ}, {dl}")
        a.s("s_and_b32 s76, s76, 3")
        a.s(f"s_mul_i32 s77, s76, {24*RSTR}")
        a.s(f"s_add_u32 s77, s77, {lo}")
        a.v(f"v_add_u32 v{12+dl}, s77, v6")
        a.s("s_and_b32 s77, s2, 0xfc")
        a.s("s_or_b32 s77, s77, s76")
        a.s("s_lshl_b32 s77, s77, 2")
        a.s(f"s_add_u32 s77, s77, s{S_KQ}")
        a.s("s_mul_i32 s77, s77, 6912")
        a.s(f"s_add_u32 s{88+dl}, s77, {WS_PART}")
        a.s("s_lshl_b32 s77, s2, 2")
        a.s("s_add_u32 s77, s77, s76")
        a.s("s_mul_i32 s77, s77, 6912")
        a.s(f"s_add_u32 s{92+dl}, s77, {WS_PART}")
    a.s("s_lshr_b32 s76, s2, 2")
    a.s("s_lshl_b32 s76, s76, 3")
    a.s(f"s_add_u32 s76, s76, s{S_W}")
    a.s("s_lshl_b32 s76, s76, 7")
    a.s(f"s_add_u32 s84, s76, {WS_FLAG2}")
    a.s(f"s_lshl_b32 s85, 1, s{S_KQ}")
    a.s("s_xor_b32 s86, s85, 15")
    a.s(f"s_mul_i32 s76, s{S_BP}, 96")
    a.s(f"s_mul_i32 s77, s{S_KQ}, 24")
    a.s("s_add_u32 s76, s76, s77")
    a.s("s_mul_i32 s76, s76, 2304")
    a.s(f"s_mul_i32 s77, s{S_BR}, 1152")
    a.s("s_add_u32 s76, s76, s77")
    a.s(f"s_mul_i32 s77, s{S_HP}, 288")
    a.s("s_add_u32 s87, s76, s77")
    a.s("s_movk_i32 s76, 432")
    a.v("v_cmp_gt_u32 s[78:79], s76, v0")
    a.barrier()
    a.s(f"s_cmp_eq_u32 s{S_W}, 7")
    a.s(f"s_cbranch_scc1 {endlabel}")
    a.ds_read("ds_read_b64", 8, 2, 10)
    assert hi_off < 65536
    for dl in (1, 2, 3, 0):
        a.ds_read("ds_read_b128", 16 + 8*dl, 4, 12+dl)
        a.ds_read("ds_read_b128", 20 + 8*dl, 4, 12+dl, off=hi_off)
    a.s("s_mov_b64 exec, s[78:79]")
    for dl in (1, 2, 3):
        unpack_add(a, 48, 16 + 8*dl, True)
        unpack_add(a, 48, 20 + 8*dl, False)
        for i in range(4): a.v(f"v_cvt_pk_bf16_f32 v{64+4*dl+i}, v{48+2*i}, v{49+2*i}")
        a.bstore(64 + 4*dl, 4, 3, S_WS, f"s{88+dl}", flags="sc1")
    unpack_add(a, 48, 16, True)
    unpack_add(a, 48, 20, False)
    a.waitcnt(vm=0)
    stamp(a, cfg, 9) if False else None
    a.s("s_mov_b32 exec_lo, s85"); a.s("s_mov_b32 exec_hi, 0")
    a.bstore(8, 2, 11, S_WS, "s84", flags="sc1")
    poll_flags(a, 62, 8, 11, 84, 86, 76)
    a.s("s_mov_b64 exec, s[78:79]")
    for dl in (1, 2, 3): a.bload(16 + 4*dl, 4, 3, S_WS, f"s{92+dl}", flags="sc1")
    for dl in (1, 2, 3): unpack_add(a, 48, 16 + 4*dl, False)
    for i in range(4): a.v(f"v_cvt_pk_bf16_f32 v{64+i}, v{48+2*i}, v{49+2*i}")
    a.bstore(64, 4, 7, S_OUT, "s87")

def kernel(cfg):
    a = Asm()
    a.lcap = cfg.lcap
    stamp(a, cfg, 0)
    prologue(a, cfg, "L_end")
    a.s(f"s_cmp_ge_u32 s{S_W}, 4")
    a.s("s_cbranch_scc1 L_loader")
    regA, regB = compute(a, cfg)
    stamp(a, cfg, 9)
    a.s("s_branch L_tail")
    a.label("L_loader")
    a.reset_state()
    loader(a, cfg)
    a.label("L_tail")
    a.reset_state()
    a.nop(4)
    tail(a, cfg, regA, regB, "L_end")
    if cfg.x_hold:
        a.v("v_readfirstlane_b32 s76, v8")
        a.label("L_hold")
        a.raw("    s_memrealtime s[78:79]")
        a.raw("    s_waitcnt lgkmcnt(0)")
        a.s("s_sub_u32 s77, s78, s76")
        a.s(f"s_cmp_lt_u32 s77, {cfg.x_hold}")
        a.s("s_cbranch_scc1 L_hold")
    if cfg.stamps: a.waitcnt(vm=0)
    stamp(a, cfg, 11)
    stamp_out(a, cfg)
    a.label("L_end")
    a.s("s_endpgm")
    return a

HEADER = open("cdna_kernels/" + NAME + ".s.ref").read().split("; Override launch")[0]

def build(cfg):
    n = NAME + "_kernel"
    a = kernel(cfg)
    return HEADER + f"""; @launch grid=(256,1,1) block=(512,1,1) lds=163840
.amdgcn_target "amdgcn-amd-amdhsa--gfx950"
.text
.globl {n}
.p2align 8
.type {n},@function
{n}:
{a.text()}
.section .rodata,"a"
.p2align 6
.amdhsa_kernel {n}
  .amdhsa_next_free_vgpr 256
  .amdhsa_next_free_sgpr 102
  .amdhsa_accum_offset 256
  .amdhsa_group_segment_fixed_size 0
  .amdhsa_kernarg_size 104
  .amdhsa_user_sgpr_count 2
  .amdhsa_user_sgpr_kernarg_segment_ptr 1
  .amdhsa_system_sgpr_workgroup_id_x 1
.end_amdhsa_kernel
"""

if __name__ == "__main__":
    cfg = Cfg()
    for kv in sys.argv[2:]:
        k, v = kv.split("=")
        cur = getattr(cfg, k)
        setattr(cfg, k, (v == "1") if isinstance(cur, bool) else int(v) if isinstance(cur, int) else v.replace("_", " "))
    open(sys.argv[1], "w").write(build(cfg))
```

```python
import sys, struct
from asm import *

NAME = "concat_heads__gqa_block_cached__mha_block_cached__near_ridge"
SLOT = 52224
KSTR, VSTR = 1040, 1056
KUNIT, VUNIT = 12*KSTR, 12*VSTR
LDS_NONCE = 3*SLOT
WS_O = 0
WS_PART = 16 << 20
WS_FLAG1 = 14 << 20
WS_FLAG2 = 15 << 20
WS_STAMP = 24 << 20
WS_BYTES = 32 << 20
RSTR = 304
SC = 0.08838834764831845 * 1.4426950408889634
SPIN_MAX = 1 << 17
def f2u(x): return struct.unpack("<I", struct.pack("<f", x))[0]

S_X, S_K, S_V, S_WQ, S_WO, S_OUT, S_WS, S_DBG = 36, 40, 44, 48, 52, 56, 60, 64
S_BR, S_KQ, S_HP, S_BP, S_W = 68, 69, 70, 71, 72

class Cfg:
    stamps = False
    ld_x = ""; ld_wq = ""; ld_kv = ""; ld_wo = ""
    skew = 9; touch = True; prio = 0; lcap = 15
    barpos = 3
    x_nodma = False
    dbgwg = -1; dbgwave = 0; x_hold = 0; x_enc = -1

NST = 12
def stamp(a, cfg, i):
    if cfg.stamps:
        r = 4 if i == 0 else 8 + 2*(i-1)
        a.raw(f"    s_memrealtime s[{r}:{r+1}]"); a.pos += 1
def stamp_out(a, cfg):
    if not cfg.stamps: return
    if cfg.x_enc >= 0:
        a.raw("    s_waitcnt lgkmcnt(0)")
        a.s("s_lshl_b32 s3, s2, 3")
        a.s(f"s_add_u32 s3, s3, s{S_W}")
        a.s(f"s_cmp_lg_u32 s3, {cfg.dbgwg*8 + cfg.dbgwave}")
        a.s("s_cbranch_scc1 L_end")
        r = 4 if cfg.x_enc == 0 else 8 + 2*(cfg.x_enc-1)
        a.label("L_hold")
        a.raw("    s_memrealtime s[78:79]")
        a.raw("    s_waitcnt lgkmcnt(0)")
        a.s(f"s_sub_u32 s77, s78, s{r}")
        a.s(f"s_cmp_lt_u32 s77, 5000")
        a.s("s_cbranch_scc1 L_hold")
        return
    a.raw("    s_waitcnt lgkmcnt(0)")
    a.s("s_mov_b64 exec, 1")
    if cfg.dbgwg >= 0:
        a.s("s_lshl_b32 s3, s2, 3")
        a.s(f"s_add_u32 s3, s3, s{S_W}")
        a.s(f"s_cmp_lg_u32 s3, {cfg.dbgwg*8 + cfg.dbgwave}")
        a.s("s_cbranch_scc1 L_end")
        a.v("v_mov_b32 v1, 0")
        for i in range(NST):
            r = 4 if i == 0 else 8 + 2*(i-1)
            a.v(f"v_mov_b32 v2, s{r}")
            a.v(f"v_subrev_u32 v2, v8, v2")
            a.bstore(2, 1, 1, S_DBG, "0", off=8 + 4*i)
            a.nop(2)
        return
    a.s("s_lshl_b32 s3, s2, 3")
    a.s(f"s_add_u32 s3, s3, s{S_W}")
    a.s("s_lshl_b32 s3, s3, 6")
    a.s(f"s_add_u32 s3, s3, {WS_STAMP}")
    a.v("v_mov_b32 v1, 0")
    for i in range(NST):
        r = 4 if i == 0 else 8 + 2*(i-1)
        a.v(f"v_mov_b32 v2, s{r}")
        a.bstore(2, 1, 1, S_WS, "s3", off=4*i)
        a.nop(2)

def srd(a, base, lo, hi, size):
    a.s(f"s_mov_b32 s{base}, s{lo}")
    a.s(f"s_mov_b32 s{base+1}, s{hi}")
    a.s(f"s_mov_b32 s{base+2}, {size}")
    a.s(f"s_mov_b32 s{base+3}, 0x20000")

def prologue(a, cfg, endlabel):
    a.s("s_cmp_ge_u32 s2, 256")
    a.s(f"s_cbranch_scc1 {endlabel}")
    a.raw("    s_load_dwordx16 s[8:23], s[0:1], 0")
    a.raw("    s_load_dwordx8 s[24:31], s[0:1], 64")
    a.raw("    s_load_dwordx2 s[32:33], s[0:1], 96")
    a.v("v_and_b32 v1, 63, v0")
    a.v("v_lshrrev_b32 v15, 6, v0")
    a.s(f"s_and_b32 s{S_KQ}, s2, 3")
    a.s(f"s_bfe_u32 s{S_BR}, s2, 0x10002")
    a.s(f"s_bfe_u32 s{S_HP}, s2, 0x20003")
    a.s(f"s_lshr_b32 s{S_BP}, s2, 5")
    a.v(f"v_readfirstlane_b32 s{S_W}, v15")

def build_srds(a):
    a.raw("    s_waitcnt lgkmcnt(0)")
    a.s(f"s_cmp_eq_u32 s{S_BR}, 0")
    for (dst, pa, pb, key) in ((S_X, 8, 18, 'x'), (S_WQ, 14, 24, 'wq'), (S_K, 10, 20, 'k'), (S_V, 12, 22, 'v'), (S_WO, 16, 26, 'wo')):
        a.s(f"s_cselect_b64 s[{dst}:{dst+1}], s[{pa}:{pa+1}], s[{pb}:{pb+1}]")
        if key in ('k', 'v'):
            a.s(f"s_mov_b32 s{dst+2}, 6291456")
            a.s(f"s_cselect_b32 s{dst+2}, 3145728, s{dst+2}")
        else:
            a.s(f"s_mov_b32 s{dst+2}, {884736 if key == 'x' else 4718592}")
        a.s(f"s_mov_b32 s{dst+3}, 0x20000")
    srd(a, S_OUT, 28, 29, 1769472)
    srd(a, S_DBG, 30, 31, 256)
    srd(a, S_WS, 32, 33, WS_BYTES)

_lbl = [0]
def newlabel(p):
    _lbl[0] += 1
    return f"L{p}_{_lbl[0]}"

def poll_flags(a, vdata, vnonce, voff, soff, smask, stmp):
    L = newlabel("poll"); X = newlabel("pollx")
    a.s(f"s_mov_b32 exec_lo, s{smask}")
    a.s("s_mov_b32 exec_hi, 0")
    a.s(f"s_mov_b32 s{stmp}, 0")
    a.label(L)
    a.bload(vdata, 2, voff, S_WS, f"s{soff}", flags="sc1")
    a.s(f"s_add_u32 s{stmp}, s{stmp}, 1")
    a.s(f"s_cmp_gt_u32 s{stmp}, {SPIN_MAX}")
    a.waitcnt(vm=0)
    a.s(f"s_cbranch_scc1 {X}")
    a.v(f"v_cmp_ne_u64 vcc, v[{vdata}:{vdata+1}], v[{vnonce}:{vnonce+1}]")
    a.s(f"s_cbranch_vccnz {L}")
    a.label(X)
    a.s("s_mov_b64 exec, -1")

def loader(a, cfg):
    a.s(f"s_sub_u32 s73, s{S_W}, 4")
    a.s("s_and_b32 s74, s73, 1")
    a.s("s_lshr_b32 s75, s73, 1")
    a.v("v_lshrrev_b32 v4, 5, v1")
    a.s("s_lshl_b32 s76, s74, 1")
    a.s("s_lshl_b32 s77, s75, 2")
    a.s("s_or_b32 s76, s76, s77")
    a.v("v_or_b32 v5, s76, v4")
    a.v("v_bfe_u32 v6, v1, 1, 4")
    a.v("v_xor_b32 v6, v6, v5")
    a.v("v_lshlrev_b32 v6, 5, v6")
    a.v("v_and_b32 v7, 1, v1")
    a.v("v_lshl_add_u32 v6, v7, 4, v6")
    a.v("v_lshl_add_u32 v2, v4, 13, v6")
    a.s("s_lshl_b32 s76, s75, 16")
    a.s("s_lshl_b32 s77, s74, 14")
    a.s("s_add_u32 s76, s76, s77")
    a.s(f"s_lshl_b32 s77, s{S_KQ}, 11")
    a.s("s_add_u32 s76, s76, s77")
    a.s(f"s_lshl_b32 s77, s{S_HP}, 9")
    a.s("s_add_u32 s76, s76, s77")
    a.v("v_add_u32 v2, s76, v2")
    a.v("v_lshrrev_b32 v4, 3, v1")
    a.v("v_mul_u32_u24 v4, 1152, v4")
    a.v("v_lshrrev_b32 v5, 4, v1")
    a.s("s_lshl_b32 s76, s74, 2")
    a.v("v_or_b32 v5, s76, v5")
    a.v("v_and_b32 v6, 7, v1")
    a.v("v_xor_b32 v6, v6, v5")
    a.v("v_lshl_add_u32 v3, v6, 4, v4")
    a.s(f"s_mul_i32 s76, s{S_BP}, {96*1152}")
    a.s(f"s_mul_i32 s77, s74, {8*1152}")
    a.s("s_add_u32 s76, s76, s77")
    a.s(f"s_mul_i32 s77, s75, {48*1152}")
    a.s("s_add_u32 s76, s76, s77")
    a.v("v_add_u32 v3, s76, v3")
    a.s("s_lshl_b32 s78, s75, 12")
    a.s("s_lshl_b32 s77, s74, 10")
    a.s("s_add_u32 s78, s78, s77")
    a.s("s_mul_i32 s79, s75, 6144")
    a.s("s_add_u32 s79, s79, s77")
    a.s("s_add_u32 s79, s79, 32768")
    if cfg.skew == 3:
        a.s(f"s_add_u32 s84, s{S_HP}, s{S_BP}")
        a.s("s_mul_i32 s85, s84, 43")
        a.s("s_lshr_b32 s85, s85, 7")
        a.s("s_mul_i32 s85, s85, 3")
        a.s("s_sub_u32 s84, s84, s85")
        a.s("s_mul_i32 s84, s84, 3")
    elif cfg.skew == 4:
        a.s(f"s_add_u32 s84, s{S_HP}, s{S_BP}")
        a.s("s_and_b32 s84, s84, 3")
        a.s("s_lshl_b32 s84, s84, 1")
    elif cfg.skew:
        a.s(f"s_lshl_b32 s84, s{S_HP}, 1")
        a.s(f"s_add_u32 s84, s84, s{S_BP}")
        a.s("s_sub_u32 s85, s84, 9")
        a.s("s_cmp_ge_u32 s84, 9")
        a.s("s_cselect_b32 s84, s85, s84")
    else:
        a.s("s_mov_b32 s84, 0")
    build_srds(a)
    stamp(a, cfg, 1)
    def stage(s):
        slot = (s % 3) * SLOT
        a.s("s_lshl_b32 s85, s84, 7")
        a.s("s_lshl_b32 s86, s84, 19")
        for i4 in range(2):
            for i3 in range(2):
                for i1 in range(2):
                    a.s(f"s_add_u32 m0, s78, {slot + i4*16384 + i3*8192 + i1*2048}")
                    a.s(f"s_add_u32 s82, s86, {(32*i4 + 16*i3 + 4*i1)*8192}")
                    a.dma(2, S_WQ, "s82", cfg.ld_wq, tag=("st", s))
        for z in range(3):
            a.s(f"s_add_u32 m0, s79, {slot + z*2048}")
            a.s(f"s_add_u32 s82, s85, {z*16*1152}")
            a.dma(3, S_X, "s82", cfg.ld_x, tag=("st", s))
        a.s("s_add_u32 s84, s84, 1")
        a.s("s_cmp_eq_u32 s84, 9")
        a.s("s_cselect_b32 s84, 0, s84")
    a.v("v_mov_b32 v16, 0")
    stage(0)
    L = newlabel("nw")
    a.s("s_add_u32 s76, s2, s73")
    a.s("s_cmp_lg_u32 s76, 0")
    a.s(f"s_cbranch_scc1 {L}")
    a.raw("    s_memrealtime s[88:89]")
    a.raw("    s_waitcnt lgkmcnt(0)")
    a.s("s_or_b32 s88, s88, 1")
    a.v("v_mov_b32 v18, s88")
    a.v("v_mov_b32 v19, s89")
    a.s("s_mov_b64 exec, 1")
    a.raw(f"    buffer_store_dwordx2 v[18:19], v16, s[{S_DBG}:{S_DBG+3}], 0 offen sc1")
    a.s("s_mov_b64 exec, -1")
    a.label(L)
    stage(1)
    a.v("v_lshrrev_b32 v4, 4, v1")
    a.v("v_lshlrev_b32 v5, 2, v4")
    a.v("v_and_b32 v6, 15, v1")
    a.v("v_xor_b32 v6, v6, v5")
    a.v("v_lshlrev_b32 v6, 4, v6")
    a.v("v_lshl_add_u32 v8, v4, 8, v6")
    a.s(f"s_lshl_b32 s76, s{S_BP}, 1")
    a.s("s_add_u32 s76, s76, s74")
    a.s(f"s_lshl_b32 s77, s{S_KQ}, 3")
    a.s(f"s_lshl_b32 s81, s{S_HP}, 1")
    a.s("s_add_u32 s77, s77, s81")
    a.s("s_add_u32 s77, s77, s75")
    a.s("s_lshl_b32 s76, s76, 5")
    a.s("s_add_u32 s76, s76, s77")
    a.s(f"s_xor_b32 s77, s{S_BR}, 1")
    a.s("s_lshr_b32 s76, s76, s77")
    a.s("s_mul_i32 s80, s76, 12288")
    a.s("s_mul_i32 s76, s75, 6")
    a.s(f"s_cmp_eq_u32 s{S_BR}, 0")
    a.s("s_cselect_b32 s76, s76, 0")
    a.s("s_cselect_b32 s77, s74, s73")
    a.s("s_cselect_b32 s90, 0, -1")
    a.s("s_mul_i32 s77, s77, 12")
    a.s("s_add_u32 s77, s77, s76")
    a.s(f"s_mul_i32 s91, s77, {KSTR}")
    a.s(f"s_mul_i32 s92, s77, {VSTR}")
    a.s(f"s_add_u32 s92, s92, {SLOT}")
    a.s("s_lshl_b32 s76, s76, 10")
    a.s("s_add_u32 s80, s80, s76")
    a.s(f"s_lshl_b32 s76, s{S_KQ}, 10")
    a.s("s_lshl_b32 s77, s75, 7")
    a.s("s_add_u32 s76, s76, s77")
    a.s("s_lshl_b32 s77, s74, 5")
    a.s("s_add_u32 s76, s76, s77")
    a.s("s_mul_i32 s76, s76, 1152")
    a.s(f"s_mul_i32 s77, s{S_HP}, 288")
    a.s("s_and_b32 s77, s77, 0xffffffc0")
    a.s("s_add_u32 s76, s76, s77")
    for y in range(5):
        a.v(f"v_add_u32 v4, {y*64}, v1")
        a.v("v_mul_u32_u24 v5, 3277, v4")
        a.v("v_lshrrev_b32 v5, 16, v5")
        a.v("v_mul_u32_u24 v6, 20, v5")
        a.v("v_sub_u32 v6, v4, v6")
        a.v("v_bfe_u32 v7, v5, 2, 1")
        a.v("v_lshlrev_b32 v7, 1, v7")
        a.v("v_xor_b32 v6, v6, v7")
        a.v("v_mul_u32_u24 v5, 1152, v5")
        a.v("v_lshl_add_u32 v5, v6, 4, v5")
        a.v(f"v_add_u32 v{9+y}, s76, v5")
    a.s("s_mul_i32 s93, s73, 10240")
    a.v("v_lshlrev_b32 v14, 7, v1")
    a.s("s_lshr_b32 s76, s2, 3")
    a.s("s_lshl_b32 s76, s76, 2")
    a.s("s_add_u32 s76, s76, s73")
    a.s(f"s_mul_i32 s76, s76, {72*128}")
    a.s(f"s_mul_i32 s94, s{S_KQ}, {1024*1152}")
    a.s("s_add_u32 s94, s94, s76")
    a.v(f"v_mov_b32 v17, {LDS_NONCE}")
    def kvstage(g, srdb, sm0, stride):
        for i in range(12):
            if i == 6:
                a.s("s_mov_b32 exec_lo, s90"); a.s("s_mov_b32 exec_hi, s90")
            a.s(f"s_add_u32 m0, s{sm0}, {i*stride}")
            a.s(f"s_add_u32 s82, s80, {i*1024}")
            a.dma(8, srdb, "s82", cfg.ld_kv, tag=("st", g))
        a.s("s_mov_b64 exec, -1")
    def wostage(z):
        p, k2 = divmod(z, 2)
        slot = ((11 + z) % 3) * SLOT
        a.s(f"s_add_u32 s83, s{S_HP}, {p}")
        a.s("s_and_b32 s83, s83, 3")
        a.s(f"s_mul_i32 s83, s83, {256*1152}")
        for z2 in range(2):
            a.s(f"s_add_u32 s82, s83, {(k2*64 + z2*16)*1152}")
            for y in range(5):
                a.s(f"s_add_u32 m0, s93, {slot + z2*5120 + y*1024}")
                a.dma(9+y, S_WO, "s82", cfg.ld_wo, tag=("st", 11+z))
    def issue(g):
        if cfg.x_nodma and g != 10: return
        if g <= 8: stage(g)
        elif g == 9: kvstage(9, S_K, 91, KSTR)
        elif g == 10:
            kvstage(10, S_V, 92, VSTR)
            a.bload(18, 2, 16, S_DBG, "0", flags="sc1", tag="nonce")
            if cfg.touch:
                a.s("s_mov_b32 exec_lo, -1"); a.s("s_mov_b32 exec_hi, 15")
                a.bload(20, 1, 14, S_WO, "s94", tag="touch")
                a.s(f"s_add_u32 s94, s94, {36*128}")
                a.bload(21, 1, 14, S_WO, "s94", tag="touch")
                a.s("s_mov_b64 exec, -1")
        elif g <= 18: wostage(g - 11)
    stamp(a, cfg, 2)
    for g in range(19):
        a.wait_vm_tag(("st", g))
        if g == 0: stamp(a, cfg, 3)
        if g == 3: stamp(a, cfg, 4)
        if g == 8: stamp(a, cfg, 5)
        if g == 9: stamp(a, cfg, 6)
        if g == 10: stamp(a, cfg, 7)
        if g == 11:
            stamp(a, cfg, 8)
            Lok = newlabel("nok"); Lsp = newlabel("nsp")
            a.s("s_mov_b32 s77, 0")
            a.label(Lsp)
            a.v("v_readfirstlane_b32 s76, v18")
            a.s("s_cmp_lg_u32 s76, 0")
            a.s(f"s_cbranch_scc1 {Lok}")
            a.s("s_add_u32 s77, s77, 1")
            a.s(f"s_cmp_gt_u32 s77, {SPIN_MAX}")
            a.s(f"s_cbranch_scc1 {Lok}")
            a.raw(f"    buffer_load_dwordx2 v[18:19], v16, s[{S_DBG}:{S_DBG+3}], 0 offen sc1")
            a.raw("    s_waitcnt vmcnt(0)")
            a.s(f"s_branch {Lsp}")
            a.label(Lok)
            a.ds_write("ds_write_b64", 17, 18, 2)
            a.waitcnt(lgkm=0)
        if g == 15: stamp(a, cfg, 9)
        if g == 18: stamp(a, cfg, 10)
        a.barrier()
        if g == 0: issue(2)
        elif g + 2 <= 18: issue(g + 2)

def xlane_reduce(a, op, regs, tmps):
    for sw in ("v_permlane32_swap_b32", "v_permlane16_swap_b32"):
        for r, t in zip(regs, tmps): a.v(f"v_mov_b32 v{t}, v{r}")
        for r, t in zip(regs, tmps): a.v(f"{sw} v{r}, v{t}")
        for r, t in zip(regs, tmps): a.v(f"{op} v{r}, v{r}, v{t}")

class Fill:
    def __init__(self): self.q = []
    def add(self, *fs): self.q.extend(fs)
    def pop(self, n):
        for _ in range(n):
            if self.q: self.q.pop(0)()
    def drain(self): self.pop(len(self.q))

def compute(a, cfg):
    ACC = 16; WF = 112; XF = 144; KF = 168; AS = 216; VF = 112
    accQ = lambda t, mt: ACC + (t*3 + mt)*4
    Wf = lambda t: WF + 4*t
    Xf = lambda par, mt: XF + par*12 + mt*4
    Kf = lambda kt, kp: KF + (kt*4 + kp)*4
    accS = lambda kt, mt: AS + (kt*3 + mt)*4
    Vf = lambda t: VF + 6*t
    accO = lambda mt, t: ACC + (mt*8 + t)*4
    aW = lambda sl, t: 216 + sl*10 + t
    aX = lambda sl, ks: 216 + sl*10 + 8 + ks
    aK = lambda kp: 252 + kp
    aV = lambda th: 2 + th
    R = [13, 15]
    ofA = lambda kp, mt: 168 + (kp*3 + mt)*4
    def ofB(kp, mt):
        f = kp*3 + mt
        return 216 + f*4 if f < 10 else 160 + (f - 10)*4
    of = lambda buf, kp, mt: ofB(kp, mt) if buf else ofA(kp, mt)
    acc2 = lambda mt, t: 16 + (mt*9 + t)*4
    Wf2 = lambda t: 124 + 4*t

    if cfg.prio: a.s(f"s_setprio {cfg.prio}")
    a.s(f"s_and_b32 s74, s{S_W}, 1")
    a.s(f"s_lshr_b32 s75, s{S_W}, 1")
    a.v("v_lshrrev_b32 v160, 4, v1")
    a.v("v_bfe_u32 v161, v1, 2, 2")
    a.v("v_and_b32 v162, 3, v1")
    a.v("v_and_b32 v163, 15, v1")
    a.v("v_lshl_add_u32 v164, v160, 3, v161")
    a.v("v_lshlrev_b32 v164, 9, v164")
    a.v("v_and_b32 v165, 1, v160")
    a.v("v_lshl_or_b32 v166, v165, 2, v161")
    a.v("v_lshl_add_u32 v164, v166, 5, v164")
    a.v("v_lshl_add_u32 v164, v162, 3, v164")
    a.s("s_lshl_b32 s76, s75, 8")
    a.v(f"v_add_u32 v{aW(0,0)}, s76, v164")
    for t in range(1, 8): a.v(f"v_xor_b32 v{aW(0,t)}, {32*t}, v{aW(0,0)}")
    a.v("v_lshrrev_b32 v164, 1, v163")
    a.v("v_xor_b32 v164, v164, v160")
    a.v("v_lshlrev_b32 v164, 4, v164")
    a.v("v_lshl_add_u32 v164, v163, 7, v164")
    a.s("s_mul_i32 s76, s74, 6144")
    a.s("s_add_u32 s76, s76, 32768")
    a.v(f"v_add_u32 v{aX(0,0)}, s76, v164")
    a.v(f"v_xor_b32 v{aX(0,1)}, 64, v{aX(0,0)}")
    for sl in (1, 2):
        for i in range(10): a.v(f"v_add_u32 v{216+sl*10+i}, {sl*SLOT}, v{216+i}")
    a.s(f"s_cmp_eq_u32 s{S_BR}, 0")
    a.s(f"s_cselect_b32 s77, s74, s{S_W}")
    a.s(f"s_mul_i32 s76, s77, {KUNIT}")
    a.v(f"v_mul_u32_u24 v164, {KSTR}, v161")
    a.v("v_lshl_add_u32 v164, v162, 8, v164")
    a.v("v_lshl_add_u32 v164, v160, 3, v164")
    a.v("v_add_u32 v164, s76, v164")
    for kp in range(4):
        a.v(f"v_xor_b32 v167, {kp}, v162")
        a.v(f"v_lshl_add_u32 v{aK(kp)}, v167, 6, v164")
    a.s(f"s_mul_i32 s76, s77, {VUNIT}")
    a.s(f"s_add_u32 s76, s76, {SLOT}")
    a.v(f"v_mul_u32_u24 v164, {VSTR}, v160")
    a.v("v_lshl_add_u32 v164, v161, 8, v164")
    a.v("v_lshl_add_u32 v164, v162, 3, v164")
    a.v("v_add_u32 v164, s76, v164")
    for th in range(4):
        a.v(f"v_xor_b32 v167, {th}, v161")
        a.v(f"v_lshl_add_u32 v{aV(th)}, v167, 6, v164")
    a.v("v_lshl_add_u32 v164, v160, 2, v161")
    a.v("v_mul_u32_u24 v164, 320, v164")
    a.v("v_lshl_add_u32 v164, v162, 3, v164")
    a.s("s_mul_i32 s76, s75, 20480")
    a.s(f"s_add_u32 s76, s76, {2*SLOT}")
    a.v("v_add_u32 v164, s76, v164")
    a.s(f"s_and_b32 s77, s{S_HP}, 1")
    a.v("v_xor_b32 v167, s77, v165")
    a.v(f"v_lshl_add_u32 v{R[0]}, v167, 5, v164")
    a.s("s_add_u32 s77, s77, 1")
    a.v("v_xor_b32 v167, s77, v165")
    a.v(f"v_lshl_add_u32 v{R[1]}, v167, 5, v164")
    a.v(f"v_subrev_u32 v{R[1]}, 32, v{R[1]}")
    a.v("v_lshlrev_b32 v14, 4, v1")
    regA = ((11 + 7 + 1) % 3) * SLOT
    regB = ((11 + 7 + 2) % 3) * SLOT
    a.v(f"v_mul_u32_u24 v164, {RSTR}, v163")
    a.v("v_lshl_add_u32 v164, v160, 3, v164")
    a.s(f"s_mul_i32 s76, s74, {48*RSTR}")
    a.s("s_cmp_eq_u32 s75, 0")
    a.s(f"s_mov_b32 s77, {regB}")
    a.s(f"s_cselect_b32 s77, {regA}, s77")
    a.s("s_add_u32 s76, s76, s77")
    a.v("v_add_u32 v12, s76, v164")
    a.v("v_lshlrev_b32 v11, 3, v1")
    a.v(f"v_mov_b32 v10, {LDS_NONCE}")
    a.s(f"s_lshl_b32 s76, s{S_BR}, 4")
    a.s(f"s_lshl_b32 s77, s{S_BP}, 1")
    a.s("s_add_u32 s76, s76, s77")
    a.s("s_add_u32 s76, s76, s74")
    a.s("s_lshl_b32 s76, s76, 5")
    a.s(f"s_lshl_b32 s77, s{S_KQ}, 3")
    a.s("s_add_u32 s76, s76, s77")
    a.s("s_add_u32 s76, s76, s75")
    a.s("s_mul_i32 s80, s76, 12288")
    a.s(f"s_mov_b32 s83, {f2u(SC)}")
    a.s("s_and_b32 s76, s2, 7")
    a.s(f"s_lshl_b32 s77, s{S_BP}, 3")
    a.s("s_or_b32 s76, s76, s77")
    a.s("s_lshl_b32 s76, s76, 2")
    a.s(f"s_add_u32 s76, s76, s{S_W}")
    a.s("s_lshl_b32 s76, s76, 7")
    a.s(f"s_add_u32 s84, s76, {WS_FLAG1}")
    a.s(f"s_lshl_b32 s85, 1, s{S_HP}")
    a.s("s_xor_b32 s86, s85, 15")
    build_srds(a)

    ver = {}
    def rdW(s, t, ks, h):
        def f():
            a.ds_read("ds_read_b64_tr_b16", Wf(t)+2*h, 2, aW(s % 3, t), off=ks*16384 + h*2048); ver[("W", t, h)] = (s, ks)
        return f
    def rdX(s, mt, ks):
        def f():
            a.ds_read("ds_read_b128", Xf(ks, mt), 4, aX(s % 3, ks), off=mt*2048); ver[("X", ks, mt)] = s
        return f
    def chk1(s, ks, t, mt):
        assert ver[("W", t, 0)] == (s, ks) and ver[("W", t, 1)] == (s, ks) and ver[("X", ks, mt)] == s, (s, ks, t, mt)
    def rdK(kt, kp, e):
        return lambda: a.ds_read("ds_read_b64", Kf(kt, kp)+2*e, 2, aK(kp), off=kt*4*KSTR + 32*e)
    def cvt(d, s0, s1):
        return lambda: a.v(f"v_cvt_pk_bf16_f32 v{d}, v{s0}, v{s1}")
    def cvtQ(kp):
        out = []
        for mt in range(3):
            r = accQ(2*kp, mt); s_ = accQ(2*kp+1, mt)
            out += [cvt(r, r, r+1), cvt(r+1, r+2, r+3), cvt(r+2, s_, s_+1), cvt(r+3, s_+2, s_+3)]
        return out
    F = Fill()
    stamp(a, cfg, 1)
    a.barrier()
    stamp(a, cfg, 2)
    for mt in range(3): rdX(0, mt, 0)()
    for t in range(8): rdW(0, t, 0, 0)(); rdW(0, t, 0, 1)()
    BP = cfg.barpos
    for s in range(9):
        last = s == 8; sl = s; nsl = s + 1
        for mt in range(3): F.add(rdX(sl, mt, 1))
        for t in range(8):
            for mt in range(3):
                chk1(s, 0, t, mt)
                a.mfma(accQ(t, mt), Wf(t), Xf(0, mt), None if s == 0 else accQ(t, mt))
                F.pop(2 if len(F.q) > 2 else 1)
            F.add(rdW(sl, t, 1, 0), rdW(sl, t, 1, 1))
        for t in range(8):
            for mt in range(3):
                chk1(s, 1, t, mt)
                a.mfma(accQ(t, mt), Wf(t), Xf(1, mt), accQ(t, mt))
                F.pop(2 if len(F.q) > 2 else 1)
            if t == BP - 1:
                assert not F.q
                a.waitcnt(lgkm=0)
                a.barrier()
                if not last:
                    F.add(rdX(nsl, 0, 0), rdW(nsl, 0, 0, 0), rdW(nsl, 0, 0, 1), rdX(nsl, 1, 0), rdX(nsl, 2, 0))
                    for tt in range(1, BP): F.add(rdW(nsl, tt, 0, 0), rdW(nsl, tt, 0, 1))
                else:
                    for kp in range(4):
                        for kt in range(3): F.add(rdK(kt, kp, 0), rdK(kt, kp, 1))
            elif t >= BP and not last:
                F.add(rdW(nsl, t, 0, 0), rdW(nsl, t, 0, 1))
    F.drain()
    stamp(a, cfg, 3)
    for kp in range(4):
        for f in cvtQ(kp): f()
    a.waitcnt(lgkm=0)
    for kp in range(4):
        for kt in range(3):
            for mt in range(3):
                a.mfma(accS(kt, mt), Kf(kt, kp), accQ(2*kp, mt), None if kp == 0 else accS(kt, mt))
    MX = [160, 161, 162]; TM = [163, 164, 165]; SM = [166, 167, 6]
    vals = lambda mt: [accS(kt, mt) + r for kt in range(3) for r in range(4)]
    for mt in range(3):
        v = vals(mt); a.v(f"v_max3_f32 v{MX[mt]}, v{v[0]}, v{v[1]}, v{v[2]}")
    for i in range(3, 11, 2):
        for mt in range(3):
            v = vals(mt); a.v(f"v_max3_f32 v{MX[mt]}, v{MX[mt]}, v{v[i]}, v{v[i+1]}")
    for mt in range(3):
        v = vals(mt); a.v(f"v_max_f32 v{MX[mt]}, v{MX[mt]}, v{v[11]}")
    xlane_reduce(a, "v_max_f32", MX, TM)
    for mt in range(3): a.v(f"v_mul_f32 v{MX[mt]}, s83, v{MX[mt]}")
    for i in range(12):
        for mt in range(3):
            v = vals(mt); a.v(f"v_fma_f32 v{v[i]}, v{v[i]}, s83, -v{MX[mt]}")
    for i in range(12):
        for mt in range(3):
            v = vals(mt); a.v(f"v_exp_f32 v{v[i]}, v{v[i]}")
    a.barrier()
    for t in range(8):
        for kt in range(3):
            F.add(lambda t=t, kt=kt: a.ds_read("ds_read_b64_tr_b16", Vf(t) + 2*kt, 2, aV(t >> 1), off=kt*4*VSTR + (t & 1)*32))
    for mt in range(3):
        v = vals(mt); a.v(f"v_add_f32 v{SM[mt]}, v{v[0]}, v{v[1]}"); F.pop(1)
    for i in range(2, 12):
        for mt in range(3):
            v = vals(mt); a.v(f"v_add_f32 v{SM[mt]}, v{SM[mt]}, v{v[i]}"); F.pop(1)
    xlane_reduce(a, "v_add_f32", SM, TM)
    for mt in range(3): a.v(f"v_rcp_f32 v{SM[mt]}, v{SM[mt]}")
    for i in range(12):
        for mt in range(3):
            v = vals(mt); a.v(f"v_mul_f32 v{v[i]}, v{v[i]}, v{SM[mt]}")
    for mt in range(3):
        r0, r1, r2 = accS(0, mt), accS(1, mt), accS(2, mt)
        for f in (cvt(r0, r0, r0+1), cvt(r0+1, r0+2, r0+3), cvt(r0+2, r1, r1+1), cvt(r0+3, r1+2, r1+3), cvt(r2, r2, r2+1), cvt(r2+1, r2+2, r2+3)): f()
    stamp(a, cfg, 4)
    a.s(f"s_mul_i32 s81, s{S_HP}, {2*12288}")
    a.s("s_add_u32 s81, s81, s80")
    def ostore(mt, kp):
        r = accO(mt, 2*kp); s_ = accO(mt, 2*kp+1); d = ofA(kp, mt); f = kp*3 + mt
        return [cvt(d, r, r+1), cvt(d+1, r+2, r+3), cvt(d+2, s_, s_+1), cvt(d+3, s_+2, s_+3),
                lambda: a.s(f"s_add_u32 s82, s81, {(f//4)*4096 + WS_O}"),
                lambda: a.bstore(d, 4, 14, S_WS, "s82", off=(f % 4)*1024, flags="sc1")]
    for mt in range(3):
        for t in range(8):
            a.mfma(accO(mt, t), Vf(t), accS(0, mt), None); F.pop(2)
        for t in range(8):
            a.mfma(accO(mt, t), Vf(t)+4, accS(2, mt), accO(mt, t), k=16); F.pop(2)
        for kp in range(4): F.add(*ostore(mt, kp))
    def rdW2(z, t, ks, h):
        def f():
            a.ds_read("ds_read_b64_tr_b16", Wf2(t)+2*h, 2, R[t & 1], off=ks*10240 + h*5120 + 32*t); ver[("W2", t, h)] = (z, ks)
        return f
    for kp in range(4):
        for mt in range(3): ver[("O", 0, kp, mt)] = 0
    F.drain()
    stamp(a, cfg, 5)
    a.waitcnt(lgkm=0)
    a.barrier()
    stamp(a, cfg, 10)
    for t in range(9): rdW2(0, t, 0, 0)(); rdW2(0, t, 0, 1)()
    a.ds_read("ds_read_b64", 8, 2, 10)
    def headbase(p):
        return [lambda: a.s(f"s_add_u32 s81, s{S_HP}, {p}"), lambda: a.s("s_and_b32 s81, s81, 3"),
                lambda: a.s(f"s_mul_i32 s81, s81, {2*12288}"), lambda: a.s("s_add_u32 s81, s81, s80")]
    def ldO(p, f):
        kp, mt = divmod(f, 3)
        return [lambda: a.s(f"s_add_u32 s82, s81, {(f//4)*4096 + WS_O}"),
                lambda: (a.bload(of(p & 1, kp, mt), 4, 14, S_WS, "s82", off=(f % 4)*1024, flags="sc1"), ver.__setitem__(("O", p & 1, kp, mt), p))]
    for z in range(8):
        p, k2 = divmod(z, 2)
        last = z == 7
        if z == 2:
            F.drain()
            a.waitcnt(vm=0)
            stamp(a, cfg, 6)
            a.s("s_mov_b32 exec_lo, s85"); a.s("s_mov_b32 exec_hi, 0")
            a.bstore(8, 2, 11, S_WS, "s84", flags="sc1")
            poll_flags(a, 6, 8, 11, 84, 86, 76)
            stamp(a, cfg, 7)
            for pp in (1, 2):
                for f in headbase(pp): f()
                for fr in range(12):
                    for f in ldO(pp, fr): f()
        for ks in range(2):
            kp = k2*2 + ks
            for t in range(9):
                for mt in range(3):
                    assert ver[("W2", t, 0)] == (z, ks) and ver[("W2", t, 1)] == (z, ks) and ver[("O", p & 1, kp, mt)] == p
                    a.mfma(acc2(mt, t), Wf2(t), of(p & 1, kp, mt), None if (z == 0 and ks == 0) else acc2(mt, t))
                    F.pop(2 if len(F.q) > 2 else 1)
                if ks == 0:
                    F.add(rdW2(z, t, 1, 0), rdW2(z, t, 1, 1))
                elif not last:
                    if t == BP - 1:
                        F.drain()
                        a.waitcnt(lgkm=0)
                        a.barrier()
                        delta = SLOT if (11 + z + 1) % 3 else -2*SLOT
                        for r in R: F.add(lambda r=r, delta=delta: a.v(f"v_add_u32 v{r}, {delta & 0xffffffff}, v{r}"))
                        for tt in range(BP): F.add(rdW2(z+1, tt, 0, 0), rdW2(z+1, tt, 0, 1))
                    elif t >= BP: F.add(rdW2(z+1, t, 0, 0), rdW2(z+1, t, 0, 1))
            if p == 1:
                if kp == 0: F.add(*headbase(3))
                for mt in range(3): F.add(*ldO(3, kp*3 + mt))
    F.drain()
    stamp(a, cfg, 8)
    for mt in range(3):
        for t in range(9):
            r = acc2(mt, t)
            cvt(r, r, r+1)(); cvt(r+1, r+2, r+3)()
            a.ds_write("ds_write_b64", 12, r, 2, off=mt*16*RSTR + 32*t)
    a.waitcnt(lgkm=0)
    return regA, regB

def unpack_add(a, dst, src, first):
    for i in range(4):
        if first:
            a.v(f"v_lshlrev_b32 v{dst+2*i}, 16, v{src+i}")
            a.v(f"v_and_b32 v{dst+2*i+1}, 0xffff0000, v{src+i}")
        else:
            a.v(f"v_lshlrev_b32 v60, 16, v{src+i}")
            a.v(f"v_and_b32 v61, 0xffff0000, v{src+i}")
            a.v(f"v_add_f32 v{dst+2*i}, v{dst+2*i}, v60")
            a.v(f"v_add_f32 v{dst+2*i+1}, v{dst+2*i+1}, v61")

def tail(a, cfg, regA, regB, endlabel):
    for u in range(512): assert (u*3641) >> 16 == u // 18
    a.v("v_mul_u32_u24 v4, 3641, v0")
    a.v("v_lshrrev_b32 v4, 16, v4")
    a.v("v_mul_u32_u24 v5, 18, v4")
    a.v("v_sub_u32 v5, v0, v5")
    a.v(f"v_mul_u32_u24 v6, {RSTR}, v4")
    a.v("v_lshl_add_u32 v6, v5, 4, v6")
    a.v("v_mul_u32_u24 v7, 2304, v4")
    a.v("v_lshl_add_u32 v7, v5, 4, v7")
    a.v("v_lshlrev_b32 v3, 4, v0")
    a.v("v_and_b32 v1, 63, v0")
    a.v("v_lshlrev_b32 v11, 3, v1")
    a.v(f"v_mov_b32 v10, {LDS_NONCE}")
    lo = min(regA, regB); hi_off = abs(regB - regA)
    assert hi_off < 65536 or True
    for dl in range(4):
        a.s(f"s_add_u32 s76, s{S_KQ}, {dl}")
        a.s("s_and_b32 s76, s76, 3")
        a.s(f"s_mul_i32 s77, s76, {24*RSTR}")
        a.s(f"s_add_u32 s77, s77, {lo}")
        a.v(f"v_add_u32 v{12+dl}, s77, v6")
        a.s("s_and_b32 s77, s2, 0xfc")
        a.s("s_or_b32 s77, s77, s76")
        a.s("s_lshl_b32 s77, s77, 2")
        a.s(f"s_add_u32 s77, s77, s{S_KQ}")
        a.s("s_mul_i32 s77, s77, 6912")
        a.s(f"s_add_u32 s{88+dl}, s77, {WS_PART}")
        a.s("s_lshl_b32 s77, s2, 2")
        a.s("s_add_u32 s77, s77, s76")
        a.s("s_mul_i32 s77, s77, 6912")
        a.s(f"s_add_u32 s{92+dl}, s77, {WS_PART}")
    a.s("s_lshr_b32 s76, s2, 2")
    a.s("s_lshl_b32 s76, s76, 3")
    a.s(f"s_add_u32 s76, s76, s{S_W}")
    a.s("s_lshl_b32 s76, s76, 7")
    a.s(f"s_add_u32 s84, s76, {WS_FLAG2}")
    a.s(f"s_lshl_b32 s85, 1, s{S_KQ}")
    a.s("s_xor_b32 s86, s85, 15")
    a.s(f"s_mul_i32 s76, s{S_BP}, 96")
    a.s(f"s_mul_i32 s77, s{S_KQ}, 24")
    a.s("s_add_u32 s76, s76, s77")
    a.s("s_mul_i32 s76, s76, 2304")
    a.s(f"s_mul_i32 s77, s{S_BR}, 1152")
    a.s("s_add_u32 s76, s76, s77")
    a.s(f"s_mul_i32 s77, s{S_HP}, 288")
    a.s("s_add_u32 s87, s76, s77")
    a.s("s_movk_i32 s76, 432")
    a.v("v_cmp_gt_u32 s[78:79], s76, v0")
    a.barrier()
    a.s(f"s_cmp_eq_u32 s{S_W}, 7")
    a.s(f"s_cbranch_scc1 {endlabel}")
    a.ds_read("ds_read_b64", 8, 2, 10)
    assert hi_off < 65536
    for dl in (1, 2, 3, 0):
        a.ds_read("ds_read_b128", 16 + 8*dl, 4, 12+dl)
        a.ds_read("ds_read_b128", 20 + 8*dl, 4, 12+dl, off=hi_off)
    a.s("s_mov_b64 exec, s[78:79]")
    for dl in (1, 2, 3):
        unpack_add(a, 48, 16 + 8*dl, True)
        unpack_add(a, 48, 20 + 8*dl, False)
        for i in range(4): a.v(f"v_cvt_pk_bf16_f32 v{64+4*dl+i}, v{48+2*i}, v{49+2*i}")
        a.bstore(64 + 4*dl, 4, 3, S_WS, f"s{88+dl}", flags="sc1")
    unpack_add(a, 48, 16, True)
    unpack_add(a, 48, 20, False)
    a.waitcnt(vm=0)
    stamp(a, cfg, 9) if False else None
    a.s("s_mov_b32 exec_lo, s85"); a.s("s_mov_b32 exec_hi, 0")
    a.bstore(8, 2, 11, S_WS, "s84", flags="sc1")
    poll_flags(a, 62, 8, 11, 84, 86, 76)
    a.s("s_mov_b64 exec, s[78:79]")
    for dl in (1, 2, 3): a.bload(16 + 4*dl, 4, 3, S_WS, f"s{92+dl}", flags="sc1")
    for dl in (1, 2, 3): unpack_add(a, 48, 16 + 4*dl, False)
    for i in range(4): a.v(f"v_cvt_pk_bf16_f32 v{64+i}, v{48+2*i}, v{49+2*i}")
    a.bstore(64, 4, 7, S_OUT, "s87")

def kernel(cfg):
    a = Asm()
    a.lcap = cfg.lcap
    stamp(a, cfg, 0)
    prologue(a, cfg, "L_end")
    a.s(f"s_cmp_ge_u32 s{S_W}, 4")
    a.s("s_cbranch_scc1 L_loader")
    regA, regB = compute(a, cfg)
    stamp(a, cfg, 9)
    a.s("s_branch L_tail")
    a.label("L_loader")
    a.reset_state()
    loader(a, cfg)
    a.label("L_tail")
    a.reset_state()
    a.nop(4)
    tail(a, cfg, regA, regB, "L_end")
    if cfg.x_hold:
        a.v("v_readfirstlane_b32 s76, v8")
        a.label("L_hold")
        a.raw("    s_memrealtime s[78:79]")
        a.raw("    s_waitcnt lgkmcnt(0)")
        a.s("s_sub_u32 s77, s78, s76")
        a.s(f"s_cmp_lt_u32 s77, {cfg.x_hold}")
        a.s("s_cbranch_scc1 L_hold")
    if cfg.stamps: a.waitcnt(vm=0)
    stamp(a, cfg, 11)
    stamp_out(a, cfg)
    a.label("L_end")
    a.s("s_endpgm")
    return a

HEADER = open("cdna_kernels/" + NAME + ".s.ref").read().split("; Override launch")[0]

def build(cfg):
    n = NAME + "_kernel"
    a = kernel(cfg)
    return HEADER + f"""; @launch grid=(256,1,1) block=(512,1,1) lds=163840
.amdgcn_target "amdgcn-amd-amdhsa--gfx950"
.text
.globl {n}
.p2align 8
.type {n},@function
{n}:
{a.text()}
.section .rodata,"a"
.p2align 6
.amdhsa_kernel {n}
  .amdhsa_next_free_vgpr 256
  .amdhsa_next_free_sgpr 102
  .amdhsa_accum_offset 256
  .amdhsa_group_segment_fixed_size 0
  .amdhsa_kernarg_size 104
  .amdhsa_user_sgpr_count 2
  .amdhsa_user_sgpr_kernarg_segment_ptr 1
  .amdhsa_system_sgpr_workgroup_id_x 1
.end_amdhsa_kernel
"""

if __name__ == "__main__":
    cfg = Cfg()
    for kv in sys.argv[2:]:
        k, v = kv.split("=")
        cur = getattr(cfg, k)
        setattr(cfg, k, (v == "1") if isinstance(cur, bool) else int(v) if isinstance(cur, int) else v.replace("_", " "))
    open(sys.argv[1], "w").write(build(cfg))
```

```python
import sys, struct
from asm import *

NAME = "concat_heads__gqa_block_cached__mha_block_cached__near_ridge"
SLOT = 52224
KSTR, VSTR = 1040, 1056
KUNIT, VUNIT = 12*KSTR, 12*VSTR
LDS_NONCE = 3*SLOT
WS_O = 0
WS_PART = 16 << 20
WS_FLAG1 = 14 << 20
WS_FLAG2 = 15 << 20
WS_STAMP = 24 << 20
WS_BYTES = 32 << 20
RSTR = 304
SC = 0.08838834764831845 * 1.4426950408889634
SPIN_MAX = 1 << 17
def f2u(x): return struct.unpack("<I", struct.pack("<f", x))[0]

S_X, S_K, S_V, S_WQ, S_WO, S_OUT, S_WS, S_DBG = 36, 40, 44, 48, 52, 56, 60, 64
S_BR, S_KQ, S_HP, S_BP, S_W = 68, 69, 70, 71, 72

class Cfg:
    stamps = False
    ld_x = ""; ld_wq = ""; ld_kv = ""; ld_wo = ""
    skew = 9; touch = True; prio = 0; lcap = 15
    barpos = 3
    x_nodma = False
    dbgwg = -1; dbgwave = 0; x_hold = 0; x_enc = -1; x_amp = 8

NST = 12
def stamp(a, cfg, i):
    if cfg.stamps:
        r = 4 if i == 0 else 8 + 2*(i-1)
        a.raw(f"    s_memrealtime s[{r}:{r+1}]"); a.pos += 1
def stamp_out(a, cfg):
    if not cfg.stamps: return
    if cfg.x_enc >= 0:
        a.raw("    s_waitcnt lgkmcnt(0)")
        a.s("s_lshl_b32 s3, s2, 3")
        a.s(f"s_add_u32 s3, s3, s{S_W}")
        a.s(f"s_cmp_lg_u32 s3, {cfg.dbgwg*8 + cfg.dbgwave}")
        a.s("s_cbranch_scc1 L_end")
        r = 4 if cfg.x_enc == 0 else 8 + 2*(cfg.x_enc-1)
        if cfg.x_enc >= 20: r = 96 + 2*(cfg.x_enc - 20)
        a.s(f"s_sub_u32 s76, s{r}, s4")
        a.s(f"s_mul_i32 s76, s76, {cfg.x_amp}")
        a.s("s_add_u32 s76, s76, 5000")
        a.label("L_hold")
        a.raw("    s_memrealtime s[78:79]")
        a.raw("    s_waitcnt lgkmcnt(0)")
        a.s(f"s_sub_u32 s77, s78, s4")
        a.s(f"s_cmp_lt_u32 s77, s76")
        a.s("s_cbranch_scc1 L_hold")
        return
    a.raw("    s_waitcnt lgkmcnt(0)")
    a.s("s_mov_b64 exec, 1")
    if cfg.dbgwg >= 0:
        a.s("s_lshl_b32 s3, s2, 3")
        a.s(f"s_add_u32 s3, s3, s{S_W}")
        a.s(f"s_cmp_lg_u32 s3, {cfg.dbgwg*8 + cfg.dbgwave}")
        a.s("s_cbranch_scc1 L_end")
        a.v("v_mov_b32 v1, 0")
        for i in range(NST):
            r = 4 if i == 0 else 8 + 2*(i-1)
            a.v(f"v_mov_b32 v2, s{r}")
            a.v(f"v_subrev_u32 v2, v8, v2")
            a.bstore(2, 1, 1, S_DBG, "0", off=8 + 4*i)
            a.nop(2)
        return
    a.s("s_lshl_b32 s3, s2, 3")
    a.s(f"s_add_u32 s3, s3, s{S_W}")
    a.s("s_lshl_b32 s3, s3, 6")
    a.s(f"s_add_u32 s3, s3, {WS_STAMP}")
    a.v("v_mov_b32 v1, 0")
    for i in range(NST):
        r = 4 if i == 0 else 8 + 2*(i-1)
        a.v(f"v_mov_b32 v2, s{r}")
        a.bstore(2, 1, 1, S_WS, "s3", off=4*i)
        a.nop(2)

def srd(a, base, lo, hi, size):
    a.s(f"s_mov_b32 s{base}, s{lo}")
    a.s(f"s_mov_b32 s{base+1}, s{hi}")
    a.s(f"s_mov_b32 s{base+2}, {size}")
    a.s(f"s_mov_b32 s{base+3}, 0x20000")

def prologue(a, cfg, endlabel):
    a.s("s_cmp_ge_u32 s2, 256")
    a.s(f"s_cbranch_scc1 {endlabel}")
    a.raw("    s_load_dwordx16 s[8:23], s[0:1], 0")
    a.raw("    s_load_dwordx8 s[24:31], s[0:1], 64")
    a.raw("    s_load_dwordx2 s[32:33], s[0:1], 96")
    a.v("v_and_b32 v1, 63, v0")
    a.v("v_lshrrev_b32 v15, 6, v0")
    a.s(f"s_and_b32 s{S_KQ}, s2, 3")
    a.s(f"s_bfe_u32 s{S_BR}, s2, 0x10002")
    a.s(f"s_bfe_u32 s{S_HP}, s2, 0x20003")
    a.s(f"s_lshr_b32 s{S_BP}, s2, 5")
    a.v(f"v_readfirstlane_b32 s{S_W}, v15")
    if cfg.x_enc == 21:
        a.raw("    s_waitcnt lgkmcnt(0)")
        a.raw("    s_memrealtime s[98:99]")

def build_srds(a, cfg=None):
    if cfg is not None and cfg.stamps: a.raw("    s_memrealtime s[96:97]")
    a.raw("    s_waitcnt lgkmcnt(0)")
    a.s(f"s_cmp_eq_u32 s{S_BR}, 0")
    for (dst, pa, pb, key) in ((S_X, 8, 18, 'x'), (S_WQ, 14, 24, 'wq'), (S_K, 10, 20, 'k'), (S_V, 12, 22, 'v'), (S_WO, 16, 26, 'wo')):
        a.s(f"s_cselect_b64 s[{dst}:{dst+1}], s[{pa}:{pa+1}], s[{pb}:{pb+1}]")
        if key in ('k', 'v'):
            a.s(f"s_mov_b32 s{dst+2}, 6291456")
            a.s(f"s_cselect_b32 s{dst+2}, 3145728, s{dst+2}")
        else:
            a.s(f"s_mov_b32 s{dst+2}, {884736 if key == 'x' else 4718592}")
        a.s(f"s_mov_b32 s{dst+3}, 0x20000")
    srd(a, S_OUT, 28, 29, 1769472)
    srd(a, S_DBG, 30, 31, 256)
    srd(a, S_WS, 32, 33, WS_BYTES)

_lbl = [0]
def newlabel(p):
    _lbl[0] += 1
    return f"L{p}_{_lbl[0]}"

def poll_flags(a, vdata, vnonce, voff, soff, smask, stmp):
    L = newlabel("poll"); X = newlabel("pollx")
    a.s(f"s_mov_b32 exec_lo, s{smask}")
    a.s("s_mov_b32 exec_hi, 0")
    a.s(f"s_mov_b32 s{stmp}, 0")
    a.label(L)
    a.bload(vdata, 2, voff, S_WS, f"s{soff}", flags="sc1")
    a.s(f"s_add_u32 s{stmp}, s{stmp}, 1")
    a.s(f"s_cmp_gt_u32 s{stmp}, {SPIN_MAX}")
    a.waitcnt(vm=0)
    a.s(f"s_cbranch_scc1 {X}")
    a.v(f"v_cmp_ne_u64 vcc, v[{vdata}:{vdata+1}], v[{vnonce}:{vnonce+1}]")
    a.s(f"s_cbranch_vccnz {L}")
    a.label(X)
    a.s("s_mov_b64 exec, -1")

def loader(a, cfg):
    a.s(f"s_sub_u32 s73, s{S_W}, 4")
    a.s("s_and_b32 s74, s73, 1")
    a.s("s_lshr_b32 s75, s73, 1")
    a.v("v_lshrrev_b32 v4, 5, v1")
    a.s("s_lshl_b32 s76, s74, 1")
    a.s("s_lshl_b32 s77, s75, 2")
    a.s("s_or_b32 s76, s76, s77")
    a.v("v_or_b32 v5, s76, v4")
    a.v("v_bfe_u32 v6, v1, 1, 4")
    a.v("v_xor_b32 v6, v6, v5")
    a.v("v_lshlrev_b32 v6, 5, v6")
    a.v("v_and_b32 v7, 1, v1")
    a.v("v_lshl_add_u32 v6, v7, 4, v6")
    a.v("v_lshl_add_u32 v2, v4, 13, v6")
    a.s("s_lshl_b32 s76, s75, 16")
    a.s("s_lshl_b32 s77, s74, 14")
    a.s("s_add_u32 s76, s76, s77")
    a.s(f"s_lshl_b32 s77, s{S_KQ}, 11")
    a.s("s_add_u32 s76, s76, s77")
    a.s(f"s_lshl_b32 s77, s{S_HP}, 9")
    a.s("s_add_u32 s76, s76, s77")
    a.v("v_add_u32 v2, s76, v2")
    a.v("v_lshrrev_b32 v4, 3, v1")
    a.v("v_mul_u32_u24 v4, 1152, v4")
    a.v("v_lshrrev_b32 v5, 4, v1")
    a.s("s_lshl_b32 s76, s74, 2")
    a.v("v_or_b32 v5, s76, v5")
    a.v("v_and_b32 v6, 7, v1")
    a.v("v_xor_b32 v6, v6, v5")
    a.v("v_lshl_add_u32 v3, v6, 4, v4")
    a.s(f"s_mul_i32 s76, s{S_BP}, {96*1152}")
    a.s(f"s_mul_i32 s77, s74, {8*1152}")
    a.s("s_add_u32 s76, s76, s77")
    a.s(f"s_mul_i32 s77, s75, {48*1152}")
    a.s("s_add_u32 s76, s76, s77")
    a.v("v_add_u32 v3, s76, v3")
    a.s("s_lshl_b32 s78, s75, 12")
    a.s("s_lshl_b32 s77, s74, 10")
    a.s("s_add_u32 s78, s78, s77")
    a.s("s_mul_i32 s79, s75, 6144")
    a.s("s_add_u32 s79, s79, s77")
    a.s("s_add_u32 s79, s79, 32768")
    if cfg.skew == 3:
        a.s(f"s_add_u32 s84, s{S_HP}, s{S_BP}")
        a.s("s_mul_i32 s85, s84, 43")
        a.s("s_lshr_b32 s85, s85, 7")
        a.s("s_mul_i32 s85, s85, 3")
        a.s("s_sub_u32 s84, s84, s85")
        a.s("s_mul_i32 s84, s84, 3")
    elif cfg.skew == 4:
        a.s(f"s_add_u32 s84, s{S_HP}, s{S_BP}")
        a.s("s_and_b32 s84, s84, 3")
        a.s("s_lshl_b32 s84, s84, 1")
    elif cfg.skew:
        a.s(f"s_lshl_b32 s84, s{S_HP}, 1")
        a.s(f"s_add_u32 s84, s84, s{S_BP}")
        a.s("s_sub_u32 s85, s84, 9")
        a.s("s_cmp_ge_u32 s84, 9")
        a.s("s_cselect_b32 s84, s85, s84")
    else:
        a.s("s_mov_b32 s84, 0")
    build_srds(a, cfg)
    stamp(a, cfg, 1)
    def stage(s):
        slot = (s % 3) * SLOT
        a.s("s_lshl_b32 s85, s84, 7")
        a.s("s_lshl_b32 s86, s84, 19")
        for i4 in range(2):
            for i3 in range(2):
                for i1 in range(2):
                    a.s(f"s_add_u32 m0, s78, {slot + i4*16384 + i3*8192 + i1*2048}")
                    a.s(f"s_add_u32 s82, s86, {(32*i4 + 16*i3 + 4*i1)*8192}")
                    a.dma(2, S_WQ, "s82", cfg.ld_wq, tag=("st", s))
        for z in range(3):
            a.s(f"s_add_u32 m0, s79, {slot + z*2048}")
            a.s(f"s_add_u32 s82, s85, {z*16*1152}")
            a.dma(3, S_X, "s82", cfg.ld_x, tag=("st", s))
        a.s("s_add_u32 s84, s84, 1")
        a.s("s_cmp_eq_u32 s84, 9")
        a.s("s_cselect_b32 s84, 0, s84")
    a.v("v_mov_b32 v16, 0")
    stage(0)
    L = newlabel("nw")
    a.s("s_add_u32 s76, s2, s73")
    a.s("s_cmp_lg_u32 s76, 0")
    a.s(f"s_cbranch_scc1 {L}")
    a.raw("    s_memrealtime s[88:89]")
    a.raw("    s_waitcnt lgkmcnt(0)")
    a.s("s_or_b32 s88, s88, 1")
    a.v("v_mov_b32 v18, s88")
    a.v("v_mov_b32 v19, s89")
    a.s("s_mov_b64 exec, 1")
    a.raw(f"    buffer_store_dwordx2 v[18:19], v16, s[{S_DBG}:{S_DBG+3}], 0 offen sc1")
    a.s("s_mov_b64 exec, -1")
    a.label(L)
    stage(1)
    a.v("v_lshrrev_b32 v4, 4, v1")
    a.v("v_lshlrev_b32 v5, 2, v4")
    a.v("v_and_b32 v6, 15, v1")
    a.v("v_xor_b32 v6, v6, v5")
    a.v("v_lshlrev_b32 v6, 4, v6")
    a.v("v_lshl_add_u32 v8, v4, 8, v6")
    a.s(f"s_lshl_b32 s76, s{S_BP}, 1")
    a.s("s_add_u32 s76, s76, s74")
    a.s(f"s_lshl_b32 s77, s{S_KQ}, 3")
    a.s(f"s_lshl_b32 s81, s{S_HP}, 1")
    a.s("s_add_u32 s77, s77, s81")
    a.s("s_add_u32 s77, s77, s75")
    a.s("s_lshl_b32 s76, s76, 5")
    a.s("s_add_u32 s76, s76, s77")
    a.s(f"s_xor_b32 s77, s{S_BR}, 1")
    a.s("s_lshr_b32 s76, s76, s77")
    a.s("s_mul_i32 s80, s76, 12288")
    a.s("s_mul_i32 s76, s75, 6")
    a.s(f"s_cmp_eq_u32 s{S_BR}, 0")
    a.s("s_cselect_b32 s76, s76, 0")
    a.s("s_cselect_b32 s77, s74, s73")
    a.s("s_cselect_b32 s90, 0, -1")
    a.s("s_mul_i32 s77, s77, 12")
    a.s("s_add_u32 s77, s77, s76")
    a.s(f"s_mul_i32 s91, s77, {KSTR}")
    a.s(f"s_mul_i32 s92, s77, {VSTR}")
    a.s(f"s_add_u32 s92, s92, {SLOT}")
    a.s("s_lshl_b32 s76, s76, 10")
    a.s("s_add_u32 s80, s80, s76")
    a.s(f"s_lshl_b32 s76, s{S_KQ}, 10")
    a.s("s_lshl_b32 s77, s75, 7")
    a.s("s_add_u32 s76, s76, s77")
    a.s("s_lshl_b32 s77, s74, 5")
    a.s("s_add_u32 s76, s76, s77")
    a.s("s_mul_i32 s76, s76, 1152")
    a.s(f"s_mul_i32 s77, s{S_HP}, 288")
    a.s("s_and_b32 s77, s77, 0xffffffc0")
    a.s("s_add_u32 s76, s76, s77")
    for y in range(5):
        a.v(f"v_add_u32 v4, {y*64}, v1")
        a.v("v_mul_u32_u24 v5, 3277, v4")
        a.v("v_lshrrev_b32 v5, 16, v5")
        a.v("v_mul_u32_u24 v6, 20, v5")
        a.v("v_sub_u32 v6, v4, v6")
        a.v("v_bfe_u32 v7, v5, 2, 1")
        a.v("v_lshlrev_b32 v7, 1, v7")
        a.v("v_xor_b32 v6, v6, v7")
        a.v("v_mul_u32_u24 v5, 1152, v5")
        a.v("v_lshl_add_u32 v5, v6, 4, v5")
        a.v(f"v_add_u32 v{9+y}, s76, v5")
    a.s("s_mul_i32 s93, s73, 10240")
    a.v("v_lshlrev_b32 v14, 7, v1")
    a.s("s_lshr_b32 s76, s2, 3")
    a.s("s_lshl_b32 s76, s76, 2")
    a.s("s_add_u32 s76, s76, s73")
    a.s(f"s_mul_i32 s76, s76, {72*128}")
    a.s(f"s_mul_i32 s94, s{S_KQ}, {1024*1152}")
    a.s("s_add_u32 s94, s94, s76")
    a.v(f"v_mov_b32 v17, {LDS_NONCE}")
    def kvstage(g, srdb, sm0, stride):
        for i in range(12):
            if i == 6:
                a.s("s_mov_b32 exec_lo, s90"); a.s("s_mov_b32 exec_hi, s90")
            a.s(f"s_add_u32 m0, s{sm0}, {i*stride}")
            a.s(f"s_add_u32 s82, s80, {i*1024}")
            a.dma(8, srdb, "s82", cfg.ld_kv, tag=("st", g))
        a.s("s_mov_b64 exec, -1")
    def wostage(z):
        p, k2 = divmod(z, 2)
        slot = ((11 + z) % 3) * SLOT
        a.s(f"s_add_u32 s83, s{S_HP}, {p}")
        a.s("s_and_b32 s83, s83, 3")
        a.s(f"s_mul_i32 s83, s83, {256*1152}")
        for z2 in range(2):
            a.s(f"s_add_u32 s82, s83, {(k2*64 + z2*16)*1152}")
            for y in range(5):
                a.s(f"s_add_u32 m0, s93, {slot + z2*5120 + y*1024}")
                a.dma(9+y, S_WO, "s82", cfg.ld_wo, tag=("st", 11+z))
    def issue(g):
        if cfg.x_nodma and g != 10: return
        if g <= 8: stage(g)
        elif g == 9: kvstage(9, S_K, 91, KSTR)
        elif g == 10:
            kvstage(10, S_V, 92, VSTR)
            a.bload(18, 2, 16, S_DBG, "0", flags="sc1", tag="nonce")
            if cfg.touch:
                a.s("s_mov_b32 exec_lo, -1"); a.s("s_mov_b32 exec_hi, 15")
                a.bload(20, 1, 14, S_WO, "s94", tag="touch")
                a.s(f"s_add_u32 s94, s94, {36*128}")
                a.bload(21, 1, 14, S_WO, "s94", tag="touch")
                a.s("s_mov_b64 exec, -1")
        elif g <= 18: wostage(g - 11)
    stamp(a, cfg, 2)
    for g in range(19):
        a.wait_vm_tag(("st", g))
        if g == 0: stamp(a, cfg, 3)
        if g == 3: stamp(a, cfg, 4)
        if g == 8: stamp(a, cfg, 5)
        if g == 9: stamp(a, cfg, 6)
        if g == 10: stamp(a, cfg, 7)
        if g == 11:
            stamp(a, cfg, 8)
            Lok = newlabel("nok"); Lsp = newlabel("nsp")
            a.s("s_mov_b32 s77, 0")
            a.label(Lsp)
            a.v("v_readfirstlane_b32 s76, v18")
            a.s("s_cmp_lg_u32 s76, 0")
            a.s(f"s_cbranch_scc1 {Lok}")
            a.s("s_add_u32 s77, s77, 1")
            a.s(f"s_cmp_gt_u32 s77, {SPIN_MAX}")
            a.s(f"s_cbranch_scc1 {Lok}")
            a.raw(f"    buffer_load_dwordx2 v[18:19], v16, s[{S_DBG}:{S_DBG+3}], 0 offen sc1")
            a.raw("    s_waitcnt vmcnt(0)")
            a.s(f"s_branch {Lsp}")
            a.label(Lok)
            a.ds_write("ds_write_b64", 17, 18, 2)
            a.waitcnt(lgkm=0)
        if g == 15: stamp(a, cfg, 9)
        if g == 18: stamp(a, cfg, 10)
        a.barrier()
        if g == 0: issue(2)
        elif g + 2 <= 18: issue(g + 2)

def xlane_reduce(a, op, regs, tmps):
    for sw in ("v_permlane32_swap_b32", "v_permlane16_swap_b32"):
        for r, t in zip(regs, tmps): a.v(f"v_mov_b32 v{t}, v{r}")
        for r, t in zip(regs, tmps): a.v(f"{sw} v{r}, v{t}")
        for r, t in zip(regs, tmps): a.v(f"{op} v{r}, v{r}, v{t}")

class Fill:
    def __init__(self): self.q = []
    def add(self, *fs): self.q.extend(fs)
    def pop(self, n):
        for _ in range(n):
            if self.q: self.q.pop(0)()
    def drain(self): self.pop(len(self.q))

def compute(a, cfg):
    ACC = 16; WF = 112; XF = 144; KF = 168; AS = 216; VF = 112
    accQ = lambda t, mt: ACC + (t*3 + mt)*4
    Wf = lambda t: WF + 4*t
    Xf = lambda par, mt: XF + par*12 + mt*4
    Kf = lambda kt, kp: KF + (kt*4 + kp)*4
    accS = lambda kt, mt: AS + (kt*3 + mt)*4
    Vf = lambda t: VF + 6*t
    accO = lambda mt, t: ACC + (mt*8 + t)*4
    aW = lambda sl, t: 216 + sl*10 + t
    aX = lambda sl, ks: 216 + sl*10 + 8 + ks
    aK = lambda kp: 252 + kp
    aV = lambda th: 2 + th
    R = [13, 15]
    ofA = lambda kp, mt: 168 + (kp*3 + mt)*4
    def ofB(kp, mt):
        f = kp*3 + mt
        return 216 + f*4 if f < 10 else 160 + (f - 10)*4
    of = lambda buf, kp, mt: ofB(kp, mt) if buf else ofA(kp, mt)
    acc2 = lambda mt, t: 16 + (mt*9 + t)*4
    Wf2 = lambda t: 124 + 4*t

    if cfg.prio: a.s(f"s_setprio {cfg.prio}")
    a.s(f"s_and_b32 s74, s{S_W}, 1")
    a.s(f"s_lshr_b32 s75, s{S_W}, 1")
    a.v("v_lshrrev_b32 v160, 4, v1")
    a.v("v_bfe_u32 v161, v1, 2, 2")
    a.v("v_and_b32 v162, 3, v1")
    a.v("v_and_b32 v163, 15, v1")
    a.v("v_lshl_add_u32 v164, v160, 3, v161")
    a.v("v_lshlrev_b32 v164, 9, v164")
    a.v("v_and_b32 v165, 1, v160")
    a.v("v_lshl_or_b32 v166, v165, 2, v161")
    a.v("v_lshl_add_u32 v164, v166, 5, v164")
    a.v("v_lshl_add_u32 v164, v162, 3, v164")
    a.s("s_lshl_b32 s76, s75, 8")
    a.v(f"v_add_u32 v{aW(0,0)}, s76, v164")
    for t in range(1, 8): a.v(f"v_xor_b32 v{aW(0,t)}, {32*t}, v{aW(0,0)}")
    a.v("v_lshrrev_b32 v164, 1, v163")
    a.v("v_xor_b32 v164, v164, v160")
    a.v("v_lshlrev_b32 v164, 4, v164")
    a.v("v_lshl_add_u32 v164, v163, 7, v164")
    a.s("s_mul_i32 s76, s74, 6144")
    a.s("s_add_u32 s76, s76, 32768")
    a.v(f"v_add_u32 v{aX(0,0)}, s76, v164")
    a.v(f"v_xor_b32 v{aX(0,1)}, 64, v{aX(0,0)}")
    for sl in (1, 2):
        for i in range(10): a.v(f"v_add_u32 v{216+sl*10+i}, {sl*SLOT}, v{216+i}")
    a.s(f"s_cmp_eq_u32 s{S_BR}, 0")
    a.s(f"s_cselect_b32 s77, s74, s{S_W}")
    a.s(f"s_mul_i32 s76, s77, {KUNIT}")
    a.v(f"v_mul_u32_u24 v164, {KSTR}, v161")
    a.v("v_lshl_add_u32 v164, v162, 8, v164")
    a.v("v_lshl_add_u32 v164, v160, 3, v164")
    a.v("v_add_u32 v164, s76, v164")
    for kp in range(4):
        a.v(f"v_xor_b32 v167, {kp}, v162")
        a.v(f"v_lshl_add_u32 v{aK(kp)}, v167, 6, v164")
    a.s(f"s_mul_i32 s76, s77, {VUNIT}")
    a.s(f"s_add_u32 s76, s76, {SLOT}")
    a.v(f"v_mul_u32_u24 v164, {VSTR}, v160")
    a.v("v_lshl_add_u32 v164, v161, 8, v164")
    a.v("v_lshl_add_u32 v164, v162, 3, v164")
    a.v("v_add_u32 v164, s76, v164")
    for th in range(4):
        a.v(f"v_xor_b32 v167, {th}, v161")
        a.v(f"v_lshl_add_u32 v{aV(th)}, v167, 6, v164")
    a.v("v_lshl_add_u32 v164, v160, 2, v161")
    a.v("v_mul_u32_u24 v164, 320, v164")
    a.v("v_lshl_add_u32 v164, v162, 3, v164")
    a.s("s_mul_i32 s76, s75, 20480")
    a.s(f"s_add_u32 s76, s76, {2*SLOT}")
    a.v("v_add_u32 v164, s76, v164")
    a.s(f"s_and_b32 s77, s{S_HP}, 1")
    a.v("v_xor_b32 v167, s77, v165")
    a.v(f"v_lshl_add_u32 v{R[0]}, v167, 5, v164")
    a.s("s_add_u32 s77, s77, 1")
    a.v("v_xor_b32 v167, s77, v165")
    a.v(f"v_lshl_add_u32 v{R[1]}, v167, 5, v164")
    a.v(f"v_subrev_u32 v{R[1]}, 32, v{R[1]}")
    a.v("v_lshlrev_b32 v14, 4, v1")
    regA = ((11 + 7 + 1) % 3) * SLOT
    regB = ((11 + 7 + 2) % 3) * SLOT
    a.v(f"v_mul_u32_u24 v164, {RSTR}, v163")
    a.v("v_lshl_add_u32 v164, v160, 3, v164")
    a.s(f"s_mul_i32 s76, s74, {48*RSTR}")
    a.s("s_cmp_eq_u32 s75, 0")
    a.s(f"s_mov_b32 s77, {regB}")
    a.s(f"s_cselect_b32 s77, {regA}, s77")
    a.s("s_add_u32 s76, s76, s77")
    a.v("v_add_u32 v12, s76, v164")
    a.v("v_lshlrev_b32 v11, 3, v1")
    a.v(f"v_mov_b32 v10, {LDS_NONCE}")
    a.s(f"s_lshl_b32 s76, s{S_BR}, 4")
    a.s(f"s_lshl_b32 s77, s{S_BP}, 1")
    a.s("s_add_u32 s76, s76, s77")
    a.s("s_add_u32 s76, s76, s74")
    a.s("s_lshl_b32 s76, s76, 5")
    a.s(f"s_lshl_b32 s77, s{S_KQ}, 3")
    a.s("s_add_u32 s76, s76, s77")
    a.s("s_add_u32 s76, s76, s75")
    a.s("s_mul_i32 s80, s76, 12288")
    a.s(f"s_mov_b32 s83, {f2u(SC)}")
    a.s("s_and_b32 s76, s2, 7")
    a.s(f"s_lshl_b32 s77, s{S_BP}, 3")
    a.s("s_or_b32 s76, s76, s77")
    a.s("s_lshl_b32 s76, s76, 2")
    a.s(f"s_add_u32 s76, s76, s{S_W}")
    a.s("s_lshl_b32 s76, s76, 7")
    a.s(f"s_add_u32 s84, s76, {WS_FLAG1}")
    a.s(f"s_lshl_b32 s85, 1, s{S_HP}")
    a.s("s_xor_b32 s86, s85, 15")
    build_srds(a, cfg)

    ver = {}
    def rdW(s, t, ks, h):
        def f():
            a.ds_read("ds_read_b64_tr_b16", Wf(t)+2*h, 2, aW(s % 3, t), off=ks*16384 + h*2048); ver[("W", t, h)] = (s, ks)
        return f
    def rdX(s, mt, ks):
        def f():
            a.ds_read("ds_read_b128", Xf(ks, mt), 4, aX(s % 3, ks), off=mt*2048); ver[("X", ks, mt)] = s
        return f
    def chk1(s, ks, t, mt):
        assert ver[("W", t, 0)] == (s, ks) and ver[("W", t, 1)] == (s, ks) and ver[("X", ks, mt)] == s, (s, ks, t, mt)
    def rdK(kt, kp, e):
        return lambda: a.ds_read("ds_read_b64", Kf(kt, kp)+2*e, 2, aK(kp), off=kt*4*KSTR + 32*e)
    def cvt(d, s0, s1):
        return lambda: a.v(f"v_cvt_pk_bf16_f32 v{d}, v{s0}, v{s1}")
    def cvtQ(kp):
        out = []
        for mt in range(3):
            r = accQ(2*kp, mt); s_ = accQ(2*kp+1, mt)
            out += [cvt(r, r, r+1), cvt(r+1, r+2, r+3), cvt(r+2, s_, s_+1), cvt(r+3, s_+2, s_+3)]
        return out
    F = Fill()
    stamp(a, cfg, 1)
    a.barrier()
    stamp(a, cfg, 2)
    for mt in range(3): rdX(0, mt, 0)()
    for t in range(8): rdW(0, t, 0, 0)(); rdW(0, t, 0, 1)()
    BP = cfg.barpos
    for s in range(9):
        last = s == 8; sl = s; nsl = s + 1
        for mt in range(3): F.add(rdX(sl, mt, 1))
        for t in range(8):
            for mt in range(3):
                chk1(s, 0, t, mt)
                a.mfma(accQ(t, mt), Wf(t), Xf(0, mt), None if s == 0 else accQ(t, mt))
                F.pop(2 if len(F.q) > 2 else 1)
            F.add(rdW(sl, t, 1, 0), rdW(sl, t, 1, 1))
        for t in range(8):
            for mt in range(3):
                chk1(s, 1, t, mt)
                a.mfma(accQ(t, mt), Wf(t), Xf(1, mt), accQ(t, mt))
                F.pop(2 if len(F.q) > 2 else 1)
            if t == BP - 1:
                assert not F.q
                a.waitcnt(lgkm=0)
                a.barrier()
                if not last:
                    F.add(rdX(nsl, 0, 0), rdW(nsl, 0, 0, 0), rdW(nsl, 0, 0, 1), rdX(nsl, 1, 0), rdX(nsl, 2, 0))
                    for tt in range(1, BP): F.add(rdW(nsl, tt, 0, 0), rdW(nsl, tt, 0, 1))
                else:
                    for kp in range(4):
                        for kt in range(3): F.add(rdK(kt, kp, 0), rdK(kt, kp, 1))
            elif t >= BP and not last:
                F.add(rdW(nsl, t, 0, 0), rdW(nsl, t, 0, 1))
    F.drain()
    stamp(a, cfg, 3)
    for kp in range(4):
        for f in cvtQ(kp): f()
    a.waitcnt(lgkm=0)
    for kp in range(4):
        for kt in range(3):
            for mt in range(3):
                a.mfma(accS(kt, mt), Kf(kt, kp), accQ(2*kp, mt), None if kp == 0 else accS(kt, mt))
    MX = [160, 161, 162]; TM = [163, 164, 165]; SM = [166, 167, 6]
    vals = lambda mt: [accS(kt, mt) + r for kt in range(3) for r in range(4)]
    for mt in range(3):
        v = vals(mt); a.v(f"v_max3_f32 v{MX[mt]}, v{v[0]}, v{v[1]}, v{v[2]}")
    for i in range(3, 11, 2):
        for mt in range(3):
            v = vals(mt); a.v(f"v_max3_f32 v{MX[mt]}, v{MX[mt]}, v{v[i]}, v{v[i+1]}")
    for mt in range(3):
        v = vals(mt); a.v(f"v_max_f32 v{MX[mt]}, v{MX[mt]}, v{v[11]}")
    xlane_reduce(a, "v_max_f32", MX, TM)
    for mt in range(3): a.v(f"v_mul_f32 v{MX[mt]}, s83, v{MX[mt]}")
    for i in range(12):
        for mt in range(3):
            v = vals(mt); a.v(f"v_fma_f32 v{v[i]}, v{v[i]}, s83, -v{MX[mt]}")
    for i in range(12):
        for mt in range(3):
            v = vals(mt); a.v(f"v_exp_f32 v{v[i]}, v{v[i]}")
    a.barrier()
    for t in range(8):
        for kt in range(3):
            F.add(lambda t=t, kt=kt: a.ds_read("ds_read_b64_tr_b16", Vf(t) + 2*kt, 2, aV(t >> 1), off=kt*4*VSTR + (t & 1)*32))
    for mt in range(3):
        v = vals(mt); a.v(f"v_add_f32 v{SM[mt]}, v{v[0]}, v{v[1]}"); F.pop(1)
    for i in range(2, 12):
        for mt in range(3):
            v = vals(mt); a.v(f"v_add_f32 v{SM[mt]}, v{SM[mt]}, v{v[i]}"); F.pop(1)
    xlane_reduce(a, "v_add_f32", SM, TM)
    for mt in range(3): a.v(f"v_rcp_f32 v{SM[mt]}, v{SM[mt]}")
    for i in range(12):
        for mt in range(3):
            v = vals(mt); a.v(f"v_mul_f32 v{v[i]}, v{v[i]}, v{SM[mt]}")
    for mt in range(3):
        r0, r1, r2 = accS(0, mt), accS(1, mt), accS(2, mt)
        for f in (cvt(r0, r0, r0+1), cvt(r0+1, r0+2, r0+3), cvt(r0+2, r1, r1+1), cvt(r0+3, r1+2, r1+3), cvt(r2, r2, r2+1), cvt(r2+1, r2+2, r2+3)): f()
    stamp(a, cfg, 4)
    a.s(f"s_mul_i32 s81, s{S_HP}, {2*12288}")
    a.s("s_add_u32 s81, s81, s80")
    def ostore(mt, kp):
        r = accO(mt, 2*kp); s_ = accO(mt, 2*kp+1); d = ofA(kp, mt); f = kp*3 + mt
        return [cvt(d, r, r+1), cvt(d+1, r+2, r+3), cvt(d+2, s_, s_+1), cvt(d+3, s_+2, s_+3),
                lambda: a.s(f"s_add_u32 s82, s81, {(f//4)*4096 + WS_O}"),
                lambda: a.bstore(d, 4, 14, S_WS, "s82", off=(f % 4)*1024, flags="sc1")]
    for mt in range(3):
        for t in range(8):
            a.mfma(accO(mt, t), Vf(t), accS(0, mt), None); F.pop(2)
        for t in range(8):
            a.mfma(accO(mt, t), Vf(t)+4, accS(2, mt), accO(mt, t), k=16); F.pop(2)
        for kp in range(4): F.add(*ostore(mt, kp))
    def rdW2(z, t, ks, h):
        def f():
            a.ds_read("ds_read_b64_tr_b16", Wf2(t)+2*h, 2, R[t & 1], off=ks*10240 + h*5120 + 32*t); ver[("W2", t, h)] = (z, ks)
        return f
    for kp in range(4):
        for mt in range(3): ver[("O", 0, kp, mt)] = 0
    F.drain()
    stamp(a, cfg, 5)
    a.waitcnt(lgkm=0)
    a.barrier()
    stamp(a, cfg, 10)
    for t in range(9): rdW2(0, t, 0, 0)(); rdW2(0, t, 0, 1)()
    a.ds_read("ds_read_b64", 8, 2, 10)
    def headbase(p):
        return [lambda: a.s(f"s_add_u32 s81, s{S_HP}, {p}"), lambda: a.s("s_and_b32 s81, s81, 3"),
                lambda: a.s(f"s_mul_i32 s81, s81, {2*12288}"), lambda: a.s("s_add_u32 s81, s81, s80")]
    def ldO(p, f):
        kp, mt = divmod(f, 3)
        return [lambda: a.s(f"s_add_u32 s82, s81, {(f//4)*4096 + WS_O}"),
                lambda: (a.bload(of(p & 1, kp, mt), 4, 14, S_WS, "s82", off=(f % 4)*1024, flags="sc1"), ver.__setitem__(("O", p & 1, kp, mt), p))]
    for z in range(8):
        p, k2 = divmod(z, 2)
        last = z == 7
        if z == 2:
            F.drain()
            a.waitcnt(vm=0)
            stamp(a, cfg, 6)
            a.s("s_mov_b32 exec_lo, s85"); a.s("s_mov_b32 exec_hi, 0")
            a.bstore(8, 2, 11, S_WS, "s84", flags="sc1")
            poll_flags(a, 6, 8, 11, 84, 86, 76)
            stamp(a, cfg, 7)
            for pp in (1, 2):
                for f in headbase(pp): f()
                for fr in range(12):
                    for f in ldO(pp, fr): f()
        for ks in range(2):
            kp = k2*2 + ks
            for t in range(9):
                for mt in range(3):
                    assert ver[("W2", t, 0)] == (z, ks) and ver[("W2", t, 1)] == (z, ks) and ver[("O", p & 1, kp, mt)] == p
                    a.mfma(acc2(mt, t), Wf2(t), of(p & 1, kp, mt), None if (z == 0 and ks == 0) else acc2(mt, t))
                    F.pop(2 if len(F.q) > 2 else 1)
                if ks == 0:
                    F.add(rdW2(z, t, 1, 0), rdW2(z, t, 1, 1))
                elif not last:
                    if t == BP - 1:
                        F.drain()
                        a.waitcnt(lgkm=0)
                        a.barrier()
                        delta = SLOT if (11 + z + 1) % 3 else -2*SLOT
                        for r in R: F.add(lambda r=r, delta=delta: a.v(f"v_add_u32 v{r}, {delta & 0xffffffff}, v{r}"))
                        for tt in range(BP): F.add(rdW2(z+1, tt, 0, 0), rdW2(z+1, tt, 0, 1))
                    elif t >= BP: F.add(rdW2(z+1, t, 0, 0), rdW2(z+1, t, 0, 1))
            if p == 1:
                if kp == 0: F.add(*headbase(3))
                for mt in range(3): F.add(*ldO(3, kp*3 + mt))
    F.drain()
    stamp(a, cfg, 8)
    for mt in range(3):
        for t in range(9):
            r = acc2(mt, t)
            cvt(r, r, r+1)(); cvt(r+1, r+2, r+3)()
            a.ds_write("ds_write_b64", 12, r, 2, off=mt*16*RSTR + 32*t)
    a.waitcnt(lgkm=0)
    return regA, regB

def unpack_add(a, dst, src, first):
    for i in range(4):
        if first:
            a.v(f"v_lshlrev_b32 v{dst+2*i}, 16, v{src+i}")
            a.v(f"v_and_b32 v{dst+2*i+1}, 0xffff0000, v{src+i}")
        else:
            a.v(f"v_lshlrev_b32 v60, 16, v{src+i}")
            a.v(f"v_and_b32 v61, 0xffff0000, v{src+i}")
            a.v(f"v_add_f32 v{dst+2*i}, v{dst+2*i}, v60")
            a.v(f"v_add_f32 v{dst+2*i+1}, v{dst+2*i+1}, v61")

def tail(a, cfg, regA, regB, endlabel):
    for u in range(512): assert (u*3641) >> 16 == u // 18
    a.v("v_mul_u32_u24 v4, 3641, v0")
    a.v("v_lshrrev_b32 v4, 16, v4")
    a.v("v_mul_u32_u24 v5, 18, v4")
    a.v("v_sub_u32 v5, v0, v5")
    a.v(f"v_mul_u32_u24 v6, {RSTR}, v4")
    a.v("v_lshl_add_u32 v6, v5, 4, v6")
    a.v("v_mul_u32_u24 v7, 2304, v4")
    a.v("v_lshl_add_u32 v7, v5, 4, v7")
    a.v("v_lshlrev_b32 v3, 4, v0")
    a.v("v_and_b32 v1, 63, v0")
    a.v("v_lshlrev_b32 v11, 3, v1")
    a.v(f"v_mov_b32 v10, {LDS_NONCE}")
    lo = min(regA, regB); hi_off = abs(regB - regA)
    assert hi_off < 65536 or True
    for dl in range(4):
        a.s(f"s_add_u32 s76, s{S_KQ}, {dl}")
        a.s("s_and_b32 s76, s76, 3")
        a.s(f"s_mul_i32 s77, s76, {24*RSTR}")
        a.s(f"s_add_u32 s77, s77, {lo}")
        a.v(f"v_add_u32 v{12+dl}, s77, v6")
        a.s("s_and_b32 s77, s2, 0xfc")
        a.s("s_or_b32 s77, s77, s76")
        a.s("s_lshl_b32 s77, s77, 2")
        a.s(f"s_add_u32 s77, s77, s{S_KQ}")
        a.s("s_mul_i32 s77, s77, 6912")
        a.s(f"s_add_u32 s{88+dl}, s77, {WS_PART}")
        a.s("s_lshl_b32 s77, s2, 2")
        a.s("s_add_u32 s77, s77, s76")
        a.s("s_mul_i32 s77, s77, 6912")
        a.s(f"s_add_u32 s{92+dl}, s77, {WS_PART}")
    a.s("s_lshr_b32 s76, s2, 2")
    a.s("s_lshl_b32 s76, s76, 3")
    a.s(f"s_add_u32 s76, s76, s{S_W}")
    a.s("s_lshl_b32 s76, s76, 7")
    a.s(f"s_add_u32 s84, s76, {WS_FLAG2}")
    a.s(f"s_lshl_b32 s85, 1, s{S_KQ}")
    a.s("s_xor_b32 s86, s85, 15")
    a.s(f"s_mul_i32 s76, s{S_BP}, 96")
    a.s(f"s_mul_i32 s77, s{S_KQ}, 24")
    a.s("s_add_u32 s76, s76, s77")
    a.s("s_mul_i32 s76, s76, 2304")
    a.s(f"s_mul_i32 s77, s{S_BR}, 1152")
    a.s("s_add_u32 s76, s76, s77")
    a.s(f"s_mul_i32 s77, s{S_HP}, 288")
    a.s("s_add_u32 s87, s76, s77")
    a.s("s_movk_i32 s76, 432")
    a.v("v_cmp_gt_u32 s[78:79], s76, v0")
    a.barrier()
    a.s(f"s_cmp_eq_u32 s{S_W}, 7")
    a.s(f"s_cbranch_scc1 {endlabel}")
    a.ds_read("ds_read_b64", 8, 2, 10)
    assert hi_off < 65536
    for dl in (1, 2, 3, 0):
        a.ds_read("ds_read_b128", 16 + 8*dl, 4, 12+dl)
        a.ds_read("ds_read_b128", 20 + 8*dl, 4, 12+dl, off=hi_off)
    a.s("s_mov_b64 exec, s[78:79]")
    for dl in (1, 2, 3):
        unpack_add(a, 48, 16 + 8*dl, True)
        unpack_add(a, 48, 20 + 8*dl, False)
        for i in range(4): a.v(f"v_cvt_pk_bf16_f32 v{64+4*dl+i}, v{48+2*i}, v{49+2*i}")
        a.bstore(64 + 4*dl, 4, 3, S_WS, f"s{88+dl}", flags="sc1")
    unpack_add(a, 48, 16, True)
    unpack_add(a, 48, 20, False)
    a.waitcnt(vm=0)
    stamp(a, cfg, 9) if False else None
    a.s("s_mov_b32 exec_lo, s85"); a.s("s_mov_b32 exec_hi, 0")
    a.bstore(8, 2, 11, S_WS, "s84", flags="sc1")
    poll_flags(a, 62, 8, 11, 84, 86, 76)
    a.s("s_mov_b64 exec, s[78:79]")
    for dl in (1, 2, 3): a.bload(16 + 4*dl, 4, 3, S_WS, f"s{92+dl}", flags="sc1")
    for dl in (1, 2, 3): unpack_add(a, 48, 16 + 4*dl, False)
    for i in range(4): a.v(f"v_cvt_pk_bf16_f32 v{64+i}, v{48+2*i}, v{49+2*i}")
    a.bstore(64, 4, 7, S_OUT, "s87")

def kernel(cfg):
    a = Asm()
    a.lcap = cfg.lcap
    stamp(a, cfg, 0)
    prologue(a, cfg, "L_end")
    a.s(f"s_cmp_ge_u32 s{S_W}, 4")
    a.s("s_cbranch_scc1 L_loader")
    regA, regB = compute(a, cfg)
    stamp(a, cfg, 9)
    a.s("s_branch L_tail")
    a.label("L_loader")
    a.reset_state()
    loader(a, cfg)
    a.label("L_tail")
    a.reset_state()
    a.nop(4)
    tail(a, cfg, regA, regB, "L_end")
    if cfg.x_hold:
        a.v("v_readfirstlane_b32 s76, v8")
        a.label("L_hold")
        a.raw("    s_memrealtime s[78:79]")
        a.raw("    s_waitcnt lgkmcnt(0)")
        a.s("s_sub_u32 s77, s78, s76")
        a.s(f"s_cmp_lt_u32 s77, {cfg.x_hold}")
        a.s("s_cbranch_scc1 L_hold")
    if cfg.stamps: a.waitcnt(vm=0)
    stamp(a, cfg, 11)
    stamp_out(a, cfg)
    a.label("L_end")
    a.s("s_endpgm")
    return a

HEADER = open("cdna_kernels/" + NAME + ".s.ref").read().split("; Override launch")[0]

def build(cfg):
    n = NAME + "_kernel"
    a = kernel(cfg)
    return HEADER + f"""; @launch grid=(256,1,1) block=(512,1,1) lds=163840
.amdgcn_target "amdgcn-amd-amdhsa--gfx950"
.text
.globl {n}
.p2align 8
.type {n},@function
{n}:
{a.text()}
.section .rodata,"a"
.p2align 6
.amdhsa_kernel {n}
  .amdhsa_next_free_vgpr 256
  .amdhsa_next_free_sgpr 102
  .amdhsa_accum_offset 256
  .amdhsa_group_segment_fixed_size 0
  .amdhsa_kernarg_size 104
  .amdhsa_user_sgpr_count 2
  .amdhsa_user_sgpr_kernarg_segment_ptr 1
  .amdhsa_system_sgpr_workgroup_id_x 1
.end_amdhsa_kernel
"""

if __name__ == "__main__":
    cfg = Cfg()
    for kv in sys.argv[2:]:
        k, v = kv.split("=")
        cur = getattr(cfg, k)
        setattr(cfg, k, (v == "1") if isinstance(cur, bool) else int(v) if isinstance(cur, int) else v.replace("_", " "))
    open(sys.argv[1], "w").write(build(cfg))
```

```python
import sys, struct
from asm import *

NAME = "concat_heads__gqa_block_cached__mha_block_cached__near_ridge"
SLOT = 52224
KSTR, VSTR = 1040, 1056
KUNIT, VUNIT = 12*KSTR, 12*VSTR
LDS_NONCE = 3*SLOT
WS_O = 0
WS_PART = 16 << 20
WS_FLAG1 = 14 << 20
WS_FLAG2 = 15 << 20
WS_STAMP = 24 << 20
WS_BYTES = 32 << 20
RSTR = 304
SC = 0.08838834764831845 * 1.4426950408889634
SPIN_MAX = 1 << 17
def f2u(x): return struct.unpack("<I", struct.pack("<f", x))[0]

S_X, S_K, S_V, S_WQ, S_WO, S_OUT, S_WS, S_DBG = 36, 40, 44, 48, 52, 56, 60, 64
S_BR, S_KQ, S_HP, S_BP, S_W = 68, 69, 70, 71, 72

class Cfg:
    stamps = False
    ld_x = ""; ld_wq = ""; ld_kv = ""; ld_wo = ""
    skew = 9; touch = True; prio = 0; lcap = 15
    barpos = 3; el = True; flagpos = 1; asc = True; elbit = 5
    e_k = 1; e_v = 0; e_wo = 2; l_wo = 2; e_pos = 1; l_pos = 4; wo0 = 1
    x_nodma = False
    dbgwg = -1; dbgwave = 0; x_hold = 0; x_enc = -1; x_amp = 8; x_clk = False

NST = 16
def streg(i): return 4 if i == 0 else 8 + 2*(i-1) if i <= 13 else {14: 34, 15: 6}[i]
def stamp(a, cfg, i):
    if cfg.stamps:
        r = streg(i)
        a.raw(f"    {'s_memtime' if cfg.x_clk else 's_memrealtime'} s[{r}:{r+1}]"); a.pos += 1
def stamp_out(a, cfg):
    if not cfg.stamps: return
    if cfg.x_enc >= 0:
        a.raw("    s_waitcnt lgkmcnt(0)")
        a.s("s_lshl_b32 s3, s2, 3")
        a.s(f"s_add_u32 s3, s3, s{S_W}")
        a.s(f"s_cmp_lg_u32 s3, {cfg.dbgwg*8 + cfg.dbgwave}")
        a.s("s_cbranch_scc1 L_end")
        r = 4 if cfg.x_enc == 0 else 8 + 2*(cfg.x_enc-1)
        if cfg.x_enc >= 20: r = 96 + 2*(cfg.x_enc - 20)
        a.s(f"s_sub_u32 s76, s{r}, s4")
        a.s(f"s_mul_i32 s76, s76, {cfg.x_amp}")
        a.s("s_add_u32 s76, s76, 5000")
        a.label("L_hold")
        a.raw("    s_memrealtime s[78:79]")
        a.raw("    s_waitcnt lgkmcnt(0)")
        a.s(f"s_sub_u32 s77, s78, s4")
        a.s(f"s_cmp_lt_u32 s77, s76")
        a.s("s_cbranch_scc1 L_hold")
        return
    a.raw("    s_waitcnt lgkmcnt(0)")
    a.s("s_mov_b64 exec, 1")
    if cfg.dbgwg >= 0:
        a.s("s_lshl_b32 s3, s2, 3")
        a.s(f"s_add_u32 s3, s3, s{S_W}")
        a.s(f"s_cmp_lg_u32 s3, {cfg.dbgwg*8 + cfg.dbgwave}")
        a.s("s_cbranch_scc1 L_end")
        a.v("v_mov_b32 v1, 0")
        for i in range(NST):
            r = 4 if i == 0 else 8 + 2*(i-1)
            a.v(f"v_mov_b32 v2, s{r}")
            a.v(f"v_subrev_u32 v2, v8, v2")
            a.bstore(2, 1, 1, S_DBG, "0", off=8 + 4*i)
            a.nop(2)
        return
    a.s("s_lshl_b32 s3, s2, 3")
    a.s(f"s_add_u32 s3, s3, s{S_W}")
    a.s("s_lshl_b32 s3, s3, 6")
    a.s(f"s_add_u32 s3, s3, {WS_STAMP}")
    a.v("v_mov_b32 v1, 0")
    for i in range(NST):
        r = streg(i)
        a.v(f"v_mov_b32 v2, s{r}")
        a.bstore(2, 1, 1, S_WS, "s3", off=4*i)
        a.nop(2)

def srd(a, base, lo, hi, size):
    a.s(f"s_mov_b32 s{base}, s{lo}")
    a.s(f"s_mov_b32 s{base+1}, s{hi}")
    a.s(f"s_mov_b32 s{base+2}, {size}")
    a.s(f"s_mov_b32 s{base+3}, 0x20000")

def prologue(a, cfg, endlabel):
    a.s("s_cmp_ge_u32 s2, 256")
    a.s(f"s_cbranch_scc1 {endlabel}")
    a.raw("    s_load_dwordx16 s[8:23], s[0:1], 0")
    a.raw("    s_load_dwordx8 s[24:31], s[0:1], 64")
    a.raw("    s_load_dwordx2 s[32:33], s[0:1], 96")
    a.v("v_and_b32 v1, 63, v0")
    a.v("v_lshrrev_b32 v15, 6, v0")
    a.s(f"s_and_b32 s{S_KQ}, s2, 3")
    a.s(f"s_bfe_u32 s{S_BR}, s2, 0x10002")
    a.s(f"s_bfe_u32 s{S_HP}, s2, 0x20003")
    a.s(f"s_lshr_b32 s{S_BP}, s2, 5")
    a.v(f"v_readfirstlane_b32 s{S_W}, v15")
    if cfg.x_enc == 21:
        a.raw("    s_waitcnt lgkmcnt(0)")
        a.raw("    s_memrealtime s[98:99]")

def build_srds(a, cfg=None, keys=('x', 'wq', 'k', 'v', 'wo', 'o')):
    a.raw("    s_waitcnt lgkmcnt(0)")
    a.s(f"s_cmp_eq_u32 s{S_BR}, 0")
    for (dst, pa, pb, key) in ((S_WQ, 14, 24, 'wq'), (S_X, 8, 18, 'x'), (S_K, 10, 20, 'k'), (S_V, 12, 22, 'v'), (S_WO, 16, 26, 'wo')):
        if key not in keys: continue
        a.s(f"s_cselect_b64 s[{dst}:{dst+1}], s[{pa}:{pa+1}], s[{pb}:{pb+1}]")
        if key in ('k', 'v'):
            a.s(f"s_mov_b32 s{dst+2}, 6291456")
            a.s(f"s_cselect_b32 s{dst+2}, 3145728, s{dst+2}")
        else:
            a.s(f"s_mov_b32 s{dst+2}, {884736 if key == 'x' else 4718592}")
        a.s(f"s_mov_b32 s{dst+3}, 0x20000")
    if 'o' in keys:
        srd(a, S_OUT, 28, 29, 1769472)
        srd(a, S_DBG, 30, 31, 256)
        srd(a, S_WS, 32, 33, WS_BYTES)

def head_order(a, cfg, p, sd):
    if p == 0: return [lambda: a.s(f"s_mov_b32 s{sd}, s{S_HP}")]
    if cfg.asc:
        return [lambda: a.s(f"s_cmp_le_u32 s{S_HP}, {p-1}"), lambda: a.s(f"s_cselect_b32 s{sd}, {p}, {p-1}")]
    return [lambda: a.s(f"s_add_u32 s{sd}, s{S_HP}, {p}"), lambda: a.s(f"s_and_b32 s{sd}, s{sd}, 3")]

_lbl = [0]
def newlabel(p):
    _lbl[0] += 1
    return f"L{p}_{_lbl[0]}"

def poll_flags(a, vdata, vnonce, voff, soff, smask, stmp):
    L = newlabel("poll"); X = newlabel("pollx")
    a.s(f"s_mov_b32 exec_lo, s{smask}")
    a.s("s_mov_b32 exec_hi, 0")
    a.s(f"s_mov_b32 s{stmp}, 0")
    a.label(L)
    a.bload(vdata, 2, voff, S_WS, f"s{soff}", flags="sc1")
    a.s(f"s_add_u32 s{stmp}, s{stmp}, 1")
    a.s(f"s_cmp_gt_u32 s{stmp}, {SPIN_MAX}")
    a.waitcnt(vm=0)
    a.s(f"s_cbranch_scc1 {X}")
    a.v(f"v_cmp_ne_u64 vcc, v[{vdata}:{vdata+1}], v[{vnonce}:{vnonce+1}]")
    a.s(f"s_cbranch_vccnz {L}")
    a.label(X)
    a.s("s_mov_b64 exec, -1")

def loader(a, cfg):
    a.s(f"s_sub_u32 s73, s{S_W}, 4")
    a.s("s_and_b32 s74, s73, 1")
    a.s("s_lshr_b32 s75, s73, 1")
    a.v("v_lshrrev_b32 v4, 5, v1")
    a.s("s_lshl_b32 s76, s74, 1")
    a.s("s_lshl_b32 s77, s75, 2")
    a.s("s_or_b32 s76, s76, s77")
    a.v("v_or_b32 v5, s76, v4")
    a.v("v_bfe_u32 v6, v1, 1, 4")
    a.v("v_xor_b32 v6, v6, v5")
    a.v("v_lshlrev_b32 v6, 5, v6")
    a.v("v_and_b32 v7, 1, v1")
    a.v("v_lshl_add_u32 v6, v7, 4, v6")
    a.v("v_lshl_add_u32 v2, v4, 13, v6")
    a.s("s_lshl_b32 s76, s75, 16")
    a.s("s_lshl_b32 s77, s74, 14")
    a.s("s_add_u32 s76, s76, s77")
    a.s(f"s_lshl_b32 s77, s{S_KQ}, 11")
    a.s("s_add_u32 s76, s76, s77")
    a.s(f"s_lshl_b32 s77, s{S_HP}, 9")
    a.s("s_add_u32 s76, s76, s77")
    a.v("v_add_u32 v2, s76, v2")
    a.v("v_lshrrev_b32 v4, 3, v1")
    a.v("v_mul_u32_u24 v4, 1152, v4")
    a.v("v_lshrrev_b32 v5, 4, v1")
    a.s("s_lshl_b32 s76, s74, 2")
    a.v("v_or_b32 v5, s76, v5")
    a.v("v_and_b32 v6, 7, v1")
    a.v("v_xor_b32 v6, v6, v5")
    a.v("v_lshl_add_u32 v3, v6, 4, v4")
    a.s(f"s_mul_i32 s76, s{S_BP}, {96*1152}")
    a.s(f"s_mul_i32 s77, s74, {8*1152}")
    a.s("s_add_u32 s76, s76, s77")
    a.s(f"s_mul_i32 s77, s75, {48*1152}")
    a.s("s_add_u32 s76, s76, s77")
    a.v("v_add_u32 v3, s76, v3")
    a.s("s_lshl_b32 s78, s75, 12")
    a.s("s_lshl_b32 s77, s74, 10")
    a.s("s_add_u32 s78, s78, s77")
    a.s("s_mul_i32 s79, s75, 6144")
    a.s("s_add_u32 s79, s79, s77")
    a.s("s_add_u32 s79, s79, 32768")
    if cfg.skew == 3:
        a.s(f"s_add_u32 s84, s{S_HP}, s{S_BP}")
        a.s("s_mul_i32 s85, s84, 43")
        a.s("s_lshr_b32 s85, s85, 7")
        a.s("s_mul_i32 s85, s85, 3")
        a.s("s_sub_u32 s84, s84, s85")
        a.s("s_mul_i32 s84, s84, 3")
    elif cfg.skew == 4:
        a.s(f"s_add_u32 s84, s{S_HP}, s{S_BP}")
        a.s("s_and_b32 s84, s84, 3")
        a.s("s_lshl_b32 s84, s84, 1")
    elif cfg.skew:
        a.s(f"s_lshl_b32 s84, s{S_HP}, 1")
        a.s(f"s_add_u32 s84, s84, s{S_BP}")
        a.s("s_sub_u32 s85, s84, 9")
        a.s("s_cmp_ge_u32 s84, 9")
        a.s("s_cselect_b32 s84, s85, s84")
    else:
        a.s("s_mov_b32 s84, 0")
    build_srds(a, cfg, ('x', 'wq'))
    def stage(s):
        slot = (s % 3) * SLOT
        a.s("s_lshl_b32 s85, s84, 7")
        a.s("s_lshl_b32 s86, s84, 19")
        for i4 in range(2):
            for i3 in range(2):
                for i1 in range(2):
                    a.s(f"s_add_u32 m0, s78, {slot + i4*16384 + i3*8192 + i1*2048}")
                    a.s(f"s_add_u32 s82, s86, {(32*i4 + 16*i3 + 4*i1)*8192}")
                    a.dma(2, S_WQ, "s82", cfg.ld_wq, tag=("st", s))
        for z in range(3):
            a.s(f"s_add_u32 m0, s79, {slot + z*2048}")
            a.s(f"s_add_u32 s82, s85, {z*16*1152}")
            a.dma(3, S_X, "s82", cfg.ld_x, tag=("st", s))
        a.s("s_add_u32 s84, s84, 1")
        a.s("s_cmp_eq_u32 s84, 9")
        a.s("s_cselect_b32 s84, 0, s84")
    stage(0)
    build_srds(a, cfg, ('k', 'v', 'wo', 'o'))
    stamp(a, cfg, 1)
    a.v("v_mov_b32 v16, 0")
    L = newlabel("nw")
    a.s("s_add_u32 s76, s2, s73")
    a.s("s_cmp_lg_u32 s76, 0")
    a.s(f"s_cbranch_scc1 {L}")
    a.raw("    s_memrealtime s[88:89]")
    a.raw("    s_waitcnt lgkmcnt(0)")
    a.s("s_or_b32 s88, s88, 1")
    a.v("v_mov_b32 v18, s88")
    a.v("v_mov_b32 v19, s89")
    a.s("s_mov_b64 exec, 1")
    a.raw(f"    buffer_store_dwordx2 v[18:19], v16, s[{S_DBG}:{S_DBG+3}], 0 offen sc1")
    a.s("s_mov_b64 exec, -1")
    a.label(L)
    stage(1)
    a.v("v_lshrrev_b32 v4, 4, v1")
    a.v("v_lshlrev_b32 v5, 2, v4")
    a.v("v_and_b32 v6, 15, v1")
    a.v("v_xor_b32 v6, v6, v5")
    a.v("v_lshlrev_b32 v6, 4, v6")
    a.v("v_lshl_add_u32 v8, v4, 8, v6")
    a.s(f"s_lshl_b32 s76, s{S_BP}, 1")
    a.s("s_add_u32 s76, s76, s74")
    a.s(f"s_lshl_b32 s77, s{S_KQ}, 3")
    a.s(f"s_lshl_b32 s81, s{S_HP}, 1")
    a.s("s_add_u32 s77, s77, s81")
    a.s("s_add_u32 s77, s77, s75")
    a.s("s_lshl_b32 s76, s76, 5")
    a.s("s_add_u32 s76, s76, s77")
    a.s(f"s_xor_b32 s77, s{S_BR}, 1")
    a.s("s_lshr_b32 s76, s76, s77")
    a.s("s_mul_i32 s80, s76, 12288")
    a.s("s_mul_i32 s76, s75, 6")
    a.s(f"s_cmp_eq_u32 s{S_BR}, 0")
    a.s("s_cselect_b32 s76, s76, 0")
    a.s("s_cselect_b32 s77, s74, s73")
    a.s("s_cselect_b32 s90, 0, -1")
    a.s("s_mul_i32 s77, s77, 12")
    a.s("s_add_u32 s77, s77, s76")
    a.s(f"s_mul_i32 s91, s77, {KSTR}")
    a.s(f"s_mul_i32 s92, s77, {VSTR}")
    a.s(f"s_add_u32 s92, s92, {SLOT}")
    a.s("s_lshl_b32 s76, s76, 10")
    a.s("s_add_u32 s80, s80, s76")
    a.s(f"s_lshl_b32 s76, s{S_KQ}, 10")
    a.s("s_lshl_b32 s77, s75, 7")
    a.s("s_add_u32 s76, s76, s77")
    a.s("s_lshl_b32 s77, s74, 5")
    a.s("s_add_u32 s76, s76, s77")
    a.s("s_mul_i32 s76, s76, 1152")
    a.s(f"s_mul_i32 s77, s{S_HP}, 288")
    a.s("s_and_b32 s77, s77, 0xffffffc0")
    a.s("s_add_u32 s76, s76, s77")
    for y in range(5):
        a.v(f"v_add_u32 v4, {y*64}, v1")
        a.v("v_mul_u32_u24 v5, 3277, v4")
        a.v("v_lshrrev_b32 v5, 16, v5")
        a.v("v_mul_u32_u24 v6, 20, v5")
        a.v("v_sub_u32 v6, v4, v6")
        a.v("v_bfe_u32 v7, v5, 2, 1")
        a.v("v_lshlrev_b32 v7, 1, v7")
        a.v("v_xor_b32 v6, v6, v7")
        a.v("v_mul_u32_u24 v5, 1152, v5")
        a.v("v_lshl_add_u32 v5, v6, 4, v5")
        a.v(f"v_add_u32 v{9+y}, s76, v5")
    a.s("s_mul_i32 s93, s73, 10240")
    a.v("v_lshlrev_b32 v14, 7, v1")
    if cfg.el:
        assert cfg.elbit == 5
        a.s("s_lshr_b32 s76, s2, 6")
        a.s("s_lshl_b32 s76, s76, 2")
        a.s(f"s_add_u32 s76, s76, s{S_HP}")
        a.s("s_lshl_b32 s76, s76, 2")
        a.s("s_add_u32 s76, s76, s73")
        a.s(f"s_mul_i32 s76, s76, {144*128}")
        assert cfg.e_wo + cfg.l_wo in (0, 4)
        a.s(f"s_bitcmp1_b32 s2, {cfg.elbit}")
        a.s(f"s_cselect_b32 s77, 0, {cfg.e_wo*36*128}")
        a.s("s_add_u32 s76, s76, s77")
    else:
        a.s("s_lshr_b32 s76, s2, 3")
        a.s("s_lshl_b32 s76, s76, 2")
        a.s("s_add_u32 s76, s76, s73")
        a.s(f"s_mul_i32 s76, s76, {72*128}")
    a.s(f"s_mul_i32 s94, s{S_KQ}, {1024*1152}")
    a.s("s_add_u32 s94, s94, s76")
    a.v(f"v_mov_b32 v17, {LDS_NONCE}")
    def kvstage(g, srdb, sm0, stride):
        for i in range(12):
            if i == 6:
                a.s("s_mov_b32 exec_lo, s90"); a.s("s_mov_b32 exec_hi, s90")
            a.s(f"s_add_u32 m0, s{sm0}, {i*stride}")
            a.s(f"s_add_u32 s82, s80, {i*1024}")
            a.dma(8, srdb, "s82", cfg.ld_kv, tag=("st", g))
        a.s("s_mov_b64 exec, -1")
    def wostage(z):
        p, k2 = divmod(z, 2)
        slot = ((11 + z) % 3) * SLOT
        for f in head_order(a, cfg, p, 83): f()
        a.s(f"s_mul_i32 s83, s83, {256*1152}")
        for z2 in range(2):
            a.s(f"s_add_u32 s82, s83, {(k2*64 + z2*16)*1152}")
            for y in range(5):
                a.s(f"s_add_u32 m0, s93, {slot + z2*5120 + y*1024}")
                a.dma(9+y, S_WO, "s82", cfg.ld_wo, tag=("st", 11+z))
    KREG, VREG = 32, 80
    a.v("v_lshlrev_b32 v22, 4, v1")
    a.v("v_add_u32 v23, s92, v22")
    a.v("v_add_u32 v22, s91, v22")
    def kvregs(srdb, rb, tag):
        for i in range(12):
            if i == 6:
                a.s("s_mov_b32 exec_lo, s90"); a.s("s_mov_b32 exec_hi, s90")
            if i % 4 == 0: a.s(f"s_add_u32 s82, s80, {i*1024}")
            a.bload(rb + 4*i, 4, 8, srdb, "s82", off=(i % 4)*1024, flags=cfg.ld_kv, tag=tag)
        a.s("s_mov_b64 exec, -1")
    def kvwrite(rb, vaddr, stride):
        for i in range(12):
            if i == 6:
                a.s("s_mov_b32 exec_lo, s90"); a.s("s_mov_b32 exec_hi, s90")
            a.ds_write("ds_write_b128", vaddr, rb + 4*i, 4, off=i*stride)
        a.s("s_mov_b64 exec, -1")
    def touches(n):
        a.s("s_mov_b32 exec_lo, -1"); a.s("s_mov_b32 exec_hi, 15")
        for i in range(n):
            a.bload(20, 1, 14, S_WO, "s94", tag="touch")
            a.vm[-1] = (None, "touch")
            a.s(f"s_add_u32 s94, s94, {36*128}")
        a.s("s_mov_b64 exec, -1")
    def kvpart(g, srdb, sm0, stride, half):
        if half: a.s("s_mov_b32 exec_lo, s90"); a.s("s_mov_b32 exec_hi, s90")
        for i in range(6*half, 6*half + 6):
            a.s(f"s_add_u32 m0, s{sm0}, {i*stride}")
            a.s(f"s_add_u32 s82, s80, {i*1024}")
            a.dma(8, srdb, "s82", cfg.ld_kv, tag=("st", g))
        if half: a.s("s_mov_b64 exec, -1")
    def nonce_to_lds():
        Lok = newlabel("nok"); Lsp = newlabel("nsp")
        a.s("s_mov_b32 s77, 0")
        a.label(Lsp)
        a.v("v_readfirstlane_b32 s76, v18")
        a.s("s_cmp_lg_u32 s76, 0")
        a.s(f"s_cbranch_scc1 {Lok}")
        a.s("s_add_u32 s77, s77, 1")
        a.s(f"s_cmp_gt_u32 s77, {SPIN_MAX}")
        a.s(f"s_cbranch_scc1 {Lok}")
        a.raw(f"    buffer_load_dwordx2 v[18:19], v16, s[{S_DBG}:{S_DBG+3}], 0 offen sc1")
        a.raw("    s_waitcnt vmcnt(0)")
        a.s(f"s_branch {Lsp}")
        a.label(Lok)
        a.ds_write("ds_write_b64", 17, 18, 2)
    def kvtouch(srdb):
        a.s("s_mov_b32 exec_lo, -1"); a.s("s_mov_b32 exec_hi, 0xffff")
        a.bload(20, 1, 14, srdb, "s80", tag="touch"); a.vm[-1] = (None, "touch")
        a.s("s_and_b32 exec_lo, exec_lo, s90"); a.s("s_and_b32 exec_hi, exec_hi, s90")
        a.s("s_add_u32 s82, s80, 6144")
        a.bload(20, 1, 14, srdb, "s82", tag="touch"); a.vm[-1] = (None, "touch")
        a.s("s_mov_b64 exec, -1")
    def main(early):
        W = lambda g: a.wait_vm_tag(("st", g))
        B = a.barrier
        pos = cfg.e_pos if early else cfg.l_pos
        def T():
            if early:
                if cfg.e_k: kvtouch(S_K)
                if cfg.e_v: kvtouch(S_V)
                if cfg.e_wo: touches(cfg.e_wo)
            elif cfg.l_wo: touches(cfg.l_wo)
        has_t = (cfg.e_k or cfg.e_v or cfg.e_wo) if early else cfg.l_wo
        nxt = 2
        for g in range(8):
            W(g)
            if g == 0: stamp(a, cfg, 3)
            if g == 3: stamp(a, cfg, 4)
            if g == 6: nonce_to_lds()
            B()
            if g == 4: a.bload(18, 2, 16, S_DBG, "0", flags="sc1", tag="nonce")
            if has_t and g == pos: T(); continue
            while nxt <= min(g + 2, 8): stage(nxt); nxt += 1
        kvpart(9, S_K, 91, KSTR, 0)
        W(8); stamp(a, cfg, 5); B()
        kvpart(9, S_K, 91, KSTR, 1); kvpart(10, S_V, 92, VSTR, 0)
        W(9); a.waitcnt(lgkm=0); stamp(a, cfg, 6); B()
        kvpart(10, S_V, 92, VSTR, 1)
        W(10); stamp(a, cfg, 7)
        if cfg.wo0: wostage(0)
        B()
        B()
        if not cfg.wo0: wostage(0)
        wostage(1)
        W(11); stamp(a, cfg, 8); B()
        wostage(2)
        for z in range(1, 8):
            W(11 + z)
            if z == 4: stamp(a, cfg, 9)
            if z == 7: stamp(a, cfg, 10)
            B()
            if z + 2 <= 7: wostage(z + 2)
    stamp(a, cfg, 2)
    if cfg.el:
        saved = list(a.vm)
        a.s(f"s_bitcmp1_b32 s2, {cfg.elbit}")
        a.s("s_cbranch_scc1 L_early")
        main(False)
        a.s("s_branch L_tail")
        a.label("L_early")
        a.hist = []; a.lgkm = []; a.vm = saved
        main(True)
    else:
        main(False)
    a.s("s_branch L_tail")

def xlane_reduce(a, op, regs, tmps):
    for sw in ("v_permlane32_swap_b32", "v_permlane16_swap_b32"):
        for r, t in zip(regs, tmps): a.v(f"v_mov_b32 v{t}, v{r}")
        for r, t in zip(regs, tmps): a.v(f"{sw} v{r}, v{t}")
        for r, t in zip(regs, tmps): a.v(f"{op} v{r}, v{r}, v{t}")

class Fill:
    def __init__(self): self.q = []
    def add(self, *fs): self.q.extend(fs)
    def pop(self, n):
        for _ in range(n):
            if self.q: self.q.pop(0)()
    def drain(self): self.pop(len(self.q))

def compute(a, cfg):
    ACC = 16; WF = 112; XF = 144; KF = 168; AS = 216; VF = 112
    accQ = lambda t, mt: ACC + (t*3 + mt)*4
    Wf = lambda t: WF + 4*t
    Xf = lambda par, mt: XF + par*12 + mt*4
    Kf = lambda kt, kp: KF + (kt*4 + kp)*4
    accS = lambda kt, mt: AS + (kt*3 + mt)*4
    Vf = lambda t: VF + 6*t
    accO = lambda mt, t: ACC + (mt*8 + t)*4
    aW = lambda sl, t: 216 + sl*10 + t
    aX = lambda sl, ks: 216 + sl*10 + 8 + ks
    aK = lambda kp: 252 + kp
    aV = lambda th: 2 + th
    R = [13, 15]
    ofA = lambda kp, mt: 168 + (kp*3 + mt)*4
    def ofB(kp, mt):
        f = kp*3 + mt
        return 216 + f*4 if f < 10 else 160 + (f - 10)*4
    of = lambda buf, kp, mt: ofB(kp, mt) if buf else ofA(kp, mt)
    acc2 = lambda mt, t: 16 + (mt*9 + t)*4
    Wf2 = lambda t: 124 + 4*t

    if cfg.prio: a.s(f"s_setprio {cfg.prio}")
    a.s(f"s_and_b32 s74, s{S_W}, 1")
    a.s(f"s_lshr_b32 s75, s{S_W}, 1")
    a.v("v_lshrrev_b32 v160, 4, v1")
    a.v("v_bfe_u32 v161, v1, 2, 2")
    a.v("v_and_b32 v162, 3, v1")
    a.v("v_and_b32 v163, 15, v1")
    a.v("v_lshl_add_u32 v164, v160, 3, v161")
    a.v("v_lshlrev_b32 v164, 9, v164")
    a.v("v_and_b32 v165, 1, v160")
    a.v("v_lshl_or_b32 v166, v165, 2, v161")
    a.v("v_lshl_add_u32 v164, v166, 5, v164")
    a.v("v_lshl_add_u32 v164, v162, 3, v164")
    a.s("s_lshl_b32 s76, s75, 8")
    a.v(f"v_add_u32 v{aW(0,0)}, s76, v164")
    for t in range(1, 8): a.v(f"v_xor_b32 v{aW(0,t)}, {32*t}, v{aW(0,0)}")
    a.v("v_lshrrev_b32 v164, 1, v163")
    a.v("v_xor_b32 v164, v164, v160")
    a.v("v_lshlrev_b32 v164, 4, v164")
    a.v("v_lshl_add_u32 v164, v163, 7, v164")
    a.s("s_mul_i32 s76, s74, 6144")
    a.s("s_add_u32 s76, s76, 32768")
    a.v(f"v_add_u32 v{aX(0,0)}, s76, v164")
    a.v(f"v_xor_b32 v{aX(0,1)}, 64, v{aX(0,0)}")
    for sl in (1, 2):
        for i in range(10): a.v(f"v_add_u32 v{216+sl*10+i}, {sl*SLOT}, v{216+i}")
    a.s(f"s_cmp_eq_u32 s{S_BR}, 0")
    a.s(f"s_cselect_b32 s77, s74, s{S_W}")
    a.s(f"s_mul_i32 s76, s77, {KUNIT}")
    a.v(f"v_mul_u32_u24 v164, {KSTR}, v161")
    a.v("v_lshl_add_u32 v164, v162, 8, v164")
    a.v("v_lshl_add_u32 v164, v160, 3, v164")
    a.v("v_add_u32 v164, s76, v164")
    for kp in range(4):
        a.v(f"v_xor_b32 v167, {kp}, v162")
        a.v(f"v_lshl_add_u32 v{aK(kp)}, v167, 6, v164")
    a.s(f"s_mul_i32 s76, s77, {VUNIT}")
    a.s(f"s_add_u32 s76, s76, {SLOT}")
    a.v(f"v_mul_u32_u24 v164, {VSTR}, v160")
    a.v("v_lshl_add_u32 v164, v161, 8, v164")
    a.v("v_lshl_add_u32 v164, v162, 3, v164")
    a.v("v_add_u32 v164, s76, v164")
    for th in range(4):
        a.v(f"v_xor_b32 v167, {th}, v161")
        a.v(f"v_lshl_add_u32 v{aV(th)}, v167, 6, v164")
    a.v("v_lshl_add_u32 v164, v160, 2, v161")
    a.v("v_mul_u32_u24 v164, 320, v164")
    a.v("v_lshl_add_u32 v164, v162, 3, v164")
    a.s("s_mul_i32 s76, s75, 20480")
    a.s(f"s_add_u32 s76, s76, {2*SLOT}")
    a.v("v_add_u32 v164, s76, v164")
    a.s(f"s_and_b32 s77, s{S_HP}, 1")
    a.v("v_xor_b32 v167, s77, v165")
    a.v(f"v_lshl_add_u32 v{R[0]}, v167, 5, v164")
    a.s("s_add_u32 s77, s77, 1")
    a.v("v_xor_b32 v167, s77, v165")
    a.v(f"v_lshl_add_u32 v{R[1]}, v167, 5, v164")
    a.v(f"v_subrev_u32 v{R[1]}, 32, v{R[1]}")
    a.v("v_lshlrev_b32 v14, 4, v1")
    regA = ((11 + 7 + 1) % 3) * SLOT
    regB = ((11 + 7 + 2) % 3) * SLOT
    a.v(f"v_mul_u32_u24 v164, {RSTR}, v163")
    a.v("v_lshl_add_u32 v164, v160, 3, v164")
    a.s(f"s_mul_i32 s76, s74, {48*RSTR}")
    a.s("s_cmp_eq_u32 s75, 0")
    a.s(f"s_mov_b32 s77, {regB}")
    a.s(f"s_cselect_b32 s77, {regA}, s77")
    a.s("s_add_u32 s76, s76, s77")
    a.v("v_add_u32 v12, s76, v164")
    a.v("v_lshlrev_b32 v11, 3, v1")
    a.v(f"v_mov_b32 v10, {LDS_NONCE}")
    a.s(f"s_lshl_b32 s76, s{S_BR}, 4")
    a.s(f"s_lshl_b32 s77, s{S_BP}, 1")
    a.s("s_add_u32 s76, s76, s77")
    a.s("s_add_u32 s76, s76, s74")
    a.s("s_lshl_b32 s76, s76, 5")
    a.s(f"s_lshl_b32 s77, s{S_KQ}, 3")
    a.s("s_add_u32 s76, s76, s77")
    a.s("s_add_u32 s76, s76, s75")
    a.s("s_mul_i32 s80, s76, 12288")
    a.s(f"s_mov_b32 s83, {f2u(SC)}")
    a.s("s_and_b32 s76, s2, 7")
    a.s(f"s_lshl_b32 s77, s{S_BP}, 3")
    a.s("s_or_b32 s76, s76, s77")
    a.s("s_lshl_b32 s76, s76, 2")
    a.s(f"s_add_u32 s76, s76, s{S_W}")
    a.s("s_lshl_b32 s76, s76, 7")
    a.s(f"s_add_u32 s84, s76, {WS_FLAG1}")
    a.s(f"s_lshl_b32 s85, 1, s{S_HP}")
    a.s("s_xor_b32 s86, s85, 15")
    build_srds(a, cfg, ('o',))

    ver = {}
    def rdW(s, t, ks, h):
        def f():
            a.ds_read("ds_read_b64_tr_b16", Wf(t)+2*h, 2, aW(s % 3, t), off=ks*16384 + h*2048); ver[("W", t, h)] = (s, ks)
        return f
    def rdX(s, mt, ks):
        def f():
            a.ds_read("ds_read_b128", Xf(ks, mt), 4, aX(s % 3, ks), off=mt*2048); ver[("X", ks, mt)] = s
        return f
    def chk1(s, ks, t, mt):
        assert ver[("W", t, 0)] == (s, ks) and ver[("W", t, 1)] == (s, ks) and ver[("X", ks, mt)] == s, (s, ks, t, mt)
    def rdK(kt, kp, e):
        return lambda: a.ds_read("ds_read_b64", Kf(kt, kp)+2*e, 2, aK(kp), off=kt*4*KSTR + 32*e)
    def cvt(d, s0, s1):
        return lambda: a.v(f"v_cvt_pk_bf16_f32 v{d}, v{s0}, v{s1}")
    def cvtQ(kp):
        out = []
        for mt in range(3):
            r = accQ(2*kp, mt); s_ = accQ(2*kp+1, mt)
            out += [cvt(r, r, r+1), cvt(r+1, r+2, r+3), cvt(r+2, s_, s_+1), cvt(r+3, s_+2, s_+3)]
        return out
    F = Fill()
    stamp(a, cfg, 1)
    a.barrier()
    stamp(a, cfg, 2)
    for mt in range(3): rdX(0, mt, 0)()
    for t in range(8): rdW(0, t, 0, 0)(); rdW(0, t, 0, 1)()
    BP = cfg.barpos
    for s in range(9):
        last = s == 8; sl = s; nsl = s + 1
        for mt in range(3): F.add(rdX(sl, mt, 1))
        for t in range(8):
            for mt in range(3):
                chk1(s, 0, t, mt)
                a.mfma(accQ(t, mt), Wf(t), Xf(0, mt), None if s == 0 else accQ(t, mt))
                F.pop(2 if len(F.q) > 2 else 1)
            F.add(rdW(sl, t, 1, 0), rdW(sl, t, 1, 1))
        for t in range(8):
            for mt in range(3):
                chk1(s, 1, t, mt)
                a.mfma(accQ(t, mt), Wf(t), Xf(1, mt), accQ(t, mt))
                F.pop(2 if len(F.q) > 2 else 1)
            if t == BP - 1:
                assert not F.q
                a.waitcnt(lgkm=0)
                a.barrier()
                if not last:
                    F.add(rdX(nsl, 0, 0), rdW(nsl, 0, 0, 0), rdW(nsl, 0, 0, 1), rdX(nsl, 1, 0), rdX(nsl, 2, 0))
                    for tt in range(1, BP): F.add(rdW(nsl, tt, 0, 0), rdW(nsl, tt, 0, 1))
                else:
                    for kp in range(4):
                        for kt in range(3): F.add(rdK(kt, kp, 0), rdK(kt, kp, 1))
            elif t >= BP and not last:
                F.add(rdW(nsl, t, 0, 0), rdW(nsl, t, 0, 1))
    F.drain()
    stamp(a, cfg, 3)
    for kp in range(4):
        for f in cvtQ(kp): f()
    a.waitcnt(lgkm=0)
    for kp in range(4):
        for kt in range(3):
            for mt in range(3):
                a.mfma(accS(kt, mt), Kf(kt, kp), accQ(2*kp, mt), None if kp == 0 else accS(kt, mt))
    MX = [160, 161, 162]; TM = [163, 164, 165]; SM = [166, 167, 6]
    vals = lambda mt: [accS(kt, mt) + r for kt in range(3) for r in range(4)]
    for mt in range(3):
        v = vals(mt); a.v(f"v_max3_f32 v{MX[mt]}, v{v[0]}, v{v[1]}, v{v[2]}")
    for i in range(3, 11, 2):
        for mt in range(3):
            v = vals(mt); a.v(f"v_max3_f32 v{MX[mt]}, v{MX[mt]}, v{v[i]}, v{v[i+1]}")
    for mt in range(3):
        v = vals(mt); a.v(f"v_max_f32 v{MX[mt]}, v{MX[mt]}, v{v[11]}")
    xlane_reduce(a, "v_max_f32", MX, TM)
    for mt in range(3): a.v(f"v_mul_f32 v{MX[mt]}, s83, v{MX[mt]}")
    for i in range(12):
        for mt in range(3):
            v = vals(mt); a.v(f"v_fma_f32 v{v[i]}, v{v[i]}, s83, -v{MX[mt]}")
    for i in range(12):
        for mt in range(3):
            v = vals(mt); a.v(f"v_exp_f32 v{v[i]}, v{v[i]}")
    a.barrier()
    a.ds_read("ds_read_b64", 8, 2, 10)
    for t in range(8):
        for kt in range(3):
            F.add(lambda t=t, kt=kt: a.ds_read("ds_read_b64_tr_b16", Vf(t) + 2*kt, 2, aV(t >> 1), off=kt*4*VSTR + (t & 1)*32))
    for mt in range(3):
        v = vals(mt); a.v(f"v_add_f32 v{SM[mt]}, v{v[0]}, v{v[1]}"); F.pop(1)
    for i in range(2, 12):
        for mt in range(3):
            v = vals(mt); a.v(f"v_add_f32 v{SM[mt]}, v{SM[mt]}, v{v[i]}"); F.pop(1)
    xlane_reduce(a, "v_add_f32", SM, TM)
    for mt in range(3): a.v(f"v_rcp_f32 v{SM[mt]}, v{SM[mt]}")
    for i in range(12):
        for mt in range(3):
            v = vals(mt); a.v(f"v_mul_f32 v{v[i]}, v{v[i]}, v{SM[mt]}")
    for mt in range(3):
        r0, r1, r2 = accS(0, mt), accS(1, mt), accS(2, mt)
        for f in (cvt(r0, r0, r0+1), cvt(r0+1, r0+2, r0+3), cvt(r0+2, r1, r1+1), cvt(r0+3, r1+2, r1+3), cvt(r2, r2, r2+1), cvt(r2+1, r2+2, r2+3)): f()
    stamp(a, cfg, 4)
    a.s(f"s_mul_i32 s81, s{S_HP}, {2*12288}")
    a.s("s_add_u32 s81, s81, s80")
    def ostore(mt, kp):
        r = accO(mt, 2*kp); s_ = accO(mt, 2*kp+1); d = ofA(kp, mt); f = kp*3 + mt
        return [cvt(d, r, r+1), cvt(d+1, r+2, r+3), cvt(d+2, s_, s_+1), cvt(d+3, s_+2, s_+3),
                lambda: a.s(f"s_add_u32 s82, s81, {(f//4)*4096 + WS_O}"),
                lambda: a.bstore(d, 4, 14, S_WS, "s82", off=(f % 4)*1024, flags="sc1")]
    for mt in range(3):
        for t in range(8):
            a.mfma(accO(mt, t), Vf(t), accS(0, mt), None); F.pop(2)
        for t in range(8):
            a.mfma(accO(mt, t), Vf(t)+4, accS(2, mt), accO(mt, t), k=16); F.pop(2)
        for kp in range(4): F.add(*ostore(mt, kp))
    def rdW2(z, t, ks, h):
        def f():
            a.ds_read("ds_read_b64_tr_b16", Wf2(t)+2*h, 2, R[t & 1], off=ks*10240 + h*5120 + 32*t); ver[("W2", t, h)] = (z, ks)
        return f
    for kp in range(4):
        for mt in range(3): ver[("O", 0, kp, mt)] = 0
    F.drain()
    stamp(a, cfg, 5)
    a.waitcnt(lgkm=0)
    a.barrier()
    def flagsite(for_early):
        L = newlabel("fs")
        a.raw("    s_waitcnt vmcnt(0)")
        stamp(a, cfg, 6)
        a.s("s_mov_b32 exec_lo, s85"); a.s("s_mov_b32 exec_hi, 0")
        a.bstore(8, 2, 11, S_WS, "s84", flags="sc1")
        a.s("s_mov_b64 exec, -1")
        a.label(L)
    if cfg.flagpos == 0: flagsite(True)
    a.barrier()
    stamp(a, cfg, 10)
    for t in range(9): rdW2(0, t, 0, 0)(); rdW2(0, t, 0, 1)()
    def headbase(p):
        ho = head_order(a, cfg, p, 81)
        return [lambda: [f() for f in ho],
                lambda: a.s(f"s_mul_i32 s81, s81, {2*12288}"), lambda: a.s("s_add_u32 s81, s81, s80")]
    def ldO(p, f):
        kp, mt = divmod(f, 3)
        return [lambda: a.s(f"s_add_u32 s82, s81, {(f//4)*4096 + WS_O}"),
                lambda: (a.bload(of(p & 1, kp, mt), 4, 14, S_WS, "s82", off=(f % 4)*1024, flags="sc1"), ver.__setitem__(("O", p & 1, kp, mt), p))]
    for z in range(8):
        p, k2 = divmod(z, 2)
        last = z == 7
        if z == cfg.flagpos and z > 0:
            F.drain()
            flagsite(True)
        if z == 2:
            F.drain()
            poll_flags(a, 6, 8, 11, 84, 86, 76)
            stamp(a, cfg, 7)
            for pp in (1, 2):
                for f in headbase(pp): f()
                for fr in range(12):
                    for f in ldO(pp, fr): f()
        for ks in range(2):
            kp = k2*2 + ks
            for t in range(9):
                for mt in range(3):
                    assert ver[("W2", t, 0)] == (z, ks) and ver[("W2", t, 1)] == (z, ks) and ver[("O", p & 1, kp, mt)] == p
                    a.mfma(acc2(mt, t), Wf2(t), of(p & 1, kp, mt), None if (z == 0 and ks == 0) else acc2(mt, t))
                    F.pop(2 if len(F.q) > 2 else 1)
                if ks == 0:
                    F.add(rdW2(z, t, 1, 0), rdW2(z, t, 1, 1))
                elif not last:
                    if t == BP - 1:
                        F.drain()
                        a.waitcnt(lgkm=0)
                        a.barrier()
                        delta = SLOT if (11 + z + 1) % 3 else -2*SLOT
                        for r in R: F.add(lambda r=r, delta=delta: a.v(f"v_add_u32 v{r}, {delta & 0xffffffff}, v{r}"))
                        for tt in range(BP): F.add(rdW2(z+1, tt, 0, 0), rdW2(z+1, tt, 0, 1))
                    elif t >= BP: F.add(rdW2(z+1, t, 0, 0), rdW2(z+1, t, 0, 1))
            if p == 1:
                if kp == 0: F.add(*headbase(3))
                for mt in range(3): F.add(*ldO(3, kp*3 + mt))
    F.drain()
    stamp(a, cfg, 8)
    for mt in range(3):
        for t in range(9):
            r = acc2(mt, t)
            cvt(r, r, r+1)(); cvt(r+1, r+2, r+3)()
            a.ds_write("ds_write_b64", 12, r, 2, off=mt*16*RSTR + 32*t)
    a.waitcnt(lgkm=0)
    return regA, regB

def unpack_add(a, dst, src, first):
    for i in range(4):
        if first:
            a.v(f"v_lshlrev_b32 v{dst+2*i}, 16, v{src+i}")
            a.v(f"v_and_b32 v{dst+2*i+1}, 0xffff0000, v{src+i}")
        else:
            a.v(f"v_lshlrev_b32 v60, 16, v{src+i}")
            a.v(f"v_and_b32 v61, 0xffff0000, v{src+i}")
            a.v(f"v_add_f32 v{dst+2*i}, v{dst+2*i}, v60")
            a.v(f"v_add_f32 v{dst+2*i+1}, v{dst+2*i+1}, v61")

def tail(a, cfg, regA, regB, endlabel):
    for u in range(512): assert (u*3641) >> 16 == u // 18
    a.v("v_mul_u32_u24 v4, 3641, v0")
    a.v("v_lshrrev_b32 v4, 16, v4")
    a.v("v_mul_u32_u24 v5, 18, v4")
    a.v("v_sub_u32 v5, v0, v5")
    a.v(f"v_mul_u32_u24 v6, {RSTR}, v4")
    a.v("v_lshl_add_u32 v6, v5, 4, v6")
    a.v("v_mul_u32_u24 v7, 2304, v4")
    a.v("v_lshl_add_u32 v7, v5, 4, v7")
    a.v("v_lshlrev_b32 v3, 4, v0")
    a.v("v_and_b32 v1, 63, v0")
    a.v("v_lshlrev_b32 v11, 3, v1")
    a.v(f"v_mov_b32 v10, {LDS_NONCE}")
    lo = min(regA, regB); hi_off = abs(regB - regA)
    assert hi_off < 65536 or True
    for dl in range(4):
        a.s(f"s_add_u32 s76, s{S_KQ}, {dl}")
        a.s("s_and_b32 s76, s76, 3")
        a.s(f"s_mul_i32 s77, s76, {24*RSTR}")
        a.s(f"s_add_u32 s77, s77, {lo}")
        a.v(f"v_add_u32 v{12+dl}, s77, v6")
        a.s("s_and_b32 s77, s2, 0xfc")
        a.s("s_or_b32 s77, s77, s76")
        a.s("s_lshl_b32 s77, s77, 2")
        a.s(f"s_add_u32 s77, s77, s{S_KQ}")
        a.s("s_mul_i32 s77, s77, 6912")
        a.s(f"s_add_u32 s{88+dl}, s77, {WS_PART}")
        a.s("s_lshl_b32 s77, s2, 2")
        a.s("s_add_u32 s77, s77, s76")
        a.s("s_mul_i32 s77, s77, 6912")
        a.s(f"s_add_u32 s{92+dl}, s77, {WS_PART}")
    a.s("s_lshr_b32 s76, s2, 2")
    a.s("s_lshl_b32 s76, s76, 3")
    a.s(f"s_add_u32 s76, s76, s{S_W}")
    a.s("s_lshl_b32 s76, s76, 7")
    a.s(f"s_add_u32 s84, s76, {WS_FLAG2}")
    a.s(f"s_lshl_b32 s85, 1, s{S_KQ}")
    a.s("s_xor_b32 s86, s85, 15")
    a.s(f"s_mul_i32 s76, s{S_BP}, 96")
    a.s(f"s_mul_i32 s77, s{S_KQ}, 24")
    a.s("s_add_u32 s76, s76, s77")
    a.s("s_mul_i32 s76, s76, 2304")
    a.s(f"s_mul_i32 s77, s{S_BR}, 1152")
    a.s("s_add_u32 s76, s76, s77")
    a.s(f"s_mul_i32 s77, s{S_HP}, 288")
    a.s("s_add_u32 s87, s76, s77")
    a.s("s_movk_i32 s76, 432")
    a.v("v_cmp_gt_u32 s[78:79], s76, v0")
    a.barrier()
    a.s(f"s_cmp_eq_u32 s{S_W}, 7")
    a.s(f"s_cbranch_scc1 {endlabel}")
    stamp(a, cfg, 11)
    a.ds_read("ds_read_b64", 8, 2, 10)
    assert hi_off < 65536
    for dl in (1, 2, 3, 0):
        a.ds_read("ds_read_b128", 16 + 8*dl, 4, 12+dl)
        a.ds_read("ds_read_b128", 20 + 8*dl, 4, 12+dl, off=hi_off)
    a.s("s_mov_b64 exec, s[78:79]")
    for dl in (1, 2, 3):
        unpack_add(a, 48, 16 + 8*dl, True)
        unpack_add(a, 48, 20 + 8*dl, False)
        for i in range(4): a.v(f"v_cvt_pk_bf16_f32 v{64+4*dl+i}, v{48+2*i}, v{49+2*i}")
        a.bstore(64 + 4*dl, 4, 3, S_WS, f"s{88+dl}", flags="sc1")
    unpack_add(a, 48, 16, True)
    unpack_add(a, 48, 20, False)
    stamp(a, cfg, 12)
    a.waitcnt(vm=0)
    stamp(a, cfg, 13)
    a.s("s_mov_b32 exec_lo, s85"); a.s("s_mov_b32 exec_hi, 0")
    a.bstore(8, 2, 11, S_WS, "s84", flags="sc1")
    poll_flags(a, 62, 8, 11, 84, 86, 76)
    stamp(a, cfg, 14)
    a.s("s_mov_b64 exec, s[78:79]")
    for dl in (1, 2, 3): a.bload(16 + 4*dl, 4, 3, S_WS, f"s{92+dl}", flags="sc1")
    for dl in (1, 2, 3): unpack_add(a, 48, 16 + 4*dl, False)
    for i in range(4): a.v(f"v_cvt_pk_bf16_f32 v{64+i}, v{48+2*i}, v{49+2*i}")
    a.bstore(64, 4, 7, S_OUT, "s87")

def kernel(cfg):
    a = Asm()
    a.lcap = cfg.lcap
    stamp(a, cfg, 0)
    prologue(a, cfg, "L_end")
    a.s(f"s_cmp_lt_u32 s{S_W}, 4")
    a.s("s_cbranch_scc1 L_compute")
    loader(a, cfg)
    a.label("L_compute")
    a.reset_state()
    regA, regB = compute(a, cfg)
    stamp(a, cfg, 9)
    a.label("L_tail")
    a.reset_state()
    a.nop(4)
    tail(a, cfg, regA, regB, "L_end")
    if cfg.x_hold:
        a.v("v_readfirstlane_b32 s76, v8")
        a.label("L_hold")
        a.raw("    s_memrealtime s[78:79]")
        a.raw("    s_waitcnt lgkmcnt(0)")
        a.s("s_sub_u32 s77, s78, s76")
        a.s(f"s_cmp_lt_u32 s77, {cfg.x_hold}")
        a.s("s_cbranch_scc1 L_hold")
    if cfg.stamps: a.waitcnt(vm=0)
    stamp(a, cfg, 15)
    stamp_out(a, cfg)
    a.label("L_end")
    a.s("s_endpgm")
    return a

HEADER = open("cdna_kernels/" + NAME + ".s.ref").read().split("; Override launch")[0]

def build(cfg):
    n = NAME + "_kernel"
    a = kernel(cfg)
    return HEADER + f"""; @launch grid=(256,1,1) block=(512,1,1) lds=163840
.amdgcn_target "amdgcn-amd-amdhsa--gfx950"
.text
.globl {n}
.p2align 8
.type {n},@function
{n}:
{a.text()}
.section .rodata,"a"
.p2align 6
.amdhsa_kernel {n}
  .amdhsa_next_free_vgpr 256
  .amdhsa_next_free_sgpr 102
  .amdhsa_accum_offset 256
  .amdhsa_group_segment_fixed_size 0
  .amdhsa_kernarg_size 104
  .amdhsa_user_sgpr_count 2
  .amdhsa_user_sgpr_kernarg_segment_ptr 1
  .amdhsa_system_sgpr_workgroup_id_x 1
.end_amdhsa_kernel
"""

if __name__ == "__main__":
    cfg = Cfg()
    for kv in sys.argv[2:]:
        k, v = kv.split("=")
        cur = getattr(cfg, k)
        setattr(cfg, k, (v == "1") if isinstance(cur, bool) else int(v) if isinstance(cur, int) else v.replace("_", " "))
    open(sys.argv[1], "w").write(build(cfg))
```

```python
import sys, struct
from asm import *

NAME = "concat_heads__gqa_block_cached__mha_block_cached__near_ridge"
SL = 40960
KSTR, VSTR = 1040, 1056
KUNIT, VUNIT = 12*KSTR, 12*VSTR
KBASE = 0
VBASE_L = 4*KUNIT
WS_O = 0
WS_FLAG1 = 13 << 20
WS_FLAG2 = 14 << 20
WS_PART = 16 << 20
WS_STAMP = 15 << 20
WS_BYTES = 32 << 20
SC = 0.08838834764831845 * 1.4426950408889634
SPIN_MAX = 1 << 17
def f2u(x): return struct.unpack("<I", struct.pack("<f", x))[0]

S_X, S_K, S_V, S_WQ, S_WO, S_OUT, S_WS, S_DBG = 36, 40, 44, 48, 52, 56, 60, 64
S_BR, S_KQ, S_HL, S_BG, S_W, S_NT, S_E = 68, 69, 70, 71, 72, 98, 99

class Cfg:
    stamps = False; x_clk = False; lst = 0
    ld_x = ""; ld_wq = ""; ld_kv = ""; ld_wo = ""; st_out = ""
    skew = 3; prio = 0; lcap = 8; barpos = 3
    el = 1; pollpos = 2; ctouch = 2; e_wo = 1; l_wo = 0; prog = 1; touch = 0; tpos = 3; wo2 = 2; flagpos = 0

NST = 16
def streg(i): return 4 if i == 0 else 8 + 2*(i-1) if i <= 13 else {14: 34, 15: 100}[i]
def stamp(a, cfg, i):
    if cfg.stamps:
        r = streg(i)
        a.raw(f"    {'s_memtime' if cfg.x_clk else 's_memrealtime'} s[{r}:{r+1}]"); a.pos += 1
def stamp_out(a, cfg):
    if not cfg.stamps: return
    a.raw("    s_waitcnt lgkmcnt(0)")
    a.s("s_mov_b64 exec, 1")
    a.s("s_lshl_b32 s3, s2, 3")
    a.s(f"s_add_u32 s3, s3, s{S_W}")
    a.s("s_lshl_b32 s3, s3, 6")
    a.s(f"s_add_u32 s3, s3, {WS_STAMP}")
    a.v("v_mov_b32 v1, 0")
    for i in range(NST):
        a.v(f"v_mov_b32 v2, s{streg(i)}")
        a.bstore(2, 1, 1, S_WS, "s3", off=4*i)
        a.nop(2)

def srd(a, base, lo, hi, size):
    a.s(f"s_mov_b32 s{base}, s{lo}")
    a.s(f"s_mov_b32 s{base+1}, s{hi}")
    a.s(f"s_mov_b32 s{base+2}, {size}")
    a.s(f"s_mov_b32 s{base+3}, 0x20000")

def prologue(a, cfg, endlabel):
    a.s("s_cmp_ge_u32 s2, 256")
    a.s(f"s_cbranch_scc1 {endlabel}")
    a.raw("    s_load_dwordx16 s[8:23], s[0:1], 0")
    a.raw("    s_load_dwordx8 s[24:31], s[0:1], 64")
    a.raw("    s_load_dwordx2 s[32:33], s[0:1], 96")
    a.v("v_and_b32 v1, 63, v0")
    a.v("v_lshrrev_b32 v15, 6, v0")
    a.s(f"s_and_b32 s{S_KQ}, s2, 3")
    a.s(f"s_bfe_u32 s{S_BR}, s2, 0x10002")
    a.s(f"s_bfe_u32 s{S_HL}, s2, 0x30003")
    a.s(f"s_lshr_b32 s{S_BG}, s2, 6")
    a.s(f"s_and_b32 s{S_NT}, s{S_HL}, 3")
    a.v(f"v_readfirstlane_b32 s{S_W}, v15")
    if cfg.el:
        a.s(f"s_lshr_b32 s{S_E}, s{S_HL}, 2")
        a.s(f"s_xor_b32 s{S_E}, s{S_E}, s{S_BG}")
        a.s(f"s_and_b32 s{S_E}, s{S_E}, 1")
    else:
        a.s(f"s_mov_b32 s{S_E}, 0")

def build_srds(a, keys):
    a.raw("    s_waitcnt lgkmcnt(0)")
    a.s(f"s_cmp_eq_u32 s{S_BR}, 0")
    for (dst, pa, pb, key) in ((S_WQ, 14, 24, 'wq'), (S_X, 8, 18, 'x'), (S_K, 10, 20, 'k'), (S_V, 12, 22, 'v'), (S_WO, 16, 26, 'wo')):
        if key not in keys: continue
        a.s(f"s_cselect_b64 s[{dst}:{dst+1}], s[{pa}:{pa+1}], s[{pb}:{pb+1}]")
        if key in ('k', 'v'):
            a.s(f"s_mov_b32 s{dst+2}, 6291456")
            a.s(f"s_cselect_b32 s{dst+2}, 3145728, s{dst+2}")
        else:
            a.s(f"s_mov_b32 s{dst+2}, {884736 if key == 'x' else 4718592}")
        a.s(f"s_mov_b32 s{dst+3}, 0x20000")
    if 'o' in keys:
        srd(a, S_OUT, 28, 29, 1769472)
        srd(a, S_DBG, 30, 31, 256)
        srd(a, S_WS, 32, 33, WS_BYTES)

def head_order(a, p, sd):
    if p == 0: a.s(f"s_mov_b32 s{sd}, s{S_NT}")
    else:
        a.s(f"s_cmp_le_u32 s{S_NT}, {p-1}"); a.s(f"s_cselect_b32 s{sd}, {p}, {p-1}")

_lbl = [0]
def newlabel(p):
    _lbl[0] += 1
    return f"L{p}_{_lbl[0]}"

def poll_flags(a, vdata, vnonce, voff, soff, mask, stmp):
    L = newlabel("poll"); X = newlabel("pollx")
    a.s(f"s_mov_b32 exec_lo, {mask}")
    a.s("s_mov_b32 exec_hi, 0")
    a.s(f"s_mov_b32 s{stmp}, 0")
    a.label(L)
    a.bload(vdata, 2, voff, S_WS, f"s{soff}", flags="sc1")
    a.s(f"s_add_u32 s{stmp}, s{stmp}, 1")
    a.s(f"s_cmp_gt_u32 s{stmp}, {SPIN_MAX}")
    a.waitcnt(vm=0)
    a.s(f"s_cbranch_scc1 {X}")
    a.v(f"v_cmp_ne_u64 vcc, v[{vdata}:{vdata+1}], v[{vnonce}:{vnonce+1}]")
    a.s(f"s_cbranch_vccnz {L}")
    a.label(X)
    a.s("s_mov_b64 exec, -1")

def nonce_check(a, vzero):
    Lok = newlabel("nok"); Lsp = newlabel("nsp")
    a.s("s_mov_b32 s77, 0")
    a.v("v_readfirstlane_b32 s76, v8")
    a.label(Lsp)
    a.s("s_cmp_lg_u32 s76, 0")
    a.s(f"s_cbranch_scc1 {Lok}")
    a.s("s_add_u32 s77, s77, 1")
    a.s(f"s_cmp_gt_u32 s77, {SPIN_MAX}")
    a.s(f"s_cbranch_scc1 {Lok}")
    a.raw(f"    buffer_load_dwordx2 v[8:9], v{vzero}, s[{S_DBG}:{S_DBG+3}], 0 offen sc1")
    a.raw("    s_waitcnt vmcnt(0)")
    a.raw("    v_readfirstlane_b32 s76, v8")
    a.raw("    s_nop 0")
    a.s(f"s_branch {Lsp}")
    a.label(Lok)

def unit_base(a, sd, sb_w, shead):
    a.s(f"s_lshl_b32 s76, s{S_BR}, 4")
    a.s(f"s_lshl_b32 s77, s{S_BG}, 2")
    a.s("s_add_u32 s76, s76, s77")
    a.s(f"s_add_u32 s76, s76, s{sb_w}")
    a.s("s_lshl_b32 s76, s76, 5")
    a.s(f"s_add_u32 s76, s76, s{shead}")
    a.s(f"s_mul_i32 s{sd}, s76, 12288")

def tail_ssetup(a, sw, half):
    a.s(f"s_lshr_b32 s90, s{S_HL}, 2")
    a.s(f"s_lshl_b32 s76, s{S_KQ}, 1")
    a.s("s_add_u32 s90, s90, s76")
    a.s(f"s_add_u32 s89, s90, {8*half}")
    a.s(f"s_lshl_b32 s91, s{S_BR}, 2")
    a.s(f"s_add_u32 s91, s91, s{S_BG}")
    a.s("s_lshl_b32 s91, s91, 2")
    a.s(f"s_add_u32 s91, s91, s{S_NT}")
    a.s("s_lshl_b32 s91, s91, 2")
    a.s(f"s_add_u32 s91, s91, s{sw}")
    a.s("s_lshl_b32 s76, s91, 7")
    a.s(f"s_add_u32 s96, s76, {WS_FLAG2}")
    a.s("s_lshl_b32 s92, s91, 17")
    a.s(f"s_add_u32 s92, s92, {WS_PART}")
    a.s("s_lshl_b32 s76, s89, 13")
    a.s("s_add_u32 s88, s92, s76")
    a.s("s_lshl_b32 s76, s90, 10")
    a.s("s_add_u32 s92, s92, s76")
    a.s("s_mul_i32 s76, s89, 43")
    a.s("s_lshr_b32 s76, s76, 7")
    a.s("s_mul_i32 s77, s76, 3")
    a.s("s_sub_u32 s77, s89, s77")
    a.s("s_lshl_b32 s87, s76, 6")
    a.s(f"s_mul_i32 s77, s77, {16*2304}")
    a.s("s_add_u32 s87, s87, s77")
    a.s(f"s_lshl_b32 s77, s{S_BG}, 2")
    a.s(f"s_add_u32 s77, s77, s{sw}")
    a.s(f"s_mul_i32 s77, s77, {48*2304}")
    a.s("s_add_u32 s87, s87, s77")
    a.s(f"s_mul_i32 s77, s{S_BR}, 1152")
    a.s("s_add_u32 s87, s87, s77")
    a.s(f"s_mul_i32 s77, s{S_NT}, 288")
    a.s("s_add_u32 s87, s87, s77")
    a.s("s_cmp_lt_u32 s89, 12")
    a.s("s_cselect_b32 s78, -1, 0xffff")
    a.s("s_mov_b32 s79, s78")
    for u in range(16): assert (u*43) >> 7 == u//3

def tail_vsetup(a):
    return [lambda t=t: a.v(t) for t in (
        "v_and_b32 v4, 15, v1", "v_mul_u32_u24 v4, 2304, v4", "v_bfe_u32 v5, v1, 4, 1", "v_lshl_add_u32 v4, v5, 5, v4",
        "v_lshrrev_b32 v5, 5, v1", "v_lshl_add_u32 v4, v5, 4, v4")]

def loader(a, cfg):
    a.s(f"s_sub_u32 s73, s{S_W}, 4")
    a.s("s_and_b32 s74, s73, 1")
    a.s("s_lshr_b32 s75, s73, 1")
    a.s(f"s_lshl_b32 s95, s{S_KQ}, 3")
    a.s(f"s_add_u32 s95, s95, s{S_HL}")
    a.v("v_lshrrev_b32 v4, 4, v1")
    a.s("s_lshl_b32 s76, s75, 2")
    a.v("v_or_b32 v5, s76, v4")
    a.v("v_bfe_u32 v6, v1, 1, 3")
    a.v("v_xor_b32 v6, v6, v5")
    a.v("v_lshlrev_b32 v6, 5, v6")
    a.v("v_and_b32 v7, 1, v1")
    a.v("v_lshl_add_u32 v6, v7, 4, v6")
    a.v("v_lshl_add_u32 v2, v4, 13, v6")
    a.s("s_lshl_b32 s76, s73, 15")
    a.s("s_lshl_b32 s77, s95, 8")
    a.s("s_add_u32 s76, s76, s77")
    a.v("v_add_u32 v2, s76, v2")
    a.v("v_lshlrev_b32 v5, 2, v4")
    a.v("v_and_b32 v6, 15, v1")
    a.v("v_xor_b32 v6, v6, v5")
    a.v("v_lshlrev_b32 v6, 4, v6")
    a.v("v_lshl_add_u32 v10, v4, 8, v6")
    a.s("s_lshl_b32 s76, s74, 2")
    a.v("v_or_b32 v5, s76, v4")
    a.v("v_lshrrev_b32 v4, 3, v1")
    a.v("v_mul_u32_u24 v4, 1152, v4")
    a.v("v_and_b32 v6, 7, v1")
    a.v("v_xor_b32 v6, v6, v5")
    a.v("v_lshl_add_u32 v3, v6, 4, v4")
    a.s(f"s_mul_i32 s76, s{S_BG}, {192*1152}")
    a.s(f"s_mul_i32 s77, s74, {8*1152}")
    a.s("s_add_u32 s76, s76, s77")
    a.s(f"s_mul_i32 s77, s75, {96*1152}")
    a.s("s_add_u32 s76, s76, s77")
    a.v("v_add_u32 v3, s76, v3")
    a.s("s_lshl_b32 s78, s73, 10")
    a.s("s_mul_i32 s79, s75, 12288")
    a.s("s_lshl_b32 s77, s74, 10")
    a.s("s_add_u32 s79, s79, s77")
    a.s("s_add_u32 s79, s79, 16384")
    a.s(f"s_lshl_b32 s76, s{S_BG}, 2")
    a.s("s_add_u32 s76, s76, s73")
    a.s("s_lshl_b32 s76, s76, 5")
    a.s("s_add_u32 s76, s76, s95")
    a.s(f"s_xor_b32 s77, s{S_BR}, 1")
    a.s("s_lshr_b32 s76, s76, s77")
    a.s("s_mul_i32 s80, s76, 12288")
    a.s(f"s_mul_i32 s91, s73, {KUNIT}")
    a.s(f"s_add_u32 s91, s91, {KBASE}")
    a.s(f"s_mul_i32 s92, s73, {VUNIT}")
    if cfg.skew == 3:
        a.s(f"s_add_u32 s84, s{S_HL}, s{S_BG}")
        a.s("s_mul_i32 s85, s84, 43")
        a.s("s_lshr_b32 s85, s85, 7")
        a.s("s_mul_i32 s85, s85, 3")
        a.s("s_sub_u32 s84, s84, s85")
        a.s("s_mul_i32 s84, s84, 3")
    elif cfg.skew == 4:
        a.s(f"s_add_u32 s84, s{S_HL}, s{S_BG}")
        a.s("s_and_b32 s84, s84, 3")
        a.s("s_lshl_b32 s84, s84, 1")
    elif cfg.skew == 2:
        a.s(f"s_lshr_b32 s84, s{S_BG}, 1")
        a.s(f"s_xor_b32 s84, s84, s{S_HL}")
        a.s("s_and_b32 s84, s84, 1")
        a.s("s_lshl_b32 s84, s84, 2")
    elif cfg.skew == 9:
        a.s(f"s_lshl_b32 s84, s{S_BG}, 1")
        a.s(f"s_add_u32 s84, s84, s{S_HL}")
        a.s("s_sub_u32 s85, s84, 9")
        a.s("s_cmp_ge_u32 s84, 9")
        a.s("s_cselect_b32 s84, s85, s84")
    else:
        a.s("s_mov_b32 s84, 0")
    build_srds(a, ('x', 'wq', 'k'))
    def stage(s):
        slot = (1 + s % 3) * SL
        a.s("s_lshl_b32 s85, s84, 7")
        a.s("s_lshl_b32 s86, s84, 19")
        for i in range(4):
            a.s(f"s_add_u32 m0, s78, {slot + i*4096}")
            a.s(f"s_add_u32 s82, s86, {16*i*8192}")
            a.dma(2, S_WQ, "s82", cfg.ld_wq, tag=("st", s))
        for z in range(6):
            a.s(f"s_add_u32 m0, s79, {slot + z*2048}")
            a.s(f"s_add_u32 s82, s85, {z*16*1152}")
            a.dma(3, S_X, "s82", cfg.ld_x, tag=("st", s))
        a.s("s_add_u32 s84, s84, 1")
        a.s("s_cmp_eq_u32 s84, 9")
        a.s("s_cselect_b32 s84, 0, s84")
    def kvpart(g, srdb, sm0, stride, lo, hi, base=0):
        for i in range(lo, hi):
            a.s(f"s_add_u32 m0, s{sm0}, {base + i*stride}")
            a.s(f"s_add_u32 s82, s80, {i*1024}")
            a.dma(10, srdb, "s82", cfg.ld_kv, tag=("st", g))
    def codetouch():
        a.s("s_mov_b64 exec, 3")
        a.raw("    global_load_dword v24, v25, s[6:7]"); a.pos += 1
        a.vm.append((None, "touch"))
        a.s("s_mov_b64 exec, -1")
    def setup2():
        if cfg.ctouch:
            L = newlabel("pc")
            a.raw("    s_getpc_b64 s[6:7]")
            a.label(L)
            a.s(f"s_sub_u32 s6, s6, {L}-{NAME}_kernel")
            a.s("s_subb_u32 s7, s7, 0")
            a.s("s_lshr_b32 s76, s2, 3")
            a.s("s_lshl_b32 s76, s76, 2")
            a.s("s_add_u32 s76, s76, s73")
            a.s("s_lshl_b32 s76, s76, 8")
            a.v("v_lshlrev_b32 v25, 7, v1")
            a.v("v_add_u32 v25, s76, v25")
            a.s("s_mov_b32 s77, L_code_end-" + NAME + "_kernel-4")
            a.v("v_min_u32 v25, s77, v25")
            codetouch()
        build_srds(a, ('v', 'wo', 'o'))
        stamp(a, cfg, 1)
        a.v("v_mov_b32 v16, 0")
        L = newlabel("nw")
        a.s("s_add_u32 s76, s2, s73")
        a.s("s_cmp_lg_u32 s76, 0")
        a.s(f"s_cbranch_scc1 {L}")
        a.raw("    s_memrealtime s[88:89]")
        a.raw("    s_waitcnt lgkmcnt(0)")
        a.s("s_or_b32 s88, s88, 1")
        a.v("v_mov_b32 v18, s88")
        a.v("v_mov_b32 v19, s89")
        a.s("s_mov_b64 exec, 1")
        a.raw(f"    buffer_store_dwordx2 v[18:19], v16, s[{S_DBG}:{S_DBG+3}], 0 offen sc1")
        a.s("s_mov_b64 exec, -1")
        a.label(L)
    def setup3():
        a.s("s_and_b32 s76, s95, 0xfc")
        a.s("s_lshl_b32 s76, s76, 7")
        a.s("s_lshl_b32 s77, s73, 5")
        a.s("s_add_u32 s76, s76, s77")
        a.s("s_mul_i32 s76, s76, 1152")
        a.s(f"s_mul_i32 s77, s{S_NT}, 288")
        a.s("s_and_b32 s77, s77, 0xffffffc0")
        a.s("s_add_u32 s76, s76, s77")
        for y in range(5):
            a.v(f"v_add_u32 v4, {y*64}, v1")
            a.v("v_mul_u32_u24 v5, 3277, v4")
            a.v("v_lshrrev_b32 v5, 16, v5")
            a.v("v_mul_u32_u24 v6, 20, v5")
            a.v("v_sub_u32 v6, v4, v6")
            a.v("v_bfe_u32 v7, v5, 2, 1")
            a.v("v_lshlrev_b32 v7, 1, v7")
            a.v("v_xor_b32 v6, v6, v7")
            a.v("v_mul_u32_u24 v5, 1152, v5")
            a.v("v_lshl_add_u32 v5, v6, 4, v5")
            a.v(f"v_add_u32 v{26+y}, s76, v5")
        a.s("s_mul_i32 s93, s73, 10240")
        a.v("v_lshlrev_b32 v22, 7, v1")
        a.s("s_lshr_b32 s76, s2, 3")
        a.s("s_lshl_b32 s76, s76, 2")
        a.s("s_add_u32 s76, s76, s73")
        a.s(f"s_mul_i32 s76, s76, {72*128}")
        a.s(f"s_mul_i32 s94, s{S_KQ}, {1024*1152}")
        a.s("s_add_u32 s94, s94, s76")
    def touches():
        a.s("s_mov_b32 exec_lo, -1"); a.s("s_mov_b32 exec_hi, 15")
        for i in range(2):
            a.bload(23, 1, 22, S_WO, "s94", tag="touch"); a.vm[-1] = (None, "touch")
            a.s(f"s_add_u32 s94, s94, {36*128}")
        a.s("s_mov_b64 exec, -1")
    def wostage(p, start):
        head_order(a, p, 83)
        a.s(f"s_mul_i32 s83, s83, {128*1152}")
        for z2 in range(2):
            a.s(f"s_add_u32 s82, s83, {z2*16*1152}")
            for y in range(5):
                a.s(f"s_add_u32 m0, s93, {((start + p) % 4)*SL + z2*5120 + y*1024}")
                a.dma(26+y, S_WO, "s82", cfg.ld_wo, tag=("st", 11+p))
    def main(early):
        cnt = [0]
        def st(i):
            if not cfg.lst: stamp(a, cfg, i)
        W = lambda g: a.wait_vm_tag(("st", g))
        def B():
            k = cnt[0] - cfg.lst
            if cfg.lst and 0 <= k < 5: stamp(a, cfg, 1 + 2*k)
            a.barrier()
            if cfg.lst and 0 <= k < 5: stamp(a, cfg, 2 + 2*k)
            cnt[0] += 1
        start = 2 if early else 3
        vb = 0 if early else VBASE_L
        if early:
            kvpart(9, S_K, 91, KSTR, 0, 12, 2*SL)
            setup2()
            stage(0)
            setup3()
            W(9); st(2); a.barrier()
            a.barrier()
            stage(1)
        else:
            stage(0)
            setup2()
            stage(1)
            setup3()
            st(2)
        for g in range(7):
            W(g)
            if g == 0: st(3)
            if g == 3: st(4)
            B()
            if g == 4:
                if cfg.ctouch > 1: codetouch()
            stage(g + 2)
            if cfg.touch and g == cfg.tpos: touches()
        W(7); B()
        if early: kvpart(10, S_V, 92, VSTR, 0, 7, vb)
        else: kvpart(9, S_K, 91, KSTR, 0, 7)
        W(8); st(5); B()
        if early:
            kvpart(10, S_V, 92, VSTR, 7, 12, vb)
        else:
            kvpart(9, S_K, 91, KSTR, 7, 12)
            kvpart(10, S_V, 92, VSTR, 0, 7, vb)
        W(9); st(6); B()
        nw = cfg.e_wo if early else cfg.l_wo
        nz = [0]
        def upto(z):
            while nz[0] <= min(z, 3): wostage(nz[0], start); nz[0] += 1
        if not early: kvpart(10, S_V, 92, VSTR, 7, 12, vb)
        if cfg.touch and cfg.tpos == 9: touches()
        if early: upto(nw - 1)
        W(10); st(7)
        if not early and nw: upto(0)
        B()
        if not early and nw > 1: upto(1)
        B()
        upto(0)
        if cfg.ctouch > 1: codetouch()
        W(11); st(8); B()
        upto(max(1, nz[0] - 1 + cfg.wo2))
        W(12); st(9); B()
        upto(max(2, nz[0]))
        W(13); B()
        upto(3)
        W(14); st(10); B()
        a.v("v_lshlrev_b32 v14, 4, v1")
        for f in tail_vsetup(a): f()
        tail_ssetup(a, 73, 1)
        a.s("s_branch L_tail")
    if cfg.el:
        a.s(f"s_cmp_eq_u32 s{S_E}, 1")
        a.s("s_cbranch_scc1 L_early")
        main(False)
        a.label("L_early")
        a.reset_state()
        main(True)
    else:
        main(False)

def xlane_reduce(a, op, regs, tmps):
    for sw in ("v_permlane32_swap_b32", "v_permlane16_swap_b32"):
        for r, t in zip(regs, tmps): a.v(f"v_mov_b32 v{t}, v{r}")
        for r, t in zip(regs, tmps): a.v(f"{sw} v{r}, v{t}")
        for r, t in zip(regs, tmps): a.v(f"{op} v{r}, v{r}, v{t}")

class Fill:
    def __init__(self): self.q = []
    def add(self, *fs): self.q.extend(fs)
    def pop(self, n):
        for _ in range(n):
            if self.q: self.q.pop(0)()
    def drain(self): self.pop(len(self.q))

def compute(a, cfg):
    ACC = 16; WF = 112; XF = 144; KF = 168; AS = 216; VF = 112
    accQ = lambda t, mt: ACC + (t*3 + mt)*4
    Wf = lambda t: WF + 4*t
    Xf = lambda par, mt: XF + par*12 + mt*4
    Kf = lambda kt, kp: KF + (kt*4 + kp)*4
    accS = lambda kt, mt: AS + (kt*3 + mt)*4
    Vf = lambda t: VF + 6*t
    accO = lambda mt, t: ACC + (mt*8 + t)*4
    aW = lambda st_, t: 216 + st_*10 + t
    aX = lambda st_, ks: 216 + st_*10 + 8 + ks
    aK = lambda kp: 252 + kp
    aV = lambda th: 2 + th
    R = [13, 15]
    ofA = lambda kp, mt: 168 + (kp*3 + mt)*4
    def ofB(kp, mt):
        f = kp*3 + mt
        return 216 + f*4 if f < 10 else 160 + (f - 10)*4
    of = lambda buf, kp, mt: ofB(kp, mt) if buf else ofA(kp, mt)
    acc2 = lambda mt, t: 16 + (mt*9 + t)*4
    Wf2 = lambda i: 124 + 4*i

    if cfg.prio: a.s(f"s_setprio {cfg.prio}")
    a.v("v_lshrrev_b32 v160, 4, v1")
    a.v("v_bfe_u32 v161, v1, 2, 2")
    a.v("v_and_b32 v162, 3, v1")
    a.v("v_and_b32 v163, 15, v1")
    a.v("v_and_b32 v165, 1, v160")
    a.s(f"s_mul_i32 s76, s{S_W}, {KUNIT}")
    a.s(f"s_mul_i32 s77, s{S_E}, {2*SL}")
    a.s("s_add_u32 s76, s76, s77")
    a.v(f"v_mul_u32_u24 v164, {KSTR}, v161")
    a.v("v_lshl_add_u32 v164, v162, 8, v164")
    a.v("v_lshl_add_u32 v164, v160, 3, v164")
    a.v("v_add_u32 v164, s76, v164")
    for kp in range(4):
        a.v(f"v_xor_b32 v167, {kp}, v162")
        a.v(f"v_lshl_add_u32 v{aK(kp)}, v167, 6, v164")
    a.v("v_lshl_add_u32 v164, v160, 3, v161")
    a.v("v_lshlrev_b32 v164, 8, v164")
    a.v("v_lshl_or_b32 v166, v165, 2, v161")
    a.v("v_lshl_add_u32 v164, v166, 5, v164")
    a.v("v_lshl_add_u32 v164, v162, 3, v164")
    a.v(f"v_add_u32 v{aW(0,0)}, {SL}, v164")
    for t in range(1, 8): a.v(f"v_xor_b32 v{aW(0,t)}, {32*t}, v{aW(0,0)}")
    a.v("v_lshrrev_b32 v164, 1, v163")
    a.v("v_xor_b32 v164, v164, v160")
    a.v("v_lshlrev_b32 v164, 4, v164")
    a.v("v_lshl_add_u32 v164, v163, 7, v164")
    a.s(f"s_mul_i32 s76, s{S_W}, 6144")
    a.s(f"s_add_u32 s76, s76, {16384 + SL}")
    a.v(f"v_add_u32 v{aX(0,0)}, s76, v164")
    a.v(f"v_xor_b32 v{aX(0,1)}, 64, v{aX(0,0)}")
    for i in range(10): a.v(f"v_add_u32 v{226+i}, {2*SL}, v{216+i}")
    a.s(f"s_mul_i32 s76, s{S_W}, {VUNIT}")
    a.s(f"s_cmp_eq_u32 s{S_E}, 1")
    a.s(f"s_cselect_b32 s77, 0, {VBASE_L}")
    a.s("s_add_u32 s76, s76, s77")
    a.v(f"v_mul_u32_u24 v164, {VSTR}, v160")
    a.v("v_lshl_add_u32 v164, v161, 8, v164")
    a.v("v_lshl_add_u32 v164, v162, 3, v164")
    a.v("v_add_u32 v164, s76, v164")
    for th in range(4):
        a.v(f"v_xor_b32 v167, {th}, v161")
        a.v(f"v_lshl_add_u32 v{aV(th)}, v167, 6, v164")
    a.v("v_lshl_add_u32 v164, v160, 2, v161")
    a.v("v_mul_u32_u24 v164, 320, v164")
    a.v("v_lshl_add_u32 v164, v162, 3, v164")
    a.s(f"s_cmp_eq_u32 s{S_E}, 1")
    a.s(f"s_mov_b32 s76, {3*SL}")
    a.s(f"s_cselect_b32 s76, {2*SL}, s76")
    a.s(f"s_mov_b32 s93, {SL}")
    a.s(f"s_cselect_b32 s93, s93, {(-3*SL) & 0xffffffff}")
    a.s(f"s_mov_b32 s94, {SL}")
    a.s(f"s_cselect_b32 s94, {(-3*SL) & 0xffffffff}, s94")
    a.s(f"s_mov_b32 s95, {SL}")
    a.v("v_add_u32 v164, s76, v164")
    a.s(f"s_and_b32 s77, s{S_NT}, 1")
    a.v("v_xor_b32 v167, s77, v165")
    a.v(f"v_lshl_add_u32 v{R[0]}, v167, 5, v164")
    a.s("s_add_u32 s77, s77, 1")
    a.v("v_xor_b32 v167, s77, v165")
    a.v(f"v_lshl_add_u32 v{R[1]}, v167, 5, v164")
    a.v("v_lshlrev_b32 v14, 4, v1")
    a.v("v_lshlrev_b32 v11, 3, v1")
    a.v("v_mov_b32 v10, 0")
    a.s(f"s_lshl_b32 s81, s{S_KQ}, 3")
    a.s(f"s_and_b32 s82, s{S_HL}, 4")
    a.s("s_add_u32 s81, s81, s82")
    unit_base(a, 80, S_W, 81)
    a.s(f"s_mov_b32 s83, {f2u(SC)}")
    a.s("s_and_b32 s76, s2, 7")
    a.s("s_lshr_b32 s77, s2, 5")
    a.s("s_lshl_b32 s77, s77, 3")
    a.s("s_or_b32 s76, s76, s77")
    a.s("s_lshl_b32 s76, s76, 2")
    a.s(f"s_add_u32 s76, s76, s{S_W}")
    a.s("s_lshl_b32 s76, s76, 7")
    a.s(f"s_add_u32 s84, s76, {WS_FLAG1}")
    a.s(f"s_lshl_b32 s85, 1, s{S_NT}")
    a.s("s_xor_b32 s86, s85, 15")
    tail_ssetup(a, S_W, 0)
    a.s("s_lshl_b32 s97, 1, s90")
    build_srds(a, ('o',))

    ver = {}
    def rdW(s, t, ks, h):
        def f():
            a.ds_read("ds_read_b64_tr_b16", Wf(t)+2*h, 2, aW((s % 3) >> 1, t), off=((s % 3) & 1)*SL + ks*8192 + h*1024); ver[("W", t, h)] = (s, ks)
        return f
    def rdX(s, mt, ks):
        def f():
            a.ds_read("ds_read_b128", Xf(ks, mt), 4, aX((s % 3) >> 1, ks), off=((s % 3) & 1)*SL + mt*2048); ver[("X", ks, mt)] = s
        return f
    def chk1(s, ks, t, mt):
        assert ver[("W", t, 0)] == (s, ks) and ver[("W", t, 1)] == (s, ks) and ver[("X", ks, mt)] == s, (s, ks, t, mt)
    def readK():
        for kp in range(4):
            for kt in range(3):
                for e in range(2): a.ds_read("ds_read_b64", Kf(kt, kp)+2*e, 2, aK(kp), off=kt*4*KSTR + 32*e)
    def cvt(d, s0, s1):
        return lambda: a.v(f"v_cvt_pk_bf16_f32 v{d}, v{s0}, v{s1}")
    def cvtQ(kp):
        out = []
        for mt in range(3):
            r = accQ(2*kp, mt); s_ = accQ(2*kp+1, mt)
            out += [cvt(r, r, r+1), cvt(r+1, r+2, r+3), cvt(r+2, s_, s_+1), cvt(r+3, s_+2, s_+3)]
        return out
    F = Fill()
    stamp(a, cfg, 1)
    if cfg.el:
        a.s(f"s_cmp_eq_u32 s{S_E}, 0")
        a.s("s_cbranch_scc1 L_noK0")
        a.barrier()
        readK()
        a.waitcnt(lgkm=0)
        a.barrier()
        a.label("L_noK0")
    a.barrier()
    stamp(a, cfg, 2)
    for mt in range(3): rdX(0, mt, 0)()
    for t in range(8): rdW(0, t, 0, 0)(); rdW(0, t, 0, 1)()
    BP = cfg.barpos
    for s in range(9):
        last = s == 8
        for mt in range(3): F.add(rdX(s, mt, 1))
        for t in range(8):
            for mt in range(3):
                chk1(s, 0, t, mt)
                a.mfma(accQ(t, mt), Wf(t), Xf(0, mt), None if s == 0 else accQ(t, mt))
                F.pop(2 if len(F.q) > 2 else 1)
            F.add(rdW(s, t, 1, 0), rdW(s, t, 1, 1))
        for t in range(8):
            for mt in range(3):
                chk1(s, 1, t, mt)
                a.mfma(accQ(t, mt), Wf(t), Xf(1, mt), accQ(t, mt))
                F.pop(2 if len(F.q) > 2 else 1)
            if last:
                if t in (3, 5, 7): F.add(*cvtQ((t - 3)//2))
            elif t == BP - 1:
                assert not F.q
                a.waitcnt(lgkm=0)
                a.barrier()
                F.add(rdX(s+1, 0, 0), rdW(s+1, 0, 0, 0), rdW(s+1, 0, 0, 1), rdX(s+1, 1, 0), rdX(s+1, 2, 0))
                for tt in range(1, BP): F.add(rdW(s+1, tt, 0, 0), rdW(s+1, tt, 0, 1))
            elif t >= BP:
                F.add(rdW(s+1, t, 0, 0), rdW(s+1, t, 0, 1))
    a.waitcnt(lgkm=0)
    a.barrier()
    stamp(a, cfg, 3)
    a.bload(8, 2, 10, S_DBG, "0", flags="sc1", tag="nonce")
    if cfg.el:
        a.s(f"s_cmp_eq_u32 s{S_E}, 1")
        a.s("s_cbranch_scc1 L_noK1")
    readK()
    if cfg.el: a.label("L_noK1")
    F.drain()
    for f in cvtQ(3): f()
    for kp in range(4):
        for kt in range(3):
            for mt in range(3):
                a.mfma(accS(kt, mt), Kf(kt, kp), accQ(2*kp, mt), None if kp == 0 else accS(kt, mt))
    MX = [160, 161, 162]; TM = [163, 164, 165]; SM = [166, 167, 6]
    vals = lambda mt: [accS(kt, mt) + r for kt in range(3) for r in range(4)]
    for mt in range(3):
        v = vals(mt); a.v(f"v_max3_f32 v{MX[mt]}, v{v[0]}, v{v[1]}, v{v[2]}")
    for i in range(3, 11, 2):
        for mt in range(3):
            v = vals(mt); a.v(f"v_max3_f32 v{MX[mt]}, v{MX[mt]}, v{v[i]}, v{v[i+1]}")
    for mt in range(3):
        v = vals(mt); a.v(f"v_max_f32 v{MX[mt]}, v{MX[mt]}, v{v[11]}")
    xlane_reduce(a, "v_max_f32", MX, TM)
    for mt in range(3): a.v(f"v_mul_f32 v{MX[mt]}, s83, v{MX[mt]}")
    for i in range(12):
        for mt in range(3):
            v = vals(mt); a.v(f"v_fma_f32 v{v[i]}, v{v[i]}, s83, -v{MX[mt]}")
    for i in range(12):
        for mt in range(3):
            v = vals(mt); a.v(f"v_exp_f32 v{v[i]}, v{v[i]}")
    for mt in range(3):
        v = vals(mt); a.v(f"v_add_f32 v{SM[mt]}, v{v[0]}, v{v[1]}")
    for i in range(2, 12):
        for mt in range(3):
            v = vals(mt); a.v(f"v_add_f32 v{SM[mt]}, v{SM[mt]}, v{v[i]}")
    xlane_reduce(a, "v_add_f32", SM, TM)
    for mt in range(3): a.v(f"v_rcp_f32 v{SM[mt]}, v{SM[mt]}")
    a.barrier()
    for t in range(8):
        for kt in range(3):
            F.add(lambda t=t, kt=kt: a.ds_read("ds_read_b64_tr_b16", Vf(t) + 2*kt, 2, aV(t >> 1), off=kt*4*VSTR + (t & 1)*32))
    for i in range(12):
        for mt in range(3):
            v = vals(mt); a.v(f"v_mul_f32 v{v[i]}, v{v[i]}, v{SM[mt]}"); F.pop(1)
    for mt in range(3):
        r0, r1, r2 = accS(0, mt), accS(1, mt), accS(2, mt)
        for f in (cvt(r0, r0, r0+1), cvt(r0+1, r0+2, r0+3), cvt(r0+2, r1, r1+1), cvt(r0+3, r1+2, r1+3), cvt(r2, r2, r2+1), cvt(r2+1, r2+2, r2+3)): f()
    stamp(a, cfg, 4)
    nonce_check(a, 10)
    a.s(f"s_mul_i32 s81, s{S_NT}, 12288")
    a.s("s_add_u32 s81, s81, s80")
    def ostore(mt, kp):
        r = accO(mt, 2*kp); s_ = accO(mt, 2*kp+1); d = ofA(kp, mt); f = kp*3 + mt
        return [cvt(d, r, r+1), cvt(d+1, r+2, r+3), cvt(d+2, s_, s_+1), cvt(d+3, s_+2, s_+3),
                lambda: a.s(f"s_add_u32 s82, s81, {(f//4)*4096 + WS_O}"),
                lambda: a.bstore(d, 4, 14, S_WS, "s82", off=(f % 4)*1024, flags="sc1")]
    for mt in range(3):
        for t in range(8):
            a.mfma(accO(mt, t), Vf(t), accS(0, mt), None); F.pop(2)
        for t in range(8):
            a.mfma(accO(mt, t), Vf(t)+4, accS(2, mt), accO(mt, t), k=16); F.pop(2)
        for kp in range(4): F.add(*ostore(mt, kp))
    F.drain()
    stamp(a, cfg, 5)
    a.waitcnt(lgkm=0)
    a.barrier()
    def flag():
        a.waitcnt(vm=0)
        stamp(a, cfg, 6)
        a.s("s_mov_b32 exec_lo, s85"); a.s("s_mov_b32 exec_hi, 0")
        a.bstore(8, 2, 11, S_WS, "s84", flags="sc1")
        a.s("s_mov_b64 exec, -1")
    if cfg.flagpos == 0: flag()
    a.barrier()
    stamp(a, cfg, 10)
    items = []
    for p in range(4):
        if p == 3 and cfg.prog: items += [(p, kp, t) for t in range(9) for kp in range(4)]
        else: items += [(p, kp, t) for kp in range(4) for t in range(9)]
    NB = 9
    def rdW2(i, h):
        p, kp, t = items[i]
        def f():
            a.ds_read("ds_read_b64_tr_b16", Wf2(i % NB)+2*h, 2, R[t & 1], off=kp*10240 + h*5120 + 32*(t - (t & 1))); ver[("W2", i % NB, h)] = i
        return f
    for kp in range(4):
        for mt in range(3): ver[("O", 0, kp, mt)] = 0
    def headbase(p):
        return [lambda: head_order(a, p, 81), lambda: a.s("s_mul_i32 s81, s81, 12288"), lambda: a.s("s_add_u32 s81, s81, s80")]
    def ldO(p, f):
        kp, mt = divmod(f, 3)
        return [lambda: a.s(f"s_add_u32 s82, s81, {(f//4)*4096 + WS_O}"),
                lambda: (a.bload(of(p & 1, kp, mt), 4, 14, S_WS, "s82", off=(f % 4)*1024, flags="sc1"), ver.__setitem__(("O", p & 1, kp, mt), p))]
    def publish(mt, pair):
        slot = pair*3 + mt
        r = acc2(mt, 2*pair)
        out = [cvt(r, r, r+1), cvt(r+1, r+2, r+3)]
        if pair < 4:
            s_ = acc2(mt, 2*pair+1)
            out += [cvt(r+2, s_, s_+1), cvt(r+3, s_+2, s_+3)]
        else:
            out += [lambda: a.v(f"v_mov_b32 v{r+2}, v{r}"), lambda: a.v(f"v_mov_b32 v{r+3}, v{r+1}")]
        out += [lambda: a.s(f"s_add_u32 s82, s92, {slot*8192}"),
                lambda: a.v(f"v_permlane16_swap_b32 v{r}, v{r+2}"), lambda: a.v(f"v_permlane16_swap_b32 v{r+1}, v{r+3}"),
                lambda: a.bstore(r, 4, 14, S_WS, "s82", flags="sc1")]
        return out
    for i in range(NB): rdW2(i, 0)(); rdW2(i, 1)()
    seen = set()
    for i, (p, kp, t) in enumerate(items):
        if cfg.flagpos and i == cfg.flagpos*9:
            F.drain()
            flag()
        if i == cfg.pollpos*9:
            F.drain()
            poll_flags(a, 6, 8, 11, 84, "s86", 76)
            stamp(a, cfg, 7)
            for f in headbase(1): f()
            if i == 36:
                for fr in range(12):
                    for f in ldO(1, fr): f()
            else:
                for fr in range(12): F.add(*ldO(1, fr))
        if i == 36:
            F.drain()
            a.barrier()
            for r in R: a.v(f"v_add_u32 v{r}, s93, v{r}")
            for j in range(36, 36 + NB): rdW2(j, 0)(); rdW2(j, 1)()
            F.add(*headbase(2))
        if p == 1 and t in (0, 3, 6): F.add(*ldO(2, kp*3 + t//3))
        if i == 72: F.add(*headbase(3)); F.add(*tail_vsetup(a))
        if p == 2 and kp < 2 and t < 6: F.add(*ldO(3, kp*6 + t))
        for mt in range(3):
            assert ver[("W2", i % NB, 0)] == i and ver[("W2", i % NB, 1)] == i and ver[("O", p & 1, kp, mt)] == p, (i, p, kp, t)
            a.mfma(acc2(mt, t), Wf2(i % NB), of(p & 1, kp, mt), acc2(mt, t) if (mt, t) in seen else None)
            seen.add((mt, t))
            F.pop(3 if len(F.q) > 8 else 2 if len(F.q) > 2 else 1)
        j = i + NB
        if j < len(items) and not (p == 0 and j >= 36):
            if j % 36 == 0:
                F.drain()
                a.barrier()
                for r in R: F.add(lambda r=r, j=j: a.v(f"v_add_u32 v{r}, s{92 + j//36}, v{r}"))
                F.add(rdW2(j, 0), rdW2(j, 1))
            elif j % 36 == 1: F.add(rdW2(j, 0), rdW2(j, 1))
            else: F.q = [rdW2(j, 0), rdW2(j, 1)] + F.q
        if p == 3 and cfg.prog and kp == 0 and t >= 2 and t % 2 == 0:
            for mt in range(3): F.add(*publish(mt, t//2 - 1))
    stamp(a, cfg, 8)
    F.drain()
    for pair in range(4 if cfg.prog else 0, 5):
        for mt in range(3):
            for f in publish(mt, pair): f()
    stamp(a, cfg, 9)
    a.waitcnt(vm=0)
    stamp(a, cfg, 11)
    a.s("s_mov_b32 exec_lo, s97"); a.s("s_mov_b32 exec_hi, 0")
    a.bstore(8, 2, 11, S_WS, "s96", flags="sc1")
    a.s("s_xor_b32 s97, s97, 0xff")
    poll_flags(a, 6, 8, 11, 96, "s97", 76)

def tail(a, cfg, endlabel):
    a.barrier()
    a.s("s_cmp_eq_u32 s89, 15")
    a.s(f"s_cbranch_scc1 {endlabel}")
    stamp(a, cfg, 12)
    a.s("s_add_u32 s77, s88, 4096")
    for k in range(8): a.bload(16 + 4*k, 4, 14, S_WS, "s88" if k < 4 else "s77", off=(k % 4)*1024, flags="sc1")
    for k in range(8):
        src = 16 + 4*k
        for i in range(4):
            if k == 0:
                a.v(f"v_lshlrev_b32 v{48+2*i}, 16, v{src+i}")
                a.v(f"v_and_b32 v{49+2*i}, 0xffff0000, v{src+i}")
            else:
                a.v(f"v_lshlrev_b32 v{60+2*(i&1)}, 16, v{src+i}")
                a.v(f"v_and_b32 v{61+2*(i&1)}, 0xffff0000, v{src+i}")
                a.v(f"v_pk_add_f32 v[{48+2*i}:{49+2*i}], v[{48+2*i}:{49+2*i}], v[{60+2*(i&1)}:{61+2*(i&1)}]")
        if k == 0: stamp(a, cfg, 13)
    for i in range(4): a.v(f"v_cvt_pk_bf16_f32 v{64+i}, v{48+2*i}, v{49+2*i}")
    stamp(a, cfg, 14)
    a.s("s_mov_b64 exec, s[78:79]")
    a.bstore(64, 4, 4, S_OUT, "s87", flags=cfg.st_out)

def kernel(cfg):
    a = Asm()
    a.lcap = cfg.lcap
    stamp(a, cfg, 0)
    prologue(a, cfg, "L_end")
    a.s(f"s_cmp_lt_u32 s{S_W}, 4")
    a.s("s_cbranch_scc1 L_compute")
    loader(a, cfg)
    a.label("L_compute")
    a.reset_state()
    compute(a, cfg)
    a.label("L_tail")
    a.reset_state()
    a.nop(2)
    tail(a, cfg, "L_end")
    if cfg.stamps: a.waitcnt(vm=0)
    stamp(a, cfg, 15)
    stamp_out(a, cfg)
    a.label("L_end")
    a.s("s_endpgm")
    return a

HEADER = open("cdna_kernels/" + NAME + ".s.ref").read().split("; Override launch")[0]

def build(cfg):
    n = NAME + "_kernel"
    a = kernel(cfg)
    return HEADER + f"""; @launch grid=(256,1,1) block=(512,1,1) lds=163840
.amdgcn_target "amdgcn-amd-amdhsa--gfx950"
.text
.globl {n}
.p2align 8
.type {n},@function
{n}:
{a.text()}
L_code_end:
.section .rodata,"a"
.p2align 6
.amdhsa_kernel {n}
  .amdhsa_next_free_vgpr 256
  .amdhsa_next_free_sgpr 102
  .amdhsa_accum_offset 256
  .amdhsa_group_segment_fixed_size 0
  .amdhsa_kernarg_size 104
  .amdhsa_user_sgpr_count 2
  .amdhsa_user_sgpr_kernarg_segment_ptr 1
  .amdhsa_system_sgpr_workgroup_id_x 1
.end_amdhsa_kernel
"""

if __name__ == "__main__":
    cfg = Cfg()
    for kv in sys.argv[2:]:
        k, v = kv.split("=")
        cur = getattr(cfg, k)
        setattr(cfg, k, (v == "1") if isinstance(cur, bool) else int(v) if isinstance(cur, int) else v.replace("_", " "))
    open(sys.argv[1], "w").write(build(cfg))
```

```python
import sys, struct
from asm import *

NAME = "concat_heads__gqa_block_cached__mha_block_cached__near_ridge"
SL = 40960
KSTR, VSTR = 4112, 4128
KUNIT, VUNIT = 1024, 1024
KBASE = 0
VBASE_L = 12*KSTR
WS_O = 0
WS_FLAG1 = 13 << 20
WS_FLAG2 = 14 << 20
WS_PART = 16 << 20
WS_STAMP = 15 << 20
WS_BYTES = 32 << 20
SC = 0.08838834764831845 * 1.4426950408889634
SPIN_MAX = 1 << 17
def f2u(x): return struct.unpack("<I", struct.pack("<f", x))[0]

S_X, S_K, S_V, S_WQ, S_WO, S_OUT, S_WS, S_DBG = 36, 40, 44, 48, 52, 56, 60, 64
S_BR, S_KQ, S_HL, S_BG, S_W, S_NT, S_E = 68, 69, 70, 71, 72, 98, 99

class Cfg:
    stamps = False; x_clk = False; lst = 0
    ld_x = ""; ld_wq = ""; ld_kv = ""; ld_wo = ""; st_out = ""
    skew = 3; prio = 0; lcap = 8; barpos = 3
    el = 1; pollpos = 2; ctouch = 2; e_wo = 1; l_wo = 0; prog = 1; touch = 0; tpos = 3; wo2 = 2; flagpos = 0; e_vpos = 4; l_kpos = 2; f2 = 1; c_kpos = 4; c_tpos = 2; swap = 1; own = 1; warmf = 1; p2st = 0; fbar = 1; wo0late = 1

NST = 16
def streg(i): return 4 if i == 0 else 8 + 2*(i-1) if i <= 13 else {14: 34, 15: 100}[i]
def stamp(a, cfg, i):
    if cfg.stamps:
        r = streg(i)
        a.raw(f"    {'s_memtime' if cfg.x_clk else 's_memrealtime'} s[{r}:{r+1}]"); a.pos += 1
def stamp_out(a, cfg):
    if not cfg.stamps: return
    a.raw("    s_waitcnt lgkmcnt(0)")
    a.s("s_mov_b64 exec, 1")
    a.s("s_lshl_b32 s3, s2, 3")
    a.s(f"s_add_u32 s3, s3, s{S_W}")
    a.s("s_lshl_b32 s3, s3, 6")
    a.s(f"s_add_u32 s3, s3, {WS_STAMP}")
    a.v("v_mov_b32 v1, 0")
    for i in range(NST):
        a.v(f"v_mov_b32 v2, s{streg(i)}")
        a.bstore(2, 1, 1, S_WS, "s3", off=4*i)
        a.nop(2)

def srd(a, base, lo, hi, size):
    a.s(f"s_mov_b32 s{base}, s{lo}")
    a.s(f"s_mov_b32 s{base+1}, s{hi}")
    a.s(f"s_mov_b32 s{base+2}, {size}")
    a.s(f"s_mov_b32 s{base+3}, 0x20000")

def prologue(a, cfg, endlabel):
    a.s("s_cmp_ge_u32 s2, 256")
    a.s(f"s_cbranch_scc1 {endlabel}")
    a.raw("    s_load_dwordx16 s[8:23], s[0:1], 0")
    a.raw("    s_load_dwordx8 s[24:31], s[0:1], 64")
    a.raw("    s_load_dwordx2 s[32:33], s[0:1], 96")
    a.v("v_and_b32 v1, 63, v0")
    a.v("v_lshrrev_b32 v15, 6, v0")
    a.s(f"s_and_b32 s{S_KQ}, s2, 3")
    a.s(f"s_bfe_u32 s{S_BR}, s2, 0x10002")
    if cfg.swap: a.s(f"s_xor_b32 s{S_BR}, s{S_BR}, 1")
    a.s(f"s_bfe_u32 s{S_HL}, s2, 0x30003")
    a.s(f"s_lshr_b32 s{S_BG}, s2, 6")
    a.s(f"s_and_b32 s{S_NT}, s{S_HL}, 3")
    a.v(f"v_readfirstlane_b32 s{S_W}, v15")
    if cfg.el:
        a.s(f"s_lshr_b32 s{S_E}, s{S_HL}, 2")
        a.s(f"s_xor_b32 s{S_E}, s{S_E}, s{S_BG}")
        a.s(f"s_and_b32 s{S_E}, s{S_E}, 1")
        a.s(f"s_mov_b32 s3, s{S_E}")
        if cfg.el == 2: a.s(f"s_mov_b32 s{S_E}, 0")
    else:
        a.s(f"s_mov_b32 s{S_E}, 0")

def build_srds(a, keys):
    a.raw("    s_waitcnt lgkmcnt(0)")
    a.s(f"s_cmp_eq_u32 s{S_BR}, 0")
    for (dst, pa, pb, key) in ((S_WQ, 14, 24, 'wq'), (S_X, 8, 18, 'x'), (S_K, 10, 20, 'k'), (S_V, 12, 22, 'v'), (S_WO, 16, 26, 'wo')):
        if key not in keys: continue
        a.s(f"s_cselect_b64 s[{dst}:{dst+1}], s[{pa}:{pa+1}], s[{pb}:{pb+1}]")
        if key in ('k', 'v'):
            a.s(f"s_mov_b32 s{dst+2}, 6291456")
            a.s(f"s_cselect_b32 s{dst+2}, 3145728, s{dst+2}")
        else:
            a.s(f"s_mov_b32 s{dst+2}, {884736 if key == 'x' else 4718592}")
        a.s(f"s_mov_b32 s{dst+3}, 0x20000")
    if 'o' in keys:
        srd(a, S_OUT, 28, 29, 1769472)
        srd(a, S_DBG, 30, 31, 256)
        srd(a, S_WS, 32, 33, WS_BYTES)

def head_order(a, p, sd):
    if p == 0: a.s(f"s_mov_b32 s{sd}, s{S_NT}")
    else:
        a.s(f"s_cmp_le_u32 s{S_NT}, {p-1}"); a.s(f"s_cselect_b32 s{sd}, {p}, {p-1}")

_lbl = [0]
def newlabel(p):
    _lbl[0] += 1
    return f"L{p}_{_lbl[0]}"

def poll_flags(a, vdata, vnonce, voff, soff, mask, stmp):
    L = newlabel("poll"); X = newlabel("pollx")
    a.s(f"s_mov_b32 exec_lo, {mask}")
    a.s("s_mov_b32 exec_hi, 0")
    a.s(f"s_mov_b32 s{stmp}, 0")
    a.label(L)
    a.bload(vdata, 2, voff, S_WS, f"s{soff}", flags="sc1")
    a.s(f"s_add_u32 s{stmp}, s{stmp}, 1")
    a.s(f"s_cmp_gt_u32 s{stmp}, {SPIN_MAX}")
    a.waitcnt(vm=0)
    a.s(f"s_cbranch_scc1 {X}")
    a.v(f"v_cmp_ne_u64 vcc, v[{vdata}:{vdata+1}], v[{vnonce}:{vnonce+1}]")
    a.s(f"s_cbranch_vccnz {L}")
    a.label(X)
    a.s("s_mov_b64 exec, -1")

def nonce_check(a, vzero):
    Lok = newlabel("nok"); Lsp = newlabel("nsp")
    a.s("s_mov_b32 s77, 0")
    a.v("v_readfirstlane_b32 s76, v8")
    a.label(Lsp)
    a.s("s_cmp_lg_u32 s76, 0")
    a.s(f"s_cbranch_scc1 {Lok}")
    a.s("s_add_u32 s77, s77, 1")
    a.s(f"s_cmp_gt_u32 s77, {SPIN_MAX}")
    a.s(f"s_cbranch_scc1 {Lok}")
    a.raw(f"    buffer_load_dwordx2 v[8:9], v{vzero}, s[{S_DBG}:{S_DBG+3}], 0 offen sc1")
    a.raw("    s_waitcnt vmcnt(0)")
    a.raw("    v_readfirstlane_b32 s76, v8")
    a.raw("    s_nop 0")
    a.s(f"s_branch {Lsp}")
    a.label(Lok)

def unit_base(a, sd, sb_w, shead):
    a.s(f"s_lshl_b32 s76, s{S_BR}, 4")
    a.s(f"s_lshl_b32 s77, s{S_BG}, 2")
    a.s("s_add_u32 s76, s76, s77")
    a.s(f"s_add_u32 s76, s76, s{sb_w}")
    a.s("s_lshl_b32 s76, s76, 5")
    a.s(f"s_add_u32 s76, s76, s{shead}")
    a.s(f"s_mul_i32 s{sd}, s76, 12288")

def tail_ssetup(a, sw, half):
    a.s(f"s_lshr_b32 s90, s{S_HL}, 2")
    a.s(f"s_lshl_b32 s76, s{S_KQ}, 1")
    a.s("s_add_u32 s90, s90, s76")
    a.s(f"s_add_u32 s89, s90, {8*half}")
    a.s(f"s_lshl_b32 s91, s{S_BR}, 2")
    a.s(f"s_add_u32 s91, s91, s{S_BG}")
    a.s("s_lshl_b32 s91, s91, 2")
    a.s(f"s_add_u32 s91, s91, s{S_NT}")
    a.s("s_lshl_b32 s91, s91, 2")
    a.s(f"s_add_u32 s91, s91, s{sw}")
    a.s("s_lshl_b32 s76, s91, 10")
    a.s(f"s_add_u32 s96, s76, {WS_FLAG2}")
    a.s("s_lshl_b32 s92, s91, 17")
    a.s(f"s_add_u32 s92, s92, {WS_PART}")
    a.s("s_lshl_b32 s76, s89, 13")
    a.s("s_add_u32 s88, s92, s76")
    a.s("s_lshl_b32 s76, s90, 10")
    a.s("s_add_u32 s92, s92, s76")
    a.s("s_mul_i32 s76, s89, 43")
    a.s("s_lshr_b32 s76, s76, 7")
    a.s("s_mul_i32 s77, s76, 3")
    a.s("s_sub_u32 s77, s89, s77")
    a.s("s_cmp_eq_u32 s89, 13")
    a.s("s_cselect_b32 s77, 2, s77")
    a.s("s_lshl_b32 s87, s76, 6")
    a.s(f"s_mul_i32 s77, s77, {16*2304}")
    a.s("s_add_u32 s87, s87, s77")
    a.s(f"s_lshl_b32 s77, s{S_BG}, 2")
    a.s(f"s_add_u32 s77, s77, s{sw}")
    a.s(f"s_mul_i32 s77, s77, {48*2304}")
    a.s("s_add_u32 s87, s87, s77")
    a.s(f"s_mul_i32 s77, s{S_BR}, 1152")
    a.s("s_add_u32 s87, s87, s77")
    a.s(f"s_mul_i32 s77, s{S_NT}, 288")
    a.s("s_add_u32 s87, s87, s77")
    a.s("s_cmp_lt_u32 s89, 12")
    a.s(f"s_cselect_b32 s74, 32, {16*2304}")
    a.s("s_cmp_lt_u32 s89, 13")
    a.s("s_cselect_b32 s78, -1, 0xffff")
    a.s("s_mov_b32 s79, s78")
    for u in range(16): assert (u*43) >> 7 == u//3

def tail_vsetup(a, sw=S_W, half=0):
    return [lambda t=t: a.v(t) for t in (
        "v_and_b32 v4, 15, v1", "v_mul_u32_u24 v4, 2304, v4", "v_bfe_u32 v5, v1, 4, 1", "v_mad_u32_u24 v4, v5, s74, v4",
        "v_lshrrev_b32 v5, 5, v1", "v_lshl_add_u32 v4, v5, 4, v4", "v_lshlrev_b32 v3, 7, v1", f"v_lshlrev_b32 v2, 4, v1", f"v_lshl_add_u32 v2, s{sw}, 10, v2", f"v_add_u32 v2, {3*SL + half*4096}, v2")]

def loader(a, cfg):
    a.s(f"s_sub_u32 s73, s{S_W}, 4")
    a.s("s_and_b32 s74, s73, 1")
    a.s("s_lshr_b32 s75, s73, 1")
    a.s(f"s_lshl_b32 s95, s{S_KQ}, 3")
    a.s(f"s_add_u32 s95, s95, s{S_HL}")
    a.v("v_lshrrev_b32 v4, 4, v1")
    a.s("s_lshl_b32 s76, s75, 2")
    a.v("v_or_b32 v5, s76, v4")
    a.v("v_bfe_u32 v6, v1, 1, 3")
    a.v("v_xor_b32 v6, v6, v5")
    a.v("v_lshlrev_b32 v6, 5, v6")
    a.v("v_and_b32 v7, 1, v1")
    a.v("v_lshl_add_u32 v6, v7, 4, v6")
    a.v("v_lshl_add_u32 v2, v4, 13, v6")
    a.s("s_lshl_b32 s76, s73, 15")
    a.s("s_lshl_b32 s77, s95, 8")
    a.s("s_add_u32 s76, s76, s77")
    a.v("v_add_u32 v2, s76, v2")
    a.v("v_lshlrev_b32 v5, 2, v4")
    a.v("v_and_b32 v6, 15, v1")
    a.v("v_xor_b32 v6, v6, v5")
    a.v("v_lshlrev_b32 v6, 4, v6")
    a.v("v_lshl_add_u32 v10, v4, 8, v6")
    a.s("s_lshl_b32 s76, s74, 2")
    a.v("v_or_b32 v5, s76, v4")
    a.v("v_lshrrev_b32 v4, 3, v1")
    a.v("v_mul_u32_u24 v4, 1152, v4")
    a.v("v_and_b32 v6, 7, v1")
    a.v("v_xor_b32 v6, v6, v5")
    a.v("v_lshl_add_u32 v3, v6, 4, v4")
    a.s(f"s_mul_i32 s76, s{S_BG}, {192*1152}")
    a.s(f"s_mul_i32 s77, s74, {8*1152}")
    a.s("s_add_u32 s76, s76, s77")
    a.s(f"s_mul_i32 s77, s75, {96*1152}")
    a.s("s_add_u32 s76, s76, s77")
    a.v("v_add_u32 v3, s76, v3")
    a.s("s_lshl_b32 s78, s73, 10")
    a.s("s_mul_i32 s79, s75, 12288")
    a.s("s_lshl_b32 s77, s74, 10")
    a.s("s_add_u32 s79, s79, s77")
    a.s("s_add_u32 s79, s79, 16384")
    a.s(f"s_lshl_b32 s76, s{S_BG}, 2")
    a.s("s_add_u32 s76, s76, s73")
    a.s("s_lshl_b32 s76, s76, 5")
    a.s("s_add_u32 s76, s76, s95")
    a.s(f"s_xor_b32 s77, s{S_BR}, 1")
    a.s("s_lshr_b32 s76, s76, s77")
    a.s("s_mul_i32 s80, s76, 12288")
    a.s(f"s_mul_i32 s91, s73, {KUNIT}")
    a.s(f"s_add_u32 s91, s91, {KBASE}")
    a.s(f"s_mul_i32 s92, s73, {VUNIT}")
    if cfg.skew == 3:
        a.s(f"s_add_u32 s84, s{S_HL}, s{S_BG}")
        a.s("s_mul_i32 s85, s84, 43")
        a.s("s_lshr_b32 s85, s85, 7")
        a.s("s_mul_i32 s85, s85, 3")
        a.s("s_sub_u32 s84, s84, s85")
        a.s("s_mul_i32 s84, s84, 3")
    elif cfg.skew == 4:
        a.s(f"s_add_u32 s84, s{S_HL}, s{S_BG}")
        a.s("s_and_b32 s84, s84, 3")
        a.s("s_lshl_b32 s84, s84, 1")
    elif cfg.skew == 2:
        a.s(f"s_lshr_b32 s84, s{S_BG}, 1")
        a.s(f"s_xor_b32 s84, s84, s{S_HL}")
        a.s("s_and_b32 s84, s84, 1")
        a.s("s_lshl_b32 s84, s84, 2")
    elif cfg.skew == 9:
        a.s(f"s_lshl_b32 s84, s{S_BG}, 1")
        a.s(f"s_add_u32 s84, s84, s{S_HL}")
        a.s("s_sub_u32 s85, s84, 9")
        a.s("s_cmp_ge_u32 s84, 9")
        a.s("s_cselect_b32 s84, s85, s84")
    else:
        a.s("s_mov_b32 s84, 0")
    build_srds(a, ('x', 'wq', 'k'))
    def stage(s):
        slot = (1 + s % 3) * SL
        a.s("s_lshl_b32 s85, s84, 7")
        a.s("s_lshl_b32 s86, s84, 19")
        for i in range(4):
            a.s(f"s_add_u32 m0, s78, {slot + i*4096}")
            a.s(f"s_add_u32 s82, s86, {16*i*8192}")
            a.dma(2, S_WQ, "s82", cfg.ld_wq, tag=("st", s))
        for z in range(6):
            a.s(f"s_add_u32 m0, s79, {slot + z*2048}")
            a.s(f"s_add_u32 s82, s85, {z*16*1152}")
            a.dma(3, S_X, "s82", cfg.ld_x, tag=("st", s))
        a.s("s_add_u32 s84, s84, 1")
        a.s("s_cmp_eq_u32 s84, 9")
        a.s("s_cselect_b32 s84, 0, s84")
    def kvpart(g, srdb, sm0, stride, lo, hi, base=0):
        for i in range(lo, hi):
            a.s(f"s_add_u32 m0, s{sm0}, {base + i*stride}")
            a.s(f"s_add_u32 s82, s80, {i*1024}")
            a.dma(10, srdb, "s82", cfg.ld_kv, tag=("st", g))
    def codetouch():
        a.s("s_mov_b64 exec, 3")
        a.raw("    global_load_dword v24, v25, s[6:7]"); a.pos += 1
        a.vm.append((None, "touch"))
        a.s("s_mov_b64 exec, -1")
    def setup2():
        if cfg.ctouch:
            L = newlabel("pc")
            a.raw("    s_getpc_b64 s[6:7]")
            a.label(L)
            a.s(f"s_sub_u32 s6, s6, {L}-{NAME}_kernel")
            a.s("s_subb_u32 s7, s7, 0")
            a.s("s_lshr_b32 s76, s2, 3")
            a.s("s_lshl_b32 s76, s76, 2")
            a.s("s_add_u32 s76, s76, s73")
            a.s("s_lshl_b32 s76, s76, 8")
            a.v("v_lshlrev_b32 v25, 7, v1")
            a.v("v_add_u32 v25, s76, v25")
            a.s("s_mov_b32 s77, L_code_end-" + NAME + "_kernel-4")
            a.v("v_min_u32 v25, s77, v25")
            codetouch()
        build_srds(a, ('v', 'wo', 'o'))
        stamp(a, cfg, 1)
        a.v("v_mov_b32 v16, 0")
        L = newlabel("nw")
        a.s("s_add_u32 s76, s2, s73")
        a.s("s_cmp_lg_u32 s76, 0")
        a.s(f"s_cbranch_scc1 {L}")
        a.raw("    s_memrealtime s[88:89]")
        a.raw("    s_waitcnt lgkmcnt(0)")
        a.s("s_or_b32 s88, s88, 1")
        a.v("v_mov_b32 v18, s88")
        a.v("v_mov_b32 v19, s89")
        a.s("s_mov_b64 exec, 1")
        a.raw(f"    buffer_store_dwordx2 v[18:19], v16, s[{S_DBG}:{S_DBG+3}], 0 offen sc1")
        a.s("s_mov_b64 exec, -1")
        a.label(L)
    def setup3():
        a.s("s_and_b32 s76, s95, 0xfc")
        a.s("s_lshl_b32 s76, s76, 7")
        a.s("s_lshl_b32 s77, s73, 5")
        a.s("s_add_u32 s76, s76, s77")
        a.s("s_mul_i32 s76, s76, 1152")
        a.s(f"s_mul_i32 s77, s{S_NT}, 288")
        a.s("s_and_b32 s77, s77, 0xffffffc0")
        a.s("s_add_u32 s76, s76, s77")
        for y in range(5):
            a.v(f"v_add_u32 v4, {y*64}, v1")
            a.v("v_mul_u32_u24 v5, 3277, v4")
            a.v("v_lshrrev_b32 v5, 16, v5")
            a.v("v_mul_u32_u24 v6, 20, v5")
            a.v("v_sub_u32 v6, v4, v6")
            a.v("v_bfe_u32 v7, v5, 2, 1")
            a.v("v_lshlrev_b32 v7, 1, v7")
            a.v("v_xor_b32 v6, v6, v7")
            a.v("v_mul_u32_u24 v5, 1152, v5")
            a.v("v_lshl_add_u32 v5, v6, 4, v5")
            a.v(f"v_add_u32 v{26+y}, s76, v5")
        a.s("s_mul_i32 s93, s73, 10240")
        a.v("v_lshlrev_b32 v22, 7, v1")
        if cfg.touch >= 2:
            a.s(f"s_lshl_b32 s76, s{S_BG}, 2")
            a.s(f"s_add_u32 s76, s76, s{S_NT}")
        else:
            a.s("s_lshr_b32 s76, s2, 3")
        a.s("s_lshl_b32 s76, s76, 2")
        a.s("s_add_u32 s76, s76, s73")
        a.s(f"s_mul_i32 s76, s76, {(144 if cfg.touch >= 2 else 72)*128}")
        a.s(f"s_mul_i32 s94, s{S_KQ}, {1024*1152}")
        a.s("s_add_u32 s94, s94, s76")
    def touches():
        a.s("s_mov_b32 exec_lo, -1"); a.s("s_mov_b32 exec_hi, 15")
        for i in range(4 if cfg.touch >= 2 else 2):
            a.bload(23, 1, 22, S_WO, "s94", tag="touch"); a.vm[-1] = (None, "touch")
            a.s(f"s_add_u32 s94, s94, {36*128}")
        a.s("s_mov_b64 exec, -1")
    def wostage(p, start):
        head_order(a, p, 83)
        a.s(f"s_mul_i32 s83, s83, {128*1152}")
        for z2 in range(2):
            a.s(f"s_add_u32 s82, s83, {z2*16*1152}")
            for y in range(5):
                a.s(f"s_add_u32 m0, s93, {((start + p) % 4)*SL + z2*5120 + y*1024}")
                a.dma(26+y, S_WO, "s82", cfg.ld_wo, tag=("st", 11+p))
    def main(early, cls=0):
        cnt = [0]
        def st(i):
            if not cfg.lst: stamp(a, cfg, i)
        W = lambda g: a.wait_vm_tag(("st", g))
        def B():
            k = cnt[0] - cfg.lst
            if cfg.lst and 0 <= k < 5: stamp(a, cfg, 1 + 2*k)
            a.barrier()
            if cfg.lst and 0 <= k < 5: stamp(a, cfg, 2 + 2*k)
            cnt[0] += 1
        start = 2 if early else 3
        dot = cfg.touch == 1 or (cfg.touch == 2 and (early or cls)) or (cfg.touch == 3 and not (early or cls))
        vb = 0 if early else VBASE_L
        if early:
            kvpart(9, S_K, 91, KSTR, 0, 12, 2*SL)
            setup2()
            stage(0)
            setup3()
            W(9); st(2); a.barrier()
            a.barrier()
            stage(1)
        else:
            stage(0)
            setup2()
            stage(1)
            setup3()
            st(2)
        mid = cfg.e_vpos if early else cfg.c_kpos if cls else cfg.l_kpos
        tpos = cfg.c_tpos if cls else cfg.tpos
        nxt = 2
        for g in range(7):
            W(g)
            if g == 0: st(3)
            if g == 3: st(4)
            B()
            if g == 4 and cfg.ctouch > 1: codetouch()
            if g == mid:
                if early: kvpart(10, S_V, 92, VSTR, 0, 9, vb)
                else: kvpart(9, S_K, 91, KSTR, 0, 9)
                if dot and g == tpos: touches()
                continue
            if dot and g == tpos and g < 6: touches(); continue
            while nxt <= g + 2: stage(nxt); nxt += 1
            if dot and g == tpos: touches()
        assert nxt == 9
        W(7); B()
        lo = 9 if mid >= 0 else 0
        h1 = 12 if mid >= 0 else 7
        vlo = 0
        if early:
            kvpart(10, S_V, 92, VSTR, lo, h1, vb)
            if dot and tpos == 7: touches()
        else:
            kvpart(9, S_K, 91, KSTR, lo, h1)
            if mid >= 0: kvpart(10, S_V, 92, VSTR, 0, 4, vb); vlo = 4
        W(8); st(5); B()
        if early:
            kvpart(10, S_V, 92, VSTR, h1, 12, vb)
            if dot and tpos == 8: touches()
        else:
            kvpart(9, S_K, 91, KSTR, h1, 12)
            v2 = 12 if mid >= 0 else 7
            kvpart(10, S_V, 92, VSTR, vlo, v2, vb)
        W(9); st(6); B()
        nw = cfg.e_wo if early else cfg.l_wo
        nz = [0]
        def upto(z):
            while nz[0] <= min(z, 3): wostage(nz[0], start); nz[0] += 1
        if not early: kvpart(10, S_V, 92, VSTR, v2, 12, vb)
        if dot and tpos == 9: touches()
        if early: upto(nw - 1)
        W(10); st(7)
        if not early and nw and not cfg.wo0late: upto(0)
        B()
        if not early and nw and cfg.wo0late: upto(0)
        if not early and nw > 1: upto(1)
        B()
        if dot and tpos == 11: touches()
        upto(0)
        if cfg.ctouch > 1: codetouch()
        W(11); st(8); B()
        if cfg.fbar and cfg.flagpos: B()
        upto(max(1, nz[0] - 1 + cfg.wo2))
        W(12); st(9); B()
        upto(max(2, nz[0]))
        W(13); B()
        upto(3)
        W(14); st(10); B()
        a.v("v_lshlrev_b32 v14, 4, v1")
        a.v("v_lshlrev_b32 v11, 3, v1")
        tail_ssetup(a, 73, 1)
        for f in tail_vsetup(a, 73, 1): f()
        a.s("s_branch L_tail")
    if cfg.el:
        a.s("s_cmp_eq_u32 s3, 1")
        a.s("s_cbranch_scc1 L_early")
        main(False)
        a.label("L_early")
        a.reset_state()
        main(cfg.el == 1, cfg.el == 2)
    else:
        main(False)

def xlane_reduce(a, op, regs, tmps):
    for sw in ("v_permlane32_swap_b32", "v_permlane16_swap_b32"):
        for r, t in zip(regs, tmps): a.v(f"v_mov_b32 v{t}, v{r}")
        for r, t in zip(regs, tmps): a.v(f"{sw} v{r}, v{t}")
        for r, t in zip(regs, tmps): a.v(f"{op} v{r}, v{r}, v{t}")

class Fill:
    def __init__(self): self.q = []
    def add(self, *fs): self.q.extend(fs)
    def pop(self, n):
        for _ in range(n):
            if self.q: self.q.pop(0)()
    def drain(self): self.pop(len(self.q))

def compute(a, cfg):
    ACC = 16; WF = 112; XF = 144; KF = 168; AS = 216; VF = 112
    accQ = lambda t, mt: ACC + (t*3 + mt)*4
    Wf = lambda t: WF + 4*t
    Xf = lambda par, mt: XF + par*12 + mt*4
    Kf = lambda kt, kp: KF + (kt*4 + kp)*4
    accS = lambda kt, mt: AS + (kt*3 + mt)*4
    Vf = lambda t: VF + 6*t
    accO = lambda mt, t: ACC + (mt*8 + t)*4
    aW = lambda st_, t: 216 + st_*10 + t
    aX = lambda st_, ks: 216 + st_*10 + 8 + ks
    aK = lambda kp: 252 + kp
    aV = lambda th: 2 + th
    R = [13, 15]
    ofA = lambda kp, mt: 168 + (kp*3 + mt)*4
    def ofB(kp, mt):
        f = kp*3 + mt
        return 216 + f*4 if f < 10 else 160 + (f - 10)*4
    of = lambda buf, kp, mt: ofB(kp, mt) if buf else ofA(kp, mt)
    acc2 = lambda mt, t: 16 + (mt*9 + t)*4
    Wf2 = lambda i: 124 + 4*i

    if cfg.prio: a.s(f"s_setprio {cfg.prio}")
    a.v("v_lshrrev_b32 v160, 4, v1")
    a.v("v_bfe_u32 v161, v1, 2, 2")
    a.v("v_and_b32 v162, 3, v1")
    a.v("v_and_b32 v163, 15, v1")
    a.v("v_and_b32 v165, 1, v160")
    a.s(f"s_mul_i32 s76, s{S_W}, {KUNIT}")
    a.s(f"s_mul_i32 s77, s{S_E}, {2*SL}")
    a.s("s_add_u32 s76, s76, s77")
    a.v(f"v_mul_u32_u24 v164, {KSTR}, v161")
    a.v("v_lshl_add_u32 v164, v162, 8, v164")
    a.v("v_lshl_add_u32 v164, v160, 3, v164")
    a.v("v_add_u32 v164, s76, v164")
    for kp in range(4):
        a.v(f"v_xor_b32 v167, {kp}, v162")
        a.v(f"v_lshl_add_u32 v{aK(kp)}, v167, 6, v164")
    a.v("v_lshl_add_u32 v164, v160, 3, v161")
    a.v("v_lshlrev_b32 v164, 8, v164")
    a.v("v_lshl_or_b32 v166, v165, 2, v161")
    a.v("v_lshl_add_u32 v164, v166, 5, v164")
    a.v("v_lshl_add_u32 v164, v162, 3, v164")
    a.v(f"v_add_u32 v{aW(0,0)}, {SL}, v164")
    for t in range(1, 8): a.v(f"v_xor_b32 v{aW(0,t)}, {32*t}, v{aW(0,0)}")
    a.v("v_lshrrev_b32 v164, 1, v163")
    a.v("v_xor_b32 v164, v164, v160")
    a.v("v_lshlrev_b32 v164, 4, v164")
    a.v("v_lshl_add_u32 v164, v163, 7, v164")
    a.s(f"s_mul_i32 s76, s{S_W}, 6144")
    a.s(f"s_add_u32 s76, s76, {16384 + SL}")
    a.v(f"v_add_u32 v{aX(0,0)}, s76, v164")
    a.v(f"v_xor_b32 v{aX(0,1)}, 64, v{aX(0,0)}")
    for i in range(10): a.v(f"v_add_u32 v{226+i}, {2*SL}, v{216+i}")
    a.s(f"s_mul_i32 s76, s{S_W}, {VUNIT}")
    a.s(f"s_cmp_eq_u32 s{S_E}, 1")
    a.s(f"s_cselect_b32 s77, 0, {VBASE_L}")
    a.s("s_add_u32 s76, s76, s77")
    a.v(f"v_mul_u32_u24 v164, {VSTR}, v160")
    a.v("v_lshl_add_u32 v164, v161, 8, v164")
    a.v("v_lshl_add_u32 v164, v162, 3, v164")
    a.v("v_add_u32 v164, s76, v164")
    for th in range(4):
        a.v(f"v_xor_b32 v167, {th}, v161")
        a.v(f"v_lshl_add_u32 v{aV(th)}, v167, 6, v164")
    a.v("v_lshl_add_u32 v164, v160, 2, v161")
    a.v("v_mul_u32_u24 v164, 320, v164")
    a.v("v_lshl_add_u32 v164, v162, 3, v164")
    a.s(f"s_cmp_eq_u32 s{S_E}, 1")
    a.s(f"s_mov_b32 s76, {3*SL}")
    a.s(f"s_cselect_b32 s76, {2*SL}, s76")
    a.s(f"s_mov_b32 s93, {SL}")
    a.s(f"s_cselect_b32 s93, s93, {(-3*SL) & 0xffffffff}")
    a.s(f"s_mov_b32 s94, {SL}")
    a.s(f"s_cselect_b32 s94, {(-3*SL) & 0xffffffff}, s94")
    a.s(f"s_mov_b32 s95, {SL}")
    a.v("v_add_u32 v164, s76, v164")
    a.s(f"s_and_b32 s77, s{S_NT}, 1")
    a.v("v_xor_b32 v167, s77, v165")
    a.v(f"v_lshl_add_u32 v{R[0]}, v167, 5, v164")
    a.s("s_add_u32 s77, s77, 1")
    a.v("v_xor_b32 v167, s77, v165")
    a.v(f"v_lshl_add_u32 v{R[1]}, v167, 5, v164")
    a.v("v_lshlrev_b32 v14, 4, v1")
    a.v("v_lshlrev_b32 v11, 3, v1")
    a.v("v_mov_b32 v10, 0")
    a.s(f"s_lshl_b32 s81, s{S_KQ}, 3")
    a.s(f"s_and_b32 s82, s{S_HL}, 4")
    a.s("s_add_u32 s81, s81, s82")
    unit_base(a, 80, S_W, 81)
    a.s(f"s_mov_b32 s83, {f2u(SC)}")
    a.s("s_and_b32 s76, s2, 7")
    a.s("s_lshr_b32 s77, s2, 5")
    a.s("s_lshl_b32 s77, s77, 3")
    a.s("s_or_b32 s76, s76, s77")
    a.s("s_lshl_b32 s76, s76, 2")
    a.s(f"s_add_u32 s76, s76, s{S_W}")
    a.s("s_lshl_b32 s76, s76, 7")
    a.s(f"s_add_u32 s84, s76, {WS_FLAG1}")
    a.s(f"s_lshl_b32 s85, 1, s{S_NT}")
    a.s("s_xor_b32 s86, s85, 15")
    tail_ssetup(a, S_W, 0)
    a.s("s_lshl_b32 s97, 1, s90")
    build_srds(a, ('o',))
    if cfg.warmf:
        a.s("s_mov_b64 exec, 1")
        a.bload(6, 1, 10, S_WS, "s84", flags="sc1" if cfg.warmf == 1 else "")
        a.s("s_lshl_b32 s76, s90, 7")
        a.s("s_add_u32 s76, s76, s96")
        a.bload(7, 1, 10, S_WS, "s76", flags="sc1" if cfg.warmf == 1 else "")
        a.s("s_mov_b64 exec, -1")

    ver = {}
    def rdW(s, t, ks, h):
        def f():
            a.ds_read("ds_read_b64_tr_b16", Wf(t)+2*h, 2, aW((s % 3) >> 1, t), off=((s % 3) & 1)*SL + ks*8192 + h*1024); ver[("W", t, h)] = (s, ks)
        return f
    def rdX(s, mt, ks):
        def f():
            a.ds_read("ds_read_b128", Xf(ks, mt), 4, aX((s % 3) >> 1, ks), off=((s % 3) & 1)*SL + mt*2048); ver[("X", ks, mt)] = s
        return f
    def chk1(s, ks, t, mt):
        assert ver[("W", t, 0)] == (s, ks) and ver[("W", t, 1)] == (s, ks) and ver[("X", ks, mt)] == s, (s, ks, t, mt)
    def readK():
        for kp in range(4):
            for kt in range(3):
                for e in range(2): a.ds_read("ds_read_b64", Kf(kt, kp)+2*e, 2, aK(kp), off=kt*4*KSTR + 32*e)
    def cvt(d, s0, s1):
        return lambda: a.v(f"v_cvt_pk_bf16_f32 v{d}, v{s0}, v{s1}")
    def cvtQ(kp):
        out = []
        for mt in range(3):
            r = accQ(2*kp, mt); s_ = accQ(2*kp+1, mt)
            out += [cvt(r, r, r+1), cvt(r+1, r+2, r+3), cvt(r+2, s_, s_+1), cvt(r+3, s_+2, s_+3)]
        return out
    F = Fill()
    stamp(a, cfg, 1)
    if cfg.el == 1:
        a.s(f"s_cmp_eq_u32 s{S_E}, 0")
        a.s("s_cbranch_scc1 L_noK0")
        a.barrier()
        readK()
        a.waitcnt(lgkm=0)
        a.barrier()
        a.label("L_noK0")
    a.barrier()
    stamp(a, cfg, 2)
    for mt in range(3): rdX(0, mt, 0)()
    for t in range(8): rdW(0, t, 0, 0)(); rdW(0, t, 0, 1)()
    BP = cfg.barpos
    for s in range(9):
        last = s == 8
        for mt in range(3): F.add(rdX(s, mt, 1))
        for t in range(8):
            for mt in range(3):
                chk1(s, 0, t, mt)
                a.mfma(accQ(t, mt), Wf(t), Xf(0, mt), None if s == 0 else accQ(t, mt))
                F.pop(2 if len(F.q) > 2 else 1)
            F.add(rdW(s, t, 1, 0), rdW(s, t, 1, 1))
        for t in range(8):
            for mt in range(3):
                chk1(s, 1, t, mt)
                a.mfma(accQ(t, mt), Wf(t), Xf(1, mt), accQ(t, mt))
                F.pop(2 if len(F.q) > 2 else 1)
            if last:
                if t in (3, 5, 7): F.add(*cvtQ((t - 3)//2))
            elif t == BP - 1:
                assert not F.q
                a.waitcnt(lgkm=0)
                a.barrier()
                F.add(rdX(s+1, 0, 0), rdW(s+1, 0, 0, 0), rdW(s+1, 0, 0, 1), rdX(s+1, 1, 0), rdX(s+1, 2, 0))
                for tt in range(1, BP): F.add(rdW(s+1, tt, 0, 0), rdW(s+1, tt, 0, 1))
            elif t >= BP:
                F.add(rdW(s+1, t, 0, 0), rdW(s+1, t, 0, 1))
    a.waitcnt(lgkm=0)
    a.barrier()
    stamp(a, cfg, 3)
    a.bload(8, 2, 10, S_DBG, "0", flags="sc1", tag="nonce")
    if cfg.el:
        a.s(f"s_cmp_eq_u32 s{S_E}, 1")
        a.s("s_cbranch_scc1 L_noK1")
    readK()
    if cfg.el: a.label("L_noK1")
    F.drain()
    for f in cvtQ(3): f()
    for kp in range(4):
        for kt in range(3):
            for mt in range(3):
                a.mfma(accS(kt, mt), Kf(kt, kp), accQ(2*kp, mt), None if kp == 0 else accS(kt, mt))
    MX = [160, 161, 162]; TM = [163, 164, 165]; SM = [166, 167, 6]
    vals = lambda mt: [accS(kt, mt) + r for kt in range(3) for r in range(4)]
    for mt in range(3):
        v = vals(mt); a.v(f"v_max3_f32 v{MX[mt]}, v{v[0]}, v{v[1]}, v{v[2]}")
    for i in range(3, 11, 2):
        for mt in range(3):
            v = vals(mt); a.v(f"v_max3_f32 v{MX[mt]}, v{MX[mt]}, v{v[i]}, v{v[i+1]}")
    for mt in range(3):
        v = vals(mt); a.v(f"v_max_f32 v{MX[mt]}, v{MX[mt]}, v{v[11]}")
    xlane_reduce(a, "v_max_f32", MX, TM)
    for mt in range(3): a.v(f"v_mul_f32 v{MX[mt]}, s83, v{MX[mt]}")
    for i in range(12):
        for mt in range(3):
            v = vals(mt); a.v(f"v_fma_f32 v{v[i]}, v{v[i]}, s83, -v{MX[mt]}")
    for i in range(12):
        for mt in range(3):
            v = vals(mt); a.v(f"v_exp_f32 v{v[i]}, v{v[i]}")
    for mt in range(3):
        v = vals(mt); a.v(f"v_add_f32 v{SM[mt]}, v{v[0]}, v{v[1]}")
    for i in range(2, 12):
        for mt in range(3):
            v = vals(mt); a.v(f"v_add_f32 v{SM[mt]}, v{SM[mt]}, v{v[i]}")
    xlane_reduce(a, "v_add_f32", SM, TM)
    for mt in range(3): a.v(f"v_rcp_f32 v{SM[mt]}, v{SM[mt]}")
    a.barrier()
    for t in range(8):
        for kt in range(3):
            F.add(lambda t=t, kt=kt: a.ds_read("ds_read_b64_tr_b16", Vf(t) + 2*kt, 2, aV(t >> 1), off=kt*4*VSTR + (t & 1)*32))
    for i in range(12):
        for mt in range(3):
            v = vals(mt); a.v(f"v_mul_f32 v{v[i]}, v{v[i]}, v{SM[mt]}"); F.pop(1)
    for mt in range(3):
        r0, r1, r2 = accS(0, mt), accS(1, mt), accS(2, mt)
        for f in (cvt(r0, r0, r0+1), cvt(r0+1, r0+2, r0+3), cvt(r0+2, r1, r1+1), cvt(r0+3, r1+2, r1+3), cvt(r2, r2, r2+1), cvt(r2+1, r2+2, r2+3)): f()
    stamp(a, cfg, 4)
    nonce_check(a, 10)
    a.s(f"s_mul_i32 s81, s{S_NT}, 12288")
    a.s("s_add_u32 s81, s81, s80")
    def ostore(mt, kp):
        r = accO(mt, 2*kp); s_ = accO(mt, 2*kp+1); d = ofA(kp, mt); f = kp*3 + mt
        return [cvt(d, r, r+1), cvt(d+1, r+2, r+3), cvt(d+2, s_, s_+1), cvt(d+3, s_+2, s_+3),
                lambda: a.s(f"s_add_u32 s82, s81, {(f//4)*4096 + WS_O}"),
                lambda: a.bstore(d, 4, 14, S_WS, "s82", off=(f % 4)*1024, flags="sc1")]
    for mt in range(3):
        for t in range(8):
            a.mfma(accO(mt, t), Vf(t), accS(0, mt), None); F.pop(2)
        for t in range(8):
            a.mfma(accO(mt, t), Vf(t)+4, accS(2, mt), accO(mt, t), k=16); F.pop(2)
        for kp in range(4): F.add(*ostore(mt, kp))
    F.drain()
    stamp(a, cfg, 5)
    a.waitcnt(lgkm=0)
    a.barrier()
    def flag():
        a.waitcnt(vm=0)
        stamp(a, cfg, 6)
        a.s("s_mov_b32 exec_lo, s85"); a.s("s_mov_b32 exec_hi, 0")
        a.bstore(8, 2, 11, S_WS, "s84", flags="sc1")
        a.s("s_mov_b64 exec, -1")
    if cfg.flagpos == 0: flag()
    a.barrier()
    stamp(a, cfg, 10)
    items = []
    for p in range(4):
        if p == 3 and cfg.prog: items += [(p, kp, t) for t in range(9) for kp in range(4)]
        else: items += [(p, kp, t) for kp in range(4) for t in range(9)]
    NB = 9
    def rdW2(i, h):
        p, kp, t = items[i]
        def f():
            a.ds_read("ds_read_b64_tr_b16", Wf2(i % NB)+2*h, 2, R[t & 1], off=kp*10240 + h*5120 + 32*(t - (t & 1))); ver[("W2", i % NB, h)] = i
        return f
    for kp in range(4):
        for mt in range(3): ver[("O", 0, kp, mt)] = 0
    def headbase(p):
        return [lambda: head_order(a, p, 81), lambda: a.s("s_mul_i32 s81, s81, 12288"), lambda: a.s("s_add_u32 s81, s81, s80")]
    def ldO(p, f):
        kp, mt = divmod(f, 3)
        return [lambda: a.s(f"s_add_u32 s82, s81, {(f//4)*4096 + WS_O}"),
                lambda: (a.bload(of(p & 1, kp, mt), 4, 14, S_WS, "s82", off=(f % 4)*1024, flags="sc1"), ver.__setitem__(("O", p & 1, kp, mt), p))]
    def publish(mt, pair):
        if pair == 4 and mt == 1: return []
        slot = pair*3 + mt if pair < 4 else 12 + mt//2
        r = acc2(mt, 2*pair)
        out = [cvt(r, r, r+1), cvt(r+1, r+2, r+3)]
        n = 4
        if slot < 13:
            s_ = acc2(mt, 2*pair+1) if pair < 4 else acc2(1, 8)
            out += [cvt(r+2, s_, s_+1), cvt(r+3, s_+2, s_+3)]
        def st_():
            L = newlabel("own"); L2 = newlabel("ownb")
            a.s(f"s_cmp_eq_u32 s90, {slot & 7}")
            a.s(f"s_cbranch_scc1 {L}")
            if slot < 13: a.bstore(r, 4, 14, S_WS, "s82", flags="sc1")
            else: a.bstore(r, 2, 11, S_WS, "s82", flags="sc1")
            a.label(L2)
            a.ool += [f"{L}:", f"    ds_write_b128 v2, v[{r}:{r+3}] offset:{(slot >> 3)*4096}", f"    s_branch {L2}"]
        out += [lambda: a.s(f"s_add_u32 s82, s92, {slot*8192}"), st_]
        return out
    for i in range(NB): rdW2(i, 0)(); rdW2(i, 1)()
    seen = set()
    for i, (p, kp, t) in enumerate(items):
        if cfg.flagpos and i == cfg.flagpos*9:
            F.drain()
            flag()
            if cfg.fbar: a.barrier()
        if i == cfg.pollpos*9:
            F.drain()
            poll_flags(a, 6, 8, 11, 84, "s86", 76)
            stamp(a, cfg, 7)
            for f in headbase(1): f()
            if i == 36:
                for fr in range(12):
                    for f in ldO(1, fr): f()
            else:
                for fr in range(12): F.add(*ldO(1, fr))
        if cfg.p2st and i in (37, 72, 108): stamp(a, cfg, {37: 3, 72: 4, 108: 5}[i])
        if i == 36:
            F.drain()
            if cfg.p2st: stamp(a, cfg, 1)
            a.barrier()
            if cfg.p2st: stamp(a, cfg, 2)
            for r in R: a.v(f"v_add_u32 v{r}, s93, v{r}")
            for j in range(36, 36 + NB): rdW2(j, 0)(); rdW2(j, 1)()
            F.add(*headbase(2))
        if p == 1 and t in (0, 3, 6): F.add(*ldO(2, kp*3 + t//3))
        if i == 72: F.add(*headbase(3)); F.add(*tail_vsetup(a))
        if p == 2 and kp < 2 and t < 6: F.add(*ldO(3, kp*6 + t))
        for mt in range(3):
            assert ver[("W2", i % NB, 0)] == i and ver[("W2", i % NB, 1)] == i and ver[("O", p & 1, kp, mt)] == p, (i, p, kp, t)
            a.mfma(acc2(mt, t), Wf2(i % NB), of(p & 1, kp, mt), acc2(mt, t) if (mt, t) in seen else None)
            seen.add((mt, t))
            F.pop(3 if len(F.q) > 8 else 2 if len(F.q) > 2 else 1)
        j = i + NB
        if j < len(items) and not (p == 0 and j >= 36):
            if j % 36 == 0:
                F.drain()
                a.barrier()
                for r in R: F.add(lambda r=r, j=j: a.v(f"v_add_u32 v{r}, s{92 + j//36}, v{r}"))
                F.add(rdW2(j, 0), rdW2(j, 1))
            elif j % 36 == 1: F.add(rdW2(j, 0), rdW2(j, 1))
            else: F.q = [rdW2(j, 0), rdW2(j, 1)] + F.q
        if p == 3 and cfg.prog and kp == 0 and t >= 2 and t % 2 == 0:
            for mt in range(3): F.add(*publish(mt, t//2 - 1))
    stamp(a, cfg, 8)
    F.drain()
    for pair in range(4 if cfg.prog else 0, 5):
        for mt in range(3):
            for f in publish(mt, pair): f()
    stamp(a, cfg, 9)
    a.waitcnt(vm=0, lgkm=0)
    stamp(a, cfg, 11)
    a.s("s_xor_b32 s97, s97, 0xff")
    if cfg.f2:
        a.s("s_mov_b32 exec_lo, s97"); a.s("s_mov_b32 exec_hi, 0")
        a.s("s_lshl_b32 s76, s90, 3")
        a.s("s_add_u32 s76, s76, s96")
        a.bstore(8, 2, 3, S_WS, "s76", flags="sc1")
        a.s("s_lshl_b32 s76, s90, 7")
        a.s("s_add_u32 s96, s96, s76")
    else:
        a.s("s_xor_b32 exec_lo, s97, 0xff"); a.s("s_mov_b32 exec_hi, 0")
        a.bstore(8, 2, 11, S_WS, "s96", flags="sc1")
    poll_flags(a, 6, 8, 11, 96, "s97", 76)

def tail(a, cfg, endlabel):
    a.barrier()
    a.s("s_cmp_ge_u32 s89, 14")
    a.s(f"s_cbranch_scc1 {endlabel}")
    stamp(a, cfg, 12)
    a.ds_read("ds_read_b128", 16, 4, 2)
    a.s("s_cmp_eq_u32 s89, 13")
    a.s("s_cbranch_scc1 L_half")
    def srcoff(k):
        a.s(f"s_add_u32 s76, s90, {k}")
        a.s("s_and_b32 s76, s76, 7")
        a.s("s_lshl_b32 s76, s76, 10")
        a.s("s_add_u32 s76, s76, s88")
    for k in range(1, 8):
        srcoff(k); a.bload(16 + 4*k, 4, 14, S_WS, "s76", flags="sc1")
    a.label("L_halfb")
    ool = Asm()
    ool.label("L_half")
    for k in range(1, 8):
        ool.s(f"s_add_u32 s76, s90, {k}"); ool.s("s_and_b32 s76, s76, 7"); ool.s("s_lshl_b32 s76, s76, 10"); ool.s("s_add_u32 s76, s76, s88")
        ool.bload(16 + 4*k, 2, 11, S_WS, "s76", flags="sc1")
    ool.s("s_branch L_halfb")
    a.ool += ool.L
    for k in range(8):
        src = 16 + 4*k
        for i in range(4):
            if k == 0:
                a.v(f"v_lshlrev_b32 v{48+2*i}, 16, v{src+i}")
                a.v(f"v_and_b32 v{49+2*i}, 0xffff0000, v{src+i}")
            else:
                a.v(f"v_lshlrev_b32 v{60+2*(i&1)}, 16, v{src+i}")
                a.v(f"v_and_b32 v{61+2*(i&1)}, 0xffff0000, v{src+i}")
                a.v(f"v_pk_add_f32 v[{48+2*i}:{49+2*i}], v[{48+2*i}:{49+2*i}], v[{60+2*(i&1)}:{61+2*(i&1)}]")
        if k == 1: stamp(a, cfg, 13)
    for i in range(4): a.v(f"v_cvt_pk_bf16_f32 v{64+i}, v{48+2*i}, v{49+2*i}")
    a.v("v_permlane16_swap_b32 v64, v66")
    a.v("v_permlane16_swap_b32 v65, v67")
    stamp(a, cfg, 14)
    a.s("s_mov_b64 exec, s[78:79]")
    a.bstore(64, 4, 4, S_OUT, "s87", flags=cfg.st_out)

def kernel(cfg):
    a = Asm()
    a.lcap = cfg.lcap
    a.ool = []
    stamp(a, cfg, 0)
    prologue(a, cfg, "L_end")
    a.s(f"s_cmp_lt_u32 s{S_W}, 4")
    a.s("s_cbranch_scc1 L_compute")
    loader(a, cfg)
    a.label("L_compute")
    a.reset_state()
    compute(a, cfg)
    a.label("L_tail")
    a.reset_state()
    a.nop(2)
    tail(a, cfg, "L_end")
    if cfg.stamps: a.waitcnt(vm=0)
    stamp(a, cfg, 15)
    stamp_out(a, cfg)
    a.label("L_end")
    a.s("s_endpgm")
    for l in a.ool: a.raw(l)
    return a

HEADER = open("cdna_kernels/" + NAME + ".s.ref").read().split("; Override launch")[0]

def build(cfg):
    n = NAME + "_kernel"
    a = kernel(cfg)
    return HEADER + f"""; @launch grid=(256,1,1) block=(512,1,1) lds=163840
.amdgcn_target "amdgcn-amd-amdhsa--gfx950"
.text
.globl {n}
.p2align 8
.type {n},@function
{n}:
{a.text()}
L_code_end:
.section .rodata,"a"
.p2align 6
.amdhsa_kernel {n}
  .amdhsa_next_free_vgpr 256
  .amdhsa_next_free_sgpr 102
  .amdhsa_accum_offset 256
  .amdhsa_group_segment_fixed_size 0
  .amdhsa_kernarg_size 104
  .amdhsa_user_sgpr_count 2
  .amdhsa_user_sgpr_kernarg_segment_ptr 1
  .amdhsa_system_sgpr_workgroup_id_x 1
.end_amdhsa_kernel
"""

if __name__ == "__main__":
    cfg = Cfg()
    for kv in sys.argv[2:]:
        k, v = kv.split("=")
        cur = getattr(cfg, k)
        setattr(cfg, k, (v == "1") if isinstance(cur, bool) else int(v) if isinstance(cur, int) else v.replace("_", " "))
    open(sys.argv[1], "w").write(build(cfg))
```

```python
import sys, struct
from asm import *

NAME = "concat_heads__gqa_block_cached__mha_block_cached__near_ridge"
SL = 40960
KSTR, VSTR = 4112, 4128
KUNIT, VUNIT = 1024, 1024
KBASE = 0
VBASE_L = 12*KSTR
WS_O = 0
WS_FLAG1 = 13 << 20
WS_FLAG2 = 14 << 20
WS_PART = 16 << 20
WS_STAMP = 15 << 20
WS_BYTES = 32 << 20
SC = 0.08838834764831845 * 1.4426950408889634
SPIN_MAX = 1 << 17
def f2u(x): return struct.unpack("<I", struct.pack("<f", x))[0]

S_X, S_K, S_V, S_WQ, S_WO, S_OUT, S_WS, S_DBG = 36, 40, 44, 48, 52, 56, 60, 64
S_BR, S_KQ, S_HL, S_BG, S_W, S_NT, S_E = 68, 69, 70, 71, 72, 98, 99

class Cfg:
    stamps = False; x_clk = False; lst = 0
    ld_x = ""; ld_wq = ""; ld_kv = ""; ld_wo = ""; st_out = ""
    skew = 3; prio = 0; lcap = 8; barpos = 3
    el = 1; pollpos = 2; ctouch = 2; e_wo = 1; l_wo = 0; prog = 1; touch = 0; tpos = 3; wo2 = 2; flagpos = 0; e_vpos = 4; l_kpos = 2; f2 = 1; c_kpos = 4; c_tpos = 2; swap = 1; own = 1; warmf = 1; p2st = 0; fbar = 1; wo0late = 1; x_enc = -1; x_amp = 4; dbgwg = 0

NST = 16
def streg(i): return 4 if i == 0 else 8 + 2*(i-1) if i <= 13 else {14: 34, 15: 100}[i]
def stamp(a, cfg, i):
    if cfg.stamps:
        r = streg(i)
        a.raw(f"    {'s_memtime' if cfg.x_clk else 's_memrealtime'} s[{r}:{r+1}]"); a.pos += 1
def stamp_out(a, cfg):
    if not cfg.stamps: return
    if cfg.x_enc >= 0:
        a.raw("    s_waitcnt lgkmcnt(0)")
        a.s("s_lshl_b32 s3, s2, 3")
        a.s(f"s_add_u32 s3, s3, s{S_W}")
        a.s(f"s_cmp_lg_u32 s3, {cfg.dbgwg*8}")
        a.s("s_cbranch_scc1 L_end")
        a.s(f"s_sub_u32 s76, s{streg(cfg.x_enc)}, s4")
        a.s(f"s_mul_i32 s76, s76, {cfg.x_amp}")
        a.s("s_add_u32 s76, s76, 5000")
        a.label("L_hold")
        a.raw("    s_memrealtime s[78:79]")
        a.raw("    s_waitcnt lgkmcnt(0)")
        a.s("s_sub_u32 s77, s78, s4")
        a.s("s_cmp_lt_u32 s77, s76")
        a.s("s_cbranch_scc1 L_hold")
        return
    a.raw("    s_waitcnt lgkmcnt(0)")
    a.s("s_mov_b64 exec, 1")
    a.s("s_lshl_b32 s3, s2, 3")
    a.s(f"s_add_u32 s3, s3, s{S_W}")
    a.s("s_lshl_b32 s3, s3, 6")
    a.s(f"s_add_u32 s3, s3, {WS_STAMP}")
    a.v("v_mov_b32 v1, 0")
    for i in range(NST):
        a.v(f"v_mov_b32 v2, s{streg(i)}")
        a.bstore(2, 1, 1, S_WS, "s3", off=4*i)
        a.nop(2)

def srd(a, base, lo, hi, size):
    a.s(f"s_mov_b32 s{base}, s{lo}")
    a.s(f"s_mov_b32 s{base+1}, s{hi}")
    a.s(f"s_mov_b32 s{base+2}, {size}")
    a.s(f"s_mov_b32 s{base+3}, 0x20000")

def prologue(a, cfg, endlabel):
    a.s("s_cmp_ge_u32 s2, 256")
    a.s(f"s_cbranch_scc1 {endlabel}")
    a.raw("    s_load_dwordx16 s[8:23], s[0:1], 0")
    a.raw("    s_load_dwordx8 s[24:31], s[0:1], 64")
    a.raw("    s_load_dwordx2 s[32:33], s[0:1], 96")
    a.v("v_and_b32 v1, 63, v0")
    a.v("v_lshrrev_b32 v15, 6, v0")
    a.s(f"s_and_b32 s{S_KQ}, s2, 3")
    a.s(f"s_bfe_u32 s{S_BR}, s2, 0x10002")
    if cfg.swap: a.s(f"s_xor_b32 s{S_BR}, s{S_BR}, 1")
    a.s(f"s_bfe_u32 s{S_HL}, s2, 0x30003")
    a.s(f"s_lshr_b32 s{S_BG}, s2, 6")
    a.s(f"s_and_b32 s{S_NT}, s{S_HL}, 3")
    a.v(f"v_readfirstlane_b32 s{S_W}, v15")
    if cfg.el:
        a.s(f"s_lshr_b32 s{S_E}, s{S_HL}, 2")
        a.s(f"s_xor_b32 s{S_E}, s{S_E}, s{S_BG}")
        a.s(f"s_and_b32 s{S_E}, s{S_E}, 1")
        a.s(f"s_mov_b32 s3, s{S_E}")
        if cfg.el == 2: a.s(f"s_mov_b32 s{S_E}, 0")
    else:
        a.s(f"s_mov_b32 s{S_E}, 0")

def build_srds(a, keys):
    a.raw("    s_waitcnt lgkmcnt(0)")
    a.s(f"s_cmp_eq_u32 s{S_BR}, 0")
    for (dst, pa, pb, key) in ((S_WQ, 14, 24, 'wq'), (S_X, 8, 18, 'x'), (S_K, 10, 20, 'k'), (S_V, 12, 22, 'v'), (S_WO, 16, 26, 'wo')):
        if key not in keys: continue
        a.s(f"s_cselect_b64 s[{dst}:{dst+1}], s[{pa}:{pa+1}], s[{pb}:{pb+1}]")
        if key in ('k', 'v'):
            a.s(f"s_mov_b32 s{dst+2}, 6291456")
            a.s(f"s_cselect_b32 s{dst+2}, 3145728, s{dst+2}")
        else:
            a.s(f"s_mov_b32 s{dst+2}, {884736 if key == 'x' else 4718592}")
        a.s(f"s_mov_b32 s{dst+3}, 0x20000")
    if 'o' in keys:
        srd(a, S_OUT, 28, 29, 1769472)
        srd(a, S_DBG, 30, 31, 256)
        srd(a, S_WS, 32, 33, WS_BYTES)

def head_order(a, p, sd):
    if p == 0: a.s(f"s_mov_b32 s{sd}, s{S_NT}")
    else:
        a.s(f"s_cmp_le_u32 s{S_NT}, {p-1}"); a.s(f"s_cselect_b32 s{sd}, {p}, {p-1}")

_lbl = [0]
def newlabel(p):
    _lbl[0] += 1
    return f"L{p}_{_lbl[0]}"

def poll_flags(a, vdata, vnonce, voff, soff, mask, stmp):
    L = newlabel("poll"); X = newlabel("pollx")
    a.s(f"s_mov_b32 exec_lo, {mask}")
    a.s("s_mov_b32 exec_hi, 0")
    a.s(f"s_mov_b32 s{stmp}, 0")
    a.label(L)
    a.bload(vdata, 2, voff, S_WS, f"s{soff}", flags="sc1")
    a.s(f"s_add_u32 s{stmp}, s{stmp}, 1")
    a.s(f"s_cmp_gt_u32 s{stmp}, {SPIN_MAX}")
    a.waitcnt(vm=0)
    a.s(f"s_cbranch_scc1 {X}")
    a.v(f"v_cmp_ne_u64 vcc, v[{vdata}:{vdata+1}], v[{vnonce}:{vnonce+1}]")
    a.s(f"s_cbranch_vccnz {L}")
    a.label(X)
    a.s("s_mov_b64 exec, -1")

def nonce_check(a, vzero):
    Lok = newlabel("nok"); Lsp = newlabel("nsp")
    a.s("s_mov_b32 s77, 0")
    a.v("v_readfirstlane_b32 s76, v8")
    a.label(Lsp)
    a.s("s_cmp_lg_u32 s76, 0")
    a.s(f"s_cbranch_scc1 {Lok}")
    a.s("s_add_u32 s77, s77, 1")
    a.s(f"s_cmp_gt_u32 s77, {SPIN_MAX}")
    a.s(f"s_cbranch_scc1 {Lok}")
    a.raw(f"    buffer_load_dwordx2 v[8:9], v{vzero}, s[{S_DBG}:{S_DBG+3}], 0 offen sc1")
    a.raw("    s_waitcnt vmcnt(0)")
    a.raw("    v_readfirstlane_b32 s76, v8")
    a.raw("    s_nop 0")
    a.s(f"s_branch {Lsp}")
    a.label(Lok)

def unit_base(a, sd, sb_w, shead):
    a.s(f"s_lshl_b32 s76, s{S_BR}, 4")
    a.s(f"s_lshl_b32 s77, s{S_BG}, 2")
    a.s("s_add_u32 s76, s76, s77")
    a.s(f"s_add_u32 s76, s76, s{sb_w}")
    a.s("s_lshl_b32 s76, s76, 5")
    a.s(f"s_add_u32 s76, s76, s{shead}")
    a.s(f"s_mul_i32 s{sd}, s76, 12288")

def tail_ssetup(a, sw, half):
    a.s(f"s_lshr_b32 s90, s{S_HL}, 2")
    a.s(f"s_lshl_b32 s76, s{S_KQ}, 1")
    a.s("s_add_u32 s90, s90, s76")
    a.s(f"s_add_u32 s89, s90, {8*half}")
    a.s(f"s_lshl_b32 s91, s{S_BR}, 2")
    a.s(f"s_add_u32 s91, s91, s{S_BG}")
    a.s("s_lshl_b32 s91, s91, 2")
    a.s(f"s_add_u32 s91, s91, s{S_NT}")
    a.s("s_lshl_b32 s91, s91, 2")
    a.s(f"s_add_u32 s91, s91, s{sw}")
    a.s("s_lshl_b32 s76, s91, 10")
    a.s(f"s_add_u32 s96, s76, {WS_FLAG2}")
    a.s("s_lshl_b32 s92, s91, 17")
    a.s(f"s_add_u32 s92, s92, {WS_PART}")
    a.s("s_lshl_b32 s76, s89, 13")
    a.s("s_add_u32 s88, s92, s76")
    a.s("s_lshl_b32 s76, s90, 10")
    a.s("s_add_u32 s92, s92, s76")
    a.s("s_mul_i32 s76, s89, 43")
    a.s("s_lshr_b32 s76, s76, 7")
    a.s("s_mul_i32 s77, s76, 3")
    a.s("s_sub_u32 s77, s89, s77")
    a.s("s_cmp_eq_u32 s89, 13")
    a.s("s_cselect_b32 s77, 2, s77")
    a.s("s_lshl_b32 s87, s76, 6")
    a.s(f"s_mul_i32 s77, s77, {16*2304}")
    a.s("s_add_u32 s87, s87, s77")
    a.s(f"s_lshl_b32 s77, s{S_BG}, 2")
    a.s(f"s_add_u32 s77, s77, s{sw}")
    a.s(f"s_mul_i32 s77, s77, {48*2304}")
    a.s("s_add_u32 s87, s87, s77")
    a.s(f"s_mul_i32 s77, s{S_BR}, 1152")
    a.s("s_add_u32 s87, s87, s77")
    a.s(f"s_mul_i32 s77, s{S_NT}, 288")
    a.s("s_add_u32 s87, s87, s77")
    a.s("s_cmp_lt_u32 s89, 12")
    a.s(f"s_cselect_b32 s74, 32, {16*2304}")
    a.s("s_cmp_lt_u32 s89, 13")
    a.s("s_cselect_b32 s78, -1, 0xffff")
    a.s("s_mov_b32 s79, s78")
    for u in range(16): assert (u*43) >> 7 == u//3

def tail_vsetup(a, sw=S_W, half=0):
    return [lambda t=t: a.v(t) for t in (
        "v_and_b32 v4, 15, v1", "v_mul_u32_u24 v4, 2304, v4", "v_bfe_u32 v5, v1, 4, 1", "v_mad_u32_u24 v4, v5, s74, v4",
        "v_lshrrev_b32 v5, 5, v1", "v_lshl_add_u32 v4, v5, 4, v4", "v_lshlrev_b32 v3, 7, v1", f"v_lshlrev_b32 v2, 4, v1", f"v_lshl_add_u32 v2, s{sw}, 10, v2", f"v_add_u32 v2, {3*SL + half*4096}, v2")]

def loader(a, cfg):
    a.s(f"s_sub_u32 s73, s{S_W}, 4")
    a.s("s_and_b32 s74, s73, 1")
    a.s("s_lshr_b32 s75, s73, 1")
    a.s(f"s_lshl_b32 s95, s{S_KQ}, 3")
    a.s(f"s_add_u32 s95, s95, s{S_HL}")
    a.v("v_lshrrev_b32 v4, 4, v1")
    a.s("s_lshl_b32 s76, s75, 2")
    a.v("v_or_b32 v5, s76, v4")
    a.v("v_bfe_u32 v6, v1, 1, 3")
    a.v("v_xor_b32 v6, v6, v5")
    a.v("v_lshlrev_b32 v6, 5, v6")
    a.v("v_and_b32 v7, 1, v1")
    a.v("v_lshl_add_u32 v6, v7, 4, v6")
    a.v("v_lshl_add_u32 v2, v4, 13, v6")
    a.s("s_lshl_b32 s76, s73, 15")
    a.s("s_lshl_b32 s77, s95, 8")
    a.s("s_add_u32 s76, s76, s77")
    a.v("v_add_u32 v2, s76, v2")
    a.v("v_lshlrev_b32 v5, 2, v4")
    a.v("v_and_b32 v6, 15, v1")
    a.v("v_xor_b32 v6, v6, v5")
    a.v("v_lshlrev_b32 v6, 4, v6")
    a.v("v_lshl_add_u32 v10, v4, 8, v6")
    a.s("s_lshl_b32 s76, s74, 2")
    a.v("v_or_b32 v5, s76, v4")
    a.v("v_lshrrev_b32 v4, 3, v1")
    a.v("v_mul_u32_u24 v4, 1152, v4")
    a.v("v_and_b32 v6, 7, v1")
    a.v("v_xor_b32 v6, v6, v5")
    a.v("v_lshl_add_u32 v3, v6, 4, v4")
    a.s(f"s_mul_i32 s76, s{S_BG}, {192*1152}")
    a.s(f"s_mul_i32 s77, s74, {8*1152}")
    a.s("s_add_u32 s76, s76, s77")
    a.s(f"s_mul_i32 s77, s75, {96*1152}")
    a.s("s_add_u32 s76, s76, s77")
    a.v("v_add_u32 v3, s76, v3")
    a.s("s_lshl_b32 s78, s73, 10")
    a.s("s_mul_i32 s79, s75, 12288")
    a.s("s_lshl_b32 s77, s74, 10")
    a.s("s_add_u32 s79, s79, s77")
    a.s("s_add_u32 s79, s79, 16384")
    a.s(f"s_lshl_b32 s76, s{S_BG}, 2")
    a.s("s_add_u32 s76, s76, s73")
    a.s("s_lshl_b32 s76, s76, 5")
    a.s("s_add_u32 s76, s76, s95")
    a.s(f"s_xor_b32 s77, s{S_BR}, 1")
    a.s("s_lshr_b32 s76, s76, s77")
    a.s("s_mul_i32 s80, s76, 12288")
    a.s(f"s_mul_i32 s91, s73, {KUNIT}")
    a.s(f"s_add_u32 s91, s91, {KBASE}")
    a.s(f"s_mul_i32 s92, s73, {VUNIT}")
    if cfg.skew == 3:
        a.s(f"s_add_u32 s84, s{S_HL}, s{S_BG}")
        a.s("s_mul_i32 s85, s84, 43")
        a.s("s_lshr_b32 s85, s85, 7")
        a.s("s_mul_i32 s85, s85, 3")
        a.s("s_sub_u32 s84, s84, s85")
        a.s("s_mul_i32 s84, s84, 3")
    elif cfg.skew == 4:
        a.s(f"s_add_u32 s84, s{S_HL}, s{S_BG}")
        a.s("s_and_b32 s84, s84, 3")
        a.s("s_lshl_b32 s84, s84, 1")
    elif cfg.skew == 2:
        a.s(f"s_lshr_b32 s84, s{S_BG}, 1")
        a.s(f"s_xor_b32 s84, s84, s{S_HL}")
        a.s("s_and_b32 s84, s84, 1")
        a.s("s_lshl_b32 s84, s84, 2")
    elif cfg.skew == 9:
        a.s(f"s_lshl_b32 s84, s{S_BG}, 1")
        a.s(f"s_add_u32 s84, s84, s{S_HL}")
        a.s("s_sub_u32 s85, s84, 9")
        a.s("s_cmp_ge_u32 s84, 9")
        a.s("s_cselect_b32 s84, s85, s84")
    else:
        a.s("s_mov_b32 s84, 0")
    build_srds(a, ('x', 'wq', 'k'))
    def stage(s):
        slot = (1 + s % 3) * SL
        a.s("s_lshl_b32 s85, s84, 7")
        a.s("s_lshl_b32 s86, s84, 19")
        for i in range(4):
            a.s(f"s_add_u32 m0, s78, {slot + i*4096}")
            a.s(f"s_add_u32 s82, s86, {16*i*8192}")
            a.dma(2, S_WQ, "s82", cfg.ld_wq, tag=("st", s))
        for z in range(6):
            a.s(f"s_add_u32 m0, s79, {slot + z*2048}")
            a.s(f"s_add_u32 s82, s85, {z*16*1152}")
            a.dma(3, S_X, "s82", cfg.ld_x, tag=("st", s))
        a.s("s_add_u32 s84, s84, 1")
        a.s("s_cmp_eq_u32 s84, 9")
        a.s("s_cselect_b32 s84, 0, s84")
    def kvpart(g, srdb, sm0, stride, lo, hi, base=0):
        for i in range(lo, hi):
            a.s(f"s_add_u32 m0, s{sm0}, {base + i*stride}")
            a.s(f"s_add_u32 s82, s80, {i*1024}")
            a.dma(10, srdb, "s82", cfg.ld_kv, tag=("st", g))
    def codetouch():
        a.s("s_mov_b64 exec, 3")
        a.raw("    global_load_dword v24, v25, s[6:7]"); a.pos += 1
        a.vm.append((None, "touch"))
        a.s("s_mov_b64 exec, -1")
    def setup2():
        if cfg.ctouch:
            L = newlabel("pc")
            a.raw("    s_getpc_b64 s[6:7]")
            a.label(L)
            a.s(f"s_sub_u32 s6, s6, {L}-{NAME}_kernel")
            a.s("s_subb_u32 s7, s7, 0")
            a.s("s_lshr_b32 s76, s2, 3")
            a.s("s_lshl_b32 s76, s76, 2")
            a.s("s_add_u32 s76, s76, s73")
            a.s("s_lshl_b32 s76, s76, 8")
            a.v("v_lshlrev_b32 v25, 7, v1")
            a.v("v_add_u32 v25, s76, v25")
            a.s("s_mov_b32 s77, L_code_end-" + NAME + "_kernel-4")
            a.v("v_min_u32 v25, s77, v25")
            codetouch()
        build_srds(a, ('v', 'wo', 'o'))
        stamp(a, cfg, 1)
        a.v("v_mov_b32 v16, 0")
        L = newlabel("nw")
        a.s("s_add_u32 s76, s2, s73")
        a.s("s_cmp_lg_u32 s76, 0")
        a.s(f"s_cbranch_scc1 {L}")
        a.raw("    s_memrealtime s[88:89]")
        a.raw("    s_waitcnt lgkmcnt(0)")
        a.s("s_or_b32 s88, s88, 1")
        a.v("v_mov_b32 v18, s88")
        a.v("v_mov_b32 v19, s89")
        a.s("s_mov_b64 exec, 1")
        a.raw(f"    buffer_store_dwordx2 v[18:19], v16, s[{S_DBG}:{S_DBG+3}], 0 offen sc1")
        a.s("s_mov_b64 exec, -1")
        a.label(L)
    def setup3():
        a.s("s_and_b32 s76, s95, 0xfc")
        a.s("s_lshl_b32 s76, s76, 7")
        a.s("s_lshl_b32 s77, s73, 5")
        a.s("s_add_u32 s76, s76, s77")
        a.s("s_mul_i32 s76, s76, 1152")
        a.s(f"s_mul_i32 s77, s{S_NT}, 288")
        a.s("s_and_b32 s77, s77, 0xffffffc0")
        a.s("s_add_u32 s76, s76, s77")
        for y in range(5):
            a.v(f"v_add_u32 v4, {y*64}, v1")
            a.v("v_mul_u32_u24 v5, 3277, v4")
            a.v("v_lshrrev_b32 v5, 16, v5")
            a.v("v_mul_u32_u24 v6, 20, v5")
            a.v("v_sub_u32 v6, v4, v6")
            a.v("v_bfe_u32 v7, v5, 2, 1")
            a.v("v_lshlrev_b32 v7, 1, v7")
            a.v("v_xor_b32 v6, v6, v7")
            a.v("v_mul_u32_u24 v5, 1152, v5")
            a.v("v_lshl_add_u32 v5, v6, 4, v5")
            a.v(f"v_add_u32 v{26+y}, s76, v5")
        a.s("s_mul_i32 s93, s73, 10240")
        a.v("v_lshlrev_b32 v22, 7, v1")
        if cfg.touch >= 2:
            a.s(f"s_lshl_b32 s76, s{S_BG}, 2")
            a.s(f"s_add_u32 s76, s76, s{S_NT}")
        else:
            a.s("s_lshr_b32 s76, s2, 3")
        a.s("s_lshl_b32 s76, s76, 2")
        a.s("s_add_u32 s76, s76, s73")
        a.s(f"s_mul_i32 s76, s76, {(144 if cfg.touch >= 2 else 72)*128}")
        a.s(f"s_mul_i32 s94, s{S_KQ}, {1024*1152}")
        a.s("s_add_u32 s94, s94, s76")
    def touches():
        a.s("s_mov_b32 exec_lo, -1"); a.s("s_mov_b32 exec_hi, 15")
        for i in range(4 if cfg.touch >= 2 else 2):
            a.bload(23, 1, 22, S_WO, "s94", tag="touch"); a.vm[-1] = (None, "touch")
            a.s(f"s_add_u32 s94, s94, {36*128}")
        a.s("s_mov_b64 exec, -1")
    def wostage(p, start):
        head_order(a, p, 83)
        a.s(f"s_mul_i32 s83, s83, {128*1152}")
        for z2 in range(2):
            a.s(f"s_add_u32 s82, s83, {z2*16*1152}")
            for y in range(5):
                a.s(f"s_add_u32 m0, s93, {((start + p) % 4)*SL + z2*5120 + y*1024}")
                a.dma(26+y, S_WO, "s82", cfg.ld_wo, tag=("st", 11+p))
    def main(early, cls=0):
        cnt = [0]
        def st(i):
            if not cfg.lst: stamp(a, cfg, i)
        W = lambda g: a.wait_vm_tag(("st", g))
        def B():
            k = cnt[0] - cfg.lst
            if cfg.lst and 0 <= k < 5: stamp(a, cfg, 1 + 2*k)
            a.barrier()
            if cfg.lst and 0 <= k < 5: stamp(a, cfg, 2 + 2*k)
            cnt[0] += 1
        start = 2 if early else 3
        dot = cfg.touch == 1 or (cfg.touch == 2 and (early or cls)) or (cfg.touch == 3 and not (early or cls))
        vb = 0 if early else VBASE_L
        if early:
            kvpart(9, S_K, 91, KSTR, 0, 12, 2*SL)
            setup2()
            stage(0)
            setup3()
            W(9); st(2); a.barrier()
            a.barrier()
            stage(1)
        else:
            stage(0)
            setup2()
            stage(1)
            setup3()
            st(2)
        mid = cfg.e_vpos if early else cfg.c_kpos if cls else cfg.l_kpos
        tpos = cfg.c_tpos if cls else cfg.tpos
        nxt = 2
        for g in range(7):
            W(g)
            if g == 0: st(3)
            if g == 3: st(4)
            B()
            if g == 4 and cfg.ctouch > 1: codetouch()
            if g == mid:
                if early: kvpart(10, S_V, 92, VSTR, 0, 9, vb)
                else: kvpart(9, S_K, 91, KSTR, 0, 9)
                if dot and g == tpos: touches()
                continue
            if dot and g == tpos and g < 6: touches(); continue
            while nxt <= g + 2: stage(nxt); nxt += 1
            if dot and g == tpos: touches()
        assert nxt == 9
        W(7); B()
        lo = 9 if mid >= 0 else 0
        h1 = 12 if mid >= 0 else 7
        vlo = 0
        if early:
            kvpart(10, S_V, 92, VSTR, lo, h1, vb)
            if dot and tpos == 7: touches()
        else:
            kvpart(9, S_K, 91, KSTR, lo, h1)
            if mid >= 0: kvpart(10, S_V, 92, VSTR, 0, 4, vb); vlo = 4
        W(8); st(5); B()
        if early:
            kvpart(10, S_V, 92, VSTR, h1, 12, vb)
            if dot and tpos == 8: touches()
        else:
            kvpart(9, S_K, 91, KSTR, h1, 12)
            v2 = 12 if mid >= 0 else 7
            kvpart(10, S_V, 92, VSTR, vlo, v2, vb)
        W(9); st(6); B()
        nw = cfg.e_wo if early else cfg.l_wo
        nz = [0]
        def upto(z):
            while nz[0] <= min(z, 3): wostage(nz[0], start); nz[0] += 1
        if not early: kvpart(10, S_V, 92, VSTR, v2, 12, vb)
        if dot and tpos == 9: touches()
        if early: upto(nw - 1)
        W(10); st(7)
        if not early and nw and not cfg.wo0late: upto(0)
        B()
        if not early and nw and cfg.wo0late: upto(0)
        if not early and nw > 1: upto(1)
        B()
        if dot and tpos == 11: touches()
        upto(0)
        if cfg.ctouch > 1: codetouch()
        W(11); st(8); B()
        if cfg.fbar and cfg.flagpos: B()
        upto(max(1, nz[0] - 1 + cfg.wo2))
        W(12); st(9); B()
        upto(max(2, nz[0]))
        W(13); B()
        upto(3)
        W(14); st(10); B()
        a.v("v_lshlrev_b32 v14, 4, v1")
        a.v("v_lshlrev_b32 v11, 3, v1")
        tail_ssetup(a, 73, 1)
        for f in tail_vsetup(a, 73, 1): f()
        a.s("s_branch L_tail")
    if cfg.el:
        a.s("s_cmp_eq_u32 s3, 1")
        a.s("s_cbranch_scc1 L_early")
        main(False)
        a.label("L_early")
        a.reset_state()
        main(cfg.el == 1, cfg.el == 2)
    else:
        main(False)

def xlane_reduce(a, op, regs, tmps):
    for sw in ("v_permlane32_swap_b32", "v_permlane16_swap_b32"):
        for r, t in zip(regs, tmps): a.v(f"v_mov_b32 v{t}, v{r}")
        for r, t in zip(regs, tmps): a.v(f"{sw} v{r}, v{t}")
        for r, t in zip(regs, tmps): a.v(f"{op} v{r}, v{r}, v{t}")

class Fill:
    def __init__(self): self.q = []
    def add(self, *fs): self.q.extend(fs)
    def pop(self, n):
        for _ in range(n):
            if self.q: self.q.pop(0)()
    def drain(self): self.pop(len(self.q))

def compute(a, cfg):
    ACC = 16; WF = 112; XF = 144; KF = 168; AS = 216; VF = 112
    accQ = lambda t, mt: ACC + (t*3 + mt)*4
    Wf = lambda t: WF + 4*t
    Xf = lambda par, mt: XF + par*12 + mt*4
    Kf = lambda kt, kp: KF + (kt*4 + kp)*4
    accS = lambda kt, mt: AS + (kt*3 + mt)*4
    Vf = lambda t: VF + 6*t
    accO = lambda mt, t: ACC + (mt*8 + t)*4
    aW = lambda st_, t: 216 + st_*10 + t
    aX = lambda st_, ks: 216 + st_*10 + 8 + ks
    aK = lambda kp: 252 + kp
    aV = lambda th: 2 + th
    R = [13, 15]
    ofA = lambda kp, mt: 168 + (kp*3 + mt)*4
    def ofB(kp, mt):
        f = kp*3 + mt
        return 216 + f*4 if f < 10 else 160 + (f - 10)*4
    of = lambda buf, kp, mt: ofB(kp, mt) if buf else ofA(kp, mt)
    acc2 = lambda mt, t: 16 + (mt*9 + t)*4
    Wf2 = lambda i: 124 + 4*i

    if cfg.prio: a.s(f"s_setprio {cfg.prio}")
    a.v("v_lshrrev_b32 v160, 4, v1")
    a.v("v_bfe_u32 v161, v1, 2, 2")
    a.v("v_and_b32 v162, 3, v1")
    a.v("v_and_b32 v163, 15, v1")
    a.v("v_and_b32 v165, 1, v160")
    a.s(f"s_mul_i32 s76, s{S_W}, {KUNIT}")
    a.s(f"s_mul_i32 s77, s{S_E}, {2*SL}")
    a.s("s_add_u32 s76, s76, s77")
    a.v(f"v_mul_u32_u24 v164, {KSTR}, v161")
    a.v("v_lshl_add_u32 v164, v162, 8, v164")
    a.v("v_lshl_add_u32 v164, v160, 3, v164")
    a.v("v_add_u32 v164, s76, v164")
    for kp in range(4):
        a.v(f"v_xor_b32 v167, {kp}, v162")
        a.v(f"v_lshl_add_u32 v{aK(kp)}, v167, 6, v164")
    a.v("v_lshl_add_u32 v164, v160, 3, v161")
    a.v("v_lshlrev_b32 v164, 8, v164")
    a.v("v_lshl_or_b32 v166, v165, 2, v161")
    a.v("v_lshl_add_u32 v164, v166, 5, v164")
    a.v("v_lshl_add_u32 v164, v162, 3, v164")
    a.v(f"v_add_u32 v{aW(0,0)}, {SL}, v164")
    for t in range(1, 8): a.v(f"v_xor_b32 v{aW(0,t)}, {32*t}, v{aW(0,0)}")
    a.v("v_lshrrev_b32 v164, 1, v163")
    a.v("v_xor_b32 v164, v164, v160")
    a.v("v_lshlrev_b32 v164, 4, v164")
    a.v("v_lshl_add_u32 v164, v163, 7, v164")
    a.s(f"s_mul_i32 s76, s{S_W}, 6144")
    a.s(f"s_add_u32 s76, s76, {16384 + SL}")
    a.v(f"v_add_u32 v{aX(0,0)}, s76, v164")
    a.v(f"v_xor_b32 v{aX(0,1)}, 64, v{aX(0,0)}")
    for i in range(10): a.v(f"v_add_u32 v{226+i}, {2*SL}, v{216+i}")
    a.s(f"s_mul_i32 s76, s{S_W}, {VUNIT}")
    a.s(f"s_cmp_eq_u32 s{S_E}, 1")
    a.s(f"s_cselect_b32 s77, 0, {VBASE_L}")
    a.s("s_add_u32 s76, s76, s77")
    a.v(f"v_mul_u32_u24 v164, {VSTR}, v160")
    a.v("v_lshl_add_u32 v164, v161, 8, v164")
    a.v("v_lshl_add_u32 v164, v162, 3, v164")
    a.v("v_add_u32 v164, s76, v164")
    for th in range(4):
        a.v(f"v_xor_b32 v167, {th}, v161")
        a.v(f"v_lshl_add_u32 v{aV(th)}, v167, 6, v164")
    a.v("v_lshl_add_u32 v164, v160, 2, v161")
    a.v("v_mul_u32_u24 v164, 320, v164")
    a.v("v_lshl_add_u32 v164, v162, 3, v164")
    a.s(f"s_cmp_eq_u32 s{S_E}, 1")
    a.s(f"s_mov_b32 s76, {3*SL}")
    a.s(f"s_cselect_b32 s76, {2*SL}, s76")
    a.s(f"s_mov_b32 s93, {SL}")
    a.s(f"s_cselect_b32 s93, s93, {(-3*SL) & 0xffffffff}")
    a.s(f"s_mov_b32 s94, {SL}")
    a.s(f"s_cselect_b32 s94, {(-3*SL) & 0xffffffff}, s94")
    a.s(f"s_mov_b32 s95, {SL}")
    a.v("v_add_u32 v164, s76, v164")
    a.s(f"s_and_b32 s77, s{S_NT}, 1")
    a.v("v_xor_b32 v167, s77, v165")
    a.v(f"v_lshl_add_u32 v{R[0]}, v167, 5, v164")
    a.s("s_add_u32 s77, s77, 1")
    a.v("v_xor_b32 v167, s77, v165")
    a.v(f"v_lshl_add_u32 v{R[1]}, v167, 5, v164")
    a.v("v_lshlrev_b32 v14, 4, v1")
    a.v("v_lshlrev_b32 v11, 3, v1")
    a.v("v_mov_b32 v10, 0")
    a.s(f"s_lshl_b32 s81, s{S_KQ}, 3")
    a.s(f"s_and_b32 s82, s{S_HL}, 4")
    a.s("s_add_u32 s81, s81, s82")
    unit_base(a, 80, S_W, 81)
    a.s(f"s_mov_b32 s83, {f2u(SC)}")
    a.s("s_and_b32 s76, s2, 7")
    a.s("s_lshr_b32 s77, s2, 5")
    a.s("s_lshl_b32 s77, s77, 3")
    a.s("s_or_b32 s76, s76, s77")
    a.s("s_lshl_b32 s76, s76, 2")
    a.s(f"s_add_u32 s76, s76, s{S_W}")
    a.s("s_lshl_b32 s76, s76, 7")
    a.s(f"s_add_u32 s84, s76, {WS_FLAG1}")
    a.s(f"s_lshl_b32 s85, 1, s{S_NT}")
    a.s("s_xor_b32 s86, s85, 15")
    tail_ssetup(a, S_W, 0)
    a.s("s_lshl_b32 s97, 1, s90")
    build_srds(a, ('o',))
    if cfg.warmf:
        a.s("s_mov_b64 exec, 1")
        a.bload(6, 1, 10, S_WS, "s84", flags="sc1" if cfg.warmf == 1 else "")
        a.s("s_lshl_b32 s76, s90, 7")
        a.s("s_add_u32 s76, s76, s96")
        a.bload(7, 1, 10, S_WS, "s76", flags="sc1" if cfg.warmf == 1 else "")
        a.s("s_mov_b64 exec, -1")

    ver = {}
    def rdW(s, t, ks, h):
        def f():
            a.ds_read("ds_read_b64_tr_b16", Wf(t)+2*h, 2, aW((s % 3) >> 1, t), off=((s % 3) & 1)*SL + ks*8192 + h*1024); ver[("W", t, h)] = (s, ks)
        return f
    def rdX(s, mt, ks):
        def f():
            a.ds_read("ds_read_b128", Xf(ks, mt), 4, aX((s % 3) >> 1, ks), off=((s % 3) & 1)*SL + mt*2048); ver[("X", ks, mt)] = s
        return f
    def chk1(s, ks, t, mt):
        assert ver[("W", t, 0)] == (s, ks) and ver[("W", t, 1)] == (s, ks) and ver[("X", ks, mt)] == s, (s, ks, t, mt)
    def readK():
        for kp in range(4):
            for kt in range(3):
                for e in range(2): a.ds_read("ds_read_b64", Kf(kt, kp)+2*e, 2, aK(kp), off=kt*4*KSTR + 32*e)
    def cvt(d, s0, s1):
        return lambda: a.v(f"v_cvt_pk_bf16_f32 v{d}, v{s0}, v{s1}")
    def cvtQ(kp):
        out = []
        for mt in range(3):
            r = accQ(2*kp, mt); s_ = accQ(2*kp+1, mt)
            out += [cvt(r, r, r+1), cvt(r+1, r+2, r+3), cvt(r+2, s_, s_+1), cvt(r+3, s_+2, s_+3)]
        return out
    F = Fill()
    stamp(a, cfg, 1)
    if cfg.el == 1:
        a.s(f"s_cmp_eq_u32 s{S_E}, 0")
        a.s("s_cbranch_scc1 L_noK0")
        a.barrier()
        readK()
        a.waitcnt(lgkm=0)
        a.barrier()
        a.label("L_noK0")
    a.barrier()
    stamp(a, cfg, 2)
    for mt in range(3): rdX(0, mt, 0)()
    for t in range(8): rdW(0, t, 0, 0)(); rdW(0, t, 0, 1)()
    BP = cfg.barpos
    for s in range(9):
        last = s == 8
        for mt in range(3): F.add(rdX(s, mt, 1))
        for t in range(8):
            for mt in range(3):
                chk1(s, 0, t, mt)
                a.mfma(accQ(t, mt), Wf(t), Xf(0, mt), None if s == 0 else accQ(t, mt))
                F.pop(2 if len(F.q) > 2 else 1)
            F.add(rdW(s, t, 1, 0), rdW(s, t, 1, 1))
        for t in range(8):
            for mt in range(3):
                chk1(s, 1, t, mt)
                a.mfma(accQ(t, mt), Wf(t), Xf(1, mt), accQ(t, mt))
                F.pop(2 if len(F.q) > 2 else 1)
            if last:
                if t in (3, 5, 7): F.add(*cvtQ((t - 3)//2))
            elif t == BP - 1:
                assert not F.q
                a.waitcnt(lgkm=0)
                a.barrier()
                F.add(rdX(s+1, 0, 0), rdW(s+1, 0, 0, 0), rdW(s+1, 0, 0, 1), rdX(s+1, 1, 0), rdX(s+1, 2, 0))
                for tt in range(1, BP): F.add(rdW(s+1, tt, 0, 0), rdW(s+1, tt, 0, 1))
            elif t >= BP:
                F.add(rdW(s+1, t, 0, 0), rdW(s+1, t, 0, 1))
    a.waitcnt(lgkm=0)
    a.barrier()
    stamp(a, cfg, 3)
    a.bload(8, 2, 10, S_DBG, "0", flags="sc1", tag="nonce")
    if cfg.el:
        a.s(f"s_cmp_eq_u32 s{S_E}, 1")
        a.s("s_cbranch_scc1 L_noK1")
    readK()
    if cfg.el: a.label("L_noK1")
    F.drain()
    for f in cvtQ(3): f()
    for kp in range(4):
        for kt in range(3):
            for mt in range(3):
                a.mfma(accS(kt, mt), Kf(kt, kp), accQ(2*kp, mt), None if kp == 0 else accS(kt, mt))
    MX = [160, 161, 162]; TM = [163, 164, 165]; SM = [166, 167, 6]
    vals = lambda mt: [accS(kt, mt) + r for kt in range(3) for r in range(4)]
    for mt in range(3):
        v = vals(mt); a.v(f"v_max3_f32 v{MX[mt]}, v{v[0]}, v{v[1]}, v{v[2]}")
    for i in range(3, 11, 2):
        for mt in range(3):
            v = vals(mt); a.v(f"v_max3_f32 v{MX[mt]}, v{MX[mt]}, v{v[i]}, v{v[i+1]}")
    for mt in range(3):
        v = vals(mt); a.v(f"v_max_f32 v{MX[mt]}, v{MX[mt]}, v{v[11]}")
    xlane_reduce(a, "v_max_f32", MX, TM)
    for mt in range(3): a.v(f"v_mul_f32 v{MX[mt]}, s83, v{MX[mt]}")
    for i in range(12):
        for mt in range(3):
            v = vals(mt); a.v(f"v_fma_f32 v{v[i]}, v{v[i]}, s83, -v{MX[mt]}")
    for i in range(12):
        for mt in range(3):
            v = vals(mt); a.v(f"v_exp_f32 v{v[i]}, v{v[i]}")
    for mt in range(3):
        v = vals(mt); a.v(f"v_add_f32 v{SM[mt]}, v{v[0]}, v{v[1]}")
    for i in range(2, 12):
        for mt in range(3):
            v = vals(mt); a.v(f"v_add_f32 v{SM[mt]}, v{SM[mt]}, v{v[i]}")
    xlane_reduce(a, "v_add_f32", SM, TM)
    for mt in range(3): a.v(f"v_rcp_f32 v{SM[mt]}, v{SM[mt]}")
    a.barrier()
    for t in range(8):
        for kt in range(3):
            F.add(lambda t=t, kt=kt: a.ds_read("ds_read_b64_tr_b16", Vf(t) + 2*kt, 2, aV(t >> 1), off=kt*4*VSTR + (t & 1)*32))
    for i in range(12):
        for mt in range(3):
            v = vals(mt); a.v(f"v_mul_f32 v{v[i]}, v{v[i]}, v{SM[mt]}"); F.pop(1)
    for mt in range(3):
        r0, r1, r2 = accS(0, mt), accS(1, mt), accS(2, mt)
        for f in (cvt(r0, r0, r0+1), cvt(r0+1, r0+2, r0+3), cvt(r0+2, r1, r1+1), cvt(r0+3, r1+2, r1+3), cvt(r2, r2, r2+1), cvt(r2+1, r2+2, r2+3)): f()
    stamp(a, cfg, 4)
    nonce_check(a, 10)
    a.s(f"s_mul_i32 s81, s{S_NT}, 12288")
    a.s("s_add_u32 s81, s81, s80")
    def ostore(mt, kp):
        r = accO(mt, 2*kp); s_ = accO(mt, 2*kp+1); d = ofA(kp, mt); f = kp*3 + mt
        return [cvt(d, r, r+1), cvt(d+1, r+2, r+3), cvt(d+2, s_, s_+1), cvt(d+3, s_+2, s_+3),
                lambda: a.s(f"s_add_u32 s82, s81, {(f//4)*4096 + WS_O}"),
                lambda: a.bstore(d, 4, 14, S_WS, "s82", off=(f % 4)*1024, flags="sc1")]
    for mt in range(3):
        for t in range(8):
            a.mfma(accO(mt, t), Vf(t), accS(0, mt), None); F.pop(2)
        for t in range(8):
            a.mfma(accO(mt, t), Vf(t)+4, accS(2, mt), accO(mt, t), k=16); F.pop(2)
        for kp in range(4): F.add(*ostore(mt, kp))
    F.drain()
    stamp(a, cfg, 5)
    a.waitcnt(lgkm=0)
    a.barrier()
    def flag():
        a.waitcnt(vm=0)
        stamp(a, cfg, 6)
        a.s("s_mov_b32 exec_lo, s85"); a.s("s_mov_b32 exec_hi, 0")
        a.bstore(8, 2, 11, S_WS, "s84", flags="sc1")
        a.s("s_mov_b64 exec, -1")
    if cfg.flagpos == 0: flag()
    a.barrier()
    stamp(a, cfg, 10)
    items = []
    for p in range(4):
        if p == 3 and cfg.prog: items += [(p, kp, t) for t in range(9) for kp in range(4)]
        else: items += [(p, kp, t) for kp in range(4) for t in range(9)]
    NB = 9
    def rdW2(i, h):
        p, kp, t = items[i]
        def f():
            a.ds_read("ds_read_b64_tr_b16", Wf2(i % NB)+2*h, 2, R[t & 1], off=kp*10240 + h*5120 + 32*(t - (t & 1))); ver[("W2", i % NB, h)] = i
        return f
    for kp in range(4):
        for mt in range(3): ver[("O", 0, kp, mt)] = 0
    def headbase(p):
        return [lambda: head_order(a, p, 81), lambda: a.s("s_mul_i32 s81, s81, 12288"), lambda: a.s("s_add_u32 s81, s81, s80")]
    def ldO(p, f):
        kp, mt = divmod(f, 3)
        return [lambda: a.s(f"s_add_u32 s82, s81, {(f//4)*4096 + WS_O}"),
                lambda: (a.bload(of(p & 1, kp, mt), 4, 14, S_WS, "s82", off=(f % 4)*1024, flags="sc1"), ver.__setitem__(("O", p & 1, kp, mt), p))]
    def publish(mt, pair):
        if pair == 4 and mt == 1: return []
        slot = pair*3 + mt if pair < 4 else 12 + mt//2
        r = acc2(mt, 2*pair)
        out = [cvt(r, r, r+1), cvt(r+1, r+2, r+3)]
        n = 4
        if slot < 13:
            s_ = acc2(mt, 2*pair+1) if pair < 4 else acc2(1, 8)
            out += [cvt(r+2, s_, s_+1), cvt(r+3, s_+2, s_+3)]
        def st_():
            L = newlabel("own"); L2 = newlabel("ownb")
            a.s(f"s_cmp_eq_u32 s90, {slot & 7}")
            a.s(f"s_cbranch_scc1 {L}")
            if slot < 13: a.bstore(r, 4, 14, S_WS, "s82", flags="sc1")
            else: a.bstore(r, 2, 11, S_WS, "s82", flags="sc1")
            a.label(L2)
            a.ool += [f"{L}:", f"    ds_write_b128 v2, v[{r}:{r+3}] offset:{(slot >> 3)*4096}", f"    s_branch {L2}"]
        out += [lambda: a.s(f"s_add_u32 s82, s92, {slot*8192}"), st_]
        return out
    for i in range(NB): rdW2(i, 0)(); rdW2(i, 1)()
    seen = set()
    for i, (p, kp, t) in enumerate(items):
        if cfg.flagpos and i == cfg.flagpos*9:
            F.drain()
            flag()
            if cfg.fbar: a.barrier()
        if i == cfg.pollpos*9:
            F.drain()
            poll_flags(a, 6, 8, 11, 84, "s86", 76)
            stamp(a, cfg, 7)
            for f in headbase(1): f()
            if i == 36:
                for fr in range(12):
                    for f in ldO(1, fr): f()
            else:
                for fr in range(12): F.add(*ldO(1, fr))
        if cfg.p2st and i in (37, 72, 108): stamp(a, cfg, {37: 3, 72: 4, 108: 5}[i])
        if i == 36:
            F.drain()
            if cfg.p2st: stamp(a, cfg, 1)
            a.barrier()
            if cfg.p2st: stamp(a, cfg, 2)
            for r in R: a.v(f"v_add_u32 v{r}, s93, v{r}")
            for j in range(36, 36 + NB): rdW2(j, 0)(); rdW2(j, 1)()
            F.add(*headbase(2))
        if p == 1 and t in (0, 3, 6): F.add(*ldO(2, kp*3 + t//3))
        if i == 72: F.add(*headbase(3)); F.add(*tail_vsetup(a))
        if p == 2 and kp < 2 and t < 6: F.add(*ldO(3, kp*6 + t))
        for mt in range(3):
            assert ver[("W2", i % NB, 0)] == i and ver[("W2", i % NB, 1)] == i and ver[("O", p & 1, kp, mt)] == p, (i, p, kp, t)
            a.mfma(acc2(mt, t), Wf2(i % NB), of(p & 1, kp, mt), acc2(mt, t) if (mt, t) in seen else None)
            seen.add((mt, t))
            F.pop(3 if len(F.q) > 8 else 2 if len(F.q) > 2 else 1)
        j = i + NB
        if j < len(items) and not (p == 0 and j >= 36):
            if j % 36 == 0:
                F.drain()
                a.barrier()
                for r in R: F.add(lambda r=r, j=j: a.v(f"v_add_u32 v{r}, s{92 + j//36}, v{r}"))
                F.add(rdW2(j, 0), rdW2(j, 1))
            elif j % 36 == 1: F.add(rdW2(j, 0), rdW2(j, 1))
            else: F.q = [rdW2(j, 0), rdW2(j, 1)] + F.q
        if p == 3 and cfg.prog and kp == 0 and t >= 2 and t % 2 == 0:
            for mt in range(3): F.add(*publish(mt, t//2 - 1))
    stamp(a, cfg, 8)
    F.drain()
    for pair in range(4 if cfg.prog else 0, 5):
        for mt in range(3):
            for f in publish(mt, pair): f()
    stamp(a, cfg, 9)
    a.waitcnt(vm=0, lgkm=0)
    stamp(a, cfg, 11)
    a.s("s_xor_b32 s97, s97, 0xff")
    if cfg.f2:
        a.s("s_mov_b32 exec_lo, s97"); a.s("s_mov_b32 exec_hi, 0")
        a.s("s_lshl_b32 s76, s90, 3")
        a.s("s_add_u32 s76, s76, s96")
        a.bstore(8, 2, 3, S_WS, "s76", flags="sc1")
        a.s("s_lshl_b32 s76, s90, 7")
        a.s("s_add_u32 s96, s96, s76")
    else:
        a.s("s_xor_b32 exec_lo, s97, 0xff"); a.s("s_mov_b32 exec_hi, 0")
        a.bstore(8, 2, 11, S_WS, "s96", flags="sc1")
    poll_flags(a, 6, 8, 11, 96, "s97", 76)

def tail(a, cfg, endlabel):
    a.barrier()
    a.s("s_cmp_ge_u32 s89, 14")
    a.s(f"s_cbranch_scc1 {endlabel}")
    stamp(a, cfg, 12)
    a.ds_read("ds_read_b128", 16, 4, 2)
    a.s("s_cmp_eq_u32 s89, 13")
    a.s("s_cbranch_scc1 L_half")
    def srcoff(k):
        a.s(f"s_add_u32 s76, s90, {k}")
        a.s("s_and_b32 s76, s76, 7")
        a.s("s_lshl_b32 s76, s76, 10")
        a.s("s_add_u32 s76, s76, s88")
    for k in range(1, 8):
        srcoff(k); a.bload(16 + 4*k, 4, 14, S_WS, "s76", flags="sc1")
    a.label("L_halfb")
    ool = Asm()
    ool.label("L_half")
    for k in range(1, 8):
        ool.s(f"s_add_u32 s76, s90, {k}"); ool.s("s_and_b32 s76, s76, 7"); ool.s("s_lshl_b32 s76, s76, 10"); ool.s("s_add_u32 s76, s76, s88")
        ool.bload(16 + 4*k, 2, 11, S_WS, "s76", flags="sc1")
    ool.s("s_branch L_halfb")
    a.ool += ool.L
    for k in range(8):
        src = 16 + 4*k
        for i in range(4):
            if k == 0:
                a.v(f"v_lshlrev_b32 v{48+2*i}, 16, v{src+i}")
                a.v(f"v_and_b32 v{49+2*i}, 0xffff0000, v{src+i}")
            else:
                a.v(f"v_lshlrev_b32 v{60+2*(i&1)}, 16, v{src+i}")
                a.v(f"v_and_b32 v{61+2*(i&1)}, 0xffff0000, v{src+i}")
                a.v(f"v_pk_add_f32 v[{48+2*i}:{49+2*i}], v[{48+2*i}:{49+2*i}], v[{60+2*(i&1)}:{61+2*(i&1)}]")
        if k == 1: stamp(a, cfg, 13)
    for i in range(4): a.v(f"v_cvt_pk_bf16_f32 v{64+i}, v{48+2*i}, v{49+2*i}")
    a.v("v_permlane16_swap_b32 v64, v66")
    a.v("v_permlane16_swap_b32 v65, v67")
    stamp(a, cfg, 14)
    a.s("s_mov_b64 exec, s[78:79]")
    a.bstore(64, 4, 4, S_OUT, "s87", flags=cfg.st_out)

def kernel(cfg):
    a = Asm()
    a.lcap = cfg.lcap
    a.ool = []
    stamp(a, cfg, 0)
    prologue(a, cfg, "L_end")
    a.s(f"s_cmp_lt_u32 s{S_W}, 4")
    a.s("s_cbranch_scc1 L_compute")
    loader(a, cfg)
    a.label("L_compute")
    a.reset_state()
    compute(a, cfg)
    a.label("L_tail")
    a.reset_state()
    a.nop(2)
    tail(a, cfg, "L_end")
    if cfg.stamps: a.waitcnt(vm=0)
    stamp(a, cfg, 15)
    stamp_out(a, cfg)
    a.label("L_end")
    a.s("s_endpgm")
    for l in a.ool: a.raw(l)
    return a

HEADER = open("cdna_kernels/" + NAME + ".s.ref").read().split("; Override launch")[0]

def build(cfg):
    n = NAME + "_kernel"
    a = kernel(cfg)
    return HEADER + f"""; @launch grid=(256,1,1) block=(512,1,1) lds=163840
.amdgcn_target "amdgcn-amd-amdhsa--gfx950"
.text
.globl {n}
.p2align 8
.type {n},@function
{n}:
{a.text()}
L_code_end:
.section .rodata,"a"
.p2align 6
.amdhsa_kernel {n}
  .amdhsa_next_free_vgpr 256
  .amdhsa_next_free_sgpr 102
  .amdhsa_accum_offset 256
  .amdhsa_group_segment_fixed_size 0
  .amdhsa_kernarg_size 104
  .amdhsa_user_sgpr_count 2
  .amdhsa_user_sgpr_kernarg_segment_ptr 1
  .amdhsa_system_sgpr_workgroup_id_x 1
.end_amdhsa_kernel
"""

if __name__ == "__main__":
    cfg = Cfg()
    for kv in sys.argv[2:]:
        k, v = kv.split("=")
        cur = getattr(cfg, k)
        setattr(cfg, k, (v == "1") if isinstance(cur, bool) else int(v) if isinstance(cur, int) else v.replace("_", " "))
    open(sys.argv[1], "w").write(build(cfg))
```

```python
import sys, struct
from asm import *

NAME = "concat_heads__gqa_block_cached__mha_block_cached__near_ridge"
SL = 40960
KSTR, VSTR = 4112, 4128
KUNIT, VUNIT = 1024, 1024
KBASE = 0
VBASE_L = 12*KSTR
WS_O = 0
WS_FLAG1 = 32 << 20
WS_FLAG2 = 33 << 20
WS_PART = 16 << 20
WS_STAMP = 40 << 20
WS_BYTES = 48 << 20
SC = 0.08838834764831845 * 1.4426950408889634
SPIN_MAX = 1 << 17
def f2u(x): return struct.unpack("<I", struct.pack("<f", x))[0]

S_X, S_K, S_V, S_WQ, S_WO, S_OUT, S_WS, S_DBG = 36, 40, 44, 48, 52, 56, 60, 64
S_BR, S_KQ, S_HL, S_BG, S_W, S_NT, S_E = 68, 69, 70, 71, 72, 98, 99

class Cfg:
    stamps = False; x_clk = False; lst = 0
    ld_x = ""; ld_wq = ""; ld_kv = "nt"; ld_wo = ""; st_out = ""
    skew = 3; prio = 0; lcap = 8; barpos = 3
    el = 2; pollpos = 4; ctouch = 2; e_wo = 1; l_wo = 1; prog = 1; touch = 1; tpos = 5; wo2 = 2; flagpos = 2; e_vpos = 4; l_kpos = 2; f2 = 1; c_kpos = 5; c_tpos = 3; swap = 1; own = 1; warmf = 1; p2st = 0; fbar = 1; wo0late = 1; x_enc = -1; x_amp = 4; dbgwg = 0; att = 1; r1first = 1; epoll = 0; cfix = -1; nprobe = 1

NST = 16
def streg(i): return 4 if i == 0 else 8 + 2*(i-1) if i <= 13 else {14: 34, 15: 100}[i]
def stamp(a, cfg, i):
    if cfg.stamps:
        r = streg(i)
        a.raw(f"    {'s_memtime' if cfg.x_clk else 's_memrealtime'} s[{r}:{r+1}]"); a.pos += 1
def stamp_out(a, cfg):
    if not cfg.stamps: return
    if cfg.x_enc >= 0:
        a.raw("    s_waitcnt lgkmcnt(0)")
        a.s("s_lshl_b32 s3, s2, 3")
        a.s(f"s_add_u32 s3, s3, s{S_W}")
        a.s(f"s_cmp_lg_u32 s3, {cfg.dbgwg*8}")
        a.s("s_cbranch_scc1 L_end")
        a.s(f"s_sub_u32 s76, s{streg(cfg.x_enc)}, s4")
        a.s(f"s_mul_i32 s76, s76, {cfg.x_amp}")
        a.s("s_add_u32 s76, s76, 5000")
        a.label("L_hold")
        a.raw("    s_memrealtime s[78:79]")
        a.raw("    s_waitcnt lgkmcnt(0)")
        a.s("s_sub_u32 s77, s78, s4")
        a.s("s_cmp_lt_u32 s77, s76")
        a.s("s_cbranch_scc1 L_hold")
        return
    a.raw("    s_waitcnt lgkmcnt(0)")
    a.s("s_mov_b64 exec, 1")
    a.s("s_lshl_b32 s3, s2, 3")
    a.s(f"s_add_u32 s3, s3, s{S_W}")
    a.s("s_lshl_b32 s3, s3, 6")
    a.s(f"s_add_u32 s3, s3, {WS_STAMP}")
    a.v("v_mov_b32 v1, 0")
    for i in range(NST):
        a.v(f"v_mov_b32 v2, s{streg(i)}")
        a.bstore(2, 1, 1, S_WS, "s3", off=4*i)
        a.nop(2)

def srd(a, base, lo, hi, size):
    a.s(f"s_mov_b32 s{base}, s{lo}")
    a.s(f"s_mov_b32 s{base+1}, s{hi}")
    a.s(f"s_mov_b32 s{base+2}, {size}")
    a.s(f"s_mov_b32 s{base+3}, 0x20000")

def prologue(a, cfg, endlabel):
    a.s("s_cmp_ge_u32 s2, 256")
    a.s(f"s_cbranch_scc1 {endlabel}")
    a.raw("    s_load_dwordx16 s[8:23], s[0:1], 0")
    a.raw("    s_load_dwordx8 s[24:31], s[0:1], 64")
    a.raw("    s_load_dwordx2 s[32:33], s[0:1], 96")
    a.v("v_and_b32 v1, 63, v0")
    a.v("v_lshrrev_b32 v15, 6, v0")
    a.s(f"s_and_b32 s{S_KQ}, s2, 3")
    a.s(f"s_bfe_u32 s{S_BR}, s2, 0x10002")
    if cfg.swap: a.s(f"s_xor_b32 s{S_BR}, s{S_BR}, 1")
    a.s(f"s_bfe_u32 s{S_HL}, s2, 0x30003")
    a.s(f"s_lshr_b32 s{S_BG}, s2, 6")
    a.s(f"s_and_b32 s{S_NT}, s{S_HL}, 3")
    a.v(f"v_readfirstlane_b32 s{S_W}, v15")
    if cfg.el:
        a.s(f"s_lshr_b32 s{S_E}, s{S_HL}, 2")
        a.s(f"s_xor_b32 s{S_E}, s{S_E}, s{S_BG}")
        a.s(f"s_and_b32 s{S_E}, s{S_E}, 1")
        a.s(f"s_mov_b32 s3, s{S_E}")
        if cfg.el == 2: a.s(f"s_mov_b32 s{S_E}, 0")
    else:
        a.s(f"s_mov_b32 s{S_E}, 0")

def build_srds(a, keys):
    a.raw("    s_waitcnt lgkmcnt(0)")
    a.s(f"s_cmp_eq_u32 s{S_BR}, 0")
    for (dst, pa, pb, key) in ((S_WQ, 14, 24, 'wq'), (S_X, 8, 18, 'x'), (S_K, 10, 20, 'k'), (S_V, 12, 22, 'v'), (S_WO, 16, 26, 'wo')):
        if key not in keys: continue
        a.s(f"s_cselect_b64 s[{dst}:{dst+1}], s[{pa}:{pa+1}], s[{pb}:{pb+1}]")
        if key in ('k', 'v'):
            a.s(f"s_mov_b32 s{dst+2}, 6291456")
            a.s(f"s_cselect_b32 s{dst+2}, 3145728, s{dst+2}")
        else:
            a.s(f"s_mov_b32 s{dst+2}, {884736 if key == 'x' else 4718592}")
        a.s(f"s_mov_b32 s{dst+3}, 0x20000")
    if 'o' in keys:
        srd(a, S_OUT, 28, 29, 1769472)
        srd(a, S_DBG, 30, 31, 256)
        srd(a, S_WS, 32, 33, WS_BYTES)

def head_order(a, p, sd):
    if p == 0: a.s(f"s_mov_b32 s{sd}, s{S_NT}")
    else:
        a.s(f"s_cmp_le_u32 s{S_NT}, {p-1}"); a.s(f"s_cselect_b32 s{sd}, {p}, {p-1}")

_lbl = [0]
def newlabel(p):
    _lbl[0] += 1
    return f"L{p}_{_lbl[0]}"

def poll_flags(a, vdata, vnonce, voff, soff, mask, stmp):
    L = newlabel("poll"); X = newlabel("pollx")
    a.s(f"s_mov_b32 exec_lo, {mask}")
    a.s("s_mov_b32 exec_hi, 0")
    a.s(f"s_mov_b32 s{stmp}, 0")
    a.label(L)
    a.bload(vdata, 2, voff, S_WS, f"s{soff}", flags="sc1")
    a.s(f"s_add_u32 s{stmp}, s{stmp}, 1")
    a.s(f"s_cmp_gt_u32 s{stmp}, {SPIN_MAX}")
    a.waitcnt(vm=0)
    a.s(f"s_cbranch_scc1 {X}")
    a.v(f"v_cmp_ne_u64 vcc, v[{vdata}:{vdata+1}], v[{vnonce}:{vnonce+1}]")
    a.s(f"s_cbranch_vccnz {L}")
    a.label(X)
    a.s("s_mov_b64 exec, -1")

def nonce_check(a, vzero):
    Lok = newlabel("nok"); Lsp = newlabel("nsp")
    a.s("s_mov_b32 s77, 0")
    a.v("v_readfirstlane_b32 s76, v8")
    a.label(Lsp)
    a.s("s_cmp_lg_u32 s76, 0")
    a.s(f"s_cbranch_scc1 {Lok}")
    a.s("s_add_u32 s77, s77, 1")
    a.s(f"s_cmp_gt_u32 s77, {SPIN_MAX}")
    a.s(f"s_cbranch_scc1 {Lok}")
    a.raw(f"    buffer_load_dwordx2 v[8:9], v{vzero}, s[{S_DBG}:{S_DBG+3}], 0 offen sc1")
    a.raw("    s_waitcnt vmcnt(0)")
    a.raw("    v_readfirstlane_b32 s76, v8")
    a.raw("    s_nop 0")
    a.s(f"s_branch {Lsp}")
    a.label(Lok)

def bsel(a, sd):
    a.s(f"s_lshr_b32 s76, s{sd}, 19")
    a.s("s_xor_b32 s76, s76, s2")
    a.s("s_and_b32 s76, s76, 4")
    a.s("s_lshl_b32 s76, s76, 11")
    a.s(f"s_or_b32 s{sd}, s{sd}, s76")

def apply_c(a, regs):
    a.s("s_and_b32 s76, s76, 2")
    a.s("s_lshl_b32 s76, s76, 12")
    for r in regs: a.s(f"s_xor_b32 s{r}, s{r}, s76")

def unit_base(a, sd, sb_w, shead):
    a.s(f"s_lshl_b32 s76, s{S_BG}, 2")
    a.s(f"s_add_u32 s76, s76, s{sb_w}")
    a.s("s_lshl_b32 s76, s76, 5")
    a.s(f"s_add_u32 s76, s76, s{shead}")
    a.s(f"s_lshl_b32 s{sd}, s76, 15")
    bsel(a, sd)
    a.s(f"s_and_b32 s76, s{sb_w}, 1")
    a.s("s_lshl_b32 s40, s76, 12")
    a.s(f"s_and_b32 s76, s{sb_w}, 2")
    a.s("s_lshl_b32 s76, s76, 13")
    a.s("s_or_b32 s40, s40, s76")
    a.s("s_xor_b32 s41, s40, 4096")
    a.s("s_xor_b32 s42, s40, 16384")

def tail_ssetup(a, sw, half):
    a.s(f"s_lshr_b32 s90, s{S_HL}, 2")
    a.s(f"s_lshl_b32 s76, s{S_KQ}, 1")
    a.s("s_add_u32 s90, s90, s76")
    a.s(f"s_add_u32 s89, s90, {8*half}")
    a.s(f"s_lshl_b32 s91, s{S_BG}, 2")
    a.s(f"s_add_u32 s91, s91, s{S_NT}")
    a.s("s_lshl_b32 s91, s91, 2")
    a.s(f"s_add_u32 s91, s91, s{sw}")
    a.s("s_lshr_b32 s76, s91, 3")
    a.s("s_lshl_b32 s76, s76, 14")
    a.s("s_and_b32 s77, s91, 7")
    a.s("s_lshl_b32 s77, s77, 10")
    a.s("s_add_u32 s76, s76, s77")
    a.s(f"s_add_u32 s96, s76, {WS_FLAG2}")
    bsel(a, 96)
    a.s("s_lshl_b32 s92, s91, 18")
    a.s(f"s_add_u32 s92, s92, {WS_PART}")
    bsel(a, 92)
    a.s("s_lshl_b32 s76, s89, 14")
    a.s("s_add_u32 s88, s92, s76")
    a.s("s_lshl_b32 s76, s90, 10")
    a.s("s_add_u32 s92, s92, s76")
    a.s("s_mul_i32 s76, s89, 43")
    a.s("s_lshr_b32 s76, s76, 7")
    a.s("s_mul_i32 s77, s76, 3")
    a.s("s_sub_u32 s77, s89, s77")
    a.s("s_cmp_eq_u32 s89, 13")
    a.s("s_cselect_b32 s77, 2, s77")
    a.s("s_lshl_b32 s87, s76, 6")
    a.s(f"s_mul_i32 s77, s77, {16*2304}")
    a.s("s_add_u32 s87, s87, s77")
    a.s(f"s_lshl_b32 s77, s{S_BG}, 2")
    a.s(f"s_add_u32 s77, s77, s{sw}")
    a.s(f"s_mul_i32 s77, s77, {48*2304}")
    a.s("s_add_u32 s87, s87, s77")
    a.s(f"s_mul_i32 s77, s{S_BR}, 1152")
    a.s("s_add_u32 s87, s87, s77")
    a.s(f"s_mul_i32 s77, s{S_NT}, 288")
    a.s("s_add_u32 s87, s87, s77")
    a.s("s_cmp_lt_u32 s89, 12")
    a.s(f"s_cselect_b32 s74, 32, {16*2304}")
    a.s("s_cmp_lt_u32 s89, 13")
    a.s("s_cselect_b32 s78, -1, 0xffff")
    a.s("s_mov_b32 s79, s78")
    for u in range(16): assert (u*43) >> 7 == u//3

def tail_vsetup(a, sw=S_W, half=0):
    return [lambda t=t: a.v(t) for t in (
        "v_and_b32 v4, 15, v1", "v_mul_u32_u24 v4, 2304, v4", "v_bfe_u32 v5, v1, 4, 1", "v_mad_u32_u24 v4, v5, s74, v4",
        "v_lshrrev_b32 v5, 5, v1", "v_lshl_add_u32 v4, v5, 4, v4", "v_lshlrev_b32 v3, 7, v1", f"v_lshlrev_b32 v2, 4, v1", f"v_lshl_add_u32 v2, s{sw}, 10, v2", f"v_add_u32 v2, {3*SL + half*4096}, v2")]

def loader(a, cfg):
    a.s(f"s_sub_u32 s73, s{S_W}, 4")
    a.s("s_and_b32 s74, s73, 1")
    a.s("s_lshr_b32 s75, s73, 1")
    a.s(f"s_lshl_b32 s95, s{S_KQ}, 3")
    a.s(f"s_add_u32 s95, s95, s{S_HL}")
    a.v("v_lshrrev_b32 v4, 4, v1")
    a.s("s_lshl_b32 s76, s75, 2")
    a.v("v_or_b32 v5, s76, v4")
    a.v("v_bfe_u32 v6, v1, 1, 3")
    a.v("v_xor_b32 v6, v6, v5")
    a.v("v_lshlrev_b32 v6, 5, v6")
    a.v("v_and_b32 v7, 1, v1")
    a.v("v_lshl_add_u32 v6, v7, 4, v6")
    a.v("v_lshl_add_u32 v2, v4, 13, v6")
    a.s("s_lshl_b32 s76, s73, 15")
    a.s("s_lshl_b32 s77, s95, 8")
    a.s("s_add_u32 s76, s76, s77")
    a.v("v_add_u32 v2, s76, v2")
    a.v("v_lshlrev_b32 v5, 2, v4")
    a.v("v_and_b32 v6, 15, v1")
    a.v("v_xor_b32 v6, v6, v5")
    a.v("v_lshlrev_b32 v6, 4, v6")
    a.v("v_lshl_add_u32 v10, v4, 8, v6")
    a.s("s_lshl_b32 s76, s74, 2")
    a.v("v_or_b32 v5, s76, v4")
    a.v("v_lshrrev_b32 v4, 3, v1")
    a.v("v_mul_u32_u24 v4, 1152, v4")
    a.v("v_and_b32 v6, 7, v1")
    a.v("v_xor_b32 v6, v6, v5")
    a.v("v_lshl_add_u32 v3, v6, 4, v4")
    a.s(f"s_mul_i32 s76, s{S_BG}, {192*1152}")
    a.s(f"s_mul_i32 s77, s74, {8*1152}")
    a.s("s_add_u32 s76, s76, s77")
    a.s(f"s_mul_i32 s77, s75, {96*1152}")
    a.s("s_add_u32 s76, s76, s77")
    a.v("v_add_u32 v3, s76, v3")
    a.s("s_lshl_b32 s78, s73, 10")
    a.s("s_mul_i32 s79, s75, 12288")
    a.s("s_lshl_b32 s77, s74, 10")
    a.s("s_add_u32 s79, s79, s77")
    a.s("s_add_u32 s79, s79, 16384")
    a.s(f"s_lshl_b32 s76, s{S_BG}, 2")
    a.s("s_add_u32 s76, s76, s73")
    a.s("s_lshl_b32 s76, s76, 5")
    a.s("s_add_u32 s76, s76, s95")
    a.s(f"s_xor_b32 s77, s{S_BR}, 1")
    a.s("s_lshr_b32 s76, s76, s77")
    a.s("s_mul_i32 s80, s76, 12288")
    a.s(f"s_mul_i32 s91, s73, {KUNIT}")
    a.s(f"s_add_u32 s91, s91, {KBASE}")
    a.s(f"s_mul_i32 s92, s73, {VUNIT}")
    if cfg.skew == 3:
        a.s(f"s_add_u32 s84, s{S_HL}, s{S_BG}")
        a.s("s_mul_i32 s85, s84, 43")
        a.s("s_lshr_b32 s85, s85, 7")
        a.s("s_mul_i32 s85, s85, 3")
        a.s("s_sub_u32 s84, s84, s85")
        a.s("s_mul_i32 s84, s84, 3")
    elif cfg.skew == 4:
        a.s(f"s_add_u32 s84, s{S_HL}, s{S_BG}")
        a.s("s_and_b32 s84, s84, 3")
        a.s("s_lshl_b32 s84, s84, 1")
    elif cfg.skew == 2:
        a.s(f"s_lshr_b32 s84, s{S_BG}, 1")
        a.s(f"s_xor_b32 s84, s84, s{S_HL}")
        a.s("s_and_b32 s84, s84, 1")
        a.s("s_lshl_b32 s84, s84, 2")
    elif cfg.skew == 9:
        a.s(f"s_lshl_b32 s84, s{S_BG}, 1")
        a.s(f"s_add_u32 s84, s84, s{S_HL}")
        a.s("s_sub_u32 s85, s84, 9")
        a.s("s_cmp_ge_u32 s84, 9")
        a.s("s_cselect_b32 s84, s85, s84")
    else:
        a.s("s_mov_b32 s84, 0")
    build_srds(a, ('x', 'wq', 'k'))
    def stage(s):
        slot = (1 + s % 3) * SL
        a.s("s_lshl_b32 s85, s84, 7")
        a.s("s_lshl_b32 s86, s84, 19")
        for i in range(4):
            a.s(f"s_add_u32 m0, s78, {slot + i*4096}")
            a.s(f"s_add_u32 s82, s86, {16*i*8192}")
            a.dma(2, S_WQ, "s82", cfg.ld_wq, tag=("st", s))
        for z in range(6):
            a.s(f"s_add_u32 m0, s79, {slot + z*2048}")
            a.s(f"s_add_u32 s82, s85, {z*16*1152}")
            a.dma(3, S_X, "s82", cfg.ld_x, tag=("st", s))
        a.s("s_add_u32 s84, s84, 1")
        a.s("s_cmp_eq_u32 s84, 9")
        a.s("s_cselect_b32 s84, 0, s84")
    def kvpart(g, srdb, sm0, stride, lo, hi, base=0):
        for i in range(lo, hi):
            a.s(f"s_add_u32 m0, s{sm0}, {base + i*stride}")
            a.s(f"s_add_u32 s82, s80, {i*1024}")
            a.dma(10, srdb, "s82", cfg.ld_kv, tag=("st", g))
    def codetouch():
        a.s("s_mov_b64 exec, 3")
        a.raw("    global_load_dword v24, v25, s[6:7]"); a.pos += 1
        a.vm.append((None, "touch"))
        a.s("s_mov_b64 exec, -1")
    def setup2():
        if cfg.ctouch:
            L = newlabel("pc")
            a.raw("    s_getpc_b64 s[6:7]")
            a.label(L)
            a.s(f"s_sub_u32 s6, s6, {L}-{NAME}_kernel")
            a.s("s_subb_u32 s7, s7, 0")
            a.s("s_lshr_b32 s76, s2, 3")
            a.s("s_lshl_b32 s76, s76, 2")
            a.s("s_add_u32 s76, s76, s73")
            a.s("s_lshl_b32 s76, s76, 8")
            a.v("v_lshlrev_b32 v25, 7, v1")
            a.v("v_add_u32 v25, s76, v25")
            a.s("s_mov_b32 s77, L_code_end-" + NAME + "_kernel-4")
            a.v("v_min_u32 v25, s77, v25")
            codetouch()
        build_srds(a, ('v', 'wo', 'o'))
        stamp(a, cfg, 1)
        a.v("v_mov_b32 v16, 0")
        if cfg.cfix < 0: return
        L = newlabel("nw")
        a.s("s_add_u32 s76, s2, s73")
        a.s("s_cmp_lg_u32 s76, 0")
        a.s(f"s_cbranch_scc1 {L}")
        a.raw("    s_memrealtime s[88:89]")
        a.raw("    s_waitcnt lgkmcnt(0)")
        a.s("s_and_b32 s88, s88, 0xfffffffc")
        a.s(f"s_or_b32 s88, s88, {1 + 2*max(cfg.cfix, 0)}")
        a.v("v_mov_b32 v18, s88")
        a.v("v_mov_b32 v19, s89")
        a.s("s_mov_b64 exec, 1")
        a.raw(f"    buffer_store_dwordx2 v[18:19], v16, s[{S_DBG}:{S_DBG+3}], 0 offen sc1")
        a.s("s_mov_b64 exec, -1")
        a.label(L)
    def setup3():
        a.s("s_and_b32 s76, s95, 0xfc")
        a.s("s_lshl_b32 s76, s76, 7")
        a.s("s_lshl_b32 s77, s73, 5")
        a.s("s_add_u32 s76, s76, s77")
        a.s("s_mul_i32 s76, s76, 1152")
        a.s(f"s_mul_i32 s77, s{S_NT}, 288")
        a.s("s_and_b32 s77, s77, 0xffffffc0")
        a.s("s_add_u32 s76, s76, s77")
        for y in range(5):
            a.v(f"v_add_u32 v4, {y*64}, v1")
            a.v("v_mul_u32_u24 v5, 3277, v4")
            a.v("v_lshrrev_b32 v5, 16, v5")
            a.v("v_mul_u32_u24 v6, 20, v5")
            a.v("v_sub_u32 v6, v4, v6")
            a.v("v_bfe_u32 v7, v5, 2, 1")
            a.v("v_lshlrev_b32 v7, 1, v7")
            a.v("v_xor_b32 v6, v6, v7")
            a.v("v_mul_u32_u24 v5, 1152, v5")
            a.v("v_lshl_add_u32 v5, v6, 4, v5")
            a.v(f"v_add_u32 v{26+y}, s76, v5")
        a.s("s_mul_i32 s93, s73, 10240")
        a.v("v_lshlrev_b32 v22, 7, v1")
        if cfg.touch >= 2:
            a.s(f"s_lshl_b32 s76, s{S_BG}, 2")
            a.s(f"s_add_u32 s76, s76, s{S_NT}")
        else:
            a.s("s_lshr_b32 s76, s2, 3")
        a.s("s_lshl_b32 s76, s76, 2")
        a.s("s_add_u32 s76, s76, s73")
        a.s(f"s_mul_i32 s76, s76, {(144 if cfg.touch >= 2 else 72)*128}")
        a.s(f"s_mul_i32 s94, s{S_KQ}, {1024*1152}")
        a.s("s_add_u32 s94, s94, s76")
    def touches():
        a.s("s_mov_b32 exec_lo, -1"); a.s("s_mov_b32 exec_hi, 15")
        for i in range(4 if cfg.touch >= 2 else 2):
            a.bload(23, 1, 22, S_WO, "s94", tag="touch"); a.vm[-1] = (None, "touch")
            a.s(f"s_add_u32 s94, s94, {36*128}")
        a.s("s_mov_b64 exec, -1")
    def wostage(p, start):
        head_order(a, p, 83)
        a.s(f"s_mul_i32 s83, s83, {128*1152}")
        for z2 in range(2):
            a.s(f"s_add_u32 s82, s83, {z2*16*1152}")
            for y in range(5):
                a.s(f"s_add_u32 m0, s93, {((start + p) % 4)*SL + z2*5120 + y*1024}")
                a.dma(26+y, S_WO, "s82", cfg.ld_wo, tag=("st", 11+p))
    def main(early, cls=0):
        cnt = [0]
        def st(i):
            if not cfg.lst: stamp(a, cfg, i)
        W = lambda g: a.wait_vm_tag(("st", g))
        def B():
            k = cnt[0] - cfg.lst
            if cfg.lst and 0 <= k < 5: stamp(a, cfg, 1 + 2*k)
            a.barrier()
            if cfg.lst and 0 <= k < 5: stamp(a, cfg, 2 + 2*k)
            cnt[0] += 1
        start = 2 if early else 3
        dot = cfg.touch == 1 or (cfg.touch == 2 and (early or cls)) or (cfg.touch == 3 and not (early or cls))
        vb = 0 if early else VBASE_L
        if early:
            kvpart(9, S_K, 91, KSTR, 0, 12, 2*SL)
            setup2()
            stage(0)
            setup3()
            W(9); st(2); a.barrier()
            a.barrier()
            stage(1)
        else:
            stage(0)
            setup2()
            stage(1)
            setup3()
            st(2)
        mid = cfg.e_vpos if early else cfg.c_kpos if cls else cfg.l_kpos
        tpos = cfg.c_tpos if cls else cfg.tpos
        nxt = 2
        for g in range(7):
            W(g)
            if g == 0: st(3)
            if g == 3: st(4)
            B()
            if g == 4 and cfg.ctouch > 1: codetouch()
            if g == mid:
                if early: kvpart(10, S_V, 92, VSTR, 0, 9, vb)
                else: kvpart(9, S_K, 91, KSTR, 0, 9)
                if dot and g == tpos: touches()
                continue
            if dot and g == tpos and g < 6: touches(); continue
            while nxt <= g + 2: stage(nxt); nxt += 1
            if dot and g == tpos: touches()
        assert nxt == 9
        W(7); B()
        lo = 9 if mid >= 0 else 0
        h1 = 12 if mid >= 0 else 7
        vlo = 0
        if early:
            kvpart(10, S_V, 92, VSTR, lo, h1, vb)
            if dot and tpos == 7: touches()
        else:
            kvpart(9, S_K, 91, KSTR, lo, h1)
            if mid >= 0: kvpart(10, S_V, 92, VSTR, 0, 4, vb); vlo = 4
        W(8); st(5); B()
        if early:
            kvpart(10, S_V, 92, VSTR, h1, 12, vb)
            if dot and tpos == 8: touches()
        else:
            kvpart(9, S_K, 91, KSTR, h1, 12)
            v2 = 12 if mid >= 0 else 7
            kvpart(10, S_V, 92, VSTR, vlo, v2, vb)
        W(9); st(6); B()
        nw = cfg.e_wo if early else cfg.l_wo
        nz = [0]
        def upto(z):
            while nz[0] <= min(z, 3): wostage(nz[0], start); nz[0] += 1
        if not early: kvpart(10, S_V, 92, VSTR, v2, 12, vb)
        if dot and tpos == 9: touches()
        if early: upto(nw - 1)
        W(10); st(7)
        if not early and nw and not cfg.wo0late: upto(0)
        B()
        if not early and nw and cfg.wo0late: upto(0)
        if not early and nw > 1: upto(1)
        B()
        if dot and tpos == 11: touches()
        upto(0)
        if cfg.ctouch > 1: codetouch()
        W(11); st(8); B()
        if cfg.fbar and cfg.flagpos: B()
        upto(max(1, nz[0] - 1 + cfg.wo2))
        W(12); st(9); B()
        upto(max(2, nz[0]))
        W(13); B()
        upto(3)
        a.bload(8, 2, 16, S_DBG, "0", flags="sc1", tag="nonce")
        W(14); st(10); B()
        a.v("v_lshlrev_b32 v14, 4, v1")
        a.v("v_lshlrev_b32 v11, 3, v1")
        tail_ssetup(a, 73, 1)
        nonce_check(a, 16)
        apply_c(a, (88,))
        for f in tail_vsetup(a, 73, 1): f()
        a.s("s_branch L_tail")
    if cfg.el:
        a.s("s_cmp_eq_u32 s3, 1")
        a.s("s_cbranch_scc1 L_early")
        main(False)
        a.label("L_early")
        a.reset_state()
        main(cfg.el == 1, cfg.el == 2)
    else:
        main(False)

def xlane_reduce(a, op, regs, tmps):
    for sw in ("v_permlane32_swap_b32", "v_permlane16_swap_b32"):
        for r, t in zip(regs, tmps): a.v(f"v_mov_b32 v{t}, v{r}")
        for r, t in zip(regs, tmps): a.v(f"{sw} v{r}, v{t}")
        for r, t in zip(regs, tmps): a.v(f"{op} v{r}, v{r}, v{t}")

class Fill:
    def __init__(self): self.q = []
    def add(self, *fs): self.q.extend(fs)
    def pop(self, n):
        for _ in range(n):
            if self.q: self.q.pop(0)()
    def drain(self): self.pop(len(self.q))

def compute(a, cfg):
    ACC = 16; WF = 112; XF = 144; KF = 168; AS = 216; VF = 112
    accQ = lambda t, mt: ACC + (t*3 + mt)*4
    Wf = lambda t: WF + 4*t
    Xf = lambda par, mt: XF + par*12 + mt*4
    Kf = lambda kt, kp: KF + (kt*4 + kp)*4
    accS = lambda kt, mt: AS + (kt*3 + mt)*4
    Vf = lambda t: VF + 6*t
    accO = lambda mt, t: ACC + (mt*8 + t)*4
    aW = lambda st_, t: 216 + st_*10 + t
    aX = lambda st_, ks: 216 + st_*10 + 8 + ks
    aK = lambda kp: 252 + kp
    aV = lambda th: 2 + th
    R = [13, 15]
    ofA = lambda kp, mt: 168 + (kp*3 + mt)*4
    def ofB(kp, mt):
        f = kp*3 + mt
        return 216 + f*4 if f < 10 else 160 + (f - 10)*4
    of = lambda buf, kp, mt: ofB(kp, mt) if buf else ofA(kp, mt)
    acc2 = lambda mt, t: 16 + (mt*9 + t)*4
    Wf2 = lambda i: 124 + 4*i

    if cfg.prio: a.s(f"s_setprio {cfg.prio}")
    if cfg.cfix < 0:
        a.s(f"s_add_u32 s76, s2, s{S_W}")
        a.s("s_cmp_lg_u32 s76, 0")
        a.s("s_cbranch_scc1 L_np1")
        a.raw("    s_waitcnt lgkmcnt(0)")
        a.s(f"s_add_u32 s44, s32, {36 << 20}")
        a.s("s_addc_u32 s45, s33, 0")
        for i in range(2*cfg.nprobe): a.raw(f"    s_load_dword s46, s[44:45], {(i & 1)*8192 + (i >> 1)*4096}")
        a.label("L_np1")
    a.v("v_lshrrev_b32 v160, 4, v1")
    a.v("v_bfe_u32 v161, v1, 2, 2")
    a.v("v_and_b32 v162, 3, v1")
    a.v("v_and_b32 v163, 15, v1")
    a.v("v_and_b32 v165, 1, v160")
    a.s(f"s_mul_i32 s76, s{S_W}, {KUNIT}")
    a.s(f"s_mul_i32 s77, s{S_E}, {2*SL}")
    a.s("s_add_u32 s76, s76, s77")
    a.v(f"v_mul_u32_u24 v164, {KSTR}, v161")
    a.v("v_lshl_add_u32 v164, v162, 8, v164")
    a.v("v_lshl_add_u32 v164, v160, 3, v164")
    a.v("v_add_u32 v164, s76, v164")
    for kp in range(4):
        a.v(f"v_xor_b32 v167, {kp}, v162")
        a.v(f"v_lshl_add_u32 v{aK(kp)}, v167, 6, v164")
    a.v("v_lshl_add_u32 v164, v160, 3, v161")
    a.v("v_lshlrev_b32 v164, 8, v164")
    a.v("v_lshl_or_b32 v166, v165, 2, v161")
    a.v("v_lshl_add_u32 v164, v166, 5, v164")
    a.v("v_lshl_add_u32 v164, v162, 3, v164")
    a.v(f"v_add_u32 v{aW(0,0)}, {SL}, v164")
    for t in range(1, 8): a.v(f"v_xor_b32 v{aW(0,t)}, {32*t}, v{aW(0,0)}")
    a.v("v_lshrrev_b32 v164, 1, v163")
    a.v("v_xor_b32 v164, v164, v160")
    a.v("v_lshlrev_b32 v164, 4, v164")
    a.v("v_lshl_add_u32 v164, v163, 7, v164")
    a.s(f"s_mul_i32 s76, s{S_W}, 6144")
    a.s(f"s_add_u32 s76, s76, {16384 + SL}")
    a.v(f"v_add_u32 v{aX(0,0)}, s76, v164")
    a.v(f"v_xor_b32 v{aX(0,1)}, 64, v{aX(0,0)}")
    for i in range(10): a.v(f"v_add_u32 v{226+i}, {2*SL}, v{216+i}")
    a.s(f"s_mul_i32 s76, s{S_W}, {VUNIT}")
    a.s(f"s_cmp_eq_u32 s{S_E}, 1")
    a.s(f"s_cselect_b32 s77, 0, {VBASE_L}")
    a.s("s_add_u32 s76, s76, s77")
    a.v(f"v_mul_u32_u24 v164, {VSTR}, v160")
    a.v("v_lshl_add_u32 v164, v161, 8, v164")
    a.v("v_lshl_add_u32 v164, v162, 3, v164")
    a.v("v_add_u32 v164, s76, v164")
    for th in range(4):
        a.v(f"v_xor_b32 v167, {th}, v161")
        a.v(f"v_lshl_add_u32 v{aV(th)}, v167, 6, v164")
    a.v("v_lshl_add_u32 v164, v160, 2, v161")
    a.v("v_mul_u32_u24 v164, 320, v164")
    a.v("v_lshl_add_u32 v164, v162, 3, v164")
    a.s(f"s_cmp_eq_u32 s{S_E}, 1")
    a.s(f"s_mov_b32 s76, {3*SL}")
    a.s(f"s_cselect_b32 s76, {2*SL}, s76")
    a.s(f"s_mov_b32 s93, {SL}")
    a.s(f"s_cselect_b32 s93, s93, {(-3*SL) & 0xffffffff}")
    a.s(f"s_mov_b32 s94, {SL}")
    a.s(f"s_cselect_b32 s94, {(-3*SL) & 0xffffffff}, s94")
    a.s(f"s_mov_b32 s95, {SL}")
    a.v("v_add_u32 v164, s76, v164")
    a.s(f"s_and_b32 s77, s{S_NT}, 1")
    a.v("v_xor_b32 v167, s77, v165")
    a.v(f"v_lshl_add_u32 v{R[0]}, v167, 5, v164")
    a.s("s_add_u32 s77, s77, 1")
    a.v("v_xor_b32 v167, s77, v165")
    a.v(f"v_lshl_add_u32 v{R[1]}, v167, 5, v164")
    a.v("v_lshlrev_b32 v14, 4, v1")
    a.v("v_lshlrev_b32 v11, 3, v1")
    a.v("v_mov_b32 v10, 0")
    a.s(f"s_lshl_b32 s81, s{S_KQ}, 3")
    a.s(f"s_and_b32 s82, s{S_HL}, 4")
    a.s("s_add_u32 s81, s81, s82")
    unit_base(a, 80, S_W, 81)
    a.s(f"s_mov_b32 s83, {f2u(SC)}")
    a.s("s_and_b32 s76, s2, 3")
    a.s("s_lshr_b32 s77, s2, 5")
    a.s("s_lshl_b32 s77, s77, 2")
    a.s("s_or_b32 s76, s76, s77")
    a.s("s_lshl_b32 s76, s76, 2")
    a.s(f"s_add_u32 s76, s76, s{S_W}")
    a.s("s_lshr_b32 s77, s76, 6")
    a.s("s_lshl_b32 s77, s77, 14")
    a.s("s_and_b32 s76, s76, 63")
    a.s("s_lshl_b32 s76, s76, 7")
    a.s("s_add_u32 s76, s76, s77")
    a.s(f"s_add_u32 s84, s76, {WS_FLAG1}")
    bsel(a, 84)
    a.s(f"s_lshl_b32 s85, 1, s{S_NT}")
    a.s("s_xor_b32 s86, s85, 15")
    tail_ssetup(a, S_W, 0)
    a.s("s_lshl_b32 s97, 1, s90")
    build_srds(a, ('o',))
    srd(a, S_X, 32, 33, 0)
    if cfg.warmf:
        a.s("s_mov_b64 exec, 1")
        a.bload(6, 1, 10, S_WS, "s84", flags="sc1" if cfg.warmf == 1 else "")
        a.s("s_lshl_b32 s76, s90, 7")
        a.s("s_add_u32 s76, s76, s96")
        a.bload(7, 1, 10, S_WS, "s76", flags="sc1" if cfg.warmf == 1 else "")
        a.s("s_xor_b32 s76, s76, 8192")
        a.bload(8, 1, 10, S_WS, "s76", flags="sc1" if cfg.warmf == 1 else "")
        a.s("s_xor_b32 s76, s84, 8192")
        a.bload(9, 1, 10, S_WS, "s76", flags="sc1" if cfg.warmf == 1 else "")
        a.s("s_mov_b64 exec, -1")

    ver = {}
    def rdW(s, t, ks, h):
        def f():
            a.ds_read("ds_read_b64_tr_b16", Wf(t)+2*h, 2, aW((s % 3) >> 1, t), off=((s % 3) & 1)*SL + ks*8192 + h*1024); ver[("W", t, h)] = (s, ks)
        return f
    def rdX(s, mt, ks):
        def f():
            a.ds_read("ds_read_b128", Xf(ks, mt), 4, aX((s % 3) >> 1, ks), off=((s % 3) & 1)*SL + mt*2048); ver[("X", ks, mt)] = s
        return f
    def chk1(s, ks, t, mt):
        assert ver[("W", t, 0)] == (s, ks) and ver[("W", t, 1)] == (s, ks) and ver[("X", ks, mt)] == s, (s, ks, t, mt)
    def readK():
        for kp in range(4):
            for kt in range(3):
                for e in range(2): a.ds_read("ds_read_b64", Kf(kt, kp)+2*e, 2, aK(kp), off=kt*4*KSTR + 32*e)
    def rdK1(kt, kp, e):
        return lambda: a.ds_read("ds_read_b64", Kf(kt, kp)+2*e, 2, aK(kp), off=kt*4*KSTR + 32*e)
    def cvt(d, s0, s1):
        return lambda: a.v(f"v_cvt_pk_bf16_f32 v{d}, v{s0}, v{s1}")
    def cvtQ(kp):
        out = []
        for mt in range(3):
            r = accQ(2*kp, mt); s_ = accQ(2*kp+1, mt)
            out += [cvt(r, r, r+1), cvt(r+1, r+2, r+3), cvt(r+2, s_, s_+1), cvt(r+3, s_+2, s_+3)]
        return out
    F = Fill()
    if cfg.cfix < 0:
        a.s(f"s_add_u32 s76, s2, s{S_W}")
        a.s("s_cmp_lg_u32 s76, 0")
        a.s("s_cbranch_scc1 L_np2")
        a.s(f"s_add_u32 s44, s{S_WS}, {36 << 20}")
        a.s(f"s_addc_u32 s45, s{S_WS+1}, 0")
        a.s("s_mov_b32 s47, 0")
        for i in range(2*cfg.nprobe):
            a.raw("    s_memtime s[48:49]")
            a.raw(f"    s_load_dword s46, s[44:45], {(i & 1)*8192 + (i >> 1)*4096 + 64}")
            a.raw("    s_waitcnt lgkmcnt(0)")
            a.raw("    s_memtime s[50:51]")
            a.raw("    s_waitcnt lgkmcnt(0)")
            a.s("s_sub_u32 s50, s50, s48")
            a.s(f"s_{'sub' if i & 1 else 'add'}_u32 s47, s47, s50")
        a.raw("    s_memrealtime s[48:49]")
        a.raw("    s_waitcnt lgkmcnt(0)")
        a.s("s_cmp_gt_i32 s47, 0")
        a.s("s_cselect_b32 s50, 3, 1")
        a.s("s_and_b32 s48, s48, 0xfffffffc")
        a.s("s_or_b32 s48, s48, s50")
        a.v("v_mov_b32 v112, s48")
        a.v("v_mov_b32 v113, s49")
        a.s("s_mov_b64 exec, 1")
        a.raw(f"    buffer_store_dwordx2 v[112:113], v10, s[{S_DBG}:{S_DBG+3}], 0 offen sc1")
        if cfg.stamps:
            a.v("v_mov_b32 v114, s47")
            a.raw(f"    buffer_store_dword v114, v10, s[{S_DBG}:{S_DBG+3}], 0 offen offset:8 sc1")
        a.s("s_mov_b64 exec, -1")
        a.nop(2)
        a.label("L_np2")
    stamp(a, cfg, 1)
    if cfg.el == 1:
        a.s(f"s_cmp_eq_u32 s{S_E}, 0")
        a.s("s_cbranch_scc1 L_noK0")
        a.barrier()
        readK()
        a.waitcnt(lgkm=0)
        a.barrier()
        a.label("L_noK0")
    a.barrier()
    stamp(a, cfg, 2)
    for mt in range(3): rdX(0, mt, 0)()
    for t in range(8): rdW(0, t, 0, 0)(); rdW(0, t, 0, 1)()
    BP = cfg.barpos
    for s in range(9):
        last = s == 8
        for mt in range(3): F.add(rdX(s, mt, 1))
        for t in range(8):
            if last and cfg.att: F.add(rdK1(t >> 2, t & 3, 0), rdK1(t >> 2, t & 3, 1))
            for mt in range(3):
                chk1(s, 0, t, mt)
                a.mfma(accQ(t, mt), Wf(t), Xf(0, mt), None if s == 0 else accQ(t, mt))
                F.pop(2 if len(F.q) > 2 else 1)
            F.add(rdW(s, t, 1, 0), rdW(s, t, 1, 1))
        for t in range(8):
            for mt in range(3):
                chk1(s, 1, t, mt)
                a.mfma(accQ(t, mt), Wf(t), Xf(1, mt), accQ(t, mt))
                F.pop(2 if len(F.q) > 2 else 1)
            if last:
                if t in (3, 5, 7): F.add(*cvtQ((t - 3)//2))
            elif t == BP - 1:
                assert not F.q
                a.waitcnt(lgkm=0)
                a.barrier()
                F.add(rdX(s+1, 0, 0), rdW(s+1, 0, 0, 0), rdW(s+1, 0, 0, 1), rdX(s+1, 1, 0), rdX(s+1, 2, 0))
                for tt in range(1, BP): F.add(rdW(s+1, tt, 0, 0), rdW(s+1, tt, 0, 1))
            elif t >= BP:
                F.add(rdW(s+1, t, 0, 0), rdW(s+1, t, 0, 1))
    a.waitcnt(lgkm=0)
    a.barrier()
    stamp(a, cfg, 3)
    if not cfg.att:
        a.bload(8, 2, 10, S_DBG, "0", flags="sc1", tag="nonce")
        if cfg.el:
            a.s(f"s_cmp_eq_u32 s{S_E}, 1")
            a.s("s_cbranch_scc1 L_noK1")
        readK()
        if cfg.el: a.label("L_noK1")
        F.drain()
        for f in cvtQ(3): f()
        for kp in range(4):
            for kt in range(3):
                for mt in range(3):
                    a.mfma(accS(kt, mt), Kf(kt, kp), accQ(2*kp, mt), None if kp == 0 else accS(kt, mt))
        MX = [160, 161, 162]; TM = [163, 164, 165]; SM = [166, 167, 6]
        vals = lambda mt: [accS(kt, mt) + r for kt in range(3) for r in range(4)]
        for mt in range(3):
            v = vals(mt); a.v(f"v_max3_f32 v{MX[mt]}, v{v[0]}, v{v[1]}, v{v[2]}")
        for i in range(3, 11, 2):
            for mt in range(3):
                v = vals(mt); a.v(f"v_max3_f32 v{MX[mt]}, v{MX[mt]}, v{v[i]}, v{v[i+1]}")
        for mt in range(3):
            v = vals(mt); a.v(f"v_max_f32 v{MX[mt]}, v{MX[mt]}, v{v[11]}")
        xlane_reduce(a, "v_max_f32", MX, TM)
        for mt in range(3): a.v(f"v_mul_f32 v{MX[mt]}, s83, v{MX[mt]}")
        for i in range(12):
            for mt in range(3):
                v = vals(mt); a.v(f"v_fma_f32 v{v[i]}, v{v[i]}, s83, -v{MX[mt]}")
        for i in range(12):
            for mt in range(3):
                v = vals(mt); a.v(f"v_exp_f32 v{v[i]}, v{v[i]}")
        for mt in range(3):
            v = vals(mt); a.v(f"v_add_f32 v{SM[mt]}, v{v[0]}, v{v[1]}")
        for i in range(2, 12):
            for mt in range(3):
                v = vals(mt); a.v(f"v_add_f32 v{SM[mt]}, v{SM[mt]}, v{v[i]}")
        xlane_reduce(a, "v_add_f32", SM, TM)
        for mt in range(3): a.v(f"v_rcp_f32 v{SM[mt]}, v{SM[mt]}")
        a.barrier()
        for t in range(8):
            for kt in range(3):
                F.add(lambda t=t, kt=kt: a.ds_read("ds_read_b64_tr_b16", Vf(t) + 2*kt, 2, aV(t >> 1), off=kt*4*VSTR + (t & 1)*32))
        for i in range(12):
            for mt in range(3):
                v = vals(mt); a.v(f"v_mul_f32 v{v[i]}, v{v[i]}, v{SM[mt]}"); F.pop(1)
        for mt in range(3):
            r0, r1, r2 = accS(0, mt), accS(1, mt), accS(2, mt)
            for f in (cvt(r0, r0, r0+1), cvt(r0+1, r0+2, r0+3), cvt(r0+2, r1, r1+1), cvt(r0+3, r1+2, r1+3), cvt(r2, r2, r2+1), cvt(r2+1, r2+2, r2+3)): f()
        stamp(a, cfg, 4)
        nonce_check(a, 10)
        a.s(f"s_lshl_b32 s81, s{S_NT}, 15")
        a.s("s_add_u32 s81, s81, s80")
        def ostore(mt, kp):
            r = accO(mt, 2*kp); s_ = accO(mt, 2*kp+1); d = ofA(kp, mt); f = kp*3 + mt
            return [cvt(d, r, r+1), cvt(d+1, r+2, r+3), cvt(d+2, s_, s_+1), cvt(d+3, s_+2, s_+3),
                    lambda: a.s(f"s_add_u32 s82, s81, s{40 + f//4}"),
                    lambda: a.bstore(d, 4, 14, S_WS, "s82", off=(f % 4)*1024, flags="sc1")]
        for mt in range(3):
            for t in range(8):
                a.mfma(accO(mt, t), Vf(t), accS(0, mt), None); F.pop(2)
            for t in range(8):
                a.mfma(accO(mt, t), Vf(t)+4, accS(2, mt), accO(mt, t), k=16); F.pop(2)
            for kp in range(4): F.add(*ostore(mt, kp))
    else:
        assert cfg.el == 2 and cfg.l_kpos >= 0 and cfg.c_kpos >= 0
        for kp in range(4): rdK1(2, kp, 0)(); rdK1(2, kp, 1)()
        a.bload(8, 2, 10, S_DBG, "0", flags="sc1", tag="nonce")
        F.add(*cvtQ(3))
        order = [(kp, kt, mt) for kp in range(3) for kt in range(2) for mt in range(3)]
        order += [(kp, 2, mt) for kp in range(3) for mt in range(3)]
        order += [(3, kt, mt) for mt in range(3) for kt in range(3)]
        for n, (kp, kt, mt) in enumerate(order):
            if kp == 2 and n == 12: F.pop(max(0, len(F.q) - 12))
            if kp == 3: F.drain()
            a.mfma(accS(kt, mt), Kf(kt, kp), accQ(2*kp, mt), None if kp == 0 else accS(kt, mt)); F.pop(2)
        MX = [160, 162, 164]; TM = [161, 163, 165]; SM = [166, 6, 112]
        vals = lambda mt: [accS(kt, mt) + r for kt in range(3) for r in range(4)]
        for mt in range(3):
            v = vals(mt); a.v(f"v_max3_f32 v{MX[mt]}, v{v[0]}, v{v[1]}, v{v[2]}")
        for i in range(3, 11, 2):
            for mt in range(3):
                v = vals(mt); a.v(f"v_max3_f32 v{MX[mt]}, v{MX[mt]}, v{v[i]}, v{v[i+1]}")
        for mt in range(3):
            v = vals(mt); a.v(f"v_max_f32 v{MX[mt]}, v{MX[mt]}, v{v[11]}")
        xlane_reduce(a, "v_max_f32", MX, TM)
        for mt in range(3): a.v(f"v_mul_f32 v{MX[mt]}, s83, v{MX[mt]}")
        for i in range(0, 12, 2):
            for mt in range(3):
                v = vals(mt)
                a.v(f"v_pk_fma_f32 v[{v[i]}:{v[i]+1}], v[{v[i]}:{v[i]+1}], s[82:83], v[{MX[mt]}:{MX[mt]+1}] op_sel:[0,1,0] op_sel_hi:[1,1,0] neg_lo:[0,0,1] neg_hi:[0,0,1]")
        for i in range(12):
            for mt in range(3):
                v = vals(mt); a.v(f"v_exp_f32 v{v[i]}, v{v[i]}")
        for mt in range(3):
            v = vals(mt); a.v(f"v_pk_add_f32 v[{SM[mt]}:{SM[mt]+1}], v[{v[0]}:{v[1]}], v[{v[2]}:{v[3]}]")
        for i in range(4, 12, 2):
            for mt in range(3):
                v = vals(mt); a.v(f"v_pk_add_f32 v[{SM[mt]}:{SM[mt]+1}], v[{SM[mt]}:{SM[mt]+1}], v[{v[i]}:{v[i]+1}]")
        for mt in range(3): a.v(f"v_add_f32 v{MX[mt]}, v{SM[mt]}, v{SM[mt]+1}")
        xlane_reduce(a, "v_add_f32", MX, TM)
        for mt in range(3): a.v(f"v_rcp_f32 v{MX[mt]}, v{MX[mt]}")
        for i in range(0, 12, 2):
            for mt in range(3):
                v = vals(mt); a.v(f"v_pk_mul_f32 v[{v[i]}:{v[i]+1}], v[{v[i]}:{v[i]+1}], v[{MX[mt]}:{MX[mt]+1}] op_sel_hi:[1,0]")
        for mt in range(3):
            r0, r1, r2 = accS(0, mt), accS(1, mt), accS(2, mt)
            for f in (cvt(r0, r0, r0+1), cvt(r0+1, r0+2, r0+3), cvt(r0+2, r1, r1+1), cvt(r0+3, r1+2, r1+3), cvt(r2, r2, r2+1), cvt(r2+1, r2+2, r2+3)): f()
        stamp(a, cfg, 4)
        a.barrier()
        for t in range(8):
            for kt in range(3):
                a.ds_read("ds_read_b64_tr_b16", Vf(t) + 2*kt, 2, aV(t >> 1), off=kt*4*VSTR + (t & 1)*32)
        nonce_check(a, 10)
        apply_c(a, (80, 84, 88, 92, 96))
        a.s(f"s_lshl_b32 s81, s{S_NT}, 15")
        a.s("s_add_u32 s81, s81, s80")
        def ostore(mt, kp):
            r = accO(mt, 2*kp); s_ = accO(mt, 2*kp+1); d = ofA(kp, mt); f = kp*3 + mt
            return [cvt(d, r, r+1), cvt(d+1, r+2, r+3), cvt(d+2, s_, s_+1), cvt(d+3, s_+2, s_+3),
                    lambda: a.s(f"s_add_u32 s82, s81, s{40 + f//4}"),
                    lambda: a.bstore(d, 4, 14, S_WS, "s82", off=(f % 4)*1024, flags="sc1")]
        for kp in range(4):
            for t in (2*kp, 2*kp+1):
                for mt in range(3):
                    a.mfma(accO(mt, t), Vf(t), accS(0, mt), None); F.pop(2)
            for t in (2*kp, 2*kp+1):
                for mt in range(3):
                    a.mfma(accO(mt, t), Vf(t)+4, accS(2, mt), accO(mt, t), k=16); F.pop(2)
            F.add(lambda: None, lambda: None, lambda: None, lambda: None)
            for mt in range(3): F.add(*ostore(mt, kp))
    F.drain()
    stamp(a, cfg, 5)
    a.waitcnt(lgkm=0)
    a.barrier()
    def flag():
        if cfg.epoll:
            a.s("s_mov_b32 exec_lo, s86"); a.s("s_mov_b32 exec_hi, 0")
            a.bload(6, 2, 11, S_WS, "s84", flags="sc1")
            a.s("s_mov_b64 exec, -1")
        a.waitcnt(vm=0)
        stamp(a, cfg, 6)
        a.s("s_mov_b32 exec_lo, s85"); a.s("s_mov_b32 exec_hi, 0")
        a.bstore(8, 2, 11, S_WS, "s84", flags="sc1")
        a.s("s_mov_b64 exec, -1")
    if cfg.flagpos == 0: flag()
    a.barrier()
    stamp(a, cfg, 10)
    items = []
    for p in range(4):
        if p == 3 and cfg.prog: items += [(p, kp, t) for t in range(9) for kp in range(4)]
        else: items += [(p, kp, t) for kp in range(4) for t in range(9)]
    NB = 9
    def rdW2(i, h):
        p, kp, t = items[i]
        def f():
            a.ds_read("ds_read_b64_tr_b16", Wf2(i % NB)+2*h, 2, R[t & 1], off=kp*10240 + h*5120 + 32*(t - (t & 1))); ver[("W2", i % NB, h)] = i
        return f
    for kp in range(4):
        for mt in range(3): ver[("O", 0, kp, mt)] = 0
    def headbase(p):
        return [lambda: head_order(a, p, 81), lambda: a.s("s_lshl_b32 s81, s81, 15"), lambda: a.s("s_add_u32 s81, s81, s80")]
    def ldO(p, f, srdb=S_WS):
        kp, mt = divmod(f, 3)
        return [lambda: a.s(f"s_add_u32 s82, s81, s{40 + f//4}"),
                lambda: (a.bload(of(p & 1, kp, mt), 4, 14, srdb, "s82", off=(f % 4)*1024, flags="sc1"), ver.__setitem__(("O", p & 1, kp, mt), p))]
    def publish(mt, pair):
        if pair == 4 and mt == 1: return []
        slot = pair*3 + mt if pair < 4 else 12 + mt//2
        r = acc2(mt, 2*pair)
        out = [cvt(r, r, r+1), cvt(r+1, r+2, r+3)]
        n = 4
        if slot < 13:
            s_ = acc2(mt, 2*pair+1) if pair < 4 else acc2(1, 8)
            out += [cvt(r+2, s_, s_+1), cvt(r+3, s_+2, s_+3)]
        def st_():
            L = newlabel("own"); L2 = newlabel("ownb")
            a.s(f"s_cmp_eq_u32 s90, {slot & 7}")
            a.s(f"s_cbranch_scc1 {L}")
            if slot < 13: a.bstore(r, 4, 14, S_WS, "s82", flags="sc1")
            else: a.bstore(r, 2, 11, S_WS, "s82", flags="sc1")
            a.label(L2)
            a.ool += [f"{L}:", f"    ds_write_b128 v2, v[{r}:{r+3}] offset:{(slot >> 3)*4096}", f"    s_branch {L2}"]
        out += [lambda: a.s(f"s_add_u32 s82, s92, {slot*16384}"), st_]
        return out
    for i in range(NB): rdW2(i, 0)(); rdW2(i, 1)()
    seen = set()
    for i, (p, kp, t) in enumerate(items):
        if cfg.flagpos and i == cfg.flagpos*9:
            F.drain()
            flag()
            if cfg.epoll:
                a.s("s_mov_b32 exec_lo, s86"); a.s("s_mov_b32 exec_hi, 0")
                a.v("v_cmp_ne_u64 vcc, v[6:7], v[8:9]")
                a.s("s_mov_b64 exec, -1")
                a.s("s_cmp_eq_u32 vcc_lo, 0")
                a.s(f"s_cselect_b32 s{S_X+2}, {WS_BYTES}, 0")
                for f in headbase(1): f()
                for fr in range(12): F.add(*ldO(1, fr, S_X))
            if cfg.fbar: a.barrier()
        def r1():
            F.drain()
            if cfg.p2st: stamp(a, cfg, 1)
            a.barrier()
            if cfg.p2st: stamp(a, cfg, 2)
            for r in R: a.v(f"v_add_u32 v{r}, s93, v{r}")
            for j in range(36, 36 + NB): rdW2(j, 0)(); rdW2(j, 1)()
        if i == 36 and cfg.r1first: r1()
        if i == cfg.pollpos*9:
            F.drain()
            if cfg.epoll:
                assert i == 36 and cfg.flagpos
                a.s(f"s_cmp_lg_u32 s{S_X+2}, 0")
                a.s("s_cbranch_scc1 L_fast")
            for f in headbase(1): f()
            poll_flags(a, 6, 8, 11, 84, "s86", 76)
            if not cfg.epoll: stamp(a, cfg, 7)
            if i == 36:
                for fr in range(12):
                    for f in ldO(1, fr): f()
                if cfg.epoll:
                    a.label("L_fast")
                    stamp(a, cfg, 7)
            else:
                for fr in range(12): F.add(*ldO(1, fr))
        if cfg.p2st and i in (37, 72, 108): stamp(a, cfg, {37: 3, 72: 4, 108: 5}[i])
        if i == 36:
            if not cfg.r1first: r1()
            F.add(*headbase(2))
        if p == 1 and t in (0, 3, 6): F.add(*ldO(2, kp*3 + t//3))
        if i == 72: F.add(*headbase(3)); F.add(*tail_vsetup(a))
        if p == 2 and kp < 2 and t < 6: F.add(*ldO(3, kp*6 + t))
        for mt in range(3):
            assert ver[("W2", i % NB, 0)] == i and ver[("W2", i % NB, 1)] == i and ver[("O", p & 1, kp, mt)] == p, (i, p, kp, t)
            a.mfma(acc2(mt, t), Wf2(i % NB), of(p & 1, kp, mt), acc2(mt, t) if (mt, t) in seen else None)
            seen.add((mt, t))
            F.pop(3 if len(F.q) > 8 else 2 if len(F.q) > 2 else 1)
        j = i + NB
        if j < len(items) and not (p == 0 and j >= 36):
            if j % 36 == 0:
                F.drain()
                a.barrier()
                for r in R: F.add(lambda r=r, j=j: a.v(f"v_add_u32 v{r}, s{92 + j//36}, v{r}"))
                F.add(rdW2(j, 0), rdW2(j, 1))
            elif j % 36 == 1: F.add(rdW2(j, 0), rdW2(j, 1))
            else: F.q = [rdW2(j, 0), rdW2(j, 1)] + F.q
        if p == 3 and cfg.prog and kp == 0 and t >= 2 and t % 2 == 0:
            for mt in range(3): F.add(*publish(mt, t//2 - 1))
    stamp(a, cfg, 8)
    F.drain()
    for pair in range(4 if cfg.prog else 0, 5):
        for mt in range(3):
            for f in publish(mt, pair): f()
    stamp(a, cfg, 9)
    a.waitcnt(vm=0, lgkm=0)
    stamp(a, cfg, 11)
    a.s("s_xor_b32 s97, s97, 0xff")
    if cfg.f2:
        a.s("s_mov_b32 exec_lo, s97"); a.s("s_mov_b32 exec_hi, 0")
        a.s("s_lshl_b32 s76, s90, 3")
        a.s("s_add_u32 s76, s76, s96")
        a.bstore(8, 2, 3, S_WS, "s76", flags="sc1")
        a.s("s_lshl_b32 s76, s90, 7")
        a.s("s_add_u32 s96, s96, s76")
    else:
        a.s("s_xor_b32 exec_lo, s97, 0xff"); a.s("s_mov_b32 exec_hi, 0")
        a.bstore(8, 2, 11, S_WS, "s96", flags="sc1")
    poll_flags(a, 6, 8, 11, 96, "s97", 76)

def tail(a, cfg, endlabel):
    a.barrier()
    a.s("s_cmp_ge_u32 s89, 14")
    a.s(f"s_cbranch_scc1 {endlabel}")
    stamp(a, cfg, 12)
    a.ds_read("ds_read_b128", 16, 4, 2)
    a.s("s_cmp_eq_u32 s89, 13")
    a.s("s_cbranch_scc1 L_half")
    def srcoff(k):
        a.s(f"s_add_u32 s76, s90, {k}")
        a.s("s_and_b32 s76, s76, 7")
        a.s("s_lshl_b32 s76, s76, 10")
        a.s("s_add_u32 s76, s76, s88")
    for k in range(1, 8):
        srcoff(k); a.bload(16 + 4*k, 4, 14, S_WS, "s76", flags="sc1")
    a.label("L_halfb")
    ool = Asm()
    ool.label("L_half")
    for k in range(1, 8):
        ool.s(f"s_add_u32 s76, s90, {k}"); ool.s("s_and_b32 s76, s76, 7"); ool.s("s_lshl_b32 s76, s76, 10"); ool.s("s_add_u32 s76, s76, s88")
        ool.bload(16 + 4*k, 2, 11, S_WS, "s76", flags="sc1")
    ool.s("s_branch L_halfb")
    a.ool += ool.L
    for k in range(8):
        src = 16 + 4*k
        for i in range(4):
            if k == 0:
                a.v(f"v_lshlrev_b32 v{48+2*i}, 16, v{src+i}")
                a.v(f"v_and_b32 v{49+2*i}, 0xffff0000, v{src+i}")
            else:
                a.v(f"v_lshlrev_b32 v{60+2*(i&1)}, 16, v{src+i}")
                a.v(f"v_and_b32 v{61+2*(i&1)}, 0xffff0000, v{src+i}")
                a.v(f"v_pk_add_f32 v[{48+2*i}:{49+2*i}], v[{48+2*i}:{49+2*i}], v[{60+2*(i&1)}:{61+2*(i&1)}]")
        if k == 1: stamp(a, cfg, 13)
    for i in range(4): a.v(f"v_cvt_pk_bf16_f32 v{64+i}, v{48+2*i}, v{49+2*i}")
    a.v("v_permlane16_swap_b32 v64, v66")
    a.v("v_permlane16_swap_b32 v65, v67")
    stamp(a, cfg, 14)
    a.s("s_mov_b64 exec, s[78:79]")
    a.bstore(64, 4, 4, S_OUT, "s87", flags=cfg.st_out)

def kernel(cfg):
    a = Asm()
    a.lcap = cfg.lcap
    a.ool = []
    stamp(a, cfg, 0)
    prologue(a, cfg, "L_end")
    a.s(f"s_cmp_lt_u32 s{S_W}, 4")
    a.s("s_cbranch_scc1 L_compute")
    loader(a, cfg)
    a.label("L_compute")
    a.reset_state()
    compute(a, cfg)
    a.label("L_tail")
    a.reset_state()
    a.nop(2)
    tail(a, cfg, "L_end")
    if cfg.stamps: a.waitcnt(vm=0)
    stamp(a, cfg, 15)
    stamp_out(a, cfg)
    a.label("L_end")
    a.s("s_endpgm")
    for l in a.ool: a.raw(l)
    return a

HEADER = open("cdna_kernels/" + NAME + ".s.ref").read().split("; Override launch")[0]

def build(cfg):
    n = NAME + "_kernel"
    a = kernel(cfg)
    return HEADER + f"""; @launch grid=(256,1,1) block=(512,1,1) lds=163840
.amdgcn_target "amdgcn-amd-amdhsa--gfx950"
.text
.globl {n}
.p2align 8
.type {n},@function
{n}:
{a.text()}
L_code_end:
.section .rodata,"a"
.p2align 6
.amdhsa_kernel {n}
  .amdhsa_next_free_vgpr 256
  .amdhsa_next_free_sgpr 102
  .amdhsa_accum_offset 256
  .amdhsa_group_segment_fixed_size 0
  .amdhsa_kernarg_size 104
  .amdhsa_user_sgpr_count 2
  .amdhsa_user_sgpr_kernarg_segment_ptr 1
  .amdhsa_system_sgpr_workgroup_id_x 1
.end_amdhsa_kernel
"""

if __name__ == "__main__":
    cfg = Cfg()
    for kv in sys.argv[2:]:
        k, v = kv.split("=")
        cur = getattr(cfg, k)
        setattr(cfg, k, (v == "1") if isinstance(cur, bool) else int(v) if isinstance(cur, int) else v.replace("_", " "))
    open(sys.argv[1], "w").write(build(cfg))
```

```python
import sys, struct
from asm import *

NAME = "concat_heads__gqa_block_cached__mha_block_cached__near_ridge"
SL = 40960
KSTR, VSTR = 4112, 4128
KUNIT, VUNIT = 1024, 1024
KBASE = 0
VBASE_L = 12*KSTR
WS_O = 0
WS_FLAG1 = 32 << 20
WS_FLAG2 = 33 << 20
WS_PART = 16 << 20
WS_STAMP = 40 << 20
WS_BYTES = 48 << 20
SC = 0.08838834764831845 * 1.4426950408889634
SPIN_MAX = 1 << 17
def f2u(x): return struct.unpack("<I", struct.pack("<f", x))[0]

S_X, S_K, S_V, S_WQ, S_WO, S_OUT, S_WS, S_DBG = 36, 40, 44, 48, 52, 56, 60, 64
S_BR, S_KQ, S_HL, S_BG, S_W, S_NT, S_E = 68, 69, 70, 71, 72, 98, 99

class Cfg:
    stamps = False; x_clk = False; lst = 0
    ld_x = ""; ld_wq = ""; ld_kv = "nt"; ld_wo = ""; st_out = ""
    skew = 3; prio = 0; lcap = 8; barpos = 3
    el = 2; pollpos = 4; ctouch = 2; e_wo = 1; l_wo = 1; prog = 1; touch = 1; tpos = 5; wo2 = 1; flagpos = 1; e_vpos = 4; l_kpos = 2; f2 = 1; c_kpos = 5; c_tpos = 3; swap = 1; own = 1; warmf = 1; p2st = 0; fbar = 1; wo0late = 0; x_enc = -1; x_amp = 4; dbgwg = 0; att = 1; r1first = 1; epoll = 0; cfix = -1; nprobe = 1; split = 0; fb = 9; x_pace = 0; cls = '23,34,45,56'; v7 = 4; v8 = 12; x_burn = 0; x_map = 0; pa = 14; pac = 21; rot = 0; pb = 48

NST = 16
def streg(i): return 4 if i == 0 else 8 + 2*(i-1) if i <= 13 else {14: 34, 15: 100}[i]
def stamp(a, cfg, i):
    if cfg.stamps:
        r = streg(i)
        a.raw(f"    {'s_memtime' if cfg.x_clk else 's_memrealtime'} s[{r}:{r+1}]"); a.pos += 1
def stamp_out(a, cfg):
    if not cfg.stamps: return
    if cfg.x_enc >= 0:
        a.raw("    s_waitcnt lgkmcnt(0)")
        a.s("s_lshl_b32 s3, s2, 3")
        a.s(f"s_add_u32 s3, s3, s{S_W}")
        a.s(f"s_cmp_lg_u32 s3, {cfg.dbgwg*8}")
        a.s("s_cbranch_scc1 L_end")
        a.s(f"s_sub_u32 s76, s{streg(cfg.x_enc)}, s4")
        a.s(f"s_mul_i32 s76, s76, {cfg.x_amp}")
        a.s("s_add_u32 s76, s76, 5000")
        a.label("L_hold")
        a.raw("    s_memrealtime s[78:79]")
        a.raw("    s_waitcnt lgkmcnt(0)")
        a.s("s_sub_u32 s77, s78, s4")
        a.s("s_cmp_lt_u32 s77, s76")
        a.s("s_cbranch_scc1 L_hold")
        return
    a.raw("    s_waitcnt lgkmcnt(0)")
    a.s("s_mov_b64 exec, 1")
    a.s("s_lshl_b32 s3, s2, 3")
    a.s(f"s_add_u32 s3, s3, s{S_W}")
    a.s("s_lshl_b32 s3, s3, 6")
    a.s(f"s_add_u32 s3, s3, {WS_STAMP}")
    a.v("v_mov_b32 v1, 0")
    for i in range(NST):
        a.v(f"v_mov_b32 v2, s{streg(i)}")
        a.bstore(2, 1, 1, S_WS, "s3", off=4*i)
        a.nop(2)

def srd(a, base, lo, hi, size):
    a.s(f"s_mov_b32 s{base}, s{lo}")
    a.s(f"s_mov_b32 s{base+1}, s{hi}")
    a.s(f"s_mov_b32 s{base+2}, {size}")
    a.s(f"s_mov_b32 s{base+3}, 0x20000")

def prologue(a, cfg, endlabel):
    a.s("s_cmp_ge_u32 s2, 256")
    a.s(f"s_cbranch_scc1 {endlabel}")
    a.raw("    s_load_dwordx16 s[8:23], s[0:1], 0")
    a.raw("    s_load_dwordx8 s[24:31], s[0:1], 64")
    a.raw("    s_load_dwordx2 s[32:33], s[0:1], 96")
    a.v("v_and_b32 v1, 63, v0")
    a.v("v_lshrrev_b32 v15, 6, v0")
    a.s(f"s_and_b32 s{S_KQ}, s2, 3")
    a.s(f"s_bfe_u32 s{S_BR}, s2, 0x10002")
    if cfg.swap: a.s(f"s_xor_b32 s{S_BR}, s{S_BR}, 1")
    a.s(f"s_bfe_u32 s{S_HL}, s2, 0x30003")
    a.s(f"s_lshr_b32 s{S_BG}, s2, 6")
    a.s(f"s_and_b32 s{S_NT}, s{S_HL}, 3")
    a.v(f"v_readfirstlane_b32 s{S_W}, v15")
    if cfg.el:
        a.s(f"s_lshr_b32 s{S_E}, s{S_HL}, 2")
        a.s(f"s_xor_b32 s{S_E}, s{S_E}, s{S_BG}")
        a.s(f"s_and_b32 s{S_E}, s{S_E}, 1")
        a.s(f"s_and_b32 s3, s{S_BG}, 2")
        a.s(f"s_or_b32 s3, s3, s{S_E}")
        if cfg.el == 2: a.s(f"s_mov_b32 s{S_E}, 0")
    else:
        a.s(f"s_mov_b32 s{S_E}, 0")

def build_srds(a, keys):
    a.raw("    s_waitcnt lgkmcnt(0)")
    a.s(f"s_cmp_eq_u32 s{S_BR}, 0")
    for (dst, pa, pb, key) in ((S_WQ, 14, 24, 'wq'), (S_X, 8, 18, 'x'), (S_K, 10, 20, 'k'), (S_V, 12, 22, 'v'), (S_WO, 16, 26, 'wo')):
        if key not in keys: continue
        a.s(f"s_cselect_b64 s[{dst}:{dst+1}], s[{pa}:{pa+1}], s[{pb}:{pb+1}]")
        if key in ('k', 'v'):
            a.s(f"s_mov_b32 s{dst+2}, 6291456")
            a.s(f"s_cselect_b32 s{dst+2}, 3145728, s{dst+2}")
        else:
            a.s(f"s_mov_b32 s{dst+2}, {884736 if key == 'x' else 4718592}")
        a.s(f"s_mov_b32 s{dst+3}, 0x20000")
    if 'o' in keys:
        srd(a, S_OUT, 28, 29, 1769472)
        srd(a, S_DBG, 30, 31, 256)
        srd(a, S_WS, 32, 33, WS_BYTES)

ROT = [0]
def head_order(a, p, sd):
    if p == 0: a.s(f"s_mov_b32 s{sd}, s{S_NT}")
    elif ROT[0]:
        a.s(f"s_add_u32 s{sd}, s{S_NT}, {p}"); a.s(f"s_and_b32 s{sd}, s{sd}, 3")
    else:
        a.s(f"s_cmp_le_u32 s{S_NT}, {p-1}"); a.s(f"s_cselect_b32 s{sd}, {p}, {p-1}")

_lbl = [0]
def newlabel(p):
    _lbl[0] += 1
    return f"L{p}_{_lbl[0]}"

def poll_flags(a, vdata, vnonce, voff, soff, mask, stmp, off=0):
    L = newlabel("poll"); X = newlabel("pollx")
    a.s(f"s_mov_b32 exec_lo, {mask}")
    a.s("s_mov_b32 exec_hi, 0")
    a.s(f"s_mov_b32 s{stmp}, 0")
    a.label(L)
    a.bload(vdata, 2, voff, S_WS, f"s{soff}", off=off, flags="sc1")
    a.s(f"s_add_u32 s{stmp}, s{stmp}, 1")
    a.s(f"s_cmp_gt_u32 s{stmp}, {SPIN_MAX}")
    a.waitcnt(vm=0)
    a.s(f"s_cbranch_scc1 {X}")
    a.v(f"v_cmp_ne_u64 vcc, v[{vdata}:{vdata+1}], v[{vnonce}:{vnonce+1}]")
    a.s(f"s_cbranch_vccnz {L}")
    a.label(X)
    a.s("s_mov_b64 exec, -1")

NVOTE = 32
CAP = 4095
def nonce_load(a, vn, vzero):
    a.bload(vn, 4, vzero, S_DBG, "0", flags="sc1", tag="nonce")
def nonce_check(a, vn, vzero):
    Lok = newlabel("nok"); Lsp = newlabel("nsp")
    a.s("s_mov_b32 s77, 0")
    a.v(f"v_readfirstlane_b32 s76, v{vn}")
    a.v(f"v_readfirstlane_b32 s75, v{vn+2}")
    a.label(Lsp)
    a.s("s_cmp_lg_u32 s76, 0")
    a.s("s_cselect_b32 s76, s75, 0")
    a.s(f"s_cmp_ge_u32 s76, {NVOTE << 24}")
    a.s(f"s_cbranch_scc1 {Lok}")
    a.s("s_add_u32 s77, s77, 1")
    a.s(f"s_cmp_gt_u32 s77, {SPIN_MAX}")
    a.s(f"s_cbranch_scc1 {Lok}")
    a.raw(f"    buffer_load_dwordx4 v[{vn}:{vn+3}], v{vzero}, s[{S_DBG}:{S_DBG+3}], 0 offen sc1")
    a.raw("    s_waitcnt vmcnt(0)")
    a.raw(f"    v_readfirstlane_b32 s76, v{vn}")
    a.raw(f"    v_readfirstlane_b32 s75, v{vn+2}")
    a.raw("    s_nop 0")
    a.s(f"s_branch {Lsp}")
    a.label(Lok)
    a.v(f"v_mov_b32 v8, v{vn}")
    a.v(f"v_mov_b32 v9, v{vn+1}")
    a.s(f"s_cmp_gt_u32 s76, {(NVOTE << 24) + NVOTE*CAP}")
    a.s("s_cselect_b32 s76, 8192, 0")

def bsel(a, sd):
    a.s(f"s_lshr_b32 s76, s{sd}, 19")
    a.s("s_xor_b32 s76, s76, s2")
    a.s("s_and_b32 s76, s76, 4")
    a.s("s_lshl_b32 s76, s76, 11")
    a.s(f"s_or_b32 s{sd}, s{sd}, s76")

def apply_c(a, regs):
    for r in regs: a.s(f"s_xor_b32 s{r}, s{r}, s76")

def unit_base(a, sd, sb_w, shead):
    a.s(f"s_lshl_b32 s76, s{S_BG}, 2")
    a.s(f"s_add_u32 s76, s76, s{sb_w}")
    a.s("s_lshl_b32 s76, s76, 5")
    a.s(f"s_add_u32 s76, s76, s{shead}")
    a.s(f"s_lshl_b32 s{sd}, s76, 15")
    bsel(a, sd)
    a.s(f"s_and_b32 s76, s{sb_w}, 1")
    a.s("s_lshl_b32 s40, s76, 12")
    a.s(f"s_and_b32 s76, s{sb_w}, 2")
    a.s("s_lshl_b32 s76, s76, 13")
    a.s("s_or_b32 s40, s40, s76")
    a.s("s_xor_b32 s41, s40, 4096")
    a.s("s_xor_b32 s42, s40, 16384")

def tail_ssetup(a, sw, half):
    a.s(f"s_lshr_b32 s90, s{S_HL}, 2")
    a.s(f"s_lshl_b32 s76, s{S_KQ}, 1")
    a.s("s_add_u32 s90, s90, s76")
    a.s(f"s_add_u32 s89, s90, {8*half}")
    a.s(f"s_lshl_b32 s91, s{S_BG}, 2")
    a.s(f"s_add_u32 s91, s91, s{S_NT}")
    a.s("s_lshl_b32 s91, s91, 2")
    a.s(f"s_add_u32 s91, s91, s{sw}")
    a.s("s_lshr_b32 s76, s91, 3")
    a.s("s_lshl_b32 s76, s76, 14")
    a.s("s_and_b32 s77, s91, 7")
    a.s("s_lshl_b32 s77, s77, 10")
    a.s("s_add_u32 s76, s76, s77")
    a.s(f"s_add_u32 s96, s76, {WS_FLAG2}")
    bsel(a, 96)
    a.s("s_lshl_b32 s92, s91, 18")
    a.s(f"s_add_u32 s92, s92, {WS_PART}")
    bsel(a, 92)
    a.s("s_lshl_b32 s76, s89, 14")
    a.s("s_add_u32 s88, s92, s76")
    a.s("s_lshl_b32 s76, s90, 10")
    a.s("s_add_u32 s92, s92, s76")
    a.s("s_mul_i32 s76, s89, 43")
    a.s("s_lshr_b32 s76, s76, 7")
    a.s("s_mul_i32 s77, s76, 3")
    a.s("s_sub_u32 s77, s89, s77")
    a.s("s_cmp_eq_u32 s89, 13")
    a.s("s_cselect_b32 s77, 2, s77")
    a.s("s_lshl_b32 s87, s76, 6")
    a.s(f"s_mul_i32 s77, s77, {16*2304}")
    a.s("s_add_u32 s87, s87, s77")
    a.s(f"s_lshl_b32 s77, s{S_BG}, 2")
    a.s(f"s_add_u32 s77, s77, s{sw}")
    a.s(f"s_mul_i32 s77, s77, {48*2304}")
    a.s("s_add_u32 s87, s87, s77")
    a.s(f"s_mul_i32 s77, s{S_BR}, 1152")
    a.s("s_add_u32 s87, s87, s77")
    a.s(f"s_mul_i32 s77, s{S_NT}, 288")
    a.s("s_add_u32 s87, s87, s77")
    a.s("s_cmp_lt_u32 s89, 12")
    a.s(f"s_cselect_b32 s74, 32, {16*2304}")
    a.s("s_cmp_lt_u32 s89, 13")
    a.s("s_cselect_b32 s78, -1, 0xffff")
    a.s("s_mov_b32 s79, s78")
    for u in range(16): assert (u*43) >> 7 == u//3

def tail_vsetup(a, sw=S_W, half=0):
    return [lambda t=t: a.v(t) for t in (
        "v_and_b32 v4, 15, v1", "v_mul_u32_u24 v4, 2304, v4", "v_bfe_u32 v5, v1, 4, 1", "v_mad_u32_u24 v4, v5, s74, v4",
        "v_lshrrev_b32 v5, 5, v1", "v_lshl_add_u32 v4, v5, 4, v4", "v_lshlrev_b32 v3, 7, v1", f"v_lshlrev_b32 v2, 4, v1", f"v_lshl_add_u32 v2, s{sw}, 10, v2", f"v_add_u32 v2, {3*SL + half*4096}, v2")]

def loader(a, cfg):
    a.s(f"s_sub_u32 s73, s{S_W}, 4")
    a.s("s_and_b32 s74, s73, 1")
    a.s("s_lshr_b32 s75, s73, 1")
    a.s(f"s_lshl_b32 s95, s{S_KQ}, 3")
    a.s(f"s_add_u32 s95, s95, s{S_HL}")
    a.v("v_lshrrev_b32 v4, 4, v1")
    a.s("s_lshl_b32 s76, s75, 2")
    a.v("v_or_b32 v5, s76, v4")
    a.v("v_bfe_u32 v6, v1, 1, 3")
    a.v("v_xor_b32 v6, v6, v5")
    a.v("v_lshlrev_b32 v6, 5, v6")
    a.v("v_and_b32 v7, 1, v1")
    a.v("v_lshl_add_u32 v6, v7, 4, v6")
    a.v("v_lshl_add_u32 v2, v4, 13, v6")
    a.s("s_lshl_b32 s76, s73, 15")
    a.s("s_lshl_b32 s77, s95, 8")
    a.s("s_add_u32 s76, s76, s77")
    a.v("v_add_u32 v2, s76, v2")
    a.v("v_lshlrev_b32 v5, 2, v4")
    a.v("v_and_b32 v6, 15, v1")
    a.v("v_xor_b32 v6, v6, v5")
    a.v("v_lshlrev_b32 v6, 4, v6")
    a.v("v_lshl_add_u32 v10, v4, 8, v6")
    a.s("s_lshl_b32 s76, s74, 2")
    a.v("v_or_b32 v5, s76, v4")
    a.v("v_lshrrev_b32 v4, 3, v1")
    a.v("v_mul_u32_u24 v4, 1152, v4")
    a.v("v_and_b32 v6, 7, v1")
    a.v("v_xor_b32 v6, v6, v5")
    a.v("v_lshl_add_u32 v3, v6, 4, v4")
    a.s(f"s_mul_i32 s76, s{S_BG}, {192*1152}")
    a.s(f"s_mul_i32 s77, s74, {8*1152}")
    a.s("s_add_u32 s76, s76, s77")
    a.s(f"s_mul_i32 s77, s75, {96*1152}")
    a.s("s_add_u32 s76, s76, s77")
    a.v("v_add_u32 v3, s76, v3")
    a.s("s_lshl_b32 s78, s73, 10")
    a.s("s_mul_i32 s79, s75, 12288")
    a.s("s_lshl_b32 s77, s74, 10")
    a.s("s_add_u32 s79, s79, s77")
    a.s("s_add_u32 s79, s79, 16384")
    a.s(f"s_lshl_b32 s76, s{S_BG}, 2")
    a.s("s_add_u32 s76, s76, s73")
    a.s("s_lshl_b32 s76, s76, 5")
    a.s("s_add_u32 s76, s76, s95")
    a.s(f"s_xor_b32 s77, s{S_BR}, 1")
    a.s("s_lshr_b32 s76, s76, s77")
    a.s("s_mul_i32 s80, s76, 12288")
    a.s(f"s_mul_i32 s91, s73, {KUNIT}")
    a.s(f"s_add_u32 s91, s91, {KBASE}")
    a.s(f"s_mul_i32 s92, s73, {VUNIT}")
    if cfg.skew == 3:
        a.s(f"s_add_u32 s84, s{S_HL}, s{S_BG}")
        a.s("s_mul_i32 s85, s84, 43")
        a.s("s_lshr_b32 s85, s85, 7")
        a.s("s_mul_i32 s85, s85, 3")
        a.s("s_sub_u32 s84, s84, s85")
        a.s("s_mul_i32 s84, s84, 3")
    elif cfg.skew == 4:
        a.s(f"s_add_u32 s84, s{S_HL}, s{S_BG}")
        a.s("s_and_b32 s84, s84, 3")
        a.s("s_lshl_b32 s84, s84, 1")
    elif cfg.skew == 2:
        a.s(f"s_lshr_b32 s84, s{S_BG}, 1")
        a.s(f"s_xor_b32 s84, s84, s{S_HL}")
        a.s("s_and_b32 s84, s84, 1")
        a.s("s_lshl_b32 s84, s84, 2")
    elif cfg.skew == 9:
        a.s(f"s_lshl_b32 s84, s{S_BG}, 1")
        a.s(f"s_add_u32 s84, s84, s{S_HL}")
        a.s("s_sub_u32 s85, s84, 9")
        a.s("s_cmp_ge_u32 s84, 9")
        a.s("s_cselect_b32 s84, s85, s84")
    else:
        a.s("s_mov_b32 s84, 0")
    build_srds(a, ('x', 'wq', 'k'))
    def stage(s):
        slot = (1 + s % 3) * SL
        a.s("s_lshl_b32 s85, s84, 7")
        a.s("s_lshl_b32 s86, s84, 19")
        for i in range(4):
            a.s(f"s_add_u32 m0, s78, {slot + i*4096}")
            a.s(f"s_add_u32 s82, s86, {16*i*8192}")
            a.dma(2, S_WQ, "s82", cfg.ld_wq, tag=("st", s))
        for z in range(6):
            a.s(f"s_add_u32 m0, s79, {slot + z*2048}")
            a.s(f"s_add_u32 s82, s85, {z*16*1152}")
            a.dma(3, S_X, "s82", cfg.ld_x, tag=("st", s))
        a.s("s_add_u32 s84, s84, 1")
        a.s("s_cmp_eq_u32 s84, 9")
        a.s("s_cselect_b32 s84, 0, s84")
    def kvpart(g, srdb, sm0, stride, lo, hi, base=0):
        for i in range(lo, hi):
            a.s(f"s_add_u32 m0, s{sm0}, {base + i*stride}")
            a.s(f"s_add_u32 s82, s80, {i*1024}")
            a.dma(10, srdb, "s82", cfg.ld_kv, tag=("st", g))
    def codetouch():
        a.s("s_mov_b64 exec, 7")
        a.raw("    global_load_dword v24, v25, s[6:7]"); a.pos += 1
        a.vm.append((None, "touch"))
        a.s("s_mov_b64 exec, -1")
    def setup2():
        if cfg.ctouch:
            L = newlabel("pc")
            a.raw("    s_getpc_b64 s[6:7]")
            a.label(L)
            a.s(f"s_sub_u32 s6, s6, {L}-{NAME}_kernel")
            a.s("s_subb_u32 s7, s7, 0")
            a.s("s_lshr_b32 s76, s2, 3")
            a.s("s_lshl_b32 s76, s76, 2")
            a.s("s_add_u32 s76, s76, s73")
            a.s("s_mul_i32 s76, s76, 384")
            a.v("v_lshlrev_b32 v25, 7, v1")
            a.v("v_add_u32 v25, s76, v25")
            a.s("s_mov_b32 s77, L_code_end-" + NAME + "_kernel-4")
            a.v("v_min_u32 v25, s77, v25")
            codetouch()
        build_srds(a, ('v', 'wo', 'o'))
        stamp(a, cfg, 1)
        a.v("v_mov_b32 v16, 0")
        L = newlabel("nw")
        a.s("s_add_u32 s76, s2, s73")
        a.s("s_cmp_lg_u32 s76, 0")
        a.s(f"s_cbranch_scc1 {L}")
        a.raw("    s_memrealtime s[88:89]")
        a.raw("    s_waitcnt lgkmcnt(0)")
        a.s("s_or_b32 s88, s88, 1")
        a.v("v_mov_b32 v18, s88")
        a.v("v_mov_b32 v19, s89")
        a.s("s_mov_b64 exec, 1")
        a.raw(f"    buffer_store_dwordx2 v[18:19], v16, s[{S_DBG}:{S_DBG+3}], 0 offen sc1")
        a.s("s_mov_b64 exec, -1")
        a.label(L)
    def setup3():
        a.s("s_and_b32 s76, s95, 0xfc")
        a.s("s_lshl_b32 s76, s76, 7")
        a.s("s_lshl_b32 s77, s73, 5")
        a.s("s_add_u32 s76, s76, s77")
        a.s("s_mul_i32 s76, s76, 1152")
        a.s(f"s_mul_i32 s77, s{S_NT}, 288")
        a.s("s_and_b32 s77, s77, 0xffffffc0")
        a.s("s_add_u32 s76, s76, s77")
        for y in range(5):
            a.v(f"v_add_u32 v4, {y*64}, v1")
            a.v("v_mul_u32_u24 v5, 3277, v4")
            a.v("v_lshrrev_b32 v5, 16, v5")
            a.v("v_mul_u32_u24 v6, 20, v5")
            a.v("v_sub_u32 v6, v4, v6")
            a.v("v_bfe_u32 v7, v5, 2, 1")
            a.v("v_lshlrev_b32 v7, 1, v7")
            a.v("v_xor_b32 v6, v6, v7")
            a.v("v_mul_u32_u24 v5, 1152, v5")
            a.v("v_lshl_add_u32 v5, v6, 4, v5")
            a.v(f"v_add_u32 v{26+y}, s76, v5")
        a.s("s_mul_i32 s93, s73, 10240")
        a.v("v_lshlrev_b32 v22, 7, v1")
        if cfg.touch >= 2:
            a.s(f"s_lshl_b32 s76, s{S_BG}, 2")
            a.s(f"s_add_u32 s76, s76, s{S_NT}")
        else:
            a.s("s_lshr_b32 s76, s2, 3")
        a.s("s_lshl_b32 s76, s76, 2")
        a.s("s_add_u32 s76, s76, s73")
        a.s(f"s_mul_i32 s76, s76, {(144 if cfg.touch >= 2 else 72)*128}")
        a.s(f"s_mul_i32 s94, s{S_KQ}, {1024*1152}")
        a.s("s_add_u32 s94, s94, s76")
    def touches():
        a.s("s_mov_b32 exec_lo, -1"); a.s("s_mov_b32 exec_hi, 15")
        for i in range(4 if cfg.touch >= 2 else 2):
            a.bload(23, 1, 22, S_WO, "s94", tag="touch"); a.vm[-1] = (None, "touch")
            a.s(f"s_add_u32 s94, s94, {36*128}")
        a.s("s_mov_b64 exec, -1")
    def wostage(p, start):
        head_order(a, p, 83)
        a.s(f"s_mul_i32 s83, s83, {128*1152}")
        for z2 in range(2):
            a.s(f"s_add_u32 s82, s83, {z2*16*1152}")
            for y in range(5):
                a.s(f"s_add_u32 m0, s93, {((start + p) % 4)*SL + z2*5120 + y*1024}")
                a.dma(26+y, S_WO, "s82", cfg.ld_wo, tag=("st", 11+p))
    cnt = [0]
    def st(i):
        if not cfg.lst: stamp(a, cfg, i)
    W = lambda g: a.wait_vm_tag(("st", g))
    def B():
        k = cnt[0] - cfg.lst
        if cfg.lst and 0 <= k < 5: stamp(a, cfg, 1 + 2*k)
        a.barrier()
        if cfg.lst and 0 <= k < 5: stamp(a, cfg, 2 + 2*k)
        cnt[0] += 1
    start = 3; vb = VBASE_L
    stage(0); setup2(); stage(1); setup3(); st(2)
    classes = [(int(c[0]), int(c[1])) for c in cfg.cls.split(",")]
    g0 = min(min(c) for c in classes)
    def middle(lo, hi, mid, tpos, nxt):
        for g in range(lo, hi):
            W(g)
            if g == 0: st(3)
            if g == 3: st(4)
            B()
            if g == 4 and cfg.ctouch > 1: codetouch()
            if g in (mid, tpos):
                while nxt <= (g + 1 if g < 6 else 8): stage(nxt); nxt += 1
                if g == mid: kvpart(9, S_K, 91, KSTR, 0, 9)
                if g == tpos: touches()
                continue
            while nxt <= g + 2: stage(nxt); nxt += 1
        return nxt
    nxt = middle(0, g0, -1, -1, 2)
    saved = list(a.vm); c0 = cnt[0]
    nc = len(classes)
    if nc == 2: a.s("s_and_b32 s3, s3, 1")
    for k in range(1, nc):
        a.s(f"s_cmp_eq_u32 s3, {k}")
        a.s(f"s_cbranch_scc1 L_cls{k}")
    for k, (kp_, tp_) in enumerate(classes):
        if k:
            a.label(f"L_cls{k}")
            a.hist = []; a.vm = list(saved); cnt[0] = c0
        assert middle(g0, 7, kp_, tp_, nxt) == 9
        W(7)
        B()
        kvpart(9, S_K, 91, KSTR, 9, 12)
        kvpart(10, S_V, 92, VSTR, 0, cfg.v7, vb)
        a.wait_vm_tag(("st", 8))
        a.waitcnt(vm=3 + cfg.v7)
        if k < nc - 1: a.s("s_branch L_join")
    a.label("L_join")
    st(5); B()
    kvpart(10, S_V, 92, VSTR, cfg.v7, cfg.v8, vb)
    W(9); st(6); B()
    kvpart(10, S_V, 92, VSTR, cfg.v8, 12, vb)
    wostage(0, start)
    W(10); st(7); B()
    if cfg.l_wo > 1: wostage(1, start)
    W(11); st(8); B()
    if cfg.ctouch > 1: codetouch()
    if cfg.fbar: B()
    if cfg.l_wo < 2: wostage(1, start)
    if cfg.wo2 > 1: wostage(2, start)
    if cfg.wo2 > 2: wostage(3, start)
    W(12); st(9); B()
    if cfg.wo2 < 3: wostage(2 if cfg.wo2 == 1 else 3, start)
    W(13); B()
    if cfg.wo2 == 1: wostage(3, start)
    nonce_load(a, 32, 16)
    W(14); st(10); B()
    a.v("v_lshlrev_b32 v14, 4, v1")
    a.v("v_lshlrev_b32 v11, 3, v1")
    tail_ssetup(a, 73, 1)
    nonce_check(a, 32, 16)
    apply_c(a, (88,))
    for f in tail_vsetup(a, 73, 1): f()
    a.s("s_branch L_tail")

def xlane_reduce(a, op, regs, tmps):
    for sw in ("v_permlane32_swap_b32", "v_permlane16_swap_b32"):
        for r, t in zip(regs, tmps): a.v(f"v_mov_b32 v{t}, v{r}")
        for r, t in zip(regs, tmps): a.v(f"{sw} v{r}, v{t}")
        for r, t in zip(regs, tmps): a.v(f"{op} v{r}, v{r}, v{t}")

class Fill:
    def __init__(self): self.q = []
    def add(self, *fs): self.q.extend(fs)
    def pop(self, n):
        for _ in range(n):
            if self.q: self.q.pop(0)()
    def drain(self): self.pop(len(self.q))

def compute(a, cfg):
    ACC = 16; WF = 112; XF = 144; KF = 168; AS = 216; VF = 112
    accQ = lambda t, mt: ACC + (t*3 + mt)*4
    Wf = lambda t: WF + 4*t
    Xf = lambda par, mt: XF + par*12 + mt*4
    Kf = lambda kt, kp: KF + (kt*4 + kp)*4
    accS = lambda kt, mt: AS + (kt*3 + mt)*4
    Vf = lambda t: VF + 6*t
    accO = lambda mt, t: ACC + (mt*8 + t)*4
    aW = lambda st_, t: 216 + st_*10 + t
    aX = lambda st_, ks: 216 + st_*10 + 8 + ks
    aK = lambda kp: 252 + kp
    aV = lambda th: 2 + th
    R = [13, 15]
    ofA = lambda kp, mt: 168 + (kp*3 + mt)*4
    def ofB(kp, mt):
        f = kp*3 + mt
        return 216 + f*4 if f < 10 else 160 + (f - 10)*4
    of = lambda buf, kp, mt: ofB(kp, mt) if buf else ofA(kp, mt)
    acc2 = lambda mt, t: 16 + (mt*9 + t)*4
    Wf2 = lambda i: 124 + 4*i

    if cfg.prio: a.s(f"s_setprio {cfg.prio}")
    a.s("s_and_b32 s43, s2, 0x1c")
    a.s(f"s_or_b32 s43, s43, s{S_W}")
    a.s("s_cmp_lg_u32 s43, 0")
    a.s("s_cbranch_scc1 L_np1")
    a.s("s_lshr_b32 s46, s2, 6")
    a.s("s_lshl_b32 s46, s46, 2")
    a.s("s_and_b32 s47, s2, 3")
    a.s("s_add_u32 s46, s46, s47")
    a.s("s_mul_i32 s46, s46, 448")
    a.s("s_and_b32 s47, s2, 32")
    a.s("s_lshl_b32 s47, s47, 8")
    a.s("s_add_u32 s46, s46, s47")
    a.s(f"s_add_u32 s46, s46, {36 << 20}")
    a.raw("    s_waitcnt lgkmcnt(0)")
    a.s("s_add_u32 s44, s32, s46")
    a.s("s_addc_u32 s45, s33, 0")
    for rep in range(cfg.nprobe):
        a.raw("    s_memtime s[48:49]")
        a.raw(f"    s_load_dword s46, s[44:45], {rep*16384}")
        a.raw("    s_waitcnt lgkmcnt(0)")
        a.raw("    s_memtime s[50:51]")
        a.raw("    s_waitcnt lgkmcnt(0)")
    a.s("s_sub_u32 s50, s50, s48")
    a.s(f"s_min_u32 s50, s50, {CAP}")
    a.s("s_sub_u32 s51, 0, s50")
    a.s("s_cmp_eq_u32 s47, 0")
    a.s("s_cselect_b32 s50, s50, s51")
    a.s(f"s_add_u32 s50, s50, {(1 << 24) + CAP}")
    a.label("L_np1")
    a.v("v_lshrrev_b32 v160, 4, v1")
    a.v("v_bfe_u32 v161, v1, 2, 2")
    a.v("v_and_b32 v162, 3, v1")
    a.v("v_and_b32 v163, 15, v1")
    a.v("v_and_b32 v165, 1, v160")
    a.s(f"s_mul_i32 s76, s{S_W}, {KUNIT}")
    a.s(f"s_mul_i32 s77, s{S_E}, {2*SL}")
    a.s("s_add_u32 s76, s76, s77")
    a.v(f"v_mul_u32_u24 v164, {KSTR}, v161")
    a.v("v_lshl_add_u32 v164, v162, 8, v164")
    a.v("v_lshl_add_u32 v164, v160, 3, v164")
    a.v("v_add_u32 v164, s76, v164")
    for kp in range(4):
        a.v(f"v_xor_b32 v167, {kp}, v162")
        a.v(f"v_lshl_add_u32 v{aK(kp)}, v167, 6, v164")
    a.v("v_lshl_add_u32 v164, v160, 3, v161")
    a.v("v_lshlrev_b32 v164, 8, v164")
    a.v("v_lshl_or_b32 v166, v165, 2, v161")
    a.v("v_lshl_add_u32 v164, v166, 5, v164")
    a.v("v_lshl_add_u32 v164, v162, 3, v164")
    a.v(f"v_add_u32 v{aW(0,0)}, {SL}, v164")
    for t in range(1, 8): a.v(f"v_xor_b32 v{aW(0,t)}, {32*t}, v{aW(0,0)}")
    a.v("v_lshrrev_b32 v164, 1, v163")
    a.v("v_xor_b32 v164, v164, v160")
    a.v("v_lshlrev_b32 v164, 4, v164")
    a.v("v_lshl_add_u32 v164, v163, 7, v164")
    a.s(f"s_mul_i32 s76, s{S_W}, 6144")
    a.s(f"s_add_u32 s76, s76, {16384 + SL}")
    a.v(f"v_add_u32 v{aX(0,0)}, s76, v164")
    a.v(f"v_xor_b32 v{aX(0,1)}, 64, v{aX(0,0)}")
    for i in range(10): a.v(f"v_add_u32 v{226+i}, {2*SL}, v{216+i}")
    a.s(f"s_mul_i32 s76, s{S_W}, {VUNIT}")
    a.s(f"s_cmp_eq_u32 s{S_E}, 1")
    a.s(f"s_cselect_b32 s77, 0, {VBASE_L}")
    a.s("s_add_u32 s76, s76, s77")
    a.v(f"v_mul_u32_u24 v164, {VSTR}, v160")
    a.v("v_lshl_add_u32 v164, v161, 8, v164")
    a.v("v_lshl_add_u32 v164, v162, 3, v164")
    a.v("v_add_u32 v164, s76, v164")
    for th in range(4):
        a.v(f"v_xor_b32 v167, {th}, v161")
        a.v(f"v_lshl_add_u32 v{aV(th)}, v167, 6, v164")
    a.v("v_lshl_add_u32 v164, v160, 2, v161")
    a.v("v_mul_u32_u24 v164, 320, v164")
    a.v("v_lshl_add_u32 v164, v162, 3, v164")
    a.s(f"s_cmp_eq_u32 s{S_E}, 1")
    a.s(f"s_mov_b32 s76, {3*SL}")
    a.s(f"s_cselect_b32 s76, {2*SL}, s76")
    a.s(f"s_mov_b32 s93, {SL}")
    a.s(f"s_cselect_b32 s93, s93, {(-3*SL) & 0xffffffff}")
    a.s(f"s_mov_b32 s94, {SL}")
    a.s(f"s_cselect_b32 s94, {(-3*SL) & 0xffffffff}, s94")
    a.s(f"s_mov_b32 s95, {SL}")
    a.v("v_add_u32 v164, s76, v164")
    a.s(f"s_and_b32 s77, s{S_NT}, 1")
    a.v("v_xor_b32 v167, s77, v165")
    a.v(f"v_lshl_add_u32 v{R[0]}, v167, 5, v164")
    a.s("s_add_u32 s77, s77, 1")
    a.v("v_xor_b32 v167, s77, v165")
    a.v(f"v_lshl_add_u32 v{R[1]}, v167, 5, v164")
    a.v("v_lshlrev_b32 v14, 4, v1")
    a.v("v_lshlrev_b32 v11, 3, v1")
    a.v("v_mov_b32 v10, 0")
    a.s(f"s_lshl_b32 s81, s{S_KQ}, 3")
    a.s(f"s_and_b32 s82, s{S_HL}, 4")
    a.s("s_add_u32 s81, s81, s82")
    unit_base(a, 80, S_W, 81)
    a.s(f"s_mov_b32 s83, {f2u(SC)}")
    a.s("s_and_b32 s76, s2, 3")
    a.s("s_lshr_b32 s77, s2, 5")
    a.s("s_lshl_b32 s77, s77, 2")
    a.s("s_or_b32 s76, s76, s77")
    a.s("s_lshl_b32 s76, s76, 2")
    a.s(f"s_add_u32 s76, s76, s{S_W}")
    a.s("s_lshr_b32 s77, s76, 6")
    a.s("s_lshl_b32 s77, s77, 14")
    a.s("s_and_b32 s76, s76, 63")
    a.s("s_lshl_b32 s76, s76, 7")
    a.s("s_add_u32 s76, s76, s77")
    a.s(f"s_add_u32 s84, s76, {WS_FLAG1}")
    bsel(a, 84)
    a.s(f"s_lshl_b32 s85, 1, s{S_NT}")
    a.s("s_xor_b32 s86, s85, 15")
    tail_ssetup(a, S_W, 0)
    a.s("s_lshl_b32 s97, 1, s90")
    build_srds(a, ('o',))
    srd(a, S_X, 32, 33, 0)
    if cfg.warmf:
        a.s("s_mov_b64 exec, 1")
        a.bload(6, 1, 10, S_WS, "s84", flags="sc1" if cfg.warmf == 1 else "")
        a.s("s_lshl_b32 s76, s90, 7")
        a.s("s_add_u32 s76, s76, s96")
        a.bload(7, 1, 10, S_WS, "s76", flags="sc1" if cfg.warmf == 1 else "")
        a.s("s_xor_b32 s76, s76, 8192")
        a.bload(8, 1, 10, S_WS, "s76", flags="sc1" if cfg.warmf == 1 else "")
        a.s("s_xor_b32 s76, s84, 8192")
        a.bload(9, 1, 10, S_WS, "s76", flags="sc1" if cfg.warmf == 1 else "")
        a.s("s_mov_b64 exec, -1")

    ver = {}
    def rdW(s, t, ks, h):
        def f():
            a.ds_read("ds_read_b64_tr_b16", Wf(t)+2*h, 2, aW((s % 3) >> 1, t), off=((s % 3) & 1)*SL + ks*8192 + h*1024); ver[("W", t, h)] = (s, ks)
        return f
    def rdX(s, mt, ks):
        def f():
            a.ds_read("ds_read_b128", Xf(ks, mt), 4, aX((s % 3) >> 1, ks), off=((s % 3) & 1)*SL + mt*2048); ver[("X", ks, mt)] = s
        return f
    def chk1(s, ks, t, mt):
        assert ver[("W", t, 0)] == (s, ks) and ver[("W", t, 1)] == (s, ks) and ver[("X", ks, mt)] == s, (s, ks, t, mt)
    def readK():
        for kp in range(4):
            for kt in range(3):
                for e in range(2): a.ds_read("ds_read_b64", Kf(kt, kp)+2*e, 2, aK(kp), off=kt*4*KSTR + 32*e)
    def rdK1(kt, kp, e):
        return lambda: a.ds_read("ds_read_b64", Kf(kt, kp)+2*e, 2, aK(kp), off=kt*4*KSTR + 32*e)
    def cvt(d, s0, s1):
        return lambda: a.v(f"v_cvt_pk_bf16_f32 v{d}, v{s0}, v{s1}")
    def cvtQ(kp):
        out = []
        for mt in range(3):
            r = accQ(2*kp, mt); s_ = accQ(2*kp+1, mt)
            out += [cvt(r, r, r+1), cvt(r+1, r+2, r+3), cvt(r+2, s_, s_+1), cvt(r+3, s_+2, s_+3)]
        return out
    F = Fill()
    a.s("s_cmp_lg_u32 s43, 0")
    a.s("s_cbranch_scc1 L_np2")
    a.v("v_mov_b32 v112, s50")
    a.s("s_mov_b64 exec, 1")
    a.raw(f"    buffer_atomic_add v112, v10, s[{S_DBG}:{S_DBG+3}], 0 offen offset:8 sc1")
    a.s("s_mov_b64 exec, -1")
    a.nop(2)
    a.label("L_np2")
    stamp(a, cfg, 1)
    if cfg.el == 1:
        a.s(f"s_cmp_eq_u32 s{S_E}, 0")
        a.s("s_cbranch_scc1 L_noK0")
        a.barrier()
        readK()
        a.waitcnt(lgkm=0)
        a.barrier()
        a.label("L_noK0")
    a.barrier()
    stamp(a, cfg, 2)
    for mt in range(3): rdX(0, mt, 0)()
    for t in range(8): rdW(0, t, 0, 0)(); rdW(0, t, 0, 1)()
    BP = cfg.barpos
    for s in range(9):
        last = s == 8
        for mt in range(3): F.add(rdX(s, mt, 1))
        for t in range(8):
            if last and cfg.att: F.add(rdK1(t >> 2, t & 3, 0), rdK1(t >> 2, t & 3, 1))
            for mt in range(3):
                chk1(s, 0, t, mt)
                a.mfma(accQ(t, mt), Wf(t), Xf(0, mt), None if s == 0 else accQ(t, mt))
                for b in range(cfg.x_burn): a.raw(f"    v_mad_u32_u24 v{236+(t*3+mt+b*5)%16}, v{Wf(t)+mt}, v{Xf(0,mt)+b}, v{236+(t*3+mt+b*5+7)%16}")
                F.pop(2 if len(F.q) > 2 else 1)
            if cfg.x_pace: a.nop(cfg.x_pace)
            F.add(rdW(s, t, 1, 0), rdW(s, t, 1, 1))
        for t in range(8):
            for mt in range(3):
                chk1(s, 1, t, mt)
                a.mfma(accQ(t, mt), Wf(t), Xf(1, mt), accQ(t, mt))
                for b in range(cfg.x_burn): a.raw(f"    v_mad_u32_u24 v{236+(t*3+mt+b*5)%16}, v{Wf(t)+mt}, v{Xf(1,mt)+b}, v{236+(t*3+mt+b*5+7)%16}")
                F.pop(2 if len(F.q) > 2 else 1)
            if last:
                if t in (3, 5, 7): F.add(*cvtQ((t - 3)//2))
            elif t == BP - 1:
                assert not F.q
                a.waitcnt(lgkm=0)
                a.barrier()
                F.add(rdX(s+1, 0, 0), rdW(s+1, 0, 0, 0), rdW(s+1, 0, 0, 1), rdX(s+1, 1, 0), rdX(s+1, 2, 0))
                for tt in range(1, BP): F.add(rdW(s+1, tt, 0, 0), rdW(s+1, tt, 0, 1))
            elif t >= BP:
                F.add(rdW(s+1, t, 0, 0), rdW(s+1, t, 0, 1))
    a.waitcnt(lgkm=0)
    a.barrier()
    stamp(a, cfg, 3)
    if not cfg.att:
        a.bload(8, 2, 10, S_DBG, "0", flags="sc1", tag="nonce")
        if cfg.el:
            a.s(f"s_cmp_eq_u32 s{S_E}, 1")
            a.s("s_cbranch_scc1 L_noK1")
        readK()
        if cfg.el: a.label("L_noK1")
        F.drain()
        for f in cvtQ(3): f()
        for kp in range(4):
            for kt in range(3):
                for mt in range(3):
                    a.mfma(accS(kt, mt), Kf(kt, kp), accQ(2*kp, mt), None if kp == 0 else accS(kt, mt))
        MX = [160, 161, 162]; TM = [163, 164, 165]; SM = [166, 167, 6]
        vals = lambda mt: [accS(kt, mt) + r for kt in range(3) for r in range(4)]
        for mt in range(3):
            v = vals(mt); a.v(f"v_max3_f32 v{MX[mt]}, v{v[0]}, v{v[1]}, v{v[2]}")
        for i in range(3, 11, 2):
            for mt in range(3):
                v = vals(mt); a.v(f"v_max3_f32 v{MX[mt]}, v{MX[mt]}, v{v[i]}, v{v[i+1]}")
        for mt in range(3):
            v = vals(mt); a.v(f"v_max_f32 v{MX[mt]}, v{MX[mt]}, v{v[11]}")
        xlane_reduce(a, "v_max_f32", MX, TM)
        for mt in range(3): a.v(f"v_mul_f32 v{MX[mt]}, s83, v{MX[mt]}")
        for i in range(12):
            for mt in range(3):
                v = vals(mt); a.v(f"v_fma_f32 v{v[i]}, v{v[i]}, s83, -v{MX[mt]}")
        for i in range(12):
            for mt in range(3):
                v = vals(mt); a.v(f"v_exp_f32 v{v[i]}, v{v[i]}")
        for mt in range(3):
            v = vals(mt); a.v(f"v_add_f32 v{SM[mt]}, v{v[0]}, v{v[1]}")
        for i in range(2, 12):
            for mt in range(3):
                v = vals(mt); a.v(f"v_add_f32 v{SM[mt]}, v{SM[mt]}, v{v[i]}")
        xlane_reduce(a, "v_add_f32", SM, TM)
        for mt in range(3): a.v(f"v_rcp_f32 v{SM[mt]}, v{SM[mt]}")
        a.barrier()
        for t in range(8):
            for kt in range(3):
                F.add(lambda t=t, kt=kt: a.ds_read("ds_read_b64_tr_b16", Vf(t) + 2*kt, 2, aV(t >> 1), off=kt*4*VSTR + (t & 1)*32))
        for i in range(12):
            for mt in range(3):
                v = vals(mt); a.v(f"v_mul_f32 v{v[i]}, v{v[i]}, v{SM[mt]}"); F.pop(1)
        for mt in range(3):
            r0, r1, r2 = accS(0, mt), accS(1, mt), accS(2, mt)
            for f in (cvt(r0, r0, r0+1), cvt(r0+1, r0+2, r0+3), cvt(r0+2, r1, r1+1), cvt(r0+3, r1+2, r1+3), cvt(r2, r2, r2+1), cvt(r2+1, r2+2, r2+3)): f()
        stamp(a, cfg, 4)
        nonce_check(a, 10)
        a.s(f"s_lshl_b32 s81, s{S_NT}, 15")
        a.s("s_add_u32 s81, s81, s80")
        def ostore(mt, kp):
            r = accO(mt, 2*kp); s_ = accO(mt, 2*kp+1); d = ofA(kp, mt); f = kp*3 + mt
            return [cvt(d, r, r+1), cvt(d+1, r+2, r+3), cvt(d+2, s_, s_+1), cvt(d+3, s_+2, s_+3),
                    lambda: a.s(f"s_add_u32 s82, s81, s{40 + f//4}"),
                    lambda: a.bstore(d, 4, 14, S_WS, "s82", off=(f % 4)*1024, flags="sc1")]
        for mt in range(3):
            for t in range(8):
                a.mfma(accO(mt, t), Vf(t), accS(0, mt), None); F.pop(2)
            for t in range(8):
                a.mfma(accO(mt, t), Vf(t)+4, accS(2, mt), accO(mt, t), k=16); F.pop(2)
            for kp in range(4): F.add(*ostore(mt, kp))
    else:
        assert cfg.el == 2 and cfg.l_kpos >= 0 and cfg.c_kpos >= 0
        for kp in range(4): rdK1(2, kp, 0)(); rdK1(2, kp, 1)()
        nonce_load(a, 252, 10)
        F.add(*cvtQ(3))
        order = [(kp, kt, mt) for kp in range(3) for kt in range(2) for mt in range(3)]
        order += [(kp, 2, mt) for kp in range(3) for mt in range(3)]
        order += [(3, kt, mt) for mt in range(3) for kt in range(3)]
        for n, (kp, kt, mt) in enumerate(order):
            if kp == 2 and n == 12: F.pop(max(0, len(F.q) - 12))
            if kp == 3: F.drain()
            a.mfma(accS(kt, mt), Kf(kt, kp), accQ(2*kp, mt), None if kp == 0 else accS(kt, mt)); F.pop(2)
        MX = [160, 162, 164]; TM = [161, 163, 165]; SM = [166, 6, 112]
        vals = lambda mt: [accS(kt, mt) + r for kt in range(3) for r in range(4)]
        for mt in range(3):
            v = vals(mt); a.v(f"v_max3_f32 v{MX[mt]}, v{v[0]}, v{v[1]}, v{v[2]}")
        for i in range(3, 11, 2):
            for mt in range(3):
                v = vals(mt); a.v(f"v_max3_f32 v{MX[mt]}, v{MX[mt]}, v{v[i]}, v{v[i+1]}")
        for mt in range(3):
            v = vals(mt); a.v(f"v_max_f32 v{MX[mt]}, v{MX[mt]}, v{v[11]}")
        xlane_reduce(a, "v_max_f32", MX, TM)
        for mt in range(3): a.v(f"v_mul_f32 v{MX[mt]}, s83, v{MX[mt]}")
        for i in range(0, 12, 2):
            for mt in range(3):
                v = vals(mt)
                a.v(f"v_pk_fma_f32 v[{v[i]}:{v[i]+1}], v[{v[i]}:{v[i]+1}], s[82:83], v[{MX[mt]}:{MX[mt]+1}] op_sel:[0,1,0] op_sel_hi:[1,1,0] neg_lo:[0,0,1] neg_hi:[0,0,1]")
        for i in range(12):
            for mt in range(3):
                v = vals(mt); a.v(f"v_exp_f32 v{v[i]}, v{v[i]}")
        for mt in range(3):
            v = vals(mt); a.v(f"v_pk_add_f32 v[{SM[mt]}:{SM[mt]+1}], v[{v[0]}:{v[1]}], v[{v[2]}:{v[3]}]")
        for i in range(4, 12, 2):
            for mt in range(3):
                v = vals(mt); a.v(f"v_pk_add_f32 v[{SM[mt]}:{SM[mt]+1}], v[{SM[mt]}:{SM[mt]+1}], v[{v[i]}:{v[i]+1}]")
        for mt in range(3): a.v(f"v_add_f32 v{MX[mt]}, v{SM[mt]}, v{SM[mt]+1}")
        xlane_reduce(a, "v_add_f32", MX, TM)
        for mt in range(3): a.v(f"v_rcp_f32 v{MX[mt]}, v{MX[mt]}")
        for i in range(0, 12, 2):
            for mt in range(3):
                v = vals(mt); a.v(f"v_pk_mul_f32 v[{v[i]}:{v[i]+1}], v[{v[i]}:{v[i]+1}], v[{MX[mt]}:{MX[mt]+1}] op_sel_hi:[1,0]")
        for mt in range(3):
            r0, r1, r2 = accS(0, mt), accS(1, mt), accS(2, mt)
            for f in (cvt(r0, r0, r0+1), cvt(r0+1, r0+2, r0+3), cvt(r0+2, r1, r1+1), cvt(r0+3, r1+2, r1+3), cvt(r2, r2, r2+1), cvt(r2+1, r2+2, r2+3)): f()
        stamp(a, cfg, 4)
        a.barrier()
        for t in range(8):
            for kt in range(3):
                a.ds_read("ds_read_b64_tr_b16", Vf(t) + 2*kt, 2, aV(t >> 1), off=kt*4*VSTR + (t & 1)*32)
        nonce_check(a, 252, 10)
        apply_c(a, (80, 84, 88, 92, 96))
        a.s(f"s_lshl_b32 s81, s{S_NT}, 15")
        a.s("s_add_u32 s81, s81, s80")
        def ostore(mt, kp):
            r = accO(mt, 2*kp); s_ = accO(mt, 2*kp+1); d = ofA(kp, mt); f = kp*3 + mt
            return [cvt(d, r, r+1), cvt(d+1, r+2, r+3), cvt(d+2, s_, s_+1), cvt(d+3, s_+2, s_+3),
                    lambda: a.s(f"s_add_u32 s82, s81, s{40 + f//4}"),
                    lambda: a.bstore(d, 4, 14, S_WS, "s82", off=(f % 4)*1024, flags="sc1")]
        for kp in range(4):
            for t in (2*kp, 2*kp+1):
                for mt in range(3):
                    a.mfma(accO(mt, t), Vf(t), accS(0, mt), None); F.pop(2)
            for t in (2*kp, 2*kp+1):
                for mt in range(3):
                    a.mfma(accO(mt, t), Vf(t)+4, accS(2, mt), accO(mt, t), k=16); F.pop(2)
            F.add(lambda: None, lambda: None, lambda: None, lambda: None)
            for mt in range(3): F.add(*ostore(mt, kp))
    F.drain()
    stamp(a, cfg, 5)
    def flagst(off):
        a.s("s_mov_b32 exec_lo, s85"); a.s("s_mov_b32 exec_hi, 0")
        a.bstore(8, 2, 11, S_WS, "s84", off=off, flags="sc1")
        a.s("s_mov_b64 exec, -1")
    def poll_issue(mask, off):
        a.s(f"s_mov_b32 exec_lo, {mask}"); a.s("s_mov_b32 exec_hi, 0")
        a.bload(6, 2, 11, S_WS, "s84", off=off, flags="sc1")
        a.s("s_mov_b64 exec, -1")
    def poll_check(mask, off):
        L = newlabel("pc"); Lb = newlabel("pcb")
        a.s(f"s_mov_b32 exec_lo, {mask}"); a.s("s_mov_b32 exec_hi, 0")
        a.v("v_cmp_ne_u64 vcc, v[6:7], v[8:9]")
        a.s("s_mov_b64 exec, -1")
        a.s(f"s_cbranch_vccnz {L}")
        a.label(Lb)
        o = Asm(); o.label(L); poll_flags(o, 6, 8, 11, 84, mask, 76, off); o.s(f"s_branch {Lb}")
        a.ool += o.L
    if cfg.split:
        a.waitcnt(vm=6)
        flagst(0)
        head_order(a, 1, 75)
        a.s("s_lshl_b32 s75, 1, s75")
    a.waitcnt(lgkm=0)
    a.barrier()
    stamp(a, cfg, 10)
    items = []
    for p in range(4):
        if p == 3 and cfg.prog: items += [(p, kp, t) for t in range(9) for kp in range(4)]
        else: items += [(p, kp, t) for kp in range(4) for t in range(9)]
    NB = 9
    def rdW2(i, h):
        p, kp, t = items[i]
        def f():
            a.ds_read("ds_read_b64_tr_b16", Wf2(i % NB)+2*h, 2, R[t & 1], off=kp*10240 + h*5120 + 32*(t - (t & 1))); ver[("W2", i % NB, h)] = i
        return f
    for kp in range(4):
        for mt in range(3): ver[("O", 0, kp, mt)] = 0
    def headbase(p):
        return [lambda: head_order(a, p, 81), lambda: a.s("s_lshl_b32 s81, s81, 15"), lambda: a.s("s_add_u32 s81, s81, s80")]
    def ldO(p, f, srdb=S_WS):
        kp, mt = divmod(f, 3)
        return [lambda: a.s(f"s_add_u32 s82, s81, s{40 + f//4}"),
                lambda: (a.bload(of(p & 1, kp, mt), 4, 14, srdb, "s82", off=(f % 4)*1024, flags="sc1"), ver.__setitem__(("O", p & 1, kp, mt), p))]
    def publish(mt, pair):
        if pair == 4 and mt == 1: return []
        slot = pair*3 + mt if pair < 4 else 12 + mt//2
        r = acc2(mt, 2*pair)
        out = [cvt(r, r, r+1), cvt(r+1, r+2, r+3)]
        n = 4
        if slot < 13:
            s_ = acc2(mt, 2*pair+1) if pair < 4 else acc2(1, 8)
            out += [cvt(r+2, s_, s_+1), cvt(r+3, s_+2, s_+3)]
        def st_():
            L = newlabel("own"); L2 = newlabel("ownb")
            a.s(f"s_cmp_eq_u32 s90, {slot & 7}")
            a.s(f"s_cbranch_scc1 {L}")
            if slot < 13: a.bstore(r, 4, 14, S_WS, "s82", flags="sc1")
            else: a.bstore(r, 2, 11, S_WS, "s82", flags="sc1")
            a.label(L2)
            a.ool += [f"{L}:", f"    ds_write_b128 v2, v[{r}:{r+3}] offset:{(slot >> 3)*4096}", f"    s_branch {L2}"]
        out += [lambda: a.s(f"s_add_u32 s82, s92, {slot*16384}"), st_]
        return out
    for i in range(NB): rdW2(i, 0)(); rdW2(i, 1)()
    seen = set()
    for i, (p, kp, t) in enumerate(items):
        if i == cfg.fb:
            F.drain()
            a.waitcnt(vm=0)
            stamp(a, cfg, 6)
            flagst(32)
            if cfg.fbar: a.barrier()
        if cfg.split and i == cfg.pa: poll_issue("s75", 0)
        if cfg.split and i == cfg.pac:
            poll_check("s75", 0)
            stamp(a, cfg, 7)
            F.add(*headbase(1))
            for fr in range(6): F.add(*ldO(1, fr))
        if i == 36:
            F.drain()
            if cfg.split: poll_issue("s75", 32)
            if cfg.p2st: stamp(a, cfg, 1)
            a.barrier()
            if cfg.p2st: stamp(a, cfg, 2)
            for r in R: a.v(f"v_add_u32 v{r}, s93, v{r}")
            for j in range(36, 36 + NB): rdW2(j, 0)(); rdW2(j, 1)()
            if not cfg.split:
                for f in headbase(1): f()
                poll_flags(a, 6, 8, 11, 84, "s86", 76, 32)
                stamp(a, cfg, 7)
                for fr in range(12):
                    for f in ldO(1, fr): f()
                F.add(*headbase(2))
        if cfg.split and i == 40:
            poll_check("s75", 32)
            for fr in range(6, 12): F.add(*ldO(1, fr))
        if cfg.split and i == cfg.pb: F.drain(); poll_issue("s86", 32)
        if cfg.split and i == cfg.pb + 6:
            poll_check("s86", 32)
            F.add(*headbase(2))
        if cfg.p2st and i in (37, 72, 108): stamp(a, cfg, {37: 3, 72: 4, 108: 5}[i])
        if not cfg.split and p == 1 and t in (0, 3, 6): F.add(*ldO(2, kp*3 + t//3))
        if cfg.split and cfg.pb + 6 <= i < cfg.pb + 18: F.add(*ldO(2, i - cfg.pb - 6))
        if i == 72: F.add(*headbase(3)); F.add(*tail_vsetup(a))
        if p == 2 and kp < 2 and t < 6: F.add(*ldO(3, kp*6 + t))
        for mt in range(3):
            assert ver[("W2", i % NB, 0)] == i and ver[("W2", i % NB, 1)] == i and ver[("O", p & 1, kp, mt)] == p, (i, p, kp, t)
            a.mfma(acc2(mt, t), Wf2(i % NB), of(p & 1, kp, mt), acc2(mt, t) if (mt, t) in seen else None)
            seen.add((mt, t))
            F.pop(3 if len(F.q) > 8 else 2 if len(F.q) > 2 else 1)
        j = i + NB
        if j < len(items) and not (p == 0 and j >= 36):
            if j % 36 == 0:
                F.drain()
                a.barrier()
                for r in R: F.add(lambda r=r, j=j: a.v(f"v_add_u32 v{r}, s{92 + j//36}, v{r}"))
                F.add(rdW2(j, 0), rdW2(j, 1))
            elif j % 36 == 1: F.add(rdW2(j, 0), rdW2(j, 1))
            else: F.q = [rdW2(j, 0), rdW2(j, 1)] + F.q
        if p == 3 and cfg.prog and kp == 0 and t >= 2 and t % 2 == 0:
            for mt in range(3): F.add(*publish(mt, t//2 - 1))
    stamp(a, cfg, 8)
    F.drain()
    for pair in range(4 if cfg.prog else 0, 5):
        for mt in range(3):
            for f in publish(mt, pair): f()
    stamp(a, cfg, 9)
    a.waitcnt(vm=0, lgkm=0)
    stamp(a, cfg, 11)
    a.s("s_xor_b32 s97, s97, 0xff")
    if cfg.f2:
        a.s("s_mov_b32 exec_lo, s97"); a.s("s_mov_b32 exec_hi, 0")
        a.s("s_lshl_b32 s76, s90, 3")
        a.s("s_add_u32 s76, s76, s96")
        a.bstore(8, 2, 3, S_WS, "s76", flags="sc1")
        a.s("s_lshl_b32 s76, s90, 7")
        a.s("s_add_u32 s96, s96, s76")
    else:
        a.s("s_xor_b32 exec_lo, s97, 0xff"); a.s("s_mov_b32 exec_hi, 0")
        a.bstore(8, 2, 11, S_WS, "s96", flags="sc1")
    poll_flags(a, 6, 8, 11, 96, "s97", 76)

def tail(a, cfg, endlabel):
    a.barrier()
    a.s("s_cmp_ge_u32 s89, 14")
    a.s(f"s_cbranch_scc1 {endlabel}")
    stamp(a, cfg, 12)
    a.ds_read("ds_read_b128", 16, 4, 2)
    a.s("s_cmp_eq_u32 s89, 13")
    a.s("s_cbranch_scc1 L_half")
    def srcoff(k):
        a.s(f"s_add_u32 s76, s90, {k}")
        a.s("s_and_b32 s76, s76, 7")
        a.s("s_lshl_b32 s76, s76, 10")
        a.s("s_add_u32 s76, s76, s88")
    for k in range(1, 8):
        srcoff(k); a.bload(16 + 4*k, 4, 14, S_WS, "s76", flags="sc1")
    a.label("L_halfb")
    ool = Asm()
    ool.label("L_half")
    for k in range(1, 8):
        ool.s(f"s_add_u32 s76, s90, {k}"); ool.s("s_and_b32 s76, s76, 7"); ool.s("s_lshl_b32 s76, s76, 10"); ool.s("s_add_u32 s76, s76, s88")
        ool.bload(16 + 4*k, 2, 11, S_WS, "s76", flags="sc1")
    ool.s("s_branch L_halfb")
    a.ool += ool.L
    for k in range(8):
        src = 16 + 4*k
        for i in range(4):
            if k == 0:
                a.v(f"v_lshlrev_b32 v{48+2*i}, 16, v{src+i}")
                a.v(f"v_and_b32 v{49+2*i}, 0xffff0000, v{src+i}")
            else:
                a.v(f"v_lshlrev_b32 v{60+2*(i&1)}, 16, v{src+i}")
                a.v(f"v_and_b32 v{61+2*(i&1)}, 0xffff0000, v{src+i}")
                a.v(f"v_pk_add_f32 v[{48+2*i}:{49+2*i}], v[{48+2*i}:{49+2*i}], v[{60+2*(i&1)}:{61+2*(i&1)}]")
        if k == 1: stamp(a, cfg, 13)
    for i in range(4): a.v(f"v_cvt_pk_bf16_f32 v{64+i}, v{48+2*i}, v{49+2*i}")
    a.v("v_permlane16_swap_b32 v64, v66")
    a.v("v_permlane16_swap_b32 v65, v67")
    stamp(a, cfg, 14)
    a.s("s_mov_b64 exec, s[78:79]")
    a.bstore(64, 4, 4, S_OUT, "s87", flags=cfg.st_out)

def kernel(cfg):
    a = Asm()
    a.lcap = cfg.lcap
    ROT[0] = cfg.rot
    a.ool = []
    stamp(a, cfg, 0)
    prologue(a, cfg, "L_end")
    a.s(f"s_cmp_lt_u32 s{S_W}, 4")
    a.s("s_cbranch_scc1 L_compute")
    loader(a, cfg)
    a.label("L_compute")
    a.reset_state()
    compute(a, cfg)
    a.label("L_tail")
    a.reset_state()
    a.nop(2)
    tail(a, cfg, "L_end")
    if cfg.x_map:
        a.s(f"s_add_u32 s76, s2, s{S_W}")
        a.s("s_cmp_lg_u32 s76, 0")
        a.s("s_cbranch_scc1 L_end")
        a.raw("    s_waitcnt vmcnt(0)")
        for i in range(40): a.raw("    s_sleep 64")
        a.s("s_mov_b64 exec, 1")
        a.v("v_mov_b32 v20, 0")
        a.s("s_mov_b32 s40, 0"); a.s(f"s_mov_b32 s41, {28672}"); a.s("s_mov_b32 s42, 0")
        a.label("L_map")
        for rep in range(2):
            a.raw("    v_mov_b32 v21, 0")
            a.raw("    s_memtime s[44:45]"); a.raw("    s_waitcnt lgkmcnt(0)")
            a.raw(f"    buffer_atomic_add v21, v20, s[{S_WS}:{S_WS+3}], s41 offen sc0 sc1")
            a.raw("    s_waitcnt vmcnt(0)")
            a.raw("    s_memtime s[46:47]"); a.raw("    s_waitcnt lgkmcnt(0)")
        a.s("s_sub_u32 s46, s46, s44")
        a.s("s_cmp_gt_u32 s46, 680")
        a.s("s_cselect_b32 s46, 1, 0")
        a.s("s_lshl_b32 s46, s46, s40")
        a.s("s_or_b32 s42, s42, s46")
        a.s(f"s_add_u32 s41, s41, {2 << 20}")
        a.s("s_add_u32 s40, s40, 1")
        a.s("s_cmp_lt_u32 s40, 24")
        a.s("s_cbranch_scc1 L_map")
        a.v("v_mov_b32 v21, s42")
        a.raw(f"    buffer_store_dword v21, v20, s[{S_DBG}:{S_DBG+3}], 0 offen offset:16")
        a.v(f"v_mov_b32 v22, s{S_WS}")
        a.raw(f"    buffer_store_dword v22, v20, s[{S_DBG}:{S_DBG+3}], 0 offen offset:20")
        a.raw("    s_getreg_b32 s42, hwreg(HW_REG_XCC_ID)")
        a.v("v_mov_b32 v23, s42")
        a.raw(f"    buffer_store_dword v23, v20, s[{S_DBG}:{S_DBG+3}], 0 offen offset:24")
    if cfg.stamps: a.waitcnt(vm=0)
    stamp(a, cfg, 15)
    stamp_out(a, cfg)
    a.label("L_end")
    a.s("s_endpgm")
    for l in a.ool: a.raw(l)
    return a

HEADER = open("cdna_kernels/" + NAME + ".s.ref").read().split("; Override launch")[0]

def build(cfg):
    n = NAME + "_kernel"
    a = kernel(cfg)
    return HEADER + f"""; @launch grid=(256,1,1) block=(512,1,1) lds=163840
.amdgcn_target "amdgcn-amd-amdhsa--gfx950"
.text
.globl {n}
.p2align 8
.type {n},@function
{n}:
{a.text()}
L_code_end:
.section .rodata,"a"
.p2align 6
.amdhsa_kernel {n}
  .amdhsa_next_free_vgpr 256
  .amdhsa_next_free_sgpr 102
  .amdhsa_accum_offset 256
  .amdhsa_group_segment_fixed_size 0
  .amdhsa_kernarg_size 104
  .amdhsa_user_sgpr_count 2
  .amdhsa_user_sgpr_kernarg_segment_ptr 1
  .amdhsa_system_sgpr_workgroup_id_x 1
.end_amdhsa_kernel
"""

if __name__ == "__main__":
    cfg = Cfg()
    for kv in sys.argv[2:]:
        k, v = kv.split("=")
        cur = getattr(cfg, k)
        setattr(cfg, k, (v == "1") if isinstance(cur, bool) else int(v) if isinstance(cur, int) else v.replace("_", " "))
    open(sys.argv[1], "w").write(build(cfg))
```

```python
import sys, struct
from asm import *

NAME = "concat_heads__gqa_block_cached__mha_block_cached__near_ridge"
SL = 40960
KSTR, VSTR = 4112, 4128
KUNIT, VUNIT = 1024, 1024
KBASE = 0
VBASE_L = 12*KSTR
WS_O = 0
WS_FLAG1 = 64 << 20
WS_FLAG2 = 65 << 20
WS_PROBE = 68 << 20
WS_PART = 32 << 20
WS_STAMP = 72 << 20
WS_BYTES = 80 << 20
SC = 0.08838834764831845 * 1.4426950408889634
SPIN_MAX = 1 << 17
def f2u(x): return struct.unpack("<I", struct.pack("<f", x))[0]

S_X, S_K, S_V, S_WQ, S_WO, S_OUT, S_WS, S_DBG = 36, 40, 44, 48, 52, 56, 60, 64
S_BR, S_KQ, S_HL, S_BG, S_W, S_NT, S_E = 68, 69, 70, 71, 72, 98, 99

class Cfg:
    stamps = False; x_clk = False; lst = 0
    ld_x = ""; ld_wq = ""; ld_kv = "nt"; ld_wo = ""; st_out = ""
    skew = 3; prio = 0; lcap = 8; barpos = 3
    el = 2; pollpos = 4; ctouch = 2; e_wo = 1; l_wo = 1; prog = 1; touch = 1; tpos = 5; wo2 = 1; flagpos = 1; e_vpos = 4; l_kpos = 2; f2 = 1; c_kpos = 5; c_tpos = 3; swap = 1; own = 1; warmf = 1; p2st = 0; fbar = 1; wo0late = 0; x_enc = -1; x_amp = 4; dbgwg = 0; att = 1; r1first = 1; epoll = 0; cfix = -1; nprobe = 1; split = 0; fb = 9; x_pace = 0; cls = '23,34,45,56'; v7 = 4; v8 = 12; x_burn = 0; x_map = 0; pa = 14; pac = 21; rot = 0; pb = 48

NST = 16
def streg(i): return 4 if i == 0 else 8 + 2*(i-1) if i <= 13 else {14: 34, 15: 100}[i]
def stamp(a, cfg, i):
    if cfg.stamps:
        r = streg(i)
        a.raw(f"    {'s_memtime' if cfg.x_clk else 's_memrealtime'} s[{r}:{r+1}]"); a.pos += 1
def stamp_out(a, cfg):
    if not cfg.stamps: return
    if cfg.x_enc >= 0:
        a.raw("    s_waitcnt lgkmcnt(0)")
        a.s("s_lshl_b32 s3, s2, 3")
        a.s(f"s_add_u32 s3, s3, s{S_W}")
        a.s(f"s_cmp_lg_u32 s3, {cfg.dbgwg*8}")
        a.s("s_cbranch_scc1 L_end")
        a.s(f"s_sub_u32 s76, s{streg(cfg.x_enc)}, s4")
        a.s(f"s_mul_i32 s76, s76, {cfg.x_amp}")
        a.s("s_add_u32 s76, s76, 5000")
        a.label("L_hold")
        a.raw("    s_memrealtime s[78:79]")
        a.raw("    s_waitcnt lgkmcnt(0)")
        a.s("s_sub_u32 s77, s78, s4")
        a.s("s_cmp_lt_u32 s77, s76")
        a.s("s_cbranch_scc1 L_hold")
        return
    a.raw("    s_waitcnt lgkmcnt(0)")
    a.s("s_mov_b64 exec, 1")
    a.s("s_lshl_b32 s3, s2, 3")
    a.s(f"s_add_u32 s3, s3, s{S_W}")
    a.s("s_lshl_b32 s3, s3, 6")
    a.s(f"s_add_u32 s3, s3, {WS_STAMP}")
    a.v("v_mov_b32 v1, 0")
    for i in range(NST):
        a.v(f"v_mov_b32 v2, s{streg(i)}")
        a.bstore(2, 1, 1, S_WS, "s3", off=4*i)
        a.nop(2)

def srd(a, base, lo, hi, size):
    a.s(f"s_mov_b32 s{base}, s{lo}")
    a.s(f"s_mov_b32 s{base+1}, s{hi}")
    a.s(f"s_mov_b32 s{base+2}, {size}")
    a.s(f"s_mov_b32 s{base+3}, 0x20000")

def prologue(a, cfg, endlabel):
    a.s("s_cmp_ge_u32 s2, 256")
    a.s(f"s_cbranch_scc1 {endlabel}")
    a.raw("    s_load_dwordx16 s[8:23], s[0:1], 0")
    a.raw("    s_load_dwordx8 s[24:31], s[0:1], 64")
    a.raw("    s_load_dwordx2 s[32:33], s[0:1], 96")
    a.v("v_and_b32 v1, 63, v0")
    a.v("v_lshrrev_b32 v15, 6, v0")
    a.s(f"s_and_b32 s{S_KQ}, s2, 3")
    a.s(f"s_bfe_u32 s{S_BR}, s2, 0x10002")
    if cfg.swap: a.s(f"s_xor_b32 s{S_BR}, s{S_BR}, 1")
    a.s(f"s_bfe_u32 s{S_HL}, s2, 0x30003")
    a.s(f"s_lshr_b32 s{S_BG}, s2, 6")
    a.s(f"s_and_b32 s{S_NT}, s{S_HL}, 3")
    a.v(f"v_readfirstlane_b32 s{S_W}, v15")
    if cfg.el:
        a.s(f"s_lshr_b32 s{S_E}, s{S_HL}, 2")
        a.s(f"s_xor_b32 s{S_E}, s{S_E}, s{S_BG}")
        a.s(f"s_and_b32 s{S_E}, s{S_E}, 1")
        a.s(f"s_and_b32 s3, s{S_BG}, 2")
        a.s(f"s_or_b32 s3, s3, s{S_E}")
        if cfg.el == 2: a.s(f"s_mov_b32 s{S_E}, 0")
    else:
        a.s(f"s_mov_b32 s{S_E}, 0")

def build_srds(a, keys):
    a.raw("    s_waitcnt lgkmcnt(0)")
    a.s(f"s_cmp_eq_u32 s{S_BR}, 0")
    for (dst, pa, pb, key) in ((S_WQ, 14, 24, 'wq'), (S_X, 8, 18, 'x'), (S_K, 10, 20, 'k'), (S_V, 12, 22, 'v'), (S_WO, 16, 26, 'wo')):
        if key not in keys: continue
        a.s(f"s_cselect_b64 s[{dst}:{dst+1}], s[{pa}:{pa+1}], s[{pb}:{pb+1}]")
        if key in ('k', 'v'):
            a.s(f"s_mov_b32 s{dst+2}, 6291456")
            a.s(f"s_cselect_b32 s{dst+2}, 3145728, s{dst+2}")
        else:
            a.s(f"s_mov_b32 s{dst+2}, {884736 if key == 'x' else 4718592}")
        a.s(f"s_mov_b32 s{dst+3}, 0x20000")
    if 'o' in keys:
        srd(a, S_OUT, 28, 29, 1769472)
        srd(a, S_DBG, 30, 31, 256)
        srd(a, S_WS, 32, 33, WS_BYTES)

ROT = [0]
def head_order(a, p, sd):
    if p == 0: a.s(f"s_mov_b32 s{sd}, s{S_NT}")
    elif ROT[0]:
        a.s(f"s_add_u32 s{sd}, s{S_NT}, {p}"); a.s(f"s_and_b32 s{sd}, s{sd}, 3")
    else:
        a.s(f"s_cmp_le_u32 s{S_NT}, {p-1}"); a.s(f"s_cselect_b32 s{sd}, {p}, {p-1}")

_lbl = [0]
def newlabel(p):
    _lbl[0] += 1
    return f"L{p}_{_lbl[0]}"

def poll_flags(a, vdata, vnonce, voff, soff, mask, stmp, off=0):
    L = newlabel("poll"); X = newlabel("pollx")
    a.s(f"s_mov_b32 exec_lo, {mask}")
    a.s("s_mov_b32 exec_hi, 0")
    a.s(f"s_mov_b32 s{stmp}, 0")
    a.label(L)
    a.bload(vdata, 2, voff, S_WS, f"s{soff}", off=off, flags="sc1")
    a.s(f"s_add_u32 s{stmp}, s{stmp}, 1")
    a.s(f"s_cmp_gt_u32 s{stmp}, {SPIN_MAX}")
    a.waitcnt(vm=0)
    a.s(f"s_cbranch_scc1 {X}")
    a.v(f"v_cmp_ne_u64 vcc, v[{vdata}:{vdata+1}], v[{vnonce}:{vnonce+1}]")
    a.s(f"s_cbranch_vccnz {L}")
    a.label(X)
    a.s("s_mov_b64 exec, -1")

NVOTE = 32
CAP = 4095
def nonce_load(a, vn, vzero):
    a.bload(vn, 4, vzero, S_DBG, "0", flags="sc1", tag="nonce")
def nonce_check(a, vn, vzero):
    Lok = newlabel("nok"); Lsp = newlabel("nsp")
    a.s("s_mov_b32 s77, 0")
    a.v(f"v_readfirstlane_b32 s76, v{vn}")
    a.v(f"v_readfirstlane_b32 s75, v{vn+2}")
    a.v(f"v_readfirstlane_b32 s3, v{vn+3}")
    a.label(Lsp)
    a.s("s_cmp_lg_u32 s76, 0")
    a.s("s_cselect_b32 s76, s75, 0")
    a.s(f"s_cmp_ge_u32 s3, {8 << 16}")
    a.s("s_cselect_b32 s76, s76, 0")
    a.s(f"s_cmp_ge_u32 s76, {NVOTE << 24}")
    a.s(f"s_cbranch_scc1 {Lok}")
    a.s("s_add_u32 s77, s77, 1")
    a.s(f"s_cmp_gt_u32 s77, {SPIN_MAX}")
    a.s(f"s_cbranch_scc1 {Lok}")
    a.raw(f"    buffer_load_dwordx4 v[{vn}:{vn+3}], v{vzero}, s[{S_DBG}:{S_DBG+3}], 0 offen sc1")
    a.raw("    s_waitcnt vmcnt(0)")
    a.raw(f"    v_readfirstlane_b32 s76, v{vn}")
    a.raw(f"    v_readfirstlane_b32 s75, v{vn+2}")
    a.raw(f"    v_readfirstlane_b32 s3, v{vn+3}")
    a.raw("    s_nop 0")
    a.s(f"s_branch {Lsp}")
    a.label(Lok)
    a.v(f"v_mov_b32 v8, v{vn}")
    a.v(f"v_mov_b32 v9, v{vn+1}")
    a.s(f"s_cmp_gt_u32 s76, {(NVOTE << 24) + NVOTE*CAP}")
    a.s("s_cselect_b32 s76, 0xff, 0")
    a.s("s_xor_b32 s75, s3, s76")
    a.s("s_and_b32 s76, s2, 4")
    a.s("s_lshr_b32 s75, s75, s76")
    a.s(f"s_lshr_b32 s76, s75, s{S_KQ}")
    a.s("s_and_b32 s76, s76, 1")
    a.s("s_lshl_b32 s76, s76, 13")

def bsel(a, sd):
    a.s(f"s_lshr_b32 s76, s{sd}, 8")
    a.s("s_and_b32 s76, s76, 8192")
    a.s(f"s_or_b32 s{sd}, s{sd}, s76")

def apply_c(a, regs):
    for r in regs: a.s(f"s_xor_b32 s{r}, s{r}, s76")

def unit_base(a, sd, sb_w, shead):
    a.s(f"s_lshl_b32 s76, s{S_BR}, 2")
    a.s(f"s_add_u32 s76, s76, s{S_BG}")
    a.s("s_lshl_b32 s76, s76, 2")
    a.s(f"s_add_u32 s76, s76, s{sb_w}")
    a.s("s_lshl_b32 s76, s76, 5")
    a.s(f"s_add_u32 s76, s76, s{shead}")
    a.s(f"s_lshl_b32 s{sd}, s76, 15")
    bsel(a, sd)
    a.s(f"s_and_b32 s76, s{sb_w}, 1")
    a.s("s_lshl_b32 s40, s76, 12")
    a.s(f"s_and_b32 s76, s{sb_w}, 2")
    a.s("s_lshl_b32 s76, s76, 13")
    a.s("s_or_b32 s40, s40, s76")
    a.s("s_xor_b32 s41, s40, 4096")
    a.s("s_xor_b32 s42, s40, 16384")

def tail_ssetup(a, sw, half):
    a.s(f"s_lshr_b32 s90, s{S_HL}, 2")
    a.s(f"s_lshl_b32 s76, s{S_KQ}, 1")
    a.s("s_add_u32 s90, s90, s76")
    a.s(f"s_add_u32 s89, s90, {8*half}")
    a.s(f"s_lshl_b32 s91, s{S_BR}, 2")
    a.s(f"s_add_u32 s91, s91, s{S_BG}")
    a.s("s_lshl_b32 s91, s91, 2")
    a.s(f"s_add_u32 s91, s91, s{S_NT}")
    a.s("s_lshl_b32 s91, s91, 2")
    a.s(f"s_add_u32 s91, s91, s{sw}")
    a.s("s_lshr_b32 s76, s91, 3")
    a.s("s_lshl_b32 s76, s76, 14")
    a.s("s_and_b32 s77, s91, 7")
    a.s("s_lshl_b32 s77, s77, 10")
    a.s("s_add_u32 s76, s76, s77")
    a.s(f"s_add_u32 s96, s76, {WS_FLAG2}")
    a.s("s_lshl_b32 s92, s91, 18")
    a.s(f"s_add_u32 s92, s92, {WS_PART}")
    bsel(a, 92)
    a.s("s_lshl_b32 s76, s89, 14")
    a.s("s_add_u32 s88, s92, s76")
    a.s("s_lshl_b32 s76, s90, 10")
    a.s("s_add_u32 s92, s92, s76")
    a.s("s_mul_i32 s76, s89, 43")
    a.s("s_lshr_b32 s76, s76, 7")
    a.s("s_mul_i32 s77, s76, 3")
    a.s("s_sub_u32 s77, s89, s77")
    a.s("s_cmp_eq_u32 s89, 13")
    a.s("s_cselect_b32 s77, 2, s77")
    a.s("s_lshl_b32 s87, s76, 6")
    a.s(f"s_mul_i32 s77, s77, {16*2304}")
    a.s("s_add_u32 s87, s87, s77")
    a.s(f"s_lshl_b32 s77, s{S_BG}, 2")
    a.s(f"s_add_u32 s77, s77, s{sw}")
    a.s(f"s_mul_i32 s77, s77, {48*2304}")
    a.s("s_add_u32 s87, s87, s77")
    a.s(f"s_mul_i32 s77, s{S_BR}, 1152")
    a.s("s_add_u32 s87, s87, s77")
    a.s(f"s_mul_i32 s77, s{S_NT}, 288")
    a.s("s_add_u32 s87, s87, s77")
    a.s("s_cmp_lt_u32 s89, 12")
    a.s(f"s_cselect_b32 s74, 32, {16*2304}")
    a.s("s_cmp_lt_u32 s89, 13")
    a.s("s_cselect_b32 s78, -1, 0xffff")
    a.s("s_mov_b32 s79, s78")
    for u in range(16): assert (u*43) >> 7 == u//3

def tail_vsetup(a, sw=S_W, half=0):
    return [lambda t=t: a.v(t) for t in (
        "v_and_b32 v4, 15, v1", "v_mul_u32_u24 v4, 2304, v4", "v_bfe_u32 v5, v1, 4, 1", "v_mad_u32_u24 v4, v5, s74, v4",
        "v_lshrrev_b32 v5, 5, v1", "v_lshl_add_u32 v4, v5, 4, v4", "v_lshlrev_b32 v3, 7, v1", f"v_lshlrev_b32 v2, 4, v1", f"v_lshl_add_u32 v2, s{sw}, 10, v2", f"v_add_u32 v2, {3*SL + half*4096}, v2")]

def loader(a, cfg):
    a.s(f"s_sub_u32 s73, s{S_W}, 4")
    a.s("s_and_b32 s74, s73, 1")
    a.s("s_lshr_b32 s75, s73, 1")
    a.s(f"s_lshl_b32 s95, s{S_KQ}, 3")
    a.s(f"s_add_u32 s95, s95, s{S_HL}")
    a.v("v_lshrrev_b32 v4, 4, v1")
    a.s("s_lshl_b32 s76, s75, 2")
    a.v("v_or_b32 v5, s76, v4")
    a.v("v_bfe_u32 v6, v1, 1, 3")
    a.v("v_xor_b32 v6, v6, v5")
    a.v("v_lshlrev_b32 v6, 5, v6")
    a.v("v_and_b32 v7, 1, v1")
    a.v("v_lshl_add_u32 v6, v7, 4, v6")
    a.v("v_lshl_add_u32 v2, v4, 13, v6")
    a.s("s_lshl_b32 s76, s73, 15")
    a.s("s_lshl_b32 s77, s95, 8")
    a.s("s_add_u32 s76, s76, s77")
    a.v("v_add_u32 v2, s76, v2")
    a.v("v_lshlrev_b32 v5, 2, v4")
    a.v("v_and_b32 v6, 15, v1")
    a.v("v_xor_b32 v6, v6, v5")
    a.v("v_lshlrev_b32 v6, 4, v6")
    a.v("v_lshl_add_u32 v10, v4, 8, v6")
    a.s("s_lshl_b32 s76, s74, 2")
    a.v("v_or_b32 v5, s76, v4")
    a.v("v_lshrrev_b32 v4, 3, v1")
    a.v("v_mul_u32_u24 v4, 1152, v4")
    a.v("v_and_b32 v6, 7, v1")
    a.v("v_xor_b32 v6, v6, v5")
    a.v("v_lshl_add_u32 v3, v6, 4, v4")
    a.s(f"s_mul_i32 s76, s{S_BG}, {192*1152}")
    a.s(f"s_mul_i32 s77, s74, {8*1152}")
    a.s("s_add_u32 s76, s76, s77")
    a.s(f"s_mul_i32 s77, s75, {96*1152}")
    a.s("s_add_u32 s76, s76, s77")
    a.v("v_add_u32 v3, s76, v3")
    a.s("s_lshl_b32 s78, s73, 10")
    a.s("s_mul_i32 s79, s75, 12288")
    a.s("s_lshl_b32 s77, s74, 10")
    a.s("s_add_u32 s79, s79, s77")
    a.s("s_add_u32 s79, s79, 16384")
    a.s(f"s_lshl_b32 s76, s{S_BG}, 2")
    a.s("s_add_u32 s76, s76, s73")
    a.s("s_lshl_b32 s76, s76, 5")
    a.s("s_add_u32 s76, s76, s95")
    a.s(f"s_xor_b32 s77, s{S_BR}, 1")
    a.s("s_lshr_b32 s76, s76, s77")
    a.s("s_mul_i32 s80, s76, 12288")
    a.s(f"s_mul_i32 s91, s73, {KUNIT}")
    a.s(f"s_add_u32 s91, s91, {KBASE}")
    a.s(f"s_mul_i32 s92, s73, {VUNIT}")
    if cfg.skew == 3:
        a.s(f"s_add_u32 s84, s{S_HL}, s{S_BG}")
        a.s("s_mul_i32 s85, s84, 43")
        a.s("s_lshr_b32 s85, s85, 7")
        a.s("s_mul_i32 s85, s85, 3")
        a.s("s_sub_u32 s84, s84, s85")
        a.s("s_mul_i32 s84, s84, 3")
    elif cfg.skew == 4:
        a.s(f"s_add_u32 s84, s{S_HL}, s{S_BG}")
        a.s("s_and_b32 s84, s84, 3")
        a.s("s_lshl_b32 s84, s84, 1")
    elif cfg.skew == 2:
        a.s(f"s_lshr_b32 s84, s{S_BG}, 1")
        a.s(f"s_xor_b32 s84, s84, s{S_HL}")
        a.s("s_and_b32 s84, s84, 1")
        a.s("s_lshl_b32 s84, s84, 2")
    elif cfg.skew == 9:
        a.s(f"s_lshl_b32 s84, s{S_BG}, 1")
        a.s(f"s_add_u32 s84, s84, s{S_HL}")
        a.s("s_sub_u32 s85, s84, 9")
        a.s("s_cmp_ge_u32 s84, 9")
        a.s("s_cselect_b32 s84, s85, s84")
    else:
        a.s("s_mov_b32 s84, 0")
    build_srds(a, ('x', 'wq', 'k'))
    def stage(s):
        slot = (1 + s % 3) * SL
        a.s("s_lshl_b32 s85, s84, 7")
        a.s("s_lshl_b32 s86, s84, 19")
        for i in range(4):
            a.s(f"s_add_u32 m0, s78, {slot + i*4096}")
            a.s(f"s_add_u32 s82, s86, {16*i*8192}")
            a.dma(2, S_WQ, "s82", cfg.ld_wq, tag=("st", s))
        for z in range(6):
            a.s(f"s_add_u32 m0, s79, {slot + z*2048}")
            a.s(f"s_add_u32 s82, s85, {z*16*1152}")
            a.dma(3, S_X, "s82", cfg.ld_x, tag=("st", s))
        a.s("s_add_u32 s84, s84, 1")
        a.s("s_cmp_eq_u32 s84, 9")
        a.s("s_cselect_b32 s84, 0, s84")
    def kvpart(g, srdb, sm0, stride, lo, hi, base=0):
        for i in range(lo, hi):
            a.s(f"s_add_u32 m0, s{sm0}, {base + i*stride}")
            a.s(f"s_add_u32 s82, s80, {i*1024}")
            a.dma(10, srdb, "s82", cfg.ld_kv, tag=("st", g))
    def codetouch():
        a.s("s_mov_b64 exec, 7")
        a.raw("    global_load_dword v24, v25, s[6:7]"); a.pos += 1
        a.vm.append((None, "touch"))
        a.s("s_mov_b64 exec, -1")
    def setup2():
        if cfg.ctouch:
            L = newlabel("pc")
            a.raw("    s_getpc_b64 s[6:7]")
            a.label(L)
            a.s(f"s_sub_u32 s6, s6, {L}-{NAME}_kernel")
            a.s("s_subb_u32 s7, s7, 0")
            a.s("s_lshr_b32 s76, s2, 3")
            a.s("s_lshl_b32 s76, s76, 2")
            a.s("s_add_u32 s76, s76, s73")
            a.s("s_mul_i32 s76, s76, 384")
            a.v("v_lshlrev_b32 v25, 7, v1")
            a.v("v_add_u32 v25, s76, v25")
            a.s("s_mov_b32 s77, L_code_end-" + NAME + "_kernel-4")
            a.v("v_min_u32 v25, s77, v25")
            codetouch()
        build_srds(a, ('v', 'wo', 'o'))
        stamp(a, cfg, 1)
        a.v("v_mov_b32 v16, 0")
        L = newlabel("nw")
        a.s("s_add_u32 s76, s2, s73")
        a.s("s_cmp_lg_u32 s76, 0")
        a.s(f"s_cbranch_scc1 {L}")
        a.raw("    s_memrealtime s[88:89]")
        a.raw("    s_waitcnt lgkmcnt(0)")
        a.s("s_or_b32 s88, s88, 1")
        a.v("v_mov_b32 v18, s88")
        a.v("v_mov_b32 v19, s89")
        a.s("s_mov_b64 exec, 1")
        a.raw(f"    buffer_store_dwordx2 v[18:19], v16, s[{S_DBG}:{S_DBG+3}], 0 offen sc1")
        a.s("s_mov_b64 exec, -1")
        a.label(L)
    def setup3():
        a.s("s_and_b32 s76, s95, 0xfc")
        a.s("s_lshl_b32 s76, s76, 7")
        a.s("s_lshl_b32 s77, s73, 5")
        a.s("s_add_u32 s76, s76, s77")
        a.s("s_mul_i32 s76, s76, 1152")
        a.s(f"s_mul_i32 s77, s{S_NT}, 288")
        a.s("s_and_b32 s77, s77, 0xffffffc0")
        a.s("s_add_u32 s76, s76, s77")
        for y in range(5):
            a.v(f"v_add_u32 v4, {y*64}, v1")
            a.v("v_mul_u32_u24 v5, 3277, v4")
            a.v("v_lshrrev_b32 v5, 16, v5")
            a.v("v_mul_u32_u24 v6, 20, v5")
            a.v("v_sub_u32 v6, v4, v6")
            a.v("v_bfe_u32 v7, v5, 2, 1")
            a.v("v_lshlrev_b32 v7, 1, v7")
            a.v("v_xor_b32 v6, v6, v7")
            a.v("v_mul_u32_u24 v5, 1152, v5")
            a.v("v_lshl_add_u32 v5, v6, 4, v5")
            a.v(f"v_add_u32 v{26+y}, s76, v5")
        a.s("s_mul_i32 s93, s73, 10240")
        a.v("v_lshlrev_b32 v22, 7, v1")
        if cfg.touch >= 2:
            a.s(f"s_lshl_b32 s76, s{S_BG}, 2")
            a.s(f"s_add_u32 s76, s76, s{S_NT}")
        else:
            a.s("s_lshr_b32 s76, s2, 3")
        a.s("s_lshl_b32 s76, s76, 2")
        a.s("s_add_u32 s76, s76, s73")
        a.s(f"s_mul_i32 s76, s76, {(144 if cfg.touch >= 2 else 72)*128}")
        a.s(f"s_mul_i32 s94, s{S_KQ}, {1024*1152}")
        a.s("s_add_u32 s94, s94, s76")
    def touches():
        a.s("s_mov_b32 exec_lo, -1"); a.s("s_mov_b32 exec_hi, 15")
        for i in range(4 if cfg.touch >= 2 else 2):
            a.bload(23, 1, 22, S_WO, "s94", tag="touch"); a.vm[-1] = (None, "touch")
            a.s(f"s_add_u32 s94, s94, {36*128}")
        a.s("s_mov_b64 exec, -1")
    def wostage(p, start):
        head_order(a, p, 83)
        a.s(f"s_mul_i32 s83, s83, {128*1152}")
        for z2 in range(2):
            a.s(f"s_add_u32 s82, s83, {z2*16*1152}")
            for y in range(5):
                a.s(f"s_add_u32 m0, s93, {((start + p) % 4)*SL + z2*5120 + y*1024}")
                a.dma(26+y, S_WO, "s82", cfg.ld_wo, tag=("st", 11+p))
    cnt = [0]
    def st(i):
        if not cfg.lst: stamp(a, cfg, i)
    W = lambda g: a.wait_vm_tag(("st", g))
    def B():
        k = cnt[0] - cfg.lst
        if cfg.lst and 0 <= k < 5: stamp(a, cfg, 1 + 2*k)
        a.barrier()
        if cfg.lst and 0 <= k < 5: stamp(a, cfg, 2 + 2*k)
        cnt[0] += 1
    start = 3; vb = VBASE_L
    stage(0); setup2(); stage(1); setup3(); st(2)
    classes = [(int(c[0]), int(c[1])) for c in cfg.cls.split(",")]
    g0 = min(min(c) for c in classes)
    def middle(lo, hi, mid, tpos, nxt):
        for g in range(lo, hi):
            W(g)
            if g == 0: st(3)
            if g == 3: st(4)
            B()
            if g == 4 and cfg.ctouch > 1: codetouch()
            if g in (mid, tpos):
                while nxt <= (g + 1 if g < 6 else 8): stage(nxt); nxt += 1
                if g == mid: kvpart(9, S_K, 91, KSTR, 0, 9)
                if g == tpos: touches()
                continue
            while nxt <= g + 2: stage(nxt); nxt += 1
        return nxt
    nxt = middle(0, g0, -1, -1, 2)
    saved = list(a.vm); c0 = cnt[0]
    nc = len(classes)
    if nc == 2: a.s("s_and_b32 s3, s3, 1")
    for k in range(1, nc):
        a.s(f"s_cmp_eq_u32 s3, {k}")
        a.s(f"s_cbranch_scc1 L_cls{k}")
    for k, (kp_, tp_) in enumerate(classes):
        if k:
            a.label(f"L_cls{k}")
            a.hist = []; a.vm = list(saved); cnt[0] = c0
        assert middle(g0, 7, kp_, tp_, nxt) == 9
        W(7)
        B()
        kvpart(9, S_K, 91, KSTR, 9, 12)
        kvpart(10, S_V, 92, VSTR, 0, cfg.v7, vb)
        a.wait_vm_tag(("st", 8))
        a.waitcnt(vm=3 + cfg.v7)
        if k < nc - 1: a.s("s_branch L_join")
    a.label("L_join")
    st(5); B()
    kvpart(10, S_V, 92, VSTR, cfg.v7, cfg.v8, vb)
    W(9); st(6); B()
    kvpart(10, S_V, 92, VSTR, cfg.v8, 12, vb)
    wostage(0, start)
    W(10); st(7); B()
    if cfg.l_wo > 1: wostage(1, start)
    W(11); st(8); B()
    if cfg.ctouch > 1: codetouch()
    if cfg.fbar: B()
    if cfg.l_wo < 2: wostage(1, start)
    if cfg.wo2 > 1: wostage(2, start)
    if cfg.wo2 > 2: wostage(3, start)
    W(12); st(9); B()
    if cfg.wo2 < 3: wostage(2 if cfg.wo2 == 1 else 3, start)
    W(13); B()
    if cfg.wo2 == 1: wostage(3, start)
    nonce_load(a, 32, 16)
    W(14); st(10); B()
    a.v("v_lshlrev_b32 v14, 4, v1")
    a.v("v_lshlrev_b32 v11, 3, v1")
    tail_ssetup(a, 73, 1)
    nonce_check(a, 32, 16)
    apply_c(a, (88,))
    for f in tail_vsetup(a, 73, 1): f()
    a.s("s_branch L_tail")

def xlane_reduce(a, op, regs, tmps):
    for sw in ("v_permlane32_swap_b32", "v_permlane16_swap_b32"):
        for r, t in zip(regs, tmps): a.v(f"v_mov_b32 v{t}, v{r}")
        for r, t in zip(regs, tmps): a.v(f"{sw} v{r}, v{t}")
        for r, t in zip(regs, tmps): a.v(f"{op} v{r}, v{r}, v{t}")

class Fill:
    def __init__(self): self.q = []
    def add(self, *fs): self.q.extend(fs)
    def pop(self, n):
        for _ in range(n):
            if self.q: self.q.pop(0)()
    def drain(self): self.pop(len(self.q))

def compute(a, cfg):
    ACC = 16; WF = 112; XF = 144; KF = 168; AS = 216; VF = 112
    accQ = lambda t, mt: ACC + (t*3 + mt)*4
    Wf = lambda t: WF + 4*t
    Xf = lambda par, mt: XF + par*12 + mt*4
    Kf = lambda kt, kp: KF + (kt*4 + kp)*4
    accS = lambda kt, mt: AS + (kt*3 + mt)*4
    Vf = lambda t: VF + 6*t
    accO = lambda mt, t: ACC + (mt*8 + t)*4
    aW = lambda st_, t: 216 + st_*10 + t
    aX = lambda st_, ks: 216 + st_*10 + 8 + ks
    aK = lambda kp: 252 + kp
    aV = lambda th: 2 + th
    R = [13, 15]
    ofA = lambda kp, mt: 168 + (kp*3 + mt)*4
    def ofB(kp, mt):
        f = kp*3 + mt
        return 216 + f*4 if f < 10 else 160 + (f - 10)*4
    of = lambda buf, kp, mt: ofB(kp, mt) if buf else ofA(kp, mt)
    acc2 = lambda mt, t: 16 + (mt*9 + t)*4
    Wf2 = lambda i: 124 + 4*i

    if cfg.prio: a.s(f"s_setprio {cfg.prio}")
    a.s("s_and_b32 s43, s2, 0x98")
    a.s(f"s_or_b32 s43, s43, s{S_W}")
    a.s("s_cmp_lg_u32 s43, 0")
    a.s("s_cbranch_scc1 L_np1")
    a.raw("    s_getreg_b32 s54, hwreg(HW_REG_XCC_ID, 2, 1)")
    a.s("s_lshr_b32 s46, s2, 6")
    a.s("s_lshl_b32 s46, s46, 3")
    a.s("s_and_b32 s47, s2, 7")
    a.s("s_add_u32 s46, s46, s47")
    a.s("s_mul_i32 s46, s46, 448")
    a.s("s_and_b32 s47, s2, 32")
    a.s("s_lshl_b32 s47, s47, 8")
    a.s("s_add_u32 s46, s46, s47")
    a.s(f"s_add_u32 s46, s46, {WS_PROBE}")
    a.raw("    s_waitcnt lgkmcnt(0)")
    a.s("s_add_u32 s44, s32, s46")
    a.s("s_addc_u32 s45, s33, 0")
    for rep in range(cfg.nprobe):
        a.raw("    s_memtime s[48:49]")
        a.raw(f"    s_load_dword s46, s[44:45], {rep*16384}")
        a.raw("    s_waitcnt lgkmcnt(0)")
        a.raw("    s_memtime s[50:51]")
        a.raw("    s_waitcnt lgkmcnt(0)")
    a.s("s_sub_u32 s50, s50, s48")
    a.s(f"s_min_u32 s50, s50, {CAP}")
    a.s("s_sub_u32 s51, 0, s50")
    a.s("s_lshr_b32 s47, s47, 13")
    a.s("s_cmp_eq_u32 s47, s54")
    a.s("s_cselect_b32 s50, s50, s51")
    a.s(f"s_add_u32 s50, s50, {(1 << 24) + CAP}")
    a.s("s_lshl_b32 s51, s54, s2")
    a.s(f"s_add_u32 s51, s51, {1 << 16}")
    a.s("s_cmp_lt_u32 s2, 8")
    a.s("s_cselect_b32 s51, s51, 0")
    a.label("L_np1")
    a.v("v_lshrrev_b32 v160, 4, v1")
    a.v("v_bfe_u32 v161, v1, 2, 2")
    a.v("v_and_b32 v162, 3, v1")
    a.v("v_and_b32 v163, 15, v1")
    a.v("v_and_b32 v165, 1, v160")
    a.s(f"s_mul_i32 s76, s{S_W}, {KUNIT}")
    a.s(f"s_mul_i32 s77, s{S_E}, {2*SL}")
    a.s("s_add_u32 s76, s76, s77")
    a.v(f"v_mul_u32_u24 v164, {KSTR}, v161")
    a.v("v_lshl_add_u32 v164, v162, 8, v164")
    a.v("v_lshl_add_u32 v164, v160, 3, v164")
    a.v("v_add_u32 v164, s76, v164")
    for kp in range(4):
        a.v(f"v_xor_b32 v167, {kp}, v162")
        a.v(f"v_lshl_add_u32 v{aK(kp)}, v167, 6, v164")
    a.v("v_lshl_add_u32 v164, v160, 3, v161")
    a.v("v_lshlrev_b32 v164, 8, v164")
    a.v("v_lshl_or_b32 v166, v165, 2, v161")
    a.v("v_lshl_add_u32 v164, v166, 5, v164")
    a.v("v_lshl_add_u32 v164, v162, 3, v164")
    a.v(f"v_add_u32 v{aW(0,0)}, {SL}, v164")
    for t in range(1, 8): a.v(f"v_xor_b32 v{aW(0,t)}, {32*t}, v{aW(0,0)}")
    a.v("v_lshrrev_b32 v164, 1, v163")
    a.v("v_xor_b32 v164, v164, v160")
    a.v("v_lshlrev_b32 v164, 4, v164")
    a.v("v_lshl_add_u32 v164, v163, 7, v164")
    a.s(f"s_mul_i32 s76, s{S_W}, 6144")
    a.s(f"s_add_u32 s76, s76, {16384 + SL}")
    a.v(f"v_add_u32 v{aX(0,0)}, s76, v164")
    a.v(f"v_xor_b32 v{aX(0,1)}, 64, v{aX(0,0)}")
    for i in range(10): a.v(f"v_add_u32 v{226+i}, {2*SL}, v{216+i}")
    a.s(f"s_mul_i32 s76, s{S_W}, {VUNIT}")
    a.s(f"s_cmp_eq_u32 s{S_E}, 1")
    a.s(f"s_cselect_b32 s77, 0, {VBASE_L}")
    a.s("s_add_u32 s76, s76, s77")
    a.v(f"v_mul_u32_u24 v164, {VSTR}, v160")
    a.v("v_lshl_add_u32 v164, v161, 8, v164")
    a.v("v_lshl_add_u32 v164, v162, 3, v164")
    a.v("v_add_u32 v164, s76, v164")
    for th in range(4):
        a.v(f"v_xor_b32 v167, {th}, v161")
        a.v(f"v_lshl_add_u32 v{aV(th)}, v167, 6, v164")
    a.v("v_lshl_add_u32 v164, v160, 2, v161")
    a.v("v_mul_u32_u24 v164, 320, v164")
    a.v("v_lshl_add_u32 v164, v162, 3, v164")
    a.s(f"s_cmp_eq_u32 s{S_E}, 1")
    a.s(f"s_mov_b32 s76, {3*SL}")
    a.s(f"s_cselect_b32 s76, {2*SL}, s76")
    a.s(f"s_mov_b32 s93, {SL}")
    a.s(f"s_cselect_b32 s93, s93, {(-3*SL) & 0xffffffff}")
    a.s(f"s_mov_b32 s94, {SL}")
    a.s(f"s_cselect_b32 s94, {(-3*SL) & 0xffffffff}, s94")
    a.s(f"s_mov_b32 s95, {SL}")
    a.v("v_add_u32 v164, s76, v164")
    a.s(f"s_and_b32 s77, s{S_NT}, 1")
    a.v("v_xor_b32 v167, s77, v165")
    a.v(f"v_lshl_add_u32 v{R[0]}, v167, 5, v164")
    a.s("s_add_u32 s77, s77, 1")
    a.v("v_xor_b32 v167, s77, v165")
    a.v(f"v_lshl_add_u32 v{R[1]}, v167, 5, v164")
    a.v("v_lshlrev_b32 v14, 4, v1")
    a.v("v_lshlrev_b32 v11, 3, v1")
    a.v("v_mov_b32 v10, 0")
    a.s(f"s_lshl_b32 s81, s{S_KQ}, 3")
    a.s(f"s_and_b32 s82, s{S_HL}, 4")
    a.s("s_add_u32 s81, s81, s82")
    unit_base(a, 80, S_W, 81)
    a.s(f"s_mov_b32 s83, {f2u(SC)}")
    a.s("s_and_b32 s76, s2, 7")
    a.s("s_lshr_b32 s77, s2, 5")
    a.s("s_lshl_b32 s77, s77, 3")
    a.s("s_or_b32 s76, s76, s77")
    a.s("s_lshl_b32 s76, s76, 2")
    a.s(f"s_add_u32 s76, s76, s{S_W}")
    a.s("s_lshr_b32 s77, s76, 6")
    a.s("s_lshl_b32 s77, s77, 14")
    a.s("s_and_b32 s76, s76, 63")
    a.s("s_lshl_b32 s76, s76, 7")
    a.s("s_add_u32 s76, s76, s77")
    a.s(f"s_add_u32 s84, s76, {WS_FLAG1}")
    a.s(f"s_lshl_b32 s85, 1, s{S_NT}")
    a.s("s_xor_b32 s86, s85, 15")
    tail_ssetup(a, S_W, 0)
    a.s("s_lshl_b32 s97, 1, s90")
    build_srds(a, ('o',))
    srd(a, S_X, 32, 33, 0)
    if cfg.warmf:
        a.s("s_mov_b64 exec, 1")
        a.bload(6, 1, 10, S_WS, "s84", flags="sc1" if cfg.warmf == 1 else "")
        a.s("s_lshl_b32 s76, s90, 7")
        a.s("s_add_u32 s76, s76, s96")
        a.bload(7, 1, 10, S_WS, "s76", flags="sc1" if cfg.warmf == 1 else "")
        a.s("s_xor_b32 s76, s76, 8192")
        a.bload(8, 1, 10, S_WS, "s76", flags="sc1" if cfg.warmf == 1 else "")
        a.s("s_xor_b32 s76, s84, 8192")
        a.bload(9, 1, 10, S_WS, "s76", flags="sc1" if cfg.warmf == 1 else "")
        a.s("s_mov_b64 exec, -1")

    ver = {}
    def rdW(s, t, ks, h):
        def f():
            a.ds_read("ds_read_b64_tr_b16", Wf(t)+2*h, 2, aW((s % 3) >> 1, t), off=((s % 3) & 1)*SL + ks*8192 + h*1024); ver[("W", t, h)] = (s, ks)
        return f
    def rdX(s, mt, ks):
        def f():
            a.ds_read("ds_read_b128", Xf(ks, mt), 4, aX((s % 3) >> 1, ks), off=((s % 3) & 1)*SL + mt*2048); ver[("X", ks, mt)] = s
        return f
    def chk1(s, ks, t, mt):
        assert ver[("W", t, 0)] == (s, ks) and ver[("W", t, 1)] == (s, ks) and ver[("X", ks, mt)] == s, (s, ks, t, mt)
    def readK():
        for kp in range(4):
            for kt in range(3):
                for e in range(2): a.ds_read("ds_read_b64", Kf(kt, kp)+2*e, 2, aK(kp), off=kt*4*KSTR + 32*e)
    def rdK1(kt, kp, e):
        return lambda: a.ds_read("ds_read_b64", Kf(kt, kp)+2*e, 2, aK(kp), off=kt*4*KSTR + 32*e)
    def cvt(d, s0, s1):
        return lambda: a.v(f"v_cvt_pk_bf16_f32 v{d}, v{s0}, v{s1}")
    def cvtQ(kp):
        out = []
        for mt in range(3):
            r = accQ(2*kp, mt); s_ = accQ(2*kp+1, mt)
            out += [cvt(r, r, r+1), cvt(r+1, r+2, r+3), cvt(r+2, s_, s_+1), cvt(r+3, s_+2, s_+3)]
        return out
    F = Fill()
    a.s("s_cmp_lg_u32 s43, 0")
    a.s("s_cbranch_scc1 L_np2")
    a.v("v_mov_b32 v112, s50")
    a.v("v_mov_b32 v113, s51")
    a.s("s_mov_b64 exec, 1")
    a.raw(f"    buffer_atomic_add_x2 v[112:113], v10, s[{S_DBG}:{S_DBG+3}], 0 offen offset:8 sc1")
    a.s("s_mov_b64 exec, -1")
    a.nop(2)
    a.label("L_np2")
    stamp(a, cfg, 1)
    if cfg.el == 1:
        a.s(f"s_cmp_eq_u32 s{S_E}, 0")
        a.s("s_cbranch_scc1 L_noK0")
        a.barrier()
        readK()
        a.waitcnt(lgkm=0)
        a.barrier()
        a.label("L_noK0")
    a.barrier()
    stamp(a, cfg, 2)
    for mt in range(3): rdX(0, mt, 0)()
    for t in range(8): rdW(0, t, 0, 0)(); rdW(0, t, 0, 1)()
    BP = cfg.barpos
    for s in range(9):
        last = s == 8
        for mt in range(3): F.add(rdX(s, mt, 1))
        for t in range(8):
            if last and cfg.att: F.add(rdK1(t >> 2, t & 3, 0), rdK1(t >> 2, t & 3, 1))
            for mt in range(3):
                chk1(s, 0, t, mt)
                a.mfma(accQ(t, mt), Wf(t), Xf(0, mt), None if s == 0 else accQ(t, mt))
                for b in range(cfg.x_burn): a.raw(f"    v_mad_u32_u24 v{236+(t*3+mt+b*5)%16}, v{Wf(t)+mt}, v{Xf(0,mt)+b}, v{236+(t*3+mt+b*5+7)%16}")
                F.pop(2 if len(F.q) > 2 else 1)
            if cfg.x_pace: a.nop(cfg.x_pace)
            F.add(rdW(s, t, 1, 0), rdW(s, t, 1, 1))
        for t in range(8):
            for mt in range(3):
                chk1(s, 1, t, mt)
                a.mfma(accQ(t, mt), Wf(t), Xf(1, mt), accQ(t, mt))
                for b in range(cfg.x_burn): a.raw(f"    v_mad_u32_u24 v{236+(t*3+mt+b*5)%16}, v{Wf(t)+mt}, v{Xf(1,mt)+b}, v{236+(t*3+mt+b*5+7)%16}")
                F.pop(2 if len(F.q) > 2 else 1)
            if last:
                if t in (3, 5, 7): F.add(*cvtQ((t - 3)//2))
            elif t == BP - 1:
                assert not F.q
                a.waitcnt(lgkm=0)
                a.barrier()
                F.add(rdX(s+1, 0, 0), rdW(s+1, 0, 0, 0), rdW(s+1, 0, 0, 1), rdX(s+1, 1, 0), rdX(s+1, 2, 0))
                for tt in range(1, BP): F.add(rdW(s+1, tt, 0, 0), rdW(s+1, tt, 0, 1))
            elif t >= BP:
                F.add(rdW(s+1, t, 0, 0), rdW(s+1, t, 0, 1))
    a.waitcnt(lgkm=0)
    a.barrier()
    stamp(a, cfg, 3)
    if not cfg.att:
        a.bload(8, 2, 10, S_DBG, "0", flags="sc1", tag="nonce")
        if cfg.el:
            a.s(f"s_cmp_eq_u32 s{S_E}, 1")
            a.s("s_cbranch_scc1 L_noK1")
        readK()
        if cfg.el: a.label("L_noK1")
        F.drain()
        for f in cvtQ(3): f()
        for kp in range(4):
            for kt in range(3):
                for mt in range(3):
                    a.mfma(accS(kt, mt), Kf(kt, kp), accQ(2*kp, mt), None if kp == 0 else accS(kt, mt))
        MX = [160, 161, 162]; TM = [163, 164, 165]; SM = [166, 167, 6]
        vals = lambda mt: [accS(kt, mt) + r for kt in range(3) for r in range(4)]
        for mt in range(3):
            v = vals(mt); a.v(f"v_max3_f32 v{MX[mt]}, v{v[0]}, v{v[1]}, v{v[2]}")
        for i in range(3, 11, 2):
            for mt in range(3):
                v = vals(mt); a.v(f"v_max3_f32 v{MX[mt]}, v{MX[mt]}, v{v[i]}, v{v[i+1]}")
        for mt in range(3):
            v = vals(mt); a.v(f"v_max_f32 v{MX[mt]}, v{MX[mt]}, v{v[11]}")
        xlane_reduce(a, "v_max_f32", MX, TM)
        for mt in range(3): a.v(f"v_mul_f32 v{MX[mt]}, s83, v{MX[mt]}")
        for i in range(12):
            for mt in range(3):
                v = vals(mt); a.v(f"v_fma_f32 v{v[i]}, v{v[i]}, s83, -v{MX[mt]}")
        for i in range(12):
            for mt in range(3):
                v = vals(mt); a.v(f"v_exp_f32 v{v[i]}, v{v[i]}")
        for mt in range(3):
            v = vals(mt); a.v(f"v_add_f32 v{SM[mt]}, v{v[0]}, v{v[1]}")
        for i in range(2, 12):
            for mt in range(3):
                v = vals(mt); a.v(f"v_add_f32 v{SM[mt]}, v{SM[mt]}, v{v[i]}")
        xlane_reduce(a, "v_add_f32", SM, TM)
        for mt in range(3): a.v(f"v_rcp_f32 v{SM[mt]}, v{SM[mt]}")
        a.barrier()
        for t in range(8):
            for kt in range(3):
                F.add(lambda t=t, kt=kt: a.ds_read("ds_read_b64_tr_b16", Vf(t) + 2*kt, 2, aV(t >> 1), off=kt*4*VSTR + (t & 1)*32))
        for i in range(12):
            for mt in range(3):
                v = vals(mt); a.v(f"v_mul_f32 v{v[i]}, v{v[i]}, v{SM[mt]}"); F.pop(1)
        for mt in range(3):
            r0, r1, r2 = accS(0, mt), accS(1, mt), accS(2, mt)
            for f in (cvt(r0, r0, r0+1), cvt(r0+1, r0+2, r0+3), cvt(r0+2, r1, r1+1), cvt(r0+3, r1+2, r1+3), cvt(r2, r2, r2+1), cvt(r2+1, r2+2, r2+3)): f()
        stamp(a, cfg, 4)
        nonce_check(a, 10)
        a.s(f"s_lshl_b32 s81, s{S_NT}, 15")
        a.s("s_add_u32 s81, s81, s80")
        def ostore(mt, kp):
            r = accO(mt, 2*kp); s_ = accO(mt, 2*kp+1); d = ofA(kp, mt); f = kp*3 + mt
            return [cvt(d, r, r+1), cvt(d+1, r+2, r+3), cvt(d+2, s_, s_+1), cvt(d+3, s_+2, s_+3),
                    lambda: a.s(f"s_add_u32 s82, s81, s{40 + f//4}"),
                    lambda: a.bstore(d, 4, 14, S_WS, "s82", off=(f % 4)*1024, flags="sc1")]
        for mt in range(3):
            for t in range(8):
                a.mfma(accO(mt, t), Vf(t), accS(0, mt), None); F.pop(2)
            for t in range(8):
                a.mfma(accO(mt, t), Vf(t)+4, accS(2, mt), accO(mt, t), k=16); F.pop(2)
            for kp in range(4): F.add(*ostore(mt, kp))
    else:
        assert cfg.el == 2 and cfg.l_kpos >= 0 and cfg.c_kpos >= 0
        for kp in range(4): rdK1(2, kp, 0)(); rdK1(2, kp, 1)()
        nonce_load(a, 252, 10)
        F.add(*cvtQ(3))
        order = [(kp, kt, mt) for kp in range(3) for kt in range(2) for mt in range(3)]
        order += [(kp, 2, mt) for kp in range(3) for mt in range(3)]
        order += [(3, kt, mt) for mt in range(3) for kt in range(3)]
        for n, (kp, kt, mt) in enumerate(order):
            if kp == 2 and n == 12: F.pop(max(0, len(F.q) - 12))
            if kp == 3: F.drain()
            a.mfma(accS(kt, mt), Kf(kt, kp), accQ(2*kp, mt), None if kp == 0 else accS(kt, mt)); F.pop(2)
        MX = [160, 162, 164]; TM = [161, 163, 165]; SM = [166, 6, 112]
        vals = lambda mt: [accS(kt, mt) + r for kt in range(3) for r in range(4)]
        for mt in range(3):
            v = vals(mt); a.v(f"v_max3_f32 v{MX[mt]}, v{v[0]}, v{v[1]}, v{v[2]}")
        for i in range(3, 11, 2):
            for mt in range(3):
                v = vals(mt); a.v(f"v_max3_f32 v{MX[mt]}, v{MX[mt]}, v{v[i]}, v{v[i+1]}")
        for mt in range(3):
            v = vals(mt); a.v(f"v_max_f32 v{MX[mt]}, v{MX[mt]}, v{v[11]}")
        xlane_reduce(a, "v_max_f32", MX, TM)
        for mt in range(3): a.v(f"v_mul_f32 v{MX[mt]}, s83, v{MX[mt]}")
        for i in range(0, 12, 2):
            for mt in range(3):
                v = vals(mt)
                a.v(f"v_pk_fma_f32 v[{v[i]}:{v[i]+1}], v[{v[i]}:{v[i]+1}], s[82:83], v[{MX[mt]}:{MX[mt]+1}] op_sel:[0,1,0] op_sel_hi:[1,1,0] neg_lo:[0,0,1] neg_hi:[0,0,1]")
        for i in range(12):
            for mt in range(3):
                v = vals(mt); a.v(f"v_exp_f32 v{v[i]}, v{v[i]}")
        for mt in range(3):
            v = vals(mt); a.v(f"v_pk_add_f32 v[{SM[mt]}:{SM[mt]+1}], v[{v[0]}:{v[1]}], v[{v[2]}:{v[3]}]")
        for i in range(4, 12, 2):
            for mt in range(3):
                v = vals(mt); a.v(f"v_pk_add_f32 v[{SM[mt]}:{SM[mt]+1}], v[{SM[mt]}:{SM[mt]+1}], v[{v[i]}:{v[i]+1}]")
        for mt in range(3): a.v(f"v_add_f32 v{MX[mt]}, v{SM[mt]}, v{SM[mt]+1}")
        xlane_reduce(a, "v_add_f32", MX, TM)
        for mt in range(3): a.v(f"v_rcp_f32 v{MX[mt]}, v{MX[mt]}")
        for i in range(0, 12, 2):
            for mt in range(3):
                v = vals(mt); a.v(f"v_pk_mul_f32 v[{v[i]}:{v[i]+1}], v[{v[i]}:{v[i]+1}], v[{MX[mt]}:{MX[mt]+1}] op_sel_hi:[1,0]")
        for mt in range(3):
            r0, r1, r2 = accS(0, mt), accS(1, mt), accS(2, mt)
            for f in (cvt(r0, r0, r0+1), cvt(r0+1, r0+2, r0+3), cvt(r0+2, r1, r1+1), cvt(r0+3, r1+2, r1+3), cvt(r2, r2, r2+1), cvt(r2+1, r2+2, r2+3)): f()
        stamp(a, cfg, 4)
        a.barrier()
        for t in range(8):
            for kt in range(3):
                a.ds_read("ds_read_b64_tr_b16", Vf(t) + 2*kt, 2, aV(t >> 1), off=kt*4*VSTR + (t & 1)*32)
        nonce_check(a, 252, 10)
        apply_c(a, (80, 84, 88))
        a.s("s_mov_b32 s52, s76")
        a.s("s_mov_b32 s53, s75")
        for k in range(4):
            F.add(lambda k=k: a.s(f"s_bitcmp1_b32 s53, {k}") or a.s(f"s_cselect_b32 s{44+k}, 8192, 0"), lambda k=k: a.s(f"s_xor_b32 s{44+k}, s{44+k}, s92"))
        a.s(f"s_lshl_b32 s81, s{S_NT}, 15")
        a.s("s_add_u32 s81, s81, s80")
        def ostore(mt, kp):
            r = accO(mt, 2*kp); s_ = accO(mt, 2*kp+1); d = ofA(kp, mt); f = kp*3 + mt
            return [cvt(d, r, r+1), cvt(d+1, r+2, r+3), cvt(d+2, s_, s_+1), cvt(d+3, s_+2, s_+3),
                    lambda: a.s(f"s_add_u32 s82, s81, s{40 + f//4}"),
                    lambda: a.bstore(d, 4, 14, S_WS, "s82", off=(f % 4)*1024, flags="sc1")]
        for kp in range(4):
            for t in (2*kp, 2*kp+1):
                for mt in range(3):
                    a.mfma(accO(mt, t), Vf(t), accS(0, mt), None); F.pop(2)
            for t in (2*kp, 2*kp+1):
                for mt in range(3):
                    a.mfma(accO(mt, t), Vf(t)+4, accS(2, mt), accO(mt, t), k=16); F.pop(2)
            F.add(lambda: None, lambda: None, lambda: None, lambda: None)
            for mt in range(3): F.add(*ostore(mt, kp))
    F.drain()
    stamp(a, cfg, 5)
    def flagst(off):
        a.s("s_mov_b32 exec_lo, s85"); a.s("s_mov_b32 exec_hi, 0")
        a.bstore(8, 2, 11, S_WS, "s84", off=off, flags="sc1")
        a.s("s_mov_b64 exec, -1")
    def poll_issue(mask, off):
        a.s(f"s_mov_b32 exec_lo, {mask}"); a.s("s_mov_b32 exec_hi, 0")
        a.bload(6, 2, 11, S_WS, "s84", off=off, flags="sc1")
        a.s("s_mov_b64 exec, -1")
    def poll_check(mask, off):
        L = newlabel("pc"); Lb = newlabel("pcb")
        a.s(f"s_mov_b32 exec_lo, {mask}"); a.s("s_mov_b32 exec_hi, 0")
        a.v("v_cmp_ne_u64 vcc, v[6:7], v[8:9]")
        a.s("s_mov_b64 exec, -1")
        a.s(f"s_cbranch_vccnz {L}")
        a.label(Lb)
        o = Asm(); o.label(L); poll_flags(o, 6, 8, 11, 84, mask, 76, off); o.s(f"s_branch {Lb}")
        a.ool += o.L
    if cfg.split:
        a.waitcnt(vm=6)
        flagst(0)
        head_order(a, 1, 75)
        a.s("s_lshl_b32 s75, 1, s75")
    a.waitcnt(lgkm=0)
    a.barrier()
    stamp(a, cfg, 10)
    items = []
    for p in range(4):
        if p == 3 and cfg.prog: items += [(p, kp, t) for t in range(9) for kp in range(4)]
        else: items += [(p, kp, t) for kp in range(4) for t in range(9)]
    NB = 9
    def rdW2(i, h):
        p, kp, t = items[i]
        def f():
            a.ds_read("ds_read_b64_tr_b16", Wf2(i % NB)+2*h, 2, R[t & 1], off=kp*10240 + h*5120 + 32*(t - (t & 1))); ver[("W2", i % NB, h)] = i
        return f
    for kp in range(4):
        for mt in range(3): ver[("O", 0, kp, mt)] = 0
    def headbase(p):
        return [lambda: head_order(a, p, 81), lambda: a.s("s_lshl_b32 s81, s81, 15"), lambda: a.s("s_add_u32 s81, s81, s80")]
    def ldO(p, f, srdb=S_WS):
        kp, mt = divmod(f, 3)
        return [lambda: a.s(f"s_add_u32 s82, s81, s{40 + f//4}"),
                lambda: (a.bload(of(p & 1, kp, mt), 4, 14, srdb, "s82", off=(f % 4)*1024, flags="sc1"), ver.__setitem__(("O", p & 1, kp, mt), p))]
    def publish(mt, pair):
        if pair == 4 and mt == 1: return []
        slot = pair*3 + mt if pair < 4 else 12 + mt//2
        r = acc2(mt, 2*pair)
        out = [cvt(r, r, r+1), cvt(r+1, r+2, r+3)]
        n = 4
        if slot < 13:
            s_ = acc2(mt, 2*pair+1) if pair < 4 else acc2(1, 8)
            out += [cvt(r+2, s_, s_+1), cvt(r+3, s_+2, s_+3)]
        def st_():
            L = newlabel("own"); L2 = newlabel("ownb")
            a.s(f"s_cmp_eq_u32 s90, {slot & 7}")
            a.s(f"s_cbranch_scc1 {L}")
            if slot < 13: a.bstore(r, 4, 14, S_WS, "s82", flags="sc1")
            else: a.bstore(r, 2, 11, S_WS, "s82", flags="sc1")
            a.label(L2)
            a.ool += [f"{L}:", f"    ds_write_b128 v2, v[{r}:{r+3}] offset:{(slot >> 3)*4096}", f"    s_branch {L2}"]
        out += [lambda: a.s(f"s_add_u32 s82, s{44 + ((slot & 7) >> 1)}, {slot*16384}"), st_]
        return out
    for i in range(NB): rdW2(i, 0)(); rdW2(i, 1)()
    seen = set()
    for i, (p, kp, t) in enumerate(items):
        if i == cfg.fb:
            F.drain()
            a.waitcnt(vm=0)
            stamp(a, cfg, 6)
            flagst(32)
            if cfg.fbar: a.barrier()
        if cfg.split and i == cfg.pa: poll_issue("s75", 0)
        if cfg.split and i == cfg.pac:
            poll_check("s75", 0)
            stamp(a, cfg, 7)
            F.add(*headbase(1))
            for fr in range(6): F.add(*ldO(1, fr))
        if i == 36:
            F.drain()
            if cfg.split: poll_issue("s75", 32)
            if cfg.p2st: stamp(a, cfg, 1)
            a.barrier()
            if cfg.p2st: stamp(a, cfg, 2)
            for r in R: a.v(f"v_add_u32 v{r}, s93, v{r}")
            for j in range(36, 36 + NB): rdW2(j, 0)(); rdW2(j, 1)()
            if not cfg.split:
                for f in headbase(1): f()
                poll_flags(a, 6, 8, 11, 84, "s86", 76, 32)
                stamp(a, cfg, 7)
                for fr in range(12):
                    for f in ldO(1, fr): f()
                F.add(*headbase(2))
        if cfg.split and i == 40:
            poll_check("s75", 32)
            for fr in range(6, 12): F.add(*ldO(1, fr))
        if cfg.split and i == cfg.pb: F.drain(); poll_issue("s86", 32)
        if cfg.split and i == cfg.pb + 6:
            poll_check("s86", 32)
            F.add(*headbase(2))
        if cfg.p2st and i in (37, 72, 108): stamp(a, cfg, {37: 3, 72: 4, 108: 5}[i])
        if not cfg.split and p == 1 and t in (0, 3, 6): F.add(*ldO(2, kp*3 + t//3))
        if cfg.split and cfg.pb + 6 <= i < cfg.pb + 18: F.add(*ldO(2, i - cfg.pb - 6))
        if i == 72:
            F.add(*headbase(3)); F.add(*tail_vsetup(a))
            F.add(*[lambda t=t: a.v(t) for t in ("v_lshrrev_b32 v5, 1, v1", "v_lshrrev_b32 v5, v5, s53", "v_and_b32 v5, 1, v5", "v_lshl_add_u32 v3, v5, 13, v3")])
        if p == 2 and kp < 2 and t < 6: F.add(*ldO(3, kp*6 + t))
        for mt in range(3):
            assert ver[("W2", i % NB, 0)] == i and ver[("W2", i % NB, 1)] == i and ver[("O", p & 1, kp, mt)] == p, (i, p, kp, t)
            a.mfma(acc2(mt, t), Wf2(i % NB), of(p & 1, kp, mt), acc2(mt, t) if (mt, t) in seen else None)
            seen.add((mt, t))
            F.pop(3 if len(F.q) > 8 else 2 if len(F.q) > 2 else 1)
        j = i + NB
        if j < len(items) and not (p == 0 and j >= 36):
            if j % 36 == 0:
                F.drain()
                a.barrier()
                for r in R: F.add(lambda r=r, j=j: a.v(f"v_add_u32 v{r}, s{92 + j//36}, v{r}"))
                F.add(rdW2(j, 0), rdW2(j, 1))
            elif j % 36 == 1: F.add(rdW2(j, 0), rdW2(j, 1))
            else: F.q = [rdW2(j, 0), rdW2(j, 1)] + F.q
        if p == 3 and cfg.prog and kp == 0 and t >= 2 and t % 2 == 0:
            for mt in range(3): F.add(*publish(mt, t//2 - 1))
    stamp(a, cfg, 8)
    F.drain()
    for pair in range(4 if cfg.prog else 0, 5):
        for mt in range(3):
            for f in publish(mt, pair): f()
    stamp(a, cfg, 9)
    a.waitcnt(vm=0, lgkm=0)
    stamp(a, cfg, 11)
    a.s("s_xor_b32 s97, s97, 0xff")
    if cfg.f2:
        a.s("s_mov_b32 exec_lo, s97"); a.s("s_mov_b32 exec_hi, 0")
        a.s("s_lshl_b32 s76, s90, 3")
        a.s("s_add_u32 s76, s76, s96")
        a.bstore(8, 2, 3, S_WS, "s76", flags="sc1")
        a.s("s_lshl_b32 s76, s90, 7")
        a.s("s_add_u32 s96, s96, s76")
        a.s("s_add_u32 s96, s96, s52")
    else:
        a.s("s_xor_b32 exec_lo, s97, 0xff"); a.s("s_mov_b32 exec_hi, 0")
        a.bstore(8, 2, 11, S_WS, "s96", flags="sc1")
    poll_flags(a, 6, 8, 11, 96, "s97", 76)

def tail(a, cfg, endlabel):
    a.barrier()
    a.s("s_cmp_ge_u32 s89, 14")
    a.s(f"s_cbranch_scc1 {endlabel}")
    stamp(a, cfg, 12)
    a.ds_read("ds_read_b128", 16, 4, 2)
    a.s("s_cmp_eq_u32 s89, 13")
    a.s("s_cbranch_scc1 L_half")
    def srcoff(k):
        a.s(f"s_add_u32 s76, s90, {k}")
        a.s("s_and_b32 s76, s76, 7")
        a.s("s_lshl_b32 s76, s76, 10")
        a.s("s_add_u32 s76, s76, s88")
    for k in range(1, 8):
        srcoff(k); a.bload(16 + 4*k, 4, 14, S_WS, "s76", flags="sc1")
    a.label("L_halfb")
    ool = Asm()
    ool.label("L_half")
    for k in range(1, 8):
        ool.s(f"s_add_u32 s76, s90, {k}"); ool.s("s_and_b32 s76, s76, 7"); ool.s("s_lshl_b32 s76, s76, 10"); ool.s("s_add_u32 s76, s76, s88")
        ool.bload(16 + 4*k, 2, 11, S_WS, "s76", flags="sc1")
    ool.s("s_branch L_halfb")
    a.ool += ool.L
    for k in range(8):
        src = 16 + 4*k
        for i in range(4):
            if k == 0:
                a.v(f"v_lshlrev_b32 v{48+2*i}, 16, v{src+i}")
                a.v(f"v_and_b32 v{49+2*i}, 0xffff0000, v{src+i}")
            else:
                a.v(f"v_lshlrev_b32 v{60+2*(i&1)}, 16, v{src+i}")
                a.v(f"v_and_b32 v{61+2*(i&1)}, 0xffff0000, v{src+i}")
                a.v(f"v_pk_add_f32 v[{48+2*i}:{49+2*i}], v[{48+2*i}:{49+2*i}], v[{60+2*(i&1)}:{61+2*(i&1)}]")
        if k == 1: stamp(a, cfg, 13)
    for i in range(4): a.v(f"v_cvt_pk_bf16_f32 v{64+i}, v{48+2*i}, v{49+2*i}")
    a.v("v_permlane16_swap_b32 v64, v66")
    a.v("v_permlane16_swap_b32 v65, v67")
    stamp(a, cfg, 14)
    a.s("s_mov_b64 exec, s[78:79]")
    a.bstore(64, 4, 4, S_OUT, "s87", flags=cfg.st_out)

def kernel(cfg):
    a = Asm()
    a.lcap = cfg.lcap
    ROT[0] = cfg.rot
    a.ool = []
    stamp(a, cfg, 0)
    prologue(a, cfg, "L_end")
    a.s(f"s_cmp_lt_u32 s{S_W}, 4")
    a.s("s_cbranch_scc1 L_compute")
    loader(a, cfg)
    a.label("L_compute")
    a.reset_state()
    compute(a, cfg)
    a.label("L_tail")
    a.reset_state()
    a.nop(2)
    tail(a, cfg, "L_end")
    if cfg.x_map:
        a.s(f"s_add_u32 s76, s2, s{S_W}")
        a.s("s_cmp_lg_u32 s76, 0")
        a.s("s_cbranch_scc1 L_end")
        a.raw("    s_waitcnt vmcnt(0)")
        for i in range(40): a.raw("    s_sleep 64")
        a.s("s_mov_b64 exec, 1")
        a.v("v_mov_b32 v20, 0")
        a.s("s_mov_b32 s40, 0"); a.s(f"s_mov_b32 s41, {28672}"); a.s("s_mov_b32 s42, 0")
        a.label("L_map")
        for rep in range(2):
            a.raw("    v_mov_b32 v21, 0")
            a.raw("    s_memtime s[44:45]"); a.raw("    s_waitcnt lgkmcnt(0)")
            a.raw(f"    buffer_atomic_add v21, v20, s[{S_WS}:{S_WS+3}], s41 offen sc0 sc1")
            a.raw("    s_waitcnt vmcnt(0)")
            a.raw("    s_memtime s[46:47]"); a.raw("    s_waitcnt lgkmcnt(0)")
        a.s("s_sub_u32 s46, s46, s44")
        a.s("s_cmp_gt_u32 s46, 680")
        a.s("s_cselect_b32 s46, 1, 0")
        a.s("s_lshl_b32 s46, s46, s40")
        a.s("s_or_b32 s42, s42, s46")
        a.s(f"s_add_u32 s41, s41, {2 << 20}")
        a.s("s_add_u32 s40, s40, 1")
        a.s("s_cmp_lt_u32 s40, 24")
        a.s("s_cbranch_scc1 L_map")
        a.v("v_mov_b32 v21, s42")
        a.raw(f"    buffer_store_dword v21, v20, s[{S_DBG}:{S_DBG+3}], 0 offen offset:16")
        a.v(f"v_mov_b32 v22, s{S_WS}")
        a.raw(f"    buffer_store_dword v22, v20, s[{S_DBG}:{S_DBG+3}], 0 offen offset:20")
        a.raw("    s_getreg_b32 s42, hwreg(HW_REG_XCC_ID)")
        a.v("v_mov_b32 v23, s42")
        a.raw(f"    buffer_store_dword v23, v20, s[{S_DBG}:{S_DBG+3}], 0 offen offset:24")
    if cfg.stamps: a.waitcnt(vm=0)
    stamp(a, cfg, 15)
    stamp_out(a, cfg)
    a.label("L_end")
    a.s("s_endpgm")
    for l in a.ool: a.raw(l)
    return a

HEADER = open("cdna_kernels/" + NAME + ".s.ref").read().split("; Override launch")[0]

def build(cfg):
    n = NAME + "_kernel"
    a = kernel(cfg)
    return HEADER + f"""; @launch grid=(256,1,1) block=(512,1,1) lds=163840
.amdgcn_target "amdgcn-amd-amdhsa--gfx950"
.text
.globl {n}
.p2align 8
.type {n},@function
{n}:
{a.text()}
L_code_end:
.section .rodata,"a"
.p2align 6
.amdhsa_kernel {n}
  .amdhsa_next_free_vgpr 256
  .amdhsa_next_free_sgpr 102
  .amdhsa_accum_offset 256
  .amdhsa_group_segment_fixed_size 0
  .amdhsa_kernarg_size 104
  .amdhsa_user_sgpr_count 2
  .amdhsa_user_sgpr_kernarg_segment_ptr 1
  .amdhsa_system_sgpr_workgroup_id_x 1
.end_amdhsa_kernel
"""

if __name__ == "__main__":
    cfg = Cfg()
    for kv in sys.argv[2:]:
        k, v = kv.split("=")
        cur = getattr(cfg, k)
        setattr(cfg, k, (v == "1") if isinstance(cur, bool) else int(v) if isinstance(cur, int) else v.replace("_", " "))
    open(sys.argv[1], "w").write(build(cfg))
```

```python
import sys, struct
from asm import *

NAME = "concat_heads__gqa_block_cached__mha_block_cached__near_ridge"
SL = 40960
KSTR, VSTR = 4112, 4128
KUNIT, VUNIT = 1024, 1024
KBASE = 0
VBASE_L = 12*KSTR
WS_O = 0
WS_FLAG1 = 64 << 20
WS_FLAG2 = 65 << 20
WS_PROBE = 68 << 20
WS_PART = 32 << 20
WS_STAMP = 72 << 20
WS_BYTES = 80 << 20
SC = 0.08838834764831845 * 1.4426950408889634
SPIN_MAX = 1 << 17
def f2u(x): return struct.unpack("<I", struct.pack("<f", x))[0]

S_X, S_K, S_V, S_WQ, S_WO, S_OUT, S_WS, S_DBG = 36, 40, 44, 48, 52, 56, 60, 64
S_BR, S_KQ, S_HL, S_BG, S_W, S_NT, S_E = 68, 69, 70, 71, 72, 98, 99

class Cfg:
    stamps = False; x_clk = False; lst = 0
    ld_x = ""; ld_wq = ""; ld_kv = "nt"; ld_wo = ""; st_out = ""
    skew = 3; prio = 0; lcap = 8; barpos = 3
    el = 2; pollpos = 4; ctouch = 3; e_wo = 1; l_wo = 1; prog = 1; touch = 1; tpos = 5; wo2 = 1; flagpos = 1; e_vpos = 4; l_kpos = 2; f2 = 1; c_kpos = 5; c_tpos = 3; swap = 1; own = 1; warmf = 1; p2st = 0; fbar = 1; wo0late = 0; x_enc = -1; x_amp = 4; dbgwg = 0; att = 1; r1first = 1; epoll = 0; cfix = -1; nprobe = 1; split = 0; fb = 9; x_pace = 0; cls = '44,55,66,66'; v7 = 4; v8 = 12; x_burn = 0; x_map = 0; bal = 0; two = 0; reord = 0; fa = 8; serp = 1; pp = 0; tlb = 0; sw = 0; kearly = 1; pa = 14; pac = 21; rot = 0; pb = 48

NST = 16
def streg(i): return 4 if i == 0 else 8 + 2*(i-1) if i <= 13 else {14: 34, 15: 100}[i]
def stamp(a, cfg, i):
    if cfg.stamps:
        r = streg(i)
        a.raw(f"    {'s_memtime' if cfg.x_clk else 's_memrealtime'} s[{r}:{r+1}]"); a.pos += 1
def stamp_out(a, cfg):
    if not cfg.stamps: return
    if cfg.x_enc >= 0:
        a.raw("    s_waitcnt lgkmcnt(0)")
        a.s("s_lshl_b32 s3, s2, 3")
        a.s(f"s_add_u32 s3, s3, s{S_W}")
        a.s(f"s_cmp_lg_u32 s3, {cfg.dbgwg*8}")
        a.s("s_cbranch_scc1 L_end")
        a.s(f"s_sub_u32 s76, s{streg(cfg.x_enc)}, s4")
        a.s(f"s_mul_i32 s76, s76, {cfg.x_amp}")
        a.s("s_add_u32 s76, s76, 5000")
        a.label("L_hold")
        a.raw("    s_memrealtime s[78:79]")
        a.raw("    s_waitcnt lgkmcnt(0)")
        a.s("s_sub_u32 s77, s78, s4")
        a.s("s_cmp_lt_u32 s77, s76")
        a.s("s_cbranch_scc1 L_hold")
        return
    a.raw("    s_waitcnt lgkmcnt(0)")
    a.s("s_mov_b64 exec, 1")
    a.s("s_lshl_b32 s3, s2, 3")
    a.s(f"s_add_u32 s3, s3, s{S_W}")
    a.s("s_lshl_b32 s3, s3, 6")
    a.s(f"s_add_u32 s3, s3, {WS_STAMP}")
    a.v("v_mov_b32 v1, 0")
    for i in range(NST):
        a.v(f"v_mov_b32 v2, s{streg(i)}")
        a.bstore(2, 1, 1, S_WS, "s3", off=4*i)
        a.nop(2)

def srd(a, base, lo, hi, size):
    a.s(f"s_mov_b32 s{base}, s{lo}")
    a.s(f"s_mov_b32 s{base+1}, s{hi}")
    a.s(f"s_mov_b32 s{base+2}, {size}")
    a.s(f"s_mov_b32 s{base+3}, 0x20000")

BAL = [0]
def prologue(a, cfg, endlabel):
    a.s("s_cmp_ge_u32 s2, 256")
    a.s(f"s_cbranch_scc1 {endlabel}")
    a.raw("    s_load_dwordx16 s[8:23], s[0:1], 0")
    a.raw("    s_load_dwordx8 s[24:31], s[0:1], 64")
    a.raw("    s_load_dwordx2 s[32:33], s[0:1], 96")
    a.v("v_and_b32 v1, 63, v0")
    a.v("v_lshrrev_b32 v15, 6, v0")
    BAL[0] = cfg.bal
    if cfg.bal:
        a.s(f"s_bfe_u32 s{S_KQ}, s2, 0x10002")
        a.s(f"s_lshl_b32 s{S_KQ}, s{S_KQ}, 1")
        a.s(f"s_and_b32 s{S_BR}, s2, 1")
        a.s(f"s_or_b32 s{S_KQ}, s{S_KQ}, s{S_BR}")
        a.s(f"s_bfe_u32 s{S_BR}, s2, 0x10001")
    else:
        a.s(f"s_and_b32 s{S_KQ}, s2, 3")
        a.s(f"s_bfe_u32 s{S_BR}, s2, 0x10002")
    if cfg.swap: a.s(f"s_xor_b32 s{S_BR}, s{S_BR}, 1")
    a.s(f"s_bfe_u32 s{S_HL}, s2, 0x30003")
    a.s(f"s_lshr_b32 s{S_BG}, s2, 6")
    a.s(f"s_and_b32 s{S_NT}, s{S_HL}, 3")
    a.v(f"v_readfirstlane_b32 s{S_W}, v15")
    if cfg.el:
        a.s(f"s_lshr_b32 s{S_E}, s{S_HL}, 2")
        a.s(f"s_xor_b32 s{S_E}, s{S_E}, s{S_BG}")
        a.s(f"s_and_b32 s{S_E}, s{S_E}, 1")
        a.s(f"s_and_b32 s3, s{S_BG}, 2")
        a.s(f"s_or_b32 s3, s3, s{S_E}")
        if cfg.el == 2: a.s(f"s_mov_b32 s{S_E}, 0")
    else:
        a.s(f"s_mov_b32 s{S_E}, 0")

def build_srds(a, keys):
    a.raw("    s_waitcnt lgkmcnt(0)")
    a.s(f"s_cmp_eq_u32 s{S_BR}, 0")
    for (dst, pa, pb, key) in ((S_WQ, 14, 24, 'wq'), (S_X, 8, 18, 'x'), (S_K, 10, 20, 'k'), (S_V, 12, 22, 'v'), (S_WO, 16, 26, 'wo')):
        if key not in keys: continue
        a.s(f"s_cselect_b64 s[{dst}:{dst+1}], s[{pa}:{pa+1}], s[{pb}:{pb+1}]")
        if key in ('k', 'v'):
            a.s(f"s_mov_b32 s{dst+2}, 6291456")
            a.s(f"s_cselect_b32 s{dst+2}, 3145728, s{dst+2}")
        else:
            a.s(f"s_mov_b32 s{dst+2}, {884736 if key == 'x' else 4718592}")
        a.s(f"s_mov_b32 s{dst+3}, 0x20000")
    if 'o' in keys:
        srd(a, S_OUT, 28, 29, 1769472)
        srd(a, S_DBG, 30, 31, 256)
        srd(a, S_WS, 32, 33, WS_BYTES)

ROT = [0]
def head_order(a, p, sd):
    if p == 0: a.s(f"s_mov_b32 s{sd}, s{S_NT}")
    elif ROT[0]:
        a.s(f"s_add_u32 s{sd}, s{S_NT}, {p}"); a.s(f"s_and_b32 s{sd}, s{sd}, 3")
    else:
        a.s(f"s_cmp_le_u32 s{S_NT}, {p-1}"); a.s(f"s_cselect_b32 s{sd}, {p}, {p-1}")

_lbl = [0]
def newlabel(p):
    _lbl[0] += 1
    return f"L{p}_{_lbl[0]}"

PP = [0]
def poll_flags(a, vdata, vnonce, voff, soff, mask, stmp, off=0, v2=None):
    L = newlabel("poll"); X = newlabel("pollx")
    a.s(f"s_mov_b32 exec_lo, {mask}")
    a.s("s_mov_b32 exec_hi, 0")
    a.s(f"s_mov_b32 s{stmp}, 0")
    if PP[0] and v2 is not None:
        o = f" offset:{off}" if off else ""
        ld = lambda v: a.raw(f"    buffer_load_dwordx2 v[{v}:{v+1}], v{voff}, s[{S_WS}:{S_WS+3}], s{soff} offen{o} sc1")
        a.waitcnt(vm=0) if False else None
        ld(vdata)
        a.raw(f"    s_sleep {PP[0]}")
        a.label(L)
        ld(v2)
        a.s(f"s_add_u32 s{stmp}, s{stmp}, 1")
        a.raw("    s_waitcnt vmcnt(1)")
        a.raw(f"    v_cmp_ne_u64 vcc, v[{vdata}:{vdata+1}], v[{vnonce}:{vnonce+1}]")
        a.s(f"s_cbranch_vccz {X}")
        ld(vdata)
        a.s(f"s_cmp_gt_u32 s{stmp}, {SPIN_MAX}")
        a.raw("    s_waitcnt vmcnt(1)")
        a.s(f"s_cbranch_scc1 {X}")
        a.raw(f"    v_cmp_ne_u64 vcc, v[{v2}:{v2+1}], v[{vnonce}:{vnonce+1}]")
        a.s(f"s_cbranch_vccnz {L}")
        a.label(X)
        a.vm = [({vdata, vdata+1, v2, v2+1}, "poll")]
        a.s("s_mov_b64 exec, -1")
        return
    a.label(L)
    a.bload(vdata, 2, voff, S_WS, f"s{soff}", off=off, flags="sc1")
    a.s(f"s_add_u32 s{stmp}, s{stmp}, 1")
    a.s(f"s_cmp_gt_u32 s{stmp}, {SPIN_MAX}")
    a.waitcnt(vm=0)
    a.s(f"s_cbranch_scc1 {X}")
    a.v(f"v_cmp_ne_u64 vcc, v[{vdata}:{vdata+1}], v[{vnonce}:{vnonce+1}]")
    a.s(f"s_cbranch_vccnz {L}")
    a.label(X)
    a.s("s_mov_b64 exec, -1")

NVOTE = 32
CAP = 4095
def nonce_load(a, vn, vzero):
    a.bload(vn, 4, vzero, S_DBG, "0", flags="sc1", tag="nonce")
def nonce_check(a, vn, vzero):
    Lok = newlabel("nok"); Lsp = newlabel("nsp")
    a.s("s_mov_b32 s77, 0")
    a.v(f"v_readfirstlane_b32 s76, v{vn}")
    a.v(f"v_readfirstlane_b32 s75, v{vn+2}")
    a.v(f"v_readfirstlane_b32 s3, v{vn+3}")
    a.label(Lsp)
    a.s("s_cmp_lg_u32 s76, 0")
    a.s("s_cselect_b32 s76, s75, 0")
    a.s(f"s_cmp_ge_u32 s3, {8 << 16}")
    a.s("s_cselect_b32 s76, s76, 0")
    a.s(f"s_cmp_ge_u32 s76, {NVOTE << 24}")
    a.s(f"s_cbranch_scc1 {Lok}")
    a.s("s_add_u32 s77, s77, 1")
    a.s(f"s_cmp_gt_u32 s77, {SPIN_MAX}")
    a.s(f"s_cbranch_scc1 {Lok}")
    a.raw(f"    buffer_load_dwordx4 v[{vn}:{vn+3}], v{vzero}, s[{S_DBG}:{S_DBG+3}], 0 offen sc1")
    a.raw("    s_waitcnt vmcnt(0)")
    a.raw(f"    v_readfirstlane_b32 s76, v{vn}")
    a.raw(f"    v_readfirstlane_b32 s75, v{vn+2}")
    a.raw(f"    v_readfirstlane_b32 s3, v{vn+3}")
    a.raw("    s_nop 0")
    a.s(f"s_branch {Lsp}")
    a.label(Lok)
    a.v(f"v_mov_b32 v8, v{vn}")
    a.v(f"v_mov_b32 v9, v{vn+1}")
    a.s(f"s_cmp_gt_u32 s76, {(NVOTE << 24) + NVOTE*CAP}")
    a.s("s_cselect_b32 s76, 0xff, 0")
    a.s("s_xor_b32 s75, s3, s76")
    if BAL[0]:
        a.s("s_and_b32 s76, s2, 2")
        a.s("s_lshr_b32 s75, s75, s76")
        a.s("s_lshr_b32 s76, s75, 2")
        a.s("s_and_b32 s76, s76, 12")
        a.s("s_and_b32 s75, s75, 3")
        a.s("s_or_b32 s75, s75, s76")
    else:
        a.s("s_and_b32 s76, s2, 4")
        a.s("s_lshr_b32 s75, s75, s76")
    a.s(f"s_lshr_b32 s76, s75, s{S_KQ}")
    a.s("s_and_b32 s76, s76, 1")
    a.s("s_lshl_b32 s76, s76, 13")

def bsel(a, sd):
    a.s(f"s_lshr_b32 s76, s{sd}, 8")
    a.s("s_and_b32 s76, s76, 8192")
    a.s(f"s_or_b32 s{sd}, s{sd}, s76")

def apply_c(a, regs):
    for r in regs: a.s(f"s_xor_b32 s{r}, s{r}, s76")

def unit_base(a, sd, sb_w, shead):
    a.s(f"s_lshl_b32 s76, s{S_BR}, 2")
    a.s(f"s_add_u32 s76, s76, s{S_BG}")
    a.s("s_lshl_b32 s76, s76, 2")
    a.s(f"s_add_u32 s76, s76, s{sb_w}")
    a.s("s_lshl_b32 s76, s76, 5")
    a.s(f"s_add_u32 s76, s76, s{shead}")
    a.s(f"s_lshl_b32 s{sd}, s76, 15")
    bsel(a, sd)
    a.s(f"s_and_b32 s76, s{sb_w}, 1")
    a.s("s_lshl_b32 s40, s76, 12")
    a.s(f"s_and_b32 s76, s{sb_w}, 2")
    a.s("s_lshl_b32 s76, s76, 13")
    a.s("s_or_b32 s40, s40, s76")
    a.s("s_xor_b32 s41, s40, 4096")
    a.s("s_xor_b32 s42, s40, 16384")

def tail_ssetup(a, sw, half):
    a.s(f"s_lshr_b32 s90, s{S_HL}, 2")
    a.s(f"s_lshl_b32 s76, s{S_KQ}, 1")
    a.s("s_add_u32 s90, s90, s76")
    a.s(f"s_add_u32 s89, s90, {8*half}")
    a.s(f"s_lshl_b32 s91, s{S_BR}, 2")
    a.s(f"s_add_u32 s91, s91, s{S_BG}")
    a.s("s_lshl_b32 s91, s91, 2")
    a.s(f"s_add_u32 s91, s91, s{S_NT}")
    a.s("s_lshl_b32 s91, s91, 2")
    a.s(f"s_add_u32 s91, s91, s{sw}")
    a.s("s_lshr_b32 s76, s91, 3")
    a.s("s_lshl_b32 s76, s76, 14")
    a.s("s_and_b32 s77, s91, 7")
    a.s("s_lshl_b32 s77, s77, 10")
    a.s("s_add_u32 s76, s76, s77")
    a.s(f"s_add_u32 s96, s76, {WS_FLAG2}")
    a.s("s_lshl_b32 s92, s91, 18")
    a.s(f"s_add_u32 s92, s92, {WS_PART}")
    bsel(a, 92)
    a.s("s_lshl_b32 s76, s89, 14")
    a.s("s_add_u32 s88, s92, s76")
    a.s("s_lshl_b32 s76, s90, 10")
    a.s("s_add_u32 s92, s92, s76")
    a.s("s_mul_i32 s76, s89, 43")
    a.s("s_lshr_b32 s76, s76, 7")
    a.s("s_mul_i32 s77, s76, 3")
    a.s("s_sub_u32 s77, s89, s77")
    a.s("s_cmp_eq_u32 s89, 13")
    a.s("s_cselect_b32 s77, 2, s77")
    a.s("s_lshl_b32 s87, s76, 6")
    a.s(f"s_mul_i32 s77, s77, {16*2304}")
    a.s("s_add_u32 s87, s87, s77")
    a.s(f"s_lshl_b32 s77, s{S_BG}, 2")
    a.s(f"s_add_u32 s77, s77, s{sw}")
    a.s(f"s_mul_i32 s77, s77, {48*2304}")
    a.s("s_add_u32 s87, s87, s77")
    a.s(f"s_mul_i32 s77, s{S_BR}, 1152")
    a.s("s_add_u32 s87, s87, s77")
    a.s(f"s_mul_i32 s77, s{S_NT}, 288")
    a.s("s_add_u32 s87, s87, s77")
    a.s("s_cmp_lt_u32 s89, 12")
    a.s(f"s_cselect_b32 s74, 32, {16*2304}")
    a.s("s_cmp_lt_u32 s89, 13")
    a.s("s_cselect_b32 s78, -1, 0xffff")
    a.s("s_mov_b32 s79, s78")
    for u in range(16): assert (u*43) >> 7 == u//3

def tail_vsetup(a, sw=S_W, half=0):
    return [lambda t=t: a.v(t) for t in (
        "v_and_b32 v4, 15, v1", "v_mul_u32_u24 v4, 2304, v4", "v_bfe_u32 v5, v1, 4, 1", "v_mad_u32_u24 v4, v5, s74, v4",
        "v_lshrrev_b32 v5, 5, v1", "v_lshl_add_u32 v4, v5, 4, v4", "v_lshlrev_b32 v3, 7, v1", f"v_lshlrev_b32 v2, 4, v1", f"v_lshl_add_u32 v2, s{sw}, 10, v2", f"v_add_u32 v2, {3*SL + half*4096}, v2")]

def loader(a, cfg):
    a.s(f"s_sub_u32 s73, s{S_W}, 4")
    a.s("s_and_b32 s74, s73, 1")
    a.s("s_lshr_b32 s75, s73, 1")
    a.s(f"s_lshl_b32 s95, s{S_KQ}, 3")
    a.s(f"s_add_u32 s95, s95, s{S_HL}")
    a.v("v_lshrrev_b32 v4, 4, v1")
    a.s("s_lshl_b32 s76, s75, 2")
    a.v("v_or_b32 v5, s76, v4")
    a.v("v_bfe_u32 v6, v1, 1, 3")
    a.v("v_xor_b32 v6, v6, v5")
    a.v("v_lshlrev_b32 v6, 5, v6")
    a.v("v_and_b32 v7, 1, v1")
    a.v("v_lshl_add_u32 v6, v7, 4, v6")
    a.v("v_lshl_add_u32 v2, v4, 13, v6")
    a.s("s_lshl_b32 s76, s73, 15")
    a.s("s_lshl_b32 s77, s95, 8")
    a.s("s_add_u32 s76, s76, s77")
    a.v("v_add_u32 v2, s76, v2")
    a.v("v_lshlrev_b32 v5, 2, v4")
    a.v("v_and_b32 v6, 15, v1")
    a.v("v_xor_b32 v6, v6, v5")
    a.v("v_lshlrev_b32 v6, 4, v6")
    a.v("v_lshl_add_u32 v10, v4, 8, v6")
    a.s("s_lshl_b32 s76, s74, 2")
    a.v("v_or_b32 v5, s76, v4")
    a.v("v_lshrrev_b32 v4, 3, v1")
    a.v("v_mul_u32_u24 v4, 1152, v4")
    a.v("v_and_b32 v6, 7, v1")
    a.v("v_xor_b32 v6, v6, v5")
    a.v("v_lshl_add_u32 v3, v6, 4, v4")
    a.s(f"s_mul_i32 s76, s{S_BG}, {192*1152}")
    a.s(f"s_mul_i32 s77, s74, {8*1152}")
    a.s("s_add_u32 s76, s76, s77")
    a.s(f"s_mul_i32 s77, s75, {96*1152}")
    a.s("s_add_u32 s76, s76, s77")
    a.v("v_add_u32 v3, s76, v3")
    a.s("s_lshl_b32 s78, s73, 10")
    a.s("s_mul_i32 s79, s75, 12288")
    a.s("s_lshl_b32 s77, s74, 10")
    a.s("s_add_u32 s79, s79, s77")
    a.s("s_add_u32 s79, s79, 16384")
    a.s(f"s_lshl_b32 s76, s{S_BG}, 2")
    a.s("s_add_u32 s76, s76, s73")
    a.s("s_lshl_b32 s76, s76, 5")
    a.s("s_add_u32 s76, s76, s95")
    a.s(f"s_xor_b32 s77, s{S_BR}, 1")
    a.s("s_lshr_b32 s76, s76, s77")
    a.s("s_mul_i32 s80, s76, 12288")
    a.s(f"s_mul_i32 s91, s73, {KUNIT}")
    a.s(f"s_add_u32 s91, s91, {KBASE}")
    a.s(f"s_mul_i32 s92, s73, {VUNIT}")
    if cfg.skew == 3:
        a.s(f"s_add_u32 s84, s{S_HL}, s{S_BG}")
        a.s("s_mul_i32 s85, s84, 43")
        a.s("s_lshr_b32 s85, s85, 7")
        a.s("s_mul_i32 s85, s85, 3")
        a.s("s_sub_u32 s84, s84, s85")
        a.s("s_mul_i32 s84, s84, 3")
    elif cfg.skew == 4:
        a.s(f"s_add_u32 s84, s{S_HL}, s{S_BG}")
        a.s("s_and_b32 s84, s84, 3")
        a.s("s_lshl_b32 s84, s84, 1")
    elif cfg.skew == 2:
        a.s(f"s_lshr_b32 s84, s{S_BG}, 1")
        a.s(f"s_xor_b32 s84, s84, s{S_HL}")
        a.s("s_and_b32 s84, s84, 1")
        a.s("s_lshl_b32 s84, s84, 2")
    elif cfg.skew == 9:
        a.s(f"s_lshl_b32 s84, s{S_BG}, 1")
        a.s(f"s_add_u32 s84, s84, s{S_HL}")
        a.s("s_sub_u32 s85, s84, 9")
        a.s("s_cmp_ge_u32 s84, 9")
        a.s("s_cselect_b32 s84, s85, s84")
    else:
        a.s("s_mov_b32 s84, 0")
    build_srds(a, ('x', 'wq', 'k'))
    def stage(s):
        slot = (1 + s % 3) * SL
        a.s("s_lshl_b32 s85, s84, 7")
        a.s("s_lshl_b32 s86, s84, 19")
        for i in range(4):
            a.s(f"s_add_u32 m0, s78, {slot + i*4096}")
            a.s(f"s_add_u32 s82, s86, {16*i*8192}")
            a.dma(2, S_WQ, "s82", cfg.ld_wq, tag=("st", s))
        for z in range(6):
            a.s(f"s_add_u32 m0, s79, {slot + z*2048}")
            a.s(f"s_add_u32 s82, s85, {z*16*1152}")
            a.dma(3, S_X, "s82", cfg.ld_x, tag=("st", s))
        a.s("s_add_u32 s84, s84, 1")
        a.s("s_cmp_eq_u32 s84, 9")
        a.s("s_cselect_b32 s84, 0, s84")
    def kvpart(g, srdb, sm0, stride, lo, hi, base=0):
        for i in range(lo, hi):
            a.s(f"s_add_u32 m0, s{sm0}, {base + i*stride}")
            a.s(f"s_add_u32 s82, s80, {i*1024}")
            a.dma(10, srdb, "s82", cfg.ld_kv, tag=("st", g))
    def codetouch():
        a.s("s_mov_b64 exec, 7")
        a.raw("    global_load_dword v24, v25, s[6:7]"); a.pos += 1
        a.vm.append((None, "touch"))
        a.s("s_mov_b64 exec, -1")
    def setup2():
        if cfg.ctouch:
            L = newlabel("pc")
            a.raw("    s_getpc_b64 s[6:7]")
            a.label(L)
            a.s(f"s_sub_u32 s6, s6, {L}-{NAME}_kernel")
            a.s("s_subb_u32 s7, s7, 0")
            a.s("s_lshr_b32 s76, s2, 3")
            a.s("s_lshl_b32 s76, s76, 2")
            a.s("s_add_u32 s76, s76, s73")
            a.s("s_mul_i32 s76, s76, 384")
            a.v("v_lshlrev_b32 v25, 7, v1")
            a.v("v_add_u32 v25, s76, v25")
            a.s("s_mov_b32 s77, L_code_end-" + NAME + "_kernel-4")
            a.v("v_min_u32 v25, s77, v25")
            codetouch()
        build_srds(a, ('v', 'wo', 'o'))
        stamp(a, cfg, 1)
        a.v("v_mov_b32 v16, 0")
        L = newlabel("nw")
        a.s("s_add_u32 s76, s2, s73")
        a.s("s_cmp_lg_u32 s76, 0")
        a.s(f"s_cbranch_scc1 {L}")
        a.raw("    s_memrealtime s[88:89]")
        a.raw("    s_waitcnt lgkmcnt(0)")
        a.s("s_or_b32 s88, s88, 1")
        a.v("v_mov_b32 v18, s88")
        a.v("v_mov_b32 v19, s89")
        a.s("s_mov_b64 exec, 1")
        a.raw(f"    buffer_store_dwordx2 v[18:19], v16, s[{S_DBG}:{S_DBG+3}], 0 offen sc1")
        a.s("s_mov_b64 exec, -1")
        a.label(L)
    def setup3():
        a.s("s_and_b32 s76, s95, 0xfc")
        a.s("s_lshl_b32 s76, s76, 7")
        a.s("s_lshl_b32 s77, s73, 5")
        a.s("s_add_u32 s76, s76, s77")
        a.s("s_mul_i32 s76, s76, 1152")
        a.s(f"s_mul_i32 s77, s{S_NT}, 288")
        a.s("s_and_b32 s77, s77, 0xffffffc0")
        a.s("s_add_u32 s76, s76, s77")
        for y in range(5):
            a.v(f"v_add_u32 v4, {y*64}, v1")
            a.v("v_mul_u32_u24 v5, 3277, v4")
            a.v("v_lshrrev_b32 v5, 16, v5")
            a.v("v_mul_u32_u24 v6, 20, v5")
            a.v("v_sub_u32 v6, v4, v6")
            a.v("v_bfe_u32 v7, v5, 2, 1")
            a.v("v_lshlrev_b32 v7, 1, v7")
            a.v("v_xor_b32 v6, v6, v7")
            a.v("v_mul_u32_u24 v5, 1152, v5")
            a.v("v_lshl_add_u32 v5, v6, 4, v5")
            a.v(f"v_add_u32 v{26+y}, s76, v5")
        a.s("s_mul_i32 s93, s73, 10240")
        a.v("v_lshlrev_b32 v22, 7, v1")
        if cfg.touch >= 2:
            a.s(f"s_lshl_b32 s76, s{S_BG}, 2")
            a.s(f"s_add_u32 s76, s76, s{S_NT}")
        else:
            a.s("s_lshr_b32 s76, s2, 3")
        a.s("s_lshl_b32 s76, s76, 2")
        a.s("s_add_u32 s76, s76, s73")
        a.s(f"s_mul_i32 s76, s76, {(144 if cfg.touch >= 2 else 72)*128}")
        a.s(f"s_mul_i32 s94, s{S_KQ}, {1024*1152}")
        a.s("s_add_u32 s94, s94, s76")
        if cfg.tlb > 2:
            a.s("s_mov_b64 exec, 1")
            a.bload(23, 1, 16, S_K, "s80", flags="nt", tag="touch"); a.vm[-1] = (None, "touch")
            a.bload(23, 1, 16, S_V, "s80", flags="nt", tag="touch"); a.vm[-1] = (None, "touch")
            a.bload(23, 1, 26, S_WO, "0", tag="touch"); a.vm[-1] = (None, "touch")
            a.s("s_mov_b64 exec, -1")
    def touches():
        a.s("s_mov_b32 exec_lo, -1"); a.s("s_mov_b32 exec_hi, 15")
        for i in range(4 if cfg.touch >= 2 else 2):
            a.bload(23, 1, 22, S_WO, "s94", tag="touch"); a.vm[-1] = (None, "touch")
            a.s(f"s_add_u32 s94, s94, {36*128}")
        a.s("s_mov_b64 exec, -1")
    def wostage(p, start):
        head_order(a, p, 83)
        a.s(f"s_mul_i32 s83, s83, {128*1152}")
        for z2 in range(2):
            a.s(f"s_add_u32 s82, s83, {z2*16*1152}")
            for y in range(5):
                a.s(f"s_add_u32 m0, s93, {((start + p) % 4)*SL + z2*5120 + y*1024}")
                a.dma(26+y, S_WO, "s82", cfg.ld_wo, tag=("st", 11+p))
    cnt = [0]
    def st(i):
        if not cfg.lst: stamp(a, cfg, i)
    W = lambda g: a.wait_vm_tag(("st", g))
    def B():
        k = cnt[0] - cfg.lst
        if cfg.lst and 0 <= k < 5: stamp(a, cfg, 1 + 2*k)
        a.barrier()
        if cfg.lst and 0 <= k < 5: stamp(a, cfg, 2 + 2*k)
        cnt[0] += 1
    start = 3; vb = VBASE_L
    stage(0); setup2(); stage(1); setup3(); st(2)
    classes = [(int(c[0]), int(c[1])) for c in cfg.cls.split(",")]
    g0 = min(min(c) for c in classes)
    def middle(lo, hi, mid, tpos, nxt):
        for g in range(lo, hi):
            W(g)
            if g == 0: st(3)
            if g == 3: st(4)
            B()
            if g == 4 and cfg.ctouch > 1: codetouch()
            if g in (mid, tpos):
                while nxt <= (g + 1 if g < 6 else 8): stage(nxt); nxt += 1
                if g == mid: kvpart(9, S_K, 91, KSTR, 0, 9)
                if g == tpos: touches()
                continue
            while nxt <= g + 2: stage(nxt); nxt += 1
        return nxt
    n0 = 2
    if cfg.sw:
        stage(2); n0 = 3
        W(cfg.sw)
    nxt = middle(0, g0, -1, -1, n0)
    saved = list(a.vm); c0 = cnt[0]
    nc = len(classes)
    if nc == 2: a.s("s_and_b32 s3, s3, 1")
    for k in range(1, nc):
        a.s(f"s_cmp_eq_u32 s3, {k}")
        a.s(f"s_cbranch_scc1 L_cls{k}")
    for k, (kp_, tp_) in enumerate(classes):
        if k:
            a.label(f"L_cls{k}")
            a.hist = []; a.vm = list(saved); cnt[0] = c0
        assert middle(g0, 7, kp_, tp_, nxt) == 9
        W(7)
        B()
        kvpart(9, S_K, 91, KSTR, 9, 12)
        kvpart(10, S_V, 92, VSTR, 0, cfg.v7, vb)
        a.wait_vm_tag(("st", 8))
        if cfg.kearly: a.waitcnt(vm=3 + cfg.v7)
        else: a.vm = a.vm[-(3 + cfg.v7):]
        if k < nc - 1: a.s("s_branch L_join")
    a.label("L_join")
    st(5); B()
    kvpart(10, S_V, 92, VSTR, cfg.v7, cfg.v8, vb)
    W(9); st(6); B()
    kvpart(10, S_V, 92, VSTR, cfg.v8, 12, vb)
    wostage(0, start)
    W(10); st(7); B()
    if cfg.l_wo > 1: wostage(1, start)
    W(11); st(8); B()
    if cfg.ctouch > 1: codetouch()
    if cfg.fbar: B()
    if cfg.l_wo < 2: wostage(1, start)
    if cfg.wo2 > 1: wostage(2, start)
    if cfg.wo2 > 2: wostage(3, start)
    W(12); st(9); B()
    if cfg.wo2 < 3: wostage(2 if cfg.wo2 == 1 else 3, start)
    W(13); B()
    if cfg.wo2 == 1: wostage(3, start)
    nonce_load(a, 32, 16)
    if cfg.ctouch > 2: codetouch()
    W(14); st(10); B()
    a.v("v_lshlrev_b32 v14, 4, v1")
    a.v("v_lshlrev_b32 v11, 3, v1")
    tail_ssetup(a, 73, 0 if cfg.two else 1)
    nonce_check(a, 32, 16)
    apply_c(a, (88,))
    if cfg.two:
        a.s("s_add_u32 s96, s96, s76")
        a.s("s_lshl_b32 s76, s90, 7")
        a.s("s_add_u32 s96, s96, s76")
        a.s("s_lshl_b32 s97, 1, s90")
        a.s("s_xor_b32 s97, s97, 0xff")
    for f in tail_vsetup(a, 73, 0 if cfg.two else 1): f()
    if cfg.two: a.barrier()
    a.s("s_branch L_tail")

def xlane_reduce(a, op, regs, tmps):
    for sw in ("v_permlane32_swap_b32", "v_permlane16_swap_b32"):
        for r, t in zip(regs, tmps): a.v(f"v_mov_b32 v{t}, v{r}")
        for r, t in zip(regs, tmps): a.v(f"{sw} v{r}, v{t}")
        for r, t in zip(regs, tmps): a.v(f"{op} v{r}, v{r}, v{t}")

class Fill:
    def __init__(self): self.q = []
    def add(self, *fs): self.q.extend(fs)
    def pop(self, n):
        for _ in range(n):
            if self.q: self.q.pop(0)()
    def drain(self): self.pop(len(self.q))

def compute(a, cfg):
    ACC = 16; WF = 112; XF = 144; KF = 168; AS = 216; VF = 112
    accQ = lambda t, mt: ACC + (t*3 + mt)*4
    Wf = lambda t: WF + 4*t
    Xf = lambda par, mt: XF + par*12 + mt*4
    Kf = lambda kt, kp: KF + (kt*4 + kp)*4
    accS = lambda kt, mt: AS + (kt*3 + mt)*4
    Vf = lambda t: VF + 6*t
    accO = lambda mt, t: ACC + (mt*8 + t)*4
    aW = lambda st_, t: 216 + st_*10 + t
    aX = lambda st_, ks: 216 + st_*10 + 8 + ks
    aK = lambda kp: 252 + kp
    aV = lambda th: 2 + th
    R = [13, 15]
    ofA = lambda kp, mt: 168 + (kp*3 + mt)*4
    def ofB(kp, mt):
        f = kp*3 + mt
        return 216 + f*4 if f < 10 else 160 + (f - 10)*4
    of = lambda buf, kp, mt: ofB(kp, mt) if buf else ofA(kp, mt)
    acc2 = lambda mt, t: 16 + (mt*9 + t)*4
    Wf2 = lambda i: 124 + 4*i

    if cfg.prio: a.s(f"s_setprio {cfg.prio}")
    a.s("s_and_b32 s43, s2, 0x98")
    a.s(f"s_or_b32 s43, s43, s{S_W}")
    a.s("s_cmp_lg_u32 s43, 0")
    a.s("s_cbranch_scc1 L_np1")
    a.raw("    s_getreg_b32 s54, hwreg(HW_REG_XCC_ID, 2, 1)")
    a.s("s_lshr_b32 s46, s2, 6")
    a.s("s_lshl_b32 s46, s46, 3")
    a.s("s_and_b32 s47, s2, 7")
    a.s("s_add_u32 s46, s46, s47")
    a.s("s_mul_i32 s46, s46, 448")
    a.s("s_and_b32 s47, s2, 32")
    a.s("s_lshl_b32 s47, s47, 8")
    a.s("s_add_u32 s46, s46, s47")
    a.s(f"s_add_u32 s46, s46, {WS_PROBE}")
    a.raw("    s_waitcnt lgkmcnt(0)")
    a.s("s_add_u32 s44, s32, s46")
    a.s("s_addc_u32 s45, s33, 0")
    for rep in range(cfg.nprobe):
        a.raw("    s_memtime s[48:49]")
        a.raw(f"    s_load_dword s46, s[44:45], {rep*16384}")
        a.raw("    s_waitcnt lgkmcnt(0)")
        a.raw("    s_memtime s[50:51]")
        a.raw("    s_waitcnt lgkmcnt(0)")
    a.s("s_sub_u32 s50, s50, s48")
    a.s(f"s_min_u32 s50, s50, {CAP}")
    a.s("s_sub_u32 s51, 0, s50")
    a.s("s_lshr_b32 s47, s47, 13")
    a.s("s_cmp_eq_u32 s47, s54")
    a.s("s_cselect_b32 s50, s50, s51")
    a.s(f"s_add_u32 s50, s50, {(1 << 24) + CAP}")
    a.s("s_lshl_b32 s51, s54, s2")
    a.s(f"s_add_u32 s51, s51, {1 << 16}")
    a.s("s_cmp_lt_u32 s2, 8")
    a.s("s_cselect_b32 s51, s51, 0")
    a.label("L_np1")
    a.v("v_lshrrev_b32 v160, 4, v1")
    a.v("v_bfe_u32 v161, v1, 2, 2")
    a.v("v_and_b32 v162, 3, v1")
    a.v("v_and_b32 v163, 15, v1")
    a.v("v_and_b32 v165, 1, v160")
    a.s(f"s_mul_i32 s76, s{S_W}, {KUNIT}")
    a.s(f"s_mul_i32 s77, s{S_E}, {2*SL}")
    a.s("s_add_u32 s76, s76, s77")
    a.v(f"v_mul_u32_u24 v164, {KSTR}, v161")
    a.v("v_lshl_add_u32 v164, v162, 8, v164")
    a.v("v_lshl_add_u32 v164, v160, 3, v164")
    a.v("v_add_u32 v164, s76, v164")
    for kp in range(4):
        a.v(f"v_xor_b32 v167, {kp}, v162")
        a.v(f"v_lshl_add_u32 v{aK(kp)}, v167, 6, v164")
    a.v("v_lshl_add_u32 v164, v160, 3, v161")
    a.v("v_lshlrev_b32 v164, 8, v164")
    a.v("v_lshl_or_b32 v166, v165, 2, v161")
    a.v("v_lshl_add_u32 v164, v166, 5, v164")
    a.v("v_lshl_add_u32 v164, v162, 3, v164")
    a.v(f"v_add_u32 v{aW(0,0)}, {SL}, v164")
    for t in range(1, 8): a.v(f"v_xor_b32 v{aW(0,t)}, {32*t}, v{aW(0,0)}")
    a.v("v_lshrrev_b32 v164, 1, v163")
    a.v("v_xor_b32 v164, v164, v160")
    a.v("v_lshlrev_b32 v164, 4, v164")
    a.v("v_lshl_add_u32 v164, v163, 7, v164")
    a.s(f"s_mul_i32 s76, s{S_W}, 6144")
    a.s(f"s_add_u32 s76, s76, {16384 + SL}")
    a.v(f"v_add_u32 v{aX(0,0)}, s76, v164")
    a.v(f"v_xor_b32 v{aX(0,1)}, 64, v{aX(0,0)}")
    for i in range(10): a.v(f"v_add_u32 v{226+i}, {2*SL}, v{216+i}")
    a.s(f"s_mul_i32 s76, s{S_W}, {VUNIT}")
    a.s(f"s_cmp_eq_u32 s{S_E}, 1")
    a.s(f"s_cselect_b32 s77, 0, {VBASE_L}")
    a.s("s_add_u32 s76, s76, s77")
    a.v(f"v_mul_u32_u24 v164, {VSTR}, v160")
    a.v("v_lshl_add_u32 v164, v161, 8, v164")
    a.v("v_lshl_add_u32 v164, v162, 3, v164")
    a.v("v_add_u32 v164, s76, v164")
    for th in range(4):
        a.v(f"v_xor_b32 v167, {th}, v161")
        a.v(f"v_lshl_add_u32 v{aV(th)}, v167, 6, v164")
    a.v("v_lshl_add_u32 v164, v160, 2, v161")
    a.v("v_mul_u32_u24 v164, 320, v164")
    a.v("v_lshl_add_u32 v164, v162, 3, v164")
    a.s(f"s_cmp_eq_u32 s{S_E}, 1")
    a.s(f"s_mov_b32 s76, {3*SL}")
    a.s(f"s_cselect_b32 s76, {2*SL}, s76")
    a.s(f"s_mov_b32 s93, {SL}")
    a.s(f"s_cselect_b32 s93, s93, {(-3*SL) & 0xffffffff}")
    a.s(f"s_mov_b32 s94, {SL}")
    a.s(f"s_cselect_b32 s94, {(-3*SL) & 0xffffffff}, s94")
    a.s(f"s_mov_b32 s95, {SL}")
    a.v("v_add_u32 v164, s76, v164")
    a.s(f"s_and_b32 s77, s{S_NT}, 1")
    a.v("v_xor_b32 v167, s77, v165")
    a.v(f"v_lshl_add_u32 v{R[0]}, v167, 5, v164")
    a.s("s_add_u32 s77, s77, 1")
    a.v("v_xor_b32 v167, s77, v165")
    a.v(f"v_lshl_add_u32 v{R[1]}, v167, 5, v164")
    a.v("v_lshlrev_b32 v14, 4, v1")
    a.v("v_lshlrev_b32 v11, 3, v1")
    a.v("v_mov_b32 v10, 0")
    a.s(f"s_lshl_b32 s81, s{S_KQ}, 3")
    a.s(f"s_and_b32 s82, s{S_HL}, 4")
    a.s("s_add_u32 s81, s81, s82")
    unit_base(a, 80, S_W, 81)
    a.s(f"s_mov_b32 s83, {f2u(SC)}")
    a.s("s_and_b32 s76, s2, 7")
    a.s("s_lshr_b32 s77, s2, 5")
    a.s("s_lshl_b32 s77, s77, 3")
    a.s("s_or_b32 s76, s76, s77")
    a.s("s_lshl_b32 s76, s76, 2")
    a.s(f"s_add_u32 s76, s76, s{S_W}")
    a.s("s_lshr_b32 s77, s76, 6")
    a.s("s_lshl_b32 s77, s77, 14")
    a.s("s_and_b32 s76, s76, 63")
    a.s("s_lshl_b32 s76, s76, 7")
    a.s("s_add_u32 s76, s76, s77")
    a.s(f"s_add_u32 s84, s76, {WS_FLAG1}")
    a.s(f"s_lshl_b32 s85, 1, s{S_NT}")
    a.s("s_xor_b32 s86, s85, 15")
    tail_ssetup(a, S_W, 1 if cfg.two else 0)
    a.s("s_lshl_b32 s97, 1, s90")
    build_srds(a, ('o',))
    srd(a, S_X, 32, 33, 0)
    if cfg.warmf:
        a.v("v_mov_b32 v7, s84")
        a.s("s_xor_b32 s76, s84, 8192")
        a.raw("    v_writelane_b32 v7, s76, 1")
        a.s("s_lshl_b32 s76, s90, 7")
        a.s("s_add_u32 s76, s76, s96")
        a.raw("    v_writelane_b32 v7, s76, 2")
        a.s("s_xor_b32 s76, s76, 8192")
        a.raw("    v_writelane_b32 v7, s76, 3")
        if cfg.tlb:
            a.s("s_xor_b32 s76, s40, 20480")
            a.s("s_add_u32 s76, s76, s80")
            a.raw("    v_writelane_b32 v7, s76, 4")
            a.s(f"s_add_u32 s76, s92, {15*16384}")
            a.raw("    v_writelane_b32 v7, s76, 5")
        a.s(f"s_mov_b64 exec, {63 if cfg.tlb else 15}")
        a.bload(6, 1, 7, S_WS, "0", flags="sc1")
        if cfg.tlb > 1:
            a.s("s_mov_b64 exec, 1")
            a.bload(8, 1, 10, S_OUT, "s87", flags="nt")
        a.s("s_mov_b64 exec, -1")

    ver = {}
    def rdW(s, t, ks, h):
        def f():
            a.ds_read("ds_read_b64_tr_b16", Wf(t)+2*h, 2, aW((s % 3) >> 1, t), off=((s % 3) & 1)*SL + ks*8192 + h*1024); ver[("W", t, h)] = (s, ks)
        return f
    def rdX(s, mt, ks):
        def f():
            a.ds_read("ds_read_b128", Xf(ks, mt), 4, aX((s % 3) >> 1, ks), off=((s % 3) & 1)*SL + mt*2048); ver[("X", ks, mt)] = s
        return f
    def chk1(s, ks, t, mt):
        assert ver[("W", t, 0)] == (s, ks) and ver[("W", t, 1)] == (s, ks) and ver[("X", ks, mt)] == s, (s, ks, t, mt)
    def readK():
        for kp in range(4):
            for kt in range(3):
                for e in range(2): a.ds_read("ds_read_b64", Kf(kt, kp)+2*e, 2, aK(kp), off=kt*4*KSTR + 32*e)
    def rdK1(kt, kp, e):
        return lambda: a.ds_read("ds_read_b64", Kf(kt, kp)+2*e, 2, aK(kp), off=kt*4*KSTR + 32*e)
    def cvt(d, s0, s1):
        return lambda: a.v(f"v_cvt_pk_bf16_f32 v{d}, v{s0}, v{s1}")
    def cvtQ(kp):
        out = []
        for mt in range(3):
            r = accQ(2*kp, mt); s_ = accQ(2*kp+1, mt)
            out += [cvt(r, r, r+1), cvt(r+1, r+2, r+3), cvt(r+2, s_, s_+1), cvt(r+3, s_+2, s_+3)]
        return out
    F = Fill()
    a.s("s_cmp_lg_u32 s43, 0")
    a.s("s_cbranch_scc1 L_np2")
    a.v("v_mov_b32 v112, s50")
    a.v("v_mov_b32 v113, s51")
    a.s("s_mov_b64 exec, 1")
    a.raw(f"    buffer_atomic_add_x2 v[112:113], v10, s[{S_DBG}:{S_DBG+3}], 0 offen offset:8 sc1")
    a.s("s_mov_b64 exec, -1")
    a.nop(2)
    a.label("L_np2")
    stamp(a, cfg, 1)
    if cfg.el == 1:
        a.s(f"s_cmp_eq_u32 s{S_E}, 0")
        a.s("s_cbranch_scc1 L_noK0")
        a.barrier()
        readK()
        a.waitcnt(lgkm=0)
        a.barrier()
        a.label("L_noK0")
    a.barrier()
    stamp(a, cfg, 2)
    for mt in range(3): rdX(0, mt, 0)()
    for t in range(8): rdW(0, t, 0, 0)(); rdW(0, t, 0, 1)()
    BP = cfg.barpos
    for s in range(9):
        last = s == 8
        for mt in range(3): F.add(rdX(s, mt, 1))
        for t in range(8):
            if last and cfg.kearly: F.add(rdK1(t >> 2, t & 3, 0), rdK1(t >> 2, t & 3, 1))
            for mt in (range(3) if (t % 2 == 0 or not cfg.serp) else (2, 1, 0)):
                chk1(s, 0, t, mt)
                a.mfma(accQ(t, mt), Wf(t), Xf(0, mt), None if s == 0 else accQ(t, mt))
                for b in range(cfg.x_burn): a.raw(f"    v_mad_u32_u24 v{236+(t*3+mt+b*5)%16}, v{Wf(t)+mt}, v{Xf(0,mt)+b}, v{236+(t*3+mt+b*5+7)%16}")
                F.pop(2 if len(F.q) > 2 else 1)
            if cfg.x_pace: a.nop(cfg.x_pace)
            F.add(rdW(s, t, 1, 0), rdW(s, t, 1, 1))
        for t in range(8):
            for mt in (range(3) if (t % 2 == 0 or not cfg.serp) else (2, 1, 0)):
                chk1(s, 1, t, mt)
                a.mfma(accQ(t, mt), Wf(t), Xf(1, mt), accQ(t, mt))
                for b in range(cfg.x_burn): a.raw(f"    v_mad_u32_u24 v{236+(t*3+mt+b*5)%16}, v{Wf(t)+mt}, v{Xf(1,mt)+b}, v{236+(t*3+mt+b*5+7)%16}")
                F.pop(2 if len(F.q) > 2 else 1)
            if last:
                if t in (3, 5, 7): F.add(*cvtQ((t - 3)//2))
            elif t == BP - 1:
                assert not F.q
                a.waitcnt(lgkm=0)
                a.barrier()
                F.add(rdX(s+1, 0, 0), rdW(s+1, 0, 0, 0), rdW(s+1, 0, 0, 1), rdX(s+1, 1, 0), rdX(s+1, 2, 0))
                for tt in range(1, BP): F.add(rdW(s+1, tt, 0, 0), rdW(s+1, tt, 0, 1))
            elif t >= BP:
                F.add(rdW(s+1, t, 0, 0), rdW(s+1, t, 0, 1))
    a.waitcnt(lgkm=0)
    a.barrier()
    stamp(a, cfg, 3)
    if not cfg.att:
        a.bload(8, 2, 10, S_DBG, "0", flags="sc1", tag="nonce")
        if cfg.el:
            a.s(f"s_cmp_eq_u32 s{S_E}, 1")
            a.s("s_cbranch_scc1 L_noK1")
        readK()
        if cfg.el: a.label("L_noK1")
        F.drain()
        for f in cvtQ(3): f()
        for kp in range(4):
            for kt in range(3):
                for mt in range(3):
                    a.mfma(accS(kt, mt), Kf(kt, kp), accQ(2*kp, mt), None if kp == 0 else accS(kt, mt))
        MX = [160, 161, 162]; TM = [163, 164, 165]; SM = [166, 167, 6]
        vals = lambda mt: [accS(kt, mt) + r for kt in range(3) for r in range(4)]
        for mt in range(3):
            v = vals(mt); a.v(f"v_max3_f32 v{MX[mt]}, v{v[0]}, v{v[1]}, v{v[2]}")
        for i in range(3, 11, 2):
            for mt in range(3):
                v = vals(mt); a.v(f"v_max3_f32 v{MX[mt]}, v{MX[mt]}, v{v[i]}, v{v[i+1]}")
        for mt in range(3):
            v = vals(mt); a.v(f"v_max_f32 v{MX[mt]}, v{MX[mt]}, v{v[11]}")
        xlane_reduce(a, "v_max_f32", MX, TM)
        for mt in range(3): a.v(f"v_mul_f32 v{MX[mt]}, s83, v{MX[mt]}")
        for i in range(12):
            for mt in range(3):
                v = vals(mt); a.v(f"v_fma_f32 v{v[i]}, v{v[i]}, s83, -v{MX[mt]}")
        for i in range(12):
            for mt in range(3):
                v = vals(mt); a.v(f"v_exp_f32 v{v[i]}, v{v[i]}")
        for mt in range(3):
            v = vals(mt); a.v(f"v_add_f32 v{SM[mt]}, v{v[0]}, v{v[1]}")
        for i in range(2, 12):
            for mt in range(3):
                v = vals(mt); a.v(f"v_add_f32 v{SM[mt]}, v{SM[mt]}, v{v[i]}")
        xlane_reduce(a, "v_add_f32", SM, TM)
        for mt in range(3): a.v(f"v_rcp_f32 v{SM[mt]}, v{SM[mt]}")
        a.barrier()
        for t in range(8):
            for kt in range(3):
                F.add(lambda t=t, kt=kt: a.ds_read("ds_read_b64_tr_b16", Vf(t) + 2*kt, 2, aV(t >> 1), off=kt*4*VSTR + (t & 1)*32))
        for i in range(12):
            for mt in range(3):
                v = vals(mt); a.v(f"v_mul_f32 v{v[i]}, v{v[i]}, v{SM[mt]}"); F.pop(1)
        for mt in range(3):
            r0, r1, r2 = accS(0, mt), accS(1, mt), accS(2, mt)
            for f in (cvt(r0, r0, r0+1), cvt(r0+1, r0+2, r0+3), cvt(r0+2, r1, r1+1), cvt(r0+3, r1+2, r1+3), cvt(r2, r2, r2+1), cvt(r2+1, r2+2, r2+3)): f()
        stamp(a, cfg, 4)
        nonce_check(a, 10)
        a.s(f"s_lshl_b32 s81, s{S_NT}, 15")
        a.s("s_add_u32 s81, s81, s80")
        def ostore(mt, kp):
            r = accO(mt, 2*kp); s_ = accO(mt, 2*kp+1); d = ofA(kp, mt); f = kp*3 + mt
            return [cvt(d, r, r+1), cvt(d+1, r+2, r+3), cvt(d+2, s_, s_+1), cvt(d+3, s_+2, s_+3),
                    lambda: a.s(f"s_add_u32 s82, s81, s{40 + f//4}"),
                    lambda: a.bstore(d, 4, 14, S_WS, "s82", off=(f % 4)*1024, flags="sc1")]
        for mt in range(3):
            for t in range(8):
                a.mfma(accO(mt, t), Vf(t), accS(0, mt), None); F.pop(2)
            for t in range(8):
                a.mfma(accO(mt, t), Vf(t)+4, accS(2, mt), accO(mt, t), k=16); F.pop(2)
            for kp in range(4): F.add(*ostore(mt, kp))
    else:
        assert cfg.el == 2 and cfg.l_kpos >= 0 and cfg.c_kpos >= 0
        if not cfg.kearly:
            for kp in range(4):
                for kt in range(2): rdK1(kt, kp, 0)(); rdK1(kt, kp, 1)()
        for kp in range(4): rdK1(2, kp, 0)(); rdK1(2, kp, 1)()
        nonce_load(a, 252, 10)
        F.add(*cvtQ(3))
        order = [(kp, kt, mt) for kp in range(3) for kt in range(2) for mt in range(3)]
        order += [(kp, 2, mt) for kp in range(3) for mt in range(3)]
        order += [(3, kt, mt) for mt in range(3) for kt in range(3)]
        for n, (kp, kt, mt) in enumerate(order):
            if kp == 2 and n == 12: F.pop(max(0, len(F.q) - 12))
            if kp == 3: F.drain()
            a.mfma(accS(kt, mt), Kf(kt, kp), accQ(2*kp, mt), None if kp == 0 else accS(kt, mt)); F.pop(2)
        MX = [160, 162, 164]; TM = [161, 163, 165]; SM = [166, 6, 112]
        vals = lambda mt: [accS(kt, mt) + r for kt in range(3) for r in range(4)]
        for mt in range(3):
            v = vals(mt); a.v(f"v_max3_f32 v{MX[mt]}, v{v[0]}, v{v[1]}, v{v[2]}")
        for i in range(3, 11, 2):
            for mt in range(3):
                v = vals(mt); a.v(f"v_max3_f32 v{MX[mt]}, v{MX[mt]}, v{v[i]}, v{v[i+1]}")
        for mt in range(3):
            v = vals(mt); a.v(f"v_max_f32 v{MX[mt]}, v{MX[mt]}, v{v[11]}")
        xlane_reduce(a, "v_max_f32", MX, TM)
        for mt in range(3): a.v(f"v_mul_f32 v{MX[mt]}, s83, v{MX[mt]}")
        for i in range(0, 12, 2):
            for mt in range(3):
                v = vals(mt)
                a.v(f"v_pk_fma_f32 v[{v[i]}:{v[i]+1}], v[{v[i]}:{v[i]+1}], s[82:83], v[{MX[mt]}:{MX[mt]+1}] op_sel:[0,1,0] op_sel_hi:[1,1,0] neg_lo:[0,0,1] neg_hi:[0,0,1]")
        for i in range(12):
            for mt in range(3):
                v = vals(mt); a.v(f"v_exp_f32 v{v[i]}, v{v[i]}")
        for mt in range(3):
            v = vals(mt); a.v(f"v_pk_add_f32 v[{SM[mt]}:{SM[mt]+1}], v[{v[0]}:{v[1]}], v[{v[2]}:{v[3]}]")
        for i in range(4, 12, 2):
            for mt in range(3):
                v = vals(mt); a.v(f"v_pk_add_f32 v[{SM[mt]}:{SM[mt]+1}], v[{SM[mt]}:{SM[mt]+1}], v[{v[i]}:{v[i]+1}]")
        for mt in range(3): a.v(f"v_add_f32 v{MX[mt]}, v{SM[mt]}, v{SM[mt]+1}")
        xlane_reduce(a, "v_add_f32", MX, TM)
        for mt in range(3): a.v(f"v_rcp_f32 v{MX[mt]}, v{MX[mt]}")
        for i in range(0, 12, 2):
            for mt in range(3):
                v = vals(mt); a.v(f"v_pk_mul_f32 v[{v[i]}:{v[i]+1}], v[{v[i]}:{v[i]+1}], v[{MX[mt]}:{MX[mt]+1}] op_sel_hi:[1,0]")
        for mt in range(3):
            r0, r1, r2 = accS(0, mt), accS(1, mt), accS(2, mt)
            for f in (cvt(r0, r0, r0+1), cvt(r0+1, r0+2, r0+3), cvt(r0+2, r1, r1+1), cvt(r0+3, r1+2, r1+3), cvt(r2, r2, r2+1), cvt(r2+1, r2+2, r2+3)): f()
        stamp(a, cfg, 4)
        a.barrier()
        for t in range(8):
            for kt in range(3):
                a.ds_read("ds_read_b64_tr_b16", Vf(t) + 2*kt, 2, aV(t >> 1), off=kt*4*VSTR + (t & 1)*32)
        nonce_check(a, 252, 10)
        apply_c(a, (80, 84, 88))
        a.s("s_mov_b32 s52, s76")
        a.s("s_mov_b32 s53, s75")
        for k in range(4):
            F.add(lambda k=k: a.s(f"s_bitcmp1_b32 s53, {k}") or a.s(f"s_cselect_b32 s{44+k}, 8192, 0"), lambda k=k: a.s(f"s_xor_b32 s{44+k}, s{44+k}, s92"))
        a.s(f"s_lshl_b32 s81, s{S_NT}, 15")
        a.s("s_add_u32 s81, s81, s80")
        def ostore(mt, kp):
            r = accO(mt, 2*kp); s_ = accO(mt, 2*kp+1); d = ofA(kp, mt); f = kp*3 + mt
            return [cvt(d, r, r+1), cvt(d+1, r+2, r+3), cvt(d+2, s_, s_+1), cvt(d+3, s_+2, s_+3),
                    lambda: a.s(f"s_add_u32 s82, s81, s{40 + f//4}"),
                    lambda: a.bstore(d, 4, 14, S_WS, "s82", off=(f % 4)*1024, flags="sc1")]
        for kp in range(4):
            for t in (2*kp, 2*kp+1):
                for mt in range(3):
                    a.mfma(accO(mt, t), Vf(t), accS(0, mt), None); F.pop(2)
            for t in (2*kp, 2*kp+1):
                for mt in range(3):
                    a.mfma(accO(mt, t), Vf(t)+4, accS(2, mt), accO(mt, t), k=16); F.pop(2)
            F.add(lambda: None, lambda: None, lambda: None, lambda: None)
            for mt in range(3): F.add(*ostore(mt, kp))
    F.drain()
    stamp(a, cfg, 5)
    def flagst(off):
        a.s("s_mov_b32 exec_lo, s85"); a.s("s_mov_b32 exec_hi, 0")
        a.bstore(8, 2, 11, S_WS, "s84", off=off, flags="sc1")
        a.s("s_mov_b64 exec, -1")
    def poll_issue(mask, off):
        a.s(f"s_mov_b32 exec_lo, {mask}"); a.s("s_mov_b32 exec_hi, 0")
        a.bload(6, 2, 11, S_WS, "s84", off=off, flags="sc1")
        a.s("s_mov_b64 exec, -1")
    def poll_check(mask, off):
        L = newlabel("pc"); Lb = newlabel("pcb")
        a.s(f"s_mov_b32 exec_lo, {mask}"); a.s("s_mov_b32 exec_hi, 0")
        a.v("v_cmp_ne_u64 vcc, v[6:7], v[8:9]")
        a.s("s_mov_b64 exec, -1")
        a.s(f"s_cbranch_vccnz {L}")
        a.label(Lb)
        o = Asm(); o.label(L); poll_flags(o, 6, 8, 11, 84, mask, 76, off); o.s(f"s_branch {Lb}")
        a.ool += o.L
    if cfg.split:
        a.waitcnt(vm=6)
        flagst(0)
        head_order(a, 1, 75)
        a.s("s_lshl_b32 s75, 1, s75")
    a.waitcnt(lgkm=0)
    a.barrier()
    stamp(a, cfg, 10)
    KO = lambda p, ts: [(p, kp, t) for kp in range(4) for t in ts]
    TO = lambda p, ts: [(p, kp, t) for t in ts for kp in range(4)]
    items = KO(0, range(9)) + KO(1, range(9))
    if cfg.reord: items += KO(2, range(6)) + TO(3, range(6)) + KO(2, range(6, 9)) + TO(3, range(6, 9))
    else: items += KO(2, range(9)) + TO(3, range(9))
    first3 = next(i for i, it in enumerate(items) if it[0] == 3)
    done_at = {}
    for i, (p, kp, t) in enumerate(items): done_at[t//2] = i
    NB = 9
    R3 = [12, 10]
    def rdW2(i, h):
        p, kp, t = items[i]
        def f():
            a.ds_read("ds_read_b64_tr_b16", Wf2(i % NB)+2*h, 2, (R3 if p == 3 else R)[t & 1], off=kp*10240 + h*5120 + 32*(t - (t & 1))); ver[("W2", i % NB, h)] = i
        return f
    for kp in range(4):
        for mt in range(3): ver[("O", 0, kp, mt)] = 0
    def headbase(p):
        return [lambda: head_order(a, p, 81), lambda: a.s("s_lshl_b32 s81, s81, 15"), lambda: a.s("s_add_u32 s81, s81, s80")]
    def ldO(p, f, srdb=S_WS):
        kp, mt = divmod(f, 3)
        return [lambda: a.s(f"s_add_u32 s82, s81, s{40 + f//4}"),
                lambda: (a.bload(of(p & 1, kp, mt), 4, 14, srdb, "s82", off=(f % 4)*1024, flags="sc1"), ver.__setitem__(("O", p & 1, kp, mt), p))]
    def publish(mt, pair):
        if pair == 4 and mt == 1: return []
        slot = pair*3 + mt if pair < 4 else 12 + mt//2
        r = acc2(mt, 2*pair)
        out = [cvt(r, r, r+1), cvt(r+1, r+2, r+3)]
        if slot < 13:
            s_ = acc2(mt, 2*pair+1) if pair < 4 else acc2(1, 8)
            out += [cvt(r+2, s_, s_+1), cvt(r+3, s_+2, s_+3)]
        def st_():
            L = newlabel("own"); L2 = newlabel("ownb")
            a.s(f"s_cmp_eq_u32 s90, {slot & 7}")
            a.s(f"s_cbranch_scc1 {L}")
            if slot < 13: a.bstore(r, 4, 14, S_WS, "s82", flags="sc1", tag=("pub", slot))
            else: a.bstore(r, 2, 11, S_WS, "s82", flags="sc1", tag=("pub", slot))
            a.label(L2)
            a.ool += [f"{L}:", f"    ds_write_b128 v2, v[{r}:{r+3}] offset:{(slot >> 3)*4096}",
                      f"    buffer_store_dword v{r}, v14, s[{S_X}:{S_X+3}], 0 offen", f"    s_branch {L2}"]
        out += [lambda: a.s(f"s_add_u32 s82, s{44 + ((slot & 7) >> 1)}, {slot*16384}"), st_]
        return out
    def flag2(off):
        a.s("s_mov_b32 exec_lo, s97"); a.s("s_mov_b32 exec_hi, 0")
        a.bstore(8, 2, 3, S_WS, "s55", off=off, flags="sc1")
        a.s("s_mov_b64 exec, -1")
    def stageA():
        a.wait_vm_tag(("pub", 7))
        flag2(0)
        a.waitcnt(lgkm=0)
        a.barrier()
    for i in range(NB): rdW2(i, 0)(); rdW2(i, 1)()
    seen = set()
    n3 = 0
    for i, (p, kp, t) in enumerate(items):
        if i == cfg.fb:
            F.drain()
            a.waitcnt(vm=0)
            stamp(a, cfg, 6)
            flagst(0)
            if cfg.fbar: a.barrier()
        if i == 36:
            F.drain()
            if cfg.p2st: stamp(a, cfg, 1)
            a.barrier()
            if cfg.p2st: stamp(a, cfg, 2)
            for r in R: a.v(f"v_subrev_u32 v{r}, {3*SL}, v{r}")
            for j in range(36, 36 + NB): rdW2(j, 0)(); rdW2(j, 1)()
            for f in headbase(1): f()
            poll_flags(a, 6, 8, 11, 84, "s86", 76, 0, 4)
            stamp(a, cfg, 7)
            for fr in range(12):
                for f in ldO(1, fr): f()
            F.add(*headbase(2))
            for r, r3 in zip(R, R3): F.add(lambda r=r, r3=r3: a.v(f"v_add_u32 v{r3}, {2*SL}, v{r}"))
        if cfg.p2st and i in (37, 72, 108): stamp(a, cfg, {37: 3, 72: 4, 108: 5}[i])
        if p == 1 and t in (0, 3, 6): F.add(*ldO(2, kp*3 + t//3))
        if i == 54:
            F.add(*tail_vsetup(a, S_W, 0))
            F.add(*[lambda t=t: a.v(t) for t in ("v_lshrrev_b32 v5, 1, v1", "v_lshrrev_b32 v5, v5, s53", "v_and_b32 v5, 1, v5", "v_lshl_add_u32 v3, v5, 13, v3")])
            F.add(*[lambda t=t: a.s(t) for t in ("s_xor_b32 s97, s97, 0xff", "s_lshl_b32 s55, s90, 3", "s_add_u32 s55, s55, s96",
                                                  "s_lshl_b32 s76, s90, 7", "s_add_u32 s96, s96, s76", "s_add_u32 s96, s96, s52")])
        if i == 72: F.add(*headbase(3))
        if i >= 72 and n3 < 12 and (cfg.reord or t < 6): F.add(*ldO(3, n3)); n3 += 1
        if cfg.two and i == done_at[2] + 1 + cfg.fa: F.drain(); stageA()
        for mt in (range(3) if (i % 2 == 0 or not cfg.serp) else (2, 1, 0)):
            assert ver[("W2", i % NB, 0)] == i and ver[("W2", i % NB, 1)] == i and ver[("O", p & 1, kp, mt)] == p, (i, p, kp, t)
            a.mfma(acc2(mt, t), Wf2(i % NB), of(p & 1, kp, mt), acc2(mt, t) if (mt, t) in seen else None)
            seen.add((mt, t))
            F.pop(3 if len(F.q) > 8 else 2 if len(F.q) > 2 else 1)
        j = i + NB
        if j < len(items) and not (p == 0 and j >= 36):
            if j in (72, first3):
                F.drain()
                a.barrier()
                if j == 72:
                    for r in R: a.v(f"v_add_u32 v{r}, {SL}, v{r}")
            F.q = [rdW2(j, 0), rdW2(j, 1)] + F.q
        for pair in range(4):
            if i == done_at[pair] + 1:
                for mt in range(3): F.add(*publish(mt, pair))
    stamp(a, cfg, 8)
    F.drain()
    for mt in range(3):
        for f in publish(mt, 4): f()
    if cfg.two and done_at[2] + 1 + cfg.fa >= len(items): stageA()
    stamp(a, cfg, 9)
    a.waitcnt(vm=0, lgkm=0)
    stamp(a, cfg, 11)
    flag2(64)
    if cfg.two:
        a.v("v_add_u32 v2, 4096, v2")
        a.s("s_add_u32 s96, s96, 64")
    else:
        poll_flags(a, 6, 8, 11, 96, "s97", 76, 64, 62)

def tail(a, cfg, endlabel):
    if not cfg.two: a.barrier()
    a.s("s_cmp_ge_u32 s89, 14")
    a.s(f"s_cbranch_scc1 {endlabel}")
    if cfg.two: poll_flags(a, 6, 8, 11, 96, "s97", 76, 0, 68)
    stamp(a, cfg, 12)
    a.ds_read("ds_read_b128", 16, 4, 2)
    a.s("s_cmp_eq_u32 s89, 13")
    a.s("s_cbranch_scc1 L_half")
    def srcoff(k):
        a.s(f"s_add_u32 s76, s90, {k}")
        a.s("s_and_b32 s76, s76, 7")
        a.s("s_lshl_b32 s76, s76, 10")
        a.s("s_add_u32 s76, s76, s88")
    for k in range(1, 8):
        srcoff(k); a.bload(16 + 4*k, 4, 14, S_WS, "s76", flags="sc1")
    a.label("L_halfb")
    ool = Asm()
    ool.label("L_half")
    for k in range(1, 8):
        ool.s(f"s_add_u32 s76, s90, {k}"); ool.s("s_and_b32 s76, s76, 7"); ool.s("s_lshl_b32 s76, s76, 10"); ool.s("s_add_u32 s76, s76, s88")
        ool.bload(16 + 4*k, 2, 11, S_WS, "s76", flags="sc1")
    ool.s("s_branch L_halfb")
    a.ool += ool.L
    for k in range(8):
        src = 16 + 4*k
        for i in range(4):
            if k == 0:
                a.v(f"v_lshlrev_b32 v{48+2*i}, 16, v{src+i}")
                a.v(f"v_and_b32 v{49+2*i}, 0xffff0000, v{src+i}")
            else:
                a.v(f"v_lshlrev_b32 v{60+2*(i&1)}, 16, v{src+i}")
                a.v(f"v_and_b32 v{61+2*(i&1)}, 0xffff0000, v{src+i}")
                a.v(f"v_pk_add_f32 v[{48+2*i}:{49+2*i}], v[{48+2*i}:{49+2*i}], v[{60+2*(i&1)}:{61+2*(i&1)}]")
        if k == 1: stamp(a, cfg, 13)
    for i in range(4): a.v(f"v_cvt_pk_bf16_f32 v{64+i}, v{48+2*i}, v{49+2*i}")
    a.v("v_permlane16_swap_b32 v64, v66")
    a.v("v_permlane16_swap_b32 v65, v67")
    stamp(a, cfg, 14)
    a.s("s_mov_b64 exec, s[78:79]")
    a.bstore(64, 4, 4, S_OUT, "s87", flags=cfg.st_out)

def kernel(cfg):
    a = Asm()
    a.lcap = cfg.lcap
    ROT[0] = cfg.rot
    PP[0] = cfg.pp
    a.ool = []
    stamp(a, cfg, 0)
    prologue(a, cfg, "L_end")
    a.s(f"s_cmp_lt_u32 s{S_W}, 4")
    a.s("s_cbranch_scc1 L_compute")
    loader(a, cfg)
    a.label("L_compute")
    a.reset_state()
    compute(a, cfg)
    a.label("L_tail")
    a.reset_state()
    a.nop(2)
    tail(a, cfg, "L_st")
    a.label("L_st")
    if cfg.x_map:
        a.s(f"s_add_u32 s76, s2, s{S_W}")
        a.s("s_cmp_lg_u32 s76, 0")
        a.s("s_cbranch_scc1 L_end")
        a.raw("    s_waitcnt vmcnt(0)")
        for i in range(40): a.raw("    s_sleep 64")
        a.s("s_mov_b64 exec, 1")
        a.v("v_mov_b32 v20, 0")
        a.s("s_mov_b32 s40, 0"); a.s(f"s_mov_b32 s41, {28672}"); a.s("s_mov_b32 s42, 0")
        a.label("L_map")
        for rep in range(2):
            a.raw("    v_mov_b32 v21, 0")
            a.raw("    s_memtime s[44:45]"); a.raw("    s_waitcnt lgkmcnt(0)")
            a.raw(f"    buffer_atomic_add v21, v20, s[{S_WS}:{S_WS+3}], s41 offen sc0 sc1")
            a.raw("    s_waitcnt vmcnt(0)")
            a.raw("    s_memtime s[46:47]"); a.raw("    s_waitcnt lgkmcnt(0)")
        a.s("s_sub_u32 s46, s46, s44")
        a.s("s_cmp_gt_u32 s46, 680")
        a.s("s_cselect_b32 s46, 1, 0")
        a.s("s_lshl_b32 s46, s46, s40")
        a.s("s_or_b32 s42, s42, s46")
        a.s(f"s_add_u32 s41, s41, {2 << 20}")
        a.s("s_add_u32 s40, s40, 1")
        a.s("s_cmp_lt_u32 s40, 24")
        a.s("s_cbranch_scc1 L_map")
        a.v("v_mov_b32 v21, s42")
        a.raw(f"    buffer_store_dword v21, v20, s[{S_DBG}:{S_DBG+3}], 0 offen offset:16")
        a.v(f"v_mov_b32 v22, s{S_WS}")
        a.raw(f"    buffer_store_dword v22, v20, s[{S_DBG}:{S_DBG+3}], 0 offen offset:20")
        a.raw("    s_getreg_b32 s42, hwreg(HW_REG_XCC_ID)")
        a.v("v_mov_b32 v23, s42")
        a.raw(f"    buffer_store_dword v23, v20, s[{S_DBG}:{S_DBG+3}], 0 offen offset:24")
    if cfg.stamps: a.waitcnt(vm=0)
    stamp(a, cfg, 15)
    stamp_out(a, cfg)
    a.label("L_end")
    a.s("s_endpgm")
    for l in a.ool: a.raw(l)
    return a

HEADER = open("cdna_kernels/" + NAME + ".s.ref").read().split("; Override launch")[0]

def build(cfg):
    n = NAME + "_kernel"
    a = kernel(cfg)
    return HEADER + f"""; @launch grid=(256,1,1) block=(512,1,1) lds=163840
.amdgcn_target "amdgcn-amd-amdhsa--gfx950"
.text
.globl {n}
.p2align 8
.type {n},@function
{n}:
{a.text()}
L_code_end:
.section .rodata,"a"
.p2align 6
.amdhsa_kernel {n}
  .amdhsa_next_free_vgpr 256
  .amdhsa_next_free_sgpr 102
  .amdhsa_accum_offset 256
  .amdhsa_group_segment_fixed_size 0
  .amdhsa_kernarg_size 104
  .amdhsa_user_sgpr_count 2
  .amdhsa_user_sgpr_kernarg_segment_ptr 1
  .amdhsa_system_sgpr_workgroup_id_x 1
.end_amdhsa_kernel
"""

if __name__ == "__main__":
    cfg = Cfg()
    for kv in sys.argv[2:]:
        k, v = kv.split("=")
        cur = getattr(cfg, k)
        setattr(cfg, k, (v == "1") if isinstance(cur, bool) else int(v) if isinstance(cur, int) else v.replace("_", " "))
    open(sys.argv[1], "w").write(build(cfg))
```

```python
import sys, struct
from asm import *

NAME = "concat_heads__gqa_block_cached__mha_block_cached__near_ridge"
SL = 40960
KSTR, VSTR = 4112, 4128
KUNIT, VUNIT = 1024, 1024
KBASE = 0
VBASE_L = 12*KSTR
WS_O = 0
WS_FLAG1 = 64 << 20
WS_FLAG2 = 65 << 20
WS_PROBE = 68 << 20
WS_PART = 32 << 20
WS_STAMP = 72 << 20
WS_BYTES = 80 << 20
SC = 0.08838834764831845 * 1.4426950408889634
SPIN_MAX = 1 << 17
def f2u(x): return struct.unpack("<I", struct.pack("<f", x))[0]

S_X, S_K, S_V, S_WQ, S_WO, S_OUT, S_WS, S_DBG = 36, 40, 44, 48, 52, 56, 60, 64
S_BR, S_KQ, S_HL, S_BG, S_W, S_NT, S_E = 68, 69, 70, 71, 72, 98, 99

class Cfg:
    stamps = False; x_clk = False; lst = 0
    ld_x = ""; ld_wq = ""; ld_kv = "nt"; ld_wo = ""; st_out = ""
    skew = 2; prio = 0; lcap = 8; barpos = 3
    el = 2; pollpos = 4; ctouch = 3; e_wo = 1; l_wo = 1; prog = 1; touch = 1; tpos = 5; wo2 = 1; flagpos = 1; e_vpos = 4; l_kpos = 2; f2 = 1; c_kpos = 5; c_tpos = 3; swap = 1; own = 1; warmf = 1; p2st = 0; fbar = 1; wo0late = 0; x_enc = -1; x_amp = 4; dbgwg = 0; att = 1; r1first = 1; epoll = 0; cfix = -1; nprobe = 1; split = 0; fb = 9; x_pace = 0; cls = '44,55,66,66'; v7 = 4; v8 = 12; x_burn = 0; x_map = 0; bal = 0; two = 0; reord = 0; fa = 8; serp = 1; pp = 0; tlb = 0; sw = 0; kearly = 1; kfirst = 0; hold = 0; strict = 0; smod = 1; pst = 9; pa = 14; pac = 21; rot = 0; pb = 48

NST = 16
def streg(i): return 4 if i == 0 else 8 + 2*(i-1) if i <= 13 else {14: 34, 15: 100}[i]
def stamp(a, cfg, i):
    if cfg.stamps:
        r = streg(i)
        a.raw(f"    {'s_memtime' if cfg.x_clk else 's_memrealtime'} s[{r}:{r+1}]"); a.pos += 1
def stamp_out(a, cfg):
    if not cfg.stamps: return
    if cfg.x_enc >= 0:
        a.raw("    s_waitcnt lgkmcnt(0)")
        a.s("s_lshl_b32 s3, s2, 3")
        a.s(f"s_add_u32 s3, s3, s{S_W}")
        a.s(f"s_cmp_lg_u32 s3, {cfg.dbgwg*8}")
        a.s("s_cbranch_scc1 L_end")
        a.s(f"s_sub_u32 s76, s{streg(cfg.x_enc)}, s4")
        a.s(f"s_mul_i32 s76, s76, {cfg.x_amp}")
        a.s("s_add_u32 s76, s76, 5000")
        a.label("L_hold")
        a.raw("    s_memrealtime s[78:79]")
        a.raw("    s_waitcnt lgkmcnt(0)")
        a.s("s_sub_u32 s77, s78, s4")
        a.s("s_cmp_lt_u32 s77, s76")
        a.s("s_cbranch_scc1 L_hold")
        return
    a.raw("    s_waitcnt lgkmcnt(0)")
    a.s("s_mov_b64 exec, 1")
    a.s("s_lshl_b32 s3, s2, 3")
    a.s(f"s_add_u32 s3, s3, s{S_W}")
    a.s("s_lshl_b32 s3, s3, 6")
    a.s(f"s_add_u32 s3, s3, {WS_STAMP}")
    a.v("v_mov_b32 v1, 0")
    for i in range(NST):
        a.v(f"v_mov_b32 v2, s{streg(i)}")
        a.bstore(2, 1, 1, S_WS, "s3", off=4*i)
        a.nop(2)

def srd(a, base, lo, hi, size):
    a.s(f"s_mov_b32 s{base}, s{lo}")
    a.s(f"s_mov_b32 s{base+1}, s{hi}")
    a.s(f"s_mov_b32 s{base+2}, {size}")
    a.s(f"s_mov_b32 s{base+3}, 0x20000")

BAL = [0]
def prologue(a, cfg, endlabel):
    a.s("s_cmp_ge_u32 s2, 256")
    a.s(f"s_cbranch_scc1 {endlabel}")
    a.raw("    s_load_dwordx16 s[8:23], s[0:1], 0")
    a.raw("    s_load_dwordx8 s[24:31], s[0:1], 64")
    a.raw("    s_load_dwordx2 s[32:33], s[0:1], 96")
    a.v("v_and_b32 v1, 63, v0")
    a.v("v_lshrrev_b32 v15, 6, v0")
    BAL[0] = cfg.bal
    if cfg.bal:
        a.s(f"s_bfe_u32 s{S_KQ}, s2, 0x10002")
        a.s(f"s_lshl_b32 s{S_KQ}, s{S_KQ}, 1")
        a.s(f"s_and_b32 s{S_BR}, s2, 1")
        a.s(f"s_or_b32 s{S_KQ}, s{S_KQ}, s{S_BR}")
        a.s(f"s_bfe_u32 s{S_BR}, s2, 0x10001")
    else:
        a.s(f"s_and_b32 s{S_KQ}, s2, 3")
        a.s(f"s_bfe_u32 s{S_BR}, s2, 0x10002")
    if cfg.swap: a.s(f"s_xor_b32 s{S_BR}, s{S_BR}, 1")
    a.s(f"s_bfe_u32 s{S_HL}, s2, 0x30003")
    a.s(f"s_lshr_b32 s{S_BG}, s2, 6")
    a.s(f"s_and_b32 s{S_NT}, s{S_HL}, 3")
    a.v(f"v_readfirstlane_b32 s{S_W}, v15")
    if cfg.el:
        a.s(f"s_lshr_b32 s{S_E}, s{S_HL}, 2")
        a.s(f"s_xor_b32 s{S_E}, s{S_E}, s{S_BG}")
        a.s(f"s_and_b32 s{S_E}, s{S_E}, 1")
        a.s(f"s_and_b32 s3, s{S_BG}, 2")
        a.s(f"s_or_b32 s3, s3, s{S_E}")
        if cfg.el == 2: a.s(f"s_mov_b32 s{S_E}, 0")
    else:
        a.s(f"s_mov_b32 s{S_E}, 0")

def build_srds(a, keys):
    a.raw("    s_waitcnt lgkmcnt(0)")
    a.s(f"s_cmp_eq_u32 s{S_BR}, 0")
    for (dst, pa, pb, key) in ((S_WQ, 14, 24, 'wq'), (S_X, 8, 18, 'x'), (S_K, 10, 20, 'k'), (S_V, 12, 22, 'v'), (S_WO, 16, 26, 'wo')):
        if key not in keys: continue
        a.s(f"s_cselect_b64 s[{dst}:{dst+1}], s[{pa}:{pa+1}], s[{pb}:{pb+1}]")
        if key in ('k', 'v'):
            a.s(f"s_mov_b32 s{dst+2}, 6291456")
            a.s(f"s_cselect_b32 s{dst+2}, 3145728, s{dst+2}")
        else:
            a.s(f"s_mov_b32 s{dst+2}, {884736 if key == 'x' else 4718592}")
        a.s(f"s_mov_b32 s{dst+3}, 0x20000")
    if 'o' in keys:
        srd(a, S_OUT, 28, 29, 1769472)
        srd(a, S_DBG, 30, 31, 256)
        srd(a, S_WS, 32, 33, WS_BYTES)

ROT = [0]
def head_order(a, p, sd):
    if p == 0: a.s(f"s_mov_b32 s{sd}, s{S_NT}")
    elif ROT[0]:
        a.s(f"s_add_u32 s{sd}, s{S_NT}, {p}"); a.s(f"s_and_b32 s{sd}, s{sd}, 3")
    else:
        a.s(f"s_cmp_le_u32 s{S_NT}, {p-1}"); a.s(f"s_cselect_b32 s{sd}, {p}, {p-1}")

_lbl = [0]
def newlabel(p):
    _lbl[0] += 1
    return f"L{p}_{_lbl[0]}"

PP = [0]
def poll_flags(a, vdata, vnonce, voff, soff, mask, stmp, off=0, v2=None):
    L = newlabel("poll"); X = newlabel("pollx")
    a.s(f"s_mov_b32 exec_lo, {mask}")
    a.s("s_mov_b32 exec_hi, 0")
    a.s(f"s_mov_b32 s{stmp}, 0")
    if PP[0] and v2 is not None:
        o = f" offset:{off}" if off else ""
        ld = lambda v: a.raw(f"    buffer_load_dwordx2 v[{v}:{v+1}], v{voff}, s[{S_WS}:{S_WS+3}], s{soff} offen{o} sc1")
        a.waitcnt(vm=0) if False else None
        ld(vdata)
        a.raw(f"    s_sleep {PP[0]}")
        a.label(L)
        ld(v2)
        a.s(f"s_add_u32 s{stmp}, s{stmp}, 1")
        a.raw("    s_waitcnt vmcnt(1)")
        a.raw(f"    v_cmp_ne_u64 vcc, v[{vdata}:{vdata+1}], v[{vnonce}:{vnonce+1}]")
        a.s(f"s_cbranch_vccz {X}")
        ld(vdata)
        a.s(f"s_cmp_gt_u32 s{stmp}, {SPIN_MAX}")
        a.raw("    s_waitcnt vmcnt(1)")
        a.s(f"s_cbranch_scc1 {X}")
        a.raw(f"    v_cmp_ne_u64 vcc, v[{v2}:{v2+1}], v[{vnonce}:{vnonce+1}]")
        a.s(f"s_cbranch_vccnz {L}")
        a.label(X)
        a.vm = [({vdata, vdata+1, v2, v2+1}, "poll")]
        a.s("s_mov_b64 exec, -1")
        return
    a.label(L)
    a.bload(vdata, 2, voff, S_WS, f"s{soff}", off=off, flags="sc1")
    a.s(f"s_add_u32 s{stmp}, s{stmp}, 1")
    a.s(f"s_cmp_gt_u32 s{stmp}, {SPIN_MAX}")
    a.waitcnt(vm=0)
    a.s(f"s_cbranch_scc1 {X}")
    a.v(f"v_cmp_ne_u64 vcc, v[{vdata}:{vdata+1}], v[{vnonce}:{vnonce+1}]")
    a.s(f"s_cbranch_vccnz {L}")
    a.label(X)
    a.s("s_mov_b64 exec, -1")

NVOTE = 32
CAP = 4095
def nonce_load(a, vn, vzero):
    a.bload(vn, 4, vzero, S_DBG, "0", flags="sc1", tag="nonce")
def nonce_check(a, vn, vzero):
    Lok = newlabel("nok"); Lsp = newlabel("nsp")
    a.s("s_mov_b32 s77, 0")
    a.v(f"v_readfirstlane_b32 s76, v{vn}")
    a.v(f"v_readfirstlane_b32 s75, v{vn+2}")
    a.v(f"v_readfirstlane_b32 s3, v{vn+3}")
    a.label(Lsp)
    a.s("s_cmp_lg_u32 s76, 0")
    a.s("s_cselect_b32 s76, s75, 0")
    a.s(f"s_cmp_ge_u32 s3, {8 << 16}")
    a.s("s_cselect_b32 s76, s76, 0")
    a.s(f"s_cmp_ge_u32 s76, {NVOTE << 24}")
    a.s(f"s_cbranch_scc1 {Lok}")
    a.s("s_add_u32 s77, s77, 1")
    a.s(f"s_cmp_gt_u32 s77, {SPIN_MAX}")
    a.s(f"s_cbranch_scc1 {Lok}")
    a.raw(f"    buffer_load_dwordx4 v[{vn}:{vn+3}], v{vzero}, s[{S_DBG}:{S_DBG+3}], 0 offen sc1")
    a.raw("    s_waitcnt vmcnt(0)")
    a.raw(f"    v_readfirstlane_b32 s76, v{vn}")
    a.raw(f"    v_readfirstlane_b32 s75, v{vn+2}")
    a.raw(f"    v_readfirstlane_b32 s3, v{vn+3}")
    a.raw("    s_nop 0")
    a.s(f"s_branch {Lsp}")
    a.label(Lok)
    a.v(f"v_mov_b32 v8, v{vn}")
    a.v(f"v_mov_b32 v9, v{vn+1}")
    a.s(f"s_cmp_gt_u32 s76, {(NVOTE << 24) + NVOTE*CAP}")
    a.s("s_cselect_b32 s76, 0xff, 0")
    a.s("s_xor_b32 s75, s3, s76")
    if BAL[0]:
        a.s("s_and_b32 s76, s2, 2")
        a.s("s_lshr_b32 s75, s75, s76")
        a.s("s_lshr_b32 s76, s75, 2")
        a.s("s_and_b32 s76, s76, 12")
        a.s("s_and_b32 s75, s75, 3")
        a.s("s_or_b32 s75, s75, s76")
    else:
        a.s("s_and_b32 s76, s2, 4")
        a.s("s_lshr_b32 s75, s75, s76")
    a.s(f"s_lshr_b32 s76, s75, s{S_KQ}")
    a.s("s_and_b32 s76, s76, 1")
    a.s("s_lshl_b32 s76, s76, 13")

def bsel(a, sd):
    a.s(f"s_lshr_b32 s76, s{sd}, 8")
    a.s("s_and_b32 s76, s76, 8192")
    a.s(f"s_or_b32 s{sd}, s{sd}, s76")

def apply_c(a, regs):
    for r in regs: a.s(f"s_xor_b32 s{r}, s{r}, s76")

def unit_base(a, sd, sb_w, shead):
    a.s(f"s_lshl_b32 s76, s{S_BR}, 2")
    a.s(f"s_add_u32 s76, s76, s{S_BG}")
    a.s("s_lshl_b32 s76, s76, 2")
    a.s(f"s_add_u32 s76, s76, s{sb_w}")
    a.s("s_lshl_b32 s76, s76, 5")
    a.s(f"s_add_u32 s76, s76, s{shead}")
    a.s(f"s_lshl_b32 s{sd}, s76, 15")
    bsel(a, sd)
    a.s(f"s_and_b32 s76, s{sb_w}, 1")
    a.s("s_lshl_b32 s40, s76, 12")
    a.s(f"s_and_b32 s76, s{sb_w}, 2")
    a.s("s_lshl_b32 s76, s76, 13")
    a.s("s_or_b32 s40, s40, s76")
    a.s("s_xor_b32 s41, s40, 4096")
    a.s("s_xor_b32 s42, s40, 16384")

def tail_ssetup(a, sw, half):
    a.s(f"s_lshr_b32 s90, s{S_HL}, 2")
    a.s(f"s_lshl_b32 s76, s{S_KQ}, 1")
    a.s("s_add_u32 s90, s90, s76")
    a.s(f"s_add_u32 s89, s90, {8*half}")
    a.s(f"s_lshl_b32 s91, s{S_BR}, 2")
    a.s(f"s_add_u32 s91, s91, s{S_BG}")
    a.s("s_lshl_b32 s91, s91, 2")
    a.s(f"s_add_u32 s91, s91, s{S_NT}")
    a.s("s_lshl_b32 s91, s91, 2")
    a.s(f"s_add_u32 s91, s91, s{sw}")
    a.s("s_lshr_b32 s76, s91, 3")
    a.s("s_lshl_b32 s76, s76, 14")
    a.s("s_and_b32 s77, s91, 7")
    a.s("s_lshl_b32 s77, s77, 10")
    a.s("s_add_u32 s76, s76, s77")
    a.s(f"s_add_u32 s96, s76, {WS_FLAG2}")
    a.s("s_lshl_b32 s92, s91, 18")
    a.s(f"s_add_u32 s92, s92, {WS_PART}")
    bsel(a, 92)
    a.s("s_lshl_b32 s76, s89, 14")
    a.s("s_add_u32 s88, s92, s76")
    a.s("s_lshl_b32 s76, s90, 10")
    a.s("s_add_u32 s92, s92, s76")
    a.s("s_mul_i32 s76, s89, 43")
    a.s("s_lshr_b32 s76, s76, 7")
    a.s("s_mul_i32 s77, s76, 3")
    a.s("s_sub_u32 s77, s89, s77")
    a.s("s_cmp_eq_u32 s89, 13")
    a.s("s_cselect_b32 s77, 2, s77")
    a.s("s_lshl_b32 s87, s76, 6")
    a.s(f"s_mul_i32 s77, s77, {16*2304}")
    a.s("s_add_u32 s87, s87, s77")
    a.s(f"s_lshl_b32 s77, s{S_BG}, 2")
    a.s(f"s_add_u32 s77, s77, s{sw}")
    a.s(f"s_mul_i32 s77, s77, {48*2304}")
    a.s("s_add_u32 s87, s87, s77")
    a.s(f"s_mul_i32 s77, s{S_BR}, 1152")
    a.s("s_add_u32 s87, s87, s77")
    a.s(f"s_mul_i32 s77, s{S_NT}, 288")
    a.s("s_add_u32 s87, s87, s77")
    a.s("s_cmp_lt_u32 s89, 12")
    a.s(f"s_cselect_b32 s74, 32, {16*2304}")
    a.s("s_cmp_lt_u32 s89, 13")
    a.s("s_cselect_b32 s78, -1, 0xffff")
    a.s("s_mov_b32 s79, s78")
    for u in range(16): assert (u*43) >> 7 == u//3

def tail_vsetup(a, sw=S_W, half=0):
    return [lambda t=t: a.v(t) for t in (
        "v_and_b32 v4, 15, v1", "v_mul_u32_u24 v4, 2304, v4", "v_bfe_u32 v5, v1, 4, 1", "v_mad_u32_u24 v4, v5, s74, v4",
        "v_lshrrev_b32 v5, 5, v1", "v_lshl_add_u32 v4, v5, 4, v4", "v_lshlrev_b32 v3, 7, v1", f"v_lshlrev_b32 v2, 4, v1", f"v_lshl_add_u32 v2, s{sw}, 10, v2", f"v_add_u32 v2, {3*SL + half*4096}, v2")]

def loader(a, cfg):
    a.s(f"s_sub_u32 s73, s{S_W}, 4")
    a.s("s_and_b32 s74, s73, 1")
    a.s("s_lshr_b32 s75, s73, 1")
    a.s(f"s_lshl_b32 s95, s{S_KQ}, 3")
    a.s(f"s_add_u32 s95, s95, s{S_HL}")
    a.v("v_lshrrev_b32 v4, 4, v1")
    a.s("s_lshl_b32 s76, s75, 2")
    a.v("v_or_b32 v5, s76, v4")
    a.v("v_bfe_u32 v6, v1, 1, 3")
    a.v("v_xor_b32 v6, v6, v5")
    a.v("v_lshlrev_b32 v6, 5, v6")
    a.v("v_and_b32 v7, 1, v1")
    a.v("v_lshl_add_u32 v6, v7, 4, v6")
    a.v("v_lshl_add_u32 v2, v4, 13, v6")
    a.s("s_lshl_b32 s76, s73, 15")
    a.s("s_lshl_b32 s77, s95, 8")
    a.s("s_add_u32 s76, s76, s77")
    a.v("v_add_u32 v2, s76, v2")
    a.v("v_lshlrev_b32 v5, 2, v4")
    a.v("v_and_b32 v6, 15, v1")
    a.v("v_xor_b32 v6, v6, v5")
    a.v("v_lshlrev_b32 v6, 4, v6")
    a.v("v_lshl_add_u32 v10, v4, 8, v6")
    a.s("s_lshl_b32 s76, s74, 2")
    a.v("v_or_b32 v5, s76, v4")
    a.v("v_lshrrev_b32 v4, 3, v1")
    a.v("v_mul_u32_u24 v4, 1152, v4")
    a.v("v_and_b32 v6, 7, v1")
    a.v("v_xor_b32 v6, v6, v5")
    a.v("v_lshl_add_u32 v3, v6, 4, v4")
    a.s(f"s_mul_i32 s76, s{S_BG}, {192*1152}")
    a.s(f"s_mul_i32 s77, s74, {8*1152}")
    a.s("s_add_u32 s76, s76, s77")
    a.s(f"s_mul_i32 s77, s75, {96*1152}")
    a.s("s_add_u32 s76, s76, s77")
    a.v("v_add_u32 v3, s76, v3")
    a.s("s_lshl_b32 s78, s73, 10")
    a.s("s_mul_i32 s79, s75, 12288")
    a.s("s_lshl_b32 s77, s74, 10")
    a.s("s_add_u32 s79, s79, s77")
    a.s("s_add_u32 s79, s79, 16384")
    a.s(f"s_lshl_b32 s76, s{S_BG}, 2")
    a.s("s_add_u32 s76, s76, s73")
    a.s("s_lshl_b32 s76, s76, 5")
    a.s("s_add_u32 s76, s76, s95")
    a.s(f"s_xor_b32 s77, s{S_BR}, 1")
    a.s("s_lshr_b32 s76, s76, s77")
    a.s("s_mul_i32 s80, s76, 12288")
    a.s(f"s_mul_i32 s91, s73, {KUNIT}")
    a.s(f"s_add_u32 s91, s91, {KBASE}")
    a.s(f"s_mul_i32 s92, s73, {VUNIT}")
    if cfg.skew == 3:
        a.s(f"s_add_u32 s84, s{S_HL}, s{S_BG}")
        a.s("s_mul_i32 s85, s84, 43")
        a.s("s_lshr_b32 s85, s85, 7")
        a.s("s_mul_i32 s85, s85, 3")
        a.s("s_sub_u32 s84, s84, s85")
        a.s("s_mul_i32 s84, s84, 3")
    elif cfg.skew == 4:
        a.s(f"s_add_u32 s84, s{S_HL}, s{S_BG}")
        a.s("s_and_b32 s84, s84, 3")
        a.s("s_lshl_b32 s84, s84, 1")
    elif cfg.skew == 2:
        a.s(f"s_lshr_b32 s84, s{S_BG}, 1")
        a.s(f"s_xor_b32 s84, s84, s{S_HL}")
        a.s("s_and_b32 s84, s84, 1")
        a.s("s_lshl_b32 s84, s84, 2")
    elif cfg.skew == 9:
        a.s(f"s_lshl_b32 s84, s{S_BG}, 1")
        a.s(f"s_add_u32 s84, s84, s{S_HL}")
        a.s("s_sub_u32 s85, s84, 9")
        a.s("s_cmp_ge_u32 s84, 9")
        a.s("s_cselect_b32 s84, s85, s84")
    else:
        a.s("s_mov_b32 s84, 0")
    build_srds(a, ('x', 'wq', 'k'))
    def stage(s):
        slot = (1 + s % 3) * SL
        a.s("s_lshl_b32 s85, s84, 7")
        a.s("s_lshl_b32 s86, s84, 19")
        for i in range(4):
            a.s(f"s_add_u32 m0, s78, {slot + i*4096}")
            a.s(f"s_add_u32 s82, s86, {16*i*8192}")
            a.dma(2, S_WQ, "s82", cfg.ld_wq, tag=("st", s))
        for z in range(6):
            a.s(f"s_add_u32 m0, s79, {slot + z*2048}")
            a.s(f"s_add_u32 s82, s85, {z*16*1152}")
            a.dma(3, S_X, "s82", cfg.ld_x, tag=("st", s))
        a.s("s_add_u32 s84, s84, 1")
        a.s("s_cmp_eq_u32 s84, 9")
        a.s("s_cselect_b32 s84, 0, s84")
    def kvpart(g, srdb, sm0, stride, lo, hi, base=0):
        for i in range(lo, hi):
            a.s(f"s_add_u32 m0, s{sm0}, {base + i*stride}")
            a.s(f"s_add_u32 s82, s80, {i*1024}")
            a.dma(10, srdb, "s82", cfg.ld_kv, tag=("st", g))
    def codetouch():
        a.s("s_mov_b64 exec, 7")
        a.raw("    global_load_dword v24, v25, s[6:7]"); a.pos += 1
        a.vm.append((None, "touch"))
        a.s("s_mov_b64 exec, -1")
    def setup2():
        if cfg.ctouch:
            L = newlabel("pc")
            a.raw("    s_getpc_b64 s[6:7]")
            a.label(L)
            a.s(f"s_sub_u32 s6, s6, {L}-{NAME}_kernel")
            a.s("s_subb_u32 s7, s7, 0")
            a.s("s_lshr_b32 s76, s2, 3")
            a.s("s_lshl_b32 s76, s76, 2")
            a.s("s_add_u32 s76, s76, s73")
            a.s("s_mul_i32 s76, s76, 384")
            a.v("v_lshlrev_b32 v25, 7, v1")
            a.v("v_add_u32 v25, s76, v25")
            a.s("s_mov_b32 s77, L_code_end-" + NAME + "_kernel-4")
            a.v("v_min_u32 v25, s77, v25")
            codetouch()
        build_srds(a, ('v', 'wo', 'o'))
        stamp(a, cfg, 1)
        a.v("v_mov_b32 v16, 0")
        L = newlabel("nw")
        a.s("s_add_u32 s76, s2, s73")
        a.s("s_cmp_lg_u32 s76, 0")
        a.s(f"s_cbranch_scc1 {L}")
        a.raw("    s_memrealtime s[88:89]")
        a.raw("    s_waitcnt lgkmcnt(0)")
        a.s("s_or_b32 s88, s88, 1")
        a.v("v_mov_b32 v18, s88")
        a.v("v_mov_b32 v19, s89")
        a.s("s_mov_b64 exec, 1")
        a.raw(f"    buffer_store_dwordx2 v[18:19], v16, s[{S_DBG}:{S_DBG+3}], 0 offen sc1")
        a.s("s_mov_b64 exec, -1")
        a.label(L)
    def setup3():
        a.s("s_and_b32 s76, s95, 0xfc")
        a.s("s_lshl_b32 s76, s76, 7")
        a.s("s_lshl_b32 s77, s73, 5")
        a.s("s_add_u32 s76, s76, s77")
        a.s("s_mul_i32 s76, s76, 1152")
        a.s(f"s_mul_i32 s77, s{S_NT}, 288")
        a.s("s_and_b32 s77, s77, 0xffffffc0")
        a.s("s_add_u32 s76, s76, s77")
        for y in range(5):
            a.v(f"v_add_u32 v4, {y*64}, v1")
            a.v("v_mul_u32_u24 v5, 3277, v4")
            a.v("v_lshrrev_b32 v5, 16, v5")
            a.v("v_mul_u32_u24 v6, 20, v5")
            a.v("v_sub_u32 v6, v4, v6")
            a.v("v_bfe_u32 v7, v5, 2, 1")
            a.v("v_lshlrev_b32 v7, 1, v7")
            a.v("v_xor_b32 v6, v6, v7")
            a.v("v_mul_u32_u24 v5, 1152, v5")
            a.v("v_lshl_add_u32 v5, v6, 4, v5")
            a.v(f"v_add_u32 v{26+y}, s76, v5")
        a.s("s_mul_i32 s93, s73, 10240")
        a.v("v_lshlrev_b32 v22, 7, v1")
        if cfg.touch >= 2:
            a.s(f"s_lshl_b32 s76, s{S_BG}, 2")
            a.s(f"s_add_u32 s76, s76, s{S_NT}")
        else:
            a.s("s_lshr_b32 s76, s2, 3")
        a.s("s_lshl_b32 s76, s76, 2")
        a.s("s_add_u32 s76, s76, s73")
        a.s(f"s_mul_i32 s76, s76, {(144 if cfg.touch >= 2 else 72)*128}")
        a.s(f"s_mul_i32 s94, s{S_KQ}, {1024*1152}")
        a.s("s_add_u32 s94, s94, s76")
        if cfg.tlb > 2:
            a.s("s_mov_b64 exec, 1")
            a.bload(23, 1, 16, S_K, "s80", flags="nt", tag="touch"); a.vm[-1] = (None, "touch")
            a.bload(23, 1, 16, S_V, "s80", flags="nt", tag="touch"); a.vm[-1] = (None, "touch")
            a.bload(23, 1, 26, S_WO, "0", tag="touch"); a.vm[-1] = (None, "touch")
            a.s("s_mov_b64 exec, -1")
    def touches():
        a.s("s_mov_b32 exec_lo, -1"); a.s("s_mov_b32 exec_hi, 15")
        for i in range(4 if cfg.touch >= 2 else 2):
            a.bload(23, 1, 22, S_WO, "s94", tag="touch"); a.vm[-1] = (None, "touch")
            a.s(f"s_add_u32 s94, s94, {36*128}")
        a.s("s_mov_b64 exec, -1")
    def wostage(p, start):
        head_order(a, p, 83)
        a.s(f"s_mul_i32 s83, s83, {128*1152}")
        for z2 in range(2):
            a.s(f"s_add_u32 s82, s83, {z2*16*1152}")
            for y in range(5):
                a.s(f"s_add_u32 m0, s93, {((start + p) % 4)*SL + z2*5120 + y*1024}")
                a.dma(26+y, S_WO, "s82", cfg.ld_wo, tag=("st", 11+p))
    cnt = [0]
    def st(i):
        if not cfg.lst: stamp(a, cfg, i)
    W = lambda g: a.wait_vm_tag(("st", g))
    def B():
        k = cnt[0] - cfg.lst
        if cfg.lst and 0 <= k < 5: stamp(a, cfg, 1 + 2*k)
        a.barrier()
        if cfg.lst and 0 <= k < 5: stamp(a, cfg, 2 + 2*k)
        cnt[0] += 1
    start = 3; vb = VBASE_L
    if cfg.kfirst == 1: kvpart(9, S_K, 91, KSTR, 0, 9)
    stage(0); setup2(); stage(1); setup3(); st(2)
    classes = [(int(c[0]), int(c[1])) for c in cfg.cls.split(",")]
    g0 = min(min(c) for c in classes)
    def middle(lo, hi, mid, tpos, nxt):
        for g in range(lo, hi):
            W(g)
            if g == 0: st(3)
            if g == 3: st(4)
            B()
            if g == 4 and cfg.ctouch > 1: codetouch()
            if g in (mid, tpos):
                while nxt <= (g + 1 if g < 6 else 8): stage(nxt); nxt += 1
                if g == mid and not cfg.kfirst: kvpart(9, S_K, 91, KSTR, 0, 9)
                if g == tpos: touches()
                continue
            while nxt <= g + 2: stage(nxt); nxt += 1
        return nxt
    n0 = 2
    if cfg.sw:
        stage(2); n0 = 3
        if cfg.hold:
            a.s(f"s_and_b32 s76, s3, {cfg.hold}")
            a.s("s_cbranch_scc0 L_nohold")
            a.raw("    s_waitcnt vmcnt(0)")
            a.label("L_nohold")
        else: W(cfg.sw)
    nxt = middle(0, g0, -1, -1, n0)
    saved = list(a.vm); c0 = cnt[0]
    nc = len(classes)
    if nc == 2: a.s("s_and_b32 s3, s3, 1")
    for k in range(1, nc):
        a.s(f"s_cmp_eq_u32 s3, {k}")
        a.s(f"s_cbranch_scc1 L_cls{k}")
    for k, (kp_, tp_) in enumerate(classes):
        if k:
            a.label(f"L_cls{k}")
            a.hist = []; a.vm = list(saved); cnt[0] = c0
        assert middle(g0, 7, kp_, tp_, nxt) == 9
        W(7)
        B()
        kvpart(9, S_K, 91, KSTR, 9, 12)
        kvpart(10, S_V, 92, VSTR, 0, cfg.v7, vb)
        a.wait_vm_tag(("st", 8))
        if cfg.kearly: a.waitcnt(vm=3 + cfg.v7)
        else: a.vm = a.vm[-(3 + cfg.v7):]
        if k < nc - 1: a.s("s_branch L_join")
    a.label("L_join")
    st(5); B()
    kvpart(10, S_V, 92, VSTR, cfg.v7, cfg.v8, vb)
    W(9); st(6); B()
    kvpart(10, S_V, 92, VSTR, cfg.v8, 12, vb)
    wostage(0, start)
    W(10); st(7); B()
    if cfg.l_wo > 1: wostage(1, start)
    W(11); st(8); B()
    if cfg.ctouch > 1: codetouch()
    if cfg.fbar: B()
    if cfg.l_wo < 2: wostage(1, start)
    if cfg.wo2 > 1: wostage(2, start)
    if cfg.wo2 > 2: wostage(3, start)
    W(12); st(9); B()
    if cfg.wo2 < 3: wostage(2 if cfg.wo2 == 1 else 3, start)
    W(13); B()
    if cfg.wo2 == 1: wostage(3, start)
    nonce_load(a, 32, 16)
    if cfg.ctouch > 2: codetouch()
    W(14); st(10); B()
    a.v("v_lshlrev_b32 v14, 4, v1")
    a.v("v_lshlrev_b32 v11, 3, v1")
    tail_ssetup(a, 73, 0 if cfg.two else 1)
    nonce_check(a, 32, 16)
    apply_c(a, (88,))
    if cfg.two:
        a.s("s_add_u32 s96, s96, s76")
        a.s("s_lshl_b32 s76, s90, 7")
        a.s("s_add_u32 s96, s96, s76")
        a.s("s_lshl_b32 s97, 1, s90")
        a.s("s_xor_b32 s97, s97, 0xff")
    for f in tail_vsetup(a, 73, 0 if cfg.two else 1): f()
    if cfg.two: a.barrier()
    a.s("s_branch L_tail")

def xlane_reduce(a, op, regs, tmps):
    for sw in ("v_permlane32_swap_b32", "v_permlane16_swap_b32"):
        for r, t in zip(regs, tmps): a.v(f"v_mov_b32 v{t}, v{r}")
        for r, t in zip(regs, tmps): a.v(f"{sw} v{r}, v{t}")
        for r, t in zip(regs, tmps): a.v(f"{op} v{r}, v{r}, v{t}")

class Fill:
    def __init__(self): self.q = []
    def add(self, *fs): self.q.extend(fs)
    def pop(self, n):
        for _ in range(n):
            if self.q: self.q.pop(0)()
    def drain(self): self.pop(len(self.q))

def compute(a, cfg):
    ACC = 16; WF = 112; XF = 144; KF = 168; AS = 216; VF = 112
    accQ = lambda t, mt: ACC + (t*3 + mt)*4
    Wf = lambda t: WF + 4*t
    Xf = lambda par, mt: XF + par*12 + mt*4
    Kf = lambda kt, kp: KF + (kt*4 + kp)*4
    accS = lambda kt, mt: AS + (kt*3 + mt)*4
    Vf = lambda t: VF + 6*t
    accO = lambda mt, t: ACC + (mt*8 + t)*4
    aW = lambda st_, t: 216 + st_*10 + t
    aX = lambda st_, ks: 216 + st_*10 + 8 + ks
    aK = lambda kp: 252 + kp
    aV = lambda th: 2 + th
    R = [13, 15]
    ofA = lambda kp, mt: 168 + (kp*3 + mt)*4
    def ofB(kp, mt):
        f = kp*3 + mt
        return 216 + f*4 if f < 10 else 160 + (f - 10)*4
    of = lambda buf, kp, mt: ofB(kp, mt) if buf else ofA(kp, mt)
    acc2 = lambda mt, t: 16 + (mt*9 + t)*4
    Wf2 = lambda i: 124 + 4*i

    if cfg.prio: a.s(f"s_setprio {cfg.prio}")
    a.s("s_and_b32 s43, s2, 0x98")
    a.s(f"s_or_b32 s43, s43, s{S_W}")
    a.s("s_cmp_lg_u32 s43, 0")
    a.s("s_cbranch_scc1 L_np1")
    a.raw("    s_getreg_b32 s54, hwreg(HW_REG_XCC_ID, 2, 1)")
    a.s("s_lshr_b32 s46, s2, 6")
    a.s("s_lshl_b32 s46, s46, 3")
    a.s("s_and_b32 s47, s2, 7")
    a.s("s_add_u32 s46, s46, s47")
    a.s("s_mul_i32 s46, s46, 448")
    a.s("s_and_b32 s47, s2, 32")
    a.s("s_lshl_b32 s47, s47, 8")
    a.s("s_add_u32 s46, s46, s47")
    a.s(f"s_add_u32 s46, s46, {WS_PROBE}")
    a.raw("    s_waitcnt lgkmcnt(0)")
    a.s("s_add_u32 s44, s32, s46")
    a.s("s_addc_u32 s45, s33, 0")
    for rep in range(cfg.nprobe):
        a.raw("    s_memtime s[48:49]")
        a.raw(f"    s_load_dword s46, s[44:45], {rep*16384}")
        a.raw("    s_waitcnt lgkmcnt(0)")
        a.raw("    s_memtime s[50:51]")
        a.raw("    s_waitcnt lgkmcnt(0)")
    a.s("s_sub_u32 s50, s50, s48")
    a.s(f"s_min_u32 s50, s50, {CAP}")
    a.s("s_sub_u32 s51, 0, s50")
    a.s("s_lshr_b32 s47, s47, 13")
    a.s("s_cmp_eq_u32 s47, s54")
    a.s("s_cselect_b32 s50, s50, s51")
    a.s(f"s_add_u32 s50, s50, {(1 << 24) + CAP}")
    a.s("s_lshl_b32 s51, s54, s2")
    a.s(f"s_add_u32 s51, s51, {1 << 16}")
    a.s("s_cmp_lt_u32 s2, 8")
    a.s("s_cselect_b32 s51, s51, 0")
    a.label("L_np1")
    a.v("v_lshrrev_b32 v160, 4, v1")
    a.v("v_bfe_u32 v161, v1, 2, 2")
    a.v("v_and_b32 v162, 3, v1")
    a.v("v_and_b32 v163, 15, v1")
    a.v("v_and_b32 v165, 1, v160")
    a.s(f"s_mul_i32 s76, s{S_W}, {KUNIT}")
    a.s(f"s_mul_i32 s77, s{S_E}, {2*SL}")
    a.s("s_add_u32 s76, s76, s77")
    a.v(f"v_mul_u32_u24 v164, {KSTR}, v161")
    a.v("v_lshl_add_u32 v164, v162, 8, v164")
    a.v("v_lshl_add_u32 v164, v160, 3, v164")
    a.v("v_add_u32 v164, s76, v164")
    for kp in range(4):
        a.v(f"v_xor_b32 v167, {kp}, v162")
        a.v(f"v_lshl_add_u32 v{aK(kp)}, v167, 6, v164")
    a.v("v_lshl_add_u32 v164, v160, 3, v161")
    a.v("v_lshlrev_b32 v164, 8, v164")
    a.v("v_lshl_or_b32 v166, v165, 2, v161")
    a.v("v_lshl_add_u32 v164, v166, 5, v164")
    a.v("v_lshl_add_u32 v164, v162, 3, v164")
    a.v(f"v_add_u32 v{aW(0,0)}, {SL}, v164")
    for t in range(1, 8): a.v(f"v_xor_b32 v{aW(0,t)}, {32*t}, v{aW(0,0)}")
    a.v("v_lshrrev_b32 v164, 1, v163")
    a.v("v_xor_b32 v164, v164, v160")
    a.v("v_lshlrev_b32 v164, 4, v164")
    a.v("v_lshl_add_u32 v164, v163, 7, v164")
    a.s(f"s_mul_i32 s76, s{S_W}, 6144")
    a.s(f"s_add_u32 s76, s76, {16384 + SL}")
    a.v(f"v_add_u32 v{aX(0,0)}, s76, v164")
    a.v(f"v_xor_b32 v{aX(0,1)}, 64, v{aX(0,0)}")
    for i in range(10): a.v(f"v_add_u32 v{226+i}, {2*SL}, v{216+i}")
    a.s(f"s_mul_i32 s76, s{S_W}, {VUNIT}")
    a.s(f"s_cmp_eq_u32 s{S_E}, 1")
    a.s(f"s_cselect_b32 s77, 0, {VBASE_L}")
    a.s("s_add_u32 s76, s76, s77")
    a.v(f"v_mul_u32_u24 v164, {VSTR}, v160")
    a.v("v_lshl_add_u32 v164, v161, 8, v164")
    a.v("v_lshl_add_u32 v164, v162, 3, v164")
    a.v("v_add_u32 v164, s76, v164")
    for th in range(4):
        a.v(f"v_xor_b32 v167, {th}, v161")
        a.v(f"v_lshl_add_u32 v{aV(th)}, v167, 6, v164")
    a.v("v_lshl_add_u32 v164, v160, 2, v161")
    a.v("v_mul_u32_u24 v164, 320, v164")
    a.v("v_lshl_add_u32 v164, v162, 3, v164")
    a.s(f"s_cmp_eq_u32 s{S_E}, 1")
    a.s(f"s_mov_b32 s76, {3*SL}")
    a.s(f"s_cselect_b32 s76, {2*SL}, s76")
    a.s(f"s_mov_b32 s93, {SL}")
    a.s(f"s_cselect_b32 s93, s93, {(-3*SL) & 0xffffffff}")
    a.s(f"s_mov_b32 s94, {SL}")
    a.s(f"s_cselect_b32 s94, {(-3*SL) & 0xffffffff}, s94")
    a.s(f"s_mov_b32 s95, {SL}")
    a.v("v_add_u32 v164, s76, v164")
    a.s(f"s_and_b32 s77, s{S_NT}, 1")
    a.v("v_xor_b32 v167, s77, v165")
    a.v(f"v_lshl_add_u32 v{R[0]}, v167, 5, v164")
    a.s("s_add_u32 s77, s77, 1")
    a.v("v_xor_b32 v167, s77, v165")
    a.v(f"v_lshl_add_u32 v{R[1]}, v167, 5, v164")
    a.v("v_lshlrev_b32 v14, 4, v1")
    a.v("v_lshlrev_b32 v11, 3, v1")
    a.v("v_mov_b32 v10, 0")
    a.s(f"s_lshl_b32 s81, s{S_KQ}, 3")
    a.s(f"s_and_b32 s82, s{S_HL}, 4")
    a.s("s_add_u32 s81, s81, s82")
    unit_base(a, 80, S_W, 81)
    a.s(f"s_mov_b32 s83, {f2u(SC)}")
    a.s("s_and_b32 s76, s2, 7")
    a.s("s_lshr_b32 s77, s2, 5")
    a.s("s_lshl_b32 s77, s77, 3")
    a.s("s_or_b32 s76, s76, s77")
    a.s("s_lshl_b32 s76, s76, 2")
    a.s(f"s_add_u32 s76, s76, s{S_W}")
    a.s("s_lshr_b32 s77, s76, 6")
    a.s("s_lshl_b32 s77, s77, 14")
    a.s("s_and_b32 s76, s76, 63")
    a.s("s_lshl_b32 s76, s76, 7")
    a.s("s_add_u32 s76, s76, s77")
    a.s(f"s_add_u32 s84, s76, {WS_FLAG1}")
    a.s(f"s_lshl_b32 s85, 1, s{S_NT}")
    a.s("s_xor_b32 s86, s85, 15")
    tail_ssetup(a, S_W, 1 if cfg.two else 0)
    a.s("s_lshl_b32 s97, 1, s90")
    build_srds(a, ('o',))
    srd(a, S_X, 32, 33, 0)
    if cfg.warmf:
        a.v("v_mov_b32 v7, s84")
        a.s("s_xor_b32 s76, s84, 8192")
        a.raw("    v_writelane_b32 v7, s76, 1")
        a.s("s_lshl_b32 s76, s90, 7")
        a.s("s_add_u32 s76, s76, s96")
        a.raw("    v_writelane_b32 v7, s76, 2")
        a.s("s_xor_b32 s76, s76, 8192")
        a.raw("    v_writelane_b32 v7, s76, 3")
        if cfg.tlb:
            a.s("s_xor_b32 s76, s40, 20480")
            a.s("s_add_u32 s76, s76, s80")
            a.raw("    v_writelane_b32 v7, s76, 4")
            a.s(f"s_add_u32 s76, s92, {15*16384}")
            a.raw("    v_writelane_b32 v7, s76, 5")
        a.s(f"s_mov_b64 exec, {63 if cfg.tlb else 15}")
        a.bload(6, 1, 7, S_WS, "0", flags="sc1")
        if cfg.tlb > 1:
            a.s("s_mov_b64 exec, 1")
            a.bload(8, 1, 10, S_OUT, "s87", flags="nt")
        a.s("s_mov_b64 exec, -1")

    ver = {}
    def rdW(s, t, ks, h):
        def f():
            a.ds_read("ds_read_b64_tr_b16", Wf(t)+2*h, 2, aW((s % 3) >> 1, t), off=((s % 3) & 1)*SL + ks*8192 + h*1024); ver[("W", t, h)] = (s, ks)
        return f
    def rdX(s, mt, ks):
        def f():
            a.ds_read("ds_read_b128", Xf(ks, mt), 4, aX((s % 3) >> 1, ks), off=((s % 3) & 1)*SL + mt*2048); ver[("X", ks, mt)] = s
        return f
    def chk1(s, ks, t, mt):
        assert ver[("W", t, 0)] == (s, ks) and ver[("W", t, 1)] == (s, ks) and ver[("X", ks, mt)] == s, (s, ks, t, mt)
    def readK():
        for kp in range(4):
            for kt in range(3):
                for e in range(2): a.ds_read("ds_read_b64", Kf(kt, kp)+2*e, 2, aK(kp), off=kt*4*KSTR + 32*e)
    def rdK1(kt, kp, e):
        return lambda: a.ds_read("ds_read_b64", Kf(kt, kp)+2*e, 2, aK(kp), off=kt*4*KSTR + 32*e)
    def cvt(d, s0, s1):
        return lambda: a.v(f"v_cvt_pk_bf16_f32 v{d}, v{s0}, v{s1}")
    def cvtQ(kp):
        out = []
        for mt in range(3):
            r = accQ(2*kp, mt); s_ = accQ(2*kp+1, mt)
            out += [cvt(r, r, r+1), cvt(r+1, r+2, r+3), cvt(r+2, s_, s_+1), cvt(r+3, s_+2, s_+3)]
        return out
    F = Fill()
    a.s("s_cmp_lg_u32 s43, 0")
    a.s("s_cbranch_scc1 L_np2")
    a.v("v_mov_b32 v112, s50")
    a.v("v_mov_b32 v113, s51")
    a.s("s_mov_b64 exec, 1")
    a.raw(f"    buffer_atomic_add_x2 v[112:113], v10, s[{S_DBG}:{S_DBG+3}], 0 offen offset:8 sc1")
    a.s("s_mov_b64 exec, -1")
    a.nop(2)
    a.label("L_np2")
    stamp(a, cfg, 1)
    if cfg.el == 1:
        a.s(f"s_cmp_eq_u32 s{S_E}, 0")
        a.s("s_cbranch_scc1 L_noK0")
        a.barrier()
        readK()
        a.waitcnt(lgkm=0)
        a.barrier()
        a.label("L_noK0")
    a.barrier()
    stamp(a, cfg, 2)
    for mt in range(3): rdX(0, mt, 0)()
    for t in range(8): rdW(0, t, 0, 0)(); rdW(0, t, 0, 1)()
    BP = cfg.barpos
    for s in range(9):
        last = s == 8
        for mt in range(3): F.add(rdX(s, mt, 1))
        for t in range(8):
            if last and cfg.kearly: F.add(rdK1(t >> 2, t & 3, 0), rdK1(t >> 2, t & 3, 1))
            for mt in (range(3) if (t % 2 == 0 or not cfg.serp) else (2, 1, 0)):
                chk1(s, 0, t, mt)
                a.mfma(accQ(t, mt), Wf(t), Xf(0, mt), None if s == 0 else accQ(t, mt))
                for b in range(cfg.x_burn): a.raw(f"    v_mad_u32_u24 v{236+(t*3+mt+b*5)%16}, v{Wf(t)+mt}, v{Xf(0,mt)+b}, v{236+(t*3+mt+b*5+7)%16}")
                F.pop(2 if len(F.q) > 2 else 1)
            if cfg.x_pace and s < cfg.pst: a.nop(cfg.x_pace)
            if s < cfg.strict and t % cfg.smod == 0: a.waitcnt(lgkm=0)
            F.add(rdW(s, t, 1, 0), rdW(s, t, 1, 1))
        for t in range(8):
            for mt in (range(3) if (t % 2 == 0 or not cfg.serp) else (2, 1, 0)):
                chk1(s, 1, t, mt)
                a.mfma(accQ(t, mt), Wf(t), Xf(1, mt), accQ(t, mt))
                for b in range(cfg.x_burn): a.raw(f"    v_mad_u32_u24 v{236+(t*3+mt+b*5)%16}, v{Wf(t)+mt}, v{Xf(1,mt)+b}, v{236+(t*3+mt+b*5+7)%16}")
                F.pop(2 if len(F.q) > 2 else 1)
            if cfg.x_pace and s < cfg.pst and cfg.pst < 9: a.nop(cfg.x_pace)
            if s < cfg.strict and t != BP - 1 and t % cfg.smod == 0: a.waitcnt(lgkm=0)
            if last:
                if t in (3, 5, 7): F.add(*cvtQ((t - 3)//2))
            elif t == BP - 1:
                assert not F.q
                a.waitcnt(lgkm=0)
                a.barrier()
                F.add(rdX(s+1, 0, 0), rdW(s+1, 0, 0, 0), rdW(s+1, 0, 0, 1), rdX(s+1, 1, 0), rdX(s+1, 2, 0))
                for tt in range(1, BP): F.add(rdW(s+1, tt, 0, 0), rdW(s+1, tt, 0, 1))
            elif t >= BP:
                F.add(rdW(s+1, t, 0, 0), rdW(s+1, t, 0, 1))
    a.waitcnt(lgkm=0)
    a.barrier()
    stamp(a, cfg, 3)
    if not cfg.att:
        a.bload(8, 2, 10, S_DBG, "0", flags="sc1", tag="nonce")
        if cfg.el:
            a.s(f"s_cmp_eq_u32 s{S_E}, 1")
            a.s("s_cbranch_scc1 L_noK1")
        readK()
        if cfg.el: a.label("L_noK1")
        F.drain()
        for f in cvtQ(3): f()
        for kp in range(4):
            for kt in range(3):
                for mt in range(3):
                    a.mfma(accS(kt, mt), Kf(kt, kp), accQ(2*kp, mt), None if kp == 0 else accS(kt, mt))
        MX = [160, 161, 162]; TM = [163, 164, 165]; SM = [166, 167, 6]
        vals = lambda mt: [accS(kt, mt) + r for kt in range(3) for r in range(4)]
        for mt in range(3):
            v = vals(mt); a.v(f"v_max3_f32 v{MX[mt]}, v{v[0]}, v{v[1]}, v{v[2]}")
        for i in range(3, 11, 2):
            for mt in range(3):
                v = vals(mt); a.v(f"v_max3_f32 v{MX[mt]}, v{MX[mt]}, v{v[i]}, v{v[i+1]}")
        for mt in range(3):
            v = vals(mt); a.v(f"v_max_f32 v{MX[mt]}, v{MX[mt]}, v{v[11]}")
        xlane_reduce(a, "v_max_f32", MX, TM)
        for mt in range(3): a.v(f"v_mul_f32 v{MX[mt]}, s83, v{MX[mt]}")
        for i in range(12):
            for mt in range(3):
                v = vals(mt); a.v(f"v_fma_f32 v{v[i]}, v{v[i]}, s83, -v{MX[mt]}")
        for i in range(12):
            for mt in range(3):
                v = vals(mt); a.v(f"v_exp_f32 v{v[i]}, v{v[i]}")
        for mt in range(3):
            v = vals(mt); a.v(f"v_add_f32 v{SM[mt]}, v{v[0]}, v{v[1]}")
        for i in range(2, 12):
            for mt in range(3):
                v = vals(mt); a.v(f"v_add_f32 v{SM[mt]}, v{SM[mt]}, v{v[i]}")
        xlane_reduce(a, "v_add_f32", SM, TM)
        for mt in range(3): a.v(f"v_rcp_f32 v{SM[mt]}, v{SM[mt]}")
        a.barrier()
        for t in range(8):
            for kt in range(3):
                F.add(lambda t=t, kt=kt: a.ds_read("ds_read_b64_tr_b16", Vf(t) + 2*kt, 2, aV(t >> 1), off=kt*4*VSTR + (t & 1)*32))
        for i in range(12):
            for mt in range(3):
                v = vals(mt); a.v(f"v_mul_f32 v{v[i]}, v{v[i]}, v{SM[mt]}"); F.pop(1)
        for mt in range(3):
            r0, r1, r2 = accS(0, mt), accS(1, mt), accS(2, mt)
            for f in (cvt(r0, r0, r0+1), cvt(r0+1, r0+2, r0+3), cvt(r0+2, r1, r1+1), cvt(r0+3, r1+2, r1+3), cvt(r2, r2, r2+1), cvt(r2+1, r2+2, r2+3)): f()
        stamp(a, cfg, 4)
        nonce_check(a, 10)
        a.s(f"s_lshl_b32 s81, s{S_NT}, 15")
        a.s("s_add_u32 s81, s81, s80")
        def ostore(mt, kp):
            r = accO(mt, 2*kp); s_ = accO(mt, 2*kp+1); d = ofA(kp, mt); f = kp*3 + mt
            return [cvt(d, r, r+1), cvt(d+1, r+2, r+3), cvt(d+2, s_, s_+1), cvt(d+3, s_+2, s_+3),
                    lambda: a.s(f"s_add_u32 s82, s81, s{40 + f//4}"),
                    lambda: a.bstore(d, 4, 14, S_WS, "s82", off=(f % 4)*1024, flags="sc1")]
        for mt in range(3):
            for t in range(8):
                a.mfma(accO(mt, t), Vf(t), accS(0, mt), None); F.pop(2)
            for t in range(8):
                a.mfma(accO(mt, t), Vf(t)+4, accS(2, mt), accO(mt, t), k=16); F.pop(2)
            for kp in range(4): F.add(*ostore(mt, kp))
    else:
        assert cfg.el == 2 and cfg.l_kpos >= 0 and cfg.c_kpos >= 0
        if not cfg.kearly:
            for kp in range(4):
                for kt in range(2): rdK1(kt, kp, 0)(); rdK1(kt, kp, 1)()
        for kp in range(4): rdK1(2, kp, 0)(); rdK1(2, kp, 1)()
        nonce_load(a, 252, 10)
        F.add(*cvtQ(3))
        order = [(kp, kt, mt) for kp in range(3) for kt in range(2) for mt in range(3)]
        order += [(kp, 2, mt) for kp in range(3) for mt in range(3)]
        order += [(3, kt, mt) for mt in range(3) for kt in range(3)]
        for n, (kp, kt, mt) in enumerate(order):
            if kp == 2 and n == 12: F.pop(max(0, len(F.q) - 12))
            if kp == 3: F.drain()
            a.mfma(accS(kt, mt), Kf(kt, kp), accQ(2*kp, mt), None if kp == 0 else accS(kt, mt)); F.pop(2)
        MX = [160, 162, 164]; TM = [161, 163, 165]; SM = [166, 6, 112]
        vals = lambda mt: [accS(kt, mt) + r for kt in range(3) for r in range(4)]
        for mt in range(3):
            v = vals(mt); a.v(f"v_max3_f32 v{MX[mt]}, v{v[0]}, v{v[1]}, v{v[2]}")
        for i in range(3, 11, 2):
            for mt in range(3):
                v = vals(mt); a.v(f"v_max3_f32 v{MX[mt]}, v{MX[mt]}, v{v[i]}, v{v[i+1]}")
        for mt in range(3):
            v = vals(mt); a.v(f"v_max_f32 v{MX[mt]}, v{MX[mt]}, v{v[11]}")
        xlane_reduce(a, "v_max_f32", MX, TM)
        for mt in range(3): a.v(f"v_mul_f32 v{MX[mt]}, s83, v{MX[mt]}")
        for i in range(0, 12, 2):
            for mt in range(3):
                v = vals(mt)
                a.v(f"v_pk_fma_f32 v[{v[i]}:{v[i]+1}], v[{v[i]}:{v[i]+1}], s[82:83], v[{MX[mt]}:{MX[mt]+1}] op_sel:[0,1,0] op_sel_hi:[1,1,0] neg_lo:[0,0,1] neg_hi:[0,0,1]")
        for i in range(12):
            for mt in range(3):
                v = vals(mt); a.v(f"v_exp_f32 v{v[i]}, v{v[i]}")
        for mt in range(3):
            v = vals(mt); a.v(f"v_pk_add_f32 v[{SM[mt]}:{SM[mt]+1}], v[{v[0]}:{v[1]}], v[{v[2]}:{v[3]}]")
        for i in range(4, 12, 2):
            for mt in range(3):
                v = vals(mt); a.v(f"v_pk_add_f32 v[{SM[mt]}:{SM[mt]+1}], v[{SM[mt]}:{SM[mt]+1}], v[{v[i]}:{v[i]+1}]")
        for mt in range(3): a.v(f"v_add_f32 v{MX[mt]}, v{SM[mt]}, v{SM[mt]+1}")
        xlane_reduce(a, "v_add_f32", MX, TM)
        for mt in range(3): a.v(f"v_rcp_f32 v{MX[mt]}, v{MX[mt]}")
        for i in range(0, 12, 2):
            for mt in range(3):
                v = vals(mt); a.v(f"v_pk_mul_f32 v[{v[i]}:{v[i]+1}], v[{v[i]}:{v[i]+1}], v[{MX[mt]}:{MX[mt]+1}] op_sel_hi:[1,0]")
        for mt in range(3):
            r0, r1, r2 = accS(0, mt), accS(1, mt), accS(2, mt)
            for f in (cvt(r0, r0, r0+1), cvt(r0+1, r0+2, r0+3), cvt(r0+2, r1, r1+1), cvt(r0+3, r1+2, r1+3), cvt(r2, r2, r2+1), cvt(r2+1, r2+2, r2+3)): f()
        stamp(a, cfg, 4)
        a.barrier()
        for t in range(8):
            for kt in range(3):
                a.ds_read("ds_read_b64_tr_b16", Vf(t) + 2*kt, 2, aV(t >> 1), off=kt*4*VSTR + (t & 1)*32)
        nonce_check(a, 252, 10)
        apply_c(a, (80, 84, 88))
        a.s("s_mov_b32 s52, s76")
        a.s("s_mov_b32 s53, s75")
        for k in range(4):
            F.add(lambda k=k: a.s(f"s_bitcmp1_b32 s53, {k}") or a.s(f"s_cselect_b32 s{44+k}, 8192, 0"), lambda k=k: a.s(f"s_xor_b32 s{44+k}, s{44+k}, s92"))
        a.s(f"s_lshl_b32 s81, s{S_NT}, 15")
        a.s("s_add_u32 s81, s81, s80")
        def ostore(mt, kp):
            r = accO(mt, 2*kp); s_ = accO(mt, 2*kp+1); d = ofA(kp, mt); f = kp*3 + mt
            return [cvt(d, r, r+1), cvt(d+1, r+2, r+3), cvt(d+2, s_, s_+1), cvt(d+3, s_+2, s_+3),
                    lambda: a.s(f"s_add_u32 s82, s81, s{40 + f//4}"),
                    lambda: a.bstore(d, 4, 14, S_WS, "s82", off=(f % 4)*1024, flags="sc1")]
        for kp in range(4):
            for t in (2*kp, 2*kp+1):
                for mt in range(3):
                    a.mfma(accO(mt, t), Vf(t), accS(0, mt), None); F.pop(2)
            for t in (2*kp, 2*kp+1):
                for mt in range(3):
                    a.mfma(accO(mt, t), Vf(t)+4, accS(2, mt), accO(mt, t), k=16); F.pop(2)
            F.add(lambda: None, lambda: None, lambda: None, lambda: None)
            for mt in range(3): F.add(*ostore(mt, kp))
    F.drain()
    stamp(a, cfg, 5)
    def flagst(off):
        a.s("s_mov_b32 exec_lo, s85"); a.s("s_mov_b32 exec_hi, 0")
        a.bstore(8, 2, 11, S_WS, "s84", off=off, flags="sc1")
        a.s("s_mov_b64 exec, -1")
    def poll_issue(mask, off):
        a.s(f"s_mov_b32 exec_lo, {mask}"); a.s("s_mov_b32 exec_hi, 0")
        a.bload(6, 2, 11, S_WS, "s84", off=off, flags="sc1")
        a.s("s_mov_b64 exec, -1")
    def poll_check(mask, off):
        L = newlabel("pc"); Lb = newlabel("pcb")
        a.s(f"s_mov_b32 exec_lo, {mask}"); a.s("s_mov_b32 exec_hi, 0")
        a.v("v_cmp_ne_u64 vcc, v[6:7], v[8:9]")
        a.s("s_mov_b64 exec, -1")
        a.s(f"s_cbranch_vccnz {L}")
        a.label(Lb)
        o = Asm(); o.label(L); poll_flags(o, 6, 8, 11, 84, mask, 76, off); o.s(f"s_branch {Lb}")
        a.ool += o.L
    if cfg.split:
        a.waitcnt(vm=6)
        flagst(0)
        head_order(a, 1, 75)
        a.s("s_lshl_b32 s75, 1, s75")
    a.waitcnt(lgkm=0)
    a.barrier()
    stamp(a, cfg, 10)
    KO = lambda p, ts: [(p, kp, t) for kp in range(4) for t in ts]
    TO = lambda p, ts: [(p, kp, t) for t in ts for kp in range(4)]
    items = KO(0, range(9)) + KO(1, range(9))
    if cfg.reord: items += KO(2, range(6)) + TO(3, range(6)) + KO(2, range(6, 9)) + TO(3, range(6, 9))
    else: items += KO(2, range(9)) + TO(3, range(9))
    first3 = next(i for i, it in enumerate(items) if it[0] == 3)
    done_at = {}
    for i, (p, kp, t) in enumerate(items): done_at[t//2] = i
    NB = 9
    R3 = [12, 10]
    def rdW2(i, h):
        p, kp, t = items[i]
        def f():
            a.ds_read("ds_read_b64_tr_b16", Wf2(i % NB)+2*h, 2, (R3 if p == 3 else R)[t & 1], off=kp*10240 + h*5120 + 32*(t - (t & 1))); ver[("W2", i % NB, h)] = i
        return f
    for kp in range(4):
        for mt in range(3): ver[("O", 0, kp, mt)] = 0
    def headbase(p):
        return [lambda: head_order(a, p, 81), lambda: a.s("s_lshl_b32 s81, s81, 15"), lambda: a.s("s_add_u32 s81, s81, s80")]
    def ldO(p, f, srdb=S_WS):
        kp, mt = divmod(f, 3)
        return [lambda: a.s(f"s_add_u32 s82, s81, s{40 + f//4}"),
                lambda: (a.bload(of(p & 1, kp, mt), 4, 14, srdb, "s82", off=(f % 4)*1024, flags="sc1"), ver.__setitem__(("O", p & 1, kp, mt), p))]
    def publish(mt, pair):
        if pair == 4 and mt == 1: return []
        slot = pair*3 + mt if pair < 4 else 12 + mt//2
        r = acc2(mt, 2*pair)
        out = [cvt(r, r, r+1), cvt(r+1, r+2, r+3)]
        if slot < 13:
            s_ = acc2(mt, 2*pair+1) if pair < 4 else acc2(1, 8)
            out += [cvt(r+2, s_, s_+1), cvt(r+3, s_+2, s_+3)]
        def st_():
            L = newlabel("own"); L2 = newlabel("ownb")
            a.s(f"s_cmp_eq_u32 s90, {slot & 7}")
            a.s(f"s_cbranch_scc1 {L}")
            if slot < 13: a.bstore(r, 4, 14, S_WS, "s82", flags="sc1", tag=("pub", slot))
            else: a.bstore(r, 2, 11, S_WS, "s82", flags="sc1", tag=("pub", slot))
            a.label(L2)
            a.ool += [f"{L}:", f"    ds_write_b128 v2, v[{r}:{r+3}] offset:{(slot >> 3)*4096}",
                      f"    buffer_store_dword v{r}, v14, s[{S_X}:{S_X+3}], 0 offen", f"    s_branch {L2}"]
        out += [lambda: a.s(f"s_add_u32 s82, s{44 + ((slot & 7) >> 1)}, {slot*16384}"), st_]
        return out
    def flag2(off):
        a.s("s_mov_b32 exec_lo, s97"); a.s("s_mov_b32 exec_hi, 0")
        a.bstore(8, 2, 3, S_WS, "s55", off=off, flags="sc1")
        a.s("s_mov_b64 exec, -1")
    def stageA():
        a.wait_vm_tag(("pub", 7))
        flag2(0)
        a.waitcnt(lgkm=0)
        a.barrier()
    for i in range(NB): rdW2(i, 0)(); rdW2(i, 1)()
    seen = set()
    n3 = 0
    for i, (p, kp, t) in enumerate(items):
        if i == cfg.fb:
            F.drain()
            a.waitcnt(vm=0)
            stamp(a, cfg, 6)
            flagst(0)
            if cfg.fbar: a.barrier()
        if i == 36:
            F.drain()
            if cfg.p2st: stamp(a, cfg, 1)
            a.barrier()
            if cfg.p2st: stamp(a, cfg, 2)
            for r in R: a.v(f"v_subrev_u32 v{r}, {3*SL}, v{r}")
            for j in range(36, 36 + NB): rdW2(j, 0)(); rdW2(j, 1)()
            for f in headbase(1): f()
            poll_flags(a, 6, 8, 11, 84, "s86", 76, 0, 4)
            stamp(a, cfg, 7)
            for fr in range(12):
                for f in ldO(1, fr): f()
            F.add(*headbase(2))
            for r, r3 in zip(R, R3): F.add(lambda r=r, r3=r3: a.v(f"v_add_u32 v{r3}, {2*SL}, v{r}"))
        if cfg.p2st and i in (37, 72, 108): stamp(a, cfg, {37: 3, 72: 4, 108: 5}[i])
        if p == 1 and t in (0, 3, 6): F.add(*ldO(2, kp*3 + t//3))
        if i == 54:
            F.add(*tail_vsetup(a, S_W, 0))
            F.add(*[lambda t=t: a.v(t) for t in ("v_lshrrev_b32 v5, 1, v1", "v_lshrrev_b32 v5, v5, s53", "v_and_b32 v5, 1, v5", "v_lshl_add_u32 v3, v5, 13, v3")])
            F.add(*[lambda t=t: a.s(t) for t in ("s_xor_b32 s97, s97, 0xff", "s_lshl_b32 s55, s90, 3", "s_add_u32 s55, s55, s96",
                                                  "s_lshl_b32 s76, s90, 7", "s_add_u32 s96, s96, s76", "s_add_u32 s96, s96, s52")])
        if i == 72: F.add(*headbase(3))
        if i >= 72 and n3 < 12 and (cfg.reord or t < 6): F.add(*ldO(3, n3)); n3 += 1
        if cfg.two and i == done_at[2] + 1 + cfg.fa: F.drain(); stageA()
        for mt in (range(3) if (i % 2 == 0 or not cfg.serp) else (2, 1, 0)):
            assert ver[("W2", i % NB, 0)] == i and ver[("W2", i % NB, 1)] == i and ver[("O", p & 1, kp, mt)] == p, (i, p, kp, t)
            a.mfma(acc2(mt, t), Wf2(i % NB), of(p & 1, kp, mt), acc2(mt, t) if (mt, t) in seen else None)
            seen.add((mt, t))
            F.pop(3 if len(F.q) > 8 else 2 if len(F.q) > 2 else 1)
        j = i + NB
        if j < len(items) and not (p == 0 and j >= 36):
            if j in (72, first3):
                F.drain()
                a.barrier()
                if j == 72:
                    for r in R: a.v(f"v_add_u32 v{r}, {SL}, v{r}")
            F.q = [rdW2(j, 0), rdW2(j, 1)] + F.q
        for pair in range(4):
            if i == done_at[pair] + 1:
                for mt in range(3): F.add(*publish(mt, pair))
    stamp(a, cfg, 8)
    F.drain()
    for mt in range(3):
        for f in publish(mt, 4): f()
    if cfg.two and done_at[2] + 1 + cfg.fa >= len(items): stageA()
    stamp(a, cfg, 9)
    a.waitcnt(vm=0, lgkm=0)
    stamp(a, cfg, 11)
    flag2(64)
    if cfg.two:
        a.v("v_add_u32 v2, 4096, v2")
        a.s("s_add_u32 s96, s96, 64")
    else:
        poll_flags(a, 6, 8, 11, 96, "s97", 76, 64, 62)

def tail(a, cfg, endlabel):
    if not cfg.two: a.barrier()
    a.s("s_cmp_ge_u32 s89, 14")
    a.s(f"s_cbranch_scc1 {endlabel}")
    if cfg.two: poll_flags(a, 6, 8, 11, 96, "s97", 76, 0, 68)
    stamp(a, cfg, 12)
    a.ds_read("ds_read_b128", 16, 4, 2)
    a.s("s_cmp_eq_u32 s89, 13")
    a.s("s_cbranch_scc1 L_half")
    def srcoff(k):
        a.s(f"s_add_u32 s76, s90, {k}")
        a.s("s_and_b32 s76, s76, 7")
        a.s("s_lshl_b32 s76, s76, 10")
        a.s("s_add_u32 s76, s76, s88")
    for k in range(1, 8):
        srcoff(k); a.bload(16 + 4*k, 4, 14, S_WS, "s76", flags="sc1")
    a.label("L_halfb")
    ool = Asm()
    ool.label("L_half")
    for k in range(1, 8):
        ool.s(f"s_add_u32 s76, s90, {k}"); ool.s("s_and_b32 s76, s76, 7"); ool.s("s_lshl_b32 s76, s76, 10"); ool.s("s_add_u32 s76, s76, s88")
        ool.bload(16 + 4*k, 2, 11, S_WS, "s76", flags="sc1")
    ool.s("s_branch L_halfb")
    a.ool += ool.L
    for k in range(8):
        src = 16 + 4*k
        for i in range(4):
            if k == 0:
                a.v(f"v_lshlrev_b32 v{48+2*i}, 16, v{src+i}")
                a.v(f"v_and_b32 v{49+2*i}, 0xffff0000, v{src+i}")
            else:
                a.v(f"v_lshlrev_b32 v{60+2*(i&1)}, 16, v{src+i}")
                a.v(f"v_and_b32 v{61+2*(i&1)}, 0xffff0000, v{src+i}")
                a.v(f"v_pk_add_f32 v[{48+2*i}:{49+2*i}], v[{48+2*i}:{49+2*i}], v[{60+2*(i&1)}:{61+2*(i&1)}]")
        if k == 1: stamp(a, cfg, 13)
    for i in range(4): a.v(f"v_cvt_pk_bf16_f32 v{64+i}, v{48+2*i}, v{49+2*i}")
    a.v("v_permlane16_swap_b32 v64, v66")
    a.v("v_permlane16_swap_b32 v65, v67")
    stamp(a, cfg, 14)
    a.s("s_mov_b64 exec, s[78:79]")
    a.bstore(64, 4, 4, S_OUT, "s87", flags=cfg.st_out)

def kernel(cfg):
    a = Asm()
    a.lcap = cfg.lcap
    ROT[0] = cfg.rot
    PP[0] = cfg.pp
    a.ool = []
    stamp(a, cfg, 0)
    prologue(a, cfg, "L_end")
    a.s(f"s_cmp_lt_u32 s{S_W}, 4")
    a.s("s_cbranch_scc1 L_compute")
    loader(a, cfg)
    a.label("L_compute")
    a.reset_state()
    compute(a, cfg)
    a.label("L_tail")
    a.reset_state()
    a.nop(2)
    tail(a, cfg, "L_st")
    a.label("L_st")
    if cfg.x_map:
        a.s(f"s_add_u32 s76, s2, s{S_W}")
        a.s("s_cmp_lg_u32 s76, 0")
        a.s("s_cbranch_scc1 L_end")
        a.raw("    s_waitcnt vmcnt(0)")
        for i in range(40): a.raw("    s_sleep 64")
        a.s("s_mov_b64 exec, 1")
        a.v("v_mov_b32 v20, 0")
        a.s("s_mov_b32 s40, 0"); a.s(f"s_mov_b32 s41, {28672}"); a.s("s_mov_b32 s42, 0")
        a.label("L_map")
        for rep in range(2):
            a.raw("    v_mov_b32 v21, 0")
            a.raw("    s_memtime s[44:45]"); a.raw("    s_waitcnt lgkmcnt(0)")
            a.raw(f"    buffer_atomic_add v21, v20, s[{S_WS}:{S_WS+3}], s41 offen sc0 sc1")
            a.raw("    s_waitcnt vmcnt(0)")
            a.raw("    s_memtime s[46:47]"); a.raw("    s_waitcnt lgkmcnt(0)")
        a.s("s_sub_u32 s46, s46, s44")
        a.s("s_cmp_gt_u32 s46, 680")
        a.s("s_cselect_b32 s46, 1, 0")
        a.s("s_lshl_b32 s46, s46, s40")
        a.s("s_or_b32 s42, s42, s46")
        a.s(f"s_add_u32 s41, s41, {2 << 20}")
        a.s("s_add_u32 s40, s40, 1")
        a.s("s_cmp_lt_u32 s40, 24")
        a.s("s_cbranch_scc1 L_map")
        a.v("v_mov_b32 v21, s42")
        a.raw(f"    buffer_store_dword v21, v20, s[{S_DBG}:{S_DBG+3}], 0 offen offset:16")
        a.v(f"v_mov_b32 v22, s{S_WS}")
        a.raw(f"    buffer_store_dword v22, v20, s[{S_DBG}:{S_DBG+3}], 0 offen offset:20")
        a.raw("    s_getreg_b32 s42, hwreg(HW_REG_XCC_ID)")
        a.v("v_mov_b32 v23, s42")
        a.raw(f"    buffer_store_dword v23, v20, s[{S_DBG}:{S_DBG+3}], 0 offen offset:24")
    if cfg.stamps: a.waitcnt(vm=0)
    stamp(a, cfg, 15)
    stamp_out(a, cfg)
    a.label("L_end")
    a.s("s_endpgm")
    for l in a.ool: a.raw(l)
    return a

HEADER = open("cdna_kernels/" + NAME + ".s.ref").read().split("; Override launch")[0]

def build(cfg):
    n = NAME + "_kernel"
    a = kernel(cfg)
    return HEADER + f"""; @launch grid=(256,1,1) block=(512,1,1) lds=163840
.amdgcn_target "amdgcn-amd-amdhsa--gfx950"
.text
.globl {n}
.p2align 8
.type {n},@function
{n}:
{a.text()}
L_code_end:
.section .rodata,"a"
.p2align 6
.amdhsa_kernel {n}
  .amdhsa_next_free_vgpr 256
  .amdhsa_next_free_sgpr 102
  .amdhsa_accum_offset 256
  .amdhsa_group_segment_fixed_size 0
  .amdhsa_kernarg_size 104
  .amdhsa_user_sgpr_count 2
  .amdhsa_user_sgpr_kernarg_segment_ptr 1
  .amdhsa_system_sgpr_workgroup_id_x 1
.end_amdhsa_kernel
"""

if __name__ == "__main__":
    cfg = Cfg()
    for kv in sys.argv[2:]:
        k, v = kv.split("=")
        cur = getattr(cfg, k)
        setattr(cfg, k, (v == "1") if isinstance(cur, bool) else int(v) if isinstance(cur, int) else v.replace("_", " "))
    open(sys.argv[1], "w").write(build(cfg))
```

```python
import sys, struct
from asm import *

NAME = "concat_heads__gqa_block_cached__mha_block_cached__near_ridge"
SL = 40960
KSTR, VSTR = 4112, 4128
KUNIT, VUNIT = 1024, 1024
KBASE = 0
VBASE_L = 12*KSTR
WS_O = 0
WS_FLAG1 = 64 << 20
WS_FLAG2 = 65 << 20
WS_PROBE = 68 << 20
WS_PART = 32 << 20
WS_STAMP = 72 << 20
WS_BYTES = 80 << 20
SC = 0.08838834764831845 * 1.4426950408889634
SPIN_MAX = 1 << 17
def f2u(x): return struct.unpack("<I", struct.pack("<f", x))[0]

S_X, S_K, S_V, S_WQ, S_WO, S_OUT, S_WS, S_DBG = 36, 40, 44, 48, 52, 56, 60, 64
S_BR, S_KQ, S_HL, S_BG, S_W, S_NT, S_E = 68, 69, 70, 71, 72, 98, 99

class Cfg:
    stamps = False; x_clk = False; lst = 0
    ld_x = ""; ld_wq = ""; ld_kv = "nt"; ld_wo = ""; st_out = ""
    skew = 3; prio = 3; lcap = 8; barpos = 3
    el = 2; pollpos = 4; ctouch = 3; e_wo = 1; l_wo = 1; prog = 1; touch = 1; tpos = 5; wo2 = 1; flagpos = 1; e_vpos = 4; l_kpos = 2; f2 = 1; c_kpos = 5; c_tpos = 3; swap = 1; own = 1; warmf = 1; p2st = 0; fbar = 1; wo0late = 0; x_enc = -1; x_amp = 4; dbgwg = 0; att = 1; r1first = 1; epoll = 0; cfix = -1; nprobe = 1; split = 0; fb = 9; x_pace = 0; cls = '33,44,55,66'; v7 = 4; v8 = 12; x_burn = 0; x_map = 0; bal = 0; two = 0; reord = 0; fa = 8; serp = 1; pp = 0; tlb = 0; sw = 0; kearly = 1; kfirst = 0; hold = 0; lprio = 0; xfirst = 0; tsh = '2222'; dyn = 1; w3e = 0; o3e = 0; strict = 3; smod = 1; pst = 9; pa = 14; pac = 21; rot = 0; pb = 48

NST = 16
def streg(i): return 4 if i == 0 else 8 + 2*(i-1) if i <= 13 else {14: 34, 15: 100}[i]
def stamp(a, cfg, i):
    if cfg.stamps:
        r = streg(i)
        a.raw(f"    {'s_memtime' if cfg.x_clk else 's_memrealtime'} s[{r}:{r+1}]"); a.pos += 1
def stamp_out(a, cfg):
    if not cfg.stamps: return
    if cfg.x_enc >= 0:
        a.raw("    s_waitcnt lgkmcnt(0)")
        a.s("s_lshl_b32 s3, s2, 3")
        a.s(f"s_add_u32 s3, s3, s{S_W}")
        a.s(f"s_cmp_lg_u32 s3, {cfg.dbgwg*8}")
        a.s("s_cbranch_scc1 L_end")
        a.s(f"s_sub_u32 s76, s{streg(cfg.x_enc)}, s4")
        a.s(f"s_mul_i32 s76, s76, {cfg.x_amp}")
        a.s("s_add_u32 s76, s76, 5000")
        a.label("L_hold")
        a.raw("    s_memrealtime s[78:79]")
        a.raw("    s_waitcnt lgkmcnt(0)")
        a.s("s_sub_u32 s77, s78, s4")
        a.s("s_cmp_lt_u32 s77, s76")
        a.s("s_cbranch_scc1 L_hold")
        return
    a.raw("    s_waitcnt lgkmcnt(0)")
    a.s("s_mov_b64 exec, 1")
    a.s("s_lshl_b32 s3, s2, 3")
    a.s(f"s_add_u32 s3, s3, s{S_W}")
    a.s("s_lshl_b32 s3, s3, 6")
    a.s(f"s_add_u32 s3, s3, {WS_STAMP}")
    a.v("v_mov_b32 v1, 0")
    for i in range(NST):
        a.v(f"v_mov_b32 v2, s{streg(i)}")
        a.bstore(2, 1, 1, S_WS, "s3", off=4*i)
        a.nop(2)

def srd(a, base, lo, hi, size):
    a.s(f"s_mov_b32 s{base}, s{lo}")
    a.s(f"s_mov_b32 s{base+1}, s{hi}")
    a.s(f"s_mov_b32 s{base+2}, {size}")
    a.s(f"s_mov_b32 s{base+3}, 0x20000")

BAL = [0]
def prologue(a, cfg, endlabel):
    a.s("s_cmp_ge_u32 s2, 256")
    a.s(f"s_cbranch_scc1 {endlabel}")
    a.raw("    s_load_dwordx16 s[8:23], s[0:1], 0")
    a.raw("    s_load_dwordx8 s[24:31], s[0:1], 64")
    a.raw("    s_load_dwordx2 s[32:33], s[0:1], 96")
    a.v("v_and_b32 v1, 63, v0")
    a.v("v_lshrrev_b32 v15, 6, v0")
    BAL[0] = cfg.bal
    if cfg.bal:
        a.s(f"s_bfe_u32 s{S_KQ}, s2, 0x10002")
        a.s(f"s_lshl_b32 s{S_KQ}, s{S_KQ}, 1")
        a.s(f"s_and_b32 s{S_BR}, s2, 1")
        a.s(f"s_or_b32 s{S_KQ}, s{S_KQ}, s{S_BR}")
        a.s(f"s_bfe_u32 s{S_BR}, s2, 0x10001")
    else:
        a.s(f"s_and_b32 s{S_KQ}, s2, 3")
        a.s(f"s_bfe_u32 s{S_BR}, s2, 0x10002")
    if cfg.swap: a.s(f"s_xor_b32 s{S_BR}, s{S_BR}, 1")
    a.s(f"s_bfe_u32 s{S_HL}, s2, 0x30003")
    a.s(f"s_lshr_b32 s{S_BG}, s2, 6")
    a.s(f"s_and_b32 s{S_NT}, s{S_HL}, 3")
    a.v(f"v_readfirstlane_b32 s{S_W}, v15")
    if cfg.el:
        a.s(f"s_lshr_b32 s{S_E}, s{S_HL}, 2")
        a.s(f"s_xor_b32 s{S_E}, s{S_E}, s{S_BG}")
        a.s(f"s_and_b32 s{S_E}, s{S_E}, 1")
        a.s(f"s_and_b32 s3, s{S_BG}, 2")
        a.s(f"s_or_b32 s3, s3, s{S_E}")
        if cfg.el == 2: a.s(f"s_mov_b32 s{S_E}, 0")
    else:
        a.s(f"s_mov_b32 s{S_E}, 0")

def build_srds(a, keys):
    a.raw("    s_waitcnt lgkmcnt(0)")
    a.s(f"s_cmp_eq_u32 s{S_BR}, 0")
    for (dst, pa, pb, key) in ((S_WQ, 14, 24, 'wq'), (S_X, 8, 18, 'x'), (S_K, 10, 20, 'k'), (S_V, 12, 22, 'v'), (S_WO, 16, 26, 'wo')):
        if key not in keys: continue
        a.s(f"s_cselect_b64 s[{dst}:{dst+1}], s[{pa}:{pa+1}], s[{pb}:{pb+1}]")
        if key in ('k', 'v'):
            a.s(f"s_mov_b32 s{dst+2}, 6291456")
            a.s(f"s_cselect_b32 s{dst+2}, 3145728, s{dst+2}")
        else:
            a.s(f"s_mov_b32 s{dst+2}, {884736 if key == 'x' else 4718592}")
        a.s(f"s_mov_b32 s{dst+3}, 0x20000")
    if 'o' in keys:
        srd(a, S_OUT, 28, 29, 1769472)
        srd(a, S_DBG, 30, 31, 256)
        srd(a, S_WS, 32, 33, WS_BYTES)

ROT = [0]
def head_order(a, p, sd):
    if p == 0: a.s(f"s_mov_b32 s{sd}, s{S_NT}")
    elif ROT[0]:
        a.s(f"s_add_u32 s{sd}, s{S_NT}, {p}"); a.s(f"s_and_b32 s{sd}, s{sd}, 3")
    else:
        a.s(f"s_cmp_le_u32 s{S_NT}, {p-1}"); a.s(f"s_cselect_b32 s{sd}, {p}, {p-1}")

_lbl = [0]
def newlabel(p):
    _lbl[0] += 1
    return f"L{p}_{_lbl[0]}"

PP = [0]
def poll_flags(a, vdata, vnonce, voff, soff, mask, stmp, off=0, v2=None):
    L = newlabel("poll"); X = newlabel("pollx")
    a.s(f"s_mov_b32 exec_lo, {mask}")
    a.s("s_mov_b32 exec_hi, 0")
    a.s(f"s_mov_b32 s{stmp}, 0")
    if PP[0] and v2 is not None:
        o = f" offset:{off}" if off else ""
        ld = lambda v: a.raw(f"    buffer_load_dwordx2 v[{v}:{v+1}], v{voff}, s[{S_WS}:{S_WS+3}], s{soff} offen{o} sc1")
        a.waitcnt(vm=0) if False else None
        ld(vdata)
        a.raw(f"    s_sleep {PP[0]}")
        a.label(L)
        ld(v2)
        a.s(f"s_add_u32 s{stmp}, s{stmp}, 1")
        a.raw("    s_waitcnt vmcnt(1)")
        a.raw(f"    v_cmp_ne_u64 vcc, v[{vdata}:{vdata+1}], v[{vnonce}:{vnonce+1}]")
        a.s(f"s_cbranch_vccz {X}")
        ld(vdata)
        a.s(f"s_cmp_gt_u32 s{stmp}, {SPIN_MAX}")
        a.raw("    s_waitcnt vmcnt(1)")
        a.s(f"s_cbranch_scc1 {X}")
        a.raw(f"    v_cmp_ne_u64 vcc, v[{v2}:{v2+1}], v[{vnonce}:{vnonce+1}]")
        a.s(f"s_cbranch_vccnz {L}")
        a.label(X)
        a.vm = [({vdata, vdata+1, v2, v2+1}, "poll")]
        a.s("s_mov_b64 exec, -1")
        return
    a.label(L)
    a.bload(vdata, 2, voff, S_WS, f"s{soff}", off=off, flags="sc1")
    a.s(f"s_add_u32 s{stmp}, s{stmp}, 1")
    a.s(f"s_cmp_gt_u32 s{stmp}, {SPIN_MAX}")
    a.waitcnt(vm=0)
    a.s(f"s_cbranch_scc1 {X}")
    a.v(f"v_cmp_ne_u64 vcc, v[{vdata}:{vdata+1}], v[{vnonce}:{vnonce+1}]")
    a.s(f"s_cbranch_vccnz {L}")
    a.label(X)
    a.s("s_mov_b64 exec, -1")

NVOTE = 32
CAP = 4095
def nonce_load(a, vn, vzero):
    a.bload(vn, 4, vzero, S_DBG, "0", flags="sc1", tag="nonce")
def nonce_check(a, vn, vzero):
    Lok = newlabel("nok"); Lsp = newlabel("nsp")
    a.s("s_mov_b32 s77, 0")
    a.v(f"v_readfirstlane_b32 s76, v{vn}")
    a.v(f"v_readfirstlane_b32 s75, v{vn+2}")
    a.v(f"v_readfirstlane_b32 s3, v{vn+3}")
    a.label(Lsp)
    a.s("s_cmp_lg_u32 s76, 0")
    a.s("s_cselect_b32 s76, s75, 0")
    a.s(f"s_cmp_ge_u32 s3, {8 << 16}")
    a.s("s_cselect_b32 s76, s76, 0")
    a.s(f"s_cmp_ge_u32 s76, {NVOTE << 24}")
    a.s(f"s_cbranch_scc1 {Lok}")
    a.s("s_add_u32 s77, s77, 1")
    a.s(f"s_cmp_gt_u32 s77, {SPIN_MAX}")
    a.s(f"s_cbranch_scc1 {Lok}")
    a.raw(f"    buffer_load_dwordx4 v[{vn}:{vn+3}], v{vzero}, s[{S_DBG}:{S_DBG+3}], 0 offen sc1")
    a.raw("    s_waitcnt vmcnt(0)")
    a.raw(f"    v_readfirstlane_b32 s76, v{vn}")
    a.raw(f"    v_readfirstlane_b32 s75, v{vn+2}")
    a.raw(f"    v_readfirstlane_b32 s3, v{vn+3}")
    a.raw("    s_nop 0")
    a.s(f"s_branch {Lsp}")
    a.label(Lok)
    a.v(f"v_mov_b32 v8, v{vn}")
    a.v(f"v_mov_b32 v9, v{vn+1}")
    a.s(f"s_cmp_gt_u32 s76, {(NVOTE << 24) + NVOTE*CAP}")
    a.s("s_cselect_b32 s76, 0xff, 0")
    a.s("s_xor_b32 s75, s3, s76")
    if BAL[0]:
        a.s("s_and_b32 s76, s2, 2")
        a.s("s_lshr_b32 s75, s75, s76")
        a.s("s_lshr_b32 s76, s75, 2")
        a.s("s_and_b32 s76, s76, 12")
        a.s("s_and_b32 s75, s75, 3")
        a.s("s_or_b32 s75, s75, s76")
    else:
        a.s("s_and_b32 s76, s2, 4")
        a.s("s_lshr_b32 s75, s75, s76")
    a.s(f"s_lshr_b32 s76, s75, s{S_KQ}")
    a.s("s_and_b32 s76, s76, 1")
    a.s("s_lshl_b32 s76, s76, 13")

def bsel(a, sd):
    a.s(f"s_lshr_b32 s76, s{sd}, 8")
    a.s("s_and_b32 s76, s76, 8192")
    a.s(f"s_or_b32 s{sd}, s{sd}, s76")

def apply_c(a, regs):
    for r in regs: a.s(f"s_xor_b32 s{r}, s{r}, s76")

def unit_base(a, sd, sb_w, shead):
    a.s(f"s_lshl_b32 s76, s{S_BR}, 2")
    a.s(f"s_add_u32 s76, s76, s{S_BG}")
    a.s("s_lshl_b32 s76, s76, 2")
    a.s(f"s_add_u32 s76, s76, s{sb_w}")
    a.s("s_lshl_b32 s76, s76, 5")
    a.s(f"s_add_u32 s76, s76, s{shead}")
    a.s(f"s_lshl_b32 s{sd}, s76, 15")
    bsel(a, sd)
    a.s(f"s_and_b32 s76, s{sb_w}, 1")
    a.s("s_lshl_b32 s40, s76, 12")
    a.s(f"s_and_b32 s76, s{sb_w}, 2")
    a.s("s_lshl_b32 s76, s76, 13")
    a.s("s_or_b32 s40, s40, s76")
    a.s("s_xor_b32 s41, s40, 4096")
    a.s("s_xor_b32 s42, s40, 16384")

def tail_ssetup(a, sw, half):
    a.s(f"s_lshr_b32 s90, s{S_HL}, 2")
    a.s(f"s_lshl_b32 s76, s{S_KQ}, 1")
    a.s("s_add_u32 s90, s90, s76")
    a.s(f"s_add_u32 s89, s90, {8*half}")
    a.s(f"s_lshl_b32 s91, s{S_BR}, 2")
    a.s(f"s_add_u32 s91, s91, s{S_BG}")
    a.s("s_lshl_b32 s91, s91, 2")
    a.s(f"s_add_u32 s91, s91, s{S_NT}")
    a.s("s_lshl_b32 s91, s91, 2")
    a.s(f"s_add_u32 s91, s91, s{sw}")
    a.s("s_lshr_b32 s76, s91, 3")
    a.s("s_lshl_b32 s76, s76, 14")
    a.s("s_and_b32 s77, s91, 7")
    a.s("s_lshl_b32 s77, s77, 10")
    a.s("s_add_u32 s76, s76, s77")
    a.s(f"s_add_u32 s96, s76, {WS_FLAG2}")
    a.s("s_lshl_b32 s92, s91, 18")
    a.s(f"s_add_u32 s92, s92, {WS_PART}")
    bsel(a, 92)
    a.s("s_lshl_b32 s76, s89, 14")
    a.s("s_add_u32 s88, s92, s76")
    a.s("s_lshl_b32 s76, s90, 10")
    a.s("s_add_u32 s92, s92, s76")
    a.s("s_mul_i32 s76, s89, 43")
    a.s("s_lshr_b32 s76, s76, 7")
    a.s("s_mul_i32 s77, s76, 3")
    a.s("s_sub_u32 s77, s89, s77")
    a.s("s_cmp_eq_u32 s89, 13")
    a.s("s_cselect_b32 s77, 2, s77")
    a.s("s_lshl_b32 s87, s76, 6")
    a.s(f"s_mul_i32 s77, s77, {16*2304}")
    a.s("s_add_u32 s87, s87, s77")
    a.s(f"s_lshl_b32 s77, s{S_BG}, 2")
    a.s(f"s_add_u32 s77, s77, s{sw}")
    a.s(f"s_mul_i32 s77, s77, {48*2304}")
    a.s("s_add_u32 s87, s87, s77")
    a.s(f"s_mul_i32 s77, s{S_BR}, 1152")
    a.s("s_add_u32 s87, s87, s77")
    a.s(f"s_mul_i32 s77, s{S_NT}, 288")
    a.s("s_add_u32 s87, s87, s77")
    a.s("s_cmp_lt_u32 s89, 12")
    a.s(f"s_cselect_b32 s74, 32, {16*2304}")
    a.s("s_cmp_lt_u32 s89, 13")
    a.s("s_cselect_b32 s78, -1, 0xffff")
    a.s("s_mov_b32 s79, s78")
    for u in range(16): assert (u*43) >> 7 == u//3

def tail_vsetup(a, sw=S_W, half=0):
    return [lambda t=t: a.v(t) for t in (
        "v_and_b32 v4, 15, v1", "v_mul_u32_u24 v4, 2304, v4", "v_bfe_u32 v5, v1, 4, 1", "v_mad_u32_u24 v4, v5, s74, v4",
        "v_lshrrev_b32 v5, 5, v1", "v_lshl_add_u32 v4, v5, 4, v4", "v_lshlrev_b32 v3, 7, v1", f"v_lshlrev_b32 v2, 4, v1", f"v_lshl_add_u32 v2, s{sw}, 10, v2", f"v_add_u32 v2, {3*SL + half*4096}, v2")]

def loader(a, cfg):
    if cfg.lprio: a.s(f"s_setprio {cfg.lprio}")
    a.s(f"s_sub_u32 s73, s{S_W}, 4")
    a.s("s_and_b32 s74, s73, 1")
    a.s("s_lshr_b32 s75, s73, 1")
    a.s(f"s_lshl_b32 s95, s{S_KQ}, 3")
    a.s(f"s_add_u32 s95, s95, s{S_HL}")
    a.v("v_lshrrev_b32 v4, 4, v1")
    a.s("s_lshl_b32 s76, s75, 2")
    a.v("v_or_b32 v5, s76, v4")
    a.v("v_bfe_u32 v6, v1, 1, 3")
    a.v("v_xor_b32 v6, v6, v5")
    a.v("v_lshlrev_b32 v6, 5, v6")
    a.v("v_and_b32 v7, 1, v1")
    a.v("v_lshl_add_u32 v6, v7, 4, v6")
    a.v("v_lshl_add_u32 v2, v4, 13, v6")
    a.s("s_lshl_b32 s76, s73, 15")
    a.s("s_lshl_b32 s77, s95, 8")
    a.s("s_add_u32 s76, s76, s77")
    a.v("v_add_u32 v2, s76, v2")
    a.v("v_lshlrev_b32 v5, 2, v4")
    a.v("v_and_b32 v6, 15, v1")
    a.v("v_xor_b32 v6, v6, v5")
    a.v("v_lshlrev_b32 v6, 4, v6")
    a.v("v_lshl_add_u32 v10, v4, 8, v6")
    a.s("s_lshl_b32 s76, s74, 2")
    a.v("v_or_b32 v5, s76, v4")
    a.v("v_lshrrev_b32 v4, 3, v1")
    a.v("v_mul_u32_u24 v4, 1152, v4")
    a.v("v_and_b32 v6, 7, v1")
    a.v("v_xor_b32 v6, v6, v5")
    a.v("v_lshl_add_u32 v3, v6, 4, v4")
    a.s(f"s_mul_i32 s76, s{S_BG}, {192*1152}")
    a.s(f"s_mul_i32 s77, s74, {8*1152}")
    a.s("s_add_u32 s76, s76, s77")
    a.s(f"s_mul_i32 s77, s75, {96*1152}")
    a.s("s_add_u32 s76, s76, s77")
    a.v("v_add_u32 v3, s76, v3")
    a.s("s_lshl_b32 s78, s73, 10")
    a.s("s_mul_i32 s79, s75, 12288")
    a.s("s_lshl_b32 s77, s74, 10")
    a.s("s_add_u32 s79, s79, s77")
    a.s("s_add_u32 s79, s79, 16384")
    a.s(f"s_lshl_b32 s76, s{S_BG}, 2")
    a.s("s_add_u32 s76, s76, s73")
    a.s("s_lshl_b32 s76, s76, 5")
    a.s("s_add_u32 s76, s76, s95")
    a.s(f"s_xor_b32 s77, s{S_BR}, 1")
    a.s("s_lshr_b32 s76, s76, s77")
    a.s("s_mul_i32 s80, s76, 12288")
    a.s(f"s_mul_i32 s91, s73, {KUNIT}")
    a.s(f"s_add_u32 s91, s91, {KBASE}")
    a.s(f"s_mul_i32 s92, s73, {VUNIT}")
    if cfg.skew == 3:
        a.s(f"s_add_u32 s84, s{S_HL}, s{S_BG}")
        a.s("s_mul_i32 s85, s84, 43")
        a.s("s_lshr_b32 s85, s85, 7")
        a.s("s_mul_i32 s85, s85, 3")
        a.s("s_sub_u32 s84, s84, s85")
        a.s("s_mul_i32 s84, s84, 3")
    elif cfg.skew == 4:
        a.s(f"s_add_u32 s84, s{S_HL}, s{S_BG}")
        a.s("s_and_b32 s84, s84, 3")
        a.s("s_lshl_b32 s84, s84, 1")
    elif cfg.skew == 2:
        a.s(f"s_lshr_b32 s84, s{S_BG}, 1")
        a.s(f"s_xor_b32 s84, s84, s{S_HL}")
        a.s("s_and_b32 s84, s84, 1")
        a.s("s_lshl_b32 s84, s84, 2")
    elif cfg.skew == 9:
        a.s(f"s_lshl_b32 s84, s{S_BG}, 1")
        a.s(f"s_add_u32 s84, s84, s{S_HL}")
        a.s("s_sub_u32 s85, s84, 9")
        a.s("s_cmp_ge_u32 s84, 9")
        a.s("s_cselect_b32 s84, s85, s84")
    else:
        a.s("s_mov_b32 s84, 0")
    build_srds(a, ('x', 'wq', 'k'))
    def stage(s):
        slot = (1 + s % 3) * SL
        a.s("s_lshl_b32 s85, s84, 7")
        a.s("s_lshl_b32 s86, s84, 19")
        for i in range(4):
            a.s(f"s_add_u32 m0, s78, {slot + i*4096}")
            a.s(f"s_add_u32 s82, s86, {16*i*8192}")
            a.dma(2, S_WQ, "s82", cfg.ld_wq, tag=("st", s))
        for z in range(6):
            a.s(f"s_add_u32 m0, s79, {slot + z*2048}")
            a.s(f"s_add_u32 s82, s85, {z*16*1152}")
            a.dma(3, S_X, "s82", cfg.ld_x, tag=("st", s))
        a.s("s_add_u32 s84, s84, 1")
        a.s("s_cmp_eq_u32 s84, 9")
        a.s("s_cselect_b32 s84, 0, s84")
    def kvpart(g, srdb, sm0, stride, lo, hi, base=0):
        for i in range(lo, hi):
            a.s(f"s_add_u32 m0, s{sm0}, {base + i*stride}")
            a.s(f"s_add_u32 s82, s80, {i*1024}")
            a.dma(10, srdb, "s82", cfg.ld_kv, tag=("st", g))
    def codetouch():
        a.s("s_mov_b64 exec, 7")
        a.raw("    global_load_dword v24, v25, s[6:7]"); a.pos += 1
        a.vm.append((None, "touch"))
        a.s("s_mov_b64 exec, -1")
    def setup2():
        if cfg.ctouch:
            L = newlabel("pc")
            a.raw("    s_getpc_b64 s[6:7]")
            a.label(L)
            a.s(f"s_sub_u32 s6, s6, {L}-{NAME}_kernel")
            a.s("s_subb_u32 s7, s7, 0")
            a.s("s_lshr_b32 s76, s2, 3")
            a.s("s_lshl_b32 s76, s76, 2")
            a.s("s_add_u32 s76, s76, s73")
            a.s("s_mul_i32 s76, s76, 384")
            a.v("v_lshlrev_b32 v25, 7, v1")
            a.v("v_add_u32 v25, s76, v25")
            a.s("s_mov_b32 s77, L_code_end-" + NAME + "_kernel-4")
            a.v("v_min_u32 v25, s77, v25")
            codetouch()
        build_srds(a, ('v', 'wo', 'o'))
        stamp(a, cfg, 1)
        a.v("v_mov_b32 v16, 0")
        L = newlabel("nw")
        a.s("s_add_u32 s76, s2, s73")
        a.s("s_cmp_lg_u32 s76, 0")
        a.s(f"s_cbranch_scc1 {L}")
        a.raw("    s_memrealtime s[88:89]")
        a.raw("    s_waitcnt lgkmcnt(0)")
        a.s("s_or_b32 s88, s88, 1")
        a.v("v_mov_b32 v18, s88")
        a.v("v_mov_b32 v19, s89")
        a.s("s_mov_b64 exec, 1")
        a.raw(f"    buffer_store_dwordx2 v[18:19], v16, s[{S_DBG}:{S_DBG+3}], 0 offen sc1")
        a.s("s_mov_b64 exec, -1")
        a.label(L)
    def setup3():
        a.s("s_and_b32 s76, s95, 0xfc")
        a.s("s_lshl_b32 s76, s76, 7")
        a.s("s_lshl_b32 s77, s73, 5")
        a.s("s_add_u32 s76, s76, s77")
        a.s("s_mul_i32 s76, s76, 1152")
        a.s(f"s_mul_i32 s77, s{S_NT}, 288")
        a.s("s_and_b32 s77, s77, 0xffffffc0")
        a.s("s_add_u32 s76, s76, s77")
        for y in range(5):
            a.v(f"v_add_u32 v4, {y*64}, v1")
            a.v("v_mul_u32_u24 v5, 3277, v4")
            a.v("v_lshrrev_b32 v5, 16, v5")
            a.v("v_mul_u32_u24 v6, 20, v5")
            a.v("v_sub_u32 v6, v4, v6")
            a.v("v_bfe_u32 v7, v5, 2, 1")
            a.v("v_lshlrev_b32 v7, 1, v7")
            a.v("v_xor_b32 v6, v6, v7")
            a.v("v_mul_u32_u24 v5, 1152, v5")
            a.v("v_lshl_add_u32 v5, v6, 4, v5")
            a.v(f"v_add_u32 v{26+y}, s76, v5")
        a.s("s_mul_i32 s93, s73, 10240")
        a.v("v_lshlrev_b32 v22, 7, v1")
        a.s(f"s_and_b32 s76, s{S_BG}, 1")
        a.s("s_lshl_b32 s76, s76, 2")
        a.s(f"s_add_u32 s76, s76, s{S_NT}")
        a.s("s_lshl_b32 s76, s76, 2")
        a.s("s_add_u32 s76, s76, s73")
        a.s(f"s_mul_i32 s76, s76, {8*36*128}")
        a.s(f"s_mul_i32 s94, s{S_KQ}, {1024*1152}")
        a.s("s_add_u32 s94, s94, s76")
        if cfg.tlb > 2:
            a.s("s_mov_b64 exec, 1")
            a.bload(23, 1, 16, S_K, "s80", flags="nt", tag="touch"); a.vm[-1] = (None, "touch")
            a.bload(23, 1, 16, S_V, "s80", flags="nt", tag="touch"); a.vm[-1] = (None, "touch")
            a.bload(23, 1, 26, S_WO, "0", tag="touch"); a.vm[-1] = (None, "touch")
            a.s("s_mov_b64 exec, -1")
    def touches(k):
        sh = [int(c) for c in cfg.tsh]
        assert sum(sh) == 8
        a.s("s_mov_b32 exec_lo, -1"); a.s("s_mov_b32 exec_hi, 15")
        for i in range(sum(sh[:k]), sum(sh[:k+1])):
            a.s(f"s_add_u32 s82, s94, {i*36*128}")
            a.bload(23, 1, 22, S_WO, "s82", tag="touch"); a.vm[-1] = (None, "touch")
        a.s("s_mov_b64 exec, -1")
    def wostage(p, start):
        head_order(a, p, 83)
        a.s(f"s_mul_i32 s83, s83, {128*1152}")
        for z2 in range(2):
            a.s(f"s_add_u32 s82, s83, {z2*16*1152}")
            for y in range(5):
                a.s(f"s_add_u32 m0, s93, {((start + p) % 4)*SL + z2*5120 + y*1024}")
                a.dma(26+y, S_WO, "s82", cfg.ld_wo, tag=("st", 11+p))
    cnt = [0]
    def st(i):
        if not cfg.lst: stamp(a, cfg, i)
    W = lambda g: a.wait_vm_tag(("st", g))
    def B():
        k = cnt[0] - cfg.lst
        if cfg.lst and 0 <= k < 5: stamp(a, cfg, 1 + 2*k)
        a.barrier()
        if cfg.lst and 0 <= k < 5: stamp(a, cfg, 2 + 2*k)
        cnt[0] += 1
    start = 3; vb = VBASE_L
    if cfg.kfirst == 1: kvpart(9, S_K, 91, KSTR, 0, 9)
    stage(0); setup2(); stage(1); setup3(); st(2)
    classes = [(int(c[0]), int(c[1])) for c in cfg.cls.split(",")]
    g0 = min(min(c) for c in classes)
    def middle(lo, hi, mid, tpos, nxt, k=0):
        for g in range(lo, hi):
            W(g)
            if g == 0: st(3)
            if g == 3: st(4)
            B()
            if g == 4 and cfg.ctouch > 1: codetouch()
            if g in (mid, tpos):
                while nxt <= (g + 1 if g < 6 else 8): stage(nxt); nxt += 1
                if g == mid and not cfg.kfirst: kvpart(9, S_K, 91, KSTR, 0, 9)
                if g == tpos: touches(k)
                continue
            while nxt <= g + 2: stage(nxt); nxt += 1
        return nxt
    n0 = 2
    if cfg.sw:
        stage(2); n0 = 3
        if cfg.hold:
            a.s(f"s_and_b32 s76, s3, {cfg.hold}")
            a.s("s_cbranch_scc0 L_nohold")
            a.raw("    s_waitcnt vmcnt(0)")
            a.label("L_nohold")
        else: W(cfg.sw)
    nxt = middle(0, g0, -1, -1, n0)
    saved = list(a.vm); c0 = cnt[0]
    nc = len(classes)
    if nc == 2: a.s("s_and_b32 s3, s3, 1")
    for k in range(1, nc):
        a.s(f"s_cmp_eq_u32 s3, {k}")
        a.s(f"s_cbranch_scc1 L_cls{k}")
    for k, (kp_, tp_) in enumerate(classes):
        if k:
            a.label(f"L_cls{k}")
            a.hist = []; a.vm = list(saved); cnt[0] = c0
        assert middle(g0, 7, kp_, tp_, nxt, k) == 9
        W(7)
        B()
        kvpart(9, S_K, 91, KSTR, 9, 12)
        kvpart(10, S_V, 92, VSTR, 0, cfg.v7, vb)
        a.wait_vm_tag(("st", 8))
        if cfg.kearly: a.waitcnt(vm=3 + cfg.v7)
        else: a.vm = a.vm[-(3 + cfg.v7):]
        if k < nc - 1: a.s("s_branch L_join")
    a.label("L_join")
    st(5); B()
    kvpart(10, S_V, 92, VSTR, cfg.v7, cfg.v8, vb)
    W(9); st(6); B()
    kvpart(10, S_V, 92, VSTR, cfg.v8, 12, vb)
    wostage(0, start)
    W(10); st(7); B()
    if cfg.l_wo > 1: wostage(1, start)
    W(11); st(8); B()
    if cfg.ctouch > 1: codetouch()
    if cfg.fbar: B()
    if cfg.l_wo < 2: wostage(1, start)
    if cfg.wo2 > 1: wostage(2, start)
    if cfg.wo2 > 2: wostage(3, start)
    W(12); st(9); B()
    if cfg.wo2 < 3: wostage(2 if cfg.wo2 == 1 else 3, start)
    if cfg.w3e: wostage(3, start)
    W(13); B()
    if cfg.wo2 == 1 and not cfg.w3e: wostage(3, start)
    nonce_load(a, 32, 16)
    if cfg.ctouch > 2: codetouch()
    W(14); st(10); B()
    a.v("v_lshlrev_b32 v14, 4, v1")
    a.v("v_lshlrev_b32 v11, 3, v1")
    tail_ssetup(a, 73, 0 if cfg.two else 1)
    nonce_check(a, 32, 16)
    apply_c(a, (88,))
    if cfg.two or cfg.dyn:
        a.s("s_add_u32 s96, s96, s76")
        a.s("s_lshl_b32 s76, s90, 7")
        a.s("s_add_u32 s96, s96, s76")
        a.s("s_lshl_b32 s97, 1, s90")
        a.s("s_xor_b32 s97, s97, 0xff")
    for f in tail_vsetup(a, 73, 0 if cfg.two else 1): f()
    if cfg.two or cfg.dyn: a.barrier()
    a.s("s_branch L_tail")

def xlane_reduce(a, op, regs, tmps):
    for sw in ("v_permlane32_swap_b32", "v_permlane16_swap_b32"):
        for r, t in zip(regs, tmps): a.v(f"v_mov_b32 v{t}, v{r}")
        for r, t in zip(regs, tmps): a.v(f"{sw} v{r}, v{t}")
        for r, t in zip(regs, tmps): a.v(f"{op} v{r}, v{r}, v{t}")

class Fill:
    def __init__(self): self.q = []
    def add(self, *fs): self.q.extend(fs)
    def pop(self, n):
        for _ in range(n):
            if self.q: self.q.pop(0)()
    def drain(self): self.pop(len(self.q))

def compute(a, cfg):
    ACC = 16; WF = 112; XF = 144; KF = 168; AS = 216; VF = 112
    accQ = lambda t, mt: ACC + (t*3 + mt)*4
    Wf = lambda t: WF + 4*t
    Xf = lambda par, mt: XF + par*12 + mt*4
    Kf = lambda kt, kp: KF + (kt*4 + kp)*4
    accS = lambda kt, mt: AS + (kt*3 + mt)*4
    Vf = lambda t: VF + 6*t
    accO = lambda mt, t: ACC + (mt*8 + t)*4
    aW = lambda st_, t: 216 + st_*10 + t
    aX = lambda st_, ks: 216 + st_*10 + 8 + ks
    aK = lambda kp: 252 + kp
    aV = lambda th: 2 + th
    R = [13, 15]
    ofA = lambda kp, mt: 168 + (kp*3 + mt)*4
    def ofB(kp, mt):
        f = kp*3 + mt
        return 216 + f*4 if f < 10 else 160 + (f - 10)*4
    of = lambda buf, kp, mt: ofB(kp, mt) if buf else ofA(kp, mt)
    acc2 = lambda mt, t: 16 + (mt*9 + t)*4
    Wf2 = lambda i: 124 + 4*i

    if cfg.prio: a.s(f"s_setprio {cfg.prio}")
    a.s("s_and_b32 s43, s2, 0x98")
    a.s(f"s_or_b32 s43, s43, s{S_W}")
    a.s("s_cmp_lg_u32 s43, 0")
    a.s("s_cbranch_scc1 L_np1")
    a.raw("    s_getreg_b32 s54, hwreg(HW_REG_XCC_ID, 2, 1)")
    a.s("s_lshr_b32 s46, s2, 6")
    a.s("s_lshl_b32 s46, s46, 3")
    a.s("s_and_b32 s47, s2, 7")
    a.s("s_add_u32 s46, s46, s47")
    a.s("s_mul_i32 s46, s46, 448")
    a.s("s_and_b32 s47, s2, 32")
    a.s("s_lshl_b32 s47, s47, 8")
    a.s("s_add_u32 s46, s46, s47")
    a.s(f"s_add_u32 s46, s46, {WS_PROBE}")
    a.raw("    s_waitcnt lgkmcnt(0)")
    a.s("s_add_u32 s44, s32, s46")
    a.s("s_addc_u32 s45, s33, 0")
    for rep in range(cfg.nprobe):
        a.raw("    s_memtime s[48:49]")
        a.raw(f"    s_load_dword s46, s[44:45], {rep*16384}")
        a.raw("    s_waitcnt lgkmcnt(0)")
        a.raw("    s_memtime s[50:51]")
        a.raw("    s_waitcnt lgkmcnt(0)")
    a.s("s_sub_u32 s50, s50, s48")
    a.s(f"s_min_u32 s50, s50, {CAP}")
    a.s("s_sub_u32 s51, 0, s50")
    a.s("s_lshr_b32 s47, s47, 13")
    a.s("s_cmp_eq_u32 s47, s54")
    a.s("s_cselect_b32 s50, s50, s51")
    a.s(f"s_add_u32 s50, s50, {(1 << 24) + CAP}")
    a.s("s_lshl_b32 s51, s54, s2")
    a.s(f"s_add_u32 s51, s51, {1 << 16}")
    a.s("s_cmp_lt_u32 s2, 8")
    a.s("s_cselect_b32 s51, s51, 0")
    a.label("L_np1")
    a.v("v_lshrrev_b32 v160, 4, v1")
    a.v("v_bfe_u32 v161, v1, 2, 2")
    a.v("v_and_b32 v162, 3, v1")
    a.v("v_and_b32 v163, 15, v1")
    a.v("v_and_b32 v165, 1, v160")
    a.s(f"s_mul_i32 s76, s{S_W}, {KUNIT}")
    a.s(f"s_mul_i32 s77, s{S_E}, {2*SL}")
    a.s("s_add_u32 s76, s76, s77")
    a.v(f"v_mul_u32_u24 v164, {KSTR}, v161")
    a.v("v_lshl_add_u32 v164, v162, 8, v164")
    a.v("v_lshl_add_u32 v164, v160, 3, v164")
    a.v("v_add_u32 v164, s76, v164")
    for kp in range(4):
        a.v(f"v_xor_b32 v167, {kp}, v162")
        a.v(f"v_lshl_add_u32 v{aK(kp)}, v167, 6, v164")
    a.v("v_lshl_add_u32 v164, v160, 3, v161")
    a.v("v_lshlrev_b32 v164, 8, v164")
    a.v("v_lshl_or_b32 v166, v165, 2, v161")
    a.v("v_lshl_add_u32 v164, v166, 5, v164")
    a.v("v_lshl_add_u32 v164, v162, 3, v164")
    a.v(f"v_add_u32 v{aW(0,0)}, {SL}, v164")
    for t in range(1, 8): a.v(f"v_xor_b32 v{aW(0,t)}, {32*t}, v{aW(0,0)}")
    a.v("v_lshrrev_b32 v164, 1, v163")
    a.v("v_xor_b32 v164, v164, v160")
    a.v("v_lshlrev_b32 v164, 4, v164")
    a.v("v_lshl_add_u32 v164, v163, 7, v164")
    a.s(f"s_mul_i32 s76, s{S_W}, 6144")
    a.s(f"s_add_u32 s76, s76, {16384 + SL}")
    a.v(f"v_add_u32 v{aX(0,0)}, s76, v164")
    a.v(f"v_xor_b32 v{aX(0,1)}, 64, v{aX(0,0)}")
    for i in range(10): a.v(f"v_add_u32 v{226+i}, {2*SL}, v{216+i}")
    a.s(f"s_mul_i32 s76, s{S_W}, {VUNIT}")
    a.s(f"s_cmp_eq_u32 s{S_E}, 1")
    a.s(f"s_cselect_b32 s77, 0, {VBASE_L}")
    a.s("s_add_u32 s76, s76, s77")
    a.v(f"v_mul_u32_u24 v164, {VSTR}, v160")
    a.v("v_lshl_add_u32 v164, v161, 8, v164")
    a.v("v_lshl_add_u32 v164, v162, 3, v164")
    a.v("v_add_u32 v164, s76, v164")
    for th in range(4):
        a.v(f"v_xor_b32 v167, {th}, v161")
        a.v(f"v_lshl_add_u32 v{aV(th)}, v167, 6, v164")
    a.v("v_lshl_add_u32 v164, v160, 2, v161")
    a.v("v_mul_u32_u24 v164, 320, v164")
    a.v("v_lshl_add_u32 v164, v162, 3, v164")
    a.s(f"s_cmp_eq_u32 s{S_E}, 1")
    a.s(f"s_mov_b32 s76, {3*SL}")
    a.s(f"s_cselect_b32 s76, {2*SL}, s76")
    a.s(f"s_mov_b32 s93, {SL}")
    a.s(f"s_cselect_b32 s93, s93, {(-3*SL) & 0xffffffff}")
    a.s(f"s_mov_b32 s94, {SL}")
    a.s(f"s_cselect_b32 s94, {(-3*SL) & 0xffffffff}, s94")
    a.s(f"s_mov_b32 s95, {SL}")
    a.v("v_add_u32 v164, s76, v164")
    a.s(f"s_and_b32 s77, s{S_NT}, 1")
    a.v("v_xor_b32 v167, s77, v165")
    a.v(f"v_lshl_add_u32 v{R[0]}, v167, 5, v164")
    a.s("s_add_u32 s77, s77, 1")
    a.v("v_xor_b32 v167, s77, v165")
    a.v(f"v_lshl_add_u32 v{R[1]}, v167, 5, v164")
    a.v("v_lshlrev_b32 v14, 4, v1")
    a.v("v_lshlrev_b32 v11, 3, v1")
    a.v("v_mov_b32 v10, 0")
    a.s(f"s_lshl_b32 s81, s{S_KQ}, 3")
    a.s(f"s_and_b32 s82, s{S_HL}, 4")
    a.s("s_add_u32 s81, s81, s82")
    unit_base(a, 80, S_W, 81)
    a.s(f"s_mov_b32 s83, {f2u(SC)}")
    a.s("s_and_b32 s76, s2, 7")
    a.s("s_lshr_b32 s77, s2, 5")
    a.s("s_lshl_b32 s77, s77, 3")
    a.s("s_or_b32 s76, s76, s77")
    a.s("s_lshl_b32 s76, s76, 2")
    a.s(f"s_add_u32 s76, s76, s{S_W}")
    a.s("s_lshr_b32 s77, s76, 6")
    a.s("s_lshl_b32 s77, s77, 14")
    a.s("s_and_b32 s76, s76, 63")
    a.s("s_lshl_b32 s76, s76, 7")
    a.s("s_add_u32 s76, s76, s77")
    a.s(f"s_add_u32 s84, s76, {WS_FLAG1}")
    a.s(f"s_lshl_b32 s85, 1, s{S_NT}")
    a.s("s_xor_b32 s86, s85, 15")
    tail_ssetup(a, S_W, 1 if cfg.two else 0)
    a.s("s_lshl_b32 s97, 1, s90")
    build_srds(a, ('o',))
    srd(a, S_X, 32, 33, 0)
    if cfg.warmf:
        a.v("v_mov_b32 v7, s84")
        a.s("s_xor_b32 s76, s84, 8192")
        a.raw("    v_writelane_b32 v7, s76, 1")
        a.s("s_lshl_b32 s76, s90, 7")
        a.s("s_add_u32 s76, s76, s96")
        a.raw("    v_writelane_b32 v7, s76, 2")
        a.s("s_xor_b32 s76, s76, 8192")
        a.raw("    v_writelane_b32 v7, s76, 3")
        if cfg.tlb:
            a.s("s_xor_b32 s76, s40, 20480")
            a.s("s_add_u32 s76, s76, s80")
            a.raw("    v_writelane_b32 v7, s76, 4")
            a.s(f"s_add_u32 s76, s92, {15*16384}")
            a.raw("    v_writelane_b32 v7, s76, 5")
        a.s(f"s_mov_b64 exec, {63 if cfg.tlb else 15}")
        a.bload(6, 1, 7, S_WS, "0", flags="sc1")
        if cfg.tlb > 1:
            a.s("s_mov_b64 exec, 1")
            a.bload(8, 1, 10, S_OUT, "s87", flags="nt")
        a.s("s_mov_b64 exec, -1")

    ver = {}
    def rdW(s, t, ks, h):
        def f():
            a.ds_read("ds_read_b64_tr_b16", Wf(t)+2*h, 2, aW((s % 3) >> 1, t), off=((s % 3) & 1)*SL + ks*8192 + h*1024); ver[("W", t, h)] = (s, ks)
        return f
    def rdX(s, mt, ks):
        def f():
            a.ds_read("ds_read_b128", Xf(ks, mt), 4, aX((s % 3) >> 1, ks), off=((s % 3) & 1)*SL + mt*2048); ver[("X", ks, mt)] = s
        return f
    def chk1(s, ks, t, mt):
        assert ver[("W", t, 0)] == (s, ks) and ver[("W", t, 1)] == (s, ks) and ver[("X", ks, mt)] == s, (s, ks, t, mt)
    def readK():
        for kp in range(4):
            for kt in range(3):
                for e in range(2): a.ds_read("ds_read_b64", Kf(kt, kp)+2*e, 2, aK(kp), off=kt*4*KSTR + 32*e)
    def rdK1(kt, kp, e):
        return lambda: a.ds_read("ds_read_b64", Kf(kt, kp)+2*e, 2, aK(kp), off=kt*4*KSTR + 32*e)
    def cvt(d, s0, s1):
        return lambda: a.v(f"v_cvt_pk_bf16_f32 v{d}, v{s0}, v{s1}")
    def cvtQ(kp):
        out = []
        for mt in range(3):
            r = accQ(2*kp, mt); s_ = accQ(2*kp+1, mt)
            out += [cvt(r, r, r+1), cvt(r+1, r+2, r+3), cvt(r+2, s_, s_+1), cvt(r+3, s_+2, s_+3)]
        return out
    F = Fill()
    a.s("s_cmp_lg_u32 s43, 0")
    a.s("s_cbranch_scc1 L_np2")
    a.v("v_mov_b32 v112, s50")
    a.v("v_mov_b32 v113, s51")
    a.s("s_mov_b64 exec, 1")
    a.raw(f"    buffer_atomic_add_x2 v[112:113], v10, s[{S_DBG}:{S_DBG+3}], 0 offen offset:8 sc1")
    a.s("s_mov_b64 exec, -1")
    a.nop(2)
    a.label("L_np2")
    stamp(a, cfg, 1)
    if cfg.el == 1:
        a.s(f"s_cmp_eq_u32 s{S_E}, 0")
        a.s("s_cbranch_scc1 L_noK0")
        a.barrier()
        readK()
        a.waitcnt(lgkm=0)
        a.barrier()
        a.label("L_noK0")
    a.barrier()
    stamp(a, cfg, 2)
    for mt in range(3): rdX(0, mt, 0)()
    for t in range(8): rdW(0, t, 0, 0)(); rdW(0, t, 0, 1)()
    BP = cfg.barpos
    for s in range(9):
        last = s == 8
        for mt in range(3): F.add(rdX(s, mt, 1))
        for t in range(8):
            if last and cfg.kearly: F.add(rdK1(t >> 2, t & 3, 0), rdK1(t >> 2, t & 3, 1))
            for mt in (range(3) if (t % 2 == 0 or not cfg.serp) else (2, 1, 0)):
                chk1(s, 0, t, mt)
                a.mfma(accQ(t, mt), Wf(t), Xf(0, mt), None if s == 0 else accQ(t, mt))
                for b in range(cfg.x_burn): a.raw(f"    v_mad_u32_u24 v{236+(t*3+mt+b*5)%16}, v{Wf(t)+mt}, v{Xf(0,mt)+b}, v{236+(t*3+mt+b*5+7)%16}")
                F.pop(2 if len(F.q) > 2 else 1)
            if cfg.x_pace and s < cfg.pst: a.nop(cfg.x_pace)
            if s < cfg.strict and t % cfg.smod == 0: a.waitcnt(lgkm=0)
            F.add(rdW(s, t, 1, 0), rdW(s, t, 1, 1))
        for t in range(8):
            for mt in (range(3) if (t % 2 == 0 or not cfg.serp) else (2, 1, 0)):
                chk1(s, 1, t, mt)
                a.mfma(accQ(t, mt), Wf(t), Xf(1, mt), accQ(t, mt))
                for b in range(cfg.x_burn): a.raw(f"    v_mad_u32_u24 v{236+(t*3+mt+b*5)%16}, v{Wf(t)+mt}, v{Xf(1,mt)+b}, v{236+(t*3+mt+b*5+7)%16}")
                F.pop(2 if len(F.q) > 2 else 1)
            if cfg.x_pace and s < cfg.pst and cfg.pst < 9: a.nop(cfg.x_pace)
            if s < cfg.strict and t != BP - 1 and t % cfg.smod == 0: a.waitcnt(lgkm=0)
            if last:
                if t in (3, 5, 7): F.add(*cvtQ((t - 3)//2))
            elif t == BP - 1:
                assert not F.q
                a.waitcnt(lgkm=0)
                a.barrier()
                F.add(rdX(s+1, 0, 0), rdW(s+1, 0, 0, 0), rdW(s+1, 0, 0, 1), rdX(s+1, 1, 0), rdX(s+1, 2, 0))
                for tt in range(1, BP): F.add(rdW(s+1, tt, 0, 0), rdW(s+1, tt, 0, 1))
            elif t >= BP:
                F.add(rdW(s+1, t, 0, 0), rdW(s+1, t, 0, 1))
    a.waitcnt(lgkm=0)
    a.barrier()
    stamp(a, cfg, 3)
    if not cfg.att:
        a.bload(8, 2, 10, S_DBG, "0", flags="sc1", tag="nonce")
        if cfg.el:
            a.s(f"s_cmp_eq_u32 s{S_E}, 1")
            a.s("s_cbranch_scc1 L_noK1")
        readK()
        if cfg.el: a.label("L_noK1")
        F.drain()
        for f in cvtQ(3): f()
        for kp in range(4):
            for kt in range(3):
                for mt in range(3):
                    a.mfma(accS(kt, mt), Kf(kt, kp), accQ(2*kp, mt), None if kp == 0 else accS(kt, mt))
        MX = [160, 161, 162]; TM = [163, 164, 165]; SM = [166, 167, 6]
        vals = lambda mt: [accS(kt, mt) + r for kt in range(3) for r in range(4)]
        for mt in range(3):
            v = vals(mt); a.v(f"v_max3_f32 v{MX[mt]}, v{v[0]}, v{v[1]}, v{v[2]}")
        for i in range(3, 11, 2):
            for mt in range(3):
                v = vals(mt); a.v(f"v_max3_f32 v{MX[mt]}, v{MX[mt]}, v{v[i]}, v{v[i+1]}")
        for mt in range(3):
            v = vals(mt); a.v(f"v_max_f32 v{MX[mt]}, v{MX[mt]}, v{v[11]}")
        xlane_reduce(a, "v_max_f32", MX, TM)
        for mt in range(3): a.v(f"v_mul_f32 v{MX[mt]}, s83, v{MX[mt]}")
        for i in range(12):
            for mt in range(3):
                v = vals(mt); a.v(f"v_fma_f32 v{v[i]}, v{v[i]}, s83, -v{MX[mt]}")
        for i in range(12):
            for mt in range(3):
                v = vals(mt); a.v(f"v_exp_f32 v{v[i]}, v{v[i]}")
        for mt in range(3):
            v = vals(mt); a.v(f"v_add_f32 v{SM[mt]}, v{v[0]}, v{v[1]}")
        for i in range(2, 12):
            for mt in range(3):
                v = vals(mt); a.v(f"v_add_f32 v{SM[mt]}, v{SM[mt]}, v{v[i]}")
        xlane_reduce(a, "v_add_f32", SM, TM)
        for mt in range(3): a.v(f"v_rcp_f32 v{SM[mt]}, v{SM[mt]}")
        a.barrier()
        for t in range(8):
            for kt in range(3):
                F.add(lambda t=t, kt=kt: a.ds_read("ds_read_b64_tr_b16", Vf(t) + 2*kt, 2, aV(t >> 1), off=kt*4*VSTR + (t & 1)*32))
        for i in range(12):
            for mt in range(3):
                v = vals(mt); a.v(f"v_mul_f32 v{v[i]}, v{v[i]}, v{SM[mt]}"); F.pop(1)
        for mt in range(3):
            r0, r1, r2 = accS(0, mt), accS(1, mt), accS(2, mt)
            for f in (cvt(r0, r0, r0+1), cvt(r0+1, r0+2, r0+3), cvt(r0+2, r1, r1+1), cvt(r0+3, r1+2, r1+3), cvt(r2, r2, r2+1), cvt(r2+1, r2+2, r2+3)): f()
        stamp(a, cfg, 4)
        nonce_check(a, 10)
        a.s(f"s_lshl_b32 s81, s{S_NT}, 15")
        a.s("s_add_u32 s81, s81, s80")
        def ostore(mt, kp):
            r = accO(mt, 2*kp); s_ = accO(mt, 2*kp+1); d = ofA(kp, mt); f = kp*3 + mt
            return [cvt(d, r, r+1), cvt(d+1, r+2, r+3), cvt(d+2, s_, s_+1), cvt(d+3, s_+2, s_+3),
                    lambda: a.s(f"s_add_u32 s82, s81, s{40 + f//4}"),
                    lambda: a.bstore(d, 4, 14, S_WS, "s82", off=(f % 4)*1024, flags="sc1")]
        for mt in range(3):
            for t in range(8):
                a.mfma(accO(mt, t), Vf(t), accS(0, mt), None); F.pop(2)
            for t in range(8):
                a.mfma(accO(mt, t), Vf(t)+4, accS(2, mt), accO(mt, t), k=16); F.pop(2)
            for kp in range(4): F.add(*ostore(mt, kp))
    else:
        assert cfg.el == 2 and cfg.l_kpos >= 0 and cfg.c_kpos >= 0
        if not cfg.kearly:
            for kp in range(4):
                for kt in range(2): rdK1(kt, kp, 0)(); rdK1(kt, kp, 1)()
        for kp in range(4): rdK1(2, kp, 0)(); rdK1(2, kp, 1)()
        nonce_load(a, 252, 10)
        F.add(*cvtQ(3))
        order = [(kp, kt, mt) for kp in range(3) for kt in range(2) for mt in range(3)]
        order += [(kp, 2, mt) for kp in range(3) for mt in range(3)]
        order += [(3, kt, mt) for mt in range(3) for kt in range(3)]
        for n, (kp, kt, mt) in enumerate(order):
            if kp == 2 and n == 12: F.pop(max(0, len(F.q) - 12))
            if kp == 3: F.drain()
            a.mfma(accS(kt, mt), Kf(kt, kp), accQ(2*kp, mt), None if kp == 0 else accS(kt, mt)); F.pop(2)
        MX = [160, 162, 164]; TM = [161, 163, 165]; SM = [166, 6, 112]
        vals = lambda mt: [accS(kt, mt) + r for kt in range(3) for r in range(4)]
        for mt in range(3):
            v = vals(mt); a.v(f"v_max3_f32 v{MX[mt]}, v{v[0]}, v{v[1]}, v{v[2]}")
        for i in range(3, 11, 2):
            for mt in range(3):
                v = vals(mt); a.v(f"v_max3_f32 v{MX[mt]}, v{MX[mt]}, v{v[i]}, v{v[i+1]}")
        for mt in range(3):
            v = vals(mt); a.v(f"v_max_f32 v{MX[mt]}, v{MX[mt]}, v{v[11]}")
        xlane_reduce(a, "v_max_f32", MX, TM)
        for mt in range(3): a.v(f"v_mul_f32 v{MX[mt]}, s83, v{MX[mt]}")
        for i in range(0, 12, 2):
            for mt in range(3):
                v = vals(mt)
                a.v(f"v_pk_fma_f32 v[{v[i]}:{v[i]+1}], v[{v[i]}:{v[i]+1}], s[82:83], v[{MX[mt]}:{MX[mt]+1}] op_sel:[0,1,0] op_sel_hi:[1,1,0] neg_lo:[0,0,1] neg_hi:[0,0,1]")
        for i in range(12):
            for mt in range(3):
                v = vals(mt); a.v(f"v_exp_f32 v{v[i]}, v{v[i]}")
        for mt in range(3):
            v = vals(mt); a.v(f"v_pk_add_f32 v[{SM[mt]}:{SM[mt]+1}], v[{v[0]}:{v[1]}], v[{v[2]}:{v[3]}]")
        for i in range(4, 12, 2):
            for mt in range(3):
                v = vals(mt); a.v(f"v_pk_add_f32 v[{SM[mt]}:{SM[mt]+1}], v[{SM[mt]}:{SM[mt]+1}], v[{v[i]}:{v[i]+1}]")
        for mt in range(3): a.v(f"v_add_f32 v{MX[mt]}, v{SM[mt]}, v{SM[mt]+1}")
        xlane_reduce(a, "v_add_f32", MX, TM)
        for mt in range(3): a.v(f"v_rcp_f32 v{MX[mt]}, v{MX[mt]}")
        for i in range(0, 12, 2):
            for mt in range(3):
                v = vals(mt); a.v(f"v_pk_mul_f32 v[{v[i]}:{v[i]+1}], v[{v[i]}:{v[i]+1}], v[{MX[mt]}:{MX[mt]+1}] op_sel_hi:[1,0]")
        for mt in range(3):
            r0, r1, r2 = accS(0, mt), accS(1, mt), accS(2, mt)
            for f in (cvt(r0, r0, r0+1), cvt(r0+1, r0+2, r0+3), cvt(r0+2, r1, r1+1), cvt(r0+3, r1+2, r1+3), cvt(r2, r2, r2+1), cvt(r2+1, r2+2, r2+3)): f()
        stamp(a, cfg, 4)
        a.barrier()
        for t in range(8):
            for kt in range(3):
                a.ds_read("ds_read_b64_tr_b16", Vf(t) + 2*kt, 2, aV(t >> 1), off=kt*4*VSTR + (t & 1)*32)
        nonce_check(a, 252, 10)
        apply_c(a, (80, 84, 88))
        a.s("s_mov_b32 s52, s76")
        a.s("s_mov_b32 s53, s75")
        for k in range(4):
            F.add(lambda k=k: a.s(f"s_bitcmp1_b32 s53, {k}") or a.s(f"s_cselect_b32 s{44+k}, 8192, 0"), lambda k=k: a.s(f"s_xor_b32 s{44+k}, s{44+k}, s92"))
        a.s(f"s_lshl_b32 s81, s{S_NT}, 15")
        a.s("s_add_u32 s81, s81, s80")
        def ostore(mt, kp):
            r = accO(mt, 2*kp); s_ = accO(mt, 2*kp+1); d = ofA(kp, mt); f = kp*3 + mt
            return [cvt(d, r, r+1), cvt(d+1, r+2, r+3), cvt(d+2, s_, s_+1), cvt(d+3, s_+2, s_+3),
                    lambda: a.s(f"s_add_u32 s82, s81, s{40 + f//4}"),
                    lambda: a.bstore(d, 4, 14, S_WS, "s82", off=(f % 4)*1024, flags="sc1")]
        for kp in range(4):
            for t in (2*kp, 2*kp+1):
                for mt in range(3):
                    a.mfma(accO(mt, t), Vf(t), accS(0, mt), None); F.pop(2)
            for t in (2*kp, 2*kp+1):
                for mt in range(3):
                    a.mfma(accO(mt, t), Vf(t)+4, accS(2, mt), accO(mt, t), k=16); F.pop(2)
            F.add(lambda: None, lambda: None, lambda: None, lambda: None)
            for mt in range(3): F.add(*ostore(mt, kp))
    F.drain()
    stamp(a, cfg, 5)
    def flagst(off):
        a.s("s_mov_b32 exec_lo, s85"); a.s("s_mov_b32 exec_hi, 0")
        a.bstore(8, 2, 11, S_WS, "s84", off=off, flags="sc1")
        a.s("s_mov_b64 exec, -1")
    def poll_issue(mask, off):
        a.s(f"s_mov_b32 exec_lo, {mask}"); a.s("s_mov_b32 exec_hi, 0")
        a.bload(6, 2, 11, S_WS, "s84", off=off, flags="sc1")
        a.s("s_mov_b64 exec, -1")
    def poll_check(mask, off):
        L = newlabel("pc"); Lb = newlabel("pcb")
        a.s(f"s_mov_b32 exec_lo, {mask}"); a.s("s_mov_b32 exec_hi, 0")
        a.v("v_cmp_ne_u64 vcc, v[6:7], v[8:9]")
        a.s("s_mov_b64 exec, -1")
        a.s(f"s_cbranch_vccnz {L}")
        a.label(Lb)
        o = Asm(); o.label(L); poll_flags(o, 6, 8, 11, 84, mask, 76, off); o.s(f"s_branch {Lb}")
        a.ool += o.L
    if cfg.split:
        a.waitcnt(vm=6)
        flagst(0)
        head_order(a, 1, 75)
        a.s("s_lshl_b32 s75, 1, s75")
    a.waitcnt(lgkm=0)
    a.barrier()
    stamp(a, cfg, 10)
    KO = lambda p, ts: [(p, kp, t) for kp in range(4) for t in ts]
    TO = lambda p, ts: [(p, kp, t) for t in ts for kp in range(4)]
    items = KO(0, range(9)) + KO(1, range(9))
    if cfg.reord: items += KO(2, range(6)) + TO(3, range(6)) + KO(2, range(6, 9)) + TO(3, range(6, 9))
    else: items += KO(2, range(9)) + TO(3, range(9))
    first3 = next(i for i, it in enumerate(items) if it[0] == 3)
    done_at = {}
    for i, (p, kp, t) in enumerate(items): done_at[t//2] = i
    NB = 9
    R3 = [12, 10]
    def rdW2(i, h):
        p, kp, t = items[i]
        def f():
            a.ds_read("ds_read_b64_tr_b16", Wf2(i % NB)+2*h, 2, (R3 if p == 3 else R)[t & 1], off=kp*10240 + h*5120 + 32*(t - (t & 1))); ver[("W2", i % NB, h)] = i
        return f
    for kp in range(4):
        for mt in range(3): ver[("O", 0, kp, mt)] = 0
    def headbase(p):
        return [lambda: head_order(a, p, 81), lambda: a.s("s_lshl_b32 s81, s81, 15"), lambda: a.s("s_add_u32 s81, s81, s80")]
    def ldO(p, f, srdb=S_WS):
        kp, mt = divmod(f, 3)
        return [lambda: a.s(f"s_add_u32 s82, s81, s{40 + f//4}"),
                lambda: (a.bload(of(p & 1, kp, mt), 4, 14, srdb, "s82", off=(f % 4)*1024, flags="sc1"), ver.__setitem__(("O", p & 1, kp, mt), p))]
    def publish(mt, pair):
        if pair == 4 and mt == 1: return []
        slot = pair*3 + mt if pair < 4 else 12 + mt//2
        r = acc2(mt, 2*pair)
        out = [cvt(r, r, r+1), cvt(r+1, r+2, r+3)]
        if slot < 13:
            s_ = acc2(mt, 2*pair+1) if pair < 4 else acc2(1, 8)
            out += [cvt(r+2, s_, s_+1), cvt(r+3, s_+2, s_+3)]
        def st_():
            L = newlabel("own"); L2 = newlabel("ownb")
            a.s(f"s_cmp_eq_u32 s90, {slot & 7}")
            a.s(f"s_cbranch_scc1 {L}")
            if slot < 13: a.bstore(r, 4, 14, S_WS, "s82", flags="sc1", tag=("pub", slot))
            else: a.bstore(r, 2, 11, S_WS, "s82", flags="sc1", tag=("pub", slot))
            a.label(L2)
            a.ool += [f"{L}:", f"    ds_write_b128 v2, v[{r}:{r+3}] offset:{(slot >> 3)*4096}",
                      f"    buffer_store_dword v{r}, v14, s[{S_X}:{S_X+3}], 0 offen", f"    s_branch {L2}"]
        out += [lambda: a.s(f"s_add_u32 s82, s{44 + ((slot & 7) >> 1)}, {slot*16384}"), st_]
        return out
    def flag2(off):
        a.s("s_mov_b32 exec_lo, s97"); a.s("s_mov_b32 exec_hi, 0")
        a.bstore(8, 2, 3, S_WS, "s55", off=off, flags="sc1")
        a.s("s_mov_b64 exec, -1")
    def stageA():
        a.wait_vm_tag(("pub", 7))
        flag2(0)
        a.waitcnt(lgkm=0)
        a.barrier()
    for i in range(NB): rdW2(i, 0)(); rdW2(i, 1)()
    seen = set()
    n3 = 0
    for i, (p, kp, t) in enumerate(items):
        if i == cfg.fb:
            F.drain()
            a.waitcnt(vm=0)
            stamp(a, cfg, 6)
            flagst(0)
            if cfg.fbar: a.barrier()
        if i == 36:
            F.drain()
            if cfg.p2st: stamp(a, cfg, 1)
            a.barrier()
            if cfg.p2st: stamp(a, cfg, 2)
            for r in R: a.v(f"v_subrev_u32 v{r}, {3*SL}, v{r}")
            for j in range(36, 36 + NB): rdW2(j, 0)(); rdW2(j, 1)()
            for f in headbase(1): f()
            poll_flags(a, 6, 8, 11, 84, "s86", 76, 0, 4)
            stamp(a, cfg, 7)
            for fr in range(12):
                for f in ldO(1, fr): f()
            F.add(*headbase(2))
            for r, r3 in zip(R, R3): F.add(lambda r=r, r3=r3: a.v(f"v_add_u32 v{r3}, {2*SL}, v{r}"))
        if cfg.p2st and i in (37, 72, 108): stamp(a, cfg, {37: 3, 72: 4, 108: 5}[i])
        if p == 1 and t in (0, 3, 6): F.add(*ldO(2, kp*3 + t//3))
        if i == 54:
            F.add(*tail_vsetup(a, S_W, 0))
            F.add(*[lambda t=t: a.v(t) for t in ("v_lshrrev_b32 v5, 1, v1", "v_lshrrev_b32 v5, v5, s53", "v_and_b32 v5, 1, v5", "v_lshl_add_u32 v3, v5, 13, v3")])
            F.add(*[lambda t=t: a.s(t) for t in ("s_xor_b32 s97, s97, 0xff", "s_lshl_b32 s55, s90, 3", "s_add_u32 s55, s55, s96",
                                                  "s_lshl_b32 s76, s90, 7", "s_add_u32 s96, s96, s76", "s_add_u32 s96, s96, s52")])
        if i == 72: F.add(*headbase(3))
        if i >= 72 and n3 < 12 and (cfg.reord or t < 6): F.add(*ldO(3, n3)); n3 += 1
        if cfg.two and i == done_at[2] + 1 + cfg.fa: F.drain(); stageA()
        for mt in (range(3) if (i % 2 == 0 or not cfg.serp) else (2, 1, 0)):
            assert ver[("W2", i % NB, 0)] == i and ver[("W2", i % NB, 1)] == i and ver[("O", p & 1, kp, mt)] == p, (i, p, kp, t)
            a.mfma(acc2(mt, t), Wf2(i % NB), of(p & 1, kp, mt), acc2(mt, t) if (mt, t) in seen else None)
            seen.add((mt, t))
            F.pop(3 if len(F.q) > 8 else 2 if len(F.q) > 2 else 1)
        j = i + NB
        if j < len(items) and not (p == 0 and j >= 36):
            if j in (72, first3):
                F.drain()
                a.barrier()
                if j == 72:
                    for r in R: a.v(f"v_add_u32 v{r}, {SL}, v{r}")
            F.q = [rdW2(j, 0), rdW2(j, 1)] + F.q
        for pair in range(4):
            if i == done_at[pair] + 1:
                for mt in range(3): F.add(*publish(mt, pair))
    stamp(a, cfg, 8)
    F.drain()
    for mt in range(3):
        for f in publish(mt, 4): f()
    if cfg.two and done_at[2] + 1 + cfg.fa >= len(items): stageA()
    stamp(a, cfg, 9)
    if cfg.dyn:
        a.waitcnt(lgkm=0)
        a.barrier()
    a.waitcnt(vm=0, lgkm=0)
    stamp(a, cfg, 11)
    flag2(64)
    if cfg.dyn: pass
    elif cfg.two:
        a.v("v_add_u32 v2, 4096, v2")
        a.s("s_add_u32 s96, s96, 64")
    else:
        poll_flags(a, 6, 8, 11, 96, "s97", 76, 64, 62)

def tail(a, cfg, endlabel):
    if cfg.dyn:
        a.s("s_cmp_ge_u32 s89, 14")
        a.s(f"s_cbranch_scc1 {endlabel}")
        for k in range(8):
            L = newlabel("ow")
            a.s(f"s_cmp_lg_u32 s90, {k}")
            a.s(f"s_cbranch_scc1 {L}")
            a.raw(f"    ds_read_b128 v[{16+4*k}:{19+4*k}], v2")
            a.label(L)
        a.s("s_add_u32 s77, s88, 4096")
        a.s("s_mov_b32 s76, 0")
        a.s("s_cmp_eq_u32 s89, 13")
        a.s("s_cbranch_scc1 L_dynh")
        def loop(o, name, half):
            o.label(name)
            o.s("s_mov_b32 exec_lo, s97"); o.s("s_mov_b32 exec_hi, 0")
            o.raw(f"    buffer_load_dwordx2 v[6:7], v11, s[{S_WS}:{S_WS+3}], s96 offen offset:64 sc1")
            o.s("s_add_u32 s76, s76, 1")
            o.raw("    s_waitcnt vmcnt(0)")
            o.raw("    v_cmp_eq_u64 vcc, v[6:7], v[8:9]")
            o.s("s_mov_b64 exec, -1")
            o.s(f"s_cmp_gt_u32 s76, {SPIN_MAX}")
            o.s("s_cselect_b32 s75, s97, vcc_lo")
            o.s("s_andn2_b32 s97, s97, s75")
            for k in range(8):
                L = newlabel("dy")
                o.s(f"s_bitcmp0_b32 s75, {k}")
                o.s(f"s_cbranch_scc1 {L}")
                so = "s88" if k < 4 else "s77"
                off = f" offset:{(k % 4)*1024}" if k % 4 else ""
                if half: o.raw(f"    buffer_load_dwordx2 v[{16+4*k}:{17+4*k}], v11, s[{S_WS}:{S_WS+3}], {so} offen{off} sc1")
                else: o.raw(f"    buffer_load_dwordx4 v[{16+4*k}:{19+4*k}], v14, s[{S_WS}:{S_WS+3}], {so} offen{off} sc1")
                o.label(L)
            o.s("s_cmp_lg_u32 s97, 0")
            o.s(f"s_cbranch_scc1 {name}")
        loop(a, "L_dyn", False)
        a.label("L_dynb")
        ool = Asm(); loop(ool, "L_dynh", True); ool.s("s_branch L_dynb"); a.ool += ool.L
        stamp(a, cfg, 12)
        a.raw("    s_waitcnt vmcnt(0) lgkmcnt(0)")
    else:
        if not cfg.two: a.barrier()
        a.s("s_cmp_ge_u32 s89, 14")
        a.s(f"s_cbranch_scc1 {endlabel}")
        if cfg.two: poll_flags(a, 6, 8, 11, 96, "s97", 76, 0, 68)
        stamp(a, cfg, 12)
        a.ds_read("ds_read_b128", 16, 4, 2)
        a.s("s_cmp_eq_u32 s89, 13")
        a.s("s_cbranch_scc1 L_half")
        def srcoff(k):
            a.s(f"s_add_u32 s76, s90, {k}")
            a.s("s_and_b32 s76, s76, 7")
            a.s("s_lshl_b32 s76, s76, 10")
            a.s("s_add_u32 s76, s76, s88")
        for k in range(1, 8):
            srcoff(k); a.bload(16 + 4*k, 4, 14, S_WS, "s76", flags="sc1")
        a.label("L_halfb")
        ool = Asm()
        ool.label("L_half")
        for k in range(1, 8):
            ool.s(f"s_add_u32 s76, s90, {k}"); ool.s("s_and_b32 s76, s76, 7"); ool.s("s_lshl_b32 s76, s76, 10"); ool.s("s_add_u32 s76, s76, s88")
            ool.bload(16 + 4*k, 2, 11, S_WS, "s76", flags="sc1")
        ool.s("s_branch L_halfb")
        a.ool += ool.L
    for k in range(8):
        src = 16 + 4*k
        for i in range(4):
            if k == 0:
                a.v(f"v_lshlrev_b32 v{48+2*i}, 16, v{src+i}")
                a.v(f"v_and_b32 v{49+2*i}, 0xffff0000, v{src+i}")
            else:
                a.v(f"v_lshlrev_b32 v{60+2*(i&1)}, 16, v{src+i}")
                a.v(f"v_and_b32 v{61+2*(i&1)}, 0xffff0000, v{src+i}")
                a.v(f"v_pk_add_f32 v[{48+2*i}:{49+2*i}], v[{48+2*i}:{49+2*i}], v[{60+2*(i&1)}:{61+2*(i&1)}]")
        if k == 1: stamp(a, cfg, 13)
    for i in range(4): a.v(f"v_cvt_pk_bf16_f32 v{64+i}, v{48+2*i}, v{49+2*i}")
    a.v("v_permlane16_swap_b32 v64, v66")
    a.v("v_permlane16_swap_b32 v65, v67")
    stamp(a, cfg, 14)
    a.s("s_mov_b64 exec, s[78:79]")
    a.bstore(64, 4, 4, S_OUT, "s87", flags=cfg.st_out)

def kernel(cfg):
    a = Asm()
    a.lcap = cfg.lcap
    ROT[0] = cfg.rot
    PP[0] = cfg.pp
    a.ool = []
    stamp(a, cfg, 0)
    prologue(a, cfg, "L_end")
    a.s(f"s_cmp_lt_u32 s{S_W}, 4")
    a.s("s_cbranch_scc1 L_compute")
    loader(a, cfg)
    a.label("L_compute")
    a.reset_state()
    compute(a, cfg)
    a.label("L_tail")
    a.reset_state()
    a.nop(2)
    tail(a, cfg, "L_st")
    a.label("L_st")
    if cfg.x_map:
        a.s(f"s_add_u32 s76, s2, s{S_W}")
        a.s("s_cmp_lg_u32 s76, 0")
        a.s("s_cbranch_scc1 L_end")
        a.raw("    s_waitcnt vmcnt(0)")
        for i in range(40): a.raw("    s_sleep 64")
        a.s("s_mov_b64 exec, 1")
        a.v("v_mov_b32 v20, 0")
        a.s("s_mov_b32 s40, 0"); a.s(f"s_mov_b32 s41, {28672}"); a.s("s_mov_b32 s42, 0")
        a.label("L_map")
        for rep in range(2):
            a.raw("    v_mov_b32 v21, 0")
            a.raw("    s_memtime s[44:45]"); a.raw("    s_waitcnt lgkmcnt(0)")
            a.raw(f"    buffer_atomic_add v21, v20, s[{S_WS}:{S_WS+3}], s41 offen sc0 sc1")
            a.raw("    s_waitcnt vmcnt(0)")
            a.raw("    s_memtime s[46:47]"); a.raw("    s_waitcnt lgkmcnt(0)")
        a.s("s_sub_u32 s46, s46, s44")
        a.s("s_cmp_gt_u32 s46, 680")
        a.s("s_cselect_b32 s46, 1, 0")
        a.s("s_lshl_b32 s46, s46, s40")
        a.s("s_or_b32 s42, s42, s46")
        a.s(f"s_add_u32 s41, s41, {2 << 20}")
        a.s("s_add_u32 s40, s40, 1")
        a.s("s_cmp_lt_u32 s40, 24")
        a.s("s_cbranch_scc1 L_map")
        a.v("v_mov_b32 v21, s42")
        a.raw(f"    buffer_store_dword v21, v20, s[{S_DBG}:{S_DBG+3}], 0 offen offset:16")
        a.v(f"v_mov_b32 v22, s{S_WS}")
        a.raw(f"    buffer_store_dword v22, v20, s[{S_DBG}:{S_DBG+3}], 0 offen offset:20")
        a.raw("    s_getreg_b32 s42, hwreg(HW_REG_XCC_ID)")
        a.v("v_mov_b32 v23, s42")
        a.raw(f"    buffer_store_dword v23, v20, s[{S_DBG}:{S_DBG+3}], 0 offen offset:24")
    if cfg.stamps: a.waitcnt(vm=0)
    stamp(a, cfg, 15)
    stamp_out(a, cfg)
    a.label("L_end")
    a.s("s_endpgm")
    for l in a.ool: a.raw(l)
    return a

HEADER = open("cdna_kernels/" + NAME + ".s.ref").read().split("; Override launch")[0]

def build(cfg):
    n = NAME + "_kernel"
    a = kernel(cfg)
    return HEADER + f"""; @launch grid=(256,1,1) block=(512,1,1) lds=163840
.amdgcn_target "amdgcn-amd-amdhsa--gfx950"
.text
.globl {n}
.p2align 8
.type {n},@function
{n}:
{a.text()}
L_code_end:
.section .rodata,"a"
.p2align 6
.amdhsa_kernel {n}
  .amdhsa_next_free_vgpr 256
  .amdhsa_next_free_sgpr 102
  .amdhsa_accum_offset 256
  .amdhsa_group_segment_fixed_size 0
  .amdhsa_kernarg_size 104
  .amdhsa_user_sgpr_count 2
  .amdhsa_user_sgpr_kernarg_segment_ptr 1
  .amdhsa_system_sgpr_workgroup_id_x 1
.end_amdhsa_kernel
"""

if __name__ == "__main__":
    cfg = Cfg()
    for kv in sys.argv[2:]:
        k, v = kv.split("=")
        cur = getattr(cfg, k)
        setattr(cfg, k, (v == "1") if isinstance(cur, bool) else int(v) if isinstance(cur, int) else v.replace("_", " "))
    open(sys.argv[1], "w").write(build(cfg))
```

```python
import sys, struct
from asm import *

NAME = "concat_heads__gqa_block_cached__mha_block_cached__near_ridge"
SL = 40960
KSTR, VSTR = 4112, 4128
KUNIT, VUNIT = 1024, 1024
KBASE = 0
VBASE_L = 12*KSTR
WS_O = 0
WS_FLAG1 = 64 << 20
WS_FLAG2 = 65 << 20
WS_PROBE = 68 << 20
WS_PART = 32 << 20
WS_STAMP = 72 << 20
WS_BYTES = 80 << 20
SC = 0.08838834764831845 * 1.4426950408889634
SPIN_MAX = 1 << 17
def f2u(x): return struct.unpack("<I", struct.pack("<f", x))[0]

S_X, S_K, S_V, S_WQ, S_WO, S_OUT, S_WS, S_DBG = 36, 40, 44, 48, 52, 56, 60, 64
S_BR, S_KQ, S_HL, S_BG, S_W, S_NT, S_E = 68, 69, 70, 71, 72, 98, 99

class Cfg:
    stamps = False; x_clk = False; lst = 0
    ld_x = ""; ld_wq = ""; ld_kv = "nt"; ld_wo = ""; st_out = ""
    skew = 3; prio = 3; lcap = 8; barpos = 3
    el = 2; pollpos = 4; ctouch = 3; e_wo = 1; l_wo = 1; prog = 1; touch = 1; tpos = 5; wo2 = 1; flagpos = 1; e_vpos = 4; l_kpos = 2; f2 = 1; c_kpos = 5; c_tpos = 3; swap = 1; own = 1; warmf = 1; p2st = 0; fbar = 1; wo0late = 0; x_enc = -1; x_amp = 4; dbgwg = 0; att = 1; r1first = 1; epoll = 0; cfix = -1; nprobe = 1; split = 0; fb = 9; x_pace = 0; cls = '33,44,55,66'; v7 = 4; v8 = 12; x_burn = 0; x_map = 0; bal = 0; two = 0; reord = 0; fa = 8; serp = 1; pp = 0; tlb = 0; sw = 0; kearly = 1; kfirst = 0; hold = 0; lprio = 0; xfirst = 0; tsh = '2222'; dyn = 1; w3e = 0; o3e = 0; strict = 3; smod = 1; pst = 9; pa = 14; pac = 21; rot = 0; pb = 48

NST = 16
def streg(i): return 4 if i == 0 else 8 + 2*(i-1) if i <= 13 else {14: 34, 15: 100}[i]
def stamp(a, cfg, i):
    if cfg.stamps:
        r = streg(i)
        a.raw(f"    {'s_memtime' if cfg.x_clk else 's_memrealtime'} s[{r}:{r+1}]"); a.pos += 1
def stamp_out(a, cfg):
    if not cfg.stamps: return
    if cfg.x_enc >= 0:
        a.raw("    s_waitcnt lgkmcnt(0)")
        a.s("s_lshl_b32 s3, s2, 3")
        a.s(f"s_add_u32 s3, s3, s{S_W}")
        a.s(f"s_cmp_lg_u32 s3, {cfg.dbgwg*8}")
        a.s("s_cbranch_scc1 L_end")
        if cfg.x_enc == 99:
            a.raw("    s_getreg_b32 s76, hwreg(HW_REG_XCC_ID, 0, 4)")
            a.s("s_mul_i32 s76, s76, 1000")
        elif cfg.x_enc == 98:
            a.v("v_readfirstlane_b32 s76, v8")
            a.s("s_sub_u32 s76, s4, s76")
            a.s("s_add_u32 s76, s76, 300")
            a.s("s_mul_i32 s76, s76, 8")
        else:
            a.s(f"s_sub_u32 s76, s{streg(cfg.x_enc)}, s4")
            a.s(f"s_mul_i32 s76, s76, {cfg.x_amp}")
        a.s("s_add_u32 s76, s76, 5000")
        a.label("L_hold")
        a.raw("    s_memrealtime s[78:79]")
        a.raw("    s_waitcnt lgkmcnt(0)")
        a.s("s_sub_u32 s77, s78, s4")
        a.s("s_cmp_lt_u32 s77, s76")
        a.s("s_cbranch_scc1 L_hold")
        return
    a.raw("    s_waitcnt lgkmcnt(0)")
    a.s("s_mov_b64 exec, 1")
    a.s("s_lshl_b32 s3, s2, 3")
    a.s(f"s_add_u32 s3, s3, s{S_W}")
    a.s("s_lshl_b32 s3, s3, 6")
    a.s(f"s_add_u32 s3, s3, {WS_STAMP}")
    a.v("v_mov_b32 v1, 0")
    for i in range(NST):
        a.v(f"v_mov_b32 v2, s{streg(i)}")
        a.bstore(2, 1, 1, S_WS, "s3", off=4*i)
        a.nop(2)

def srd(a, base, lo, hi, size):
    a.s(f"s_mov_b32 s{base}, s{lo}")
    a.s(f"s_mov_b32 s{base+1}, s{hi}")
    a.s(f"s_mov_b32 s{base+2}, {size}")
    a.s(f"s_mov_b32 s{base+3}, 0x20000")

BAL = [0]
def prologue(a, cfg, endlabel):
    a.s("s_cmp_ge_u32 s2, 256")
    a.s(f"s_cbranch_scc1 {endlabel}")
    a.raw("    s_load_dwordx16 s[8:23], s[0:1], 0")
    a.raw("    s_load_dwordx8 s[24:31], s[0:1], 64")
    a.raw("    s_load_dwordx2 s[32:33], s[0:1], 96")
    a.v("v_and_b32 v1, 63, v0")
    a.v("v_lshrrev_b32 v15, 6, v0")
    BAL[0] = cfg.bal
    if cfg.bal:
        a.s(f"s_bfe_u32 s{S_KQ}, s2, 0x10002")
        a.s(f"s_lshl_b32 s{S_KQ}, s{S_KQ}, 1")
        a.s(f"s_and_b32 s{S_BR}, s2, 1")
        a.s(f"s_or_b32 s{S_KQ}, s{S_KQ}, s{S_BR}")
        a.s(f"s_bfe_u32 s{S_BR}, s2, 0x10001")
    else:
        a.s(f"s_and_b32 s{S_KQ}, s2, 3")
        a.s(f"s_bfe_u32 s{S_BR}, s2, 0x10002")
    if cfg.swap: a.s(f"s_xor_b32 s{S_BR}, s{S_BR}, 1")
    a.s(f"s_bfe_u32 s{S_HL}, s2, 0x30003")
    a.s(f"s_lshr_b32 s{S_BG}, s2, 6")
    a.s(f"s_and_b32 s{S_NT}, s{S_HL}, 3")
    a.v(f"v_readfirstlane_b32 s{S_W}, v15")
    if cfg.el:
        a.s(f"s_lshr_b32 s{S_E}, s{S_HL}, 2")
        a.s(f"s_xor_b32 s{S_E}, s{S_E}, s{S_BG}")
        a.s(f"s_and_b32 s{S_E}, s{S_E}, 1")
        a.s(f"s_and_b32 s3, s{S_BG}, 2")
        a.s(f"s_or_b32 s3, s3, s{S_E}")
        if cfg.el == 2: a.s(f"s_mov_b32 s{S_E}, 0")
    else:
        a.s(f"s_mov_b32 s{S_E}, 0")

def build_srds(a, keys):
    a.raw("    s_waitcnt lgkmcnt(0)")
    a.s(f"s_cmp_eq_u32 s{S_BR}, 0")
    for (dst, pa, pb, key) in ((S_WQ, 14, 24, 'wq'), (S_X, 8, 18, 'x'), (S_K, 10, 20, 'k'), (S_V, 12, 22, 'v'), (S_WO, 16, 26, 'wo')):
        if key not in keys: continue
        a.s(f"s_cselect_b64 s[{dst}:{dst+1}], s[{pa}:{pa+1}], s[{pb}:{pb+1}]")
        if key in ('k', 'v'):
            a.s(f"s_mov_b32 s{dst+2}, 6291456")
            a.s(f"s_cselect_b32 s{dst+2}, 3145728, s{dst+2}")
        else:
            a.s(f"s_mov_b32 s{dst+2}, {884736 if key == 'x' else 4718592}")
        a.s(f"s_mov_b32 s{dst+3}, 0x20000")
    if 'o' in keys:
        srd(a, S_OUT, 28, 29, 1769472)
        srd(a, S_DBG, 30, 31, 256)
        srd(a, S_WS, 32, 33, WS_BYTES)

ROT = [0]
def head_order(a, p, sd):
    if p == 0: a.s(f"s_mov_b32 s{sd}, s{S_NT}")
    elif ROT[0]:
        a.s(f"s_add_u32 s{sd}, s{S_NT}, {p}"); a.s(f"s_and_b32 s{sd}, s{sd}, 3")
    else:
        a.s(f"s_cmp_le_u32 s{S_NT}, {p-1}"); a.s(f"s_cselect_b32 s{sd}, {p}, {p-1}")

_lbl = [0]
def newlabel(p):
    _lbl[0] += 1
    return f"L{p}_{_lbl[0]}"

PP = [0]
def poll_flags(a, vdata, vnonce, voff, soff, mask, stmp, off=0, v2=None):
    L = newlabel("poll"); X = newlabel("pollx")
    a.s(f"s_mov_b32 exec_lo, {mask}")
    a.s("s_mov_b32 exec_hi, 0")
    a.s(f"s_mov_b32 s{stmp}, 0")
    if PP[0] and v2 is not None:
        o = f" offset:{off}" if off else ""
        ld = lambda v: a.raw(f"    buffer_load_dwordx2 v[{v}:{v+1}], v{voff}, s[{S_WS}:{S_WS+3}], s{soff} offen{o} sc1")
        a.waitcnt(vm=0) if False else None
        ld(vdata)
        a.raw(f"    s_sleep {PP[0]}")
        a.label(L)
        ld(v2)
        a.s(f"s_add_u32 s{stmp}, s{stmp}, 1")
        a.raw("    s_waitcnt vmcnt(1)")
        a.raw(f"    v_cmp_ne_u64 vcc, v[{vdata}:{vdata+1}], v[{vnonce}:{vnonce+1}]")
        a.s(f"s_cbranch_vccz {X}")
        ld(vdata)
        a.s(f"s_cmp_gt_u32 s{stmp}, {SPIN_MAX}")
        a.raw("    s_waitcnt vmcnt(1)")
        a.s(f"s_cbranch_scc1 {X}")
        a.raw(f"    v_cmp_ne_u64 vcc, v[{v2}:{v2+1}], v[{vnonce}:{vnonce+1}]")
        a.s(f"s_cbranch_vccnz {L}")
        a.label(X)
        a.vm = [({vdata, vdata+1, v2, v2+1}, "poll")]
        a.s("s_mov_b64 exec, -1")
        return
    a.label(L)
    a.bload(vdata, 2, voff, S_WS, f"s{soff}", off=off, flags="sc1")
    a.s(f"s_add_u32 s{stmp}, s{stmp}, 1")
    a.s(f"s_cmp_gt_u32 s{stmp}, {SPIN_MAX}")
    a.waitcnt(vm=0)
    a.s(f"s_cbranch_scc1 {X}")
    a.v(f"v_cmp_ne_u64 vcc, v[{vdata}:{vdata+1}], v[{vnonce}:{vnonce+1}]")
    a.s(f"s_cbranch_vccnz {L}")
    a.label(X)
    a.s("s_mov_b64 exec, -1")

NVOTE = 32
CAP = 4095
def nonce_load(a, vn, vzero):
    a.bload(vn, 4, vzero, S_DBG, "0", flags="sc1", tag="nonce")
def nonce_check(a, vn, vzero):
    Lok = newlabel("nok"); Lsp = newlabel("nsp")
    a.s("s_mov_b32 s77, 0")
    a.v(f"v_readfirstlane_b32 s76, v{vn}")
    a.v(f"v_readfirstlane_b32 s75, v{vn+2}")
    a.v(f"v_readfirstlane_b32 s3, v{vn+3}")
    a.label(Lsp)
    a.s("s_cmp_lg_u32 s76, 0")
    a.s("s_cselect_b32 s76, s75, 0")
    a.s(f"s_cmp_ge_u32 s3, {8 << 16}")
    a.s("s_cselect_b32 s76, s76, 0")
    a.s(f"s_cmp_ge_u32 s76, {NVOTE << 24}")
    a.s(f"s_cbranch_scc1 {Lok}")
    a.s("s_add_u32 s77, s77, 1")
    a.s(f"s_cmp_gt_u32 s77, {SPIN_MAX}")
    a.s(f"s_cbranch_scc1 {Lok}")
    a.raw(f"    buffer_load_dwordx4 v[{vn}:{vn+3}], v{vzero}, s[{S_DBG}:{S_DBG+3}], 0 offen sc1")
    a.raw("    s_waitcnt vmcnt(0)")
    a.raw(f"    v_readfirstlane_b32 s76, v{vn}")
    a.raw(f"    v_readfirstlane_b32 s75, v{vn+2}")
    a.raw(f"    v_readfirstlane_b32 s3, v{vn+3}")
    a.raw("    s_nop 0")
    a.s(f"s_branch {Lsp}")
    a.label(Lok)
    a.v(f"v_mov_b32 v8, v{vn}")
    a.v(f"v_mov_b32 v9, v{vn+1}")
    a.s(f"s_cmp_gt_u32 s76, {(NVOTE << 24) + NVOTE*CAP}")
    a.s("s_cselect_b32 s76, 0xff, 0")
    a.s("s_xor_b32 s75, s3, s76")
    if BAL[0]:
        a.s("s_and_b32 s76, s2, 2")
        a.s("s_lshr_b32 s75, s75, s76")
        a.s("s_lshr_b32 s76, s75, 2")
        a.s("s_and_b32 s76, s76, 12")
        a.s("s_and_b32 s75, s75, 3")
        a.s("s_or_b32 s75, s75, s76")
    else:
        a.s("s_and_b32 s76, s2, 4")
        a.s("s_lshr_b32 s75, s75, s76")
    a.s(f"s_lshr_b32 s76, s75, s{S_KQ}")
    a.s("s_and_b32 s76, s76, 1")
    a.s("s_lshl_b32 s76, s76, 13")

def bsel(a, sd):
    a.s(f"s_lshr_b32 s76, s{sd}, 8")
    a.s("s_and_b32 s76, s76, 8192")
    a.s(f"s_or_b32 s{sd}, s{sd}, s76")

def apply_c(a, regs):
    for r in regs: a.s(f"s_xor_b32 s{r}, s{r}, s76")

def unit_base(a, sd, sb_w, shead):
    a.s(f"s_lshl_b32 s76, s{S_BR}, 2")
    a.s(f"s_add_u32 s76, s76, s{S_BG}")
    a.s("s_lshl_b32 s76, s76, 2")
    a.s(f"s_add_u32 s76, s76, s{sb_w}")
    a.s("s_lshl_b32 s76, s76, 5")
    a.s(f"s_add_u32 s76, s76, s{shead}")
    a.s(f"s_lshl_b32 s{sd}, s76, 15")
    bsel(a, sd)
    a.s(f"s_and_b32 s76, s{sb_w}, 1")
    a.s("s_lshl_b32 s40, s76, 12")
    a.s(f"s_and_b32 s76, s{sb_w}, 2")
    a.s("s_lshl_b32 s76, s76, 13")
    a.s("s_or_b32 s40, s40, s76")
    a.s("s_xor_b32 s41, s40, 4096")
    a.s("s_xor_b32 s42, s40, 16384")

def tail_ssetup(a, sw, half):
    a.s(f"s_lshr_b32 s90, s{S_HL}, 2")
    a.s(f"s_lshl_b32 s76, s{S_KQ}, 1")
    a.s("s_add_u32 s90, s90, s76")
    a.s(f"s_add_u32 s89, s90, {8*half}")
    a.s(f"s_lshl_b32 s91, s{S_BR}, 2")
    a.s(f"s_add_u32 s91, s91, s{S_BG}")
    a.s("s_lshl_b32 s91, s91, 2")
    a.s(f"s_add_u32 s91, s91, s{S_NT}")
    a.s("s_lshl_b32 s91, s91, 2")
    a.s(f"s_add_u32 s91, s91, s{sw}")
    a.s("s_lshr_b32 s76, s91, 3")
    a.s("s_lshl_b32 s76, s76, 14")
    a.s("s_and_b32 s77, s91, 7")
    a.s("s_lshl_b32 s77, s77, 10")
    a.s("s_add_u32 s76, s76, s77")
    a.s(f"s_add_u32 s96, s76, {WS_FLAG2}")
    a.s("s_lshl_b32 s92, s91, 18")
    a.s(f"s_add_u32 s92, s92, {WS_PART}")
    bsel(a, 92)
    a.s("s_lshl_b32 s76, s89, 14")
    a.s("s_add_u32 s88, s92, s76")
    a.s("s_lshl_b32 s76, s90, 10")
    a.s("s_add_u32 s92, s92, s76")
    a.s("s_mul_i32 s76, s89, 43")
    a.s("s_lshr_b32 s76, s76, 7")
    a.s("s_mul_i32 s77, s76, 3")
    a.s("s_sub_u32 s77, s89, s77")
    a.s("s_cmp_eq_u32 s89, 13")
    a.s("s_cselect_b32 s77, 2, s77")
    a.s("s_lshl_b32 s87, s76, 6")
    a.s(f"s_mul_i32 s77, s77, {16*2304}")
    a.s("s_add_u32 s87, s87, s77")
    a.s(f"s_lshl_b32 s77, s{S_BG}, 2")
    a.s(f"s_add_u32 s77, s77, s{sw}")
    a.s(f"s_mul_i32 s77, s77, {48*2304}")
    a.s("s_add_u32 s87, s87, s77")
    a.s(f"s_mul_i32 s77, s{S_BR}, 1152")
    a.s("s_add_u32 s87, s87, s77")
    a.s(f"s_mul_i32 s77, s{S_NT}, 288")
    a.s("s_add_u32 s87, s87, s77")
    a.s("s_cmp_lt_u32 s89, 12")
    a.s(f"s_cselect_b32 s74, 32, {16*2304}")
    a.s("s_cmp_lt_u32 s89, 13")
    a.s("s_cselect_b32 s78, -1, 0xffff")
    a.s("s_mov_b32 s79, s78")
    for u in range(16): assert (u*43) >> 7 == u//3

def tail_vsetup(a, sw=S_W, half=0):
    return [lambda t=t: a.v(t) for t in (
        "v_and_b32 v4, 15, v1", "v_mul_u32_u24 v4, 2304, v4", "v_bfe_u32 v5, v1, 4, 1", "v_mad_u32_u24 v4, v5, s74, v4",
        "v_lshrrev_b32 v5, 5, v1", "v_lshl_add_u32 v4, v5, 4, v4", "v_lshlrev_b32 v3, 7, v1", f"v_lshlrev_b32 v2, 4, v1", f"v_lshl_add_u32 v2, s{sw}, 10, v2", f"v_add_u32 v2, {3*SL + half*4096}, v2")]

def loader(a, cfg):
    if cfg.lprio: a.s(f"s_setprio {cfg.lprio}")
    a.s(f"s_sub_u32 s73, s{S_W}, 4")
    a.s("s_and_b32 s74, s73, 1")
    a.s("s_lshr_b32 s75, s73, 1")
    a.s(f"s_lshl_b32 s95, s{S_KQ}, 3")
    a.s(f"s_add_u32 s95, s95, s{S_HL}")
    a.v("v_lshrrev_b32 v4, 4, v1")
    a.s("s_lshl_b32 s76, s75, 2")
    a.v("v_or_b32 v5, s76, v4")
    a.v("v_bfe_u32 v6, v1, 1, 3")
    a.v("v_xor_b32 v6, v6, v5")
    a.v("v_lshlrev_b32 v6, 5, v6")
    a.v("v_and_b32 v7, 1, v1")
    a.v("v_lshl_add_u32 v6, v7, 4, v6")
    a.v("v_lshl_add_u32 v2, v4, 13, v6")
    a.s("s_lshl_b32 s76, s73, 15")
    a.s("s_lshl_b32 s77, s95, 8")
    a.s("s_add_u32 s76, s76, s77")
    a.v("v_add_u32 v2, s76, v2")
    a.v("v_lshlrev_b32 v5, 2, v4")
    a.v("v_and_b32 v6, 15, v1")
    a.v("v_xor_b32 v6, v6, v5")
    a.v("v_lshlrev_b32 v6, 4, v6")
    a.v("v_lshl_add_u32 v10, v4, 8, v6")
    a.s("s_lshl_b32 s76, s74, 2")
    a.v("v_or_b32 v5, s76, v4")
    a.v("v_lshrrev_b32 v4, 3, v1")
    a.v("v_mul_u32_u24 v4, 1152, v4")
    a.v("v_and_b32 v6, 7, v1")
    a.v("v_xor_b32 v6, v6, v5")
    a.v("v_lshl_add_u32 v3, v6, 4, v4")
    a.s(f"s_mul_i32 s76, s{S_BG}, {192*1152}")
    a.s(f"s_mul_i32 s77, s74, {8*1152}")
    a.s("s_add_u32 s76, s76, s77")
    a.s(f"s_mul_i32 s77, s75, {96*1152}")
    a.s("s_add_u32 s76, s76, s77")
    a.v("v_add_u32 v3, s76, v3")
    a.s("s_lshl_b32 s78, s73, 10")
    a.s("s_mul_i32 s79, s75, 12288")
    a.s("s_lshl_b32 s77, s74, 10")
    a.s("s_add_u32 s79, s79, s77")
    a.s("s_add_u32 s79, s79, 16384")
    a.s(f"s_lshl_b32 s76, s{S_BG}, 2")
    a.s("s_add_u32 s76, s76, s73")
    a.s("s_lshl_b32 s76, s76, 5")
    a.s("s_add_u32 s76, s76, s95")
    a.s(f"s_xor_b32 s77, s{S_BR}, 1")
    a.s("s_lshr_b32 s76, s76, s77")
    a.s("s_mul_i32 s80, s76, 12288")
    a.s(f"s_mul_i32 s91, s73, {KUNIT}")
    a.s(f"s_add_u32 s91, s91, {KBASE}")
    a.s(f"s_mul_i32 s92, s73, {VUNIT}")
    if cfg.skew == 3:
        a.s(f"s_add_u32 s84, s{S_HL}, s{S_BG}")
        a.s("s_mul_i32 s85, s84, 43")
        a.s("s_lshr_b32 s85, s85, 7")
        a.s("s_mul_i32 s85, s85, 3")
        a.s("s_sub_u32 s84, s84, s85")
        a.s("s_mul_i32 s84, s84, 3")
    elif cfg.skew == 4:
        a.s(f"s_add_u32 s84, s{S_HL}, s{S_BG}")
        a.s("s_and_b32 s84, s84, 3")
        a.s("s_lshl_b32 s84, s84, 1")
    elif cfg.skew == 2:
        a.s(f"s_lshr_b32 s84, s{S_BG}, 1")
        a.s(f"s_xor_b32 s84, s84, s{S_HL}")
        a.s("s_and_b32 s84, s84, 1")
        a.s("s_lshl_b32 s84, s84, 2")
    elif cfg.skew == 9:
        a.s(f"s_lshl_b32 s84, s{S_BG}, 1")
        a.s(f"s_add_u32 s84, s84, s{S_HL}")
        a.s("s_sub_u32 s85, s84, 9")
        a.s("s_cmp_ge_u32 s84, 9")
        a.s("s_cselect_b32 s84, s85, s84")
    else:
        a.s("s_mov_b32 s84, 0")
    build_srds(a, ('x', 'wq', 'k'))
    def stage(s):
        slot = (1 + s % 3) * SL
        a.s("s_lshl_b32 s85, s84, 7")
        a.s("s_lshl_b32 s86, s84, 19")
        for i in range(4):
            a.s(f"s_add_u32 m0, s78, {slot + i*4096}")
            a.s(f"s_add_u32 s82, s86, {16*i*8192}")
            a.dma(2, S_WQ, "s82", cfg.ld_wq, tag=("st", s))
        for z in range(6):
            a.s(f"s_add_u32 m0, s79, {slot + z*2048}")
            a.s(f"s_add_u32 s82, s85, {z*16*1152}")
            a.dma(3, S_X, "s82", cfg.ld_x, tag=("st", s))
        a.s("s_add_u32 s84, s84, 1")
        a.s("s_cmp_eq_u32 s84, 9")
        a.s("s_cselect_b32 s84, 0, s84")
    def kvpart(g, srdb, sm0, stride, lo, hi, base=0):
        for i in range(lo, hi):
            a.s(f"s_add_u32 m0, s{sm0}, {base + i*stride}")
            a.s(f"s_add_u32 s82, s80, {i*1024}")
            a.dma(10, srdb, "s82", cfg.ld_kv, tag=("st", g))
    def codetouch():
        a.s("s_mov_b64 exec, 7")
        a.raw("    global_load_dword v24, v25, s[6:7]"); a.pos += 1
        a.vm.append((None, "touch"))
        a.s("s_mov_b64 exec, -1")
    def setup2():
        if cfg.ctouch:
            L = newlabel("pc")
            a.raw("    s_getpc_b64 s[6:7]")
            a.label(L)
            a.s(f"s_sub_u32 s6, s6, {L}-{NAME}_kernel")
            a.s("s_subb_u32 s7, s7, 0")
            a.s("s_lshr_b32 s76, s2, 3")
            a.s("s_lshl_b32 s76, s76, 2")
            a.s("s_add_u32 s76, s76, s73")
            a.s("s_mul_i32 s76, s76, 384")
            a.v("v_lshlrev_b32 v25, 7, v1")
            a.v("v_add_u32 v25, s76, v25")
            a.s("s_mov_b32 s77, L_code_end-" + NAME + "_kernel-4")
            a.v("v_min_u32 v25, s77, v25")
            codetouch()
        build_srds(a, ('v', 'wo', 'o'))
        stamp(a, cfg, 1)
        a.v("v_mov_b32 v16, 0")
        L = newlabel("nw")
        a.s("s_add_u32 s76, s2, s73")
        a.s("s_cmp_lg_u32 s76, 0")
        a.s(f"s_cbranch_scc1 {L}")
        a.raw("    s_memrealtime s[88:89]")
        a.raw("    s_waitcnt lgkmcnt(0)")
        a.s("s_or_b32 s88, s88, 1")
        a.v("v_mov_b32 v18, s88")
        a.v("v_mov_b32 v19, s89")
        a.s("s_mov_b64 exec, 1")
        a.raw(f"    buffer_store_dwordx2 v[18:19], v16, s[{S_DBG}:{S_DBG+3}], 0 offen sc1")
        a.s("s_mov_b64 exec, -1")
        a.label(L)
    def setup3():
        a.s("s_and_b32 s76, s95, 0xfc")
        a.s("s_lshl_b32 s76, s76, 7")
        a.s("s_lshl_b32 s77, s73, 5")
        a.s("s_add_u32 s76, s76, s77")
        a.s("s_mul_i32 s76, s76, 1152")
        a.s(f"s_mul_i32 s77, s{S_NT}, 288")
        a.s("s_and_b32 s77, s77, 0xffffffc0")
        a.s("s_add_u32 s76, s76, s77")
        for y in range(5):
            a.v(f"v_add_u32 v4, {y*64}, v1")
            a.v("v_mul_u32_u24 v5, 3277, v4")
            a.v("v_lshrrev_b32 v5, 16, v5")
            a.v("v_mul_u32_u24 v6, 20, v5")
            a.v("v_sub_u32 v6, v4, v6")
            a.v("v_bfe_u32 v7, v5, 2, 1")
            a.v("v_lshlrev_b32 v7, 1, v7")
            a.v("v_xor_b32 v6, v6, v7")
            a.v("v_mul_u32_u24 v5, 1152, v5")
            a.v("v_lshl_add_u32 v5, v6, 4, v5")
            a.v(f"v_add_u32 v{26+y}, s76, v5")
        a.s("s_mul_i32 s93, s73, 10240")
        a.v("v_lshlrev_b32 v22, 7, v1")
        a.s(f"s_and_b32 s76, s{S_BG}, 1")
        a.s("s_lshl_b32 s76, s76, 2")
        a.s(f"s_add_u32 s76, s76, s{S_NT}")
        a.s("s_lshl_b32 s76, s76, 2")
        a.s("s_add_u32 s76, s76, s73")
        a.s(f"s_mul_i32 s76, s76, {8*36*128}")
        a.s(f"s_mul_i32 s94, s{S_KQ}, {1024*1152}")
        a.s("s_add_u32 s94, s94, s76")
        if cfg.tlb > 2:
            a.s("s_mov_b64 exec, 1")
            a.bload(23, 1, 16, S_K, "s80", flags="nt", tag="touch"); a.vm[-1] = (None, "touch")
            a.bload(23, 1, 16, S_V, "s80", flags="nt", tag="touch"); a.vm[-1] = (None, "touch")
            a.bload(23, 1, 26, S_WO, "0", tag="touch"); a.vm[-1] = (None, "touch")
            a.s("s_mov_b64 exec, -1")
    def touches(k):
        sh = [int(c) for c in cfg.tsh]
        assert sum(sh) == 8
        a.s("s_mov_b32 exec_lo, -1"); a.s("s_mov_b32 exec_hi, 15")
        for i in range(sum(sh[:k]), sum(sh[:k+1])):
            a.s(f"s_add_u32 s82, s94, {i*36*128}")
            a.bload(23, 1, 22, S_WO, "s82", tag="touch"); a.vm[-1] = (None, "touch")
        a.s("s_mov_b64 exec, -1")
    def wostage(p, start):
        head_order(a, p, 83)
        a.s(f"s_mul_i32 s83, s83, {128*1152}")
        for z2 in range(2):
            a.s(f"s_add_u32 s82, s83, {z2*16*1152}")
            for y in range(5):
                a.s(f"s_add_u32 m0, s93, {((start + p) % 4)*SL + z2*5120 + y*1024}")
                a.dma(26+y, S_WO, "s82", cfg.ld_wo, tag=("st", 11+p))
    cnt = [0]
    def st(i):
        if not cfg.lst: stamp(a, cfg, i)
    W = lambda g: a.wait_vm_tag(("st", g))
    def B():
        k = cnt[0] - cfg.lst
        if cfg.lst and 0 <= k < 5: stamp(a, cfg, 1 + 2*k)
        a.barrier()
        if cfg.lst and 0 <= k < 5: stamp(a, cfg, 2 + 2*k)
        cnt[0] += 1
    start = 3; vb = VBASE_L
    if cfg.kfirst == 1: kvpart(9, S_K, 91, KSTR, 0, 9)
    stage(0); setup2(); stage(1); setup3(); st(2)
    classes = [(int(c[0]), int(c[1])) for c in cfg.cls.split(",")]
    g0 = min(min(c) for c in classes)
    def middle(lo, hi, mid, tpos, nxt, k=0):
        for g in range(lo, hi):
            W(g)
            if g == 0: st(3)
            if g == 3: st(4)
            B()
            if g == 4 and cfg.ctouch > 1: codetouch()
            if g in (mid, tpos):
                while nxt <= (g + 1 if g < 6 else 8): stage(nxt); nxt += 1
                if g == mid and not cfg.kfirst: kvpart(9, S_K, 91, KSTR, 0, 9)
                if g == tpos: touches(k)
                continue
            while nxt <= g + 2: stage(nxt); nxt += 1
        return nxt
    n0 = 2
    if cfg.sw:
        stage(2); n0 = 3
        if cfg.hold:
            a.s(f"s_and_b32 s76, s3, {cfg.hold}")
            a.s("s_cbranch_scc0 L_nohold")
            a.raw("    s_waitcnt vmcnt(0)")
            a.label("L_nohold")
        else: W(cfg.sw)
    nxt = middle(0, g0, -1, -1, n0)
    saved = list(a.vm); c0 = cnt[0]
    nc = len(classes)
    if nc == 2: a.s("s_and_b32 s3, s3, 1")
    for k in range(1, nc):
        a.s(f"s_cmp_eq_u32 s3, {k}")
        a.s(f"s_cbranch_scc1 L_cls{k}")
    for k, (kp_, tp_) in enumerate(classes):
        if k:
            a.label(f"L_cls{k}")
            a.hist = []; a.vm = list(saved); cnt[0] = c0
        assert middle(g0, 7, kp_, tp_, nxt, k) == 9
        W(7)
        B()
        kvpart(9, S_K, 91, KSTR, 9, 12)
        kvpart(10, S_V, 92, VSTR, 0, cfg.v7, vb)
        a.wait_vm_tag(("st", 8))
        if cfg.kearly: a.waitcnt(vm=3 + cfg.v7)
        else: a.vm = a.vm[-(3 + cfg.v7):]
        if k < nc - 1: a.s("s_branch L_join")
    a.label("L_join")
    st(5); B()
    kvpart(10, S_V, 92, VSTR, cfg.v7, cfg.v8, vb)
    W(9); st(6); B()
    kvpart(10, S_V, 92, VSTR, cfg.v8, 12, vb)
    wostage(0, start)
    W(10); st(7); B()
    if cfg.l_wo > 1: wostage(1, start)
    W(11); st(8); B()
    if cfg.ctouch > 1: codetouch()
    if cfg.fbar: B()
    if cfg.l_wo < 2: wostage(1, start)
    if cfg.wo2 > 1: wostage(2, start)
    if cfg.wo2 > 2: wostage(3, start)
    W(12); st(9); B()
    if cfg.wo2 < 3: wostage(2 if cfg.wo2 == 1 else 3, start)
    if cfg.w3e: wostage(3, start)
    W(13); B()
    if cfg.wo2 == 1 and not cfg.w3e: wostage(3, start)
    nonce_load(a, 32, 16)
    if cfg.ctouch > 2: codetouch()
    W(14); st(10); B()
    a.v("v_lshlrev_b32 v14, 4, v1")
    a.v("v_lshlrev_b32 v11, 3, v1")
    tail_ssetup(a, 73, 0 if cfg.two else 1)
    nonce_check(a, 32, 16)
    apply_c(a, (88,))
    if cfg.two or cfg.dyn:
        a.s("s_add_u32 s96, s96, s76")
        a.s("s_lshl_b32 s76, s90, 7")
        a.s("s_add_u32 s96, s96, s76")
        a.s("s_lshl_b32 s97, 1, s90")
        a.s("s_xor_b32 s97, s97, 0xff")
    for f in tail_vsetup(a, 73, 0 if cfg.two else 1): f()
    if cfg.two or cfg.dyn: a.barrier()
    a.s("s_branch L_tail")

def xlane_reduce(a, op, regs, tmps):
    for sw in ("v_permlane32_swap_b32", "v_permlane16_swap_b32"):
        for r, t in zip(regs, tmps): a.v(f"v_mov_b32 v{t}, v{r}")
        for r, t in zip(regs, tmps): a.v(f"{sw} v{r}, v{t}")
        for r, t in zip(regs, tmps): a.v(f"{op} v{r}, v{r}, v{t}")

class Fill:
    def __init__(self): self.q = []
    def add(self, *fs): self.q.extend(fs)
    def pop(self, n):
        for _ in range(n):
            if self.q: self.q.pop(0)()
    def drain(self): self.pop(len(self.q))

def compute(a, cfg):
    ACC = 16; WF = 112; XF = 144; KF = 168; AS = 216; VF = 112
    accQ = lambda t, mt: ACC + (t*3 + mt)*4
    Wf = lambda t: WF + 4*t
    Xf = lambda par, mt: XF + par*12 + mt*4
    Kf = lambda kt, kp: KF + (kt*4 + kp)*4
    accS = lambda kt, mt: AS + (kt*3 + mt)*4
    Vf = lambda t: VF + 6*t
    accO = lambda mt, t: ACC + (mt*8 + t)*4
    aW = lambda st_, t: 216 + st_*10 + t
    aX = lambda st_, ks: 216 + st_*10 + 8 + ks
    aK = lambda kp: 252 + kp
    aV = lambda th: 2 + th
    R = [13, 15]
    ofA = lambda kp, mt: 168 + (kp*3 + mt)*4
    def ofB(kp, mt):
        f = kp*3 + mt
        return 216 + f*4 if f < 10 else 160 + (f - 10)*4
    of = lambda buf, kp, mt: ofB(kp, mt) if buf else ofA(kp, mt)
    acc2 = lambda mt, t: 16 + (mt*9 + t)*4
    Wf2 = lambda i: 124 + 4*i

    if cfg.prio: a.s(f"s_setprio {cfg.prio}")
    a.s("s_and_b32 s43, s2, 0x98")
    a.s(f"s_or_b32 s43, s43, s{S_W}")
    a.s("s_cmp_lg_u32 s43, 0")
    a.s("s_cbranch_scc1 L_np1")
    a.raw("    s_getreg_b32 s54, hwreg(HW_REG_XCC_ID, 2, 1)")
    a.s("s_lshr_b32 s46, s2, 6")
    a.s("s_lshl_b32 s46, s46, 3")
    a.s("s_and_b32 s47, s2, 7")
    a.s("s_add_u32 s46, s46, s47")
    a.s("s_mul_i32 s46, s46, 448")
    a.s("s_and_b32 s47, s2, 32")
    a.s("s_lshl_b32 s47, s47, 8")
    a.s("s_add_u32 s46, s46, s47")
    a.s(f"s_add_u32 s46, s46, {WS_PROBE}")
    a.raw("    s_waitcnt lgkmcnt(0)")
    a.s("s_add_u32 s44, s32, s46")
    a.s("s_addc_u32 s45, s33, 0")
    for rep in range(cfg.nprobe):
        a.raw("    s_memtime s[48:49]")
        a.raw(f"    s_load_dword s46, s[44:45], {rep*16384}")
        a.raw("    s_waitcnt lgkmcnt(0)")
        a.raw("    s_memtime s[50:51]")
        a.raw("    s_waitcnt lgkmcnt(0)")
    a.s("s_sub_u32 s50, s50, s48")
    a.s(f"s_min_u32 s50, s50, {CAP}")
    a.s("s_sub_u32 s51, 0, s50")
    a.s("s_lshr_b32 s47, s47, 13")
    a.s("s_cmp_eq_u32 s47, s54")
    a.s("s_cselect_b32 s50, s50, s51")
    a.s(f"s_add_u32 s50, s50, {(1 << 24) + CAP}")
    a.s("s_lshl_b32 s51, s54, s2")
    a.s(f"s_add_u32 s51, s51, {1 << 16}")
    a.s("s_cmp_lt_u32 s2, 8")
    a.s("s_cselect_b32 s51, s51, 0")
    a.label("L_np1")
    a.v("v_lshrrev_b32 v160, 4, v1")
    a.v("v_bfe_u32 v161, v1, 2, 2")
    a.v("v_and_b32 v162, 3, v1")
    a.v("v_and_b32 v163, 15, v1")
    a.v("v_and_b32 v165, 1, v160")
    a.s(f"s_mul_i32 s76, s{S_W}, {KUNIT}")
    a.s(f"s_mul_i32 s77, s{S_E}, {2*SL}")
    a.s("s_add_u32 s76, s76, s77")
    a.v(f"v_mul_u32_u24 v164, {KSTR}, v161")
    a.v("v_lshl_add_u32 v164, v162, 8, v164")
    a.v("v_lshl_add_u32 v164, v160, 3, v164")
    a.v("v_add_u32 v164, s76, v164")
    for kp in range(4):
        a.v(f"v_xor_b32 v167, {kp}, v162")
        a.v(f"v_lshl_add_u32 v{aK(kp)}, v167, 6, v164")
    a.v("v_lshl_add_u32 v164, v160, 3, v161")
    a.v("v_lshlrev_b32 v164, 8, v164")
    a.v("v_lshl_or_b32 v166, v165, 2, v161")
    a.v("v_lshl_add_u32 v164, v166, 5, v164")
    a.v("v_lshl_add_u32 v164, v162, 3, v164")
    a.v(f"v_add_u32 v{aW(0,0)}, {SL}, v164")
    for t in range(1, 8): a.v(f"v_xor_b32 v{aW(0,t)}, {32*t}, v{aW(0,0)}")
    a.v("v_lshrrev_b32 v164, 1, v163")
    a.v("v_xor_b32 v164, v164, v160")
    a.v("v_lshlrev_b32 v164, 4, v164")
    a.v("v_lshl_add_u32 v164, v163, 7, v164")
    a.s(f"s_mul_i32 s76, s{S_W}, 6144")
    a.s(f"s_add_u32 s76, s76, {16384 + SL}")
    a.v(f"v_add_u32 v{aX(0,0)}, s76, v164")
    a.v(f"v_xor_b32 v{aX(0,1)}, 64, v{aX(0,0)}")
    for i in range(10): a.v(f"v_add_u32 v{226+i}, {2*SL}, v{216+i}")
    a.s(f"s_mul_i32 s76, s{S_W}, {VUNIT}")
    a.s(f"s_cmp_eq_u32 s{S_E}, 1")
    a.s(f"s_cselect_b32 s77, 0, {VBASE_L}")
    a.s("s_add_u32 s76, s76, s77")
    a.v(f"v_mul_u32_u24 v164, {VSTR}, v160")
    a.v("v_lshl_add_u32 v164, v161, 8, v164")
    a.v("v_lshl_add_u32 v164, v162, 3, v164")
    a.v("v_add_u32 v164, s76, v164")
    for th in range(4):
        a.v(f"v_xor_b32 v167, {th}, v161")
        a.v(f"v_lshl_add_u32 v{aV(th)}, v167, 6, v164")
    a.v("v_lshl_add_u32 v164, v160, 2, v161")
    a.v("v_mul_u32_u24 v164, 320, v164")
    a.v("v_lshl_add_u32 v164, v162, 3, v164")
    a.s(f"s_cmp_eq_u32 s{S_E}, 1")
    a.s(f"s_mov_b32 s76, {3*SL}")
    a.s(f"s_cselect_b32 s76, {2*SL}, s76")
    a.s(f"s_mov_b32 s93, {SL}")
    a.s(f"s_cselect_b32 s93, s93, {(-3*SL) & 0xffffffff}")
    a.s(f"s_mov_b32 s94, {SL}")
    a.s(f"s_cselect_b32 s94, {(-3*SL) & 0xffffffff}, s94")
    a.s(f"s_mov_b32 s95, {SL}")
    a.v("v_add_u32 v164, s76, v164")
    a.s(f"s_and_b32 s77, s{S_NT}, 1")
    a.v("v_xor_b32 v167, s77, v165")
    a.v(f"v_lshl_add_u32 v{R[0]}, v167, 5, v164")
    a.s("s_add_u32 s77, s77, 1")
    a.v("v_xor_b32 v167, s77, v165")
    a.v(f"v_lshl_add_u32 v{R[1]}, v167, 5, v164")
    a.v("v_lshlrev_b32 v14, 4, v1")
    a.v("v_lshlrev_b32 v11, 3, v1")
    a.v("v_mov_b32 v10, 0")
    a.s(f"s_lshl_b32 s81, s{S_KQ}, 3")
    a.s(f"s_and_b32 s82, s{S_HL}, 4")
    a.s("s_add_u32 s81, s81, s82")
    unit_base(a, 80, S_W, 81)
    a.s(f"s_mov_b32 s83, {f2u(SC)}")
    a.s("s_and_b32 s76, s2, 7")
    a.s("s_lshr_b32 s77, s2, 5")
    a.s("s_lshl_b32 s77, s77, 3")
    a.s("s_or_b32 s76, s76, s77")
    a.s("s_lshl_b32 s76, s76, 2")
    a.s(f"s_add_u32 s76, s76, s{S_W}")
    a.s("s_lshr_b32 s77, s76, 6")
    a.s("s_lshl_b32 s77, s77, 14")
    a.s("s_and_b32 s76, s76, 63")
    a.s("s_lshl_b32 s76, s76, 7")
    a.s("s_add_u32 s76, s76, s77")
    a.s(f"s_add_u32 s84, s76, {WS_FLAG1}")
    a.s(f"s_lshl_b32 s85, 1, s{S_NT}")
    a.s("s_xor_b32 s86, s85, 15")
    tail_ssetup(a, S_W, 1 if cfg.two else 0)
    a.s("s_lshl_b32 s97, 1, s90")
    build_srds(a, ('o',))
    srd(a, S_X, 32, 33, 0)
    if cfg.warmf:
        a.v("v_mov_b32 v7, s84")
        a.s("s_xor_b32 s76, s84, 8192")
        a.raw("    v_writelane_b32 v7, s76, 1")
        a.s("s_lshl_b32 s76, s90, 7")
        a.s("s_add_u32 s76, s76, s96")
        a.raw("    v_writelane_b32 v7, s76, 2")
        a.s("s_xor_b32 s76, s76, 8192")
        a.raw("    v_writelane_b32 v7, s76, 3")
        if cfg.tlb:
            a.s("s_xor_b32 s76, s40, 20480")
            a.s("s_add_u32 s76, s76, s80")
            a.raw("    v_writelane_b32 v7, s76, 4")
            a.s(f"s_add_u32 s76, s92, {15*16384}")
            a.raw("    v_writelane_b32 v7, s76, 5")
        a.s(f"s_mov_b64 exec, {63 if cfg.tlb else 15}")
        a.bload(6, 1, 7, S_WS, "0", flags="sc1")
        if cfg.tlb > 1:
            a.s("s_mov_b64 exec, 1")
            a.bload(8, 1, 10, S_OUT, "s87", flags="nt")
        a.s("s_mov_b64 exec, -1")

    ver = {}
    def rdW(s, t, ks, h):
        def f():
            a.ds_read("ds_read_b64_tr_b16", Wf(t)+2*h, 2, aW((s % 3) >> 1, t), off=((s % 3) & 1)*SL + ks*8192 + h*1024); ver[("W", t, h)] = (s, ks)
        return f
    def rdX(s, mt, ks):
        def f():
            a.ds_read("ds_read_b128", Xf(ks, mt), 4, aX((s % 3) >> 1, ks), off=((s % 3) & 1)*SL + mt*2048); ver[("X", ks, mt)] = s
        return f
    def chk1(s, ks, t, mt):
        assert ver[("W", t, 0)] == (s, ks) and ver[("W", t, 1)] == (s, ks) and ver[("X", ks, mt)] == s, (s, ks, t, mt)
    def readK():
        for kp in range(4):
            for kt in range(3):
                for e in range(2): a.ds_read("ds_read_b64", Kf(kt, kp)+2*e, 2, aK(kp), off=kt*4*KSTR + 32*e)
    def rdK1(kt, kp, e):
        return lambda: a.ds_read("ds_read_b64", Kf(kt, kp)+2*e, 2, aK(kp), off=kt*4*KSTR + 32*e)
    def cvt(d, s0, s1):
        return lambda: a.v(f"v_cvt_pk_bf16_f32 v{d}, v{s0}, v{s1}")
    def cvtQ(kp):
        out = []
        for mt in range(3):
            r = accQ(2*kp, mt); s_ = accQ(2*kp+1, mt)
            out += [cvt(r, r, r+1), cvt(r+1, r+2, r+3), cvt(r+2, s_, s_+1), cvt(r+3, s_+2, s_+3)]
        return out
    F = Fill()
    a.s("s_cmp_lg_u32 s43, 0")
    a.s("s_cbranch_scc1 L_np2")
    a.v("v_mov_b32 v112, s50")
    a.v("v_mov_b32 v113, s51")
    a.s("s_mov_b64 exec, 1")
    a.raw(f"    buffer_atomic_add_x2 v[112:113], v10, s[{S_DBG}:{S_DBG+3}], 0 offen offset:8 sc1")
    a.s("s_mov_b64 exec, -1")
    a.nop(2)
    a.label("L_np2")
    stamp(a, cfg, 1)
    if cfg.el == 1:
        a.s(f"s_cmp_eq_u32 s{S_E}, 0")
        a.s("s_cbranch_scc1 L_noK0")
        a.barrier()
        readK()
        a.waitcnt(lgkm=0)
        a.barrier()
        a.label("L_noK0")
    a.barrier()
    stamp(a, cfg, 2)
    for mt in range(3): rdX(0, mt, 0)()
    for t in range(8): rdW(0, t, 0, 0)(); rdW(0, t, 0, 1)()
    BP = cfg.barpos
    for s in range(9):
        last = s == 8
        for mt in range(3): F.add(rdX(s, mt, 1))
        for t in range(8):
            if last and cfg.kearly: F.add(rdK1(t >> 2, t & 3, 0), rdK1(t >> 2, t & 3, 1))
            for mt in (range(3) if (t % 2 == 0 or not cfg.serp) else (2, 1, 0)):
                chk1(s, 0, t, mt)
                a.mfma(accQ(t, mt), Wf(t), Xf(0, mt), None if s == 0 else accQ(t, mt))
                for b in range(cfg.x_burn): a.raw(f"    v_mad_u32_u24 v{236+(t*3+mt+b*5)%16}, v{Wf(t)+mt}, v{Xf(0,mt)+b}, v{236+(t*3+mt+b*5+7)%16}")
                F.pop(2 if len(F.q) > 2 else 1)
            if cfg.x_pace and s < cfg.pst: a.nop(cfg.x_pace)
            if s < cfg.strict and t % cfg.smod == 0: a.waitcnt(lgkm=0)
            F.add(rdW(s, t, 1, 0), rdW(s, t, 1, 1))
        for t in range(8):
            for mt in (range(3) if (t % 2 == 0 or not cfg.serp) else (2, 1, 0)):
                chk1(s, 1, t, mt)
                a.mfma(accQ(t, mt), Wf(t), Xf(1, mt), accQ(t, mt))
                for b in range(cfg.x_burn): a.raw(f"    v_mad_u32_u24 v{236+(t*3+mt+b*5)%16}, v{Wf(t)+mt}, v{Xf(1,mt)+b}, v{236+(t*3+mt+b*5+7)%16}")
                F.pop(2 if len(F.q) > 2 else 1)
            if cfg.x_pace and s < cfg.pst and cfg.pst < 9: a.nop(cfg.x_pace)
            if s < cfg.strict and t != BP - 1 and t % cfg.smod == 0: a.waitcnt(lgkm=0)
            if last:
                if t in (3, 5, 7): F.add(*cvtQ((t - 3)//2))
            elif t == BP - 1:
                assert not F.q
                a.waitcnt(lgkm=0)
                a.barrier()
                F.add(rdX(s+1, 0, 0), rdW(s+1, 0, 0, 0), rdW(s+1, 0, 0, 1), rdX(s+1, 1, 0), rdX(s+1, 2, 0))
                for tt in range(1, BP): F.add(rdW(s+1, tt, 0, 0), rdW(s+1, tt, 0, 1))
            elif t >= BP:
                F.add(rdW(s+1, t, 0, 0), rdW(s+1, t, 0, 1))
    a.waitcnt(lgkm=0)
    a.barrier()
    stamp(a, cfg, 3)
    if not cfg.att:
        a.bload(8, 2, 10, S_DBG, "0", flags="sc1", tag="nonce")
        if cfg.el:
            a.s(f"s_cmp_eq_u32 s{S_E}, 1")
            a.s("s_cbranch_scc1 L_noK1")
        readK()
        if cfg.el: a.label("L_noK1")
        F.drain()
        for f in cvtQ(3): f()
        for kp in range(4):
            for kt in range(3):
                for mt in range(3):
                    a.mfma(accS(kt, mt), Kf(kt, kp), accQ(2*kp, mt), None if kp == 0 else accS(kt, mt))
        MX = [160, 161, 162]; TM = [163, 164, 165]; SM = [166, 167, 6]
        vals = lambda mt: [accS(kt, mt) + r for kt in range(3) for r in range(4)]
        for mt in range(3):
            v = vals(mt); a.v(f"v_max3_f32 v{MX[mt]}, v{v[0]}, v{v[1]}, v{v[2]}")
        for i in range(3, 11, 2):
            for mt in range(3):
                v = vals(mt); a.v(f"v_max3_f32 v{MX[mt]}, v{MX[mt]}, v{v[i]}, v{v[i+1]}")
        for mt in range(3):
            v = vals(mt); a.v(f"v_max_f32 v{MX[mt]}, v{MX[mt]}, v{v[11]}")
        xlane_reduce(a, "v_max_f32", MX, TM)
        for mt in range(3): a.v(f"v_mul_f32 v{MX[mt]}, s83, v{MX[mt]}")
        for i in range(12):
            for mt in range(3):
                v = vals(mt); a.v(f"v_fma_f32 v{v[i]}, v{v[i]}, s83, -v{MX[mt]}")
        for i in range(12):
            for mt in range(3):
                v = vals(mt); a.v(f"v_exp_f32 v{v[i]}, v{v[i]}")
        for mt in range(3):
            v = vals(mt); a.v(f"v_add_f32 v{SM[mt]}, v{v[0]}, v{v[1]}")
        for i in range(2, 12):
            for mt in range(3):
                v = vals(mt); a.v(f"v_add_f32 v{SM[mt]}, v{SM[mt]}, v{v[i]}")
        xlane_reduce(a, "v_add_f32", SM, TM)
        for mt in range(3): a.v(f"v_rcp_f32 v{SM[mt]}, v{SM[mt]}")
        a.barrier()
        for t in range(8):
            for kt in range(3):
                F.add(lambda t=t, kt=kt: a.ds_read("ds_read_b64_tr_b16", Vf(t) + 2*kt, 2, aV(t >> 1), off=kt*4*VSTR + (t & 1)*32))
        for i in range(12):
            for mt in range(3):
                v = vals(mt); a.v(f"v_mul_f32 v{v[i]}, v{v[i]}, v{SM[mt]}"); F.pop(1)
        for mt in range(3):
            r0, r1, r2 = accS(0, mt), accS(1, mt), accS(2, mt)
            for f in (cvt(r0, r0, r0+1), cvt(r0+1, r0+2, r0+3), cvt(r0+2, r1, r1+1), cvt(r0+3, r1+2, r1+3), cvt(r2, r2, r2+1), cvt(r2+1, r2+2, r2+3)): f()
        stamp(a, cfg, 4)
        nonce_check(a, 10)
        a.s(f"s_lshl_b32 s81, s{S_NT}, 15")
        a.s("s_add_u32 s81, s81, s80")
        def ostore(mt, kp):
            r = accO(mt, 2*kp); s_ = accO(mt, 2*kp+1); d = ofA(kp, mt); f = kp*3 + mt
            return [cvt(d, r, r+1), cvt(d+1, r+2, r+3), cvt(d+2, s_, s_+1), cvt(d+3, s_+2, s_+3),
                    lambda: a.s(f"s_add_u32 s82, s81, s{40 + f//4}"),
                    lambda: a.bstore(d, 4, 14, S_WS, "s82", off=(f % 4)*1024, flags="sc1")]
        for mt in range(3):
            for t in range(8):
                a.mfma(accO(mt, t), Vf(t), accS(0, mt), None); F.pop(2)
            for t in range(8):
                a.mfma(accO(mt, t), Vf(t)+4, accS(2, mt), accO(mt, t), k=16); F.pop(2)
            for kp in range(4): F.add(*ostore(mt, kp))
    else:
        assert cfg.el == 2 and cfg.l_kpos >= 0 and cfg.c_kpos >= 0
        if not cfg.kearly:
            for kp in range(4):
                for kt in range(2): rdK1(kt, kp, 0)(); rdK1(kt, kp, 1)()
        for kp in range(4): rdK1(2, kp, 0)(); rdK1(2, kp, 1)()
        nonce_load(a, 252, 10)
        F.add(*cvtQ(3))
        order = [(kp, kt, mt) for kp in range(3) for kt in range(2) for mt in range(3)]
        order += [(kp, 2, mt) for kp in range(3) for mt in range(3)]
        order += [(3, kt, mt) for mt in range(3) for kt in range(3)]
        for n, (kp, kt, mt) in enumerate(order):
            if kp == 2 and n == 12: F.pop(max(0, len(F.q) - 12))
            if kp == 3: F.drain()
            a.mfma(accS(kt, mt), Kf(kt, kp), accQ(2*kp, mt), None if kp == 0 else accS(kt, mt)); F.pop(2)
        MX = [160, 162, 164]; TM = [161, 163, 165]; SM = [166, 6, 112]
        vals = lambda mt: [accS(kt, mt) + r for kt in range(3) for r in range(4)]
        for mt in range(3):
            v = vals(mt); a.v(f"v_max3_f32 v{MX[mt]}, v{v[0]}, v{v[1]}, v{v[2]}")
        for i in range(3, 11, 2):
            for mt in range(3):
                v = vals(mt); a.v(f"v_max3_f32 v{MX[mt]}, v{MX[mt]}, v{v[i]}, v{v[i+1]}")
        for mt in range(3):
            v = vals(mt); a.v(f"v_max_f32 v{MX[mt]}, v{MX[mt]}, v{v[11]}")
        xlane_reduce(a, "v_max_f32", MX, TM)
        for mt in range(3): a.v(f"v_mul_f32 v{MX[mt]}, s83, v{MX[mt]}")
        for i in range(0, 12, 2):
            for mt in range(3):
                v = vals(mt)
                a.v(f"v_pk_fma_f32 v[{v[i]}:{v[i]+1}], v[{v[i]}:{v[i]+1}], s[82:83], v[{MX[mt]}:{MX[mt]+1}] op_sel:[0,1,0] op_sel_hi:[1,1,0] neg_lo:[0,0,1] neg_hi:[0,0,1]")
        for i in range(12):
            for mt in range(3):
                v = vals(mt); a.v(f"v_exp_f32 v{v[i]}, v{v[i]}")
        for mt in range(3):
            v = vals(mt); a.v(f"v_pk_add_f32 v[{SM[mt]}:{SM[mt]+1}], v[{v[0]}:{v[1]}], v[{v[2]}:{v[3]}]")
        for i in range(4, 12, 2):
            for mt in range(3):
                v = vals(mt); a.v(f"v_pk_add_f32 v[{SM[mt]}:{SM[mt]+1}], v[{SM[mt]}:{SM[mt]+1}], v[{v[i]}:{v[i]+1}]")
        for mt in range(3): a.v(f"v_add_f32 v{MX[mt]}, v{SM[mt]}, v{SM[mt]+1}")
        xlane_reduce(a, "v_add_f32", MX, TM)
        for mt in range(3): a.v(f"v_rcp_f32 v{MX[mt]}, v{MX[mt]}")
        for i in range(0, 12, 2):
            for mt in range(3):
                v = vals(mt); a.v(f"v_pk_mul_f32 v[{v[i]}:{v[i]+1}], v[{v[i]}:{v[i]+1}], v[{MX[mt]}:{MX[mt]+1}] op_sel_hi:[1,0]")
        for mt in range(3):
            r0, r1, r2 = accS(0, mt), accS(1, mt), accS(2, mt)
            for f in (cvt(r0, r0, r0+1), cvt(r0+1, r0+2, r0+3), cvt(r0+2, r1, r1+1), cvt(r0+3, r1+2, r1+3), cvt(r2, r2, r2+1), cvt(r2+1, r2+2, r2+3)): f()
        stamp(a, cfg, 4)
        a.barrier()
        for t in range(8):
            for kt in range(3):
                a.ds_read("ds_read_b64_tr_b16", Vf(t) + 2*kt, 2, aV(t >> 1), off=kt*4*VSTR + (t & 1)*32)
        nonce_check(a, 252, 10)
        apply_c(a, (80, 84, 88))
        a.s("s_mov_b32 s52, s76")
        a.s("s_mov_b32 s53, s75")
        for k in range(4):
            F.add(lambda k=k: a.s(f"s_bitcmp1_b32 s53, {k}") or a.s(f"s_cselect_b32 s{44+k}, 8192, 0"), lambda k=k: a.s(f"s_xor_b32 s{44+k}, s{44+k}, s92"))
        a.s(f"s_lshl_b32 s81, s{S_NT}, 15")
        a.s("s_add_u32 s81, s81, s80")
        def ostore(mt, kp):
            r = accO(mt, 2*kp); s_ = accO(mt, 2*kp+1); d = ofA(kp, mt); f = kp*3 + mt
            return [cvt(d, r, r+1), cvt(d+1, r+2, r+3), cvt(d+2, s_, s_+1), cvt(d+3, s_+2, s_+3),
                    lambda: a.s(f"s_add_u32 s82, s81, s{40 + f//4}"),
                    lambda: a.bstore(d, 4, 14, S_WS, "s82", off=(f % 4)*1024, flags="sc1")]
        for kp in range(4):
            for t in (2*kp, 2*kp+1):
                for mt in range(3):
                    a.mfma(accO(mt, t), Vf(t), accS(0, mt), None); F.pop(2)
            for t in (2*kp, 2*kp+1):
                for mt in range(3):
                    a.mfma(accO(mt, t), Vf(t)+4, accS(2, mt), accO(mt, t), k=16); F.pop(2)
            F.add(lambda: None, lambda: None, lambda: None, lambda: None)
            for mt in range(3): F.add(*ostore(mt, kp))
    F.drain()
    stamp(a, cfg, 5)
    def flagst(off):
        a.s("s_mov_b32 exec_lo, s85"); a.s("s_mov_b32 exec_hi, 0")
        a.bstore(8, 2, 11, S_WS, "s84", off=off, flags="sc1")
        a.s("s_mov_b64 exec, -1")
    def poll_issue(mask, off):
        a.s(f"s_mov_b32 exec_lo, {mask}"); a.s("s_mov_b32 exec_hi, 0")
        a.bload(6, 2, 11, S_WS, "s84", off=off, flags="sc1")
        a.s("s_mov_b64 exec, -1")
    def poll_check(mask, off):
        L = newlabel("pc"); Lb = newlabel("pcb")
        a.s(f"s_mov_b32 exec_lo, {mask}"); a.s("s_mov_b32 exec_hi, 0")
        a.v("v_cmp_ne_u64 vcc, v[6:7], v[8:9]")
        a.s("s_mov_b64 exec, -1")
        a.s(f"s_cbranch_vccnz {L}")
        a.label(Lb)
        o = Asm(); o.label(L); poll_flags(o, 6, 8, 11, 84, mask, 76, off); o.s(f"s_branch {Lb}")
        a.ool += o.L
    if cfg.split:
        a.waitcnt(vm=6)
        flagst(0)
        head_order(a, 1, 75)
        a.s("s_lshl_b32 s75, 1, s75")
    a.waitcnt(lgkm=0)
    a.barrier()
    stamp(a, cfg, 10)
    KO = lambda p, ts: [(p, kp, t) for kp in range(4) for t in ts]
    TO = lambda p, ts: [(p, kp, t) for t in ts for kp in range(4)]
    items = KO(0, range(9)) + KO(1, range(9))
    if cfg.reord: items += KO(2, range(6)) + TO(3, range(6)) + KO(2, range(6, 9)) + TO(3, range(6, 9))
    else: items += KO(2, range(9)) + TO(3, range(9))
    first3 = next(i for i, it in enumerate(items) if it[0] == 3)
    done_at = {}
    for i, (p, kp, t) in enumerate(items): done_at[t//2] = i
    NB = 9
    R3 = [12, 10]
    def rdW2(i, h):
        p, kp, t = items[i]
        def f():
            a.ds_read("ds_read_b64_tr_b16", Wf2(i % NB)+2*h, 2, (R3 if p == 3 else R)[t & 1], off=kp*10240 + h*5120 + 32*(t - (t & 1))); ver[("W2", i % NB, h)] = i
        return f
    for kp in range(4):
        for mt in range(3): ver[("O", 0, kp, mt)] = 0
    def headbase(p):
        return [lambda: head_order(a, p, 81), lambda: a.s("s_lshl_b32 s81, s81, 15"), lambda: a.s("s_add_u32 s81, s81, s80")]
    def ldO(p, f, srdb=S_WS):
        kp, mt = divmod(f, 3)
        return [lambda: a.s(f"s_add_u32 s82, s81, s{40 + f//4}"),
                lambda: (a.bload(of(p & 1, kp, mt), 4, 14, srdb, "s82", off=(f % 4)*1024, flags="sc1"), ver.__setitem__(("O", p & 1, kp, mt), p))]
    def publish(mt, pair):
        if pair == 4 and mt == 1: return []
        slot = pair*3 + mt if pair < 4 else 12 + mt//2
        r = acc2(mt, 2*pair)
        out = [cvt(r, r, r+1), cvt(r+1, r+2, r+3)]
        if slot < 13:
            s_ = acc2(mt, 2*pair+1) if pair < 4 else acc2(1, 8)
            out += [cvt(r+2, s_, s_+1), cvt(r+3, s_+2, s_+3)]
        def st_():
            L = newlabel("own"); L2 = newlabel("ownb")
            a.s(f"s_cmp_eq_u32 s90, {slot & 7}")
            a.s(f"s_cbranch_scc1 {L}")
            if slot < 13: a.bstore(r, 4, 14, S_WS, "s82", flags="sc1", tag=("pub", slot))
            else: a.bstore(r, 2, 11, S_WS, "s82", flags="sc1", tag=("pub", slot))
            a.label(L2)
            a.ool += [f"{L}:", f"    ds_write_b128 v2, v[{r}:{r+3}] offset:{(slot >> 3)*4096}",
                      f"    buffer_store_dword v{r}, v14, s[{S_X}:{S_X+3}], 0 offen", f"    s_branch {L2}"]
        out += [lambda: a.s(f"s_add_u32 s82, s{44 + ((slot & 7) >> 1)}, {slot*16384}"), st_]
        return out
    def flag2(off):
        a.s("s_mov_b32 exec_lo, s97"); a.s("s_mov_b32 exec_hi, 0")
        a.bstore(8, 2, 3, S_WS, "s55", off=off, flags="sc1")
        a.s("s_mov_b64 exec, -1")
    def stageA():
        a.wait_vm_tag(("pub", 7))
        flag2(0)
        a.waitcnt(lgkm=0)
        a.barrier()
    for i in range(NB): rdW2(i, 0)(); rdW2(i, 1)()
    seen = set()
    n3 = 0
    for i, (p, kp, t) in enumerate(items):
        if i == cfg.fb:
            F.drain()
            a.waitcnt(vm=0)
            stamp(a, cfg, 6)
            flagst(0)
            if cfg.fbar: a.barrier()
        if i == 36:
            F.drain()
            if cfg.p2st: stamp(a, cfg, 1)
            a.barrier()
            if cfg.p2st: stamp(a, cfg, 2)
            for r in R: a.v(f"v_subrev_u32 v{r}, {3*SL}, v{r}")
            for j in range(36, 36 + NB): rdW2(j, 0)(); rdW2(j, 1)()
            for f in headbase(1): f()
            poll_flags(a, 6, 8, 11, 84, "s86", 76, 0, 4)
            stamp(a, cfg, 7)
            for fr in range(12):
                for f in ldO(1, fr): f()
            F.add(*headbase(2))
            for r, r3 in zip(R, R3): F.add(lambda r=r, r3=r3: a.v(f"v_add_u32 v{r3}, {2*SL}, v{r}"))
        if cfg.p2st and i in (37, 72, 108): stamp(a, cfg, {37: 3, 72: 4, 108: 5}[i])
        if p == 1 and t in (0, 3, 6): F.add(*ldO(2, kp*3 + t//3))
        if i == 54:
            F.add(*tail_vsetup(a, S_W, 0))
            F.add(*[lambda t=t: a.v(t) for t in ("v_lshrrev_b32 v5, 1, v1", "v_lshrrev_b32 v5, v5, s53", "v_and_b32 v5, 1, v5", "v_lshl_add_u32 v3, v5, 13, v3")])
            F.add(*[lambda t=t: a.s(t) for t in ("s_xor_b32 s97, s97, 0xff", "s_lshl_b32 s55, s90, 3", "s_add_u32 s55, s55, s96",
                                                  "s_lshl_b32 s76, s90, 7", "s_add_u32 s96, s96, s76", "s_add_u32 s96, s96, s52")])
        if i == 72: F.add(*headbase(3))
        if i >= 72 and n3 < 12 and (cfg.reord or t < 6): F.add(*ldO(3, n3)); n3 += 1
        if cfg.two and i == done_at[2] + 1 + cfg.fa: F.drain(); stageA()
        for mt in (range(3) if (i % 2 == 0 or not cfg.serp) else (2, 1, 0)):
            assert ver[("W2", i % NB, 0)] == i and ver[("W2", i % NB, 1)] == i and ver[("O", p & 1, kp, mt)] == p, (i, p, kp, t)
            a.mfma(acc2(mt, t), Wf2(i % NB), of(p & 1, kp, mt), acc2(mt, t) if (mt, t) in seen else None)
            seen.add((mt, t))
            F.pop(3 if len(F.q) > 8 else 2 if len(F.q) > 2 else 1)
        j = i + NB
        if j < len(items) and not (p == 0 and j >= 36):
            if j in (72, first3):
                F.drain()
                a.barrier()
                if j == 72:
                    for r in R: a.v(f"v_add_u32 v{r}, {SL}, v{r}")
            F.q = [rdW2(j, 0), rdW2(j, 1)] + F.q
        for pair in range(4):
            if i == done_at[pair] + 1:
                for mt in range(3): F.add(*publish(mt, pair))
    stamp(a, cfg, 8)
    F.drain()
    for mt in range(3):
        for f in publish(mt, 4): f()
    if cfg.two and done_at[2] + 1 + cfg.fa >= len(items): stageA()
    stamp(a, cfg, 9)
    if cfg.dyn:
        a.waitcnt(lgkm=0)
        a.barrier()
    a.waitcnt(vm=0, lgkm=0)
    stamp(a, cfg, 11)
    flag2(64)
    if cfg.dyn: pass
    elif cfg.two:
        a.v("v_add_u32 v2, 4096, v2")
        a.s("s_add_u32 s96, s96, 64")
    else:
        poll_flags(a, 6, 8, 11, 96, "s97", 76, 64, 62)

def tail(a, cfg, endlabel):
    if cfg.dyn:
        a.s("s_cmp_ge_u32 s89, 14")
        a.s(f"s_cbranch_scc1 {endlabel}")
        for k in range(8):
            L = newlabel("ow")
            a.s(f"s_cmp_lg_u32 s90, {k}")
            a.s(f"s_cbranch_scc1 {L}")
            a.raw(f"    ds_read_b128 v[{16+4*k}:{19+4*k}], v2")
            a.label(L)
        a.s("s_add_u32 s77, s88, 4096")
        a.s("s_mov_b32 s76, 0")
        a.s("s_cmp_eq_u32 s89, 13")
        a.s("s_cbranch_scc1 L_dynh")
        def loop(o, name, half):
            o.label(name)
            o.s("s_mov_b32 exec_lo, s97"); o.s("s_mov_b32 exec_hi, 0")
            o.raw(f"    buffer_load_dwordx2 v[6:7], v11, s[{S_WS}:{S_WS+3}], s96 offen offset:64 sc1")
            o.s("s_add_u32 s76, s76, 1")
            o.raw("    s_waitcnt vmcnt(0)")
            o.raw("    v_cmp_eq_u64 vcc, v[6:7], v[8:9]")
            o.s("s_mov_b64 exec, -1")
            o.s(f"s_cmp_gt_u32 s76, {SPIN_MAX}")
            o.s("s_cselect_b32 s75, s97, vcc_lo")
            o.s("s_andn2_b32 s97, s97, s75")
            for k in range(8):
                L = newlabel("dy")
                o.s(f"s_bitcmp0_b32 s75, {k}")
                o.s(f"s_cbranch_scc1 {L}")
                so = "s88" if k < 4 else "s77"
                off = f" offset:{(k % 4)*1024}" if k % 4 else ""
                if half: o.raw(f"    buffer_load_dwordx2 v[{16+4*k}:{17+4*k}], v11, s[{S_WS}:{S_WS+3}], {so} offen{off} sc1")
                else: o.raw(f"    buffer_load_dwordx4 v[{16+4*k}:{19+4*k}], v14, s[{S_WS}:{S_WS+3}], {so} offen{off} sc1")
                o.label(L)
            o.s("s_cmp_lg_u32 s97, 0")
            o.s(f"s_cbranch_scc1 {name}")
        loop(a, "L_dyn", False)
        a.label("L_dynb")
        ool = Asm(); loop(ool, "L_dynh", True); ool.s("s_branch L_dynb"); a.ool += ool.L
        stamp(a, cfg, 12)
        a.raw("    s_waitcnt vmcnt(0) lgkmcnt(0)")
    else:
        if not cfg.two: a.barrier()
        a.s("s_cmp_ge_u32 s89, 14")
        a.s(f"s_cbranch_scc1 {endlabel}")
        if cfg.two: poll_flags(a, 6, 8, 11, 96, "s97", 76, 0, 68)
        stamp(a, cfg, 12)
        a.ds_read("ds_read_b128", 16, 4, 2)
        a.s("s_cmp_eq_u32 s89, 13")
        a.s("s_cbranch_scc1 L_half")
        def srcoff(k):
            a.s(f"s_add_u32 s76, s90, {k}")
            a.s("s_and_b32 s76, s76, 7")
            a.s("s_lshl_b32 s76, s76, 10")
            a.s("s_add_u32 s76, s76, s88")
        for k in range(1, 8):
            srcoff(k); a.bload(16 + 4*k, 4, 14, S_WS, "s76", flags="sc1")
        a.label("L_halfb")
        ool = Asm()
        ool.label("L_half")
        for k in range(1, 8):
            ool.s(f"s_add_u32 s76, s90, {k}"); ool.s("s_and_b32 s76, s76, 7"); ool.s("s_lshl_b32 s76, s76, 10"); ool.s("s_add_u32 s76, s76, s88")
            ool.bload(16 + 4*k, 2, 11, S_WS, "s76", flags="sc1")
        ool.s("s_branch L_halfb")
        a.ool += ool.L
    for k in range(8):
        src = 16 + 4*k
        for i in range(4):
            if k == 0:
                a.v(f"v_lshlrev_b32 v{48+2*i}, 16, v{src+i}")
                a.v(f"v_and_b32 v{49+2*i}, 0xffff0000, v{src+i}")
            else:
                a.v(f"v_lshlrev_b32 v{60+2*(i&1)}, 16, v{src+i}")
                a.v(f"v_and_b32 v{61+2*(i&1)}, 0xffff0000, v{src+i}")
                a.v(f"v_pk_add_f32 v[{48+2*i}:{49+2*i}], v[{48+2*i}:{49+2*i}], v[{60+2*(i&1)}:{61+2*(i&1)}]")
        if k == 1: stamp(a, cfg, 13)
    for i in range(4): a.v(f"v_cvt_pk_bf16_f32 v{64+i}, v{48+2*i}, v{49+2*i}")
    a.v("v_permlane16_swap_b32 v64, v66")
    a.v("v_permlane16_swap_b32 v65, v67")
    stamp(a, cfg, 14)
    a.s("s_mov_b64 exec, s[78:79]")
    a.bstore(64, 4, 4, S_OUT, "s87", flags=cfg.st_out)

def kernel(cfg):
    a = Asm()
    a.lcap = cfg.lcap
    ROT[0] = cfg.rot
    PP[0] = cfg.pp
    a.ool = []
    stamp(a, cfg, 0)
    prologue(a, cfg, "L_end")
    a.s(f"s_cmp_lt_u32 s{S_W}, 4")
    a.s("s_cbranch_scc1 L_compute")
    loader(a, cfg)
    a.label("L_compute")
    a.reset_state()
    compute(a, cfg)
    a.label("L_tail")
    a.reset_state()
    a.nop(2)
    tail(a, cfg, "L_st")
    a.label("L_st")
    if cfg.x_map:
        a.s(f"s_add_u32 s76, s2, s{S_W}")
        a.s("s_cmp_lg_u32 s76, 0")
        a.s("s_cbranch_scc1 L_end")
        a.raw("    s_waitcnt vmcnt(0)")
        for i in range(40): a.raw("    s_sleep 64")
        a.s("s_mov_b64 exec, 1")
        a.v("v_mov_b32 v20, 0")
        a.s("s_mov_b32 s40, 0"); a.s(f"s_mov_b32 s41, {28672}"); a.s("s_mov_b32 s42, 0")
        a.label("L_map")
        for rep in range(2):
            a.raw("    v_mov_b32 v21, 0")
            a.raw("    s_memtime s[44:45]"); a.raw("    s_waitcnt lgkmcnt(0)")
            a.raw(f"    buffer_atomic_add v21, v20, s[{S_WS}:{S_WS+3}], s41 offen sc0 sc1")
            a.raw("    s_waitcnt vmcnt(0)")
            a.raw("    s_memtime s[46:47]"); a.raw("    s_waitcnt lgkmcnt(0)")
        a.s("s_sub_u32 s46, s46, s44")
        a.s("s_cmp_gt_u32 s46, 680")
        a.s("s_cselect_b32 s46, 1, 0")
        a.s("s_lshl_b32 s46, s46, s40")
        a.s("s_or_b32 s42, s42, s46")
        a.s(f"s_add_u32 s41, s41, {2 << 20}")
        a.s("s_add_u32 s40, s40, 1")
        a.s("s_cmp_lt_u32 s40, 24")
        a.s("s_cbranch_scc1 L_map")
        a.v("v_mov_b32 v21, s42")
        a.raw(f"    buffer_store_dword v21, v20, s[{S_DBG}:{S_DBG+3}], 0 offen offset:16")
        a.v(f"v_mov_b32 v22, s{S_WS}")
        a.raw(f"    buffer_store_dword v22, v20, s[{S_DBG}:{S_DBG+3}], 0 offen offset:20")
        a.raw("    s_getreg_b32 s42, hwreg(HW_REG_XCC_ID)")
        a.v("v_mov_b32 v23, s42")
        a.raw(f"    buffer_store_dword v23, v20, s[{S_DBG}:{S_DBG+3}], 0 offen offset:24")
    if cfg.stamps: a.waitcnt(vm=0)
    stamp(a, cfg, 15)
    stamp_out(a, cfg)
    a.label("L_end")
    a.s("s_endpgm")
    for l in a.ool: a.raw(l)
    return a

HEADER = open("cdna_kernels/" + NAME + ".s.ref").read().split("; Override launch")[0]

def build(cfg):
    n = NAME + "_kernel"
    a = kernel(cfg)
    return HEADER + f"""; @launch grid=(256,1,1) block=(512,1,1) lds=163840
.amdgcn_target "amdgcn-amd-amdhsa--gfx950"
.text
.globl {n}
.p2align 8
.type {n},@function
{n}:
{a.text()}
L_code_end:
.section .rodata,"a"
.p2align 6
.amdhsa_kernel {n}
  .amdhsa_next_free_vgpr 256
  .amdhsa_next_free_sgpr 102
  .amdhsa_accum_offset 256
  .amdhsa_group_segment_fixed_size 0
  .amdhsa_kernarg_size 104
  .amdhsa_user_sgpr_count 2
  .amdhsa_user_sgpr_kernarg_segment_ptr 1
  .amdhsa_system_sgpr_workgroup_id_x 1
.end_amdhsa_kernel
"""

if __name__ == "__main__":
    cfg = Cfg()
    for kv in sys.argv[2:]:
        k, v = kv.split("=")
        cur = getattr(cfg, k)
        setattr(cfg, k, (v == "1") if isinstance(cur, bool) else int(v) if isinstance(cur, int) else v.replace("_", " "))
    open(sys.argv[1], "w").write(build(cfg))
```

```python
import sys, struct
from asm import *

NAME = "concat_heads__gqa_block_cached__mha_block_cached__near_ridge"
SL = 40960
KSTR, VSTR = 4112, 4128
KUNIT, VUNIT = 1024, 1024
KBASE = 0
VBASE_L = 12*KSTR
WS_O = 0
WS_FLAG1 = 64 << 20
WS_FLAG2 = 65 << 20
WS_PROBE = 68 << 20
WS_PART = 32 << 20
WS_STAMP = 72 << 20
WS_BYTES = 80 << 20
SC = 0.08838834764831845 * 1.4426950408889634
SPIN_MAX = 1 << 17
def f2u(x): return struct.unpack("<I", struct.pack("<f", x))[0]

S_X, S_K, S_V, S_WQ, S_WO, S_OUT, S_WS, S_DBG = 36, 40, 44, 48, 52, 56, 60, 64
S_BR, S_KQ, S_HL, S_BG, S_W, S_NT, S_E = 68, 69, 70, 71, 72, 98, 99

class Cfg:
    stamps = False; x_clk = False; lst = 0
    ld_x = ""; ld_wq = ""; ld_kv = "nt"; ld_wo = ""; st_out = ""; ld_out = ""
    skew = 3; prio = 3; lcap = 8; barpos = 3
    el = 2; pollpos = 4; ctouch = 3; e_wo = 1; l_wo = 1; prog = 1; touch = 1; tpos = 5; wo2 = 1; flagpos = 1; e_vpos = 4; l_kpos = 2; f2 = 1; c_kpos = 5; c_tpos = 3; swap = 1; own = 1; warmf = 1; p2st = 0; fbar = 1; wo0late = 0; x_enc = -1; x_amp = 4; dbgwg = 0; att = 1; r1first = 1; epoll = 0; cfix = -1; nprobe = 1; split = 0; fb = 9; x_pace = 0; cls = '33,44,55,66'; v7 = 4; v8 = 12; x_burn = 0; x_map = 0; bal = 0; two = 0; reord = 0; fa = 8; serp = 1; pp = 0; tlb = 0; sw = 0; kearly = 1; kfirst = 0; hold = 0; lprio = 0; xfirst = 0; tsh = '2222'; dyn = 1; w3e = 0; o3e = 0; ct0 = 1; wout = 0; strict = 3; smod = 1; pst = 9; pa = 14; pac = 21; rot = 0; pb = 48

NST = 16
def streg(i): return 4 if i == 0 else 8 + 2*(i-1) if i <= 13 else {14: 34, 15: 100}[i]
def stamp(a, cfg, i):
    if cfg.stamps:
        r = streg(i)
        a.raw(f"    {'s_memtime' if cfg.x_clk else 's_memrealtime'} s[{r}:{r+1}]"); a.pos += 1
def stamp_out(a, cfg):
    if not cfg.stamps: return
    if cfg.x_enc >= 0:
        a.raw("    s_waitcnt lgkmcnt(0)")
        a.s("s_lshl_b32 s3, s2, 3")
        a.s(f"s_add_u32 s3, s3, s{S_W}")
        a.s(f"s_cmp_lg_u32 s3, {cfg.dbgwg*8}")
        a.s("s_cbranch_scc1 L_end")
        if cfg.x_enc == 99:
            a.raw("    s_getreg_b32 s76, hwreg(HW_REG_XCC_ID, 0, 4)")
            a.s("s_mul_i32 s76, s76, 1000")
        elif cfg.x_enc == 98:
            a.v("v_readfirstlane_b32 s76, v8")
            a.s("s_sub_u32 s76, s4, s76")
            a.s("s_add_u32 s76, s76, 300")
            a.s("s_mul_i32 s76, s76, 8")
        else:
            a.s(f"s_sub_u32 s76, s{streg(cfg.x_enc)}, s4")
            a.s(f"s_mul_i32 s76, s76, {cfg.x_amp}")
        a.s("s_add_u32 s76, s76, 5000")
        a.label("L_hold")
        a.raw("    s_memrealtime s[78:79]")
        a.raw("    s_waitcnt lgkmcnt(0)")
        a.s("s_sub_u32 s77, s78, s4")
        a.s("s_cmp_lt_u32 s77, s76")
        a.s("s_cbranch_scc1 L_hold")
        return
    a.raw("    s_waitcnt lgkmcnt(0)")
    a.s("s_mov_b64 exec, 1")
    a.s("s_lshl_b32 s3, s2, 3")
    a.s(f"s_add_u32 s3, s3, s{S_W}")
    a.s("s_lshl_b32 s3, s3, 6")
    a.s(f"s_add_u32 s3, s3, {WS_STAMP}")
    a.v("v_mov_b32 v1, 0")
    for i in range(NST):
        a.v(f"v_mov_b32 v2, s{streg(i)}")
        a.bstore(2, 1, 1, S_WS, "s3", off=4*i)
        a.nop(2)

def srd(a, base, lo, hi, size):
    a.s(f"s_mov_b32 s{base}, s{lo}")
    a.s(f"s_mov_b32 s{base+1}, s{hi}")
    a.s(f"s_mov_b32 s{base+2}, {size}")
    a.s(f"s_mov_b32 s{base+3}, 0x20000")

BAL = [0]
def prologue(a, cfg, endlabel):
    a.s("s_cmp_ge_u32 s2, 256")
    a.s(f"s_cbranch_scc1 {endlabel}")
    a.raw("    s_load_dwordx16 s[8:23], s[0:1], 0")
    a.raw("    s_load_dwordx8 s[24:31], s[0:1], 64")
    a.raw("    s_load_dwordx2 s[32:33], s[0:1], 96")
    a.v("v_and_b32 v1, 63, v0")
    a.v("v_lshrrev_b32 v15, 6, v0")
    BAL[0] = cfg.bal
    if cfg.bal:
        a.s(f"s_bfe_u32 s{S_KQ}, s2, 0x10002")
        a.s(f"s_lshl_b32 s{S_KQ}, s{S_KQ}, 1")
        a.s(f"s_and_b32 s{S_BR}, s2, 1")
        a.s(f"s_or_b32 s{S_KQ}, s{S_KQ}, s{S_BR}")
        a.s(f"s_bfe_u32 s{S_BR}, s2, 0x10001")
    else:
        a.s(f"s_and_b32 s{S_KQ}, s2, 3")
        a.s(f"s_bfe_u32 s{S_BR}, s2, 0x10002")
    if cfg.swap: a.s(f"s_xor_b32 s{S_BR}, s{S_BR}, 1")
    a.s(f"s_bfe_u32 s{S_HL}, s2, 0x30003")
    a.s(f"s_lshr_b32 s{S_BG}, s2, 6")
    a.s(f"s_and_b32 s{S_NT}, s{S_HL}, 3")
    a.v(f"v_readfirstlane_b32 s{S_W}, v15")
    if cfg.el:
        a.s(f"s_lshr_b32 s{S_E}, s{S_HL}, 2")
        a.s(f"s_xor_b32 s{S_E}, s{S_E}, s{S_BG}")
        a.s(f"s_and_b32 s{S_E}, s{S_E}, 1")
        a.s(f"s_and_b32 s3, s{S_BG}, 2")
        a.s(f"s_or_b32 s3, s3, s{S_E}")
        if cfg.el == 2: a.s(f"s_mov_b32 s{S_E}, 0")
    else:
        a.s(f"s_mov_b32 s{S_E}, 0")

def build_srds(a, keys):
    a.raw("    s_waitcnt lgkmcnt(0)")
    a.s(f"s_cmp_eq_u32 s{S_BR}, 0")
    for (dst, pa, pb, key) in ((S_WQ, 14, 24, 'wq'), (S_X, 8, 18, 'x'), (S_K, 10, 20, 'k'), (S_V, 12, 22, 'v'), (S_WO, 16, 26, 'wo')):
        if key not in keys: continue
        a.s(f"s_cselect_b64 s[{dst}:{dst+1}], s[{pa}:{pa+1}], s[{pb}:{pb+1}]")
        if key in ('k', 'v'):
            a.s(f"s_mov_b32 s{dst+2}, 6291456")
            a.s(f"s_cselect_b32 s{dst+2}, 3145728, s{dst+2}")
        else:
            a.s(f"s_mov_b32 s{dst+2}, {884736 if key == 'x' else 4718592}")
        a.s(f"s_mov_b32 s{dst+3}, 0x20000")
    if 'o' in keys:
        srd(a, S_OUT, 28, 29, 1769472)
        srd(a, S_DBG, 30, 31, 256)
        srd(a, S_WS, 32, 33, WS_BYTES)

ROT = [0]
def head_order(a, p, sd):
    if p == 0: a.s(f"s_mov_b32 s{sd}, s{S_NT}")
    elif ROT[0]:
        a.s(f"s_add_u32 s{sd}, s{S_NT}, {p}"); a.s(f"s_and_b32 s{sd}, s{sd}, 3")
    else:
        a.s(f"s_cmp_le_u32 s{S_NT}, {p-1}"); a.s(f"s_cselect_b32 s{sd}, {p}, {p-1}")

_lbl = [0]
def newlabel(p):
    _lbl[0] += 1
    return f"L{p}_{_lbl[0]}"

PP = [0]
def poll_flags(a, vdata, vnonce, voff, soff, mask, stmp, off=0, v2=None):
    L = newlabel("poll"); X = newlabel("pollx")
    a.s(f"s_mov_b32 exec_lo, {mask}")
    a.s("s_mov_b32 exec_hi, 0")
    a.s(f"s_mov_b32 s{stmp}, 0")
    if PP[0] and v2 is not None:
        o = f" offset:{off}" if off else ""
        ld = lambda v: a.raw(f"    buffer_load_dwordx2 v[{v}:{v+1}], v{voff}, s[{S_WS}:{S_WS+3}], s{soff} offen{o} sc1")
        a.waitcnt(vm=0) if False else None
        ld(vdata)
        a.raw(f"    s_sleep {PP[0]}")
        a.label(L)
        ld(v2)
        a.s(f"s_add_u32 s{stmp}, s{stmp}, 1")
        a.raw("    s_waitcnt vmcnt(1)")
        a.raw(f"    v_cmp_ne_u64 vcc, v[{vdata}:{vdata+1}], v[{vnonce}:{vnonce+1}]")
        a.s(f"s_cbranch_vccz {X}")
        ld(vdata)
        a.s(f"s_cmp_gt_u32 s{stmp}, {SPIN_MAX}")
        a.raw("    s_waitcnt vmcnt(1)")
        a.s(f"s_cbranch_scc1 {X}")
        a.raw(f"    v_cmp_ne_u64 vcc, v[{v2}:{v2+1}], v[{vnonce}:{vnonce+1}]")
        a.s(f"s_cbranch_vccnz {L}")
        a.label(X)
        a.vm = [({vdata, vdata+1, v2, v2+1}, "poll")]
        a.s("s_mov_b64 exec, -1")
        return
    a.label(L)
    a.bload(vdata, 2, voff, S_WS, f"s{soff}", off=off, flags="sc1")
    a.s(f"s_add_u32 s{stmp}, s{stmp}, 1")
    a.s(f"s_cmp_gt_u32 s{stmp}, {SPIN_MAX}")
    a.waitcnt(vm=0)
    a.s(f"s_cbranch_scc1 {X}")
    a.v(f"v_cmp_ne_u64 vcc, v[{vdata}:{vdata+1}], v[{vnonce}:{vnonce+1}]")
    a.s(f"s_cbranch_vccnz {L}")
    a.label(X)
    a.s("s_mov_b64 exec, -1")

NVOTE = 32
CAP = 4095
def nonce_load(a, vn, vzero):
    a.bload(vn, 4, vzero, S_DBG, "0", flags="sc1", tag="nonce")
def nonce_check(a, vn, vzero):
    Lok = newlabel("nok"); Lsp = newlabel("nsp")
    a.s("s_mov_b32 s77, 0")
    a.v(f"v_readfirstlane_b32 s76, v{vn}")
    a.v(f"v_readfirstlane_b32 s75, v{vn+2}")
    a.v(f"v_readfirstlane_b32 s3, v{vn+3}")
    a.label(Lsp)
    a.s("s_cmp_lg_u32 s76, 0")
    a.s("s_cselect_b32 s76, s75, 0")
    a.s(f"s_cmp_ge_u32 s3, {8 << 16}")
    a.s("s_cselect_b32 s76, s76, 0")
    a.s(f"s_cmp_ge_u32 s76, {NVOTE << 24}")
    a.s(f"s_cbranch_scc1 {Lok}")
    a.s("s_add_u32 s77, s77, 1")
    a.s(f"s_cmp_gt_u32 s77, {SPIN_MAX}")
    a.s(f"s_cbranch_scc1 {Lok}")
    a.raw(f"    buffer_load_dwordx4 v[{vn}:{vn+3}], v{vzero}, s[{S_DBG}:{S_DBG+3}], 0 offen sc1")
    a.raw("    s_waitcnt vmcnt(0)")
    a.raw(f"    v_readfirstlane_b32 s76, v{vn}")
    a.raw(f"    v_readfirstlane_b32 s75, v{vn+2}")
    a.raw(f"    v_readfirstlane_b32 s3, v{vn+3}")
    a.raw("    s_nop 0")
    a.s(f"s_branch {Lsp}")
    a.label(Lok)
    a.v(f"v_mov_b32 v8, v{vn}")
    a.v(f"v_mov_b32 v9, v{vn+1}")
    a.s(f"s_cmp_gt_u32 s76, {(NVOTE << 24) + NVOTE*CAP}")
    a.s("s_cselect_b32 s76, 0xff, 0")
    a.s("s_xor_b32 s75, s3, s76")
    if BAL[0]:
        a.s("s_and_b32 s76, s2, 2")
        a.s("s_lshr_b32 s75, s75, s76")
        a.s("s_lshr_b32 s76, s75, 2")
        a.s("s_and_b32 s76, s76, 12")
        a.s("s_and_b32 s75, s75, 3")
        a.s("s_or_b32 s75, s75, s76")
    else:
        a.s("s_and_b32 s76, s2, 4")
        a.s("s_lshr_b32 s75, s75, s76")
    a.s(f"s_lshr_b32 s76, s75, s{S_KQ}")
    a.s("s_and_b32 s76, s76, 1")
    a.s("s_lshl_b32 s76, s76, 13")

def bsel(a, sd):
    a.s(f"s_lshr_b32 s76, s{sd}, 8")
    a.s("s_and_b32 s76, s76, 8192")
    a.s(f"s_or_b32 s{sd}, s{sd}, s76")

def apply_c(a, regs):
    for r in regs: a.s(f"s_xor_b32 s{r}, s{r}, s76")

def unit_base(a, sd, sb_w, shead):
    a.s(f"s_lshl_b32 s76, s{S_BR}, 2")
    a.s(f"s_add_u32 s76, s76, s{S_BG}")
    a.s("s_lshl_b32 s76, s76, 2")
    a.s(f"s_add_u32 s76, s76, s{sb_w}")
    a.s("s_lshl_b32 s76, s76, 5")
    a.s(f"s_add_u32 s76, s76, s{shead}")
    a.s(f"s_lshl_b32 s{sd}, s76, 15")
    bsel(a, sd)
    a.s(f"s_and_b32 s76, s{sb_w}, 1")
    a.s("s_lshl_b32 s40, s76, 12")
    a.s(f"s_and_b32 s76, s{sb_w}, 2")
    a.s("s_lshl_b32 s76, s76, 13")
    a.s("s_or_b32 s40, s40, s76")
    a.s("s_xor_b32 s41, s40, 4096")
    a.s("s_xor_b32 s42, s40, 16384")

def tail_ssetup(a, sw, half):
    a.s(f"s_lshr_b32 s90, s{S_HL}, 2")
    a.s(f"s_lshl_b32 s76, s{S_KQ}, 1")
    a.s("s_add_u32 s90, s90, s76")
    a.s(f"s_add_u32 s89, s90, {8*half}")
    a.s(f"s_lshl_b32 s91, s{S_BR}, 2")
    a.s(f"s_add_u32 s91, s91, s{S_BG}")
    a.s("s_lshl_b32 s91, s91, 2")
    a.s(f"s_add_u32 s91, s91, s{S_NT}")
    a.s("s_lshl_b32 s91, s91, 2")
    a.s(f"s_add_u32 s91, s91, s{sw}")
    a.s("s_lshr_b32 s76, s91, 3")
    a.s("s_lshl_b32 s76, s76, 14")
    a.s("s_and_b32 s77, s91, 7")
    a.s("s_lshl_b32 s77, s77, 10")
    a.s("s_add_u32 s76, s76, s77")
    a.s(f"s_add_u32 s96, s76, {WS_FLAG2}")
    a.s("s_lshl_b32 s92, s91, 18")
    a.s(f"s_add_u32 s92, s92, {WS_PART}")
    bsel(a, 92)
    a.s("s_lshl_b32 s76, s89, 14")
    a.s("s_add_u32 s88, s92, s76")
    a.s("s_lshl_b32 s76, s90, 10")
    a.s("s_add_u32 s92, s92, s76")
    a.s("s_mul_i32 s76, s89, 43")
    a.s("s_lshr_b32 s76, s76, 7")
    a.s("s_mul_i32 s77, s76, 3")
    a.s("s_sub_u32 s77, s89, s77")
    a.s("s_cmp_eq_u32 s89, 13")
    a.s("s_cselect_b32 s77, 2, s77")
    a.s("s_lshl_b32 s87, s76, 6")
    a.s(f"s_mul_i32 s77, s77, {16*2304}")
    a.s("s_add_u32 s87, s87, s77")
    a.s(f"s_lshl_b32 s77, s{S_BG}, 2")
    a.s(f"s_add_u32 s77, s77, s{sw}")
    a.s(f"s_mul_i32 s77, s77, {48*2304}")
    a.s("s_add_u32 s87, s87, s77")
    a.s(f"s_mul_i32 s77, s{S_BR}, 1152")
    a.s("s_add_u32 s87, s87, s77")
    a.s(f"s_mul_i32 s77, s{S_NT}, 288")
    a.s("s_add_u32 s87, s87, s77")
    a.s("s_cmp_lt_u32 s89, 12")
    a.s(f"s_cselect_b32 s74, 32, {16*2304}")
    a.s("s_cmp_lt_u32 s89, 13")
    a.s("s_cselect_b32 s78, -1, 0xffff")
    a.s("s_mov_b32 s79, s78")
    for u in range(16): assert (u*43) >> 7 == u//3

def tail_vsetup(a, sw=S_W, half=0):
    return [lambda t=t: a.v(t) for t in (
        "v_and_b32 v4, 15, v1", "v_mul_u32_u24 v4, 2304, v4", "v_bfe_u32 v5, v1, 4, 1", "v_mad_u32_u24 v4, v5, s74, v4",
        "v_lshrrev_b32 v5, 5, v1", "v_lshl_add_u32 v4, v5, 4, v4", "v_lshlrev_b32 v3, 7, v1", f"v_lshlrev_b32 v2, 4, v1", f"v_lshl_add_u32 v2, s{sw}, 10, v2", f"v_add_u32 v2, {3*SL + half*4096}, v2")]

def loader(a, cfg):
    if cfg.lprio: a.s(f"s_setprio {cfg.lprio}")
    a.s(f"s_sub_u32 s73, s{S_W}, 4")
    def codetouch():
        a.s("s_mov_b64 exec, 7")
        a.raw("    global_load_dword v24, v25, s[6:7]"); a.pos += 1
        a.vm.append((None, "touch"))
        a.s("s_mov_b64 exec, -1")
    def ctsetup():
        if cfg.ctouch:
            L = newlabel("pc")
            a.raw("    s_getpc_b64 s[6:7]")
            a.label(L)
            a.s(f"s_sub_u32 s6, s6, {L}-{NAME}_kernel")
            a.s("s_subb_u32 s7, s7, 0")
            a.s("s_lshr_b32 s76, s2, 3")
            a.s("s_lshl_b32 s76, s76, 2")
            a.s("s_add_u32 s76, s76, s73")
            a.s("s_mul_i32 s76, s76, 384")
            a.v("v_lshlrev_b32 v25, 7, v1")
            a.v("v_add_u32 v25, s76, v25")
            a.s("s_mov_b32 s77, L_code_end-" + NAME + "_kernel-4")
            a.v("v_min_u32 v25, s77, v25")
            codetouch()
    if cfg.ct0: ctsetup()
    a.s("s_and_b32 s74, s73, 1")
    a.s("s_lshr_b32 s75, s73, 1")
    a.s(f"s_lshl_b32 s95, s{S_KQ}, 3")
    a.s(f"s_add_u32 s95, s95, s{S_HL}")
    a.v("v_lshrrev_b32 v4, 4, v1")
    a.s("s_lshl_b32 s76, s75, 2")
    a.v("v_or_b32 v5, s76, v4")
    a.v("v_bfe_u32 v6, v1, 1, 3")
    a.v("v_xor_b32 v6, v6, v5")
    a.v("v_lshlrev_b32 v6, 5, v6")
    a.v("v_and_b32 v7, 1, v1")
    a.v("v_lshl_add_u32 v6, v7, 4, v6")
    a.v("v_lshl_add_u32 v2, v4, 13, v6")
    a.s("s_lshl_b32 s76, s73, 15")
    a.s("s_lshl_b32 s77, s95, 8")
    a.s("s_add_u32 s76, s76, s77")
    a.v("v_add_u32 v2, s76, v2")
    a.v("v_lshlrev_b32 v5, 2, v4")
    a.v("v_and_b32 v6, 15, v1")
    a.v("v_xor_b32 v6, v6, v5")
    a.v("v_lshlrev_b32 v6, 4, v6")
    a.v("v_lshl_add_u32 v10, v4, 8, v6")
    a.s("s_lshl_b32 s76, s74, 2")
    a.v("v_or_b32 v5, s76, v4")
    a.v("v_lshrrev_b32 v4, 3, v1")
    a.v("v_mul_u32_u24 v4, 1152, v4")
    a.v("v_and_b32 v6, 7, v1")
    a.v("v_xor_b32 v6, v6, v5")
    a.v("v_lshl_add_u32 v3, v6, 4, v4")
    a.s(f"s_mul_i32 s76, s{S_BG}, {192*1152}")
    a.s(f"s_mul_i32 s77, s74, {8*1152}")
    a.s("s_add_u32 s76, s76, s77")
    a.s(f"s_mul_i32 s77, s75, {96*1152}")
    a.s("s_add_u32 s76, s76, s77")
    a.v("v_add_u32 v3, s76, v3")
    a.s("s_lshl_b32 s78, s73, 10")
    a.s("s_mul_i32 s79, s75, 12288")
    a.s("s_lshl_b32 s77, s74, 10")
    a.s("s_add_u32 s79, s79, s77")
    a.s("s_add_u32 s79, s79, 16384")
    a.s(f"s_lshl_b32 s76, s{S_BG}, 2")
    a.s("s_add_u32 s76, s76, s73")
    a.s("s_lshl_b32 s76, s76, 5")
    a.s("s_add_u32 s76, s76, s95")
    a.s(f"s_xor_b32 s77, s{S_BR}, 1")
    a.s("s_lshr_b32 s76, s76, s77")
    a.s("s_mul_i32 s80, s76, 12288")
    a.s(f"s_mul_i32 s91, s73, {KUNIT}")
    a.s(f"s_add_u32 s91, s91, {KBASE}")
    a.s(f"s_mul_i32 s92, s73, {VUNIT}")
    if cfg.skew == 3:
        a.s(f"s_add_u32 s84, s{S_HL}, s{S_BG}")
        a.s("s_mul_i32 s85, s84, 43")
        a.s("s_lshr_b32 s85, s85, 7")
        a.s("s_mul_i32 s85, s85, 3")
        a.s("s_sub_u32 s84, s84, s85")
        a.s("s_mul_i32 s84, s84, 3")
    elif cfg.skew == 4:
        a.s(f"s_add_u32 s84, s{S_HL}, s{S_BG}")
        a.s("s_and_b32 s84, s84, 3")
        a.s("s_lshl_b32 s84, s84, 1")
    elif cfg.skew == 2:
        a.s(f"s_lshr_b32 s84, s{S_BG}, 1")
        a.s(f"s_xor_b32 s84, s84, s{S_HL}")
        a.s("s_and_b32 s84, s84, 1")
        a.s("s_lshl_b32 s84, s84, 2")
    elif cfg.skew == 9:
        a.s(f"s_lshl_b32 s84, s{S_BG}, 1")
        a.s(f"s_add_u32 s84, s84, s{S_HL}")
        a.s("s_sub_u32 s85, s84, 9")
        a.s("s_cmp_ge_u32 s84, 9")
        a.s("s_cselect_b32 s84, s85, s84")
    else:
        a.s("s_mov_b32 s84, 0")
    build_srds(a, ('x', 'wq', 'k'))
    def stage(s):
        slot = (1 + s % 3) * SL
        a.s("s_lshl_b32 s85, s84, 7")
        a.s("s_lshl_b32 s86, s84, 19")
        for i in range(4):
            a.s(f"s_add_u32 m0, s78, {slot + i*4096}")
            a.s(f"s_add_u32 s82, s86, {16*i*8192}")
            a.dma(2, S_WQ, "s82", cfg.ld_wq, tag=("st", s))
        for z in range(6):
            a.s(f"s_add_u32 m0, s79, {slot + z*2048}")
            a.s(f"s_add_u32 s82, s85, {z*16*1152}")
            a.dma(3, S_X, "s82", cfg.ld_x, tag=("st", s))
        a.s("s_add_u32 s84, s84, 1")
        a.s("s_cmp_eq_u32 s84, 9")
        a.s("s_cselect_b32 s84, 0, s84")
    def kvpart(g, srdb, sm0, stride, lo, hi, base=0):
        for i in range(lo, hi):
            a.s(f"s_add_u32 m0, s{sm0}, {base + i*stride}")
            a.s(f"s_add_u32 s82, s80, {i*1024}")
            a.dma(10, srdb, "s82", cfg.ld_kv, tag=("st", g))
    def setup2():
        if not cfg.ct0: ctsetup()
        build_srds(a, ('v', 'wo', 'o'))
        stamp(a, cfg, 1)
        a.v("v_mov_b32 v16, 0")
        L = newlabel("nw")
        a.s("s_add_u32 s76, s2, s73")
        a.s("s_cmp_lg_u32 s76, 0")
        a.s(f"s_cbranch_scc1 {L}")
        a.raw("    s_memrealtime s[88:89]")
        a.raw("    s_waitcnt lgkmcnt(0)")
        a.s("s_or_b32 s88, s88, 1")
        a.v("v_mov_b32 v18, s88")
        a.v("v_mov_b32 v19, s89")
        a.s("s_mov_b64 exec, 1")
        a.raw(f"    buffer_store_dwordx2 v[18:19], v16, s[{S_DBG}:{S_DBG+3}], 0 offen sc1")
        a.s("s_mov_b64 exec, -1")
        a.label(L)
    def setup3():
        a.s("s_and_b32 s76, s95, 0xfc")
        a.s("s_lshl_b32 s76, s76, 7")
        a.s("s_lshl_b32 s77, s73, 5")
        a.s("s_add_u32 s76, s76, s77")
        a.s("s_mul_i32 s76, s76, 1152")
        a.s(f"s_mul_i32 s77, s{S_NT}, 288")
        a.s("s_and_b32 s77, s77, 0xffffffc0")
        a.s("s_add_u32 s76, s76, s77")
        for y in range(5):
            a.v(f"v_add_u32 v4, {y*64}, v1")
            a.v("v_mul_u32_u24 v5, 3277, v4")
            a.v("v_lshrrev_b32 v5, 16, v5")
            a.v("v_mul_u32_u24 v6, 20, v5")
            a.v("v_sub_u32 v6, v4, v6")
            a.v("v_bfe_u32 v7, v5, 2, 1")
            a.v("v_lshlrev_b32 v7, 1, v7")
            a.v("v_xor_b32 v6, v6, v7")
            a.v("v_mul_u32_u24 v5, 1152, v5")
            a.v("v_lshl_add_u32 v5, v6, 4, v5")
            a.v(f"v_add_u32 v{26+y}, s76, v5")
        a.s("s_mul_i32 s93, s73, 10240")
        a.v("v_lshlrev_b32 v22, 7, v1")
        a.s(f"s_and_b32 s76, s{S_BG}, 1")
        a.s("s_lshl_b32 s76, s76, 2")
        a.s(f"s_add_u32 s76, s76, s{S_NT}")
        a.s("s_lshl_b32 s76, s76, 2")
        a.s("s_add_u32 s76, s76, s73")
        a.s(f"s_mul_i32 s76, s76, {8*36*128}")
        a.s(f"s_mul_i32 s94, s{S_KQ}, {1024*1152}")
        a.s("s_add_u32 s94, s94, s76")
        if cfg.tlb > 2:
            a.s("s_mov_b64 exec, 1")
            a.bload(23, 1, 16, S_K, "s80", flags="nt", tag="touch"); a.vm[-1] = (None, "touch")
            a.bload(23, 1, 16, S_V, "s80", flags="nt", tag="touch"); a.vm[-1] = (None, "touch")
            a.bload(23, 1, 26, S_WO, "0", tag="touch"); a.vm[-1] = (None, "touch")
            a.s("s_mov_b64 exec, -1")
    def touches(k):
        sh = [int(c) for c in cfg.tsh]
        assert sum(sh) == 8
        a.s("s_mov_b32 exec_lo, -1"); a.s("s_mov_b32 exec_hi, 15")
        for i in range(sum(sh[:k]), sum(sh[:k+1])):
            a.s(f"s_add_u32 s82, s94, {i*36*128}")
            a.bload(23, 1, 22, S_WO, "s82", tag="touch"); a.vm[-1] = (None, "touch")
        a.s("s_mov_b64 exec, -1")
    def wostage(p, start):
        head_order(a, p, 83)
        a.s(f"s_mul_i32 s83, s83, {128*1152}")
        for z2 in range(2):
            a.s(f"s_add_u32 s82, s83, {z2*16*1152}")
            for y in range(5):
                a.s(f"s_add_u32 m0, s93, {((start + p) % 4)*SL + z2*5120 + y*1024}")
                a.dma(26+y, S_WO, "s82", cfg.ld_wo, tag=("st", 11+p))
    cnt = [0]
    def st(i):
        if not cfg.lst: stamp(a, cfg, i)
    W = lambda g: a.wait_vm_tag(("st", g))
    def B():
        k = cnt[0] - cfg.lst
        if cfg.lst and 0 <= k < 5: stamp(a, cfg, 1 + 2*k)
        a.barrier()
        if cfg.lst and 0 <= k < 5: stamp(a, cfg, 2 + 2*k)
        cnt[0] += 1
    start = 3; vb = VBASE_L
    if cfg.kfirst == 1: kvpart(9, S_K, 91, KSTR, 0, 9)
    stage(0); setup2(); stage(1); setup3(); st(2)
    classes = [(int(c[0]), int(c[1])) for c in cfg.cls.split(",")]
    g0 = min(min(c) for c in classes)
    def middle(lo, hi, mid, tpos, nxt, k=0):
        for g in range(lo, hi):
            W(g)
            if g == 0: st(3)
            if g == 3: st(4)
            B()
            if g == 4 and cfg.ctouch > 1: codetouch()
            if g in (mid, tpos):
                while nxt <= (g + 1 if g < 6 else 8): stage(nxt); nxt += 1
                if g == mid and not cfg.kfirst: kvpart(9, S_K, 91, KSTR, 0, 9)
                if g == tpos: touches(k)
                continue
            while nxt <= g + 2: stage(nxt); nxt += 1
        return nxt
    n0 = 2
    if cfg.sw:
        stage(2); n0 = 3
        if cfg.hold:
            a.s(f"s_and_b32 s76, s3, {cfg.hold}")
            a.s("s_cbranch_scc0 L_nohold")
            a.raw("    s_waitcnt vmcnt(0)")
            a.label("L_nohold")
        else: W(cfg.sw)
    nxt = middle(0, g0, -1, -1, n0)
    saved = list(a.vm); c0 = cnt[0]
    nc = len(classes)
    if nc == 2: a.s("s_and_b32 s3, s3, 1")
    for k in range(1, nc):
        a.s(f"s_cmp_eq_u32 s3, {k}")
        a.s(f"s_cbranch_scc1 L_cls{k}")
    for k, (kp_, tp_) in enumerate(classes):
        if k:
            a.label(f"L_cls{k}")
            a.hist = []; a.vm = list(saved); cnt[0] = c0
        assert middle(g0, 7, kp_, tp_, nxt, k) == 9
        W(7)
        B()
        kvpart(9, S_K, 91, KSTR, 9, 12)
        kvpart(10, S_V, 92, VSTR, 0, cfg.v7, vb)
        a.wait_vm_tag(("st", 8))
        if cfg.kearly: a.waitcnt(vm=3 + cfg.v7)
        else: a.vm = a.vm[-(3 + cfg.v7):]
        if k < nc - 1: a.s("s_branch L_join")
    a.label("L_join")
    st(5); B()
    kvpart(10, S_V, 92, VSTR, cfg.v7, cfg.v8, vb)
    W(9); st(6); B()
    kvpart(10, S_V, 92, VSTR, cfg.v8, 12, vb)
    wostage(0, start)
    W(10); st(7); B()
    if cfg.l_wo > 1: wostage(1, start)
    W(11); st(8); B()
    if cfg.ctouch > 1: codetouch()
    if cfg.fbar: B()
    if cfg.l_wo < 2: wostage(1, start)
    if cfg.wo2 > 1: wostage(2, start)
    if cfg.wo2 > 2: wostage(3, start)
    W(12); st(9); B()
    if cfg.wo2 < 3: wostage(2 if cfg.wo2 == 1 else 3, start)
    if cfg.w3e: wostage(3, start)
    W(13); B()
    if cfg.wo2 == 1 and not cfg.w3e: wostage(3, start)
    nonce_load(a, 32, 16)
    if cfg.ctouch > 2: codetouch()
    W(14); st(10); B()
    a.v("v_lshlrev_b32 v14, 4, v1")
    a.v("v_lshlrev_b32 v11, 3, v1")
    tail_ssetup(a, 73, 0 if cfg.two else 1)
    nonce_check(a, 32, 16)
    apply_c(a, (88,))
    if cfg.two or cfg.dyn:
        a.s("s_add_u32 s96, s96, s76")
        a.s("s_lshl_b32 s76, s90, 7")
        a.s("s_add_u32 s96, s96, s76")
        a.s("s_lshl_b32 s97, 1, s90")
        a.s("s_xor_b32 s97, s97, 0xff")
    for f in tail_vsetup(a, 73, 0 if cfg.two else 1): f()
    if cfg.wout: a.bload(7, 1, 4, S_OUT, "s87", flags=cfg.ld_out)
    if cfg.two or cfg.dyn: a.barrier()
    a.s("s_branch L_tail")

def xlane_reduce(a, op, regs, tmps):
    for sw in ("v_permlane32_swap_b32", "v_permlane16_swap_b32"):
        for r, t in zip(regs, tmps): a.v(f"v_mov_b32 v{t}, v{r}")
        for r, t in zip(regs, tmps): a.v(f"{sw} v{r}, v{t}")
        for r, t in zip(regs, tmps): a.v(f"{op} v{r}, v{r}, v{t}")

class Fill:
    def __init__(self): self.q = []
    def add(self, *fs): self.q.extend(fs)
    def pop(self, n):
        for _ in range(n):
            if self.q: self.q.pop(0)()
    def drain(self): self.pop(len(self.q))

def compute(a, cfg):
    ACC = 16; WF = 112; XF = 144; KF = 168; AS = 216; VF = 112
    accQ = lambda t, mt: ACC + (t*3 + mt)*4
    Wf = lambda t: WF + 4*t
    Xf = lambda par, mt: XF + par*12 + mt*4
    Kf = lambda kt, kp: KF + (kt*4 + kp)*4
    accS = lambda kt, mt: AS + (kt*3 + mt)*4
    Vf = lambda t: VF + 6*t
    accO = lambda mt, t: ACC + (mt*8 + t)*4
    aW = lambda st_, t: 216 + st_*10 + t
    aX = lambda st_, ks: 216 + st_*10 + 8 + ks
    aK = lambda kp: 252 + kp
    aV = lambda th: 2 + th
    R = [13, 15]
    ofA = lambda kp, mt: 168 + (kp*3 + mt)*4
    def ofB(kp, mt):
        f = kp*3 + mt
        return 216 + f*4 if f < 10 else 160 + (f - 10)*4
    of = lambda buf, kp, mt: ofB(kp, mt) if buf else ofA(kp, mt)
    acc2 = lambda mt, t: 16 + (mt*9 + t)*4
    Wf2 = lambda i: 124 + 4*i

    if cfg.prio: a.s(f"s_setprio {cfg.prio}")
    a.s("s_and_b32 s43, s2, 0x98")
    a.s(f"s_or_b32 s43, s43, s{S_W}")
    a.s("s_cmp_lg_u32 s43, 0")
    a.s("s_cbranch_scc1 L_np1")
    a.raw("    s_getreg_b32 s54, hwreg(HW_REG_XCC_ID, 2, 1)")
    a.s("s_lshr_b32 s46, s2, 6")
    a.s("s_lshl_b32 s46, s46, 3")
    a.s("s_and_b32 s47, s2, 7")
    a.s("s_add_u32 s46, s46, s47")
    a.s("s_mul_i32 s46, s46, 448")
    a.s("s_and_b32 s47, s2, 32")
    a.s("s_lshl_b32 s47, s47, 8")
    a.s("s_add_u32 s46, s46, s47")
    a.s(f"s_add_u32 s46, s46, {WS_PROBE}")
    a.raw("    s_waitcnt lgkmcnt(0)")
    a.s("s_add_u32 s44, s32, s46")
    a.s("s_addc_u32 s45, s33, 0")
    for rep in range(cfg.nprobe):
        a.raw("    s_memtime s[48:49]")
        a.raw(f"    s_load_dword s46, s[44:45], {rep*16384}")
        a.raw("    s_waitcnt lgkmcnt(0)")
        a.raw("    s_memtime s[50:51]")
        a.raw("    s_waitcnt lgkmcnt(0)")
    a.s("s_sub_u32 s50, s50, s48")
    a.s(f"s_min_u32 s50, s50, {CAP}")
    a.s("s_sub_u32 s51, 0, s50")
    a.s("s_lshr_b32 s47, s47, 13")
    a.s("s_cmp_eq_u32 s47, s54")
    a.s("s_cselect_b32 s50, s50, s51")
    a.s(f"s_add_u32 s50, s50, {(1 << 24) + CAP}")
    a.s("s_lshl_b32 s51, s54, s2")
    a.s(f"s_add_u32 s51, s51, {1 << 16}")
    a.s("s_cmp_lt_u32 s2, 8")
    a.s("s_cselect_b32 s51, s51, 0")
    a.label("L_np1")
    a.v("v_lshrrev_b32 v160, 4, v1")
    a.v("v_bfe_u32 v161, v1, 2, 2")
    a.v("v_and_b32 v162, 3, v1")
    a.v("v_and_b32 v163, 15, v1")
    a.v("v_and_b32 v165, 1, v160")
    a.s(f"s_mul_i32 s76, s{S_W}, {KUNIT}")
    a.s(f"s_mul_i32 s77, s{S_E}, {2*SL}")
    a.s("s_add_u32 s76, s76, s77")
    a.v(f"v_mul_u32_u24 v164, {KSTR}, v161")
    a.v("v_lshl_add_u32 v164, v162, 8, v164")
    a.v("v_lshl_add_u32 v164, v160, 3, v164")
    a.v("v_add_u32 v164, s76, v164")
    for kp in range(4):
        a.v(f"v_xor_b32 v167, {kp}, v162")
        a.v(f"v_lshl_add_u32 v{aK(kp)}, v167, 6, v164")
    a.v("v_lshl_add_u32 v164, v160, 3, v161")
    a.v("v_lshlrev_b32 v164, 8, v164")
    a.v("v_lshl_or_b32 v166, v165, 2, v161")
    a.v("v_lshl_add_u32 v164, v166, 5, v164")
    a.v("v_lshl_add_u32 v164, v162, 3, v164")
    a.v(f"v_add_u32 v{aW(0,0)}, {SL}, v164")
    for t in range(1, 8): a.v(f"v_xor_b32 v{aW(0,t)}, {32*t}, v{aW(0,0)}")
    a.v("v_lshrrev_b32 v164, 1, v163")
    a.v("v_xor_b32 v164, v164, v160")
    a.v("v_lshlrev_b32 v164, 4, v164")
    a.v("v_lshl_add_u32 v164, v163, 7, v164")
    a.s(f"s_mul_i32 s76, s{S_W}, 6144")
    a.s(f"s_add_u32 s76, s76, {16384 + SL}")
    a.v(f"v_add_u32 v{aX(0,0)}, s76, v164")
    a.v(f"v_xor_b32 v{aX(0,1)}, 64, v{aX(0,0)}")
    for i in range(10): a.v(f"v_add_u32 v{226+i}, {2*SL}, v{216+i}")
    a.s(f"s_mul_i32 s76, s{S_W}, {VUNIT}")
    a.s(f"s_cmp_eq_u32 s{S_E}, 1")
    a.s(f"s_cselect_b32 s77, 0, {VBASE_L}")
    a.s("s_add_u32 s76, s76, s77")
    a.v(f"v_mul_u32_u24 v164, {VSTR}, v160")
    a.v("v_lshl_add_u32 v164, v161, 8, v164")
    a.v("v_lshl_add_u32 v164, v162, 3, v164")
    a.v("v_add_u32 v164, s76, v164")
    for th in range(4):
        a.v(f"v_xor_b32 v167, {th}, v161")
        a.v(f"v_lshl_add_u32 v{aV(th)}, v167, 6, v164")
    a.v("v_lshl_add_u32 v164, v160, 2, v161")
    a.v("v_mul_u32_u24 v164, 320, v164")
    a.v("v_lshl_add_u32 v164, v162, 3, v164")
    a.s(f"s_cmp_eq_u32 s{S_E}, 1")
    a.s(f"s_mov_b32 s76, {3*SL}")
    a.s(f"s_cselect_b32 s76, {2*SL}, s76")
    a.s(f"s_mov_b32 s93, {SL}")
    a.s(f"s_cselect_b32 s93, s93, {(-3*SL) & 0xffffffff}")
    a.s(f"s_mov_b32 s94, {SL}")
    a.s(f"s_cselect_b32 s94, {(-3*SL) & 0xffffffff}, s94")
    a.s(f"s_mov_b32 s95, {SL}")
    a.v("v_add_u32 v164, s76, v164")
    a.s(f"s_and_b32 s77, s{S_NT}, 1")
    a.v("v_xor_b32 v167, s77, v165")
    a.v(f"v_lshl_add_u32 v{R[0]}, v167, 5, v164")
    a.s("s_add_u32 s77, s77, 1")
    a.v("v_xor_b32 v167, s77, v165")
    a.v(f"v_lshl_add_u32 v{R[1]}, v167, 5, v164")
    a.v("v_lshlrev_b32 v14, 4, v1")
    a.v("v_lshlrev_b32 v11, 3, v1")
    a.v("v_mov_b32 v10, 0")
    a.s(f"s_lshl_b32 s81, s{S_KQ}, 3")
    a.s(f"s_and_b32 s82, s{S_HL}, 4")
    a.s("s_add_u32 s81, s81, s82")
    unit_base(a, 80, S_W, 81)
    a.s(f"s_mov_b32 s83, {f2u(SC)}")
    a.s("s_and_b32 s76, s2, 7")
    a.s("s_lshr_b32 s77, s2, 5")
    a.s("s_lshl_b32 s77, s77, 3")
    a.s("s_or_b32 s76, s76, s77")
    a.s("s_lshl_b32 s76, s76, 2")
    a.s(f"s_add_u32 s76, s76, s{S_W}")
    a.s("s_lshr_b32 s77, s76, 6")
    a.s("s_lshl_b32 s77, s77, 14")
    a.s("s_and_b32 s76, s76, 63")
    a.s("s_lshl_b32 s76, s76, 7")
    a.s("s_add_u32 s76, s76, s77")
    a.s(f"s_add_u32 s84, s76, {WS_FLAG1}")
    a.s(f"s_lshl_b32 s85, 1, s{S_NT}")
    a.s("s_xor_b32 s86, s85, 15")
    tail_ssetup(a, S_W, 1 if cfg.two else 0)
    a.s("s_lshl_b32 s97, 1, s90")
    build_srds(a, ('o',))
    srd(a, S_X, 32, 33, 0)
    if cfg.warmf:
        a.v("v_mov_b32 v7, s84")
        a.s("s_xor_b32 s76, s84, 8192")
        a.raw("    v_writelane_b32 v7, s76, 1")
        a.s("s_lshl_b32 s76, s90, 7")
        a.s("s_add_u32 s76, s76, s96")
        a.raw("    v_writelane_b32 v7, s76, 2")
        a.s("s_xor_b32 s76, s76, 8192")
        a.raw("    v_writelane_b32 v7, s76, 3")
        if cfg.tlb:
            a.s("s_xor_b32 s76, s40, 20480")
            a.s("s_add_u32 s76, s76, s80")
            a.raw("    v_writelane_b32 v7, s76, 4")
            a.s(f"s_add_u32 s76, s92, {15*16384}")
            a.raw("    v_writelane_b32 v7, s76, 5")
        a.s(f"s_mov_b64 exec, {63 if cfg.tlb else 15}")
        a.bload(6, 1, 7, S_WS, "0", flags="sc1")
        if cfg.tlb > 1:
            a.s("s_mov_b64 exec, 1")
            a.bload(8, 1, 10, S_OUT, "s87", flags="nt")
        a.s("s_mov_b64 exec, -1")

    ver = {}
    def rdW(s, t, ks, h):
        def f():
            a.ds_read("ds_read_b64_tr_b16", Wf(t)+2*h, 2, aW((s % 3) >> 1, t), off=((s % 3) & 1)*SL + ks*8192 + h*1024); ver[("W", t, h)] = (s, ks)
        return f
    def rdX(s, mt, ks):
        def f():
            a.ds_read("ds_read_b128", Xf(ks, mt), 4, aX((s % 3) >> 1, ks), off=((s % 3) & 1)*SL + mt*2048); ver[("X", ks, mt)] = s
        return f
    def chk1(s, ks, t, mt):
        assert ver[("W", t, 0)] == (s, ks) and ver[("W", t, 1)] == (s, ks) and ver[("X", ks, mt)] == s, (s, ks, t, mt)
    def readK():
        for kp in range(4):
            for kt in range(3):
                for e in range(2): a.ds_read("ds_read_b64", Kf(kt, kp)+2*e, 2, aK(kp), off=kt*4*KSTR + 32*e)
    def rdK1(kt, kp, e):
        return lambda: a.ds_read("ds_read_b64", Kf(kt, kp)+2*e, 2, aK(kp), off=kt*4*KSTR + 32*e)
    def cvt(d, s0, s1):
        return lambda: a.v(f"v_cvt_pk_bf16_f32 v{d}, v{s0}, v{s1}")
    def cvtQ(kp):
        out = []
        for mt in range(3):
            r = accQ(2*kp, mt); s_ = accQ(2*kp+1, mt)
            out += [cvt(r, r, r+1), cvt(r+1, r+2, r+3), cvt(r+2, s_, s_+1), cvt(r+3, s_+2, s_+3)]
        return out
    F = Fill()
    a.s("s_cmp_lg_u32 s43, 0")
    a.s("s_cbranch_scc1 L_np2")
    a.v("v_mov_b32 v112, s50")
    a.v("v_mov_b32 v113, s51")
    a.s("s_mov_b64 exec, 1")
    a.raw(f"    buffer_atomic_add_x2 v[112:113], v10, s[{S_DBG}:{S_DBG+3}], 0 offen offset:8 sc1")
    a.s("s_mov_b64 exec, -1")
    a.nop(2)
    a.label("L_np2")
    stamp(a, cfg, 1)
    if cfg.el == 1:
        a.s(f"s_cmp_eq_u32 s{S_E}, 0")
        a.s("s_cbranch_scc1 L_noK0")
        a.barrier()
        readK()
        a.waitcnt(lgkm=0)
        a.barrier()
        a.label("L_noK0")
    a.barrier()
    stamp(a, cfg, 2)
    for mt in range(3): rdX(0, mt, 0)()
    for t in range(8): rdW(0, t, 0, 0)(); rdW(0, t, 0, 1)()
    BP = cfg.barpos
    for s in range(9):
        last = s == 8
        for mt in range(3): F.add(rdX(s, mt, 1))
        for t in range(8):
            if last and cfg.kearly: F.add(rdK1(t >> 2, t & 3, 0), rdK1(t >> 2, t & 3, 1))
            for mt in (range(3) if (t % 2 == 0 or not cfg.serp) else (2, 1, 0)):
                chk1(s, 0, t, mt)
                a.mfma(accQ(t, mt), Wf(t), Xf(0, mt), None if s == 0 else accQ(t, mt))
                for b in range(cfg.x_burn): a.raw(f"    v_mad_u32_u24 v{236+(t*3+mt+b*5)%16}, v{Wf(t)+mt}, v{Xf(0,mt)+b}, v{236+(t*3+mt+b*5+7)%16}")
                F.pop(2 if len(F.q) > 2 else 1)
            if cfg.x_pace and s < cfg.pst: a.nop(cfg.x_pace)
            if s < cfg.strict and t % cfg.smod == 0: a.waitcnt(lgkm=0)
            F.add(rdW(s, t, 1, 0), rdW(s, t, 1, 1))
        for t in range(8):
            for mt in (range(3) if (t % 2 == 0 or not cfg.serp) else (2, 1, 0)):
                chk1(s, 1, t, mt)
                a.mfma(accQ(t, mt), Wf(t), Xf(1, mt), accQ(t, mt))
                for b in range(cfg.x_burn): a.raw(f"    v_mad_u32_u24 v{236+(t*3+mt+b*5)%16}, v{Wf(t)+mt}, v{Xf(1,mt)+b}, v{236+(t*3+mt+b*5+7)%16}")
                F.pop(2 if len(F.q) > 2 else 1)
            if cfg.x_pace and s < cfg.pst and cfg.pst < 9: a.nop(cfg.x_pace)
            if s < cfg.strict and t != BP - 1 and t % cfg.smod == 0: a.waitcnt(lgkm=0)
            if last:
                if t in (3, 5, 7): F.add(*cvtQ((t - 3)//2))
            elif t == BP - 1:
                assert not F.q
                a.waitcnt(lgkm=0)
                a.barrier()
                F.add(rdX(s+1, 0, 0), rdW(s+1, 0, 0, 0), rdW(s+1, 0, 0, 1), rdX(s+1, 1, 0), rdX(s+1, 2, 0))
                for tt in range(1, BP): F.add(rdW(s+1, tt, 0, 0), rdW(s+1, tt, 0, 1))
            elif t >= BP:
                F.add(rdW(s+1, t, 0, 0), rdW(s+1, t, 0, 1))
    a.waitcnt(lgkm=0)
    a.barrier()
    stamp(a, cfg, 3)
    if not cfg.att:
        a.bload(8, 2, 10, S_DBG, "0", flags="sc1", tag="nonce")
        if cfg.el:
            a.s(f"s_cmp_eq_u32 s{S_E}, 1")
            a.s("s_cbranch_scc1 L_noK1")
        readK()
        if cfg.el: a.label("L_noK1")
        F.drain()
        for f in cvtQ(3): f()
        for kp in range(4):
            for kt in range(3):
                for mt in range(3):
                    a.mfma(accS(kt, mt), Kf(kt, kp), accQ(2*kp, mt), None if kp == 0 else accS(kt, mt))
        MX = [160, 161, 162]; TM = [163, 164, 165]; SM = [166, 167, 6]
        vals = lambda mt: [accS(kt, mt) + r for kt in range(3) for r in range(4)]
        for mt in range(3):
            v = vals(mt); a.v(f"v_max3_f32 v{MX[mt]}, v{v[0]}, v{v[1]}, v{v[2]}")
        for i in range(3, 11, 2):
            for mt in range(3):
                v = vals(mt); a.v(f"v_max3_f32 v{MX[mt]}, v{MX[mt]}, v{v[i]}, v{v[i+1]}")
        for mt in range(3):
            v = vals(mt); a.v(f"v_max_f32 v{MX[mt]}, v{MX[mt]}, v{v[11]}")
        xlane_reduce(a, "v_max_f32", MX, TM)
        for mt in range(3): a.v(f"v_mul_f32 v{MX[mt]}, s83, v{MX[mt]}")
        for i in range(12):
            for mt in range(3):
                v = vals(mt); a.v(f"v_fma_f32 v{v[i]}, v{v[i]}, s83, -v{MX[mt]}")
        for i in range(12):
            for mt in range(3):
                v = vals(mt); a.v(f"v_exp_f32 v{v[i]}, v{v[i]}")
        for mt in range(3):
            v = vals(mt); a.v(f"v_add_f32 v{SM[mt]}, v{v[0]}, v{v[1]}")
        for i in range(2, 12):
            for mt in range(3):
                v = vals(mt); a.v(f"v_add_f32 v{SM[mt]}, v{SM[mt]}, v{v[i]}")
        xlane_reduce(a, "v_add_f32", SM, TM)
        for mt in range(3): a.v(f"v_rcp_f32 v{SM[mt]}, v{SM[mt]}")
        a.barrier()
        for t in range(8):
            for kt in range(3):
                F.add(lambda t=t, kt=kt: a.ds_read("ds_read_b64_tr_b16", Vf(t) + 2*kt, 2, aV(t >> 1), off=kt*4*VSTR + (t & 1)*32))
        for i in range(12):
            for mt in range(3):
                v = vals(mt); a.v(f"v_mul_f32 v{v[i]}, v{v[i]}, v{SM[mt]}"); F.pop(1)
        for mt in range(3):
            r0, r1, r2 = accS(0, mt), accS(1, mt), accS(2, mt)
            for f in (cvt(r0, r0, r0+1), cvt(r0+1, r0+2, r0+3), cvt(r0+2, r1, r1+1), cvt(r0+3, r1+2, r1+3), cvt(r2, r2, r2+1), cvt(r2+1, r2+2, r2+3)): f()
        stamp(a, cfg, 4)
        nonce_check(a, 10)
        a.s(f"s_lshl_b32 s81, s{S_NT}, 15")
        a.s("s_add_u32 s81, s81, s80")
        def ostore(mt, kp):
            r = accO(mt, 2*kp); s_ = accO(mt, 2*kp+1); d = ofA(kp, mt); f = kp*3 + mt
            return [cvt(d, r, r+1), cvt(d+1, r+2, r+3), cvt(d+2, s_, s_+1), cvt(d+3, s_+2, s_+3),
                    lambda: a.s(f"s_add_u32 s82, s81, s{40 + f//4}"),
                    lambda: a.bstore(d, 4, 14, S_WS, "s82", off=(f % 4)*1024, flags="sc1")]
        for mt in range(3):
            for t in range(8):
                a.mfma(accO(mt, t), Vf(t), accS(0, mt), None); F.pop(2)
            for t in range(8):
                a.mfma(accO(mt, t), Vf(t)+4, accS(2, mt), accO(mt, t), k=16); F.pop(2)
            for kp in range(4): F.add(*ostore(mt, kp))
    else:
        assert cfg.el == 2 and cfg.l_kpos >= 0 and cfg.c_kpos >= 0
        if not cfg.kearly:
            for kp in range(4):
                for kt in range(2): rdK1(kt, kp, 0)(); rdK1(kt, kp, 1)()
        for kp in range(4): rdK1(2, kp, 0)(); rdK1(2, kp, 1)()
        nonce_load(a, 252, 10)
        F.add(*cvtQ(3))
        order = [(kp, kt, mt) for kp in range(3) for kt in range(2) for mt in range(3)]
        order += [(kp, 2, mt) for kp in range(3) for mt in range(3)]
        order += [(3, kt, mt) for mt in range(3) for kt in range(3)]
        for n, (kp, kt, mt) in enumerate(order):
            if kp == 2 and n == 12: F.pop(max(0, len(F.q) - 12))
            if kp == 3: F.drain()
            a.mfma(accS(kt, mt), Kf(kt, kp), accQ(2*kp, mt), None if kp == 0 else accS(kt, mt)); F.pop(2)
        MX = [160, 162, 164]; TM = [161, 163, 165]; SM = [166, 6, 112]
        vals = lambda mt: [accS(kt, mt) + r for kt in range(3) for r in range(4)]
        for mt in range(3):
            v = vals(mt); a.v(f"v_max3_f32 v{MX[mt]}, v{v[0]}, v{v[1]}, v{v[2]}")
        for i in range(3, 11, 2):
            for mt in range(3):
                v = vals(mt); a.v(f"v_max3_f32 v{MX[mt]}, v{MX[mt]}, v{v[i]}, v{v[i+1]}")
        for mt in range(3):
            v = vals(mt); a.v(f"v_max_f32 v{MX[mt]}, v{MX[mt]}, v{v[11]}")
        xlane_reduce(a, "v_max_f32", MX, TM)
        for mt in range(3): a.v(f"v_mul_f32 v{MX[mt]}, s83, v{MX[mt]}")
        for i in range(0, 12, 2):
            for mt in range(3):
                v = vals(mt)
                a.v(f"v_pk_fma_f32 v[{v[i]}:{v[i]+1}], v[{v[i]}:{v[i]+1}], s[82:83], v[{MX[mt]}:{MX[mt]+1}] op_sel:[0,1,0] op_sel_hi:[1,1,0] neg_lo:[0,0,1] neg_hi:[0,0,1]")
        for i in range(12):
            for mt in range(3):
                v = vals(mt); a.v(f"v_exp_f32 v{v[i]}, v{v[i]}")
        for mt in range(3):
            v = vals(mt); a.v(f"v_pk_add_f32 v[{SM[mt]}:{SM[mt]+1}], v[{v[0]}:{v[1]}], v[{v[2]}:{v[3]}]")
        for i in range(4, 12, 2):
            for mt in range(3):
                v = vals(mt); a.v(f"v_pk_add_f32 v[{SM[mt]}:{SM[mt]+1}], v[{SM[mt]}:{SM[mt]+1}], v[{v[i]}:{v[i]+1}]")
        for mt in range(3): a.v(f"v_add_f32 v{MX[mt]}, v{SM[mt]}, v{SM[mt]+1}")
        xlane_reduce(a, "v_add_f32", MX, TM)
        for mt in range(3): a.v(f"v_rcp_f32 v{MX[mt]}, v{MX[mt]}")
        for i in range(0, 12, 2):
            for mt in range(3):
                v = vals(mt); a.v(f"v_pk_mul_f32 v[{v[i]}:{v[i]+1}], v[{v[i]}:{v[i]+1}], v[{MX[mt]}:{MX[mt]+1}] op_sel_hi:[1,0]")
        for mt in range(3):
            r0, r1, r2 = accS(0, mt), accS(1, mt), accS(2, mt)
            for f in (cvt(r0, r0, r0+1), cvt(r0+1, r0+2, r0+3), cvt(r0+2, r1, r1+1), cvt(r0+3, r1+2, r1+3), cvt(r2, r2, r2+1), cvt(r2+1, r2+2, r2+3)): f()
        stamp(a, cfg, 4)
        a.barrier()
        for t in range(8):
            for kt in range(3):
                a.ds_read("ds_read_b64_tr_b16", Vf(t) + 2*kt, 2, aV(t >> 1), off=kt*4*VSTR + (t & 1)*32)
        nonce_check(a, 252, 10)
        apply_c(a, (80, 84, 88))
        a.s("s_mov_b32 s52, s76")
        a.s("s_mov_b32 s53, s75")
        for k in range(4):
            F.add(lambda k=k: a.s(f"s_bitcmp1_b32 s53, {k}") or a.s(f"s_cselect_b32 s{44+k}, 8192, 0"), lambda k=k: a.s(f"s_xor_b32 s{44+k}, s{44+k}, s92"))
        a.s(f"s_lshl_b32 s81, s{S_NT}, 15")
        a.s("s_add_u32 s81, s81, s80")
        def ostore(mt, kp):
            r = accO(mt, 2*kp); s_ = accO(mt, 2*kp+1); d = ofA(kp, mt); f = kp*3 + mt
            return [cvt(d, r, r+1), cvt(d+1, r+2, r+3), cvt(d+2, s_, s_+1), cvt(d+3, s_+2, s_+3),
                    lambda: a.s(f"s_add_u32 s82, s81, s{40 + f//4}"),
                    lambda: a.bstore(d, 4, 14, S_WS, "s82", off=(f % 4)*1024, flags="sc1")]
        for kp in range(4):
            for t in (2*kp, 2*kp+1):
                for mt in range(3):
                    a.mfma(accO(mt, t), Vf(t), accS(0, mt), None); F.pop(2)
            for t in (2*kp, 2*kp+1):
                for mt in range(3):
                    a.mfma(accO(mt, t), Vf(t)+4, accS(2, mt), accO(mt, t), k=16); F.pop(2)
            F.add(lambda: None, lambda: None, lambda: None, lambda: None)
            for mt in range(3): F.add(*ostore(mt, kp))
    F.drain()
    stamp(a, cfg, 5)
    def flagst(off):
        a.s("s_mov_b32 exec_lo, s85"); a.s("s_mov_b32 exec_hi, 0")
        a.bstore(8, 2, 11, S_WS, "s84", off=off, flags="sc1")
        a.s("s_mov_b64 exec, -1")
    def poll_issue(mask, off):
        a.s(f"s_mov_b32 exec_lo, {mask}"); a.s("s_mov_b32 exec_hi, 0")
        a.bload(6, 2, 11, S_WS, "s84", off=off, flags="sc1")
        a.s("s_mov_b64 exec, -1")
    def poll_check(mask, off):
        L = newlabel("pc"); Lb = newlabel("pcb")
        a.s(f"s_mov_b32 exec_lo, {mask}"); a.s("s_mov_b32 exec_hi, 0")
        a.v("v_cmp_ne_u64 vcc, v[6:7], v[8:9]")
        a.s("s_mov_b64 exec, -1")
        a.s(f"s_cbranch_vccnz {L}")
        a.label(Lb)
        o = Asm(); o.label(L); poll_flags(o, 6, 8, 11, 84, mask, 76, off); o.s(f"s_branch {Lb}")
        a.ool += o.L
    if cfg.split:
        a.waitcnt(vm=6)
        flagst(0)
        head_order(a, 1, 75)
        a.s("s_lshl_b32 s75, 1, s75")
    a.waitcnt(lgkm=0)
    a.barrier()
    stamp(a, cfg, 10)
    KO = lambda p, ts: [(p, kp, t) for kp in range(4) for t in ts]
    TO = lambda p, ts: [(p, kp, t) for t in ts for kp in range(4)]
    items = KO(0, range(9)) + KO(1, range(9))
    if cfg.reord: items += KO(2, range(6)) + TO(3, range(6)) + KO(2, range(6, 9)) + TO(3, range(6, 9))
    else: items += KO(2, range(9)) + TO(3, range(9))
    first3 = next(i for i, it in enumerate(items) if it[0] == 3)
    done_at = {}
    for i, (p, kp, t) in enumerate(items): done_at[t//2] = i
    NB = 9
    R3 = [12, 10]
    def rdW2(i, h):
        p, kp, t = items[i]
        def f():
            a.ds_read("ds_read_b64_tr_b16", Wf2(i % NB)+2*h, 2, (R3 if p == 3 else R)[t & 1], off=kp*10240 + h*5120 + 32*(t - (t & 1))); ver[("W2", i % NB, h)] = i
        return f
    for kp in range(4):
        for mt in range(3): ver[("O", 0, kp, mt)] = 0
    def headbase(p):
        return [lambda: head_order(a, p, 81), lambda: a.s("s_lshl_b32 s81, s81, 15"), lambda: a.s("s_add_u32 s81, s81, s80")]
    def ldO(p, f, srdb=S_WS):
        kp, mt = divmod(f, 3)
        return [lambda: a.s(f"s_add_u32 s82, s81, s{40 + f//4}"),
                lambda: (a.bload(of(p & 1, kp, mt), 4, 14, srdb, "s82", off=(f % 4)*1024, flags="sc1"), ver.__setitem__(("O", p & 1, kp, mt), p))]
    def publish(mt, pair):
        if pair == 4 and mt == 1: return []
        slot = pair*3 + mt if pair < 4 else 12 + mt//2
        r = acc2(mt, 2*pair)
        out = [cvt(r, r, r+1), cvt(r+1, r+2, r+3)]
        if slot < 13:
            s_ = acc2(mt, 2*pair+1) if pair < 4 else acc2(1, 8)
            out += [cvt(r+2, s_, s_+1), cvt(r+3, s_+2, s_+3)]
        def st_():
            L = newlabel("own"); L2 = newlabel("ownb")
            a.s(f"s_cmp_eq_u32 s90, {slot & 7}")
            a.s(f"s_cbranch_scc1 {L}")
            if slot < 13: a.bstore(r, 4, 14, S_WS, "s82", flags="sc1", tag=("pub", slot))
            else: a.bstore(r, 2, 11, S_WS, "s82", flags="sc1", tag=("pub", slot))
            a.label(L2)
            a.ool += [f"{L}:", f"    ds_write_b128 v2, v[{r}:{r+3}] offset:{(slot >> 3)*4096}",
                      f"    buffer_store_dword v{r}, v14, s[{S_X}:{S_X+3}], 0 offen", f"    s_branch {L2}"]
        out += [lambda: a.s(f"s_add_u32 s82, s{44 + ((slot & 7) >> 1)}, {slot*16384}"), st_]
        return out
    def flag2(off):
        a.s("s_mov_b32 exec_lo, s97"); a.s("s_mov_b32 exec_hi, 0")
        a.bstore(8, 2, 3, S_WS, "s55", off=off, flags="sc1")
        a.s("s_mov_b64 exec, -1")
    def stageA():
        a.wait_vm_tag(("pub", 7))
        flag2(0)
        a.waitcnt(lgkm=0)
        a.barrier()
    for i in range(NB): rdW2(i, 0)(); rdW2(i, 1)()
    seen = set()
    n3 = 0
    for i, (p, kp, t) in enumerate(items):
        if i == cfg.fb:
            F.drain()
            a.waitcnt(vm=0)
            stamp(a, cfg, 6)
            flagst(0)
            if cfg.fbar: a.barrier()
        if i == 36:
            F.drain()
            if cfg.p2st: stamp(a, cfg, 1)
            a.barrier()
            if cfg.p2st: stamp(a, cfg, 2)
            for r in R: a.v(f"v_subrev_u32 v{r}, {3*SL}, v{r}")
            for j in range(36, 36 + NB): rdW2(j, 0)(); rdW2(j, 1)()
            for f in headbase(1): f()
            poll_flags(a, 6, 8, 11, 84, "s86", 76, 0, 4)
            stamp(a, cfg, 7)
            for fr in range(12):
                for f in ldO(1, fr): f()
            F.add(*headbase(2))
            for r, r3 in zip(R, R3): F.add(lambda r=r, r3=r3: a.v(f"v_add_u32 v{r3}, {2*SL}, v{r}"))
        if cfg.p2st and i in (37, 72, 108): stamp(a, cfg, {37: 3, 72: 4, 108: 5}[i])
        if p == 1 and t in (0, 3, 6): F.add(*ldO(2, kp*3 + t//3))
        if i == 54:
            F.add(*tail_vsetup(a, S_W, 0))
            F.add(*[lambda t=t: a.v(t) for t in ("v_lshrrev_b32 v5, 1, v1", "v_lshrrev_b32 v5, v5, s53", "v_and_b32 v5, 1, v5", "v_lshl_add_u32 v3, v5, 13, v3")])
            F.add(*[lambda t=t: a.s(t) for t in ("s_xor_b32 s97, s97, 0xff", "s_lshl_b32 s55, s90, 3", "s_add_u32 s55, s55, s96",
                                                  "s_lshl_b32 s76, s90, 7", "s_add_u32 s96, s96, s76", "s_add_u32 s96, s96, s52")])
        if i == 64 and cfg.wout: F.add(lambda: (a.bload(7, 1, 4, S_OUT, "s87", flags=cfg.ld_out), a.vm.__setitem__(-1, (None, "touch"))))
        if i == 72: F.add(*headbase(3))
        if i >= 72 and n3 < 12 and (cfg.reord or t < 6): F.add(*ldO(3, n3)); n3 += 1
        if cfg.two and i == done_at[2] + 1 + cfg.fa: F.drain(); stageA()
        for mt in (range(3) if (i % 2 == 0 or not cfg.serp) else (2, 1, 0)):
            assert ver[("W2", i % NB, 0)] == i and ver[("W2", i % NB, 1)] == i and ver[("O", p & 1, kp, mt)] == p, (i, p, kp, t)
            a.mfma(acc2(mt, t), Wf2(i % NB), of(p & 1, kp, mt), acc2(mt, t) if (mt, t) in seen else None)
            seen.add((mt, t))
            F.pop(3 if len(F.q) > 8 else 2 if len(F.q) > 2 else 1)
        j = i + NB
        if j < len(items) and not (p == 0 and j >= 36):
            if j in (72, first3):
                F.drain()
                a.barrier()
                if j == 72:
                    for r in R: a.v(f"v_add_u32 v{r}, {SL}, v{r}")
            F.q = [rdW2(j, 0), rdW2(j, 1)] + F.q
        for pair in range(4):
            if i == done_at[pair] + 1:
                for mt in range(3): F.add(*publish(mt, pair))
    stamp(a, cfg, 8)
    F.drain()
    for mt in range(3):
        for f in publish(mt, 4): f()
    if cfg.two and done_at[2] + 1 + cfg.fa >= len(items): stageA()
    stamp(a, cfg, 9)
    if cfg.dyn:
        a.waitcnt(lgkm=0)
        a.barrier()
    a.waitcnt(vm=0, lgkm=0)
    stamp(a, cfg, 11)
    flag2(64)
    if cfg.dyn: pass
    elif cfg.two:
        a.v("v_add_u32 v2, 4096, v2")
        a.s("s_add_u32 s96, s96, 64")
    else:
        poll_flags(a, 6, 8, 11, 96, "s97", 76, 64, 62)

def tail(a, cfg, endlabel):
    if cfg.dyn:
        a.s("s_cmp_ge_u32 s89, 14")
        a.s(f"s_cbranch_scc1 {endlabel}")
        for k in range(8):
            L = newlabel("ow")
            a.s(f"s_cmp_lg_u32 s90, {k}")
            a.s(f"s_cbranch_scc1 {L}")
            a.raw(f"    ds_read_b128 v[{16+4*k}:{19+4*k}], v2")
            a.label(L)
        a.s("s_add_u32 s77, s88, 4096")
        a.s("s_mov_b32 s76, 0")
        a.s("s_cmp_eq_u32 s89, 13")
        a.s("s_cbranch_scc1 L_dynh")
        def loop(o, name, half):
            o.label(name)
            o.s("s_mov_b32 exec_lo, s97"); o.s("s_mov_b32 exec_hi, 0")
            o.raw(f"    buffer_load_dwordx2 v[6:7], v11, s[{S_WS}:{S_WS+3}], s96 offen offset:64 sc1")
            o.s("s_add_u32 s76, s76, 1")
            o.raw("    s_waitcnt vmcnt(0)")
            o.raw("    v_cmp_eq_u64 vcc, v[6:7], v[8:9]")
            o.s("s_mov_b64 exec, -1")
            o.s(f"s_cmp_gt_u32 s76, {SPIN_MAX}")
            o.s("s_cselect_b32 s75, s97, vcc_lo")
            o.s("s_andn2_b32 s97, s97, s75")
            for k in range(8):
                L = newlabel("dy")
                o.s(f"s_bitcmp0_b32 s75, {k}")
                o.s(f"s_cbranch_scc1 {L}")
                so = "s88" if k < 4 else "s77"
                off = f" offset:{(k % 4)*1024}" if k % 4 else ""
                if half: o.raw(f"    buffer_load_dwordx2 v[{16+4*k}:{17+4*k}], v11, s[{S_WS}:{S_WS+3}], {so} offen{off} sc1")
                else: o.raw(f"    buffer_load_dwordx4 v[{16+4*k}:{19+4*k}], v14, s[{S_WS}:{S_WS+3}], {so} offen{off} sc1")
                o.label(L)
            o.s("s_cmp_lg_u32 s97, 0")
            o.s(f"s_cbranch_scc1 {name}")
        loop(a, "L_dyn", False)
        a.label("L_dynb")
        ool = Asm(); loop(ool, "L_dynh", True); ool.s("s_branch L_dynb"); a.ool += ool.L
        stamp(a, cfg, 12)
        a.raw("    s_waitcnt vmcnt(0) lgkmcnt(0)")
    else:
        if not cfg.two: a.barrier()
        a.s("s_cmp_ge_u32 s89, 14")
        a.s(f"s_cbranch_scc1 {endlabel}")
        if cfg.two: poll_flags(a, 6, 8, 11, 96, "s97", 76, 0, 68)
        stamp(a, cfg, 12)
        a.ds_read("ds_read_b128", 16, 4, 2)
        a.s("s_cmp_eq_u32 s89, 13")
        a.s("s_cbranch_scc1 L_half")
        def srcoff(k):
            a.s(f"s_add_u32 s76, s90, {k}")
            a.s("s_and_b32 s76, s76, 7")
            a.s("s_lshl_b32 s76, s76, 10")
            a.s("s_add_u32 s76, s76, s88")
        for k in range(1, 8):
            srcoff(k); a.bload(16 + 4*k, 4, 14, S_WS, "s76", flags="sc1")
        a.label("L_halfb")
        ool = Asm()
        ool.label("L_half")
        for k in range(1, 8):
            ool.s(f"s_add_u32 s76, s90, {k}"); ool.s("s_and_b32 s76, s76, 7"); ool.s("s_lshl_b32 s76, s76, 10"); ool.s("s_add_u32 s76, s76, s88")
            ool.bload(16 + 4*k, 2, 11, S_WS, "s76", flags="sc1")
        ool.s("s_branch L_halfb")
        a.ool += ool.L
    for k in range(8):
        src = 16 + 4*k
        for i in range(4):
            if k == 0:
                a.v(f"v_lshlrev_b32 v{48+2*i}, 16, v{src+i}")
                a.v(f"v_and_b32 v{49+2*i}, 0xffff0000, v{src+i}")
            else:
                a.v(f"v_lshlrev_b32 v{60+2*(i&1)}, 16, v{src+i}")
                a.v(f"v_and_b32 v{61+2*(i&1)}, 0xffff0000, v{src+i}")
                a.v(f"v_pk_add_f32 v[{48+2*i}:{49+2*i}], v[{48+2*i}:{49+2*i}], v[{60+2*(i&1)}:{61+2*(i&1)}]")
        if k == 1: stamp(a, cfg, 13)
    for i in range(4): a.v(f"v_cvt_pk_bf16_f32 v{64+i}, v{48+2*i}, v{49+2*i}")
    a.v("v_permlane16_swap_b32 v64, v66")
    a.v("v_permlane16_swap_b32 v65, v67")
    stamp(a, cfg, 14)
    a.s("s_mov_b64 exec, s[78:79]")
    a.bstore(64, 4, 4, S_OUT, "s87", flags=cfg.st_out)

def kernel(cfg):
    a = Asm()
    a.lcap = cfg.lcap
    ROT[0] = cfg.rot
    PP[0] = cfg.pp
    a.ool = []
    stamp(a, cfg, 0)
    prologue(a, cfg, "L_end")
    a.s(f"s_cmp_lt_u32 s{S_W}, 4")
    a.s("s_cbranch_scc1 L_compute")
    loader(a, cfg)
    a.label("L_compute")
    a.reset_state()
    compute(a, cfg)
    a.label("L_tail")
    a.reset_state()
    a.nop(2)
    tail(a, cfg, "L_st")
    a.label("L_st")
    if cfg.x_map:
        a.s(f"s_add_u32 s76, s2, s{S_W}")
        a.s("s_cmp_lg_u32 s76, 0")
        a.s("s_cbranch_scc1 L_end")
        a.raw("    s_waitcnt vmcnt(0)")
        for i in range(40): a.raw("    s_sleep 64")
        a.s("s_mov_b64 exec, 1")
        a.v("v_mov_b32 v20, 0")
        a.s("s_mov_b32 s40, 0"); a.s(f"s_mov_b32 s41, {28672}"); a.s("s_mov_b32 s42, 0")
        a.label("L_map")
        for rep in range(2):
            a.raw("    v_mov_b32 v21, 0")
            a.raw("    s_memtime s[44:45]"); a.raw("    s_waitcnt lgkmcnt(0)")
            a.raw(f"    buffer_atomic_add v21, v20, s[{S_WS}:{S_WS+3}], s41 offen sc0 sc1")
            a.raw("    s_waitcnt vmcnt(0)")
            a.raw("    s_memtime s[46:47]"); a.raw("    s_waitcnt lgkmcnt(0)")
        a.s("s_sub_u32 s46, s46, s44")
        a.s("s_cmp_gt_u32 s46, 680")
        a.s("s_cselect_b32 s46, 1, 0")
        a.s("s_lshl_b32 s46, s46, s40")
        a.s("s_or_b32 s42, s42, s46")
        a.s(f"s_add_u32 s41, s41, {2 << 20}")
        a.s("s_add_u32 s40, s40, 1")
        a.s("s_cmp_lt_u32 s40, 24")
        a.s("s_cbranch_scc1 L_map")
        a.v("v_mov_b32 v21, s42")
        a.raw(f"    buffer_store_dword v21, v20, s[{S_DBG}:{S_DBG+3}], 0 offen offset:16")
        a.v(f"v_mov_b32 v22, s{S_WS}")
        a.raw(f"    buffer_store_dword v22, v20, s[{S_DBG}:{S_DBG+3}], 0 offen offset:20")
        a.raw("    s_getreg_b32 s42, hwreg(HW_REG_XCC_ID)")
        a.v("v_mov_b32 v23, s42")
        a.raw(f"    buffer_store_dword v23, v20, s[{S_DBG}:{S_DBG+3}], 0 offen offset:24")
    if cfg.stamps: a.waitcnt(vm=0)
    stamp(a, cfg, 15)
    stamp_out(a, cfg)
    a.label("L_end")
    a.s("s_endpgm")
    for l in a.ool: a.raw(l)
    return a

HEADER = open("cdna_kernels/" + NAME + ".s.ref").read().split("; Override launch")[0]

def build(cfg):
    n = NAME + "_kernel"
    a = kernel(cfg)
    return HEADER + f"""; @launch grid=(256,1,1) block=(512,1,1) lds=163840
.amdgcn_target "amdgcn-amd-amdhsa--gfx950"
.text
.globl {n}
.p2align 8
.type {n},@function
{n}:
{a.text()}
L_code_end:
.section .rodata,"a"
.p2align 6
.amdhsa_kernel {n}
  .amdhsa_next_free_vgpr 256
  .amdhsa_next_free_sgpr 102
  .amdhsa_accum_offset 256
  .amdhsa_group_segment_fixed_size 0
  .amdhsa_kernarg_size 104
  .amdhsa_user_sgpr_count 2
  .amdhsa_user_sgpr_kernarg_segment_ptr 1
  .amdhsa_system_sgpr_workgroup_id_x 1
.end_amdhsa_kernel
"""

if __name__ == "__main__":
    cfg = Cfg()
    for kv in sys.argv[2:]:
        k, v = kv.split("=")
        cur = getattr(cfg, k)
        setattr(cfg, k, (v == "1") if isinstance(cur, bool) else int(v) if isinstance(cur, int) else v.replace("_", " "))
    open(sys.argv[1], "w").write(build(cfg))
```

```python
import sys, struct
from asm import *

NAME = "concat_heads__gqa_block_cached__mha_block_cached__near_ridge"
SL = 40960
KSTR, VSTR = 4112, 4128
KUNIT, VUNIT = 1024, 1024
KBASE = 0
VBASE_L = 12*KSTR
WS_O = 0
WS_FLAG1 = 64 << 20
WS_FLAG2 = 65 << 20
WS_PROBE = 68 << 20
WS_PART = 32 << 20
WS_STAMP = 72 << 20
WS_BYTES = 80 << 20
SC = 0.08838834764831845 * 1.4426950408889634
SPIN_MAX = 1 << 17
def f2u(x): return struct.unpack("<I", struct.pack("<f", x))[0]

S_X, S_K, S_V, S_WQ, S_WO, S_OUT, S_WS, S_DBG = 36, 40, 44, 48, 52, 56, 60, 64
S_BR, S_KQ, S_HL, S_BG, S_W, S_NT, S_E = 68, 69, 70, 71, 72, 98, 99

class Cfg:
    stamps = False; x_clk = False; lst = 0
    ld_x = ""; ld_wq = ""; ld_kv = "nt"; ld_wo = ""; st_out = "sc1"; ld_out = ""
    skew = 3; prio = 3; lcap = 8; barpos = 3
    el = 2; pollpos = 4; ctouch = 3; e_wo = 1; l_wo = 1; prog = 1; touch = 1; tpos = 5; wo2 = 1; flagpos = 1; e_vpos = 4; l_kpos = 2; f2 = 1; c_kpos = 5; c_tpos = 3; swap = 1; own = 1; warmf = 1; p2st = 0; fbar = 1; wo0late = 0; x_enc = -1; x_amp = 4; dbgwg = 0; att = 1; r1first = 1; epoll = 0; cfix = -1; nprobe = 1; split = 0; fb = 9; x_pace = 0; cls = '33,44,55,66'; v7 = 4; v8 = 12; x_burn = 0; x_map = 0; bal = 0; two = 0; reord = 0; fa = 8; serp = 1; pp = 0; tlb = 0; sw = 0; kearly = 1; kfirst = 0; hold = 0; lprio = 0; xfirst = 0; tsh = '2222'; dyn = 1; w3e = 0; o3e = 0; ct0 = 1; wout = 0; align = 1; coal = 1; strict = 3; smod = 1; pst = 9; pa = 14; pac = 21; rot = 0; pb = 48

NST = 16
def streg(i): return 4 if i == 0 else 8 + 2*(i-1) if i <= 13 else {14: 34, 15: 100}[i]
def stamp(a, cfg, i):
    if cfg.stamps:
        r = streg(i)
        a.raw(f"    {'s_memtime' if cfg.x_clk else 's_memrealtime'} s[{r}:{r+1}]"); a.pos += 1
def stamp_out(a, cfg):
    if not cfg.stamps: return
    if cfg.x_enc >= 0:
        a.raw("    s_waitcnt lgkmcnt(0)")
        a.s("s_lshl_b32 s3, s2, 3")
        a.s(f"s_add_u32 s3, s3, s{S_W}")
        a.s(f"s_cmp_lg_u32 s3, {cfg.dbgwg*8}")
        a.s("s_cbranch_scc1 L_end")
        if cfg.x_enc == 99:
            a.raw("    s_getreg_b32 s76, hwreg(HW_REG_XCC_ID, 0, 4)")
            a.s("s_mul_i32 s76, s76, 1000")
        elif cfg.x_enc == 98:
            a.v("v_readfirstlane_b32 s76, v8")
            a.s("s_sub_u32 s76, s4, s76")
            a.s("s_add_u32 s76, s76, 300")
            a.s("s_mul_i32 s76, s76, 8")
        else:
            a.s(f"s_sub_u32 s76, s{streg(cfg.x_enc)}, s4")
            a.s(f"s_mul_i32 s76, s76, {cfg.x_amp}")
        a.s("s_add_u32 s76, s76, 5000")
        a.label("L_hold")
        a.raw("    s_memrealtime s[78:79]")
        a.raw("    s_waitcnt lgkmcnt(0)")
        a.s("s_sub_u32 s77, s78, s4")
        a.s("s_cmp_lt_u32 s77, s76")
        a.s("s_cbranch_scc1 L_hold")
        return
    a.raw("    s_waitcnt lgkmcnt(0)")
    a.s("s_mov_b64 exec, 1")
    a.s("s_lshl_b32 s3, s2, 3")
    a.s(f"s_add_u32 s3, s3, s{S_W}")
    a.s("s_lshl_b32 s3, s3, 6")
    a.s(f"s_add_u32 s3, s3, {WS_STAMP}")
    a.v("v_mov_b32 v1, 0")
    for i in range(NST):
        a.v(f"v_mov_b32 v2, s{streg(i)}")
        a.bstore(2, 1, 1, S_WS, "s3", off=4*i)
        a.nop(2)

def srd(a, base, lo, hi, size):
    a.s(f"s_mov_b32 s{base}, s{lo}")
    a.s(f"s_mov_b32 s{base+1}, s{hi}")
    a.s(f"s_mov_b32 s{base+2}, {size}")
    a.s(f"s_mov_b32 s{base+3}, 0x20000")

BAL = [0]
def prologue(a, cfg, endlabel):
    a.s("s_cmp_ge_u32 s2, 256")
    a.s(f"s_cbranch_scc1 {endlabel}")
    a.raw("    s_load_dwordx16 s[8:23], s[0:1], 0")
    a.raw("    s_load_dwordx8 s[24:31], s[0:1], 64")
    a.raw("    s_load_dwordx2 s[32:33], s[0:1], 96")
    a.v("v_and_b32 v1, 63, v0")
    a.v("v_lshrrev_b32 v15, 6, v0")
    BAL[0] = cfg.bal
    if cfg.bal:
        a.s(f"s_bfe_u32 s{S_KQ}, s2, 0x10002")
        a.s(f"s_lshl_b32 s{S_KQ}, s{S_KQ}, 1")
        a.s(f"s_and_b32 s{S_BR}, s2, 1")
        a.s(f"s_or_b32 s{S_KQ}, s{S_KQ}, s{S_BR}")
        a.s(f"s_bfe_u32 s{S_BR}, s2, 0x10001")
    else:
        a.s(f"s_and_b32 s{S_KQ}, s2, 3")
        a.s(f"s_bfe_u32 s{S_BR}, s2, 0x10002")
    if cfg.swap: a.s(f"s_xor_b32 s{S_BR}, s{S_BR}, 1")
    a.s(f"s_bfe_u32 s{S_HL}, s2, 0x30003")
    a.s(f"s_lshr_b32 s{S_BG}, s2, 6")
    a.s(f"s_and_b32 s{S_NT}, s{S_HL}, 3")
    a.v(f"v_readfirstlane_b32 s{S_W}, v15")
    if cfg.el:
        a.s(f"s_lshr_b32 s{S_E}, s{S_HL}, 2")
        a.s(f"s_xor_b32 s{S_E}, s{S_E}, s{S_BG}")
        a.s(f"s_and_b32 s{S_E}, s{S_E}, 1")
        a.s(f"s_and_b32 s3, s{S_BG}, 2")
        a.s(f"s_or_b32 s3, s3, s{S_E}")
        if cfg.el == 2: a.s(f"s_mov_b32 s{S_E}, 0")
    else:
        a.s(f"s_mov_b32 s{S_E}, 0")

def build_srds(a, keys):
    a.raw("    s_waitcnt lgkmcnt(0)")
    a.s(f"s_cmp_eq_u32 s{S_BR}, 0")
    for (dst, pa, pb, key) in ((S_WQ, 14, 24, 'wq'), (S_X, 8, 18, 'x'), (S_K, 10, 20, 'k'), (S_V, 12, 22, 'v'), (S_WO, 16, 26, 'wo')):
        if key not in keys: continue
        a.s(f"s_cselect_b64 s[{dst}:{dst+1}], s[{pa}:{pa+1}], s[{pb}:{pb+1}]")
        if key in ('k', 'v'):
            a.s(f"s_mov_b32 s{dst+2}, 6291456")
            a.s(f"s_cselect_b32 s{dst+2}, 3145728, s{dst+2}")
        else:
            a.s(f"s_mov_b32 s{dst+2}, {884736 if key == 'x' else 4718592}")
        a.s(f"s_mov_b32 s{dst+3}, 0x20000")
    if 'o' in keys:
        srd(a, S_OUT, 28, 29, 1769472)
        srd(a, S_DBG, 30, 31, 256)
        srd(a, S_WS, 32, 33, WS_BYTES)

ROT = [0]
def head_order(a, p, sd):
    if p == 0: a.s(f"s_mov_b32 s{sd}, s{S_NT}")
    elif ROT[0]:
        a.s(f"s_add_u32 s{sd}, s{S_NT}, {p}"); a.s(f"s_and_b32 s{sd}, s{sd}, 3")
    else:
        a.s(f"s_cmp_le_u32 s{S_NT}, {p-1}"); a.s(f"s_cselect_b32 s{sd}, {p}, {p-1}")

_lbl = [0]
def newlabel(p):
    _lbl[0] += 1
    return f"L{p}_{_lbl[0]}"

PP = [0]
ALIGN = [0]
COAL = [0]
def poll_flags(a, vdata, vnonce, voff, soff, mask, stmp, off=0, v2=None):
    L = newlabel("poll"); X = newlabel("pollx")
    a.s(f"s_mov_b32 exec_lo, {mask}")
    a.s("s_mov_b32 exec_hi, 0")
    a.s(f"s_mov_b32 s{stmp}, 0")
    if PP[0] and v2 is not None:
        o = f" offset:{off}" if off else ""
        ld = lambda v: a.raw(f"    buffer_load_dwordx2 v[{v}:{v+1}], v{voff}, s[{S_WS}:{S_WS+3}], s{soff} offen{o} sc1")
        a.waitcnt(vm=0) if False else None
        ld(vdata)
        a.raw(f"    s_sleep {PP[0]}")
        a.label(L)
        ld(v2)
        a.s(f"s_add_u32 s{stmp}, s{stmp}, 1")
        a.raw("    s_waitcnt vmcnt(1)")
        a.raw(f"    v_cmp_ne_u64 vcc, v[{vdata}:{vdata+1}], v[{vnonce}:{vnonce+1}]")
        a.s(f"s_cbranch_vccz {X}")
        ld(vdata)
        a.s(f"s_cmp_gt_u32 s{stmp}, {SPIN_MAX}")
        a.raw("    s_waitcnt vmcnt(1)")
        a.s(f"s_cbranch_scc1 {X}")
        a.raw(f"    v_cmp_ne_u64 vcc, v[{v2}:{v2+1}], v[{vnonce}:{vnonce+1}]")
        a.s(f"s_cbranch_vccnz {L}")
        a.label(X)
        a.vm = [({vdata, vdata+1, v2, v2+1}, "poll")]
        a.s("s_mov_b64 exec, -1")
        return
    a.label(L)
    a.bload(vdata, 2, voff, S_WS, f"s{soff}", off=off, flags="sc1")
    a.s(f"s_add_u32 s{stmp}, s{stmp}, 1")
    a.s(f"s_cmp_gt_u32 s{stmp}, {SPIN_MAX}")
    a.waitcnt(vm=0)
    a.s(f"s_cbranch_scc1 {X}")
    a.v(f"v_cmp_ne_u64 vcc, v[{vdata}:{vdata+1}], v[{vnonce}:{vnonce+1}]")
    a.s(f"s_cbranch_vccnz {L}")
    a.label(X)
    a.s("s_mov_b64 exec, -1")

NVOTE = 32
CAP = 4095
def nonce_load(a, vn, vzero):
    a.bload(vn, 4, vzero, S_DBG, "0", flags="sc1", tag="nonce")
def nonce_check(a, vn, vzero):
    Lok = newlabel("nok"); Lsp = newlabel("nsp")
    a.s("s_mov_b32 s77, 0")
    a.v(f"v_readfirstlane_b32 s76, v{vn}")
    a.v(f"v_readfirstlane_b32 s75, v{vn+2}")
    a.v(f"v_readfirstlane_b32 s3, v{vn+3}")
    a.label(Lsp)
    a.s("s_cmp_lg_u32 s76, 0")
    a.s("s_cselect_b32 s76, s75, 0")
    a.s(f"s_cmp_ge_u32 s3, {8 << 16}")
    a.s("s_cselect_b32 s76, s76, 0")
    a.s(f"s_cmp_ge_u32 s76, {NVOTE << 24}")
    a.s(f"s_cbranch_scc1 {Lok}")
    a.s("s_add_u32 s77, s77, 1")
    a.s(f"s_cmp_gt_u32 s77, {SPIN_MAX}")
    a.s(f"s_cbranch_scc1 {Lok}")
    a.raw(f"    buffer_load_dwordx4 v[{vn}:{vn+3}], v{vzero}, s[{S_DBG}:{S_DBG+3}], 0 offen sc1")
    a.raw("    s_waitcnt vmcnt(0)")
    a.raw(f"    v_readfirstlane_b32 s76, v{vn}")
    a.raw(f"    v_readfirstlane_b32 s75, v{vn+2}")
    a.raw(f"    v_readfirstlane_b32 s3, v{vn+3}")
    a.raw("    s_nop 0")
    a.s(f"s_branch {Lsp}")
    a.label(Lok)
    a.v(f"v_mov_b32 v8, v{vn}")
    a.v(f"v_mov_b32 v9, v{vn+1}")
    a.s(f"s_cmp_gt_u32 s76, {(NVOTE << 24) + NVOTE*CAP}")
    a.s("s_cselect_b32 s76, 0xff, 0")
    a.s("s_xor_b32 s75, s3, s76")
    if BAL[0]:
        a.s("s_and_b32 s76, s2, 2")
        a.s("s_lshr_b32 s75, s75, s76")
        a.s("s_lshr_b32 s76, s75, 2")
        a.s("s_and_b32 s76, s76, 12")
        a.s("s_and_b32 s75, s75, 3")
        a.s("s_or_b32 s75, s75, s76")
    else:
        a.s("s_and_b32 s76, s2, 4")
        a.s("s_lshr_b32 s75, s75, s76")
    a.s(f"s_lshr_b32 s76, s75, s{S_KQ}")
    a.s("s_and_b32 s76, s76, 1")
    a.s("s_lshl_b32 s76, s76, 13")

def bsel(a, sd):
    a.s(f"s_lshr_b32 s76, s{sd}, 8")
    a.s("s_and_b32 s76, s76, 8192")
    a.s(f"s_or_b32 s{sd}, s{sd}, s76")

def apply_c(a, regs):
    for r in regs: a.s(f"s_xor_b32 s{r}, s{r}, s76")

def unit_base(a, sd, sb_w, shead):
    a.s(f"s_lshl_b32 s76, s{S_BR}, 2")
    a.s(f"s_add_u32 s76, s76, s{S_BG}")
    a.s("s_lshl_b32 s76, s76, 2")
    a.s(f"s_add_u32 s76, s76, s{sb_w}")
    a.s("s_lshl_b32 s76, s76, 5")
    a.s(f"s_add_u32 s76, s76, s{shead}")
    a.s(f"s_lshl_b32 s{sd}, s76, 15")
    bsel(a, sd)
    a.s(f"s_and_b32 s76, s{sb_w}, 1")
    a.s("s_lshl_b32 s40, s76, 12")
    a.s(f"s_and_b32 s76, s{sb_w}, 2")
    a.s("s_lshl_b32 s76, s76, 13")
    a.s("s_or_b32 s40, s40, s76")
    a.s("s_xor_b32 s41, s40, 4096")
    a.s("s_xor_b32 s42, s40, 16384")

def tail_ssetup(a, sw, half):
    a.s(f"s_lshr_b32 s90, s{S_HL}, 2")
    a.s(f"s_lshl_b32 s76, s{S_KQ}, 1")
    a.s("s_add_u32 s90, s90, s76")
    a.s(f"s_add_u32 s89, s90, {8*half}")
    a.s(f"s_lshl_b32 s91, s{S_BR}, 2")
    a.s(f"s_add_u32 s91, s91, s{S_BG}")
    a.s("s_lshl_b32 s91, s91, 2")
    a.s(f"s_add_u32 s91, s91, s{S_NT}")
    a.s("s_lshl_b32 s91, s91, 2")
    a.s(f"s_add_u32 s91, s91, s{sw}")
    a.s("s_lshr_b32 s76, s91, 3")
    a.s("s_lshl_b32 s76, s76, 14")
    a.s("s_and_b32 s77, s91, 7")
    a.s("s_lshl_b32 s77, s77, 10")
    a.s("s_add_u32 s76, s76, s77")
    a.s(f"s_add_u32 s96, s76, {WS_FLAG2}")
    a.s("s_lshl_b32 s92, s91, 18")
    a.s(f"s_add_u32 s92, s92, {WS_PART}")
    bsel(a, 92)
    a.s("s_lshl_b32 s76, s89, 14")
    a.s("s_add_u32 s88, s92, s76")
    a.s("s_lshl_b32 s76, s90, 10")
    a.s("s_add_u32 s92, s92, s76")
    a.s("s_mul_i32 s76, s89, 43")
    a.s("s_lshr_b32 s76, s76, 7")
    a.s("s_mul_i32 s77, s76, 3")
    a.s("s_sub_u32 s77, s89, s77")
    a.s("s_cmp_eq_u32 s89, 13")
    a.s("s_cselect_b32 s77, 2, s77")
    a.s("s_lshl_b32 s87, s76, 6")
    a.s(f"s_mul_i32 s77, s77, {16*2304}")
    a.s("s_add_u32 s87, s87, s77")
    a.s(f"s_lshl_b32 s77, s{S_BG}, 2")
    a.s(f"s_add_u32 s77, s77, s{sw}")
    a.s(f"s_mul_i32 s77, s77, {48*2304}")
    a.s("s_add_u32 s87, s87, s77")
    a.s(f"s_mul_i32 s77, s{S_BR}, 1152")
    a.s("s_add_u32 s87, s87, s77")
    a.s(f"s_mul_i32 s77, s{S_NT}, 288")
    a.s("s_add_u32 s87, s87, s77")
    if ALIGN[0]:
        a.s("s_cmp_lt_u32 s89, 12")
        a.s("s_cselect_b32 s77, 32, -256")
        a.s(f"s_bitcmp1_b32 s{S_NT}, 0")
        a.s("s_cselect_b32 s77, s77, 0")
        a.s("s_add_u32 s87, s87, s77")
    a.s("s_cmp_lt_u32 s89, 12")
    a.s(f"s_cselect_b32 s74, 32, {16*2304}")
    a.s("s_cmp_lt_u32 s89, 13")
    a.s(f"s_cselect_b32 s78, -1, {'0x33333333' if COAL[0] else '0xffff'}")
    a.s("s_mov_b32 s79, s78")
    for u in range(16): assert (u*43) >> 7 == u//3

def tail_vsetup(a, sw=S_W, half=0):
    o1 = ("v_and_b32 v4, 15, v1", "v_mul_u32_u24 v4, 2304, v4", "v_bfe_u32 v5, v1, 4, 1", "v_mad_u32_u24 v4, v5, s74, v4",
          "v_lshrrev_b32 v5, 5, v1", "v_lshl_add_u32 v4, v5, 4, v4")
    o2 = ("v_lshrrev_b32 v4, 2, v1", "v_mul_u32_u24 v4, 2304, v4", "v_bfe_u32 v5, v1, 1, 1", "v_mad_u32_u24 v4, v5, s74, v4",
          "v_and_b32 v5, 1, v1", "v_lshl_add_u32 v4, v5, 4, v4")
    return [lambda t=t: a.v(t) for t in (o2 if COAL[0] else o1) + (
        "v_lshlrev_b32 v3, 7, v1", f"v_lshlrev_b32 v2, 4, v1", f"v_lshl_add_u32 v2, s{sw}, 10, v2", f"v_add_u32 v2, {3*SL + half*4096}, v2")]

def loader(a, cfg):
    if cfg.lprio: a.s(f"s_setprio {cfg.lprio}")
    a.s(f"s_sub_u32 s73, s{S_W}, 4")
    def codetouch():
        a.s("s_mov_b64 exec, 7")
        a.raw("    global_load_dword v24, v25, s[6:7]"); a.pos += 1
        a.vm.append((None, "touch"))
        a.s("s_mov_b64 exec, -1")
    def ctsetup():
        if cfg.ctouch:
            L = newlabel("pc")
            a.raw("    s_getpc_b64 s[6:7]")
            a.label(L)
            a.s(f"s_sub_u32 s6, s6, {L}-{NAME}_kernel")
            a.s("s_subb_u32 s7, s7, 0")
            a.s("s_lshr_b32 s76, s2, 3")
            a.s("s_lshl_b32 s76, s76, 2")
            a.s("s_add_u32 s76, s76, s73")
            a.s("s_mul_i32 s76, s76, 384")
            a.v("v_lshlrev_b32 v25, 7, v1")
            a.v("v_add_u32 v25, s76, v25")
            a.s("s_mov_b32 s77, L_code_end-" + NAME + "_kernel-4")
            a.v("v_min_u32 v25, s77, v25")
            codetouch()
    if cfg.ct0: ctsetup()
    a.s("s_and_b32 s74, s73, 1")
    a.s("s_lshr_b32 s75, s73, 1")
    a.s(f"s_lshl_b32 s95, s{S_KQ}, 3")
    a.s(f"s_add_u32 s95, s95, s{S_HL}")
    a.v("v_lshrrev_b32 v4, 4, v1")
    a.s("s_lshl_b32 s76, s75, 2")
    a.v("v_or_b32 v5, s76, v4")
    a.v("v_bfe_u32 v6, v1, 1, 3")
    a.v("v_xor_b32 v6, v6, v5")
    a.v("v_lshlrev_b32 v6, 5, v6")
    a.v("v_and_b32 v7, 1, v1")
    a.v("v_lshl_add_u32 v6, v7, 4, v6")
    a.v("v_lshl_add_u32 v2, v4, 13, v6")
    a.s("s_lshl_b32 s76, s73, 15")
    a.s("s_lshl_b32 s77, s95, 8")
    a.s("s_add_u32 s76, s76, s77")
    a.v("v_add_u32 v2, s76, v2")
    a.v("v_lshlrev_b32 v5, 2, v4")
    a.v("v_and_b32 v6, 15, v1")
    a.v("v_xor_b32 v6, v6, v5")
    a.v("v_lshlrev_b32 v6, 4, v6")
    a.v("v_lshl_add_u32 v10, v4, 8, v6")
    a.s("s_lshl_b32 s76, s74, 2")
    a.v("v_or_b32 v5, s76, v4")
    a.v("v_lshrrev_b32 v4, 3, v1")
    a.v("v_mul_u32_u24 v4, 1152, v4")
    a.v("v_and_b32 v6, 7, v1")
    a.v("v_xor_b32 v6, v6, v5")
    a.v("v_lshl_add_u32 v3, v6, 4, v4")
    a.s(f"s_mul_i32 s76, s{S_BG}, {192*1152}")
    a.s(f"s_mul_i32 s77, s74, {8*1152}")
    a.s("s_add_u32 s76, s76, s77")
    a.s(f"s_mul_i32 s77, s75, {96*1152}")
    a.s("s_add_u32 s76, s76, s77")
    a.v("v_add_u32 v3, s76, v3")
    a.s("s_lshl_b32 s78, s73, 10")
    a.s("s_mul_i32 s79, s75, 12288")
    a.s("s_lshl_b32 s77, s74, 10")
    a.s("s_add_u32 s79, s79, s77")
    a.s("s_add_u32 s79, s79, 16384")
    a.s(f"s_lshl_b32 s76, s{S_BG}, 2")
    a.s("s_add_u32 s76, s76, s73")
    a.s("s_lshl_b32 s76, s76, 5")
    a.s("s_add_u32 s76, s76, s95")
    a.s(f"s_xor_b32 s77, s{S_BR}, 1")
    a.s("s_lshr_b32 s76, s76, s77")
    a.s("s_mul_i32 s80, s76, 12288")
    a.s(f"s_mul_i32 s91, s73, {KUNIT}")
    a.s(f"s_add_u32 s91, s91, {KBASE}")
    a.s(f"s_mul_i32 s92, s73, {VUNIT}")
    if cfg.skew == 3:
        a.s(f"s_add_u32 s84, s{S_HL}, s{S_BG}")
        a.s("s_mul_i32 s85, s84, 43")
        a.s("s_lshr_b32 s85, s85, 7")
        a.s("s_mul_i32 s85, s85, 3")
        a.s("s_sub_u32 s84, s84, s85")
        a.s("s_mul_i32 s84, s84, 3")
    elif cfg.skew == 4:
        a.s(f"s_add_u32 s84, s{S_HL}, s{S_BG}")
        a.s("s_and_b32 s84, s84, 3")
        a.s("s_lshl_b32 s84, s84, 1")
    elif cfg.skew == 2:
        a.s(f"s_lshr_b32 s84, s{S_BG}, 1")
        a.s(f"s_xor_b32 s84, s84, s{S_HL}")
        a.s("s_and_b32 s84, s84, 1")
        a.s("s_lshl_b32 s84, s84, 2")
    elif cfg.skew == 9:
        a.s(f"s_lshl_b32 s84, s{S_BG}, 1")
        a.s(f"s_add_u32 s84, s84, s{S_HL}")
        a.s("s_sub_u32 s85, s84, 9")
        a.s("s_cmp_ge_u32 s84, 9")
        a.s("s_cselect_b32 s84, s85, s84")
    else:
        a.s("s_mov_b32 s84, 0")
    build_srds(a, ('x', 'wq', 'k'))
    def stage(s):
        slot = (1 + s % 3) * SL
        a.s("s_lshl_b32 s85, s84, 7")
        a.s("s_lshl_b32 s86, s84, 19")
        for i in range(4):
            a.s(f"s_add_u32 m0, s78, {slot + i*4096}")
            a.s(f"s_add_u32 s82, s86, {16*i*8192}")
            a.dma(2, S_WQ, "s82", cfg.ld_wq, tag=("st", s))
        for z in range(6):
            a.s(f"s_add_u32 m0, s79, {slot + z*2048}")
            a.s(f"s_add_u32 s82, s85, {z*16*1152}")
            a.dma(3, S_X, "s82", cfg.ld_x, tag=("st", s))
        a.s("s_add_u32 s84, s84, 1")
        a.s("s_cmp_eq_u32 s84, 9")
        a.s("s_cselect_b32 s84, 0, s84")
    def kvpart(g, srdb, sm0, stride, lo, hi, base=0):
        for i in range(lo, hi):
            a.s(f"s_add_u32 m0, s{sm0}, {base + i*stride}")
            a.s(f"s_add_u32 s82, s80, {i*1024}")
            a.dma(10, srdb, "s82", cfg.ld_kv, tag=("st", g))
    def setup2():
        if not cfg.ct0: ctsetup()
        build_srds(a, ('v', 'wo', 'o'))
        stamp(a, cfg, 1)
        a.v("v_mov_b32 v16, 0")
        L = newlabel("nw")
        a.s("s_add_u32 s76, s2, s73")
        a.s("s_cmp_lg_u32 s76, 0")
        a.s(f"s_cbranch_scc1 {L}")
        a.raw("    s_memrealtime s[88:89]")
        a.raw("    s_waitcnt lgkmcnt(0)")
        a.s("s_or_b32 s88, s88, 1")
        a.v("v_mov_b32 v18, s88")
        a.v("v_mov_b32 v19, s89")
        a.s("s_mov_b64 exec, 1")
        a.raw(f"    buffer_store_dwordx2 v[18:19], v16, s[{S_DBG}:{S_DBG+3}], 0 offen sc1")
        a.s("s_mov_b64 exec, -1")
        a.label(L)
    def setup3():
        a.s("s_and_b32 s76, s95, 0xfc")
        a.s("s_lshl_b32 s76, s76, 7")
        a.s("s_lshl_b32 s77, s73, 5")
        a.s("s_add_u32 s76, s76, s77")
        a.s("s_mul_i32 s76, s76, 1152")
        a.s(f"s_mul_i32 s77, s{S_NT}, 288")
        a.s("s_and_b32 s77, s77, 0xffffffc0")
        a.s("s_add_u32 s76, s76, s77")
        for y in range(5):
            a.v(f"v_add_u32 v4, {y*64}, v1")
            a.v("v_mul_u32_u24 v5, 3277, v4")
            a.v("v_lshrrev_b32 v5, 16, v5")
            a.v("v_mul_u32_u24 v6, 20, v5")
            a.v("v_sub_u32 v6, v4, v6")
            a.v("v_bfe_u32 v7, v5, 2, 1")
            a.v("v_lshlrev_b32 v7, 1, v7")
            a.v("v_xor_b32 v6, v6, v7")
            a.v("v_mul_u32_u24 v5, 1152, v5")
            a.v("v_lshl_add_u32 v5, v6, 4, v5")
            a.v(f"v_add_u32 v{26+y}, s76, v5")
        a.s("s_mul_i32 s93, s73, 10240")
        a.v("v_lshlrev_b32 v22, 7, v1")
        a.s(f"s_and_b32 s76, s{S_BG}, 1")
        a.s("s_lshl_b32 s76, s76, 2")
        a.s(f"s_add_u32 s76, s76, s{S_NT}")
        a.s("s_lshl_b32 s76, s76, 2")
        a.s("s_add_u32 s76, s76, s73")
        a.s(f"s_mul_i32 s76, s76, {8*36*128}")
        a.s(f"s_mul_i32 s94, s{S_KQ}, {1024*1152}")
        a.s("s_add_u32 s94, s94, s76")
        if cfg.tlb > 2:
            a.s("s_mov_b64 exec, 1")
            a.bload(23, 1, 16, S_K, "s80", flags="nt", tag="touch"); a.vm[-1] = (None, "touch")
            a.bload(23, 1, 16, S_V, "s80", flags="nt", tag="touch"); a.vm[-1] = (None, "touch")
            a.bload(23, 1, 26, S_WO, "0", tag="touch"); a.vm[-1] = (None, "touch")
            a.s("s_mov_b64 exec, -1")
    def touches(k):
        sh = [int(c) for c in cfg.tsh]
        assert sum(sh) == 8
        a.s("s_mov_b32 exec_lo, -1"); a.s("s_mov_b32 exec_hi, 15")
        for i in range(sum(sh[:k]), sum(sh[:k+1])):
            a.s(f"s_add_u32 s82, s94, {i*36*128}")
            a.bload(23, 1, 22, S_WO, "s82", tag="touch"); a.vm[-1] = (None, "touch")
        a.s("s_mov_b64 exec, -1")
    def wostage(p, start):
        head_order(a, p, 83)
        a.s(f"s_mul_i32 s83, s83, {128*1152}")
        for z2 in range(2):
            a.s(f"s_add_u32 s82, s83, {z2*16*1152}")
            for y in range(5):
                a.s(f"s_add_u32 m0, s93, {((start + p) % 4)*SL + z2*5120 + y*1024}")
                a.dma(26+y, S_WO, "s82", cfg.ld_wo, tag=("st", 11+p))
    cnt = [0]
    def st(i):
        if not cfg.lst: stamp(a, cfg, i)
    W = lambda g: a.wait_vm_tag(("st", g))
    def B():
        k = cnt[0] - cfg.lst
        if cfg.lst and 0 <= k < 5: stamp(a, cfg, 1 + 2*k)
        a.barrier()
        if cfg.lst and 0 <= k < 5: stamp(a, cfg, 2 + 2*k)
        cnt[0] += 1
    start = 3; vb = VBASE_L
    if cfg.kfirst == 1: kvpart(9, S_K, 91, KSTR, 0, 9)
    stage(0); setup2(); stage(1); setup3(); st(2)
    classes = [(int(c[0]), int(c[1])) for c in cfg.cls.split(",")]
    g0 = min(min(c) for c in classes)
    def middle(lo, hi, mid, tpos, nxt, k=0):
        for g in range(lo, hi):
            W(g)
            if g == 0: st(3)
            if g == 3: st(4)
            B()
            if g == 4 and cfg.ctouch > 1: codetouch()
            if g in (mid, tpos):
                while nxt <= (g + 1 if g < 6 else 8): stage(nxt); nxt += 1
                if g == mid and not cfg.kfirst: kvpart(9, S_K, 91, KSTR, 0, 9)
                if g == tpos: touches(k)
                continue
            while nxt <= g + 2: stage(nxt); nxt += 1
        return nxt
    n0 = 2
    if cfg.sw:
        stage(2); n0 = 3
        if cfg.hold:
            a.s(f"s_and_b32 s76, s3, {cfg.hold}")
            a.s("s_cbranch_scc0 L_nohold")
            a.raw("    s_waitcnt vmcnt(0)")
            a.label("L_nohold")
        else: W(cfg.sw)
    nxt = middle(0, g0, -1, -1, n0)
    saved = list(a.vm); c0 = cnt[0]
    nc = len(classes)
    if nc == 2: a.s("s_and_b32 s3, s3, 1")
    for k in range(1, nc):
        a.s(f"s_cmp_eq_u32 s3, {k}")
        a.s(f"s_cbranch_scc1 L_cls{k}")
    for k, (kp_, tp_) in enumerate(classes):
        if k:
            a.label(f"L_cls{k}")
            a.hist = []; a.vm = list(saved); cnt[0] = c0
        assert middle(g0, 7, kp_, tp_, nxt, k) == 9
        W(7)
        B()
        kvpart(9, S_K, 91, KSTR, 9, 12)
        kvpart(10, S_V, 92, VSTR, 0, cfg.v7, vb)
        a.wait_vm_tag(("st", 8))
        if cfg.kearly: a.waitcnt(vm=3 + cfg.v7)
        else: a.vm = a.vm[-(3 + cfg.v7):]
        if k < nc - 1: a.s("s_branch L_join")
    a.label("L_join")
    st(5); B()
    kvpart(10, S_V, 92, VSTR, cfg.v7, cfg.v8, vb)
    W(9); st(6); B()
    kvpart(10, S_V, 92, VSTR, cfg.v8, 12, vb)
    wostage(0, start)
    W(10); st(7); B()
    if cfg.l_wo > 1: wostage(1, start)
    W(11); st(8); B()
    if cfg.ctouch > 1: codetouch()
    if cfg.fbar: B()
    if cfg.l_wo < 2: wostage(1, start)
    if cfg.wo2 > 1: wostage(2, start)
    if cfg.wo2 > 2: wostage(3, start)
    W(12); st(9); B()
    if cfg.wo2 < 3: wostage(2 if cfg.wo2 == 1 else 3, start)
    if cfg.w3e: wostage(3, start)
    W(13); B()
    if cfg.wo2 == 1 and not cfg.w3e: wostage(3, start)
    nonce_load(a, 32, 16)
    if cfg.ctouch > 2: codetouch()
    W(14); st(10); B()
    a.v("v_lshlrev_b32 v14, 4, v1")
    a.v("v_lshlrev_b32 v11, 3, v1")
    tail_ssetup(a, 73, 0 if cfg.two else 1)
    nonce_check(a, 32, 16)
    apply_c(a, (88,))
    if cfg.two or cfg.dyn:
        a.s("s_add_u32 s96, s96, s76")
        a.s("s_lshl_b32 s76, s90, 7")
        a.s("s_add_u32 s96, s96, s76")
        a.s("s_lshl_b32 s97, 1, s90")
        a.s("s_xor_b32 s97, s97, 0xff")
    for f in tail_vsetup(a, 73, 0 if cfg.two else 1): f()
    if cfg.wout: a.bload(7, 1, 4, S_OUT, "s87", flags=cfg.ld_out)
    if cfg.two or cfg.dyn: a.barrier()
    a.s("s_branch L_tail")

def xlane_reduce(a, op, regs, tmps):
    for sw in ("v_permlane32_swap_b32", "v_permlane16_swap_b32"):
        for r, t in zip(regs, tmps): a.v(f"v_mov_b32 v{t}, v{r}")
        for r, t in zip(regs, tmps): a.v(f"{sw} v{r}, v{t}")
        for r, t in zip(regs, tmps): a.v(f"{op} v{r}, v{r}, v{t}")

class Fill:
    def __init__(self): self.q = []
    def add(self, *fs): self.q.extend(fs)
    def pop(self, n):
        for _ in range(n):
            if self.q: self.q.pop(0)()
    def drain(self): self.pop(len(self.q))

def compute(a, cfg):
    ACC = 16; WF = 112; XF = 144; KF = 168; AS = 216; VF = 112
    accQ = lambda t, mt: ACC + (t*3 + mt)*4
    Wf = lambda t: WF + 4*t
    Xf = lambda par, mt: XF + par*12 + mt*4
    Kf = lambda kt, kp: KF + (kt*4 + kp)*4
    accS = lambda kt, mt: AS + (kt*3 + mt)*4
    Vf = lambda t: VF + 6*t
    accO = lambda mt, t: ACC + (mt*8 + t)*4
    aW = lambda st_, t: 216 + st_*10 + t
    aX = lambda st_, ks: 216 + st_*10 + 8 + ks
    aK = lambda kp: 252 + kp
    aV = lambda th: 2 + th
    R = [13, 15]
    ofA = lambda kp, mt: 168 + (kp*3 + mt)*4
    def ofB(kp, mt):
        f = kp*3 + mt
        return 216 + f*4 if f < 10 else 160 + (f - 10)*4
    of = lambda buf, kp, mt: ofB(kp, mt) if buf else ofA(kp, mt)
    acc2 = lambda mt, t: 16 + (mt*9 + t)*4
    Wf2 = lambda i: 124 + 4*i

    if cfg.prio: a.s(f"s_setprio {cfg.prio}")
    a.s("s_and_b32 s43, s2, 0x98")
    a.s(f"s_or_b32 s43, s43, s{S_W}")
    a.s("s_cmp_lg_u32 s43, 0")
    a.s("s_cbranch_scc1 L_np1")
    a.raw("    s_getreg_b32 s54, hwreg(HW_REG_XCC_ID, 2, 1)")
    a.s("s_lshr_b32 s46, s2, 6")
    a.s("s_lshl_b32 s46, s46, 3")
    a.s("s_and_b32 s47, s2, 7")
    a.s("s_add_u32 s46, s46, s47")
    a.s("s_mul_i32 s46, s46, 448")
    a.s("s_and_b32 s47, s2, 32")
    a.s("s_lshl_b32 s47, s47, 8")
    a.s("s_add_u32 s46, s46, s47")
    a.s(f"s_add_u32 s46, s46, {WS_PROBE}")
    a.raw("    s_waitcnt lgkmcnt(0)")
    a.s("s_add_u32 s44, s32, s46")
    a.s("s_addc_u32 s45, s33, 0")
    for rep in range(cfg.nprobe):
        a.raw("    s_memtime s[48:49]")
        a.raw(f"    s_load_dword s46, s[44:45], {rep*16384}")
        a.raw("    s_waitcnt lgkmcnt(0)")
        a.raw("    s_memtime s[50:51]")
        a.raw("    s_waitcnt lgkmcnt(0)")
    a.s("s_sub_u32 s50, s50, s48")
    a.s(f"s_min_u32 s50, s50, {CAP}")
    a.s("s_sub_u32 s51, 0, s50")
    a.s("s_lshr_b32 s47, s47, 13")
    a.s("s_cmp_eq_u32 s47, s54")
    a.s("s_cselect_b32 s50, s50, s51")
    a.s(f"s_add_u32 s50, s50, {(1 << 24) + CAP}")
    a.s("s_lshl_b32 s51, s54, s2")
    a.s(f"s_add_u32 s51, s51, {1 << 16}")
    a.s("s_cmp_lt_u32 s2, 8")
    a.s("s_cselect_b32 s51, s51, 0")
    a.label("L_np1")
    a.v("v_lshrrev_b32 v160, 4, v1")
    a.v("v_bfe_u32 v161, v1, 2, 2")
    a.v("v_and_b32 v162, 3, v1")
    a.v("v_and_b32 v163, 15, v1")
    a.v("v_and_b32 v165, 1, v160")
    a.s(f"s_mul_i32 s76, s{S_W}, {KUNIT}")
    a.s(f"s_mul_i32 s77, s{S_E}, {2*SL}")
    a.s("s_add_u32 s76, s76, s77")
    a.v(f"v_mul_u32_u24 v164, {KSTR}, v161")
    a.v("v_lshl_add_u32 v164, v162, 8, v164")
    a.v("v_lshl_add_u32 v164, v160, 3, v164")
    a.v("v_add_u32 v164, s76, v164")
    for kp in range(4):
        a.v(f"v_xor_b32 v167, {kp}, v162")
        a.v(f"v_lshl_add_u32 v{aK(kp)}, v167, 6, v164")
    a.v("v_lshl_add_u32 v164, v160, 3, v161")
    a.v("v_lshlrev_b32 v164, 8, v164")
    a.v("v_lshl_or_b32 v166, v165, 2, v161")
    a.v("v_lshl_add_u32 v164, v166, 5, v164")
    a.v("v_lshl_add_u32 v164, v162, 3, v164")
    a.v(f"v_add_u32 v{aW(0,0)}, {SL}, v164")
    for t in range(1, 8): a.v(f"v_xor_b32 v{aW(0,t)}, {32*t}, v{aW(0,0)}")
    a.v("v_lshrrev_b32 v164, 1, v163")
    a.v("v_xor_b32 v164, v164, v160")
    a.v("v_lshlrev_b32 v164, 4, v164")
    a.v("v_lshl_add_u32 v164, v163, 7, v164")
    a.s(f"s_mul_i32 s76, s{S_W}, 6144")
    a.s(f"s_add_u32 s76, s76, {16384 + SL}")
    a.v(f"v_add_u32 v{aX(0,0)}, s76, v164")
    a.v(f"v_xor_b32 v{aX(0,1)}, 64, v{aX(0,0)}")
    for i in range(10): a.v(f"v_add_u32 v{226+i}, {2*SL}, v{216+i}")
    a.s(f"s_mul_i32 s76, s{S_W}, {VUNIT}")
    a.s(f"s_cmp_eq_u32 s{S_E}, 1")
    a.s(f"s_cselect_b32 s77, 0, {VBASE_L}")
    a.s("s_add_u32 s76, s76, s77")
    a.v(f"v_mul_u32_u24 v164, {VSTR}, v160")
    a.v("v_lshl_add_u32 v164, v161, 8, v164")
    a.v("v_lshl_add_u32 v164, v162, 3, v164")
    a.v("v_add_u32 v164, s76, v164")
    for th in range(4):
        a.v(f"v_xor_b32 v167, {th}, v161")
        a.v(f"v_lshl_add_u32 v{aV(th)}, v167, 6, v164")
    a.v("v_lshl_add_u32 v164, v160, 2, v161")
    a.v("v_mul_u32_u24 v164, 320, v164")
    a.v("v_lshl_add_u32 v164, v162, 3, v164")
    a.s(f"s_cmp_eq_u32 s{S_E}, 1")
    a.s(f"s_mov_b32 s76, {3*SL}")
    a.s(f"s_cselect_b32 s76, {2*SL}, s76")
    a.s(f"s_mov_b32 s93, {SL}")
    a.s(f"s_cselect_b32 s93, s93, {(-3*SL) & 0xffffffff}")
    a.s(f"s_mov_b32 s94, {SL}")
    a.s(f"s_cselect_b32 s94, {(-3*SL) & 0xffffffff}, s94")
    a.s(f"s_mov_b32 s95, {SL}")
    a.v("v_add_u32 v164, s76, v164")
    if cfg.align:
        a.s(f"s_and_b32 s77, s{S_NT}, 1")
        a.s("s_cselect_b32 s76, 1, 8")
        a.v("v_xor_b32 v167, s76, v165")
        a.v("v_lshl_add_u32 v12, v167, 5, v164")
        a.s("s_lshl_b32 s77, s77, 6")
        a.v("v_add_u32 v164, s77, v164")
        a.v(f"v_lshl_add_u32 v{R[0]}, v165, 5, v164")
        a.v("v_xor_b32 v167, 1, v165")
        a.v(f"v_lshl_add_u32 v{R[1]}, v167, 5, v164")
    else:
        a.s(f"s_and_b32 s77, s{S_NT}, 1")
        a.v("v_xor_b32 v167, s77, v165")
        a.v(f"v_lshl_add_u32 v{R[0]}, v167, 5, v164")
        a.s("s_add_u32 s77, s77, 1")
        a.v("v_xor_b32 v167, s77, v165")
        a.v(f"v_lshl_add_u32 v{R[1]}, v167, 5, v164")
    a.v("v_lshlrev_b32 v14, 4, v1")
    a.v("v_lshlrev_b32 v11, 3, v1")
    a.v("v_mov_b32 v10, 0")
    a.s(f"s_lshl_b32 s81, s{S_KQ}, 3")
    a.s(f"s_and_b32 s82, s{S_HL}, 4")
    a.s("s_add_u32 s81, s81, s82")
    unit_base(a, 80, S_W, 81)
    a.s(f"s_mov_b32 s83, {f2u(SC)}")
    a.s("s_and_b32 s76, s2, 7")
    a.s("s_lshr_b32 s77, s2, 5")
    a.s("s_lshl_b32 s77, s77, 3")
    a.s("s_or_b32 s76, s76, s77")
    a.s("s_lshl_b32 s76, s76, 2")
    a.s(f"s_add_u32 s76, s76, s{S_W}")
    a.s("s_lshr_b32 s77, s76, 6")
    a.s("s_lshl_b32 s77, s77, 14")
    a.s("s_and_b32 s76, s76, 63")
    a.s("s_lshl_b32 s76, s76, 7")
    a.s("s_add_u32 s76, s76, s77")
    a.s(f"s_add_u32 s84, s76, {WS_FLAG1}")
    a.s(f"s_lshl_b32 s85, 1, s{S_NT}")
    a.s("s_xor_b32 s86, s85, 15")
    tail_ssetup(a, S_W, 1 if cfg.two else 0)
    a.s("s_lshl_b32 s97, 1, s90")
    build_srds(a, ('o',))
    srd(a, S_X, 32, 33, 0)
    if cfg.warmf:
        a.v("v_mov_b32 v7, s84")
        a.s("s_xor_b32 s76, s84, 8192")
        a.raw("    v_writelane_b32 v7, s76, 1")
        a.s("s_lshl_b32 s76, s90, 7")
        a.s("s_add_u32 s76, s76, s96")
        a.raw("    v_writelane_b32 v7, s76, 2")
        a.s("s_xor_b32 s76, s76, 8192")
        a.raw("    v_writelane_b32 v7, s76, 3")
        if cfg.tlb:
            a.s("s_xor_b32 s76, s40, 20480")
            a.s("s_add_u32 s76, s76, s80")
            a.raw("    v_writelane_b32 v7, s76, 4")
            a.s(f"s_add_u32 s76, s92, {15*16384}")
            a.raw("    v_writelane_b32 v7, s76, 5")
        a.s(f"s_mov_b64 exec, {63 if cfg.tlb else 15}")
        a.bload(6, 1, 7, S_WS, "0", flags="sc1")
        if cfg.tlb > 1:
            a.s("s_mov_b64 exec, 1")
            a.bload(8, 1, 10, S_OUT, "s87", flags="nt")
        a.s("s_mov_b64 exec, -1")

    ver = {}
    def rdW(s, t, ks, h):
        def f():
            a.ds_read("ds_read_b64_tr_b16", Wf(t)+2*h, 2, aW((s % 3) >> 1, t), off=((s % 3) & 1)*SL + ks*8192 + h*1024); ver[("W", t, h)] = (s, ks)
        return f
    def rdX(s, mt, ks):
        def f():
            a.ds_read("ds_read_b128", Xf(ks, mt), 4, aX((s % 3) >> 1, ks), off=((s % 3) & 1)*SL + mt*2048); ver[("X", ks, mt)] = s
        return f
    def chk1(s, ks, t, mt):
        assert ver[("W", t, 0)] == (s, ks) and ver[("W", t, 1)] == (s, ks) and ver[("X", ks, mt)] == s, (s, ks, t, mt)
    def readK():
        for kp in range(4):
            for kt in range(3):
                for e in range(2): a.ds_read("ds_read_b64", Kf(kt, kp)+2*e, 2, aK(kp), off=kt*4*KSTR + 32*e)
    def rdK1(kt, kp, e):
        return lambda: a.ds_read("ds_read_b64", Kf(kt, kp)+2*e, 2, aK(kp), off=kt*4*KSTR + 32*e)
    def cvt(d, s0, s1):
        return lambda: a.v(f"v_cvt_pk_bf16_f32 v{d}, v{s0}, v{s1}")
    def cvtQ(kp):
        out = []
        for mt in range(3):
            r = accQ(2*kp, mt); s_ = accQ(2*kp+1, mt)
            out += [cvt(r, r, r+1), cvt(r+1, r+2, r+3), cvt(r+2, s_, s_+1), cvt(r+3, s_+2, s_+3)]
        return out
    F = Fill()
    a.s("s_cmp_lg_u32 s43, 0")
    a.s("s_cbranch_scc1 L_np2")
    a.v("v_mov_b32 v112, s50")
    a.v("v_mov_b32 v113, s51")
    a.s("s_mov_b64 exec, 1")
    a.raw(f"    buffer_atomic_add_x2 v[112:113], v10, s[{S_DBG}:{S_DBG+3}], 0 offen offset:8 sc1")
    a.s("s_mov_b64 exec, -1")
    a.nop(2)
    a.label("L_np2")
    stamp(a, cfg, 1)
    if cfg.el == 1:
        a.s(f"s_cmp_eq_u32 s{S_E}, 0")
        a.s("s_cbranch_scc1 L_noK0")
        a.barrier()
        readK()
        a.waitcnt(lgkm=0)
        a.barrier()
        a.label("L_noK0")
    a.barrier()
    stamp(a, cfg, 2)
    for mt in range(3): rdX(0, mt, 0)()
    for t in range(8): rdW(0, t, 0, 0)(); rdW(0, t, 0, 1)()
    BP = cfg.barpos
    for s in range(9):
        last = s == 8
        for mt in range(3): F.add(rdX(s, mt, 1))
        for t in range(8):
            if last and cfg.kearly: F.add(rdK1(t >> 2, t & 3, 0), rdK1(t >> 2, t & 3, 1))
            for mt in (range(3) if (t % 2 == 0 or not cfg.serp) else (2, 1, 0)):
                chk1(s, 0, t, mt)
                a.mfma(accQ(t, mt), Wf(t), Xf(0, mt), None if s == 0 else accQ(t, mt))
                for b in range(cfg.x_burn): a.raw(f"    v_mad_u32_u24 v{236+(t*3+mt+b*5)%16}, v{Wf(t)+mt}, v{Xf(0,mt)+b}, v{236+(t*3+mt+b*5+7)%16}")
                F.pop(2 if len(F.q) > 2 else 1)
            if cfg.x_pace and s < cfg.pst: a.nop(cfg.x_pace)
            if s < cfg.strict and t % cfg.smod == 0: a.waitcnt(lgkm=0)
            F.add(rdW(s, t, 1, 0), rdW(s, t, 1, 1))
        for t in range(8):
            for mt in (range(3) if (t % 2 == 0 or not cfg.serp) else (2, 1, 0)):
                chk1(s, 1, t, mt)
                a.mfma(accQ(t, mt), Wf(t), Xf(1, mt), accQ(t, mt))
                for b in range(cfg.x_burn): a.raw(f"    v_mad_u32_u24 v{236+(t*3+mt+b*5)%16}, v{Wf(t)+mt}, v{Xf(1,mt)+b}, v{236+(t*3+mt+b*5+7)%16}")
                F.pop(2 if len(F.q) > 2 else 1)
            if cfg.x_pace and s < cfg.pst and cfg.pst < 9: a.nop(cfg.x_pace)
            if s < cfg.strict and t != BP - 1 and t % cfg.smod == 0: a.waitcnt(lgkm=0)
            if last:
                if t in (3, 5, 7): F.add(*cvtQ((t - 3)//2))
            elif t == BP - 1:
                assert not F.q
                a.waitcnt(lgkm=0)
                a.barrier()
                F.add(rdX(s+1, 0, 0), rdW(s+1, 0, 0, 0), rdW(s+1, 0, 0, 1), rdX(s+1, 1, 0), rdX(s+1, 2, 0))
                for tt in range(1, BP): F.add(rdW(s+1, tt, 0, 0), rdW(s+1, tt, 0, 1))
            elif t >= BP:
                F.add(rdW(s+1, t, 0, 0), rdW(s+1, t, 0, 1))
    a.waitcnt(lgkm=0)
    a.barrier()
    stamp(a, cfg, 3)
    if not cfg.att:
        a.bload(8, 2, 10, S_DBG, "0", flags="sc1", tag="nonce")
        if cfg.el:
            a.s(f"s_cmp_eq_u32 s{S_E}, 1")
            a.s("s_cbranch_scc1 L_noK1")
        readK()
        if cfg.el: a.label("L_noK1")
        F.drain()
        for f in cvtQ(3): f()
        for kp in range(4):
            for kt in range(3):
                for mt in range(3):
                    a.mfma(accS(kt, mt), Kf(kt, kp), accQ(2*kp, mt), None if kp == 0 else accS(kt, mt))
        MX = [160, 161, 162]; TM = [163, 164, 165]; SM = [166, 167, 6]
        vals = lambda mt: [accS(kt, mt) + r for kt in range(3) for r in range(4)]
        for mt in range(3):
            v = vals(mt); a.v(f"v_max3_f32 v{MX[mt]}, v{v[0]}, v{v[1]}, v{v[2]}")
        for i in range(3, 11, 2):
            for mt in range(3):
                v = vals(mt); a.v(f"v_max3_f32 v{MX[mt]}, v{MX[mt]}, v{v[i]}, v{v[i+1]}")
        for mt in range(3):
            v = vals(mt); a.v(f"v_max_f32 v{MX[mt]}, v{MX[mt]}, v{v[11]}")
        xlane_reduce(a, "v_max_f32", MX, TM)
        for mt in range(3): a.v(f"v_mul_f32 v{MX[mt]}, s83, v{MX[mt]}")
        for i in range(12):
            for mt in range(3):
                v = vals(mt); a.v(f"v_fma_f32 v{v[i]}, v{v[i]}, s83, -v{MX[mt]}")
        for i in range(12):
            for mt in range(3):
                v = vals(mt); a.v(f"v_exp_f32 v{v[i]}, v{v[i]}")
        for mt in range(3):
            v = vals(mt); a.v(f"v_add_f32 v{SM[mt]}, v{v[0]}, v{v[1]}")
        for i in range(2, 12):
            for mt in range(3):
                v = vals(mt); a.v(f"v_add_f32 v{SM[mt]}, v{SM[mt]}, v{v[i]}")
        xlane_reduce(a, "v_add_f32", SM, TM)
        for mt in range(3): a.v(f"v_rcp_f32 v{SM[mt]}, v{SM[mt]}")
        a.barrier()
        for t in range(8):
            for kt in range(3):
                F.add(lambda t=t, kt=kt: a.ds_read("ds_read_b64_tr_b16", Vf(t) + 2*kt, 2, aV(t >> 1), off=kt*4*VSTR + (t & 1)*32))
        for i in range(12):
            for mt in range(3):
                v = vals(mt); a.v(f"v_mul_f32 v{v[i]}, v{v[i]}, v{SM[mt]}"); F.pop(1)
        for mt in range(3):
            r0, r1, r2 = accS(0, mt), accS(1, mt), accS(2, mt)
            for f in (cvt(r0, r0, r0+1), cvt(r0+1, r0+2, r0+3), cvt(r0+2, r1, r1+1), cvt(r0+3, r1+2, r1+3), cvt(r2, r2, r2+1), cvt(r2+1, r2+2, r2+3)): f()
        stamp(a, cfg, 4)
        nonce_check(a, 10)
        a.s(f"s_lshl_b32 s81, s{S_NT}, 15")
        a.s("s_add_u32 s81, s81, s80")
        def ostore(mt, kp):
            r = accO(mt, 2*kp); s_ = accO(mt, 2*kp+1); d = ofA(kp, mt); f = kp*3 + mt
            return [cvt(d, r, r+1), cvt(d+1, r+2, r+3), cvt(d+2, s_, s_+1), cvt(d+3, s_+2, s_+3),
                    lambda: a.s(f"s_add_u32 s82, s81, s{40 + f//4}"),
                    lambda: a.bstore(d, 4, 14, S_WS, "s82", off=(f % 4)*1024, flags="sc1")]
        for mt in range(3):
            for t in range(8):
                a.mfma(accO(mt, t), Vf(t), accS(0, mt), None); F.pop(2)
            for t in range(8):
                a.mfma(accO(mt, t), Vf(t)+4, accS(2, mt), accO(mt, t), k=16); F.pop(2)
            for kp in range(4): F.add(*ostore(mt, kp))
    else:
        assert cfg.el == 2 and cfg.l_kpos >= 0 and cfg.c_kpos >= 0
        if not cfg.kearly:
            for kp in range(4):
                for kt in range(2): rdK1(kt, kp, 0)(); rdK1(kt, kp, 1)()
        for kp in range(4): rdK1(2, kp, 0)(); rdK1(2, kp, 1)()
        nonce_load(a, 252, 10)
        F.add(*cvtQ(3))
        order = [(kp, kt, mt) for kp in range(3) for kt in range(2) for mt in range(3)]
        order += [(kp, 2, mt) for kp in range(3) for mt in range(3)]
        order += [(3, kt, mt) for mt in range(3) for kt in range(3)]
        for n, (kp, kt, mt) in enumerate(order):
            if kp == 2 and n == 12: F.pop(max(0, len(F.q) - 12))
            if kp == 3: F.drain()
            a.mfma(accS(kt, mt), Kf(kt, kp), accQ(2*kp, mt), None if kp == 0 else accS(kt, mt)); F.pop(2)
        MX = [160, 162, 164]; TM = [161, 163, 165]; SM = [166, 6, 112]
        vals = lambda mt: [accS(kt, mt) + r for kt in range(3) for r in range(4)]
        for mt in range(3):
            v = vals(mt); a.v(f"v_max3_f32 v{MX[mt]}, v{v[0]}, v{v[1]}, v{v[2]}")
        for i in range(3, 11, 2):
            for mt in range(3):
                v = vals(mt); a.v(f"v_max3_f32 v{MX[mt]}, v{MX[mt]}, v{v[i]}, v{v[i+1]}")
        for mt in range(3):
            v = vals(mt); a.v(f"v_max_f32 v{MX[mt]}, v{MX[mt]}, v{v[11]}")
        xlane_reduce(a, "v_max_f32", MX, TM)
        for mt in range(3): a.v(f"v_mul_f32 v{MX[mt]}, s83, v{MX[mt]}")
        for i in range(0, 12, 2):
            for mt in range(3):
                v = vals(mt)
                a.v(f"v_pk_fma_f32 v[{v[i]}:{v[i]+1}], v[{v[i]}:{v[i]+1}], s[82:83], v[{MX[mt]}:{MX[mt]+1}] op_sel:[0,1,0] op_sel_hi:[1,1,0] neg_lo:[0,0,1] neg_hi:[0,0,1]")
        for i in range(12):
            for mt in range(3):
                v = vals(mt); a.v(f"v_exp_f32 v{v[i]}, v{v[i]}")
        for mt in range(3):
            v = vals(mt); a.v(f"v_pk_add_f32 v[{SM[mt]}:{SM[mt]+1}], v[{v[0]}:{v[1]}], v[{v[2]}:{v[3]}]")
        for i in range(4, 12, 2):
            for mt in range(3):
                v = vals(mt); a.v(f"v_pk_add_f32 v[{SM[mt]}:{SM[mt]+1}], v[{SM[mt]}:{SM[mt]+1}], v[{v[i]}:{v[i]+1}]")
        for mt in range(3): a.v(f"v_add_f32 v{MX[mt]}, v{SM[mt]}, v{SM[mt]+1}")
        xlane_reduce(a, "v_add_f32", MX, TM)
        for mt in range(3): a.v(f"v_rcp_f32 v{MX[mt]}, v{MX[mt]}")
        for i in range(0, 12, 2):
            for mt in range(3):
                v = vals(mt); a.v(f"v_pk_mul_f32 v[{v[i]}:{v[i]+1}], v[{v[i]}:{v[i]+1}], v[{MX[mt]}:{MX[mt]+1}] op_sel_hi:[1,0]")
        for mt in range(3):
            r0, r1, r2 = accS(0, mt), accS(1, mt), accS(2, mt)
            for f in (cvt(r0, r0, r0+1), cvt(r0+1, r0+2, r0+3), cvt(r0+2, r1, r1+1), cvt(r0+3, r1+2, r1+3), cvt(r2, r2, r2+1), cvt(r2+1, r2+2, r2+3)): f()
        stamp(a, cfg, 4)
        a.barrier()
        for t in range(8):
            for kt in range(3):
                a.ds_read("ds_read_b64_tr_b16", Vf(t) + 2*kt, 2, aV(t >> 1), off=kt*4*VSTR + (t & 1)*32)
        nonce_check(a, 252, 10)
        apply_c(a, (80, 84, 88))
        a.s("s_mov_b32 s52, s76")
        a.s("s_mov_b32 s53, s75")
        for k in range(4):
            F.add(lambda k=k: a.s(f"s_bitcmp1_b32 s53, {k}") or a.s(f"s_cselect_b32 s{44+k}, 8192, 0"), lambda k=k: a.s(f"s_xor_b32 s{44+k}, s{44+k}, s92"))
        a.s(f"s_lshl_b32 s81, s{S_NT}, 15")
        a.s("s_add_u32 s81, s81, s80")
        def ostore(mt, kp):
            r = accO(mt, 2*kp); s_ = accO(mt, 2*kp+1); d = ofA(kp, mt); f = kp*3 + mt
            return [cvt(d, r, r+1), cvt(d+1, r+2, r+3), cvt(d+2, s_, s_+1), cvt(d+3, s_+2, s_+3),
                    lambda: a.s(f"s_add_u32 s82, s81, s{40 + f//4}"),
                    lambda: a.bstore(d, 4, 14, S_WS, "s82", off=(f % 4)*1024, flags="sc1")]
        for kp in range(4):
            for t in (2*kp, 2*kp+1):
                for mt in range(3):
                    a.mfma(accO(mt, t), Vf(t), accS(0, mt), None); F.pop(2)
            for t in (2*kp, 2*kp+1):
                for mt in range(3):
                    a.mfma(accO(mt, t), Vf(t)+4, accS(2, mt), accO(mt, t), k=16); F.pop(2)
            F.add(lambda: None, lambda: None, lambda: None, lambda: None)
            for mt in range(3): F.add(*ostore(mt, kp))
    F.drain()
    stamp(a, cfg, 5)
    def flagst(off):
        a.s("s_mov_b32 exec_lo, s85"); a.s("s_mov_b32 exec_hi, 0")
        a.bstore(8, 2, 11, S_WS, "s84", off=off, flags="sc1")
        a.s("s_mov_b64 exec, -1")
    def poll_issue(mask, off):
        a.s(f"s_mov_b32 exec_lo, {mask}"); a.s("s_mov_b32 exec_hi, 0")
        a.bload(6, 2, 11, S_WS, "s84", off=off, flags="sc1")
        a.s("s_mov_b64 exec, -1")
    def poll_check(mask, off):
        L = newlabel("pc"); Lb = newlabel("pcb")
        a.s(f"s_mov_b32 exec_lo, {mask}"); a.s("s_mov_b32 exec_hi, 0")
        a.v("v_cmp_ne_u64 vcc, v[6:7], v[8:9]")
        a.s("s_mov_b64 exec, -1")
        a.s(f"s_cbranch_vccnz {L}")
        a.label(Lb)
        o = Asm(); o.label(L); poll_flags(o, 6, 8, 11, 84, mask, 76, off); o.s(f"s_branch {Lb}")
        a.ool += o.L
    if cfg.split:
        a.waitcnt(vm=6)
        flagst(0)
        head_order(a, 1, 75)
        a.s("s_lshl_b32 s75, 1, s75")
    a.waitcnt(lgkm=0)
    a.barrier()
    stamp(a, cfg, 10)
    KO = lambda p, ts: [(p, kp, t) for kp in range(4) for t in ts]
    TO = lambda p, ts: [(p, kp, t) for t in ts for kp in range(4)]
    items = KO(0, range(9)) + KO(1, range(9))
    if cfg.reord: items += KO(2, range(6)) + TO(3, range(6)) + KO(2, range(6, 9)) + TO(3, range(6, 9))
    else: items += KO(2, range(9)) + TO(3, range(9))
    first3 = next(i for i, it in enumerate(items) if it[0] == 3)
    done_at = {}
    for i, (p, kp, t) in enumerate(items): done_at[t//2] = i
    NB = 9
    R3 = [12, 10]
    def rdW2(i, h):
        p, kp, t = items[i]
        def f():
            if cfg.align: a.ds_read("ds_read_b64_tr_b16", Wf2(i % NB)+2*h, 2, 12 if t == 8 else R[t & 1], off=kp*10240 + h*5120 + (0 if t == 8 else 32*(t - (t & 1))))
            else: a.ds_read("ds_read_b64_tr_b16", Wf2(i % NB)+2*h, 2, (R3 if p == 3 else R)[t & 1], off=kp*10240 + h*5120 + 32*(t - (t & 1)))
            ver[("W2", i % NB, h)] = i
        return f
    for kp in range(4):
        for mt in range(3): ver[("O", 0, kp, mt)] = 0
    def headbase(p):
        return [lambda: head_order(a, p, 81), lambda: a.s("s_lshl_b32 s81, s81, 15"), lambda: a.s("s_add_u32 s81, s81, s80")]
    def ldO(p, f, srdb=S_WS):
        kp, mt = divmod(f, 3)
        return [lambda: a.s(f"s_add_u32 s82, s81, s{40 + f//4}"),
                lambda: (a.bload(of(p & 1, kp, mt), 4, 14, srdb, "s82", off=(f % 4)*1024, flags="sc1"), ver.__setitem__(("O", p & 1, kp, mt), p))]
    def publish(mt, pair):
        if pair == 4 and mt == 1: return []
        slot = pair*3 + mt if pair < 4 else 12 + mt//2
        r = acc2(mt, 2*pair)
        out = [cvt(r, r, r+1), cvt(r+1, r+2, r+3)]
        if slot < 13:
            s_ = acc2(mt, 2*pair+1) if pair < 4 else acc2(1, 8)
            out += [cvt(r+2, s_, s_+1), cvt(r+3, s_+2, s_+3)]
        def st_():
            L = newlabel("own"); L2 = newlabel("ownb")
            a.s(f"s_cmp_eq_u32 s90, {slot & 7}")
            a.s(f"s_cbranch_scc1 {L}")
            if slot < 13: a.bstore(r, 4, 14, S_WS, "s82", flags="sc1", tag=("pub", slot))
            else: a.bstore(r, 2, 11, S_WS, "s82", flags="sc1", tag=("pub", slot))
            a.label(L2)
            a.ool += [f"{L}:", f"    ds_write_b128 v2, v[{r}:{r+3}] offset:{(slot >> 3)*4096}",
                      f"    buffer_store_dword v{r}, v14, s[{S_X}:{S_X+3}], 0 offen", f"    s_branch {L2}"]
        out += [lambda: a.s(f"s_add_u32 s82, s{44 + ((slot & 7) >> 1)}, {slot*16384}"), st_]
        return out
    def flag2(off):
        a.s("s_mov_b32 exec_lo, s97"); a.s("s_mov_b32 exec_hi, 0")
        a.bstore(8, 2, 3, S_WS, "s55", off=off, flags="sc1")
        a.s("s_mov_b64 exec, -1")
    def stageA():
        a.wait_vm_tag(("pub", 7))
        flag2(0)
        a.waitcnt(lgkm=0)
        a.barrier()
    for i in range(NB): rdW2(i, 0)(); rdW2(i, 1)()
    seen = set()
    n3 = 0
    for i, (p, kp, t) in enumerate(items):
        if i == cfg.fb:
            F.drain()
            a.waitcnt(vm=0)
            stamp(a, cfg, 6)
            flagst(0)
            if cfg.fbar: a.barrier()
        if i == 36:
            F.drain()
            if cfg.p2st: stamp(a, cfg, 1)
            a.barrier()
            if cfg.p2st: stamp(a, cfg, 2)
            for r in R + ([12] if cfg.align else []): a.v(f"v_subrev_u32 v{r}, {3*SL}, v{r}")
            for j in range(36, 36 + NB): rdW2(j, 0)(); rdW2(j, 1)()
            for f in headbase(1): f()
            poll_flags(a, 6, 8, 11, 84, "s86", 76, 0, 4)
            stamp(a, cfg, 7)
            for fr in range(12):
                for f in ldO(1, fr): f()
            F.add(*headbase(2))
            for r, r3 in ([] if cfg.align else zip(R, R3)): F.add(lambda r=r, r3=r3: a.v(f"v_add_u32 v{r3}, {2*SL}, v{r}"))
        if cfg.p2st and i in (37, 72, 108): stamp(a, cfg, {37: 3, 72: 4, 108: 5}[i])
        if p == 1 and t in (0, 3, 6): F.add(*ldO(2, kp*3 + t//3))
        if i == 54:
            F.add(*tail_vsetup(a, S_W, 0))
            F.add(*[lambda t=t: a.v(t) for t in ("v_lshrrev_b32 v5, 1, v1", "v_lshrrev_b32 v5, v5, s53", "v_and_b32 v5, 1, v5", "v_lshl_add_u32 v3, v5, 13, v3")])
            F.add(*[lambda t=t: a.s(t) for t in ("s_xor_b32 s97, s97, 0xff", "s_lshl_b32 s55, s90, 3", "s_add_u32 s55, s55, s96",
                                                  "s_lshl_b32 s76, s90, 7", "s_add_u32 s96, s96, s76", "s_add_u32 s96, s96, s52")])
        if i == 64 and cfg.wout: F.add(lambda: (a.bload(7, 1, 4, S_OUT, "s87", flags=cfg.ld_out), a.vm.__setitem__(-1, (None, "touch"))))
        if i == 72: F.add(*headbase(3))
        if i >= 72 and n3 < 12 and (cfg.reord or t < 6): F.add(*ldO(3, n3)); n3 += 1
        if cfg.two and i == done_at[2] + 1 + cfg.fa: F.drain(); stageA()
        for mt in (range(3) if (i % 2 == 0 or not cfg.serp) else (2, 1, 0)):
            assert ver[("W2", i % NB, 0)] == i and ver[("W2", i % NB, 1)] == i and ver[("O", p & 1, kp, mt)] == p, (i, p, kp, t)
            a.mfma(acc2(mt, t), Wf2(i % NB), of(p & 1, kp, mt), acc2(mt, t) if (mt, t) in seen else None)
            seen.add((mt, t))
            F.pop(3 if len(F.q) > 8 else 2 if len(F.q) > 2 else 1)
        j = i + NB
        if j < len(items) and not (p == 0 and j >= 36):
            if j in (72, first3):
                F.drain()
                a.barrier()
                if j == 72 or cfg.align:
                    assert not (cfg.align and cfg.reord)
                    for r in R + ([12] if cfg.align else []): a.v(f"v_add_u32 v{r}, {SL}, v{r}")
            F.q = [rdW2(j, 0), rdW2(j, 1)] + F.q
        for pair in range(4):
            if i == done_at[pair] + 1:
                for mt in range(3): F.add(*publish(mt, pair))
    stamp(a, cfg, 8)
    F.drain()
    for mt in range(3):
        for f in publish(mt, 4): f()
    if cfg.two and done_at[2] + 1 + cfg.fa >= len(items): stageA()
    stamp(a, cfg, 9)
    if cfg.dyn:
        a.waitcnt(lgkm=0)
        a.barrier()
    a.waitcnt(vm=0, lgkm=0)
    stamp(a, cfg, 11)
    flag2(64)
    if cfg.dyn: pass
    elif cfg.two:
        a.v("v_add_u32 v2, 4096, v2")
        a.s("s_add_u32 s96, s96, 64")
    else:
        poll_flags(a, 6, 8, 11, 96, "s97", 76, 64, 62)

def tail(a, cfg, endlabel):
    if cfg.dyn:
        a.s("s_cmp_ge_u32 s89, 14")
        a.s(f"s_cbranch_scc1 {endlabel}")
        for k in range(8):
            L = newlabel("ow")
            a.s(f"s_cmp_lg_u32 s90, {k}")
            a.s(f"s_cbranch_scc1 {L}")
            a.raw(f"    ds_read_b128 v[{16+4*k}:{19+4*k}], v2")
            a.label(L)
        if cfg.coal:
            a.v("v_and_b32 v70, 60, v1")
            a.v("v_and_b32 v71, 1, v1")
            a.v("v_lshl_add_u32 v70, v71, 7, v70")
            a.v("v_and_b32 v71, 2, v1")
            a.v("v_lshl_add_u32 v70, v71, 5, v70")
        a.s("s_add_u32 s77, s88, 4096")
        a.s("s_mov_b32 s76, 0")
        a.s("s_cmp_eq_u32 s89, 13")
        a.s("s_cbranch_scc1 L_dynh")
        def loop(o, name, half):
            o.label(name)
            o.s("s_mov_b32 exec_lo, s97"); o.s("s_mov_b32 exec_hi, 0")
            o.raw(f"    buffer_load_dwordx2 v[6:7], v11, s[{S_WS}:{S_WS+3}], s96 offen offset:64 sc1")
            o.s("s_add_u32 s76, s76, 1")
            o.raw("    s_waitcnt vmcnt(0)")
            o.raw("    v_cmp_eq_u64 vcc, v[6:7], v[8:9]")
            o.s("s_mov_b64 exec, -1")
            o.s(f"s_cmp_gt_u32 s76, {SPIN_MAX}")
            o.s("s_cselect_b32 s75, s97, vcc_lo")
            o.s("s_andn2_b32 s97, s97, s75")
            for k in range(8):
                L = newlabel("dy")
                o.s(f"s_bitcmp0_b32 s75, {k}")
                o.s(f"s_cbranch_scc1 {L}")
                so = "s88" if k < 4 else "s77"
                off = f" offset:{(k % 4)*1024}" if k % 4 else ""
                if half: o.raw(f"    buffer_load_dwordx2 v[{16+4*k}:{17+4*k}], v11, s[{S_WS}:{S_WS+3}], {so} offen{off} sc1")
                else: o.raw(f"    buffer_load_dwordx4 v[{16+4*k}:{19+4*k}], v14, s[{S_WS}:{S_WS+3}], {so} offen{off} sc1")
                o.label(L)
            o.s("s_cmp_lg_u32 s97, 0")
            o.s(f"s_cbranch_scc1 {name}")
        loop(a, "L_dyn", False)
        a.label("L_dynb")
        ool = Asm(); loop(ool, "L_dynh", True); ool.s("s_branch L_dynb"); a.ool += ool.L
        stamp(a, cfg, 12)
        a.raw("    s_waitcnt vmcnt(0) lgkmcnt(0)")
    else:
        if not cfg.two: a.barrier()
        a.s("s_cmp_ge_u32 s89, 14")
        a.s(f"s_cbranch_scc1 {endlabel}")
        if cfg.two: poll_flags(a, 6, 8, 11, 96, "s97", 76, 0, 68)
        stamp(a, cfg, 12)
        a.ds_read("ds_read_b128", 16, 4, 2)
        a.s("s_cmp_eq_u32 s89, 13")
        a.s("s_cbranch_scc1 L_half")
        def srcoff(k):
            a.s(f"s_add_u32 s76, s90, {k}")
            a.s("s_and_b32 s76, s76, 7")
            a.s("s_lshl_b32 s76, s76, 10")
            a.s("s_add_u32 s76, s76, s88")
        for k in range(1, 8):
            srcoff(k); a.bload(16 + 4*k, 4, 14, S_WS, "s76", flags="sc1")
        a.label("L_halfb")
        ool = Asm()
        ool.label("L_half")
        for k in range(1, 8):
            ool.s(f"s_add_u32 s76, s90, {k}"); ool.s("s_and_b32 s76, s76, 7"); ool.s("s_lshl_b32 s76, s76, 10"); ool.s("s_add_u32 s76, s76, s88")
            ool.bload(16 + 4*k, 2, 11, S_WS, "s76", flags="sc1")
        ool.s("s_branch L_halfb")
        a.ool += ool.L
    for k in range(8):
        src = 16 + 4*k
        for i in range(4):
            if k == 0:
                a.v(f"v_lshlrev_b32 v{48+2*i}, 16, v{src+i}")
                a.v(f"v_and_b32 v{49+2*i}, 0xffff0000, v{src+i}")
            else:
                a.v(f"v_lshlrev_b32 v{60+2*(i&1)}, 16, v{src+i}")
                a.v(f"v_and_b32 v{61+2*(i&1)}, 0xffff0000, v{src+i}")
                a.v(f"v_pk_add_f32 v[{48+2*i}:{49+2*i}], v[{48+2*i}:{49+2*i}], v[{60+2*(i&1)}:{61+2*(i&1)}]")
        if k == 1: stamp(a, cfg, 13)
    for i in range(4): a.v(f"v_cvt_pk_bf16_f32 v{64+i}, v{48+2*i}, v{49+2*i}")
    a.v("v_permlane16_swap_b32 v64, v66")
    a.v("v_permlane16_swap_b32 v65, v67")
    if cfg.coal:
        for i in range(4):
            a._emit(f"ds_bpermute_b32 v{64+i}, v70, v{64+i}", "ds", vw=[64+i], vrd=[70, 64+i]); a.lgkm.append(({64+i}, None))
    stamp(a, cfg, 14)
    a.s("s_mov_b64 exec, s[78:79]")
    a.bstore(64, 4, 4, S_OUT, "s87", flags=cfg.st_out)

def kernel(cfg):
    a = Asm()
    a.lcap = cfg.lcap
    ROT[0] = cfg.rot
    PP[0] = cfg.pp
    ALIGN[0] = cfg.align
    COAL[0] = cfg.coal
    a.ool = []
    stamp(a, cfg, 0)
    prologue(a, cfg, "L_end")
    a.s(f"s_cmp_lt_u32 s{S_W}, 4")
    a.s("s_cbranch_scc1 L_compute")
    loader(a, cfg)
    a.label("L_compute")
    a.reset_state()
    compute(a, cfg)
    a.label("L_tail")
    a.reset_state()
    a.nop(2)
    tail(a, cfg, "L_st")
    a.label("L_st")
    if cfg.x_map:
        a.s(f"s_add_u32 s76, s2, s{S_W}")
        a.s("s_cmp_lg_u32 s76, 0")
        a.s("s_cbranch_scc1 L_end")
        a.raw("    s_waitcnt vmcnt(0)")
        for i in range(40): a.raw("    s_sleep 64")
        a.s("s_mov_b64 exec, 1")
        a.v("v_mov_b32 v20, 0")
        a.s("s_mov_b32 s40, 0"); a.s(f"s_mov_b32 s41, {28672}"); a.s("s_mov_b32 s42, 0")
        a.label("L_map")
        for rep in range(2):
            a.raw("    v_mov_b32 v21, 0")
            a.raw("    s_memtime s[44:45]"); a.raw("    s_waitcnt lgkmcnt(0)")
            a.raw(f"    buffer_atomic_add v21, v20, s[{S_WS}:{S_WS+3}], s41 offen sc0 sc1")
            a.raw("    s_waitcnt vmcnt(0)")
            a.raw("    s_memtime s[46:47]"); a.raw("    s_waitcnt lgkmcnt(0)")
        a.s("s_sub_u32 s46, s46, s44")
        a.s("s_cmp_gt_u32 s46, 680")
        a.s("s_cselect_b32 s46, 1, 0")
        a.s("s_lshl_b32 s46, s46, s40")
        a.s("s_or_b32 s42, s42, s46")
        a.s(f"s_add_u32 s41, s41, {2 << 20}")
        a.s("s_add_u32 s40, s40, 1")
        a.s("s_cmp_lt_u32 s40, 24")
        a.s("s_cbranch_scc1 L_map")
        a.v("v_mov_b32 v21, s42")
        a.raw(f"    buffer_store_dword v21, v20, s[{S_DBG}:{S_DBG+3}], 0 offen offset:16")
        a.v(f"v_mov_b32 v22, s{S_WS}")
        a.raw(f"    buffer_store_dword v22, v20, s[{S_DBG}:{S_DBG+3}], 0 offen offset:20")
        a.raw("    s_getreg_b32 s42, hwreg(HW_REG_XCC_ID)")
        a.v("v_mov_b32 v23, s42")
        a.raw(f"    buffer_store_dword v23, v20, s[{S_DBG}:{S_DBG+3}], 0 offen offset:24")
    if cfg.stamps: a.waitcnt(vm=0)
    stamp(a, cfg, 15)
    stamp_out(a, cfg)
    a.label("L_end")
    a.s("s_endpgm")
    for l in a.ool: a.raw(l)
    return a

HEADER = open("cdna_kernels/" + NAME + ".s.ref").read().split("; Override launch")[0]

def build(cfg):
    n = NAME + "_kernel"
    a = kernel(cfg)
    return HEADER + f"""; @launch grid=(256,1,1) block=(512,1,1) lds=163840
.amdgcn_target "amdgcn-amd-amdhsa--gfx950"
.text
.globl {n}
.p2align 8
.type {n},@function
{n}:
{a.text()}
L_code_end:
.section .rodata,"a"
.p2align 6
.amdhsa_kernel {n}
  .amdhsa_next_free_vgpr 256
  .amdhsa_next_free_sgpr 102
  .amdhsa_accum_offset 256
  .amdhsa_group_segment_fixed_size 0
  .amdhsa_kernarg_size 104
  .amdhsa_user_sgpr_count 2
  .amdhsa_user_sgpr_kernarg_segment_ptr 1
  .amdhsa_system_sgpr_workgroup_id_x 1
.end_amdhsa_kernel
"""

if __name__ == "__main__":
    cfg = Cfg()
    for kv in sys.argv[2:]:
        k, v = kv.split("=")
        cur = getattr(cfg, k)
        setattr(cfg, k, (v == "1") if isinstance(cur, bool) else int(v) if isinstance(cur, int) else v.replace("_", " "))
    open(sys.argv[1], "w").write(build(cfg))
```

```python
import sys, struct
from asm import *

NAME = "concat_heads__gqa_block_cached__mha_block_cached__near_ridge"
SL = 40960
KSTR, VSTR = 4112, 4128
KUNIT, VUNIT = 1024, 1024
KBASE = 0
VBASE_L = 12*KSTR
WS_O = 0
WS_FLAG1 = 64 << 20
WS_FLAG2 = 65 << 20
WS_PROBE = 68 << 20
WS_PART = 32 << 20
WS_STAMP = 72 << 20
WS_BYTES = 80 << 20
SC = 0.08838834764831845 * 1.4426950408889634
SPIN_MAX = 1 << 17
def f2u(x): return struct.unpack("<I", struct.pack("<f", x))[0]

S_X, S_K, S_V, S_WQ, S_WO, S_OUT, S_WS, S_DBG = 36, 40, 44, 48, 52, 56, 60, 64
S_BR, S_KQ, S_HL, S_BG, S_W, S_NT, S_E = 68, 69, 70, 71, 72, 98, 99

class Cfg:
    stamps = False; x_clk = False; lst = 0
    ld_x = ""; ld_wq = ""; ld_kv = "nt"; ld_wo = ""; st_out = "sc1"; ld_out = ""
    skew = 3; prio = 3; lcap = 8; barpos = 3
    el = 2; pollpos = 4; ctouch = 3; e_wo = 1; l_wo = 1; prog = 1; touch = 1; tpos = 5; wo2 = 1; flagpos = 1; e_vpos = 4; l_kpos = 2; f2 = 1; c_kpos = 5; c_tpos = 3; swap = 1; own = 1; warmf = 1; p2st = 0; fbar = 1; wo0late = 0; x_enc = -1; x_amp = 4; dbgwg = 0; att = 1; r1first = 1; epoll = 0; cfix = -1; nprobe = 1; split = 0; fb = 9; x_pace = 0; cls = '33,44,55,66'; v7 = 4; v8 = 12; x_burn = 0; x_map = 0; bal = 0; two = 0; reord = 0; fa = 8; serp = 1; pp = 0; tlb = 0; sw = 0; kearly = 1; kfirst = 0; hold = 0; lprio = 0; xfirst = 0; tsh = '2222'; dyn = 1; w3e = 0; o3e = 0; ct0 = 1; wout = 0; align = 1; coal = 1; strict = 3; smod = 1; pst = 9; pa = 14; pac = 21; rot = 0; pb = 48

NST = 16
def streg(i): return 4 if i == 0 else 8 + 2*(i-1) if i <= 13 else {14: 34, 15: 100}[i]
def stamp(a, cfg, i):
    if cfg.stamps:
        r = streg(i)
        a.raw(f"    {'s_memtime' if cfg.x_clk else 's_memrealtime'} s[{r}:{r+1}]"); a.pos += 1
def stamp_out(a, cfg):
    if not cfg.stamps: return
    if cfg.x_enc >= 0:
        a.raw("    s_waitcnt lgkmcnt(0)")
        a.s("s_lshl_b32 s3, s2, 3")
        a.s(f"s_add_u32 s3, s3, s{S_W}")
        a.s(f"s_cmp_lg_u32 s3, {cfg.dbgwg*8}")
        a.s("s_cbranch_scc1 L_end")
        if cfg.x_enc == 99:
            a.raw("    s_getreg_b32 s76, hwreg(HW_REG_XCC_ID, 0, 4)")
            a.s("s_mul_i32 s76, s76, 1000")
        elif cfg.x_enc == 98:
            a.v("v_readfirstlane_b32 s76, v8")
            a.s("s_sub_u32 s76, s4, s76")
            a.s("s_add_u32 s76, s76, 300")
            a.s("s_mul_i32 s76, s76, 8")
        else:
            a.s(f"s_sub_u32 s76, s{streg(cfg.x_enc)}, s4")
            a.s(f"s_mul_i32 s76, s76, {cfg.x_amp}")
        a.s("s_add_u32 s76, s76, 5000")
        a.label("L_hold")
        a.raw("    s_memrealtime s[78:79]")
        a.raw("    s_waitcnt lgkmcnt(0)")
        a.s("s_sub_u32 s77, s78, s4")
        a.s("s_cmp_lt_u32 s77, s76")
        a.s("s_cbranch_scc1 L_hold")
        return
    a.raw("    s_waitcnt lgkmcnt(0)")
    a.s("s_mov_b64 exec, 1")
    a.s("s_lshl_b32 s3, s2, 3")
    a.s(f"s_add_u32 s3, s3, s{S_W}")
    a.s("s_lshl_b32 s3, s3, 6")
    a.s(f"s_add_u32 s3, s3, {WS_STAMP}")
    a.v("v_mov_b32 v1, 0")
    for i in range(NST):
        a.v(f"v_mov_b32 v2, s{streg(i)}")
        a.bstore(2, 1, 1, S_WS, "s3", off=4*i)
        a.nop(2)

def srd(a, base, lo, hi, size):
    a.s(f"s_mov_b32 s{base}, s{lo}")
    a.s(f"s_mov_b32 s{base+1}, s{hi}")
    a.s(f"s_mov_b32 s{base+2}, {size}")
    a.s(f"s_mov_b32 s{base+3}, 0x20000")

BAL = [0]
def prologue(a, cfg, endlabel):
    a.s("s_cmp_ge_u32 s2, 256")
    a.s(f"s_cbranch_scc1 {endlabel}")
    a.raw("    s_load_dwordx16 s[8:23], s[0:1], 0")
    a.raw("    s_load_dwordx8 s[24:31], s[0:1], 64")
    a.raw("    s_load_dwordx2 s[32:33], s[0:1], 96")
    a.v("v_and_b32 v1, 63, v0")
    a.v("v_lshrrev_b32 v15, 6, v0")
    BAL[0] = cfg.bal
    if cfg.bal:
        a.s(f"s_bfe_u32 s{S_KQ}, s2, 0x10002")
        a.s(f"s_lshl_b32 s{S_KQ}, s{S_KQ}, 1")
        a.s(f"s_and_b32 s{S_BR}, s2, 1")
        a.s(f"s_or_b32 s{S_KQ}, s{S_KQ}, s{S_BR}")
        a.s(f"s_bfe_u32 s{S_BR}, s2, 0x10001")
    else:
        a.s(f"s_and_b32 s{S_KQ}, s2, 3")
        a.s(f"s_bfe_u32 s{S_BR}, s2, 0x10002")
    if cfg.swap: a.s(f"s_xor_b32 s{S_BR}, s{S_BR}, 1")
    a.s(f"s_bfe_u32 s{S_HL}, s2, 0x30003")
    a.s(f"s_lshr_b32 s{S_BG}, s2, 6")
    a.s(f"s_and_b32 s{S_NT}, s{S_HL}, 3")
    a.v(f"v_readfirstlane_b32 s{S_W}, v15")
    if cfg.el:
        a.s(f"s_lshr_b32 s{S_E}, s{S_HL}, 2")
        a.s(f"s_xor_b32 s{S_E}, s{S_E}, s{S_BG}")
        a.s(f"s_and_b32 s{S_E}, s{S_E}, 1")
        a.s(f"s_and_b32 s3, s{S_BG}, 2")
        a.s(f"s_or_b32 s3, s3, s{S_E}")
        if cfg.el == 2: a.s(f"s_mov_b32 s{S_E}, 0")
    else:
        a.s(f"s_mov_b32 s{S_E}, 0")

def build_srds(a, keys):
    a.raw("    s_waitcnt lgkmcnt(0)")
    a.s(f"s_cmp_eq_u32 s{S_BR}, 0")
    for (dst, pa, pb, key) in ((S_WQ, 14, 24, 'wq'), (S_X, 8, 18, 'x'), (S_K, 10, 20, 'k'), (S_V, 12, 22, 'v'), (S_WO, 16, 26, 'wo')):
        if key not in keys: continue
        a.s(f"s_cselect_b64 s[{dst}:{dst+1}], s[{pa}:{pa+1}], s[{pb}:{pb+1}]")
        if key in ('k', 'v'):
            a.s(f"s_mov_b32 s{dst+2}, 6291456")
            a.s(f"s_cselect_b32 s{dst+2}, 3145728, s{dst+2}")
        else:
            a.s(f"s_mov_b32 s{dst+2}, {884736 if key == 'x' else 4718592}")
        a.s(f"s_mov_b32 s{dst+3}, 0x20000")
    if 'o' in keys:
        srd(a, S_OUT, 28, 29, 1769472)
        srd(a, S_DBG, 30, 31, 256)
        srd(a, S_WS, 32, 33, WS_BYTES)

ROT = [0]
def head_order(a, p, sd):
    if p == 0: a.s(f"s_mov_b32 s{sd}, s{S_NT}")
    elif ROT[0]:
        a.s(f"s_add_u32 s{sd}, s{S_NT}, {p}"); a.s(f"s_and_b32 s{sd}, s{sd}, 3")
    else:
        a.s(f"s_cmp_le_u32 s{S_NT}, {p-1}"); a.s(f"s_cselect_b32 s{sd}, {p}, {p-1}")

_lbl = [0]
def newlabel(p):
    _lbl[0] += 1
    return f"L{p}_{_lbl[0]}"

PP = [0]
ALIGN = [0]
COAL = [0]
def poll_flags(a, vdata, vnonce, voff, soff, mask, stmp, off=0, v2=None):
    L = newlabel("poll"); X = newlabel("pollx")
    a.s(f"s_mov_b32 exec_lo, {mask}")
    a.s("s_mov_b32 exec_hi, 0")
    a.s(f"s_mov_b32 s{stmp}, 0")
    if PP[0] and v2 is not None:
        o = f" offset:{off}" if off else ""
        ld = lambda v: a.raw(f"    buffer_load_dwordx2 v[{v}:{v+1}], v{voff}, s[{S_WS}:{S_WS+3}], s{soff} offen{o} sc1")
        a.waitcnt(vm=0) if False else None
        ld(vdata)
        a.raw(f"    s_sleep {PP[0]}")
        a.label(L)
        ld(v2)
        a.s(f"s_add_u32 s{stmp}, s{stmp}, 1")
        a.raw("    s_waitcnt vmcnt(1)")
        a.raw(f"    v_cmp_ne_u64 vcc, v[{vdata}:{vdata+1}], v[{vnonce}:{vnonce+1}]")
        a.s(f"s_cbranch_vccz {X}")
        ld(vdata)
        a.s(f"s_cmp_gt_u32 s{stmp}, {SPIN_MAX}")
        a.raw("    s_waitcnt vmcnt(1)")
        a.s(f"s_cbranch_scc1 {X}")
        a.raw(f"    v_cmp_ne_u64 vcc, v[{v2}:{v2+1}], v[{vnonce}:{vnonce+1}]")
        a.s(f"s_cbranch_vccnz {L}")
        a.label(X)
        a.vm = [({vdata, vdata+1, v2, v2+1}, "poll")]
        a.s("s_mov_b64 exec, -1")
        return
    a.label(L)
    a.bload(vdata, 2, voff, S_WS, f"s{soff}", off=off, flags="sc1")
    a.s(f"s_add_u32 s{stmp}, s{stmp}, 1")
    a.s(f"s_cmp_gt_u32 s{stmp}, {SPIN_MAX}")
    a.waitcnt(vm=0)
    a.s(f"s_cbranch_scc1 {X}")
    a.v(f"v_cmp_ne_u64 vcc, v[{vdata}:{vdata+1}], v[{vnonce}:{vnonce+1}]")
    a.s(f"s_cbranch_vccnz {L}")
    a.label(X)
    a.s("s_mov_b64 exec, -1")

NVOTE = 32
CAP = 4095
def nonce_load(a, vn, vzero):
    a.bload(vn, 4, vzero, S_DBG, "0", flags="sc1", tag="nonce")
def nonce_check(a, vn, vzero):
    Lok = newlabel("nok"); Lsp = newlabel("nsp")
    a.s("s_mov_b32 s77, 0")
    a.v(f"v_readfirstlane_b32 s76, v{vn}")
    a.v(f"v_readfirstlane_b32 s75, v{vn+2}")
    a.v(f"v_readfirstlane_b32 s3, v{vn+3}")
    a.label(Lsp)
    a.s("s_cmp_lg_u32 s76, 0")
    a.s("s_cselect_b32 s76, s75, 0")
    a.s(f"s_cmp_ge_u32 s3, {8 << 16}")
    a.s("s_cselect_b32 s76, s76, 0")
    a.s(f"s_cmp_ge_u32 s76, {NVOTE << 24}")
    a.s(f"s_cbranch_scc1 {Lok}")
    a.s("s_add_u32 s77, s77, 1")
    a.s(f"s_cmp_gt_u32 s77, {SPIN_MAX}")
    a.s(f"s_cbranch_scc1 {Lok}")
    a.raw(f"    buffer_load_dwordx4 v[{vn}:{vn+3}], v{vzero}, s[{S_DBG}:{S_DBG+3}], 0 offen sc1")
    a.raw("    s_waitcnt vmcnt(0)")
    a.raw(f"    v_readfirstlane_b32 s76, v{vn}")
    a.raw(f"    v_readfirstlane_b32 s75, v{vn+2}")
    a.raw(f"    v_readfirstlane_b32 s3, v{vn+3}")
    a.raw("    s_nop 0")
    a.s(f"s_branch {Lsp}")
    a.label(Lok)
    a.v(f"v_mov_b32 v8, v{vn}")
    a.v(f"v_mov_b32 v9, v{vn+1}")
    a.s(f"s_cmp_gt_u32 s76, {(NVOTE << 24) + NVOTE*CAP}")
    a.s("s_cselect_b32 s76, 0xff, 0")
    a.s("s_xor_b32 s75, s3, s76")
    if BAL[0]:
        a.s("s_and_b32 s76, s2, 2")
        a.s("s_lshr_b32 s75, s75, s76")
        a.s("s_lshr_b32 s76, s75, 2")
        a.s("s_and_b32 s76, s76, 12")
        a.s("s_and_b32 s75, s75, 3")
        a.s("s_or_b32 s75, s75, s76")
    else:
        a.s("s_and_b32 s76, s2, 4")
        a.s("s_lshr_b32 s75, s75, s76")
    a.s(f"s_lshr_b32 s76, s75, s{S_KQ}")
    a.s("s_and_b32 s76, s76, 1")
    a.s("s_lshl_b32 s76, s76, 13")

def bsel(a, sd):
    a.s(f"s_lshr_b32 s76, s{sd}, 8")
    a.s("s_and_b32 s76, s76, 8192")
    a.s(f"s_or_b32 s{sd}, s{sd}, s76")

def apply_c(a, regs):
    for r in regs: a.s(f"s_xor_b32 s{r}, s{r}, s76")

def unit_base(a, sd, sb_w, shead):
    a.s(f"s_lshl_b32 s76, s{S_BR}, 2")
    a.s(f"s_add_u32 s76, s76, s{S_BG}")
    a.s("s_lshl_b32 s76, s76, 2")
    a.s(f"s_add_u32 s76, s76, s{sb_w}")
    a.s("s_lshl_b32 s76, s76, 5")
    a.s(f"s_add_u32 s76, s76, s{shead}")
    a.s(f"s_lshl_b32 s{sd}, s76, 15")
    bsel(a, sd)
    a.s(f"s_and_b32 s76, s{sb_w}, 1")
    a.s("s_lshl_b32 s40, s76, 12")
    a.s(f"s_and_b32 s76, s{sb_w}, 2")
    a.s("s_lshl_b32 s76, s76, 13")
    a.s("s_or_b32 s40, s40, s76")
    a.s("s_xor_b32 s41, s40, 4096")
    a.s("s_xor_b32 s42, s40, 16384")

def tail_ssetup(a, sw, half):
    a.s(f"s_lshr_b32 s90, s{S_HL}, 2")
    a.s(f"s_lshl_b32 s76, s{S_KQ}, 1")
    a.s("s_add_u32 s90, s90, s76")
    a.s(f"s_add_u32 s89, s90, {8*half}")
    a.s(f"s_lshl_b32 s91, s{S_BR}, 2")
    a.s(f"s_add_u32 s91, s91, s{S_BG}")
    a.s("s_lshl_b32 s91, s91, 2")
    a.s(f"s_add_u32 s91, s91, s{S_NT}")
    a.s("s_lshl_b32 s91, s91, 2")
    a.s(f"s_add_u32 s91, s91, s{sw}")
    a.s("s_lshr_b32 s76, s91, 3")
    a.s("s_lshl_b32 s76, s76, 14")
    a.s("s_and_b32 s77, s91, 7")
    a.s("s_lshl_b32 s77, s77, 10")
    a.s("s_add_u32 s76, s76, s77")
    a.s(f"s_add_u32 s96, s76, {WS_FLAG2}")
    a.s("s_lshl_b32 s92, s91, 18")
    a.s(f"s_add_u32 s92, s92, {WS_PART}")
    bsel(a, 92)
    a.s("s_lshl_b32 s76, s89, 14")
    a.s("s_add_u32 s88, s92, s76")
    a.s("s_lshl_b32 s76, s90, 10")
    a.s("s_add_u32 s92, s92, s76")
    a.s("s_mul_i32 s76, s89, 43")
    a.s("s_lshr_b32 s76, s76, 7")
    a.s("s_mul_i32 s77, s76, 3")
    a.s("s_sub_u32 s77, s89, s77")
    a.s("s_cmp_eq_u32 s89, 13")
    a.s("s_cselect_b32 s77, 2, s77")
    a.s("s_lshl_b32 s87, s76, 6")
    a.s(f"s_mul_i32 s77, s77, {16*2304}")
    a.s("s_add_u32 s87, s87, s77")
    a.s(f"s_lshl_b32 s77, s{S_BG}, 2")
    a.s(f"s_add_u32 s77, s77, s{sw}")
    a.s(f"s_mul_i32 s77, s77, {48*2304}")
    a.s("s_add_u32 s87, s87, s77")
    a.s(f"s_mul_i32 s77, s{S_BR}, 1152")
    a.s("s_add_u32 s87, s87, s77")
    a.s(f"s_mul_i32 s77, s{S_NT}, 288")
    a.s("s_add_u32 s87, s87, s77")
    if ALIGN[0]:
        a.s("s_cmp_lt_u32 s89, 12")
        a.s("s_cselect_b32 s77, 32, -256")
        a.s(f"s_bitcmp1_b32 s{S_NT}, 0")
        a.s("s_cselect_b32 s77, s77, 0")
        a.s("s_add_u32 s87, s87, s77")
    a.s("s_cmp_lt_u32 s89, 12")
    a.s(f"s_cselect_b32 s74, 32, {16*2304}")
    a.s("s_cmp_lt_u32 s89, 13")
    a.s(f"s_cselect_b32 s78, -1, {'0x33333333' if COAL[0] else '0xffff'}")
    a.s("s_mov_b32 s79, s78")
    for u in range(16): assert (u*43) >> 7 == u//3

def tail_vsetup(a, sw=S_W, half=0):
    o1 = ("v_and_b32 v4, 15, v1", "v_mul_u32_u24 v4, 2304, v4", "v_bfe_u32 v5, v1, 4, 1", "v_mad_u32_u24 v4, v5, s74, v4",
          "v_lshrrev_b32 v5, 5, v1", "v_lshl_add_u32 v4, v5, 4, v4")
    o2 = ("v_lshrrev_b32 v4, 2, v1", "v_mul_u32_u24 v4, 2304, v4", "v_bfe_u32 v5, v1, 1, 1", "v_mad_u32_u24 v4, v5, s74, v4",
          "v_and_b32 v5, 1, v1", "v_lshl_add_u32 v4, v5, 4, v4")
    return [lambda t=t: a.v(t) for t in (o2 if COAL[0] else o1) + (
        "v_lshlrev_b32 v3, 7, v1", f"v_lshlrev_b32 v2, 4, v1", f"v_lshl_add_u32 v2, s{sw}, 10, v2", f"v_add_u32 v2, {3*SL + half*4096}, v2")]

def loader(a, cfg):
    if cfg.lprio: a.s(f"s_setprio {cfg.lprio}")
    a.s(f"s_sub_u32 s73, s{S_W}, 4")
    def codetouch():
        a.s("s_mov_b64 exec, 7")
        a.raw("    global_load_dword v24, v25, s[6:7]"); a.pos += 1
        a.vm.append((None, "touch"))
        a.s("s_mov_b64 exec, -1")
    def ctsetup():
        if cfg.ctouch:
            L = newlabel("pc")
            a.raw("    s_getpc_b64 s[6:7]")
            a.label(L)
            a.s(f"s_sub_u32 s6, s6, {L}-{NAME}_kernel")
            a.s("s_subb_u32 s7, s7, 0")
            a.s("s_lshr_b32 s76, s2, 3")
            a.s("s_lshl_b32 s76, s76, 2")
            a.s("s_add_u32 s76, s76, s73")
            a.s("s_mul_i32 s76, s76, 384")
            a.v("v_lshlrev_b32 v25, 7, v1")
            a.v("v_add_u32 v25, s76, v25")
            a.s("s_mov_b32 s77, L_code_end-" + NAME + "_kernel-4")
            a.v("v_min_u32 v25, s77, v25")
            codetouch()
    if cfg.ct0: ctsetup()
    a.s("s_and_b32 s74, s73, 1")
    a.s("s_lshr_b32 s75, s73, 1")
    a.s(f"s_lshl_b32 s95, s{S_KQ}, 3")
    a.s(f"s_add_u32 s95, s95, s{S_HL}")
    a.v("v_lshrrev_b32 v4, 4, v1")
    a.s("s_lshl_b32 s76, s75, 2")
    a.v("v_or_b32 v5, s76, v4")
    a.v("v_bfe_u32 v6, v1, 1, 3")
    a.v("v_xor_b32 v6, v6, v5")
    a.v("v_lshlrev_b32 v6, 5, v6")
    a.v("v_and_b32 v7, 1, v1")
    a.v("v_lshl_add_u32 v6, v7, 4, v6")
    a.v("v_lshl_add_u32 v2, v4, 13, v6")
    a.s("s_lshl_b32 s76, s73, 15")
    a.s("s_lshl_b32 s77, s95, 8")
    a.s("s_add_u32 s76, s76, s77")
    a.v("v_add_u32 v2, s76, v2")
    a.v("v_lshlrev_b32 v5, 2, v4")
    a.v("v_and_b32 v6, 15, v1")
    a.v("v_xor_b32 v6, v6, v5")
    a.v("v_lshlrev_b32 v6, 4, v6")
    a.v("v_lshl_add_u32 v10, v4, 8, v6")
    a.s("s_lshl_b32 s76, s74, 2")
    a.v("v_or_b32 v5, s76, v4")
    a.v("v_lshrrev_b32 v4, 3, v1")
    a.v("v_mul_u32_u24 v4, 1152, v4")
    a.v("v_and_b32 v6, 7, v1")
    a.v("v_xor_b32 v6, v6, v5")
    a.v("v_lshl_add_u32 v3, v6, 4, v4")
    a.s(f"s_mul_i32 s76, s{S_BG}, {192*1152}")
    a.s(f"s_mul_i32 s77, s74, {8*1152}")
    a.s("s_add_u32 s76, s76, s77")
    a.s(f"s_mul_i32 s77, s75, {96*1152}")
    a.s("s_add_u32 s76, s76, s77")
    a.v("v_add_u32 v3, s76, v3")
    a.s("s_lshl_b32 s78, s73, 10")
    a.s("s_mul_i32 s79, s75, 12288")
    a.s("s_lshl_b32 s77, s74, 10")
    a.s("s_add_u32 s79, s79, s77")
    a.s("s_add_u32 s79, s79, 16384")
    a.s(f"s_lshl_b32 s76, s{S_BG}, 2")
    a.s("s_add_u32 s76, s76, s73")
    a.s("s_lshl_b32 s76, s76, 5")
    a.s("s_add_u32 s76, s76, s95")
    a.s(f"s_xor_b32 s77, s{S_BR}, 1")
    a.s("s_lshr_b32 s76, s76, s77")
    a.s("s_mul_i32 s80, s76, 12288")
    a.s(f"s_mul_i32 s91, s73, {KUNIT}")
    a.s(f"s_add_u32 s91, s91, {KBASE}")
    a.s(f"s_mul_i32 s92, s73, {VUNIT}")
    if cfg.skew == 3:
        a.s(f"s_add_u32 s84, s{S_HL}, s{S_BG}")
        a.s("s_mul_i32 s85, s84, 43")
        a.s("s_lshr_b32 s85, s85, 7")
        a.s("s_mul_i32 s85, s85, 3")
        a.s("s_sub_u32 s84, s84, s85")
        a.s("s_mul_i32 s84, s84, 3")
    elif cfg.skew == 4:
        a.s(f"s_add_u32 s84, s{S_HL}, s{S_BG}")
        a.s("s_and_b32 s84, s84, 3")
        a.s("s_lshl_b32 s84, s84, 1")
    elif cfg.skew == 2:
        a.s(f"s_lshr_b32 s84, s{S_BG}, 1")
        a.s(f"s_xor_b32 s84, s84, s{S_HL}")
        a.s("s_and_b32 s84, s84, 1")
        a.s("s_lshl_b32 s84, s84, 2")
    elif cfg.skew == 9:
        a.s(f"s_lshl_b32 s84, s{S_BG}, 1")
        a.s(f"s_add_u32 s84, s84, s{S_HL}")
        a.s("s_sub_u32 s85, s84, 9")
        a.s("s_cmp_ge_u32 s84, 9")
        a.s("s_cselect_b32 s84, s85, s84")
    else:
        a.s("s_mov_b32 s84, 0")
    build_srds(a, ('x', 'wq', 'k'))
    def stage(s):
        slot = (1 + s % 3) * SL
        a.s("s_lshl_b32 s85, s84, 7")
        a.s("s_lshl_b32 s86, s84, 19")
        for i in range(4):
            a.s(f"s_add_u32 m0, s78, {slot + i*4096}")
            a.s(f"s_add_u32 s82, s86, {16*i*8192}")
            a.dma(2, S_WQ, "s82", cfg.ld_wq, tag=("st", s))
        for z in range(6):
            a.s(f"s_add_u32 m0, s79, {slot + z*2048}")
            a.s(f"s_add_u32 s82, s85, {z*16*1152}")
            a.dma(3, S_X, "s82", cfg.ld_x, tag=("st", s))
        a.s("s_add_u32 s84, s84, 1")
        a.s("s_cmp_eq_u32 s84, 9")
        a.s("s_cselect_b32 s84, 0, s84")
    def kvpart(g, srdb, sm0, stride, lo, hi, base=0):
        for i in range(lo, hi):
            a.s(f"s_add_u32 m0, s{sm0}, {base + i*stride}")
            a.s(f"s_add_u32 s82, s80, {i*1024}")
            a.dma(10, srdb, "s82", cfg.ld_kv, tag=("st", g))
    def setup2():
        if not cfg.ct0: ctsetup()
        build_srds(a, ('v', 'wo', 'o'))
        stamp(a, cfg, 1)
        a.v("v_mov_b32 v16, 0")
        L = newlabel("nw")
        a.s("s_add_u32 s76, s2, s73")
        a.s("s_cmp_lg_u32 s76, 0")
        a.s(f"s_cbranch_scc1 {L}")
        a.raw("    s_memrealtime s[88:89]")
        a.raw("    s_waitcnt lgkmcnt(0)")
        a.s("s_or_b32 s88, s88, 1")
        a.v("v_mov_b32 v18, s88")
        a.v("v_mov_b32 v19, s89")
        a.s("s_mov_b64 exec, 1")
        a.raw(f"    buffer_store_dwordx2 v[18:19], v16, s[{S_DBG}:{S_DBG+3}], 0 offen sc1")
        a.s("s_mov_b64 exec, -1")
        a.label(L)
    def setup3():
        a.s("s_and_b32 s76, s95, 0xfc")
        a.s("s_lshl_b32 s76, s76, 7")
        a.s("s_lshl_b32 s77, s73, 5")
        a.s("s_add_u32 s76, s76, s77")
        a.s("s_mul_i32 s76, s76, 1152")
        a.s(f"s_mul_i32 s77, s{S_NT}, 288")
        a.s("s_and_b32 s77, s77, 0xffffffc0")
        a.s("s_add_u32 s76, s76, s77")
        for y in range(5):
            a.v(f"v_add_u32 v4, {y*64}, v1")
            a.v("v_mul_u32_u24 v5, 3277, v4")
            a.v("v_lshrrev_b32 v5, 16, v5")
            a.v("v_mul_u32_u24 v6, 20, v5")
            a.v("v_sub_u32 v6, v4, v6")
            a.v("v_bfe_u32 v7, v5, 2, 1")
            a.v("v_lshlrev_b32 v7, 1, v7")
            a.v("v_xor_b32 v6, v6, v7")
            a.v("v_mul_u32_u24 v5, 1152, v5")
            a.v("v_lshl_add_u32 v5, v6, 4, v5")
            a.v(f"v_add_u32 v{26+y}, s76, v5")
        a.s("s_mul_i32 s93, s73, 10240")
        a.v("v_lshlrev_b32 v22, 7, v1")
        a.s(f"s_and_b32 s76, s{S_BG}, 1")
        a.s("s_lshl_b32 s76, s76, 2")
        a.s(f"s_add_u32 s76, s76, s{S_NT}")
        a.s("s_lshl_b32 s76, s76, 2")
        a.s("s_add_u32 s76, s76, s73")
        a.s(f"s_mul_i32 s76, s76, {8*36*128}")
        a.s(f"s_mul_i32 s94, s{S_KQ}, {1024*1152}")
        a.s("s_add_u32 s94, s94, s76")
        if cfg.tlb > 2:
            a.s("s_mov_b64 exec, 1")
            a.bload(23, 1, 16, S_K, "s80", flags="nt", tag="touch"); a.vm[-1] = (None, "touch")
            a.bload(23, 1, 16, S_V, "s80", flags="nt", tag="touch"); a.vm[-1] = (None, "touch")
            a.bload(23, 1, 26, S_WO, "0", tag="touch"); a.vm[-1] = (None, "touch")
            a.s("s_mov_b64 exec, -1")
    def touches(k):
        sh = [int(c) for c in cfg.tsh]
        assert sum(sh) == 8
        a.s("s_mov_b32 exec_lo, -1"); a.s("s_mov_b32 exec_hi, 15")
        for i in range(sum(sh[:k]), sum(sh[:k+1])):
            a.s(f"s_add_u32 s82, s94, {i*36*128}")
            a.bload(23, 1, 22, S_WO, "s82", tag="touch"); a.vm[-1] = (None, "touch")
        a.s("s_mov_b64 exec, -1")
    def wostage(p, start):
        head_order(a, p, 83)
        a.s(f"s_mul_i32 s83, s83, {128*1152}")
        for z2 in range(2):
            a.s(f"s_add_u32 s82, s83, {z2*16*1152}")
            for y in range(5):
                a.s(f"s_add_u32 m0, s93, {((start + p) % 4)*SL + z2*5120 + y*1024}")
                a.dma(26+y, S_WO, "s82", cfg.ld_wo, tag=("st", 11+p))
    cnt = [0]
    def st(i):
        if not cfg.lst: stamp(a, cfg, i)
    W = lambda g: a.wait_vm_tag(("st", g))
    def B():
        k = cnt[0] - cfg.lst
        if cfg.lst and 0 <= k < 5: stamp(a, cfg, 1 + 2*k)
        a.barrier()
        if cfg.lst and 0 <= k < 5: stamp(a, cfg, 2 + 2*k)
        cnt[0] += 1
    start = 3; vb = VBASE_L
    if cfg.kfirst == 1: kvpart(9, S_K, 91, KSTR, 0, 9)
    stage(0); setup2(); stage(1); setup3(); st(2)
    classes = [(int(c[0]), int(c[1])) for c in cfg.cls.split(",")]
    g0 = min(min(c) for c in classes)
    def middle(lo, hi, mid, tpos, nxt, k=0):
        for g in range(lo, hi):
            W(g)
            if g == 0: st(3)
            if g == 3: st(4)
            B()
            if g == 4 and cfg.ctouch > 1: codetouch()
            if g in (mid, tpos):
                while nxt <= (g + 1 if g < 6 else 8): stage(nxt); nxt += 1
                if g == mid and not cfg.kfirst: kvpart(9, S_K, 91, KSTR, 0, 9)
                if g == tpos: touches(k)
                continue
            while nxt <= g + 2: stage(nxt); nxt += 1
        return nxt
    n0 = 2
    if cfg.sw:
        stage(2); n0 = 3
        if cfg.hold:
            a.s(f"s_and_b32 s76, s3, {cfg.hold}")
            a.s("s_cbranch_scc0 L_nohold")
            a.raw("    s_waitcnt vmcnt(0)")
            a.label("L_nohold")
        else: W(cfg.sw)
    nxt = middle(0, g0, -1, -1, n0)
    saved = list(a.vm); c0 = cnt[0]
    nc = len(classes)
    if nc == 2: a.s("s_and_b32 s3, s3, 1")
    for k in range(1, nc):
        a.s(f"s_cmp_eq_u32 s3, {k}")
        a.s(f"s_cbranch_scc1 L_cls{k}")
    for k, (kp_, tp_) in enumerate(classes):
        if k:
            a.label(f"L_cls{k}")
            a.hist = []; a.vm = list(saved); cnt[0] = c0
        assert middle(g0, 7, kp_, tp_, nxt, k) == 9
        W(7)
        B()
        kvpart(9, S_K, 91, KSTR, 9, 12)
        kvpart(10, S_V, 92, VSTR, 0, cfg.v7, vb)
        a.wait_vm_tag(("st", 8))
        if cfg.kearly: a.waitcnt(vm=3 + cfg.v7)
        else: a.vm = a.vm[-(3 + cfg.v7):]
        if k < nc - 1: a.s("s_branch L_join")
    a.label("L_join")
    st(5); B()
    kvpart(10, S_V, 92, VSTR, cfg.v7, cfg.v8, vb)
    W(9); st(6); B()
    kvpart(10, S_V, 92, VSTR, cfg.v8, 12, vb)
    wostage(0, start)
    W(10); st(7); B()
    if cfg.l_wo > 1: wostage(1, start)
    W(11); st(8); B()
    if cfg.ctouch > 1: codetouch()
    if cfg.fbar: B()
    if cfg.l_wo < 2: wostage(1, start)
    if cfg.wo2 > 1: wostage(2, start)
    if cfg.wo2 > 2: wostage(3, start)
    W(12); st(9); B()
    if cfg.wo2 < 3: wostage(2 if cfg.wo2 == 1 else 3, start)
    if cfg.w3e: wostage(3, start)
    W(13); B()
    if cfg.wo2 == 1 and not cfg.w3e: wostage(3, start)
    nonce_load(a, 32, 16)
    if cfg.ctouch > 2: codetouch()
    W(14); st(10); B()
    a.v("v_lshlrev_b32 v14, 4, v1")
    a.v("v_lshlrev_b32 v11, 3, v1")
    tail_ssetup(a, 73, 0 if cfg.two else 1)
    nonce_check(a, 32, 16)
    apply_c(a, (88,))
    if cfg.two or cfg.dyn:
        a.s("s_add_u32 s96, s96, s76")
        a.s("s_lshl_b32 s76, s90, 7")
        a.s("s_add_u32 s96, s96, s76")
        a.s("s_lshl_b32 s97, 1, s90")
        a.s("s_xor_b32 s97, s97, 0xff")
    for f in tail_vsetup(a, 73, 0 if cfg.two else 1): f()
    if cfg.wout: a.bload(7, 1, 4, S_OUT, "s87", flags=cfg.ld_out)
    if cfg.two or cfg.dyn: a.barrier()
    a.s("s_branch L_tail")

def xlane_reduce(a, op, regs, tmps):
    for sw in ("v_permlane32_swap_b32", "v_permlane16_swap_b32"):
        for r, t in zip(regs, tmps): a.v(f"v_mov_b32 v{t}, v{r}")
        for r, t in zip(regs, tmps): a.v(f"{sw} v{r}, v{t}")
        for r, t in zip(regs, tmps): a.v(f"{op} v{r}, v{r}, v{t}")

class Fill:
    def __init__(self): self.q = []
    def add(self, *fs): self.q.extend(fs)
    def pop(self, n):
        for _ in range(n):
            if self.q: self.q.pop(0)()
    def drain(self): self.pop(len(self.q))

def compute(a, cfg):
    ACC = 16; WF = 112; XF = 144; KF = 168; AS = 216; VF = 112
    accQ = lambda t, mt: ACC + (t*3 + mt)*4
    Wf = lambda t: WF + 4*t
    Xf = lambda par, mt: XF + par*12 + mt*4
    Kf = lambda kt, kp: KF + (kt*4 + kp)*4
    accS = lambda kt, mt: AS + (kt*3 + mt)*4
    Vf = lambda t: VF + 6*t
    accO = lambda mt, t: ACC + (mt*8 + t)*4
    aW = lambda st_, t: 216 + st_*10 + t
    aX = lambda st_, ks: 216 + st_*10 + 8 + ks
    aK = lambda kp: 252 + kp
    aV = lambda th: 2 + th
    R = [13, 15]
    ofA = lambda kp, mt: 168 + (kp*3 + mt)*4
    def ofB(kp, mt):
        f = kp*3 + mt
        return 216 + f*4 if f < 10 else 160 + (f - 10)*4
    of = lambda buf, kp, mt: ofB(kp, mt) if buf else ofA(kp, mt)
    acc2 = lambda mt, t: 16 + (mt*9 + t)*4
    Wf2 = lambda i: 124 + 4*i

    if cfg.prio: a.s(f"s_setprio {cfg.prio}")
    a.s("s_and_b32 s43, s2, 0x98")
    a.s(f"s_or_b32 s43, s43, s{S_W}")
    a.s("s_cmp_lg_u32 s43, 0")
    a.s("s_cbranch_scc1 L_np1")
    a.raw("    s_getreg_b32 s54, hwreg(HW_REG_XCC_ID, 2, 1)")
    a.s("s_lshr_b32 s46, s2, 6")
    a.s("s_lshl_b32 s46, s46, 3")
    a.s("s_and_b32 s47, s2, 7")
    a.s("s_add_u32 s46, s46, s47")
    a.s("s_mul_i32 s46, s46, 448")
    a.s("s_and_b32 s47, s2, 32")
    a.s("s_lshl_b32 s47, s47, 8")
    a.s("s_add_u32 s46, s46, s47")
    a.s(f"s_add_u32 s46, s46, {WS_PROBE}")
    a.raw("    s_waitcnt lgkmcnt(0)")
    a.s("s_add_u32 s44, s32, s46")
    a.s("s_addc_u32 s45, s33, 0")
    for rep in range(cfg.nprobe):
        a.raw("    s_memtime s[48:49]")
        a.raw(f"    s_load_dword s46, s[44:45], {rep*16384}")
        a.raw("    s_waitcnt lgkmcnt(0)")
        a.raw("    s_memtime s[50:51]")
        a.raw("    s_waitcnt lgkmcnt(0)")
    a.s("s_sub_u32 s50, s50, s48")
    a.s(f"s_min_u32 s50, s50, {CAP}")
    a.s("s_sub_u32 s51, 0, s50")
    a.s("s_lshr_b32 s47, s47, 13")
    a.s("s_cmp_eq_u32 s47, s54")
    a.s("s_cselect_b32 s50, s50, s51")
    a.s(f"s_add_u32 s50, s50, {(1 << 24) + CAP}")
    a.s("s_lshl_b32 s51, s54, s2")
    a.s(f"s_add_u32 s51, s51, {1 << 16}")
    a.s("s_cmp_lt_u32 s2, 8")
    a.s("s_cselect_b32 s51, s51, 0")
    a.label("L_np1")
    a.v("v_lshrrev_b32 v160, 4, v1")
    a.v("v_bfe_u32 v161, v1, 2, 2")
    a.v("v_and_b32 v162, 3, v1")
    a.v("v_and_b32 v163, 15, v1")
    a.v("v_and_b32 v165, 1, v160")
    a.s(f"s_mul_i32 s76, s{S_W}, {KUNIT}")
    a.s(f"s_mul_i32 s77, s{S_E}, {2*SL}")
    a.s("s_add_u32 s76, s76, s77")
    a.v(f"v_mul_u32_u24 v164, {KSTR}, v161")
    a.v("v_lshl_add_u32 v164, v162, 8, v164")
    a.v("v_lshl_add_u32 v164, v160, 3, v164")
    a.v("v_add_u32 v164, s76, v164")
    for kp in range(4):
        a.v(f"v_xor_b32 v167, {kp}, v162")
        a.v(f"v_lshl_add_u32 v{aK(kp)}, v167, 6, v164")
    a.v("v_lshl_add_u32 v164, v160, 3, v161")
    a.v("v_lshlrev_b32 v164, 8, v164")
    a.v("v_lshl_or_b32 v166, v165, 2, v161")
    a.v("v_lshl_add_u32 v164, v166, 5, v164")
    a.v("v_lshl_add_u32 v164, v162, 3, v164")
    a.v(f"v_add_u32 v{aW(0,0)}, {SL}, v164")
    for t in range(1, 8): a.v(f"v_xor_b32 v{aW(0,t)}, {32*t}, v{aW(0,0)}")
    a.v("v_lshrrev_b32 v164, 1, v163")
    a.v("v_xor_b32 v164, v164, v160")
    a.v("v_lshlrev_b32 v164, 4, v164")
    a.v("v_lshl_add_u32 v164, v163, 7, v164")
    a.s(f"s_mul_i32 s76, s{S_W}, 6144")
    a.s(f"s_add_u32 s76, s76, {16384 + SL}")
    a.v(f"v_add_u32 v{aX(0,0)}, s76, v164")
    a.v(f"v_xor_b32 v{aX(0,1)}, 64, v{aX(0,0)}")
    for i in range(10): a.v(f"v_add_u32 v{226+i}, {2*SL}, v{216+i}")
    a.s(f"s_mul_i32 s76, s{S_W}, {VUNIT}")
    a.s(f"s_cmp_eq_u32 s{S_E}, 1")
    a.s(f"s_cselect_b32 s77, 0, {VBASE_L}")
    a.s("s_add_u32 s76, s76, s77")
    a.v(f"v_mul_u32_u24 v164, {VSTR}, v160")
    a.v("v_lshl_add_u32 v164, v161, 8, v164")
    a.v("v_lshl_add_u32 v164, v162, 3, v164")
    a.v("v_add_u32 v164, s76, v164")
    for th in range(4):
        a.v(f"v_xor_b32 v167, {th}, v161")
        a.v(f"v_lshl_add_u32 v{aV(th)}, v167, 6, v164")
    a.v("v_lshl_add_u32 v164, v160, 2, v161")
    a.v("v_mul_u32_u24 v164, 320, v164")
    a.v("v_lshl_add_u32 v164, v162, 3, v164")
    a.s(f"s_cmp_eq_u32 s{S_E}, 1")
    a.s(f"s_mov_b32 s76, {3*SL}")
    a.s(f"s_cselect_b32 s76, {2*SL}, s76")
    a.s(f"s_mov_b32 s93, {SL}")
    a.s(f"s_cselect_b32 s93, s93, {(-3*SL) & 0xffffffff}")
    a.s(f"s_mov_b32 s94, {SL}")
    a.s(f"s_cselect_b32 s94, {(-3*SL) & 0xffffffff}, s94")
    a.s(f"s_mov_b32 s95, {SL}")
    a.v("v_add_u32 v164, s76, v164")
    if cfg.align:
        a.s(f"s_and_b32 s77, s{S_NT}, 1")
        a.s("s_cselect_b32 s76, 1, 8")
        a.v("v_xor_b32 v167, s76, v165")
        a.v("v_lshl_add_u32 v12, v167, 5, v164")
        a.s("s_lshl_b32 s77, s77, 6")
        a.v("v_add_u32 v164, s77, v164")
        a.v(f"v_lshl_add_u32 v{R[0]}, v165, 5, v164")
        a.v("v_xor_b32 v167, 1, v165")
        a.v(f"v_lshl_add_u32 v{R[1]}, v167, 5, v164")
    else:
        a.s(f"s_and_b32 s77, s{S_NT}, 1")
        a.v("v_xor_b32 v167, s77, v165")
        a.v(f"v_lshl_add_u32 v{R[0]}, v167, 5, v164")
        a.s("s_add_u32 s77, s77, 1")
        a.v("v_xor_b32 v167, s77, v165")
        a.v(f"v_lshl_add_u32 v{R[1]}, v167, 5, v164")
    a.v("v_lshlrev_b32 v14, 4, v1")
    a.v("v_lshlrev_b32 v11, 3, v1")
    a.v("v_mov_b32 v10, 0")
    a.s(f"s_lshl_b32 s81, s{S_KQ}, 3")
    a.s(f"s_and_b32 s82, s{S_HL}, 4")
    a.s("s_add_u32 s81, s81, s82")
    unit_base(a, 80, S_W, 81)
    a.s(f"s_mov_b32 s83, {f2u(SC)}")
    a.s("s_and_b32 s76, s2, 7")
    a.s("s_lshr_b32 s77, s2, 5")
    a.s("s_lshl_b32 s77, s77, 3")
    a.s("s_or_b32 s76, s76, s77")
    a.s("s_lshl_b32 s76, s76, 2")
    a.s(f"s_add_u32 s76, s76, s{S_W}")
    a.s("s_lshr_b32 s77, s76, 6")
    a.s("s_lshl_b32 s77, s77, 14")
    a.s("s_and_b32 s76, s76, 63")
    a.s("s_lshl_b32 s76, s76, 7")
    a.s("s_add_u32 s76, s76, s77")
    a.s(f"s_add_u32 s84, s76, {WS_FLAG1}")
    a.s(f"s_lshl_b32 s85, 1, s{S_NT}")
    a.s("s_xor_b32 s86, s85, 15")
    tail_ssetup(a, S_W, 1 if cfg.two else 0)
    a.s("s_lshl_b32 s97, 1, s90")
    build_srds(a, ('o',))
    srd(a, S_X, 32, 33, 0)
    if cfg.warmf:
        a.v("v_mov_b32 v7, s84")
        a.s("s_xor_b32 s76, s84, 8192")
        a.raw("    v_writelane_b32 v7, s76, 1")
        a.s("s_lshl_b32 s76, s90, 7")
        a.s("s_add_u32 s76, s76, s96")
        a.raw("    v_writelane_b32 v7, s76, 2")
        a.s("s_xor_b32 s76, s76, 8192")
        a.raw("    v_writelane_b32 v7, s76, 3")
        if cfg.tlb:
            a.s("s_xor_b32 s76, s40, 20480")
            a.s("s_add_u32 s76, s76, s80")
            a.raw("    v_writelane_b32 v7, s76, 4")
            a.s(f"s_add_u32 s76, s92, {15*16384}")
            a.raw("    v_writelane_b32 v7, s76, 5")
        a.s(f"s_mov_b64 exec, {63 if cfg.tlb else 15}")
        a.bload(6, 1, 7, S_WS, "0", flags="sc1")
        if cfg.tlb > 1:
            a.s("s_mov_b64 exec, 1")
            a.bload(8, 1, 10, S_OUT, "s87", flags="nt")
        a.s("s_mov_b64 exec, -1")

    ver = {}
    def rdW(s, t, ks, h):
        def f():
            a.ds_read("ds_read_b64_tr_b16", Wf(t)+2*h, 2, aW((s % 3) >> 1, t), off=((s % 3) & 1)*SL + ks*8192 + h*1024); ver[("W", t, h)] = (s, ks)
        return f
    def rdX(s, mt, ks):
        def f():
            a.ds_read("ds_read_b128", Xf(ks, mt), 4, aX((s % 3) >> 1, ks), off=((s % 3) & 1)*SL + mt*2048); ver[("X", ks, mt)] = s
        return f
    def chk1(s, ks, t, mt):
        assert ver[("W", t, 0)] == (s, ks) and ver[("W", t, 1)] == (s, ks) and ver[("X", ks, mt)] == s, (s, ks, t, mt)
    def readK():
        for kp in range(4):
            for kt in range(3):
                for e in range(2): a.ds_read("ds_read_b64", Kf(kt, kp)+2*e, 2, aK(kp), off=kt*4*KSTR + 32*e)
    def rdK1(kt, kp, e):
        return lambda: a.ds_read("ds_read_b64", Kf(kt, kp)+2*e, 2, aK(kp), off=kt*4*KSTR + 32*e)
    def cvt(d, s0, s1):
        return lambda: a.v(f"v_cvt_pk_bf16_f32 v{d}, v{s0}, v{s1}")
    def cvtQ(kp):
        out = []
        for mt in range(3):
            r = accQ(2*kp, mt); s_ = accQ(2*kp+1, mt)
            out += [cvt(r, r, r+1), cvt(r+1, r+2, r+3), cvt(r+2, s_, s_+1), cvt(r+3, s_+2, s_+3)]
        return out
    F = Fill()
    a.s("s_cmp_lg_u32 s43, 0")
    a.s("s_cbranch_scc1 L_np2")
    a.v("v_mov_b32 v112, s50")
    a.v("v_mov_b32 v113, s51")
    a.s("s_mov_b64 exec, 1")
    a.raw(f"    buffer_atomic_add_x2 v[112:113], v10, s[{S_DBG}:{S_DBG+3}], 0 offen offset:8 sc1")
    a.s("s_mov_b64 exec, -1")
    a.nop(2)
    a.label("L_np2")
    stamp(a, cfg, 1)
    if cfg.el == 1:
        a.s(f"s_cmp_eq_u32 s{S_E}, 0")
        a.s("s_cbranch_scc1 L_noK0")
        a.barrier()
        readK()
        a.waitcnt(lgkm=0)
        a.barrier()
        a.label("L_noK0")
    a.barrier()
    stamp(a, cfg, 2)
    for mt in range(3): rdX(0, mt, 0)()
    for t in range(8): rdW(0, t, 0, 0)(); rdW(0, t, 0, 1)()
    BP = cfg.barpos
    for s in range(9):
        last = s == 8
        for mt in range(3): F.add(rdX(s, mt, 1))
        for t in range(8):
            if last and cfg.kearly: F.add(rdK1(t >> 2, t & 3, 0), rdK1(t >> 2, t & 3, 1))
            for mt in (range(3) if (t % 2 == 0 or not cfg.serp) else (2, 1, 0)):
                chk1(s, 0, t, mt)
                a.mfma(accQ(t, mt), Wf(t), Xf(0, mt), None if s == 0 else accQ(t, mt))
                for b in range(cfg.x_burn): a.raw(f"    v_mad_u32_u24 v{236+(t*3+mt+b*5)%16}, v{Wf(t)+mt}, v{Xf(0,mt)+b}, v{236+(t*3+mt+b*5+7)%16}")
                F.pop(2 if len(F.q) > 2 else 1)
            if cfg.x_pace and s < cfg.pst: a.nop(cfg.x_pace)
            if s < cfg.strict and t % cfg.smod == 0: a.waitcnt(lgkm=0)
            F.add(rdW(s, t, 1, 0), rdW(s, t, 1, 1))
        for t in range(8):
            for mt in (range(3) if (t % 2 == 0 or not cfg.serp) else (2, 1, 0)):
                chk1(s, 1, t, mt)
                a.mfma(accQ(t, mt), Wf(t), Xf(1, mt), accQ(t, mt))
                for b in range(cfg.x_burn): a.raw(f"    v_mad_u32_u24 v{236+(t*3+mt+b*5)%16}, v{Wf(t)+mt}, v{Xf(1,mt)+b}, v{236+(t*3+mt+b*5+7)%16}")
                F.pop(2 if len(F.q) > 2 else 1)
            if cfg.x_pace and s < cfg.pst and cfg.pst < 9: a.nop(cfg.x_pace)
            if s < cfg.strict and t != BP - 1 and t % cfg.smod == 0: a.waitcnt(lgkm=0)
            if last:
                if t in (3, 5, 7): F.add(*cvtQ((t - 3)//2))
            elif t == BP - 1:
                assert not F.q
                a.waitcnt(lgkm=0)
                a.barrier()
                F.add(rdX(s+1, 0, 0), rdW(s+1, 0, 0, 0), rdW(s+1, 0, 0, 1), rdX(s+1, 1, 0), rdX(s+1, 2, 0))
                for tt in range(1, BP): F.add(rdW(s+1, tt, 0, 0), rdW(s+1, tt, 0, 1))
            elif t >= BP:
                F.add(rdW(s+1, t, 0, 0), rdW(s+1, t, 0, 1))
    a.waitcnt(lgkm=0)
    a.barrier()
    stamp(a, cfg, 3)
    if not cfg.att:
        a.bload(8, 2, 10, S_DBG, "0", flags="sc1", tag="nonce")
        if cfg.el:
            a.s(f"s_cmp_eq_u32 s{S_E}, 1")
            a.s("s_cbranch_scc1 L_noK1")
        readK()
        if cfg.el: a.label("L_noK1")
        F.drain()
        for f in cvtQ(3): f()
        for kp in range(4):
            for kt in range(3):
                for mt in range(3):
                    a.mfma(accS(kt, mt), Kf(kt, kp), accQ(2*kp, mt), None if kp == 0 else accS(kt, mt))
        MX = [160, 161, 162]; TM = [163, 164, 165]; SM = [166, 167, 6]
        vals = lambda mt: [accS(kt, mt) + r for kt in range(3) for r in range(4)]
        for mt in range(3):
            v = vals(mt); a.v(f"v_max3_f32 v{MX[mt]}, v{v[0]}, v{v[1]}, v{v[2]}")
        for i in range(3, 11, 2):
            for mt in range(3):
                v = vals(mt); a.v(f"v_max3_f32 v{MX[mt]}, v{MX[mt]}, v{v[i]}, v{v[i+1]}")
        for mt in range(3):
            v = vals(mt); a.v(f"v_max_f32 v{MX[mt]}, v{MX[mt]}, v{v[11]}")
        xlane_reduce(a, "v_max_f32", MX, TM)
        for mt in range(3): a.v(f"v_mul_f32 v{MX[mt]}, s83, v{MX[mt]}")
        for i in range(12):
            for mt in range(3):
                v = vals(mt); a.v(f"v_fma_f32 v{v[i]}, v{v[i]}, s83, -v{MX[mt]}")
        for i in range(12):
            for mt in range(3):
                v = vals(mt); a.v(f"v_exp_f32 v{v[i]}, v{v[i]}")
        for mt in range(3):
            v = vals(mt); a.v(f"v_add_f32 v{SM[mt]}, v{v[0]}, v{v[1]}")
        for i in range(2, 12):
            for mt in range(3):
                v = vals(mt); a.v(f"v_add_f32 v{SM[mt]}, v{SM[mt]}, v{v[i]}")
        xlane_reduce(a, "v_add_f32", SM, TM)
        for mt in range(3): a.v(f"v_rcp_f32 v{SM[mt]}, v{SM[mt]}")
        a.barrier()
        for t in range(8):
            for kt in range(3):
                F.add(lambda t=t, kt=kt: a.ds_read("ds_read_b64_tr_b16", Vf(t) + 2*kt, 2, aV(t >> 1), off=kt*4*VSTR + (t & 1)*32))
        for i in range(12):
            for mt in range(3):
                v = vals(mt); a.v(f"v_mul_f32 v{v[i]}, v{v[i]}, v{SM[mt]}"); F.pop(1)
        for mt in range(3):
            r0, r1, r2 = accS(0, mt), accS(1, mt), accS(2, mt)
            for f in (cvt(r0, r0, r0+1), cvt(r0+1, r0+2, r0+3), cvt(r0+2, r1, r1+1), cvt(r0+3, r1+2, r1+3), cvt(r2, r2, r2+1), cvt(r2+1, r2+2, r2+3)): f()
        stamp(a, cfg, 4)
        nonce_check(a, 10)
        a.s(f"s_lshl_b32 s81, s{S_NT}, 15")
        a.s("s_add_u32 s81, s81, s80")
        def ostore(mt, kp):
            r = accO(mt, 2*kp); s_ = accO(mt, 2*kp+1); d = ofA(kp, mt); f = kp*3 + mt
            return [cvt(d, r, r+1), cvt(d+1, r+2, r+3), cvt(d+2, s_, s_+1), cvt(d+3, s_+2, s_+3),
                    lambda: a.s(f"s_add_u32 s82, s81, s{40 + f//4}"),
                    lambda: a.bstore(d, 4, 14, S_WS, "s82", off=(f % 4)*1024, flags="sc1")]
        for mt in range(3):
            for t in range(8):
                a.mfma(accO(mt, t), Vf(t), accS(0, mt), None); F.pop(2)
            for t in range(8):
                a.mfma(accO(mt, t), Vf(t)+4, accS(2, mt), accO(mt, t), k=16); F.pop(2)
            for kp in range(4): F.add(*ostore(mt, kp))
    else:
        assert cfg.el == 2 and cfg.l_kpos >= 0 and cfg.c_kpos >= 0
        if not cfg.kearly:
            for kp in range(4):
                for kt in range(2): rdK1(kt, kp, 0)(); rdK1(kt, kp, 1)()
        for kp in range(4): rdK1(2, kp, 0)(); rdK1(2, kp, 1)()
        nonce_load(a, 252, 10)
        F.add(*cvtQ(3))
        order = [(kp, kt, mt) for kp in range(3) for kt in range(2) for mt in range(3)]
        order += [(kp, 2, mt) for kp in range(3) for mt in range(3)]
        order += [(3, kt, mt) for mt in range(3) for kt in range(3)]
        for n, (kp, kt, mt) in enumerate(order):
            if kp == 2 and n == 12: F.pop(max(0, len(F.q) - 12))
            if kp == 3: F.drain()
            a.mfma(accS(kt, mt), Kf(kt, kp), accQ(2*kp, mt), None if kp == 0 else accS(kt, mt)); F.pop(2)
        MX = [160, 162, 164]; TM = [161, 163, 165]; SM = [166, 6, 112]
        vals = lambda mt: [accS(kt, mt) + r for kt in range(3) for r in range(4)]
        for mt in range(3):
            v = vals(mt); a.v(f"v_max3_f32 v{MX[mt]}, v{v[0]}, v{v[1]}, v{v[2]}")
        for i in range(3, 11, 2):
            for mt in range(3):
                v = vals(mt); a.v(f"v_max3_f32 v{MX[mt]}, v{MX[mt]}, v{v[i]}, v{v[i+1]}")
        for mt in range(3):
            v = vals(mt); a.v(f"v_max_f32 v{MX[mt]}, v{MX[mt]}, v{v[11]}")
        xlane_reduce(a, "v_max_f32", MX, TM)
        for mt in range(3): a.v(f"v_mul_f32 v{MX[mt]}, s83, v{MX[mt]}")
        for i in range(0, 12, 2):
            for mt in range(3):
                v = vals(mt)
                a.v(f"v_pk_fma_f32 v[{v[i]}:{v[i]+1}], v[{v[i]}:{v[i]+1}], s[82:83], v[{MX[mt]}:{MX[mt]+1}] op_sel:[0,1,0] op_sel_hi:[1,1,0] neg_lo:[0,0,1] neg_hi:[0,0,1]")
        for i in range(12):
            for mt in range(3):
                v = vals(mt); a.v(f"v_exp_f32 v{v[i]}, v{v[i]}")
        for mt in range(3):
            v = vals(mt); a.v(f"v_pk_add_f32 v[{SM[mt]}:{SM[mt]+1}], v[{v[0]}:{v[1]}], v[{v[2]}:{v[3]}]")
        for i in range(4, 12, 2):
            for mt in range(3):
                v = vals(mt); a.v(f"v_pk_add_f32 v[{SM[mt]}:{SM[mt]+1}], v[{SM[mt]}:{SM[mt]+1}], v[{v[i]}:{v[i]+1}]")
        for mt in range(3): a.v(f"v_add_f32 v{MX[mt]}, v{SM[mt]}, v{SM[mt]+1}")
        xlane_reduce(a, "v_add_f32", MX, TM)
        for mt in range(3): a.v(f"v_rcp_f32 v{MX[mt]}, v{MX[mt]}")
        for i in range(0, 12, 2):
            for mt in range(3):
                v = vals(mt); a.v(f"v_pk_mul_f32 v[{v[i]}:{v[i]+1}], v[{v[i]}:{v[i]+1}], v[{MX[mt]}:{MX[mt]+1}] op_sel_hi:[1,0]")
        for mt in range(3):
            r0, r1, r2 = accS(0, mt), accS(1, mt), accS(2, mt)
            for f in (cvt(r0, r0, r0+1), cvt(r0+1, r0+2, r0+3), cvt(r0+2, r1, r1+1), cvt(r0+3, r1+2, r1+3), cvt(r2, r2, r2+1), cvt(r2+1, r2+2, r2+3)): f()
        stamp(a, cfg, 4)
        a.barrier()
        for t in range(8):
            for kt in range(3):
                a.ds_read("ds_read_b64_tr_b16", Vf(t) + 2*kt, 2, aV(t >> 1), off=kt*4*VSTR + (t & 1)*32)
        nonce_check(a, 252, 10)
        apply_c(a, (80, 84, 88))
        a.s("s_mov_b32 s52, s76")
        a.s("s_mov_b32 s53, s75")
        for k in range(4):
            F.add(lambda k=k: a.s(f"s_bitcmp1_b32 s53, {k}") or a.s(f"s_cselect_b32 s{44+k}, 8192, 0"), lambda k=k: a.s(f"s_xor_b32 s{44+k}, s{44+k}, s92"))
        a.s(f"s_lshl_b32 s81, s{S_NT}, 15")
        a.s("s_add_u32 s81, s81, s80")
        def ostore(mt, kp):
            r = accO(mt, 2*kp); s_ = accO(mt, 2*kp+1); d = ofA(kp, mt); f = kp*3 + mt
            return [cvt(d, r, r+1), cvt(d+1, r+2, r+3), cvt(d+2, s_, s_+1), cvt(d+3, s_+2, s_+3),
                    lambda: a.s(f"s_add_u32 s82, s81, s{40 + f//4}"),
                    lambda: a.bstore(d, 4, 14, S_WS, "s82", off=(f % 4)*1024, flags="sc1")]
        for kp in range(4):
            for t in (2*kp, 2*kp+1):
                for mt in range(3):
                    a.mfma(accO(mt, t), Vf(t), accS(0, mt), None); F.pop(2)
            for t in (2*kp, 2*kp+1):
                for mt in range(3):
                    a.mfma(accO(mt, t), Vf(t)+4, accS(2, mt), accO(mt, t), k=16); F.pop(2)
            F.add(lambda: None, lambda: None, lambda: None, lambda: None)
            for mt in range(3): F.add(*ostore(mt, kp))
    F.drain()
    stamp(a, cfg, 5)
    def flagst(off):
        a.s("s_mov_b32 exec_lo, s85"); a.s("s_mov_b32 exec_hi, 0")
        a.bstore(8, 2, 11, S_WS, "s84", off=off, flags="sc1")
        a.s("s_mov_b64 exec, -1")
    def poll_issue(mask, off):
        a.s(f"s_mov_b32 exec_lo, {mask}"); a.s("s_mov_b32 exec_hi, 0")
        a.bload(6, 2, 11, S_WS, "s84", off=off, flags="sc1")
        a.s("s_mov_b64 exec, -1")
    def poll_check(mask, off):
        L = newlabel("pc"); Lb = newlabel("pcb")
        a.s(f"s_mov_b32 exec_lo, {mask}"); a.s("s_mov_b32 exec_hi, 0")
        a.v("v_cmp_ne_u64 vcc, v[6:7], v[8:9]")
        a.s("s_mov_b64 exec, -1")
        a.s(f"s_cbranch_vccnz {L}")
        a.label(Lb)
        o = Asm(); o.label(L); poll_flags(o, 6, 8, 11, 84, mask, 76, off); o.s(f"s_branch {Lb}")
        a.ool += o.L
    if cfg.split:
        a.waitcnt(vm=6)
        flagst(0)
        head_order(a, 1, 75)
        a.s("s_lshl_b32 s75, 1, s75")
    a.waitcnt(lgkm=0)
    a.barrier()
    stamp(a, cfg, 10)
    KO = lambda p, ts: [(p, kp, t) for kp in range(4) for t in ts]
    TO = lambda p, ts: [(p, kp, t) for t in ts for kp in range(4)]
    items = KO(0, range(9)) + KO(1, range(9))
    if cfg.reord: items += KO(2, range(6)) + TO(3, range(6)) + KO(2, range(6, 9)) + TO(3, range(6, 9))
    else: items += KO(2, range(9)) + TO(3, range(9))
    first3 = next(i for i, it in enumerate(items) if it[0] == 3)
    done_at = {}
    for i, (p, kp, t) in enumerate(items): done_at[t//2] = i
    NB = 9
    R3 = [12, 10]
    def rdW2(i, h):
        p, kp, t = items[i]
        def f():
            if cfg.align: a.ds_read("ds_read_b64_tr_b16", Wf2(i % NB)+2*h, 2, 12 if t == 8 else R[t & 1], off=kp*10240 + h*5120 + (0 if t == 8 else 32*(t - (t & 1))))
            else: a.ds_read("ds_read_b64_tr_b16", Wf2(i % NB)+2*h, 2, (R3 if p == 3 else R)[t & 1], off=kp*10240 + h*5120 + 32*(t - (t & 1)))
            ver[("W2", i % NB, h)] = i
        return f
    for kp in range(4):
        for mt in range(3): ver[("O", 0, kp, mt)] = 0
    def headbase(p):
        return [lambda: head_order(a, p, 81), lambda: a.s("s_lshl_b32 s81, s81, 15"), lambda: a.s("s_add_u32 s81, s81, s80")]
    def ldO(p, f, srdb=S_WS):
        kp, mt = divmod(f, 3)
        return [lambda: a.s(f"s_add_u32 s82, s81, s{40 + f//4}"),
                lambda: (a.bload(of(p & 1, kp, mt), 4, 14, srdb, "s82", off=(f % 4)*1024, flags="sc1"), ver.__setitem__(("O", p & 1, kp, mt), p))]
    def publish(mt, pair):
        if pair == 4 and mt == 1: return []
        slot = pair*3 + mt if pair < 4 else 12 + mt//2
        r = acc2(mt, 2*pair)
        out = [cvt(r, r, r+1), cvt(r+1, r+2, r+3)]
        if slot < 13:
            s_ = acc2(mt, 2*pair+1) if pair < 4 else acc2(1, 8)
            out += [cvt(r+2, s_, s_+1), cvt(r+3, s_+2, s_+3)]
        def st_():
            L = newlabel("own"); L2 = newlabel("ownb")
            a.s(f"s_cmp_eq_u32 s90, {slot & 7}")
            a.s(f"s_cbranch_scc1 {L}")
            if slot < 13: a.bstore(r, 4, 14, S_WS, "s82", flags="sc1", tag=("pub", slot))
            else: a.bstore(r, 2, 11, S_WS, "s82", flags="sc1", tag=("pub", slot))
            a.label(L2)
            a.ool += [f"{L}:", f"    ds_write_b128 v2, v[{r}:{r+3}] offset:{(slot >> 3)*4096}",
                      f"    buffer_store_dword v{r}, v14, s[{S_X}:{S_X+3}], 0 offen", f"    s_branch {L2}"]
        out += [lambda: a.s(f"s_add_u32 s82, s{44 + ((slot & 7) >> 1)}, {slot*16384}"), st_]
        return out
    def flag2(off):
        a.s("s_mov_b32 exec_lo, s97"); a.s("s_mov_b32 exec_hi, 0")
        a.bstore(8, 2, 3, S_WS, "s55", off=off, flags="sc1")
        a.s("s_mov_b64 exec, -1")
    def stageA():
        a.wait_vm_tag(("pub", 7))
        flag2(0)
        a.waitcnt(lgkm=0)
        a.barrier()
    for i in range(NB): rdW2(i, 0)(); rdW2(i, 1)()
    seen = set()
    n3 = 0
    for i, (p, kp, t) in enumerate(items):
        if i == cfg.fb:
            F.drain()
            a.waitcnt(vm=0)
            stamp(a, cfg, 6)
            flagst(0)
            if cfg.fbar: a.barrier()
        if i == 36:
            F.drain()
            if cfg.p2st: stamp(a, cfg, 1)
            a.barrier()
            if cfg.p2st: stamp(a, cfg, 2)
            for r in R + ([12] if cfg.align else []): a.v(f"v_subrev_u32 v{r}, {3*SL}, v{r}")
            for j in range(36, 36 + NB): rdW2(j, 0)(); rdW2(j, 1)()
            for f in headbase(1): f()
            poll_flags(a, 6, 8, 11, 84, "s86", 76, 0, 4)
            stamp(a, cfg, 7)
            for fr in range(12):
                for f in ldO(1, fr): f()
            F.add(*headbase(2))
            for r, r3 in ([] if cfg.align else zip(R, R3)): F.add(lambda r=r, r3=r3: a.v(f"v_add_u32 v{r3}, {2*SL}, v{r}"))
        if cfg.p2st and i in (37, 72, 108): stamp(a, cfg, {37: 3, 72: 4, 108: 5}[i])
        if p == 1 and t in (0, 3, 6): F.add(*ldO(2, kp*3 + t//3))
        if i == 54:
            F.add(*tail_vsetup(a, S_W, 0))
            F.add(*[lambda t=t: a.v(t) for t in ("v_lshrrev_b32 v5, 1, v1", "v_lshrrev_b32 v5, v5, s53", "v_and_b32 v5, 1, v5", "v_lshl_add_u32 v3, v5, 13, v3")])
            F.add(*[lambda t=t: a.s(t) for t in ("s_xor_b32 s97, s97, 0xff", "s_lshl_b32 s55, s90, 3", "s_add_u32 s55, s55, s96",
                                                  "s_lshl_b32 s76, s90, 7", "s_add_u32 s96, s96, s76", "s_add_u32 s96, s96, s52")])
        if i == 64 and cfg.wout: F.add(lambda: (a.bload(7, 1, 4, S_OUT, "s87", flags=cfg.ld_out), a.vm.__setitem__(-1, (None, "touch"))))
        if i == 72: F.add(*headbase(3))
        if i >= 72 and n3 < 12 and (cfg.reord or t < 6): F.add(*ldO(3, n3)); n3 += 1
        if cfg.two and i == done_at[2] + 1 + cfg.fa: F.drain(); stageA()
        for mt in (range(3) if (i % 2 == 0 or not cfg.serp) else (2, 1, 0)):
            assert ver[("W2", i % NB, 0)] == i and ver[("W2", i % NB, 1)] == i and ver[("O", p & 1, kp, mt)] == p, (i, p, kp, t)
            a.mfma(acc2(mt, t), Wf2(i % NB), of(p & 1, kp, mt), acc2(mt, t) if (mt, t) in seen else None)
            seen.add((mt, t))
            F.pop(3 if len(F.q) > 8 else 2 if len(F.q) > 2 else 1)
        j = i + NB
        if j < len(items) and not (p == 0 and j >= 36):
            if j in (72, first3):
                F.drain()
                a.barrier()
                if j == 72 or cfg.align:
                    assert not (cfg.align and cfg.reord)
                    for r in R + ([12] if cfg.align else []): a.v(f"v_add_u32 v{r}, {SL}, v{r}")
            F.q = [rdW2(j, 0), rdW2(j, 1)] + F.q
        for pair in range(4):
            if i == done_at[pair] + 1:
                for mt in range(3): F.add(*publish(mt, pair))
    stamp(a, cfg, 8)
    F.drain()
    for mt in range(3):
        for f in publish(mt, 4): f()
    if cfg.two and done_at[2] + 1 + cfg.fa >= len(items): stageA()
    stamp(a, cfg, 9)
    if cfg.dyn:
        a.waitcnt(lgkm=0)
        a.barrier()
    a.waitcnt(vm=0, lgkm=0)
    stamp(a, cfg, 11)
    flag2(64)
    if cfg.dyn: pass
    elif cfg.two:
        a.v("v_add_u32 v2, 4096, v2")
        a.s("s_add_u32 s96, s96, 64")
    else:
        poll_flags(a, 6, 8, 11, 96, "s97", 76, 64, 62)

def tail(a, cfg, endlabel):
    if cfg.dyn:
        a.s("s_cmp_ge_u32 s89, 14")
        a.s(f"s_cbranch_scc1 {endlabel}")
        for k in range(8):
            L = newlabel("ow")
            a.s(f"s_cmp_lg_u32 s90, {k}")
            a.s(f"s_cbranch_scc1 {L}")
            a.raw(f"    ds_read_b128 v[{16+4*k}:{19+4*k}], v2")
            a.label(L)
        if cfg.coal:
            a.v("v_and_b32 v70, 60, v1")
            a.v("v_and_b32 v71, 1, v1")
            a.v("v_lshl_add_u32 v70, v71, 7, v70")
            a.v("v_and_b32 v71, 2, v1")
            a.v("v_lshl_add_u32 v70, v71, 5, v70")
        a.s("s_add_u32 s77, s88, 4096")
        a.s("s_mov_b32 s76, 0")
        a.s("s_cmp_eq_u32 s89, 13")
        a.s("s_cbranch_scc1 L_dynh")
        def loop(o, name, half):
            o.label(name)
            o.s("s_mov_b32 exec_lo, s97"); o.s("s_mov_b32 exec_hi, 0")
            o.raw(f"    buffer_load_dwordx2 v[6:7], v11, s[{S_WS}:{S_WS+3}], s96 offen offset:64 sc1")
            o.s("s_add_u32 s76, s76, 1")
            o.raw("    s_waitcnt vmcnt(0)")
            o.raw("    v_cmp_eq_u64 vcc, v[6:7], v[8:9]")
            o.s("s_mov_b64 exec, -1")
            o.s(f"s_cmp_gt_u32 s76, {SPIN_MAX}")
            o.s("s_cselect_b32 s75, s97, vcc_lo")
            o.s("s_andn2_b32 s97, s97, s75")
            for k in range(8):
                L = newlabel("dy")
                o.s(f"s_bitcmp0_b32 s75, {k}")
                o.s(f"s_cbranch_scc1 {L}")
                so = "s88" if k < 4 else "s77"
                off = f" offset:{(k % 4)*1024}" if k % 4 else ""
                if half: o.raw(f"    buffer_load_dwordx2 v[{16+4*k}:{17+4*k}], v11, s[{S_WS}:{S_WS+3}], {so} offen{off} sc1")
                else: o.raw(f"    buffer_load_dwordx4 v[{16+4*k}:{19+4*k}], v14, s[{S_WS}:{S_WS+3}], {so} offen{off} sc1")
                o.label(L)
            o.s("s_cmp_lg_u32 s97, 0")
            o.s(f"s_cbranch_scc1 {name}")
        loop(a, "L_dyn", False)
        a.label("L_dynb")
        ool = Asm(); loop(ool, "L_dynh", True); ool.s("s_branch L_dynb"); a.ool += ool.L
        stamp(a, cfg, 12)
        a.raw("    s_waitcnt vmcnt(0) lgkmcnt(0)")
    else:
        if not cfg.two: a.barrier()
        a.s("s_cmp_ge_u32 s89, 14")
        a.s(f"s_cbranch_scc1 {endlabel}")
        if cfg.two: poll_flags(a, 6, 8, 11, 96, "s97", 76, 0, 68)
        stamp(a, cfg, 12)
        a.ds_read("ds_read_b128", 16, 4, 2)
        a.s("s_cmp_eq_u32 s89, 13")
        a.s("s_cbranch_scc1 L_half")
        def srcoff(k):
            a.s(f"s_add_u32 s76, s90, {k}")
            a.s("s_and_b32 s76, s76, 7")
            a.s("s_lshl_b32 s76, s76, 10")
            a.s("s_add_u32 s76, s76, s88")
        for k in range(1, 8):
            srcoff(k); a.bload(16 + 4*k, 4, 14, S_WS, "s76", flags="sc1")
        a.label("L_halfb")
        ool = Asm()
        ool.label("L_half")
        for k in range(1, 8):
            ool.s(f"s_add_u32 s76, s90, {k}"); ool.s("s_and_b32 s76, s76, 7"); ool.s("s_lshl_b32 s76, s76, 10"); ool.s("s_add_u32 s76, s76, s88")
            ool.bload(16 + 4*k, 2, 11, S_WS, "s76", flags="sc1")
        ool.s("s_branch L_halfb")
        a.ool += ool.L
    for k in range(8):
        src = 16 + 4*k
        for i in range(4):
            if k == 0:
                a.v(f"v_lshlrev_b32 v{48+2*i}, 16, v{src+i}")
                a.v(f"v_and_b32 v{49+2*i}, 0xffff0000, v{src+i}")
            else:
                a.v(f"v_lshlrev_b32 v{60+2*(i&1)}, 16, v{src+i}")
                a.v(f"v_and_b32 v{61+2*(i&1)}, 0xffff0000, v{src+i}")
                a.v(f"v_pk_add_f32 v[{48+2*i}:{49+2*i}], v[{48+2*i}:{49+2*i}], v[{60+2*(i&1)}:{61+2*(i&1)}]")
        if k == 1: stamp(a, cfg, 13)
    for i in range(4): a.v(f"v_cvt_pk_bf16_f32 v{64+i}, v{48+2*i}, v{49+2*i}")
    a.v("v_permlane16_swap_b32 v64, v66")
    a.v("v_permlane16_swap_b32 v65, v67")
    if cfg.coal:
        for i in range(4):
            a._emit(f"ds_bpermute_b32 v{64+i}, v70, v{64+i}", "ds", vw=[64+i], vrd=[70, 64+i]); a.lgkm.append(({64+i}, None))
    stamp(a, cfg, 14)
    a.s("s_mov_b64 exec, s[78:79]")
    a.bstore(64, 4, 4, S_OUT, "s87", flags=cfg.st_out)

def kernel(cfg):
    a = Asm()
    a.lcap = cfg.lcap
    ROT[0] = cfg.rot
    PP[0] = cfg.pp
    ALIGN[0] = cfg.align
    COAL[0] = cfg.coal
    a.ool = []
    stamp(a, cfg, 0)
    prologue(a, cfg, "L_end")
    a.s(f"s_cmp_lt_u32 s{S_W}, 4")
    a.s("s_cbranch_scc1 L_compute")
    loader(a, cfg)
    a.label("L_compute")
    a.reset_state()
    compute(a, cfg)
    a.label("L_tail")
    a.reset_state()
    a.nop(2)
    tail(a, cfg, "L_st")
    a.label("L_st")
    if cfg.x_map:
        a.s(f"s_add_u32 s76, s2, s{S_W}")
        a.s("s_cmp_lg_u32 s76, 0")
        a.s("s_cbranch_scc1 L_end")
        a.raw("    s_waitcnt vmcnt(0)")
        for i in range(40): a.raw("    s_sleep 64")
        a.s("s_mov_b64 exec, 1")
        a.v("v_mov_b32 v20, 0")
        a.s("s_mov_b32 s40, 0"); a.s(f"s_mov_b32 s41, {28672}"); a.s("s_mov_b32 s42, 0")
        a.label("L_map")
        for rep in range(2):
            a.raw("    v_mov_b32 v21, 0")
            a.raw("    s_memtime s[44:45]"); a.raw("    s_waitcnt lgkmcnt(0)")
            a.raw(f"    buffer_atomic_add v21, v20, s[{S_WS}:{S_WS+3}], s41 offen sc0 sc1")
            a.raw("    s_waitcnt vmcnt(0)")
            a.raw("    s_memtime s[46:47]"); a.raw("    s_waitcnt lgkmcnt(0)")
        a.s("s_sub_u32 s46, s46, s44")
        a.s("s_cmp_gt_u32 s46, 680")
        a.s("s_cselect_b32 s46, 1, 0")
        a.s("s_lshl_b32 s46, s46, s40")
        a.s("s_or_b32 s42, s42, s46")
        a.s(f"s_add_u32 s41, s41, {2 << 20}")
        a.s("s_add_u32 s40, s40, 1")
        a.s("s_cmp_lt_u32 s40, 24")
        a.s("s_cbranch_scc1 L_map")
        a.v("v_mov_b32 v21, s42")
        a.raw(f"    buffer_store_dword v21, v20, s[{S_DBG}:{S_DBG+3}], 0 offen offset:16")
        a.v(f"v_mov_b32 v22, s{S_WS}")
        a.raw(f"    buffer_store_dword v22, v20, s[{S_DBG}:{S_DBG+3}], 0 offen offset:20")
        a.raw("    s_getreg_b32 s42, hwreg(HW_REG_XCC_ID)")
        a.v("v_mov_b32 v23, s42")
        a.raw(f"    buffer_store_dword v23, v20, s[{S_DBG}:{S_DBG+3}], 0 offen offset:24")
    if cfg.stamps: a.waitcnt(vm=0)
    stamp(a, cfg, 15)
    stamp_out(a, cfg)
    a.label("L_end")
    a.s("s_endpgm")
    for l in a.ool: a.raw(l)
    return a

HEADER = open("cdna_kernels/" + NAME + ".s.ref").read().split("; Override launch")[0]

DOC = '''; ---------------------------------------------------------------------------------------------
; ---------------------------------------------------------------------------------------------
'''

def build(cfg):
    n = NAME + "_kernel"
    a = kernel(cfg)
    return HEADER + DOC + f"""; @launch grid=(256,1,1) block=(512,1,1) lds=163840
.amdgcn_target "amdgcn-amd-amdhsa--gfx950"
.text
.globl {n}
.p2align 8
.type {n},@function
{n}:
{a.text()}
L_code_end:
.section .rodata,"a"
.p2align 6
.amdhsa_kernel {n}
  .amdhsa_next_free_vgpr 256
  .amdhsa_next_free_sgpr 102
  .amdhsa_accum_offset 256
  .amdhsa_group_segment_fixed_size 0
  .amdhsa_kernarg_size 104
  .amdhsa_user_sgpr_count 2
  .amdhsa_user_sgpr_kernarg_segment_ptr 1
  .amdhsa_system_sgpr_workgroup_id_x 1
.end_amdhsa_kernel
"""

if __name__ == "__main__":
    cfg = Cfg()
    for kv in sys.argv[2:]:
        k, v = kv.split("=")
        cur = getattr(cfg, k)
        setattr(cfg, k, (v == "1") if isinstance(cur, bool) else int(v) if isinstance(cur, int) else v.replace("_", " "))
    open(sys.argv[1], "w").write(build(cfg))
```

```python
import sys, struct
from asm import *

NAME = "concat_heads__gqa_block_cached__mha_block_cached__near_ridge"
SL = 40960
KSTR, VSTR = 4112, 4128
KUNIT, VUNIT = 1024, 1024
KBASE = 0
VBASE_L = 12*KSTR
WS_O = 0
WS_FLAG1 = 64 << 20
WS_FLAG2 = 65 << 20
WS_PROBE = 68 << 20
WS_PART = 32 << 20
WS_STAMP = 72 << 20
WS_BYTES = 80 << 20
SC = 0.08838834764831845 * 1.4426950408889634
SPIN_MAX = 1 << 17
def f2u(x): return struct.unpack("<I", struct.pack("<f", x))[0]

S_X, S_K, S_V, S_WQ, S_WO, S_OUT, S_WS, S_DBG = 36, 40, 44, 48, 52, 56, 60, 64
S_BR, S_KQ, S_HL, S_BG, S_W, S_NT, S_E = 68, 69, 70, 71, 72, 98, 99

class Cfg:
    stamps = False; x_clk = False; lst = 0
    ld_x = ""; ld_wq = ""; ld_kv = "nt"; ld_wo = ""; st_out = "sc1"; ld_out = ""
    skew = 3; prio = 3; lcap = 8; barpos = 3
    el = 2; pollpos = 4; ctouch = 3; e_wo = 1; l_wo = 1; prog = 1; touch = 1; tpos = 5; wo2 = 1; flagpos = 1; e_vpos = 4; l_kpos = 2; f2 = 1; c_kpos = 5; c_tpos = 3; swap = 1; own = 1; warmf = 1; p2st = 0; fbar = 1; wo0late = 0; x_enc = -1; x_amp = 4; dbgwg = 0; att = 1; r1first = 1; epoll = 0; cfix = -1; nprobe = 1; split = 0; fb = 9; x_pace = 0; cls = '33,44,55,66'; v7 = 4; v8 = 12; x_burn = 0; x_map = 0; bal = 0; two = 0; reord = 0; fa = 8; serp = 1; pp = 0; tlb = 0; sw = 0; kearly = 1; kfirst = 0; hold = 0; lprio = 0; xfirst = 0; tsh = '2222'; dyn = 1; w3e = 0; o3e = 0; ct0 = 1; wout = 0; align = 1; coal = 1; strict = 3; smod = 1; pst = 9; pa = 14; pac = 21; rot = 0; pb = 48

NST = 16
def streg(i): return 4 if i == 0 else 8 + 2*(i-1) if i <= 13 else {14: 34, 15: 100}[i]
def stamp(a, cfg, i):
    if cfg.stamps:
        r = streg(i)
        a.raw(f"    {'s_memtime' if cfg.x_clk else 's_memrealtime'} s[{r}:{r+1}]"); a.pos += 1
def stamp_out(a, cfg):
    if not cfg.stamps: return
    if cfg.x_enc >= 0:
        a.raw("    s_waitcnt lgkmcnt(0)")
        a.s("s_lshl_b32 s3, s2, 3")
        a.s(f"s_add_u32 s3, s3, s{S_W}")
        a.s(f"s_cmp_lg_u32 s3, {cfg.dbgwg*8}")
        a.s("s_cbranch_scc1 L_end")
        if cfg.x_enc == 99:
            a.raw("    s_getreg_b32 s76, hwreg(HW_REG_XCC_ID, 0, 4)")
            a.s("s_mul_i32 s76, s76, 1000")
        elif cfg.x_enc == 98:
            a.v("v_readfirstlane_b32 s76, v8")
            a.s("s_sub_u32 s76, s4, s76")
            a.s("s_add_u32 s76, s76, 300")
            a.s("s_mul_i32 s76, s76, 8")
        else:
            a.s(f"s_sub_u32 s76, s{streg(cfg.x_enc)}, s4")
            a.s(f"s_mul_i32 s76, s76, {cfg.x_amp}")
        a.s("s_add_u32 s76, s76, 5000")
        a.label("L_hold")
        a.raw("    s_memrealtime s[78:79]")
        a.raw("    s_waitcnt lgkmcnt(0)")
        a.s("s_sub_u32 s77, s78, s4")
        a.s("s_cmp_lt_u32 s77, s76")
        a.s("s_cbranch_scc1 L_hold")
        return
    a.raw("    s_waitcnt lgkmcnt(0)")
    a.s("s_mov_b64 exec, 1")
    a.s("s_lshl_b32 s3, s2, 3")
    a.s(f"s_add_u32 s3, s3, s{S_W}")
    a.s("s_lshl_b32 s3, s3, 6")
    a.s(f"s_add_u32 s3, s3, {WS_STAMP}")
    a.v("v_mov_b32 v1, 0")
    for i in range(NST):
        a.v(f"v_mov_b32 v2, s{streg(i)}")
        a.bstore(2, 1, 1, S_WS, "s3", off=4*i)
        a.nop(2)

def srd(a, base, lo, hi, size):
    a.s(f"s_mov_b32 s{base}, s{lo}")
    a.s(f"s_mov_b32 s{base+1}, s{hi}")
    a.s(f"s_mov_b32 s{base+2}, {size}")
    a.s(f"s_mov_b32 s{base+3}, 0x20000")

BAL = [0]
def prologue(a, cfg, endlabel):
    a.s("s_cmp_ge_u32 s2, 256")
    a.s(f"s_cbranch_scc1 {endlabel}")
    a.raw("    s_load_dwordx16 s[8:23], s[0:1], 0")
    a.raw("    s_load_dwordx8 s[24:31], s[0:1], 64")
    a.raw("    s_load_dwordx2 s[32:33], s[0:1], 96")
    a.v("v_and_b32 v1, 63, v0")
    a.v("v_lshrrev_b32 v15, 6, v0")
    BAL[0] = cfg.bal
    if cfg.bal:
        a.s(f"s_bfe_u32 s{S_KQ}, s2, 0x10002")
        a.s(f"s_lshl_b32 s{S_KQ}, s{S_KQ}, 1")
        a.s(f"s_and_b32 s{S_BR}, s2, 1")
        a.s(f"s_or_b32 s{S_KQ}, s{S_KQ}, s{S_BR}")
        a.s(f"s_bfe_u32 s{S_BR}, s2, 0x10001")
    else:
        a.s(f"s_and_b32 s{S_KQ}, s2, 3")
        a.s(f"s_bfe_u32 s{S_BR}, s2, 0x10002")
    if cfg.swap: a.s(f"s_xor_b32 s{S_BR}, s{S_BR}, 1")
    a.s(f"s_bfe_u32 s{S_HL}, s2, 0x30003")
    a.s(f"s_lshr_b32 s{S_BG}, s2, 6")
    a.s(f"s_and_b32 s{S_NT}, s{S_HL}, 3")
    a.v(f"v_readfirstlane_b32 s{S_W}, v15")
    if cfg.el:
        a.s(f"s_lshr_b32 s{S_E}, s{S_HL}, 2")
        a.s(f"s_xor_b32 s{S_E}, s{S_E}, s{S_BG}")
        a.s(f"s_and_b32 s{S_E}, s{S_E}, 1")
        a.s(f"s_and_b32 s3, s{S_BG}, 2")
        a.s(f"s_or_b32 s3, s3, s{S_E}")
        if cfg.el == 2: a.s(f"s_mov_b32 s{S_E}, 0")
    else:
        a.s(f"s_mov_b32 s{S_E}, 0")

def build_srds(a, keys):
    a.raw("    s_waitcnt lgkmcnt(0)")
    a.s(f"s_cmp_eq_u32 s{S_BR}, 0")
    for (dst, pa, pb, key) in ((S_WQ, 14, 24, 'wq'), (S_X, 8, 18, 'x'), (S_K, 10, 20, 'k'), (S_V, 12, 22, 'v'), (S_WO, 16, 26, 'wo')):
        if key not in keys: continue
        a.s(f"s_cselect_b64 s[{dst}:{dst+1}], s[{pa}:{pa+1}], s[{pb}:{pb+1}]")
        if key in ('k', 'v'):
            a.s(f"s_mov_b32 s{dst+2}, 6291456")
            a.s(f"s_cselect_b32 s{dst+2}, 3145728, s{dst+2}")
        else:
            a.s(f"s_mov_b32 s{dst+2}, {884736 if key == 'x' else 4718592}")
        a.s(f"s_mov_b32 s{dst+3}, 0x20000")
    if 'o' in keys:
        srd(a, S_OUT, 28, 29, 1769472)
        srd(a, S_DBG, 30, 31, 256)
        srd(a, S_WS, 32, 33, WS_BYTES)

ROT = [0]
def head_order(a, p, sd):
    if p == 0: a.s(f"s_mov_b32 s{sd}, s{S_NT}")
    elif ROT[0]:
        a.s(f"s_add_u32 s{sd}, s{S_NT}, {p}"); a.s(f"s_and_b32 s{sd}, s{sd}, 3")
    else:
        a.s(f"s_cmp_le_u32 s{S_NT}, {p-1}"); a.s(f"s_cselect_b32 s{sd}, {p}, {p-1}")

_lbl = [0]
def newlabel(p):
    _lbl[0] += 1
    return f"L{p}_{_lbl[0]}"

PP = [0]
ALIGN = [0]
COAL = [0]
def poll_flags(a, vdata, vnonce, voff, soff, mask, stmp, off=0, v2=None):
    L = newlabel("poll"); X = newlabel("pollx")
    a.s(f"s_mov_b32 exec_lo, {mask}")
    a.s("s_mov_b32 exec_hi, 0")
    a.s(f"s_mov_b32 s{stmp}, 0")
    if PP[0] and v2 is not None:
        o = f" offset:{off}" if off else ""
        ld = lambda v: a.raw(f"    buffer_load_dwordx2 v[{v}:{v+1}], v{voff}, s[{S_WS}:{S_WS+3}], s{soff} offen{o} sc1")
        a.waitcnt(vm=0) if False else None
        ld(vdata)
        a.raw(f"    s_sleep {PP[0]}")
        a.label(L)
        ld(v2)
        a.s(f"s_add_u32 s{stmp}, s{stmp}, 1")
        a.raw("    s_waitcnt vmcnt(1)")
        a.raw(f"    v_cmp_ne_u64 vcc, v[{vdata}:{vdata+1}], v[{vnonce}:{vnonce+1}]")
        a.s(f"s_cbranch_vccz {X}")
        ld(vdata)
        a.s(f"s_cmp_gt_u32 s{stmp}, {SPIN_MAX}")
        a.raw("    s_waitcnt vmcnt(1)")
        a.s(f"s_cbranch_scc1 {X}")
        a.raw(f"    v_cmp_ne_u64 vcc, v[{v2}:{v2+1}], v[{vnonce}:{vnonce+1}]")
        a.s(f"s_cbranch_vccnz {L}")
        a.label(X)
        a.vm = [({vdata, vdata+1, v2, v2+1}, "poll")]
        a.s("s_mov_b64 exec, -1")
        return
    a.label(L)
    a.bload(vdata, 2, voff, S_WS, f"s{soff}", off=off, flags="sc1")
    a.s(f"s_add_u32 s{stmp}, s{stmp}, 1")
    a.s(f"s_cmp_gt_u32 s{stmp}, {SPIN_MAX}")
    a.waitcnt(vm=0)
    a.s(f"s_cbranch_scc1 {X}")
    a.v(f"v_cmp_ne_u64 vcc, v[{vdata}:{vdata+1}], v[{vnonce}:{vnonce+1}]")
    a.s(f"s_cbranch_vccnz {L}")
    a.label(X)
    a.s("s_mov_b64 exec, -1")

NVOTE = 32
CAP = 4095
def nonce_load(a, vn, vzero):
    a.bload(vn, 4, vzero, S_DBG, "0", flags="sc1", tag="nonce")
def nonce_check(a, vn, vzero):
    Lok = newlabel("nok"); Lsp = newlabel("nsp")
    a.s("s_mov_b32 s77, 0")
    a.v(f"v_readfirstlane_b32 s76, v{vn}")
    a.v(f"v_readfirstlane_b32 s75, v{vn+2}")
    a.v(f"v_readfirstlane_b32 s3, v{vn+3}")
    a.label(Lsp)
    a.s("s_cmp_lg_u32 s76, 0")
    a.s("s_cselect_b32 s76, s75, 0")
    a.s(f"s_cmp_ge_u32 s3, {8 << 16}")
    a.s("s_cselect_b32 s76, s76, 0")
    a.s(f"s_cmp_ge_u32 s76, {NVOTE << 24}")
    a.s(f"s_cbranch_scc1 {Lok}")
    a.s("s_add_u32 s77, s77, 1")
    a.s(f"s_cmp_gt_u32 s77, {SPIN_MAX}")
    a.s(f"s_cbranch_scc1 {Lok}")
    a.raw(f"    buffer_load_dwordx4 v[{vn}:{vn+3}], v{vzero}, s[{S_DBG}:{S_DBG+3}], 0 offen sc1")
    a.raw("    s_waitcnt vmcnt(0)")
    a.raw(f"    v_readfirstlane_b32 s76, v{vn}")
    a.raw(f"    v_readfirstlane_b32 s75, v{vn+2}")
    a.raw(f"    v_readfirstlane_b32 s3, v{vn+3}")
    a.raw("    s_nop 0")
    a.s(f"s_branch {Lsp}")
    a.label(Lok)
    a.v(f"v_mov_b32 v8, v{vn}")
    a.v(f"v_mov_b32 v9, v{vn+1}")
    a.s(f"s_cmp_gt_u32 s76, {(NVOTE << 24) + NVOTE*CAP}")
    a.s("s_cselect_b32 s76, 0xff, 0")
    a.s("s_xor_b32 s75, s3, s76")
    if BAL[0]:
        a.s("s_and_b32 s76, s2, 2")
        a.s("s_lshr_b32 s75, s75, s76")
        a.s("s_lshr_b32 s76, s75, 2")
        a.s("s_and_b32 s76, s76, 12")
        a.s("s_and_b32 s75, s75, 3")
        a.s("s_or_b32 s75, s75, s76")
    else:
        a.s("s_and_b32 s76, s2, 4")
        a.s("s_lshr_b32 s75, s75, s76")
    a.s(f"s_lshr_b32 s76, s75, s{S_KQ}")
    a.s("s_and_b32 s76, s76, 1")
    a.s("s_lshl_b32 s76, s76, 13")

def bsel(a, sd):
    a.s(f"s_lshr_b32 s76, s{sd}, 8")
    a.s("s_and_b32 s76, s76, 8192")
    a.s(f"s_or_b32 s{sd}, s{sd}, s76")

def apply_c(a, regs):
    for r in regs: a.s(f"s_xor_b32 s{r}, s{r}, s76")

def unit_base(a, sd, sb_w, shead):
    a.s(f"s_lshl_b32 s76, s{S_BR}, 2")
    a.s(f"s_add_u32 s76, s76, s{S_BG}")
    a.s("s_lshl_b32 s76, s76, 2")
    a.s(f"s_add_u32 s76, s76, s{sb_w}")
    a.s("s_lshl_b32 s76, s76, 5")
    a.s(f"s_add_u32 s76, s76, s{shead}")
    a.s(f"s_lshl_b32 s{sd}, s76, 15")
    bsel(a, sd)
    a.s(f"s_and_b32 s76, s{sb_w}, 1")
    a.s("s_lshl_b32 s40, s76, 12")
    a.s(f"s_and_b32 s76, s{sb_w}, 2")
    a.s("s_lshl_b32 s76, s76, 13")
    a.s("s_or_b32 s40, s40, s76")
    a.s("s_xor_b32 s41, s40, 4096")
    a.s("s_xor_b32 s42, s40, 16384")

def tail_ssetup(a, sw, half):
    a.s(f"s_lshr_b32 s90, s{S_HL}, 2")
    a.s(f"s_lshl_b32 s76, s{S_KQ}, 1")
    a.s("s_add_u32 s90, s90, s76")
    a.s(f"s_add_u32 s89, s90, {8*half}")
    a.s(f"s_lshl_b32 s91, s{S_BR}, 2")
    a.s(f"s_add_u32 s91, s91, s{S_BG}")
    a.s("s_lshl_b32 s91, s91, 2")
    a.s(f"s_add_u32 s91, s91, s{S_NT}")
    a.s("s_lshl_b32 s91, s91, 2")
    a.s(f"s_add_u32 s91, s91, s{sw}")
    a.s("s_lshr_b32 s76, s91, 3")
    a.s("s_lshl_b32 s76, s76, 14")
    a.s("s_and_b32 s77, s91, 7")
    a.s("s_lshl_b32 s77, s77, 10")
    a.s("s_add_u32 s76, s76, s77")
    a.s(f"s_add_u32 s96, s76, {WS_FLAG2}")
    a.s("s_lshl_b32 s92, s91, 18")
    a.s(f"s_add_u32 s92, s92, {WS_PART}")
    bsel(a, 92)
    a.s("s_lshl_b32 s76, s89, 14")
    a.s("s_add_u32 s88, s92, s76")
    a.s("s_lshl_b32 s76, s90, 10")
    a.s("s_add_u32 s92, s92, s76")
    a.s("s_mul_i32 s76, s89, 43")
    a.s("s_lshr_b32 s76, s76, 7")
    a.s("s_mul_i32 s77, s76, 3")
    a.s("s_sub_u32 s77, s89, s77")
    a.s("s_cmp_eq_u32 s89, 13")
    a.s("s_cselect_b32 s77, 2, s77")
    a.s("s_lshl_b32 s87, s76, 6")
    a.s(f"s_mul_i32 s77, s77, {16*2304}")
    a.s("s_add_u32 s87, s87, s77")
    a.s(f"s_lshl_b32 s77, s{S_BG}, 2")
    a.s(f"s_add_u32 s77, s77, s{sw}")
    a.s(f"s_mul_i32 s77, s77, {48*2304}")
    a.s("s_add_u32 s87, s87, s77")
    a.s(f"s_mul_i32 s77, s{S_BR}, 1152")
    a.s("s_add_u32 s87, s87, s77")
    a.s(f"s_mul_i32 s77, s{S_NT}, 288")
    a.s("s_add_u32 s87, s87, s77")
    if ALIGN[0]:
        a.s("s_cmp_lt_u32 s89, 12")
        a.s("s_cselect_b32 s77, 32, -256")
        a.s(f"s_bitcmp1_b32 s{S_NT}, 0")
        a.s("s_cselect_b32 s77, s77, 0")
        a.s("s_add_u32 s87, s87, s77")
    a.s("s_cmp_lt_u32 s89, 12")
    a.s(f"s_cselect_b32 s74, 32, {16*2304}")
    a.s("s_cmp_lt_u32 s89, 13")
    a.s(f"s_cselect_b32 s78, -1, {'0x33333333' if COAL[0] else '0xffff'}")
    a.s("s_mov_b32 s79, s78")
    for u in range(16): assert (u*43) >> 7 == u//3

def tail_vsetup(a, sw=S_W, half=0):
    o1 = ("v_and_b32 v4, 15, v1", "v_mul_u32_u24 v4, 2304, v4", "v_bfe_u32 v5, v1, 4, 1", "v_mad_u32_u24 v4, v5, s74, v4",
          "v_lshrrev_b32 v5, 5, v1", "v_lshl_add_u32 v4, v5, 4, v4")
    o2 = ("v_lshrrev_b32 v4, 2, v1", "v_mul_u32_u24 v4, 2304, v4", "v_bfe_u32 v5, v1, 1, 1", "v_mad_u32_u24 v4, v5, s74, v4",
          "v_and_b32 v5, 1, v1", "v_lshl_add_u32 v4, v5, 4, v4")
    return [lambda t=t: a.v(t) for t in (o2 if COAL[0] else o1) + (
        "v_lshlrev_b32 v3, 7, v1", f"v_lshlrev_b32 v2, 4, v1", f"v_lshl_add_u32 v2, s{sw}, 10, v2", f"v_add_u32 v2, {3*SL + half*4096}, v2")]

def loader(a, cfg):
    if cfg.lprio: a.s(f"s_setprio {cfg.lprio}")
    a.s(f"s_sub_u32 s73, s{S_W}, 4")
    def codetouch():
        a.s("s_mov_b64 exec, 7")
        a.raw("    global_load_dword v24, v25, s[6:7]"); a.pos += 1
        a.vm.append((None, "touch"))
        a.s("s_mov_b64 exec, -1")
    def ctsetup():
        if cfg.ctouch:
            L = newlabel("pc")
            a.raw("    s_getpc_b64 s[6:7]")
            a.label(L)
            a.s(f"s_sub_u32 s6, s6, {L}-{NAME}_kernel")
            a.s("s_subb_u32 s7, s7, 0")
            a.s("s_lshr_b32 s76, s2, 3")
            a.s("s_lshl_b32 s76, s76, 2")
            a.s("s_add_u32 s76, s76, s73")
            a.s("s_mul_i32 s76, s76, 384")
            a.v("v_lshlrev_b32 v25, 7, v1")
            a.v("v_add_u32 v25, s76, v25")
            a.s("s_mov_b32 s77, L_code_end-" + NAME + "_kernel-4")
            a.v("v_min_u32 v25, s77, v25")
            codetouch()
    if cfg.ct0: ctsetup()
    a.s("s_and_b32 s74, s73, 1")
    a.s("s_lshr_b32 s75, s73, 1")
    a.s(f"s_lshl_b32 s95, s{S_KQ}, 3")
    a.s(f"s_add_u32 s95, s95, s{S_HL}")
    a.v("v_lshrrev_b32 v4, 4, v1")
    a.s("s_lshl_b32 s76, s75, 2")
    a.v("v_or_b32 v5, s76, v4")
    a.v("v_bfe_u32 v6, v1, 1, 3")
    a.v("v_xor_b32 v6, v6, v5")
    a.v("v_lshlrev_b32 v6, 5, v6")
    a.v("v_and_b32 v7, 1, v1")
    a.v("v_lshl_add_u32 v6, v7, 4, v6")
    a.v("v_lshl_add_u32 v2, v4, 13, v6")
    a.s("s_lshl_b32 s76, s73, 15")
    a.s("s_lshl_b32 s77, s95, 8")
    a.s("s_add_u32 s76, s76, s77")
    a.v("v_add_u32 v2, s76, v2")
    a.v("v_lshlrev_b32 v5, 2, v4")
    a.v("v_and_b32 v6, 15, v1")
    a.v("v_xor_b32 v6, v6, v5")
    a.v("v_lshlrev_b32 v6, 4, v6")
    a.v("v_lshl_add_u32 v10, v4, 8, v6")
    a.s("s_lshl_b32 s76, s74, 2")
    a.v("v_or_b32 v5, s76, v4")
    a.v("v_lshrrev_b32 v4, 3, v1")
    a.v("v_mul_u32_u24 v4, 1152, v4")
    a.v("v_and_b32 v6, 7, v1")
    a.v("v_xor_b32 v6, v6, v5")
    a.v("v_lshl_add_u32 v3, v6, 4, v4")
    a.s(f"s_mul_i32 s76, s{S_BG}, {192*1152}")
    a.s(f"s_mul_i32 s77, s74, {8*1152}")
    a.s("s_add_u32 s76, s76, s77")
    a.s(f"s_mul_i32 s77, s75, {96*1152}")
    a.s("s_add_u32 s76, s76, s77")
    a.v("v_add_u32 v3, s76, v3")
    a.s("s_lshl_b32 s78, s73, 10")
    a.s("s_mul_i32 s79, s75, 12288")
    a.s("s_lshl_b32 s77, s74, 10")
    a.s("s_add_u32 s79, s79, s77")
    a.s("s_add_u32 s79, s79, 16384")
    a.s(f"s_lshl_b32 s76, s{S_BG}, 2")
    a.s("s_add_u32 s76, s76, s73")
    a.s("s_lshl_b32 s76, s76, 5")
    a.s("s_add_u32 s76, s76, s95")
    a.s(f"s_xor_b32 s77, s{S_BR}, 1")
    a.s("s_lshr_b32 s76, s76, s77")
    a.s("s_mul_i32 s80, s76, 12288")
    a.s(f"s_mul_i32 s91, s73, {KUNIT}")
    a.s(f"s_add_u32 s91, s91, {KBASE}")
    a.s(f"s_mul_i32 s92, s73, {VUNIT}")
    if cfg.skew == 3:
        a.s(f"s_add_u32 s84, s{S_HL}, s{S_BG}")
        a.s("s_mul_i32 s85, s84, 43")
        a.s("s_lshr_b32 s85, s85, 7")
        a.s("s_mul_i32 s85, s85, 3")
        a.s("s_sub_u32 s84, s84, s85")
        a.s("s_mul_i32 s84, s84, 3")
    elif cfg.skew == 4:
        a.s(f"s_add_u32 s84, s{S_HL}, s{S_BG}")
        a.s("s_and_b32 s84, s84, 3")
        a.s("s_lshl_b32 s84, s84, 1")
    elif cfg.skew == 2:
        a.s(f"s_lshr_b32 s84, s{S_BG}, 1")
        a.s(f"s_xor_b32 s84, s84, s{S_HL}")
        a.s("s_and_b32 s84, s84, 1")
        a.s("s_lshl_b32 s84, s84, 2")
    elif cfg.skew == 9:
        a.s(f"s_lshl_b32 s84, s{S_BG}, 1")
        a.s(f"s_add_u32 s84, s84, s{S_HL}")
        a.s("s_sub_u32 s85, s84, 9")
        a.s("s_cmp_ge_u32 s84, 9")
        a.s("s_cselect_b32 s84, s85, s84")
    else:
        a.s("s_mov_b32 s84, 0")
    build_srds(a, ('x', 'wq', 'k'))
    def stage(s):
        slot = (1 + s % 3) * SL
        a.s("s_lshl_b32 s85, s84, 7")
        a.s("s_lshl_b32 s86, s84, 19")
        for i in range(4):
            a.s(f"s_add_u32 m0, s78, {slot + i*4096}")
            a.s(f"s_add_u32 s82, s86, {16*i*8192}")
            a.dma(2, S_WQ, "s82", cfg.ld_wq, tag=("st", s))
        for z in range(6):
            a.s(f"s_add_u32 m0, s79, {slot + z*2048}")
            a.s(f"s_add_u32 s82, s85, {z*16*1152}")
            a.dma(3, S_X, "s82", cfg.ld_x, tag=("st", s))
        a.s("s_add_u32 s84, s84, 1")
        a.s("s_cmp_eq_u32 s84, 9")
        a.s("s_cselect_b32 s84, 0, s84")
    def kvpart(g, srdb, sm0, stride, lo, hi, base=0):
        for i in range(lo, hi):
            a.s(f"s_add_u32 m0, s{sm0}, {base + i*stride}")
            a.s(f"s_add_u32 s82, s80, {i*1024}")
            a.dma(10, srdb, "s82", cfg.ld_kv, tag=("st", g))
    def setup2():
        if not cfg.ct0: ctsetup()
        build_srds(a, ('v', 'wo', 'o'))
        stamp(a, cfg, 1)
        a.v("v_mov_b32 v16, 0")
        L = newlabel("nw")
        a.s("s_add_u32 s76, s2, s73")
        a.s("s_cmp_lg_u32 s76, 0")
        a.s(f"s_cbranch_scc1 {L}")
        a.raw("    s_memrealtime s[88:89]")
        a.raw("    s_waitcnt lgkmcnt(0)")
        a.s("s_or_b32 s88, s88, 1")
        a.v("v_mov_b32 v18, s88")
        a.v("v_mov_b32 v19, s89")
        a.s("s_mov_b64 exec, 1")
        a.raw(f"    buffer_store_dwordx2 v[18:19], v16, s[{S_DBG}:{S_DBG+3}], 0 offen sc1")
        a.s("s_mov_b64 exec, -1")
        a.label(L)
    def setup3():
        a.s("s_and_b32 s76, s95, 0xfc")
        a.s("s_lshl_b32 s76, s76, 7")
        a.s("s_lshl_b32 s77, s73, 5")
        a.s("s_add_u32 s76, s76, s77")
        a.s("s_mul_i32 s76, s76, 1152")
        a.s(f"s_mul_i32 s77, s{S_NT}, 288")
        a.s("s_and_b32 s77, s77, 0xffffffc0")
        a.s("s_add_u32 s76, s76, s77")
        for y in range(5):
            a.v(f"v_add_u32 v4, {y*64}, v1")
            a.v("v_mul_u32_u24 v5, 3277, v4")
            a.v("v_lshrrev_b32 v5, 16, v5")
            a.v("v_mul_u32_u24 v6, 20, v5")
            a.v("v_sub_u32 v6, v4, v6")
            a.v("v_bfe_u32 v7, v5, 2, 1")
            a.v("v_lshlrev_b32 v7, 1, v7")
            a.v("v_xor_b32 v6, v6, v7")
            a.v("v_mul_u32_u24 v5, 1152, v5")
            a.v("v_lshl_add_u32 v5, v6, 4, v5")
            a.v(f"v_add_u32 v{26+y}, s76, v5")
        a.s("s_mul_i32 s93, s73, 10240")
        a.v("v_lshlrev_b32 v22, 7, v1")
        a.s(f"s_and_b32 s76, s{S_BG}, 1")
        a.s("s_lshl_b32 s76, s76, 2")
        a.s(f"s_add_u32 s76, s76, s{S_NT}")
        a.s("s_lshl_b32 s76, s76, 2")
        a.s("s_add_u32 s76, s76, s73")
        a.s(f"s_mul_i32 s76, s76, {8*36*128}")
        a.s(f"s_mul_i32 s94, s{S_KQ}, {1024*1152}")
        a.s("s_add_u32 s94, s94, s76")
        if cfg.tlb > 2:
            a.s("s_mov_b64 exec, 1")
            a.bload(23, 1, 16, S_K, "s80", flags="nt", tag="touch"); a.vm[-1] = (None, "touch")
            a.bload(23, 1, 16, S_V, "s80", flags="nt", tag="touch"); a.vm[-1] = (None, "touch")
            a.bload(23, 1, 26, S_WO, "0", tag="touch"); a.vm[-1] = (None, "touch")
            a.s("s_mov_b64 exec, -1")
    def touches(k):
        sh = [int(c) for c in cfg.tsh]
        assert sum(sh) == 8
        a.s("s_mov_b32 exec_lo, -1"); a.s("s_mov_b32 exec_hi, 15")
        for i in range(sum(sh[:k]), sum(sh[:k+1])):
            a.s(f"s_add_u32 s82, s94, {i*36*128}")
            a.bload(23, 1, 22, S_WO, "s82", tag="touch"); a.vm[-1] = (None, "touch")
        a.s("s_mov_b64 exec, -1")
    def wostage(p, start):
        head_order(a, p, 83)
        a.s(f"s_mul_i32 s83, s83, {128*1152}")
        for z2 in range(2):
            a.s(f"s_add_u32 s82, s83, {z2*16*1152}")
            for y in range(5):
                a.s(f"s_add_u32 m0, s93, {((start + p) % 4)*SL + z2*5120 + y*1024}")
                a.dma(26+y, S_WO, "s82", cfg.ld_wo, tag=("st", 11+p))
    cnt = [0]
    def st(i):
        if not cfg.lst: stamp(a, cfg, i)
    W = lambda g: a.wait_vm_tag(("st", g))
    def B():
        k = cnt[0] - cfg.lst
        if cfg.lst and 0 <= k < 5: stamp(a, cfg, 1 + 2*k)
        a.barrier()
        if cfg.lst and 0 <= k < 5: stamp(a, cfg, 2 + 2*k)
        cnt[0] += 1
    start = 3; vb = VBASE_L
    if cfg.kfirst == 1: kvpart(9, S_K, 91, KSTR, 0, 9)
    stage(0); setup2(); stage(1); setup3(); st(2)
    classes = [(int(c[0]), int(c[1])) for c in cfg.cls.split(",")]
    g0 = min(min(c) for c in classes)
    def middle(lo, hi, mid, tpos, nxt, k=0):
        for g in range(lo, hi):
            W(g)
            if g == 0: st(3)
            if g == 3: st(4)
            B()
            if g == 4 and cfg.ctouch > 1: codetouch()
            if g in (mid, tpos):
                while nxt <= (g + 1 if g < 6 else 8): stage(nxt); nxt += 1
                if g == mid and not cfg.kfirst: kvpart(9, S_K, 91, KSTR, 0, 9)
                if g == tpos: touches(k)
                continue
            while nxt <= g + 2: stage(nxt); nxt += 1
        return nxt
    n0 = 2
    if cfg.sw:
        stage(2); n0 = 3
        if cfg.hold:
            a.s(f"s_and_b32 s76, s3, {cfg.hold}")
            a.s("s_cbranch_scc0 L_nohold")
            a.raw("    s_waitcnt vmcnt(0)")
            a.label("L_nohold")
        else: W(cfg.sw)
    nxt = middle(0, g0, -1, -1, n0)
    saved = list(a.vm); c0 = cnt[0]
    nc = len(classes)
    if nc == 2: a.s("s_and_b32 s3, s3, 1")
    for k in range(1, nc):
        a.s(f"s_cmp_eq_u32 s3, {k}")
        a.s(f"s_cbranch_scc1 L_cls{k}")
    for k, (kp_, tp_) in enumerate(classes):
        if k:
            a.label(f"L_cls{k}")
            a.hist = []; a.vm = list(saved); cnt[0] = c0
        assert middle(g0, 7, kp_, tp_, nxt, k) == 9
        W(7)
        B()
        kvpart(9, S_K, 91, KSTR, 9, 12)
        kvpart(10, S_V, 92, VSTR, 0, cfg.v7, vb)
        a.wait_vm_tag(("st", 8))
        if cfg.kearly: a.waitcnt(vm=3 + cfg.v7)
        else: a.vm = a.vm[-(3 + cfg.v7):]
        if k < nc - 1: a.s("s_branch L_join")
    a.label("L_join")
    st(5); B()
    kvpart(10, S_V, 92, VSTR, cfg.v7, cfg.v8, vb)
    W(9); st(6); B()
    kvpart(10, S_V, 92, VSTR, cfg.v8, 12, vb)
    wostage(0, start)
    W(10); st(7); B()
    if cfg.l_wo > 1: wostage(1, start)
    W(11); st(8); B()
    if cfg.ctouch > 1: codetouch()
    if cfg.fbar: B()
    if cfg.l_wo < 2: wostage(1, start)
    if cfg.wo2 > 1: wostage(2, start)
    if cfg.wo2 > 2: wostage(3, start)
    W(12); st(9); B()
    if cfg.wo2 < 3: wostage(2 if cfg.wo2 == 1 else 3, start)
    if cfg.w3e: wostage(3, start)
    W(13); B()
    if cfg.wo2 == 1 and not cfg.w3e: wostage(3, start)
    nonce_load(a, 32, 16)
    if cfg.ctouch > 2: codetouch()
    W(14); st(10); B()
    a.v("v_lshlrev_b32 v14, 4, v1")
    a.v("v_lshlrev_b32 v11, 3, v1")
    tail_ssetup(a, 73, 0 if cfg.two else 1)
    nonce_check(a, 32, 16)
    apply_c(a, (88,))
    if cfg.two or cfg.dyn:
        a.s("s_add_u32 s96, s96, s76")
        a.s("s_lshl_b32 s76, s90, 7")
        a.s("s_add_u32 s96, s96, s76")
        a.s("s_lshl_b32 s97, 1, s90")
        a.s("s_xor_b32 s97, s97, 0xff")
    for f in tail_vsetup(a, 73, 0 if cfg.two else 1): f()
    if cfg.wout: a.bload(7, 1, 4, S_OUT, "s87", flags=cfg.ld_out)
    if cfg.two or cfg.dyn: a.barrier()
    a.s("s_branch L_tail")

def xlane_reduce(a, op, regs, tmps):
    for sw in ("v_permlane32_swap_b32", "v_permlane16_swap_b32"):
        for r, t in zip(regs, tmps): a.v(f"v_mov_b32 v{t}, v{r}")
        for r, t in zip(regs, tmps): a.v(f"{sw} v{r}, v{t}")
        for r, t in zip(regs, tmps): a.v(f"{op} v{r}, v{r}, v{t}")

class Fill:
    def __init__(self): self.q = []
    def add(self, *fs): self.q.extend(fs)
    def pop(self, n):
        for _ in range(n):
            if self.q: self.q.pop(0)()
    def drain(self): self.pop(len(self.q))

def compute(a, cfg):
    ACC = 16; WF = 112; XF = 144; KF = 168; AS = 216; VF = 112
    accQ = lambda t, mt: ACC + (t*3 + mt)*4
    Wf = lambda t: WF + 4*t
    Xf = lambda par, mt: XF + par*12 + mt*4
    Kf = lambda kt, kp: KF + (kt*4 + kp)*4
    accS = lambda kt, mt: AS + (kt*3 + mt)*4
    Vf = lambda t: VF + 6*t
    accO = lambda mt, t: ACC + (mt*8 + t)*4
    aW = lambda st_, t: 216 + st_*10 + t
    aX = lambda st_, ks: 216 + st_*10 + 8 + ks
    aK = lambda kp: 252 + kp
    aV = lambda th: 2 + th
    R = [13, 15]
    ofA = lambda kp, mt: 168 + (kp*3 + mt)*4
    def ofB(kp, mt):
        f = kp*3 + mt
        return 216 + f*4 if f < 10 else 160 + (f - 10)*4
    of = lambda buf, kp, mt: ofB(kp, mt) if buf else ofA(kp, mt)
    acc2 = lambda mt, t: 16 + (mt*9 + t)*4
    Wf2 = lambda i: 124 + 4*i

    if cfg.prio: a.s(f"s_setprio {cfg.prio}")
    a.s("s_and_b32 s43, s2, 0x98")
    a.s(f"s_or_b32 s43, s43, s{S_W}")
    a.s("s_cmp_lg_u32 s43, 0")
    a.s("s_cbranch_scc1 L_np1")
    a.raw("    s_memrealtime s[52:53]")
    a.raw("    s_getreg_b32 s54, hwreg(HW_REG_XCC_ID, 2, 1)")
    a.s("s_lshr_b32 s46, s2, 6")
    a.s("s_lshl_b32 s46, s46, 3")
    a.s("s_and_b32 s47, s2, 7")
    a.s("s_add_u32 s46, s46, s47")
    a.s("s_mul_i32 s46, s46, 448")
    a.s("s_and_b32 s47, s2, 32")
    a.s("s_lshl_b32 s47, s47, 8")
    a.s("s_add_u32 s46, s46, s47")
    a.s(f"s_add_u32 s46, s46, {WS_PROBE}")
    a.raw("    s_waitcnt lgkmcnt(0)")
    a.s("s_add_u32 s44, s32, s46")
    a.s("s_addc_u32 s45, s33, 0")
    a.s("s_and_b32 s55, s52, 0x7f")
    a.s("s_lshl_b32 s55, s55, 14")
    for rep in range(cfg.nprobe):
        a.raw("    s_memtime s[48:49]")
        a.raw("    s_load_dword s46, s[44:45], s55")
        a.raw("    s_waitcnt lgkmcnt(0)")
        a.raw("    s_memtime s[50:51]")
        a.raw("    s_waitcnt lgkmcnt(0)")
    a.s("s_sub_u32 s50, s50, s48")
    a.s(f"s_min_u32 s50, s50, {CAP}")
    a.s("s_sub_u32 s51, 0, s50")
    a.s("s_lshr_b32 s47, s47, 13")
    a.s("s_cmp_eq_u32 s47, s54")
    a.s("s_cselect_b32 s50, s50, s51")
    a.s(f"s_add_u32 s50, s50, {(1 << 24) + CAP}")
    a.s("s_lshl_b32 s51, s54, s2")
    a.s(f"s_add_u32 s51, s51, {1 << 16}")
    a.s("s_cmp_lt_u32 s2, 8")
    a.s("s_cselect_b32 s51, s51, 0")
    a.label("L_np1")
    a.v("v_lshrrev_b32 v160, 4, v1")
    a.v("v_bfe_u32 v161, v1, 2, 2")
    a.v("v_and_b32 v162, 3, v1")
    a.v("v_and_b32 v163, 15, v1")
    a.v("v_and_b32 v165, 1, v160")
    a.s(f"s_mul_i32 s76, s{S_W}, {KUNIT}")
    a.s(f"s_mul_i32 s77, s{S_E}, {2*SL}")
    a.s("s_add_u32 s76, s76, s77")
    a.v(f"v_mul_u32_u24 v164, {KSTR}, v161")
    a.v("v_lshl_add_u32 v164, v162, 8, v164")
    a.v("v_lshl_add_u32 v164, v160, 3, v164")
    a.v("v_add_u32 v164, s76, v164")
    for kp in range(4):
        a.v(f"v_xor_b32 v167, {kp}, v162")
        a.v(f"v_lshl_add_u32 v{aK(kp)}, v167, 6, v164")
    a.v("v_lshl_add_u32 v164, v160, 3, v161")
    a.v("v_lshlrev_b32 v164, 8, v164")
    a.v("v_lshl_or_b32 v166, v165, 2, v161")
    a.v("v_lshl_add_u32 v164, v166, 5, v164")
    a.v("v_lshl_add_u32 v164, v162, 3, v164")
    a.v(f"v_add_u32 v{aW(0,0)}, {SL}, v164")
    for t in range(1, 8): a.v(f"v_xor_b32 v{aW(0,t)}, {32*t}, v{aW(0,0)}")
    a.v("v_lshrrev_b32 v164, 1, v163")
    a.v("v_xor_b32 v164, v164, v160")
    a.v("v_lshlrev_b32 v164, 4, v164")
    a.v("v_lshl_add_u32 v164, v163, 7, v164")
    a.s(f"s_mul_i32 s76, s{S_W}, 6144")
    a.s(f"s_add_u32 s76, s76, {16384 + SL}")
    a.v(f"v_add_u32 v{aX(0,0)}, s76, v164")
    a.v(f"v_xor_b32 v{aX(0,1)}, 64, v{aX(0,0)}")
    for i in range(10): a.v(f"v_add_u32 v{226+i}, {2*SL}, v{216+i}")
    a.s(f"s_mul_i32 s76, s{S_W}, {VUNIT}")
    a.s(f"s_cmp_eq_u32 s{S_E}, 1")
    a.s(f"s_cselect_b32 s77, 0, {VBASE_L}")
    a.s("s_add_u32 s76, s76, s77")
    a.v(f"v_mul_u32_u24 v164, {VSTR}, v160")
    a.v("v_lshl_add_u32 v164, v161, 8, v164")
    a.v("v_lshl_add_u32 v164, v162, 3, v164")
    a.v("v_add_u32 v164, s76, v164")
    for th in range(4):
        a.v(f"v_xor_b32 v167, {th}, v161")
        a.v(f"v_lshl_add_u32 v{aV(th)}, v167, 6, v164")
    a.v("v_lshl_add_u32 v164, v160, 2, v161")
    a.v("v_mul_u32_u24 v164, 320, v164")
    a.v("v_lshl_add_u32 v164, v162, 3, v164")
    a.s(f"s_cmp_eq_u32 s{S_E}, 1")
    a.s(f"s_mov_b32 s76, {3*SL}")
    a.s(f"s_cselect_b32 s76, {2*SL}, s76")
    a.s(f"s_mov_b32 s93, {SL}")
    a.s(f"s_cselect_b32 s93, s93, {(-3*SL) & 0xffffffff}")
    a.s(f"s_mov_b32 s94, {SL}")
    a.s(f"s_cselect_b32 s94, {(-3*SL) & 0xffffffff}, s94")
    a.s(f"s_mov_b32 s95, {SL}")
    a.v("v_add_u32 v164, s76, v164")
    if cfg.align:
        a.s(f"s_and_b32 s77, s{S_NT}, 1")
        a.s("s_cselect_b32 s76, 1, 8")
        a.v("v_xor_b32 v167, s76, v165")
        a.v("v_lshl_add_u32 v12, v167, 5, v164")
        a.s("s_lshl_b32 s77, s77, 6")
        a.v("v_add_u32 v164, s77, v164")
        a.v(f"v_lshl_add_u32 v{R[0]}, v165, 5, v164")
        a.v("v_xor_b32 v167, 1, v165")
        a.v(f"v_lshl_add_u32 v{R[1]}, v167, 5, v164")
    else:
        a.s(f"s_and_b32 s77, s{S_NT}, 1")
        a.v("v_xor_b32 v167, s77, v165")
        a.v(f"v_lshl_add_u32 v{R[0]}, v167, 5, v164")
        a.s("s_add_u32 s77, s77, 1")
        a.v("v_xor_b32 v167, s77, v165")
        a.v(f"v_lshl_add_u32 v{R[1]}, v167, 5, v164")
    a.v("v_lshlrev_b32 v14, 4, v1")
    a.v("v_lshlrev_b32 v11, 3, v1")
    a.v("v_mov_b32 v10, 0")
    a.s(f"s_lshl_b32 s81, s{S_KQ}, 3")
    a.s(f"s_and_b32 s82, s{S_HL}, 4")
    a.s("s_add_u32 s81, s81, s82")
    unit_base(a, 80, S_W, 81)
    a.s(f"s_mov_b32 s83, {f2u(SC)}")
    a.s("s_and_b32 s76, s2, 7")
    a.s("s_lshr_b32 s77, s2, 5")
    a.s("s_lshl_b32 s77, s77, 3")
    a.s("s_or_b32 s76, s76, s77")
    a.s("s_lshl_b32 s76, s76, 2")
    a.s(f"s_add_u32 s76, s76, s{S_W}")
    a.s("s_lshr_b32 s77, s76, 6")
    a.s("s_lshl_b32 s77, s77, 14")
    a.s("s_and_b32 s76, s76, 63")
    a.s("s_lshl_b32 s76, s76, 7")
    a.s("s_add_u32 s76, s76, s77")
    a.s(f"s_add_u32 s84, s76, {WS_FLAG1}")
    a.s(f"s_lshl_b32 s85, 1, s{S_NT}")
    a.s("s_xor_b32 s86, s85, 15")
    tail_ssetup(a, S_W, 1 if cfg.two else 0)
    a.s("s_lshl_b32 s97, 1, s90")
    build_srds(a, ('o',))
    srd(a, S_X, 32, 33, 0)
    if cfg.warmf:
        a.v("v_mov_b32 v7, s84")
        a.s("s_xor_b32 s76, s84, 8192")
        a.raw("    v_writelane_b32 v7, s76, 1")
        a.s("s_lshl_b32 s76, s90, 7")
        a.s("s_add_u32 s76, s76, s96")
        a.raw("    v_writelane_b32 v7, s76, 2")
        a.s("s_xor_b32 s76, s76, 8192")
        a.raw("    v_writelane_b32 v7, s76, 3")
        if cfg.tlb:
            a.s("s_xor_b32 s76, s40, 20480")
            a.s("s_add_u32 s76, s76, s80")
            a.raw("    v_writelane_b32 v7, s76, 4")
            a.s(f"s_add_u32 s76, s92, {15*16384}")
            a.raw("    v_writelane_b32 v7, s76, 5")
        a.s(f"s_mov_b64 exec, {63 if cfg.tlb else 15}")
        a.bload(6, 1, 7, S_WS, "0", flags="sc1")
        if cfg.tlb > 1:
            a.s("s_mov_b64 exec, 1")
            a.bload(8, 1, 10, S_OUT, "s87", flags="nt")
        a.s("s_mov_b64 exec, -1")

    ver = {}
    def rdW(s, t, ks, h):
        def f():
            a.ds_read("ds_read_b64_tr_b16", Wf(t)+2*h, 2, aW((s % 3) >> 1, t), off=((s % 3) & 1)*SL + ks*8192 + h*1024); ver[("W", t, h)] = (s, ks)
        return f
    def rdX(s, mt, ks):
        def f():
            a.ds_read("ds_read_b128", Xf(ks, mt), 4, aX((s % 3) >> 1, ks), off=((s % 3) & 1)*SL + mt*2048); ver[("X", ks, mt)] = s
        return f
    def chk1(s, ks, t, mt):
        assert ver[("W", t, 0)] == (s, ks) and ver[("W", t, 1)] == (s, ks) and ver[("X", ks, mt)] == s, (s, ks, t, mt)
    def readK():
        for kp in range(4):
            for kt in range(3):
                for e in range(2): a.ds_read("ds_read_b64", Kf(kt, kp)+2*e, 2, aK(kp), off=kt*4*KSTR + 32*e)
    def rdK1(kt, kp, e):
        return lambda: a.ds_read("ds_read_b64", Kf(kt, kp)+2*e, 2, aK(kp), off=kt*4*KSTR + 32*e)
    def cvt(d, s0, s1):
        return lambda: a.v(f"v_cvt_pk_bf16_f32 v{d}, v{s0}, v{s1}")
    def cvtQ(kp):
        out = []
        for mt in range(3):
            r = accQ(2*kp, mt); s_ = accQ(2*kp+1, mt)
            out += [cvt(r, r, r+1), cvt(r+1, r+2, r+3), cvt(r+2, s_, s_+1), cvt(r+3, s_+2, s_+3)]
        return out
    F = Fill()
    a.s("s_cmp_lg_u32 s43, 0")
    a.s("s_cbranch_scc1 L_np2")
    a.v("v_mov_b32 v112, s50")
    a.v("v_mov_b32 v113, s51")
    a.s("s_mov_b64 exec, 1")
    a.raw(f"    buffer_atomic_add_x2 v[112:113], v10, s[{S_DBG}:{S_DBG+3}], 0 offen offset:8 sc1")
    a.s("s_mov_b64 exec, -1")
    a.nop(2)
    a.label("L_np2")
    stamp(a, cfg, 1)
    if cfg.el == 1:
        a.s(f"s_cmp_eq_u32 s{S_E}, 0")
        a.s("s_cbranch_scc1 L_noK0")
        a.barrier()
        readK()
        a.waitcnt(lgkm=0)
        a.barrier()
        a.label("L_noK0")
    a.barrier()
    stamp(a, cfg, 2)
    for mt in range(3): rdX(0, mt, 0)()
    for t in range(8): rdW(0, t, 0, 0)(); rdW(0, t, 0, 1)()
    BP = cfg.barpos
    for s in range(9):
        last = s == 8
        for mt in range(3): F.add(rdX(s, mt, 1))
        for t in range(8):
            if last and cfg.kearly: F.add(rdK1(t >> 2, t & 3, 0), rdK1(t >> 2, t & 3, 1))
            for mt in (range(3) if (t % 2 == 0 or not cfg.serp) else (2, 1, 0)):
                chk1(s, 0, t, mt)
                a.mfma(accQ(t, mt), Wf(t), Xf(0, mt), None if s == 0 else accQ(t, mt))
                for b in range(cfg.x_burn): a.raw(f"    v_mad_u32_u24 v{236+(t*3+mt+b*5)%16}, v{Wf(t)+mt}, v{Xf(0,mt)+b}, v{236+(t*3+mt+b*5+7)%16}")
                F.pop(2 if len(F.q) > 2 else 1)
            if cfg.x_pace and s < cfg.pst: a.nop(cfg.x_pace)
            if s < cfg.strict and t % cfg.smod == 0: a.waitcnt(lgkm=0)
            F.add(rdW(s, t, 1, 0), rdW(s, t, 1, 1))
        for t in range(8):
            for mt in (range(3) if (t % 2 == 0 or not cfg.serp) else (2, 1, 0)):
                chk1(s, 1, t, mt)
                a.mfma(accQ(t, mt), Wf(t), Xf(1, mt), accQ(t, mt))
                for b in range(cfg.x_burn): a.raw(f"    v_mad_u32_u24 v{236+(t*3+mt+b*5)%16}, v{Wf(t)+mt}, v{Xf(1,mt)+b}, v{236+(t*3+mt+b*5+7)%16}")
                F.pop(2 if len(F.q) > 2 else 1)
            if cfg.x_pace and s < cfg.pst and cfg.pst < 9: a.nop(cfg.x_pace)
            if s < cfg.strict and t != BP - 1 and t % cfg.smod == 0: a.waitcnt(lgkm=0)
            if last:
                if t in (3, 5, 7): F.add(*cvtQ((t - 3)//2))
            elif t == BP - 1:
                assert not F.q
                a.waitcnt(lgkm=0)
                a.barrier()
                F.add(rdX(s+1, 0, 0), rdW(s+1, 0, 0, 0), rdW(s+1, 0, 0, 1), rdX(s+1, 1, 0), rdX(s+1, 2, 0))
                for tt in range(1, BP): F.add(rdW(s+1, tt, 0, 0), rdW(s+1, tt, 0, 1))
            elif t >= BP:
                F.add(rdW(s+1, t, 0, 0), rdW(s+1, t, 0, 1))
    a.waitcnt(lgkm=0)
    a.barrier()
    stamp(a, cfg, 3)
    if not cfg.att:
        a.bload(8, 2, 10, S_DBG, "0", flags="sc1", tag="nonce")
        if cfg.el:
            a.s(f"s_cmp_eq_u32 s{S_E}, 1")
            a.s("s_cbranch_scc1 L_noK1")
        readK()
        if cfg.el: a.label("L_noK1")
        F.drain()
        for f in cvtQ(3): f()
        for kp in range(4):
            for kt in range(3):
                for mt in range(3):
                    a.mfma(accS(kt, mt), Kf(kt, kp), accQ(2*kp, mt), None if kp == 0 else accS(kt, mt))
        MX = [160, 161, 162]; TM = [163, 164, 165]; SM = [166, 167, 6]
        vals = lambda mt: [accS(kt, mt) + r for kt in range(3) for r in range(4)]
        for mt in range(3):
            v = vals(mt); a.v(f"v_max3_f32 v{MX[mt]}, v{v[0]}, v{v[1]}, v{v[2]}")
        for i in range(3, 11, 2):
            for mt in range(3):
                v = vals(mt); a.v(f"v_max3_f32 v{MX[mt]}, v{MX[mt]}, v{v[i]}, v{v[i+1]}")
        for mt in range(3):
            v = vals(mt); a.v(f"v_max_f32 v{MX[mt]}, v{MX[mt]}, v{v[11]}")
        xlane_reduce(a, "v_max_f32", MX, TM)
        for mt in range(3): a.v(f"v_mul_f32 v{MX[mt]}, s83, v{MX[mt]}")
        for i in range(12):
            for mt in range(3):
                v = vals(mt); a.v(f"v_fma_f32 v{v[i]}, v{v[i]}, s83, -v{MX[mt]}")
        for i in range(12):
            for mt in range(3):
                v = vals(mt); a.v(f"v_exp_f32 v{v[i]}, v{v[i]}")
        for mt in range(3):
            v = vals(mt); a.v(f"v_add_f32 v{SM[mt]}, v{v[0]}, v{v[1]}")
        for i in range(2, 12):
            for mt in range(3):
                v = vals(mt); a.v(f"v_add_f32 v{SM[mt]}, v{SM[mt]}, v{v[i]}")
        xlane_reduce(a, "v_add_f32", SM, TM)
        for mt in range(3): a.v(f"v_rcp_f32 v{SM[mt]}, v{SM[mt]}")
        a.barrier()
        for t in range(8):
            for kt in range(3):
                F.add(lambda t=t, kt=kt: a.ds_read("ds_read_b64_tr_b16", Vf(t) + 2*kt, 2, aV(t >> 1), off=kt*4*VSTR + (t & 1)*32))
        for i in range(12):
            for mt in range(3):
                v = vals(mt); a.v(f"v_mul_f32 v{v[i]}, v{v[i]}, v{SM[mt]}"); F.pop(1)
        for mt in range(3):
            r0, r1, r2 = accS(0, mt), accS(1, mt), accS(2, mt)
            for f in (cvt(r0, r0, r0+1), cvt(r0+1, r0+2, r0+3), cvt(r0+2, r1, r1+1), cvt(r0+3, r1+2, r1+3), cvt(r2, r2, r2+1), cvt(r2+1, r2+2, r2+3)): f()
        stamp(a, cfg, 4)
        nonce_check(a, 10)
        a.s(f"s_lshl_b32 s81, s{S_NT}, 15")
        a.s("s_add_u32 s81, s81, s80")
        def ostore(mt, kp):
            r = accO(mt, 2*kp); s_ = accO(mt, 2*kp+1); d = ofA(kp, mt); f = kp*3 + mt
            return [cvt(d, r, r+1), cvt(d+1, r+2, r+3), cvt(d+2, s_, s_+1), cvt(d+3, s_+2, s_+3),
                    lambda: a.s(f"s_add_u32 s82, s81, s{40 + f//4}"),
                    lambda: a.bstore(d, 4, 14, S_WS, "s82", off=(f % 4)*1024, flags="sc1")]
        for mt in range(3):
            for t in range(8):
                a.mfma(accO(mt, t), Vf(t), accS(0, mt), None); F.pop(2)
            for t in range(8):
                a.mfma(accO(mt, t), Vf(t)+4, accS(2, mt), accO(mt, t), k=16); F.pop(2)
            for kp in range(4): F.add(*ostore(mt, kp))
    else:
        assert cfg.el == 2 and cfg.l_kpos >= 0 and cfg.c_kpos >= 0
        if not cfg.kearly:
            for kp in range(4):
                for kt in range(2): rdK1(kt, kp, 0)(); rdK1(kt, kp, 1)()
        for kp in range(4): rdK1(2, kp, 0)(); rdK1(2, kp, 1)()
        nonce_load(a, 252, 10)
        F.add(*cvtQ(3))
        order = [(kp, kt, mt) for kp in range(3) for kt in range(2) for mt in range(3)]
        order += [(kp, 2, mt) for kp in range(3) for mt in range(3)]
        order += [(3, kt, mt) for mt in range(3) for kt in range(3)]
        for n, (kp, kt, mt) in enumerate(order):
            if kp == 2 and n == 12: F.pop(max(0, len(F.q) - 12))
            if kp == 3: F.drain()
            a.mfma(accS(kt, mt), Kf(kt, kp), accQ(2*kp, mt), None if kp == 0 else accS(kt, mt)); F.pop(2)
        MX = [160, 162, 164]; TM = [161, 163, 165]; SM = [166, 6, 112]
        vals = lambda mt: [accS(kt, mt) + r for kt in range(3) for r in range(4)]
        for mt in range(3):
            v = vals(mt); a.v(f"v_max3_f32 v{MX[mt]}, v{v[0]}, v{v[1]}, v{v[2]}")
        for i in range(3, 11, 2):
            for mt in range(3):
                v = vals(mt); a.v(f"v_max3_f32 v{MX[mt]}, v{MX[mt]}, v{v[i]}, v{v[i+1]}")
        for mt in range(3):
            v = vals(mt); a.v(f"v_max_f32 v{MX[mt]}, v{MX[mt]}, v{v[11]}")
        xlane_reduce(a, "v_max_f32", MX, TM)
        for mt in range(3): a.v(f"v_mul_f32 v{MX[mt]}, s83, v{MX[mt]}")
        for i in range(0, 12, 2):
            for mt in range(3):
                v = vals(mt)
                a.v(f"v_pk_fma_f32 v[{v[i]}:{v[i]+1}], v[{v[i]}:{v[i]+1}], s[82:83], v[{MX[mt]}:{MX[mt]+1}] op_sel:[0,1,0] op_sel_hi:[1,1,0] neg_lo:[0,0,1] neg_hi:[0,0,1]")
        for i in range(12):
            for mt in range(3):
                v = vals(mt); a.v(f"v_exp_f32 v{v[i]}, v{v[i]}")
        for mt in range(3):
            v = vals(mt); a.v(f"v_pk_add_f32 v[{SM[mt]}:{SM[mt]+1}], v[{v[0]}:{v[1]}], v[{v[2]}:{v[3]}]")
        for i in range(4, 12, 2):
            for mt in range(3):
                v = vals(mt); a.v(f"v_pk_add_f32 v[{SM[mt]}:{SM[mt]+1}], v[{SM[mt]}:{SM[mt]+1}], v[{v[i]}:{v[i]+1}]")
        for mt in range(3): a.v(f"v_add_f32 v{MX[mt]}, v{SM[mt]}, v{SM[mt]+1}")
        xlane_reduce(a, "v_add_f32", MX, TM)
        for mt in range(3): a.v(f"v_rcp_f32 v{MX[mt]}, v{MX[mt]}")
        for i in range(0, 12, 2):
            for mt in range(3):
                v = vals(mt); a.v(f"v_pk_mul_f32 v[{v[i]}:{v[i]+1}], v[{v[i]}:{v[i]+1}], v[{MX[mt]}:{MX[mt]+1}] op_sel_hi:[1,0]")
        for mt in range(3):
            r0, r1, r2 = accS(0, mt), accS(1, mt), accS(2, mt)
            for f in (cvt(r0, r0, r0+1), cvt(r0+1, r0+2, r0+3), cvt(r0+2, r1, r1+1), cvt(r0+3, r1+2, r1+3), cvt(r2, r2, r2+1), cvt(r2+1, r2+2, r2+3)): f()
        stamp(a, cfg, 4)
        a.barrier()
        for t in range(8):
            for kt in range(3):
                a.ds_read("ds_read_b64_tr_b16", Vf(t) + 2*kt, 2, aV(t >> 1), off=kt*4*VSTR + (t & 1)*32)
        nonce_check(a, 252, 10)
        apply_c(a, (80, 84, 88))
        a.s("s_mov_b32 s52, s76")
        a.s("s_mov_b32 s53, s75")
        for k in range(4):
            F.add(lambda k=k: a.s(f"s_bitcmp1_b32 s53, {k}") or a.s(f"s_cselect_b32 s{44+k}, 8192, 0"), lambda k=k: a.s(f"s_xor_b32 s{44+k}, s{44+k}, s92"))
        a.s(f"s_lshl_b32 s81, s{S_NT}, 15")
        a.s("s_add_u32 s81, s81, s80")
        def ostore(mt, kp):
            r = accO(mt, 2*kp); s_ = accO(mt, 2*kp+1); d = ofA(kp, mt); f = kp*3 + mt
            return [cvt(d, r, r+1), cvt(d+1, r+2, r+3), cvt(d+2, s_, s_+1), cvt(d+3, s_+2, s_+3),
                    lambda: a.s(f"s_add_u32 s82, s81, s{40 + f//4}"),
                    lambda: a.bstore(d, 4, 14, S_WS, "s82", off=(f % 4)*1024, flags="sc1")]
        for kp in range(4):
            for t in (2*kp, 2*kp+1):
                for mt in range(3):
                    a.mfma(accO(mt, t), Vf(t), accS(0, mt), None); F.pop(2)
            for t in (2*kp, 2*kp+1):
                for mt in range(3):
                    a.mfma(accO(mt, t), Vf(t)+4, accS(2, mt), accO(mt, t), k=16); F.pop(2)
            F.add(lambda: None, lambda: None, lambda: None, lambda: None)
            for mt in range(3): F.add(*ostore(mt, kp))
    F.drain()
    stamp(a, cfg, 5)
    def flagst(off):
        a.s("s_mov_b32 exec_lo, s85"); a.s("s_mov_b32 exec_hi, 0")
        a.bstore(8, 2, 11, S_WS, "s84", off=off, flags="sc1")
        a.s("s_mov_b64 exec, -1")
    def poll_issue(mask, off):
        a.s(f"s_mov_b32 exec_lo, {mask}"); a.s("s_mov_b32 exec_hi, 0")
        a.bload(6, 2, 11, S_WS, "s84", off=off, flags="sc1")
        a.s("s_mov_b64 exec, -1")
    def poll_check(mask, off):
        L = newlabel("pc"); Lb = newlabel("pcb")
        a.s(f"s_mov_b32 exec_lo, {mask}"); a.s("s_mov_b32 exec_hi, 0")
        a.v("v_cmp_ne_u64 vcc, v[6:7], v[8:9]")
        a.s("s_mov_b64 exec, -1")
        a.s(f"s_cbranch_vccnz {L}")
        a.label(Lb)
        o = Asm(); o.label(L); poll_flags(o, 6, 8, 11, 84, mask, 76, off); o.s(f"s_branch {Lb}")
        a.ool += o.L
    if cfg.split:
        a.waitcnt(vm=6)
        flagst(0)
        head_order(a, 1, 75)
        a.s("s_lshl_b32 s75, 1, s75")
    a.waitcnt(lgkm=0)
    a.barrier()
    stamp(a, cfg, 10)
    KO = lambda p, ts: [(p, kp, t) for kp in range(4) for t in ts]
    TO = lambda p, ts: [(p, kp, t) for t in ts for kp in range(4)]
    items = KO(0, range(9)) + KO(1, range(9))
    if cfg.reord: items += KO(2, range(6)) + TO(3, range(6)) + KO(2, range(6, 9)) + TO(3, range(6, 9))
    else: items += KO(2, range(9)) + TO(3, range(9))
    first3 = next(i for i, it in enumerate(items) if it[0] == 3)
    done_at = {}
    for i, (p, kp, t) in enumerate(items): done_at[t//2] = i
    NB = 9
    R3 = [12, 10]
    def rdW2(i, h):
        p, kp, t = items[i]
        def f():
            if cfg.align: a.ds_read("ds_read_b64_tr_b16", Wf2(i % NB)+2*h, 2, 12 if t == 8 else R[t & 1], off=kp*10240 + h*5120 + (0 if t == 8 else 32*(t - (t & 1))))
            else: a.ds_read("ds_read_b64_tr_b16", Wf2(i % NB)+2*h, 2, (R3 if p == 3 else R)[t & 1], off=kp*10240 + h*5120 + 32*(t - (t & 1)))
            ver[("W2", i % NB, h)] = i
        return f
    for kp in range(4):
        for mt in range(3): ver[("O", 0, kp, mt)] = 0
    def headbase(p):
        return [lambda: head_order(a, p, 81), lambda: a.s("s_lshl_b32 s81, s81, 15"), lambda: a.s("s_add_u32 s81, s81, s80")]
    def ldO(p, f, srdb=S_WS):
        kp, mt = divmod(f, 3)
        return [lambda: a.s(f"s_add_u32 s82, s81, s{40 + f//4}"),
                lambda: (a.bload(of(p & 1, kp, mt), 4, 14, srdb, "s82", off=(f % 4)*1024, flags="sc1"), ver.__setitem__(("O", p & 1, kp, mt), p))]
    def publish(mt, pair):
        if pair == 4 and mt == 1: return []
        slot = pair*3 + mt if pair < 4 else 12 + mt//2
        r = acc2(mt, 2*pair)
        out = [cvt(r, r, r+1), cvt(r+1, r+2, r+3)]
        if slot < 13:
            s_ = acc2(mt, 2*pair+1) if pair < 4 else acc2(1, 8)
            out += [cvt(r+2, s_, s_+1), cvt(r+3, s_+2, s_+3)]
        def st_():
            L = newlabel("own"); L2 = newlabel("ownb")
            a.s(f"s_cmp_eq_u32 s90, {slot & 7}")
            a.s(f"s_cbranch_scc1 {L}")
            if slot < 13: a.bstore(r, 4, 14, S_WS, "s82", flags="sc1", tag=("pub", slot))
            else: a.bstore(r, 2, 11, S_WS, "s82", flags="sc1", tag=("pub", slot))
            a.label(L2)
            a.ool += [f"{L}:", f"    ds_write_b128 v2, v[{r}:{r+3}] offset:{(slot >> 3)*4096}",
                      f"    buffer_store_dword v{r}, v14, s[{S_X}:{S_X+3}], 0 offen", f"    s_branch {L2}"]
        out += [lambda: a.s(f"s_add_u32 s82, s{44 + ((slot & 7) >> 1)}, {slot*16384}"), st_]
        return out
    def flag2(off):
        a.s("s_mov_b32 exec_lo, s97"); a.s("s_mov_b32 exec_hi, 0")
        a.bstore(8, 2, 3, S_WS, "s55", off=off, flags="sc1")
        a.s("s_mov_b64 exec, -1")
    def stageA():
        a.wait_vm_tag(("pub", 7))
        flag2(0)
        a.waitcnt(lgkm=0)
        a.barrier()
    for i in range(NB): rdW2(i, 0)(); rdW2(i, 1)()
    seen = set()
    n3 = 0
    for i, (p, kp, t) in enumerate(items):
        if i == cfg.fb:
            F.drain()
            a.waitcnt(vm=0)
            stamp(a, cfg, 6)
            flagst(0)
            if cfg.fbar: a.barrier()
        if i == 36:
            F.drain()
            if cfg.p2st: stamp(a, cfg, 1)
            a.barrier()
            if cfg.p2st: stamp(a, cfg, 2)
            for r in R + ([12] if cfg.align else []): a.v(f"v_subrev_u32 v{r}, {3*SL}, v{r}")
            for j in range(36, 36 + NB): rdW2(j, 0)(); rdW2(j, 1)()
            for f in headbase(1): f()
            poll_flags(a, 6, 8, 11, 84, "s86", 76, 0, 4)
            stamp(a, cfg, 7)
            for fr in range(12):
                for f in ldO(1, fr): f()
            F.add(*headbase(2))
            for r, r3 in ([] if cfg.align else zip(R, R3)): F.add(lambda r=r, r3=r3: a.v(f"v_add_u32 v{r3}, {2*SL}, v{r}"))
        if cfg.p2st and i in (37, 72, 108): stamp(a, cfg, {37: 3, 72: 4, 108: 5}[i])
        if p == 1 and t in (0, 3, 6): F.add(*ldO(2, kp*3 + t//3))
        if i == 54:
            F.add(*tail_vsetup(a, S_W, 0))
            F.add(*[lambda t=t: a.v(t) for t in ("v_lshrrev_b32 v5, 1, v1", "v_lshrrev_b32 v5, v5, s53", "v_and_b32 v5, 1, v5", "v_lshl_add_u32 v3, v5, 13, v3")])
            F.add(*[lambda t=t: a.s(t) for t in ("s_xor_b32 s97, s97, 0xff", "s_lshl_b32 s55, s90, 3", "s_add_u32 s55, s55, s96",
                                                  "s_lshl_b32 s76, s90, 7", "s_add_u32 s96, s96, s76", "s_add_u32 s96, s96, s52")])
        if i == 64 and cfg.wout: F.add(lambda: (a.bload(7, 1, 4, S_OUT, "s87", flags=cfg.ld_out), a.vm.__setitem__(-1, (None, "touch"))))
        if i == 72: F.add(*headbase(3))
        if i >= 72 and n3 < 12 and (cfg.reord or t < 6): F.add(*ldO(3, n3)); n3 += 1
        if cfg.two and i == done_at[2] + 1 + cfg.fa: F.drain(); stageA()
        for mt in (range(3) if (i % 2 == 0 or not cfg.serp) else (2, 1, 0)):
            assert ver[("W2", i % NB, 0)] == i and ver[("W2", i % NB, 1)] == i and ver[("O", p & 1, kp, mt)] == p, (i, p, kp, t)
            a.mfma(acc2(mt, t), Wf2(i % NB), of(p & 1, kp, mt), acc2(mt, t) if (mt, t) in seen else None)
            seen.add((mt, t))
            F.pop(3 if len(F.q) > 8 else 2 if len(F.q) > 2 else 1)
        j = i + NB
        if j < len(items) and not (p == 0 and j >= 36):
            if j in (72, first3):
                F.drain()
                a.barrier()
                if j == 72 or cfg.align:
                    assert not (cfg.align and cfg.reord)
                    for r in R + ([12] if cfg.align else []): a.v(f"v_add_u32 v{r}, {SL}, v{r}")
            F.q = [rdW2(j, 0), rdW2(j, 1)] + F.q
        for pair in range(4):
            if i == done_at[pair] + 1:
                for mt in range(3): F.add(*publish(mt, pair))
    stamp(a, cfg, 8)
    F.drain()
    for mt in range(3):
        for f in publish(mt, 4): f()
    if cfg.two and done_at[2] + 1 + cfg.fa >= len(items): stageA()
    stamp(a, cfg, 9)
    if cfg.dyn:
        a.waitcnt(lgkm=0)
        a.barrier()
    a.waitcnt(vm=0, lgkm=0)
    stamp(a, cfg, 11)
    flag2(64)
    if cfg.dyn: pass
    elif cfg.two:
        a.v("v_add_u32 v2, 4096, v2")
        a.s("s_add_u32 s96, s96, 64")
    else:
        poll_flags(a, 6, 8, 11, 96, "s97", 76, 64, 62)

def tail(a, cfg, endlabel):
    if cfg.dyn:
        a.s("s_cmp_ge_u32 s89, 14")
        a.s(f"s_cbranch_scc1 {endlabel}")
        for k in range(8):
            L = newlabel("ow")
            a.s(f"s_cmp_lg_u32 s90, {k}")
            a.s(f"s_cbranch_scc1 {L}")
            a.raw(f"    ds_read_b128 v[{16+4*k}:{19+4*k}], v2")
            a.label(L)
        if cfg.coal:
            a.v("v_and_b32 v70, 60, v1")
            a.v("v_and_b32 v71, 1, v1")
            a.v("v_lshl_add_u32 v70, v71, 7, v70")
            a.v("v_and_b32 v71, 2, v1")
            a.v("v_lshl_add_u32 v70, v71, 5, v70")
        a.s("s_add_u32 s77, s88, 4096")
        a.s("s_mov_b32 s76, 0")
        a.s("s_cmp_eq_u32 s89, 13")
        a.s("s_cbranch_scc1 L_dynh")
        def loop(o, name, half):
            o.label(name)
            o.s("s_mov_b32 exec_lo, s97"); o.s("s_mov_b32 exec_hi, 0")
            o.raw(f"    buffer_load_dwordx2 v[6:7], v11, s[{S_WS}:{S_WS+3}], s96 offen offset:64 sc1")
            o.s("s_add_u32 s76, s76, 1")
            o.raw("    s_waitcnt vmcnt(0)")
            o.raw("    v_cmp_eq_u64 vcc, v[6:7], v[8:9]")
            o.s("s_mov_b64 exec, -1")
            o.s(f"s_cmp_gt_u32 s76, {SPIN_MAX}")
            o.s("s_cselect_b32 s75, s97, vcc_lo")
            o.s("s_andn2_b32 s97, s97, s75")
            for k in range(8):
                L = newlabel("dy")
                o.s(f"s_bitcmp0_b32 s75, {k}")
                o.s(f"s_cbranch_scc1 {L}")
                so = "s88" if k < 4 else "s77"
                off = f" offset:{(k % 4)*1024}" if k % 4 else ""
                if half: o.raw(f"    buffer_load_dwordx2 v[{16+4*k}:{17+4*k}], v11, s[{S_WS}:{S_WS+3}], {so} offen{off} sc1")
                else: o.raw(f"    buffer_load_dwordx4 v[{16+4*k}:{19+4*k}], v14, s[{S_WS}:{S_WS+3}], {so} offen{off} sc1")
                o.label(L)
            o.s("s_cmp_lg_u32 s97, 0")
            o.s(f"s_cbranch_scc1 {name}")
        loop(a, "L_dyn", False)
        a.label("L_dynb")
        ool = Asm(); loop(ool, "L_dynh", True); ool.s("s_branch L_dynb"); a.ool += ool.L
        stamp(a, cfg, 12)
        a.raw("    s_waitcnt vmcnt(0) lgkmcnt(0)")
    else:
        if not cfg.two: a.barrier()
        a.s("s_cmp_ge_u32 s89, 14")
        a.s(f"s_cbranch_scc1 {endlabel}")
        if cfg.two: poll_flags(a, 6, 8, 11, 96, "s97", 76, 0, 68)
        stamp(a, cfg, 12)
        a.ds_read("ds_read_b128", 16, 4, 2)
        a.s("s_cmp_eq_u32 s89, 13")
        a.s("s_cbranch_scc1 L_half")
        def srcoff(k):
            a.s(f"s_add_u32 s76, s90, {k}")
            a.s("s_and_b32 s76, s76, 7")
            a.s("s_lshl_b32 s76, s76, 10")
            a.s("s_add_u32 s76, s76, s88")
        for k in range(1, 8):
            srcoff(k); a.bload(16 + 4*k, 4, 14, S_WS, "s76", flags="sc1")
        a.label("L_halfb")
        ool = Asm()
        ool.label("L_half")
        for k in range(1, 8):
            ool.s(f"s_add_u32 s76, s90, {k}"); ool.s("s_and_b32 s76, s76, 7"); ool.s("s_lshl_b32 s76, s76, 10"); ool.s("s_add_u32 s76, s76, s88")
            ool.bload(16 + 4*k, 2, 11, S_WS, "s76", flags="sc1")
        ool.s("s_branch L_halfb")
        a.ool += ool.L
    for k in range(8):
        src = 16 + 4*k
        for i in range(4):
            if k == 0:
                a.v(f"v_lshlrev_b32 v{48+2*i}, 16, v{src+i}")
                a.v(f"v_and_b32 v{49+2*i}, 0xffff0000, v{src+i}")
            else:
                a.v(f"v_lshlrev_b32 v{60+2*(i&1)}, 16, v{src+i}")
                a.v(f"v_and_b32 v{61+2*(i&1)}, 0xffff0000, v{src+i}")
                a.v(f"v_pk_add_f32 v[{48+2*i}:{49+2*i}], v[{48+2*i}:{49+2*i}], v[{60+2*(i&1)}:{61+2*(i&1)}]")
        if k == 1: stamp(a, cfg, 13)
    for i in range(4): a.v(f"v_cvt_pk_bf16_f32 v{64+i}, v{48+2*i}, v{49+2*i}")
    a.v("v_permlane16_swap_b32 v64, v66")
    a.v("v_permlane16_swap_b32 v65, v67")
    if cfg.coal:
        for i in range(4):
            a._emit(f"ds_bpermute_b32 v{64+i}, v70, v{64+i}", "ds", vw=[64+i], vrd=[70, 64+i]); a.lgkm.append(({64+i}, None))
    stamp(a, cfg, 14)
    a.s("s_mov_b64 exec, s[78:79]")
    a.bstore(64, 4, 4, S_OUT, "s87", flags=cfg.st_out)

def kernel(cfg):
    a = Asm()
    a.lcap = cfg.lcap
    ROT[0] = cfg.rot
    PP[0] = cfg.pp
    ALIGN[0] = cfg.align
    COAL[0] = cfg.coal
    a.ool = []
    stamp(a, cfg, 0)
    prologue(a, cfg, "L_end")
    a.s(f"s_cmp_lt_u32 s{S_W}, 4")
    a.s("s_cbranch_scc1 L_compute")
    loader(a, cfg)
    a.label("L_compute")
    a.reset_state()
    compute(a, cfg)
    a.label("L_tail")
    a.reset_state()
    a.nop(2)
    tail(a, cfg, "L_st")
    a.label("L_st")
    if cfg.x_map:
        a.s(f"s_add_u32 s76, s2, s{S_W}")
        a.s("s_cmp_lg_u32 s76, 0")
        a.s("s_cbranch_scc1 L_end")
        a.raw("    s_waitcnt vmcnt(0)")
        for i in range(40): a.raw("    s_sleep 64")
        a.s("s_mov_b64 exec, 1")
        a.v("v_mov_b32 v20, 0")
        a.s("s_mov_b32 s40, 0"); a.s(f"s_mov_b32 s41, {28672}"); a.s("s_mov_b32 s42, 0")
        a.label("L_map")
        for rep in range(2):
            a.raw("    v_mov_b32 v21, 0")
            a.raw("    s_memtime s[44:45]"); a.raw("    s_waitcnt lgkmcnt(0)")
            a.raw(f"    buffer_atomic_add v21, v20, s[{S_WS}:{S_WS+3}], s41 offen sc0 sc1")
            a.raw("    s_waitcnt vmcnt(0)")
            a.raw("    s_memtime s[46:47]"); a.raw("    s_waitcnt lgkmcnt(0)")
        a.s("s_sub_u32 s46, s46, s44")
        a.s("s_cmp_gt_u32 s46, 680")
        a.s("s_cselect_b32 s46, 1, 0")
        a.s("s_lshl_b32 s46, s46, s40")
        a.s("s_or_b32 s42, s42, s46")
        a.s(f"s_add_u32 s41, s41, {2 << 20}")
        a.s("s_add_u32 s40, s40, 1")
        a.s("s_cmp_lt_u32 s40, 24")
        a.s("s_cbranch_scc1 L_map")
        a.v("v_mov_b32 v21, s42")
        a.raw(f"    buffer_store_dword v21, v20, s[{S_DBG}:{S_DBG+3}], 0 offen offset:16")
        a.v(f"v_mov_b32 v22, s{S_WS}")
        a.raw(f"    buffer_store_dword v22, v20, s[{S_DBG}:{S_DBG+3}], 0 offen offset:20")
        a.raw("    s_getreg_b32 s42, hwreg(HW_REG_XCC_ID)")
        a.v("v_mov_b32 v23, s42")
        a.raw(f"    buffer_store_dword v23, v20, s[{S_DBG}:{S_DBG+3}], 0 offen offset:24")
    if cfg.stamps: a.waitcnt(vm=0)
    stamp(a, cfg, 15)
    stamp_out(a, cfg)
    a.label("L_end")
    a.s("s_endpgm")
    for l in a.ool: a.raw(l)
    return a

HEADER = open("cdna_kernels/" + NAME + ".s.ref").read().split("; Override launch")[0]

DOC = '''; ---------------------------------------------------------------------------------------------
; ---------------------------------------------------------------------------------------------
'''

def build(cfg):
    n = NAME + "_kernel"
    a = kernel(cfg)
    return HEADER + DOC + f"""; @launch grid=(256,1,1) block=(512,1,1) lds=163840
.amdgcn_target "amdgcn-amd-amdhsa--gfx950"
.text
.globl {n}
.p2align 8
.type {n},@function
{n}:
{a.text()}
L_code_end:
.section .rodata,"a"
.p2align 6
.amdhsa_kernel {n}
  .amdhsa_next_free_vgpr 256
  .amdhsa_next_free_sgpr 102
  .amdhsa_accum_offset 256
  .amdhsa_group_segment_fixed_size 0
  .amdhsa_kernarg_size 104
  .amdhsa_user_sgpr_count 2
  .amdhsa_user_sgpr_kernarg_segment_ptr 1
  .amdhsa_system_sgpr_workgroup_id_x 1
.end_amdhsa_kernel
"""

if __name__ == "__main__":
    cfg = Cfg()
    for kv in sys.argv[2:]:
        k, v = kv.split("=")
        cur = getattr(cfg, k)
        setattr(cfg, k, (v == "1") if isinstance(cur, bool) else int(v) if isinstance(cur, int) else v.replace("_", " "))
    open(sys.argv[1], "w").write(build(cfg))
```

```python
import sys, struct
from asm import *

NAME = "concat_heads__gqa_block_cached__mha_block_cached__near_ridge"
SL = 40960
KSTR, VSTR = 4112, 4128
KUNIT, VUNIT = 1024, 1024
KBASE = 0
VBASE_L = 12*KSTR
WS_O = 0
WS_FLAG1 = 64 << 20
WS_FLAG2 = 65 << 20
WS_PROBE = 68 << 20
WS_PART = 32 << 20
WS_STAMP = 72 << 20
WS_BYTES = 80 << 20
SC = 0.08838834764831845 * 1.4426950408889634
SPIN_MAX = 1 << 17
def f2u(x): return struct.unpack("<I", struct.pack("<f", x))[0]

S_X, S_K, S_V, S_WQ, S_WO, S_OUT, S_WS, S_DBG = 36, 40, 44, 48, 52, 56, 60, 64
S_BR, S_KQ, S_HL, S_BG, S_W, S_NT, S_E = 68, 69, 70, 71, 72, 98, 99

class Cfg:
    stamps = False; x_clk = False; lst = 0
    ld_x = ""; ld_wq = ""; ld_kv = "nt"; ld_wo = ""; st_out = "sc1"; ld_out = ""
    skew = 3; prio = 3; lcap = 8; barpos = 3
    el = 2; pollpos = 4; ctouch = 3; e_wo = 1; l_wo = 1; prog = 1; touch = 1; tpos = 5; wo2 = 1; flagpos = 1; e_vpos = 4; l_kpos = 2; f2 = 1; c_kpos = 5; c_tpos = 3; swap = 1; own = 1; warmf = 1; p2st = 0; fbar = 1; wo0late = 0; x_enc = -1; x_amp = 4; dbgwg = 0; att = 1; r1first = 1; epoll = 0; cfix = -1; nprobe = 1; split = 0; fb = 9; x_pace = 0; cls = '33,44,55,66'; v7 = 4; v8 = 12; x_burn = 0; x_map = 0; bal = 0; two = 0; reord = 0; fa = 8; serp = 1; pp = 0; tlb = 0; sw = 0; kearly = 1; kfirst = 0; hold = 0; lprio = 0; xfirst = 0; tsh = '2222'; dyn = 1; w3e = 0; o3e = 0; ct0 = 1; wout = 0; align = 1; coal = 1; hq = 0; pp1 = 0; stg = 'AABB'; nreg = 2; vb8 = 6; q1i = 20; q1c = 27; q2i = 40; q3i = 64; strict = 3; smod = 1; pst = 9; pa = 14; pac = 21; rot = 0; pb = 48

NST = 16
def streg(i): return 4 if i == 0 else 8 + 2*(i-1) if i <= 13 else {14: 34, 15: 100}[i]
def stamp(a, cfg, i):
    if cfg.stamps:
        r = streg(i)
        a.raw(f"    {'s_memtime' if cfg.x_clk else 's_memrealtime'} s[{r}:{r+1}]"); a.pos += 1
def stamp_out(a, cfg):
    if not cfg.stamps: return
    if cfg.x_enc >= 0:
        a.raw("    s_waitcnt lgkmcnt(0)")
        a.s("s_lshl_b32 s3, s2, 3")
        a.s(f"s_add_u32 s3, s3, s{S_W}")
        a.s(f"s_cmp_lg_u32 s3, {cfg.dbgwg*8}")
        a.s("s_cbranch_scc1 L_end")
        if cfg.x_enc == 99:
            a.raw("    s_getreg_b32 s76, hwreg(HW_REG_XCC_ID, 0, 4)")
            a.s("s_mul_i32 s76, s76, 1000")
        elif cfg.x_enc == 98:
            a.v("v_readfirstlane_b32 s76, v8")
            a.s("s_sub_u32 s76, s4, s76")
            a.s("s_add_u32 s76, s76, 300")
            a.s("s_mul_i32 s76, s76, 8")
        else:
            a.s(f"s_sub_u32 s76, s{streg(cfg.x_enc)}, s4")
            a.s(f"s_mul_i32 s76, s76, {cfg.x_amp}")
        a.s("s_add_u32 s76, s76, 5000")
        a.label("L_hold")
        a.raw("    s_memrealtime s[78:79]")
        a.raw("    s_waitcnt lgkmcnt(0)")
        a.s("s_sub_u32 s77, s78, s4")
        a.s("s_cmp_lt_u32 s77, s76")
        a.s("s_cbranch_scc1 L_hold")
        return
    a.raw("    s_waitcnt lgkmcnt(0)")
    a.s("s_mov_b64 exec, 1")
    a.s("s_lshl_b32 s3, s2, 3")
    a.s(f"s_add_u32 s3, s3, s{S_W}")
    a.s("s_lshl_b32 s3, s3, 6")
    a.s(f"s_add_u32 s3, s3, {WS_STAMP}")
    a.v("v_mov_b32 v1, 0")
    for i in range(NST):
        a.v(f"v_mov_b32 v2, s{streg(i)}")
        a.bstore(2, 1, 1, S_WS, "s3", off=4*i)
        a.nop(2)

def srd(a, base, lo, hi, size):
    a.s(f"s_mov_b32 s{base}, s{lo}")
    a.s(f"s_mov_b32 s{base+1}, s{hi}")
    a.s(f"s_mov_b32 s{base+2}, {size}")
    a.s(f"s_mov_b32 s{base+3}, 0x20000")

BAL = [0]
def prologue(a, cfg, endlabel):
    a.s("s_cmp_ge_u32 s2, 256")
    a.s(f"s_cbranch_scc1 {endlabel}")
    a.raw("    s_load_dwordx16 s[8:23], s[0:1], 0")
    a.raw("    s_load_dwordx8 s[24:31], s[0:1], 64")
    a.raw("    s_load_dwordx2 s[32:33], s[0:1], 96")
    a.v("v_and_b32 v1, 63, v0")
    a.v("v_lshrrev_b32 v15, 6, v0")
    BAL[0] = cfg.bal
    if cfg.bal:
        a.s(f"s_bfe_u32 s{S_KQ}, s2, 0x10002")
        a.s(f"s_lshl_b32 s{S_KQ}, s{S_KQ}, 1")
        a.s(f"s_and_b32 s{S_BR}, s2, 1")
        a.s(f"s_or_b32 s{S_KQ}, s{S_KQ}, s{S_BR}")
        a.s(f"s_bfe_u32 s{S_BR}, s2, 0x10001")
    else:
        a.s(f"s_and_b32 s{S_KQ}, s2, 3")
        a.s(f"s_bfe_u32 s{S_BR}, s2, 0x10002")
    if cfg.swap: a.s(f"s_xor_b32 s{S_BR}, s{S_BR}, 1")
    a.s(f"s_bfe_u32 s{S_HL}, s2, 0x30003")
    a.s(f"s_lshr_b32 s{S_BG}, s2, 6")
    a.s(f"s_and_b32 s{S_NT}, s{S_HL}, 3")
    a.v(f"v_readfirstlane_b32 s{S_W}, v15")
    if cfg.el:
        a.s(f"s_lshr_b32 s{S_E}, s{S_HL}, 2")
        a.s(f"s_xor_b32 s{S_E}, s{S_E}, s{S_BG}")
        a.s(f"s_and_b32 s{S_E}, s{S_E}, 1")
        a.s(f"s_and_b32 s3, s{S_BG}, 2")
        a.s(f"s_or_b32 s3, s3, s{S_E}")
        if cfg.hq: a.s(f"s_mov_b32 s3, s{S_NT}")
        if cfg.el == 2: a.s(f"s_mov_b32 s{S_E}, 0")
    else:
        a.s(f"s_mov_b32 s{S_E}, 0")

def build_srds(a, keys):
    a.raw("    s_waitcnt lgkmcnt(0)")
    a.s(f"s_cmp_eq_u32 s{S_BR}, 0")
    for (dst, pa, pb, key) in ((S_WQ, 14, 24, 'wq'), (S_X, 8, 18, 'x'), (S_K, 10, 20, 'k'), (S_V, 12, 22, 'v'), (S_WO, 16, 26, 'wo')):
        if key not in keys: continue
        a.s(f"s_cselect_b64 s[{dst}:{dst+1}], s[{pa}:{pa+1}], s[{pb}:{pb+1}]")
        if key in ('k', 'v'):
            a.s(f"s_mov_b32 s{dst+2}, 6291456")
            a.s(f"s_cselect_b32 s{dst+2}, 3145728, s{dst+2}")
        else:
            a.s(f"s_mov_b32 s{dst+2}, {884736 if key == 'x' else 4718592}")
        a.s(f"s_mov_b32 s{dst+3}, 0x20000")
    if 'o' in keys:
        srd(a, S_OUT, 28, 29, 1769472)
        srd(a, S_DBG, 30, 31, 256)
        srd(a, S_WS, 32, 33, WS_BYTES)

ROT = [0]
def head_order(a, p, sd):
    if p == 0: a.s(f"s_mov_b32 s{sd}, s{S_NT}")
    elif ROT[0]:
        a.s(f"s_add_u32 s{sd}, s{S_NT}, {p}"); a.s(f"s_and_b32 s{sd}, s{sd}, 3")
    else:
        a.s(f"s_cmp_le_u32 s{S_NT}, {p-1}"); a.s(f"s_cselect_b32 s{sd}, {p}, {p-1}")

_lbl = [0]
def newlabel(p):
    _lbl[0] += 1
    return f"L{p}_{_lbl[0]}"

PP = [0]
ALIGN = [0]
COAL = [0]
def poll_flags(a, vdata, vnonce, voff, soff, mask, stmp, off=0, v2=None):
    L = newlabel("poll"); X = newlabel("pollx")
    a.s(f"s_mov_b32 exec_lo, {mask}")
    a.s("s_mov_b32 exec_hi, 0")
    a.s(f"s_mov_b32 s{stmp}, 0")
    if PP[0] and v2 is not None:
        o = f" offset:{off}" if off else ""
        ld = lambda v: a.raw(f"    buffer_load_dwordx2 v[{v}:{v+1}], v{voff}, s[{S_WS}:{S_WS+3}], s{soff} offen{o} sc1")
        a.waitcnt(vm=0) if False else None
        ld(vdata)
        a.raw(f"    s_sleep {PP[0]}")
        a.label(L)
        ld(v2)
        a.s(f"s_add_u32 s{stmp}, s{stmp}, 1")
        a.raw("    s_waitcnt vmcnt(1)")
        a.raw(f"    v_cmp_ne_u64 vcc, v[{vdata}:{vdata+1}], v[{vnonce}:{vnonce+1}]")
        a.s(f"s_cbranch_vccz {X}")
        ld(vdata)
        a.s(f"s_cmp_gt_u32 s{stmp}, {SPIN_MAX}")
        a.raw("    s_waitcnt vmcnt(1)")
        a.s(f"s_cbranch_scc1 {X}")
        a.raw(f"    v_cmp_ne_u64 vcc, v[{v2}:{v2+1}], v[{vnonce}:{vnonce+1}]")
        a.s(f"s_cbranch_vccnz {L}")
        a.label(X)
        a.vm = [({vdata, vdata+1, v2, v2+1}, "poll")]
        a.s("s_mov_b64 exec, -1")
        return
    a.label(L)
    a.bload(vdata, 2, voff, S_WS, f"s{soff}", off=off, flags="sc1")
    a.s(f"s_add_u32 s{stmp}, s{stmp}, 1")
    a.s(f"s_cmp_gt_u32 s{stmp}, {SPIN_MAX}")
    a.waitcnt(vm=0)
    a.s(f"s_cbranch_scc1 {X}")
    a.v(f"v_cmp_ne_u64 vcc, v[{vdata}:{vdata+1}], v[{vnonce}:{vnonce+1}]")
    a.s(f"s_cbranch_vccnz {L}")
    a.label(X)
    a.s("s_mov_b64 exec, -1")

NVOTE = 32
CAP = 4095
def nonce_load(a, vn, vzero):
    a.bload(vn, 4, vzero, S_DBG, "0", flags="sc1", tag="nonce")
def nonce_check(a, vn, vzero):
    Lok = newlabel("nok"); Lsp = newlabel("nsp")
    a.s("s_mov_b32 s77, 0")
    a.v(f"v_readfirstlane_b32 s76, v{vn}")
    a.v(f"v_readfirstlane_b32 s75, v{vn+2}")
    a.v(f"v_readfirstlane_b32 s3, v{vn+3}")
    a.label(Lsp)
    a.s("s_cmp_lg_u32 s76, 0")
    a.s("s_cselect_b32 s76, s75, 0")
    a.s(f"s_cmp_ge_u32 s3, {8 << 16}")
    a.s("s_cselect_b32 s76, s76, 0")
    a.s(f"s_cmp_ge_u32 s76, {NVOTE << 24}")
    a.s(f"s_cbranch_scc1 {Lok}")
    a.s("s_add_u32 s77, s77, 1")
    a.s(f"s_cmp_gt_u32 s77, {SPIN_MAX}")
    a.s(f"s_cbranch_scc1 {Lok}")
    a.raw(f"    buffer_load_dwordx4 v[{vn}:{vn+3}], v{vzero}, s[{S_DBG}:{S_DBG+3}], 0 offen sc1")
    a.raw("    s_waitcnt vmcnt(0)")
    a.raw(f"    v_readfirstlane_b32 s76, v{vn}")
    a.raw(f"    v_readfirstlane_b32 s75, v{vn+2}")
    a.raw(f"    v_readfirstlane_b32 s3, v{vn+3}")
    a.raw("    s_nop 0")
    a.s(f"s_branch {Lsp}")
    a.label(Lok)
    a.v(f"v_mov_b32 v8, v{vn}")
    a.v(f"v_mov_b32 v9, v{vn+1}")
    a.s(f"s_cmp_gt_u32 s76, {(NVOTE << 24) + NVOTE*CAP}")
    a.s("s_cselect_b32 s76, 0xff, 0")
    a.s("s_xor_b32 s75, s3, s76")
    if BAL[0]:
        a.s("s_and_b32 s76, s2, 2")
        a.s("s_lshr_b32 s75, s75, s76")
        a.s("s_lshr_b32 s76, s75, 2")
        a.s("s_and_b32 s76, s76, 12")
        a.s("s_and_b32 s75, s75, 3")
        a.s("s_or_b32 s75, s75, s76")
    else:
        a.s("s_and_b32 s76, s2, 4")
        a.s("s_lshr_b32 s75, s75, s76")
    a.s(f"s_lshr_b32 s76, s75, s{S_KQ}")
    a.s("s_and_b32 s76, s76, 1")
    a.s("s_lshl_b32 s76, s76, 13")

def bsel(a, sd):
    a.s(f"s_lshr_b32 s76, s{sd}, 8")
    a.s("s_and_b32 s76, s76, 8192")
    a.s(f"s_or_b32 s{sd}, s{sd}, s76")

def apply_c(a, regs):
    for r in regs: a.s(f"s_xor_b32 s{r}, s{r}, s76")

def unit_base(a, sd, sb_w, shead):
    a.s(f"s_lshl_b32 s76, s{S_BR}, 2")
    a.s(f"s_add_u32 s76, s76, s{S_BG}")
    a.s("s_lshl_b32 s76, s76, 2")
    a.s(f"s_add_u32 s76, s76, s{sb_w}")
    a.s("s_lshl_b32 s76, s76, 5")
    a.s(f"s_add_u32 s76, s76, s{shead}")
    a.s(f"s_lshl_b32 s{sd}, s76, 15")
    bsel(a, sd)
    a.s(f"s_and_b32 s76, s{sb_w}, 1")
    a.s("s_lshl_b32 s40, s76, 12")
    a.s(f"s_and_b32 s76, s{sb_w}, 2")
    a.s("s_lshl_b32 s76, s76, 13")
    a.s("s_or_b32 s40, s40, s76")
    a.s("s_xor_b32 s41, s40, 4096")
    a.s("s_xor_b32 s42, s40, 16384")

def tail_ssetup(a, sw, half):
    a.s(f"s_lshr_b32 s90, s{S_HL}, 2")
    a.s(f"s_lshl_b32 s76, s{S_KQ}, 1")
    a.s("s_add_u32 s90, s90, s76")
    a.s(f"s_add_u32 s89, s90, {8*half}")
    a.s(f"s_lshl_b32 s91, s{S_BR}, 2")
    a.s(f"s_add_u32 s91, s91, s{S_BG}")
    a.s("s_lshl_b32 s91, s91, 2")
    a.s(f"s_add_u32 s91, s91, s{S_NT}")
    a.s("s_lshl_b32 s91, s91, 2")
    a.s(f"s_add_u32 s91, s91, s{sw}")
    a.s("s_lshr_b32 s76, s91, 3")
    a.s("s_lshl_b32 s76, s76, 14")
    a.s("s_and_b32 s77, s91, 7")
    a.s("s_lshl_b32 s77, s77, 10")
    a.s("s_add_u32 s76, s76, s77")
    a.s(f"s_add_u32 s96, s76, {WS_FLAG2}")
    a.s("s_lshl_b32 s92, s91, 18")
    a.s(f"s_add_u32 s92, s92, {WS_PART}")
    bsel(a, 92)
    a.s("s_lshl_b32 s76, s89, 14")
    a.s("s_add_u32 s88, s92, s76")
    a.s("s_lshl_b32 s76, s90, 10")
    a.s("s_add_u32 s92, s92, s76")
    a.s("s_mul_i32 s76, s89, 43")
    a.s("s_lshr_b32 s76, s76, 7")
    a.s("s_mul_i32 s77, s76, 3")
    a.s("s_sub_u32 s77, s89, s77")
    a.s("s_cmp_eq_u32 s89, 13")
    a.s("s_cselect_b32 s77, 2, s77")
    a.s("s_lshl_b32 s87, s76, 6")
    a.s(f"s_mul_i32 s77, s77, {16*2304}")
    a.s("s_add_u32 s87, s87, s77")
    a.s(f"s_lshl_b32 s77, s{S_BG}, 2")
    a.s(f"s_add_u32 s77, s77, s{sw}")
    a.s(f"s_mul_i32 s77, s77, {48*2304}")
    a.s("s_add_u32 s87, s87, s77")
    a.s(f"s_mul_i32 s77, s{S_BR}, 1152")
    a.s("s_add_u32 s87, s87, s77")
    a.s(f"s_mul_i32 s77, s{S_NT}, 288")
    a.s("s_add_u32 s87, s87, s77")
    if ALIGN[0]:
        a.s("s_cmp_lt_u32 s89, 12")
        a.s("s_cselect_b32 s77, 32, -256")
        a.s(f"s_bitcmp1_b32 s{S_NT}, 0")
        a.s("s_cselect_b32 s77, s77, 0")
        a.s("s_add_u32 s87, s87, s77")
    a.s("s_cmp_lt_u32 s89, 12")
    a.s(f"s_cselect_b32 s74, 32, {16*2304}")
    a.s("s_cmp_lt_u32 s89, 13")
    a.s(f"s_cselect_b32 s78, -1, {'0x33333333' if COAL[0] else '0xffff'}")
    a.s("s_mov_b32 s79, s78")
    for u in range(16): assert (u*43) >> 7 == u//3

def tail_vsetup(a, sw=S_W, half=0):
    o1 = ("v_and_b32 v4, 15, v1", "v_mul_u32_u24 v4, 2304, v4", "v_bfe_u32 v5, v1, 4, 1", "v_mad_u32_u24 v4, v5, s74, v4",
          "v_lshrrev_b32 v5, 5, v1", "v_lshl_add_u32 v4, v5, 4, v4")
    o2 = ("v_lshrrev_b32 v4, 2, v1", "v_mul_u32_u24 v4, 2304, v4", "v_bfe_u32 v5, v1, 1, 1", "v_mad_u32_u24 v4, v5, s74, v4",
          "v_and_b32 v5, 1, v1", "v_lshl_add_u32 v4, v5, 4, v4")
    return [lambda t=t: a.v(t) for t in (o2 if COAL[0] else o1) + (
        "v_lshlrev_b32 v3, 7, v1", f"v_lshlrev_b32 v2, 4, v1", f"v_lshl_add_u32 v2, s{sw}, 10, v2", f"v_add_u32 v2, {3*SL + half*4096}, v2")]

def loader(a, cfg):
    if cfg.lprio: a.s(f"s_setprio {cfg.lprio}")
    a.s(f"s_sub_u32 s73, s{S_W}, 4")
    def codetouch():
        a.s("s_mov_b64 exec, 7")
        a.raw("    global_load_dword v24, v25, s[6:7]"); a.pos += 1
        a.vm.append((None, "touch"))
        a.s("s_mov_b64 exec, -1")
    def ctsetup():
        if cfg.ctouch:
            L = newlabel("pc")
            a.raw("    s_getpc_b64 s[6:7]")
            a.label(L)
            a.s(f"s_sub_u32 s6, s6, {L}-{NAME}_kernel")
            a.s("s_subb_u32 s7, s7, 0")
            a.s("s_lshr_b32 s76, s2, 3")
            a.s("s_lshl_b32 s76, s76, 2")
            a.s("s_add_u32 s76, s76, s73")
            a.s("s_mul_i32 s76, s76, 384")
            a.v("v_lshlrev_b32 v25, 7, v1")
            a.v("v_add_u32 v25, s76, v25")
            a.s("s_mov_b32 s77, L_code_end-" + NAME + "_kernel-4")
            a.v("v_min_u32 v25, s77, v25")
            codetouch()
    if cfg.ct0: ctsetup()
    a.s("s_and_b32 s74, s73, 1")
    a.s("s_lshr_b32 s75, s73, 1")
    a.s(f"s_lshl_b32 s95, s{S_KQ}, 3")
    a.s(f"s_add_u32 s95, s95, s{S_HL}")
    a.v("v_lshrrev_b32 v4, 4, v1")
    a.s("s_lshl_b32 s76, s75, 2")
    a.v("v_or_b32 v5, s76, v4")
    a.v("v_bfe_u32 v6, v1, 1, 3")
    a.v("v_xor_b32 v6, v6, v5")
    a.v("v_lshlrev_b32 v6, 5, v6")
    a.v("v_and_b32 v7, 1, v1")
    a.v("v_lshl_add_u32 v6, v7, 4, v6")
    a.v("v_lshl_add_u32 v2, v4, 13, v6")
    a.s("s_lshl_b32 s76, s73, 15")
    a.s("s_lshl_b32 s77, s95, 8")
    a.s("s_add_u32 s76, s76, s77")
    a.v("v_add_u32 v2, s76, v2")
    a.v("v_lshlrev_b32 v5, 2, v4")
    a.v("v_and_b32 v6, 15, v1")
    a.v("v_xor_b32 v6, v6, v5")
    a.v("v_lshlrev_b32 v6, 4, v6")
    a.v("v_lshl_add_u32 v10, v4, 8, v6")
    a.s("s_lshl_b32 s76, s74, 2")
    a.v("v_or_b32 v5, s76, v4")
    a.v("v_lshrrev_b32 v4, 3, v1")
    a.v("v_mul_u32_u24 v4, 1152, v4")
    a.v("v_and_b32 v6, 7, v1")
    a.v("v_xor_b32 v6, v6, v5")
    a.v("v_lshl_add_u32 v3, v6, 4, v4")
    a.s(f"s_mul_i32 s76, s{S_BG}, {192*1152}")
    a.s(f"s_mul_i32 s77, s74, {8*1152}")
    a.s("s_add_u32 s76, s76, s77")
    a.s(f"s_mul_i32 s77, s75, {96*1152}")
    a.s("s_add_u32 s76, s76, s77")
    a.v("v_add_u32 v3, s76, v3")
    a.s("s_lshl_b32 s78, s73, 10")
    a.s("s_mul_i32 s79, s75, 12288")
    a.s("s_lshl_b32 s77, s74, 10")
    a.s("s_add_u32 s79, s79, s77")
    a.s("s_add_u32 s79, s79, 16384")
    a.s(f"s_lshl_b32 s76, s{S_BG}, 2")
    a.s("s_add_u32 s76, s76, s73")
    a.s("s_lshl_b32 s76, s76, 5")
    a.s("s_add_u32 s76, s76, s95")
    a.s(f"s_xor_b32 s77, s{S_BR}, 1")
    a.s("s_lshr_b32 s76, s76, s77")
    a.s("s_mul_i32 s80, s76, 12288")
    a.s(f"s_mul_i32 s91, s73, {KUNIT}")
    a.s(f"s_add_u32 s91, s91, {KBASE}")
    a.s(f"s_mul_i32 s92, s73, {VUNIT}")
    if cfg.skew == 3:
        a.s(f"s_add_u32 s84, s{S_HL}, s{S_BG}")
        a.s("s_mul_i32 s85, s84, 43")
        a.s("s_lshr_b32 s85, s85, 7")
        a.s("s_mul_i32 s85, s85, 3")
        a.s("s_sub_u32 s84, s84, s85")
        a.s("s_mul_i32 s84, s84, 3")
    elif cfg.skew == 4:
        a.s(f"s_add_u32 s84, s{S_HL}, s{S_BG}")
        a.s("s_and_b32 s84, s84, 3")
        a.s("s_lshl_b32 s84, s84, 1")
    elif cfg.skew == 2:
        a.s(f"s_lshr_b32 s84, s{S_BG}, 1")
        a.s(f"s_xor_b32 s84, s84, s{S_HL}")
        a.s("s_and_b32 s84, s84, 1")
        a.s("s_lshl_b32 s84, s84, 2")
    elif cfg.skew == 9:
        a.s(f"s_lshl_b32 s84, s{S_BG}, 1")
        a.s(f"s_add_u32 s84, s84, s{S_HL}")
        a.s("s_sub_u32 s85, s84, 9")
        a.s("s_cmp_ge_u32 s84, 9")
        a.s("s_cselect_b32 s84, s85, s84")
    else:
        a.s("s_mov_b32 s84, 0")
    build_srds(a, ('x', 'wq', 'k'))
    def stage(s):
        slot = (1 + s % 3) * SL
        a.s("s_lshl_b32 s85, s84, 7")
        a.s("s_lshl_b32 s86, s84, 19")
        for i in range(4):
            a.s(f"s_add_u32 m0, s78, {slot + i*4096}")
            a.s(f"s_add_u32 s82, s86, {16*i*8192}")
            a.dma(2, S_WQ, "s82", cfg.ld_wq, tag=("st", s))
        for z in range(6):
            a.s(f"s_add_u32 m0, s79, {slot + z*2048}")
            a.s(f"s_add_u32 s82, s85, {z*16*1152}")
            a.dma(3, S_X, "s82", cfg.ld_x, tag=("st", s))
        a.s("s_add_u32 s84, s84, 1")
        a.s("s_cmp_eq_u32 s84, 9")
        a.s("s_cselect_b32 s84, 0, s84")
    def kvpart(g, srdb, sm0, stride, lo, hi, base=0):
        for i in range(lo, hi):
            a.s(f"s_add_u32 m0, s{sm0}, {base + i*stride}")
            a.s(f"s_add_u32 s82, s80, {i*1024}")
            a.dma(10, srdb, "s82", cfg.ld_kv, tag=("st", g))
    def setup2():
        if not cfg.ct0: ctsetup()
        build_srds(a, ('v', 'wo', 'o'))
        stamp(a, cfg, 1)
        a.v("v_mov_b32 v16, 0")
        L = newlabel("nw")
        a.s("s_add_u32 s76, s2, s73")
        a.s("s_cmp_lg_u32 s76, 0")
        a.s(f"s_cbranch_scc1 {L}")
        a.raw("    s_memrealtime s[88:89]")
        a.raw("    s_waitcnt lgkmcnt(0)")
        a.s("s_or_b32 s88, s88, 1")
        a.v("v_mov_b32 v18, s88")
        a.v("v_mov_b32 v19, s89")
        a.s("s_mov_b64 exec, 1")
        a.raw(f"    buffer_store_dwordx2 v[18:19], v16, s[{S_DBG}:{S_DBG+3}], 0 offen sc1")
        a.s("s_mov_b64 exec, -1")
        a.label(L)
    def setup3():
        a.s("s_and_b32 s76, s95, 0xfc")
        a.s("s_lshl_b32 s76, s76, 7")
        a.s("s_lshl_b32 s77, s73, 5")
        a.s("s_add_u32 s76, s76, s77")
        a.s("s_mul_i32 s76, s76, 1152")
        a.s(f"s_mul_i32 s77, s{S_NT}, 288")
        a.s("s_and_b32 s77, s77, 0xffffffc0")
        a.s("s_add_u32 s76, s76, s77")
        for y in range(5):
            a.v(f"v_add_u32 v4, {y*64}, v1")
            a.v("v_mul_u32_u24 v5, 3277, v4")
            a.v("v_lshrrev_b32 v5, 16, v5")
            a.v("v_mul_u32_u24 v6, 20, v5")
            a.v("v_sub_u32 v6, v4, v6")
            a.v("v_bfe_u32 v7, v5, 2, 1")
            a.v("v_lshlrev_b32 v7, 1, v7")
            a.v("v_xor_b32 v6, v6, v7")
            a.v("v_mul_u32_u24 v5, 1152, v5")
            a.v("v_lshl_add_u32 v5, v6, 4, v5")
            a.v(f"v_add_u32 v{26+y}, s76, v5")
        a.s("s_mul_i32 s93, s73, 10240")
        a.v("v_lshlrev_b32 v20, 4, v1")
        a.v("v_add_u32 v20, s93, v20")
        a.v("v_lshlrev_b32 v22, 7, v1")
        if cfg.hq:
            a.s("s_lshr_b32 s76, s2, 5")
        else:
            a.s(f"s_and_b32 s76, s{S_BG}, 1")
            a.s("s_lshl_b32 s76, s76, 2")
            a.s(f"s_add_u32 s76, s76, s{S_NT}")
        a.s("s_lshl_b32 s76, s76, 2")
        a.s("s_add_u32 s76, s76, s73")
        a.s(f"s_mul_i32 s76, s76, {8*36*128}")
        a.s(f"s_mul_i32 s94, s{S_KQ}, {1024*1152}")
        a.s("s_add_u32 s94, s94, s76")
        if cfg.tlb > 2:
            a.s("s_mov_b64 exec, 1")
            a.bload(23, 1, 16, S_K, "s80", flags="nt", tag="touch"); a.vm[-1] = (None, "touch")
            a.bload(23, 1, 16, S_V, "s80", flags="nt", tag="touch"); a.vm[-1] = (None, "touch")
            a.bload(23, 1, 26, S_WO, "0", tag="touch"); a.vm[-1] = (None, "touch")
            a.s("s_mov_b64 exec, -1")
    def touches(k):
        sh = [int(c) for c in cfg.tsh]
        assert sum(sh) == 8
        a.s("s_mov_b32 exec_lo, -1"); a.s("s_mov_b32 exec_hi, 15")
        for i in range(sum(sh[:k]), sum(sh[:k+1])):
            a.s(f"s_add_u32 s82, s94, {i*36*128}")
            a.bload(23, 1, 22, S_WO, "s82", tag="touch"); a.vm[-1] = (None, "touch")
        a.s("s_mov_b64 exec, -1")
    def wostage(p, start):
        head_order(a, p, 83)
        a.s(f"s_mul_i32 s83, s83, {128*1152}")
        for z2 in range(2):
            a.s(f"s_add_u32 s82, s83, {z2*16*1152}")
            for y in range(5):
                a.s(f"s_add_u32 m0, s93, {((start + p) % 4)*SL + z2*5120 + y*1024}")
                a.dma(26+y, S_WO, "s82", cfg.ld_wo, tag=("st", 11+p))
    WR = {1: 40, 2: 80}
    def woregs(p, lo=0, hi=10):
        if lo == 0:
            head_order(a, p, 83)
            a.s(f"s_mul_i32 s83, s83, {128*1152}")
            a.s(f"s_add_u32 s87, s83, {16*1152}")
        for i in range(lo, hi):
            a.bload(WR[p] + 4*i, 4, 26 + i % 5, S_WO, "s87" if i >= 5 else "s83", flags=cfg.ld_wo, tag=("wr", p))
    def wowrite(p):
        for i in range(10):
            a.ds_write("ds_write_b128", 20, WR[p] + 4*i, 4, off=((3 + p) % 4)*SL + i*1024)
    cnt = [0]
    def st(i):
        if not cfg.lst: stamp(a, cfg, i)
    W = lambda g: a.wait_vm_tag(("st", g))
    def B():
        k = cnt[0] - cfg.lst
        if cfg.lst and 0 <= k < 5: stamp(a, cfg, 1 + 2*k)
        a.barrier()
        if cfg.lst and 0 <= k < 5: stamp(a, cfg, 2 + 2*k)
        cnt[0] += 1
    start = 3; vb = VBASE_L
    if cfg.kfirst == 1: kvpart(9, S_K, 91, KSTR, 0, 9)
    stage(0); setup2(); stage(1); setup3(); st(2)
    classes = [(int(c[0]), int(c[1])) for c in cfg.cls.split(",")]
    g0 = min(min(c) for c in classes)
    def middle(lo, hi, mid, tpos, nxt, k=0):
        for g in range(lo, hi):
            W(g)
            if g == 0: st(3)
            if g == 3: st(4)
            B()
            if g == 4 and cfg.ctouch > 1: codetouch()
            if g in (mid, tpos):
                while nxt <= (g + 1 if g < 6 else 8): stage(nxt); nxt += 1
                if g == mid and not cfg.kfirst: kvpart(9, S_K, 91, KSTR, 0, 9)
                if g == tpos: touches(k)
                continue
            while nxt <= g + 2: stage(nxt); nxt += 1
        return nxt
    n0 = 2
    if cfg.sw:
        stage(2); n0 = 3
        if cfg.hold:
            a.s(f"s_and_b32 s76, s3, {cfg.hold}")
            a.s("s_cbranch_scc0 L_nohold")
            a.raw("    s_waitcnt vmcnt(0)")
            a.label("L_nohold")
        else: W(cfg.sw)
    nxt = middle(0, g0, -1, -1, n0)
    saved = list(a.vm); c0 = cnt[0]
    nc = len(classes)
    if nc == 2: a.s("s_and_b32 s3, s3, 1")
    for k in range(1, nc):
        a.s(f"s_cmp_eq_u32 s3, {k}")
        a.s(f"s_cbranch_scc1 L_cls{k}")
    for k, (kp_, tp_) in enumerate(classes):
        if k:
            a.label(f"L_cls{k}")
            a.hist = []; a.vm = list(saved); cnt[0] = c0
        assert middle(g0, 7, kp_, tp_, nxt, k) == 9
        W(7)
        B()
        kvpart(9, S_K, 91, KSTR, 9, 12)
        if not cfg.stg:
            kvpart(10, S_V, 92, VSTR, 0, cfg.v7, vb)
            a.wait_vm_tag(("st", 8))
            a.waitcnt(vm=3 + cfg.v7)
        elif cfg.stg[k] == 'A':
            kvpart(10, S_V, 92, VSTR, 0, cfg.v7, vb)
            a.waitcnt(vm=3 + cfg.v7)
            st(5); B()
            kvpart(10, S_V, 92, VSTR, cfg.v7, 12, vb)
            W(9); st(6); B()
            wostage(0, start)
            for p in range(1, cfg.nreg + 1): woregs(p)
            W(10)
        else:
            woregs(1, 0, 5)
            a.waitcnt(vm=8)
            st(5); B()
            woregs(1, 5, 10)
            if cfg.nreg > 1: woregs(2)
            kvpart(10, S_V, 92, VSTR, 0, cfg.vb8, vb)
            W(9); st(6); B()
            kvpart(10, S_V, 92, VSTR, cfg.vb8, 12, vb)
            wostage(0, start)
            W(10)
        if k < nc - 1: a.s("s_branch L_join")
    a.label("L_join")
    if cfg.stg:
        st(7); B()
        a.waitcnt(vm=0)
        wowrite(1)
        st(8); B()
        if cfg.ctouch > 1: codetouch()
        if cfg.nreg > 1: wowrite(2)
        if cfg.fbar: B()
        wostage(cfg.nreg + 1, start)
        a.waitcnt(lgkm=0)
        st(9); B()
        if cfg.nreg == 1: wostage(3, start); W(13)
        B()
    else:
        st(5); B()
        kvpart(10, S_V, 92, VSTR, cfg.v7, cfg.v8, vb)
        W(9); st(6); B()
        kvpart(10, S_V, 92, VSTR, cfg.v8, 12, vb)
        wostage(0, start)
        W(10); st(7); B()
        if cfg.l_wo > 1: wostage(1, start)
        W(11); st(8); B()
        if cfg.ctouch > 1: codetouch()
        if cfg.fbar: B()
        if cfg.l_wo < 2: wostage(1, start)
        if cfg.wo2 > 1: wostage(2, start)
        if cfg.wo2 > 2: wostage(3, start)
        W(12); st(9); B()
        if cfg.wo2 < 3: wostage(2 if cfg.wo2 == 1 else 3, start)
        if cfg.w3e: wostage(3, start)
        W(13); B()
        if cfg.wo2 == 1 and not cfg.w3e: wostage(3, start)
    nonce_load(a, 32, 16)
    if cfg.ctouch > 2: codetouch()
    W(14); st(10); B()
    a.v("v_lshlrev_b32 v14, 4, v1")
    a.v("v_lshlrev_b32 v11, 3, v1")
    tail_ssetup(a, 73, 0 if cfg.two else 1)
    nonce_check(a, 32, 16)
    apply_c(a, (88,))
    if cfg.two or cfg.dyn:
        a.s("s_add_u32 s96, s96, s76")
        a.s("s_lshl_b32 s76, s90, 7")
        a.s("s_add_u32 s96, s96, s76")
        a.s("s_lshl_b32 s97, 1, s90")
        a.s("s_xor_b32 s97, s97, 0xff")
    for f in tail_vsetup(a, 73, 0 if cfg.two else 1): f()
    if cfg.wout: a.bload(7, 1, 4, S_OUT, "s87", flags=cfg.ld_out)
    if cfg.two or cfg.dyn: a.barrier()
    a.s("s_branch L_tail")

def xlane_reduce(a, op, regs, tmps):
    for sw in ("v_permlane32_swap_b32", "v_permlane16_swap_b32"):
        for r, t in zip(regs, tmps): a.v(f"v_mov_b32 v{t}, v{r}")
        for r, t in zip(regs, tmps): a.v(f"{sw} v{r}, v{t}")
        for r, t in zip(regs, tmps): a.v(f"{op} v{r}, v{r}, v{t}")

class Fill:
    def __init__(self): self.q = []
    def add(self, *fs): self.q.extend(fs)
    def pop(self, n):
        for _ in range(n):
            if self.q: self.q.pop(0)()
    def drain(self): self.pop(len(self.q))

def compute(a, cfg):
    ACC = 16; WF = 112; XF = 144; KF = 168; AS = 216; VF = 112
    accQ = lambda t, mt: ACC + (t*3 + mt)*4
    Wf = lambda t: WF + 4*t
    Xf = lambda par, mt: XF + par*12 + mt*4
    Kf = lambda kt, kp: KF + (kt*4 + kp)*4
    accS = lambda kt, mt: AS + (kt*3 + mt)*4
    Vf = lambda t: VF + 6*t
    accO = lambda mt, t: ACC + (mt*8 + t)*4
    aW = lambda st_, t: 216 + st_*10 + t
    aX = lambda st_, ks: 216 + st_*10 + 8 + ks
    aK = lambda kp: 252 + kp
    aV = lambda th: 2 + th
    R = [13, 15]
    ofA = lambda kp, mt: 168 + (kp*3 + mt)*4
    def ofB(kp, mt):
        f = kp*3 + mt
        return 216 + f*4 if f < 10 else 160 + (f - 10)*4
    of = lambda buf, kp, mt: ofB(kp, mt) if buf else ofA(kp, mt)
    acc2 = lambda mt, t: 16 + (mt*9 + t)*4
    Wf2 = lambda i: 124 + 4*i

    if cfg.prio: a.s(f"s_setprio {cfg.prio}")
    a.s("s_and_b32 s43, s2, 0x98")
    a.s(f"s_or_b32 s43, s43, s{S_W}")
    a.s("s_cmp_lg_u32 s43, 0")
    a.s("s_cbranch_scc1 L_np1")
    a.raw("    s_memrealtime s[52:53]")
    a.raw("    s_getreg_b32 s54, hwreg(HW_REG_XCC_ID, 2, 1)")
    a.s("s_lshr_b32 s46, s2, 6")
    a.s("s_lshl_b32 s46, s46, 3")
    a.s("s_and_b32 s47, s2, 7")
    a.s("s_add_u32 s46, s46, s47")
    a.s("s_mul_i32 s46, s46, 448")
    a.s("s_and_b32 s47, s2, 32")
    a.s("s_lshl_b32 s47, s47, 8")
    a.s("s_add_u32 s46, s46, s47")
    a.s(f"s_add_u32 s46, s46, {WS_PROBE}")
    a.raw("    s_waitcnt lgkmcnt(0)")
    a.s("s_add_u32 s44, s32, s46")
    a.s("s_addc_u32 s45, s33, 0")
    a.s("s_and_b32 s55, s52, 0x7f")
    a.s("s_lshl_b32 s55, s55, 14")
    for rep in range(cfg.nprobe):
        a.raw("    s_memtime s[48:49]")
        a.raw("    s_load_dword s46, s[44:45], s55")
        a.raw("    s_waitcnt lgkmcnt(0)")
        a.raw("    s_memtime s[50:51]")
        a.raw("    s_waitcnt lgkmcnt(0)")
    a.s("s_sub_u32 s50, s50, s48")
    a.s(f"s_min_u32 s50, s50, {CAP}")
    a.s("s_sub_u32 s51, 0, s50")
    a.s("s_lshr_b32 s47, s47, 13")
    a.s("s_cmp_eq_u32 s47, s54")
    a.s("s_cselect_b32 s50, s50, s51")
    a.s(f"s_add_u32 s50, s50, {(1 << 24) + CAP}")
    a.s("s_lshl_b32 s51, s54, s2")
    a.s(f"s_add_u32 s51, s51, {1 << 16}")
    a.s("s_cmp_lt_u32 s2, 8")
    a.s("s_cselect_b32 s51, s51, 0")
    a.label("L_np1")
    a.v("v_lshrrev_b32 v160, 4, v1")
    a.v("v_bfe_u32 v161, v1, 2, 2")
    a.v("v_and_b32 v162, 3, v1")
    a.v("v_and_b32 v163, 15, v1")
    a.v("v_and_b32 v165, 1, v160")
    a.s(f"s_mul_i32 s76, s{S_W}, {KUNIT}")
    a.s(f"s_mul_i32 s77, s{S_E}, {2*SL}")
    a.s("s_add_u32 s76, s76, s77")
    a.v(f"v_mul_u32_u24 v164, {KSTR}, v161")
    a.v("v_lshl_add_u32 v164, v162, 8, v164")
    a.v("v_lshl_add_u32 v164, v160, 3, v164")
    a.v("v_add_u32 v164, s76, v164")
    for kp in range(4):
        a.v(f"v_xor_b32 v167, {kp}, v162")
        a.v(f"v_lshl_add_u32 v{aK(kp)}, v167, 6, v164")
    a.v("v_lshl_add_u32 v164, v160, 3, v161")
    a.v("v_lshlrev_b32 v164, 8, v164")
    a.v("v_lshl_or_b32 v166, v165, 2, v161")
    a.v("v_lshl_add_u32 v164, v166, 5, v164")
    a.v("v_lshl_add_u32 v164, v162, 3, v164")
    a.v(f"v_add_u32 v{aW(0,0)}, {SL}, v164")
    for t in range(1, 8): a.v(f"v_xor_b32 v{aW(0,t)}, {32*t}, v{aW(0,0)}")
    a.v("v_lshrrev_b32 v164, 1, v163")
    a.v("v_xor_b32 v164, v164, v160")
    a.v("v_lshlrev_b32 v164, 4, v164")
    a.v("v_lshl_add_u32 v164, v163, 7, v164")
    a.s(f"s_mul_i32 s76, s{S_W}, 6144")
    a.s(f"s_add_u32 s76, s76, {16384 + SL}")
    a.v(f"v_add_u32 v{aX(0,0)}, s76, v164")
    a.v(f"v_xor_b32 v{aX(0,1)}, 64, v{aX(0,0)}")
    for i in range(10): a.v(f"v_add_u32 v{226+i}, {2*SL}, v{216+i}")
    a.s(f"s_mul_i32 s76, s{S_W}, {VUNIT}")
    a.s(f"s_cmp_eq_u32 s{S_E}, 1")
    a.s(f"s_cselect_b32 s77, 0, {VBASE_L}")
    a.s("s_add_u32 s76, s76, s77")
    a.v(f"v_mul_u32_u24 v164, {VSTR}, v160")
    a.v("v_lshl_add_u32 v164, v161, 8, v164")
    a.v("v_lshl_add_u32 v164, v162, 3, v164")
    a.v("v_add_u32 v164, s76, v164")
    for th in range(4):
        a.v(f"v_xor_b32 v167, {th}, v161")
        a.v(f"v_lshl_add_u32 v{aV(th)}, v167, 6, v164")
    a.v("v_lshl_add_u32 v164, v160, 2, v161")
    a.v("v_mul_u32_u24 v164, 320, v164")
    a.v("v_lshl_add_u32 v164, v162, 3, v164")
    a.s(f"s_cmp_eq_u32 s{S_E}, 1")
    a.s(f"s_mov_b32 s76, {3*SL}")
    a.s(f"s_cselect_b32 s76, {2*SL}, s76")
    a.s(f"s_mov_b32 s93, {SL}")
    a.s(f"s_cselect_b32 s93, s93, {(-3*SL) & 0xffffffff}")
    a.s(f"s_mov_b32 s94, {SL}")
    a.s(f"s_cselect_b32 s94, {(-3*SL) & 0xffffffff}, s94")
    a.s(f"s_mov_b32 s95, {SL}")
    a.v("v_add_u32 v164, s76, v164")
    if cfg.align:
        a.s(f"s_and_b32 s77, s{S_NT}, 1")
        a.s("s_cselect_b32 s76, 1, 8")
        a.v("v_xor_b32 v167, s76, v165")
        a.v("v_lshl_add_u32 v12, v167, 5, v164")
        a.s("s_lshl_b32 s77, s77, 6")
        a.v("v_add_u32 v164, s77, v164")
        a.v(f"v_lshl_add_u32 v{R[0]}, v165, 5, v164")
        a.v("v_xor_b32 v167, 1, v165")
        a.v(f"v_lshl_add_u32 v{R[1]}, v167, 5, v164")
    else:
        a.s(f"s_and_b32 s77, s{S_NT}, 1")
        a.v("v_xor_b32 v167, s77, v165")
        a.v(f"v_lshl_add_u32 v{R[0]}, v167, 5, v164")
        a.s("s_add_u32 s77, s77, 1")
        a.v("v_xor_b32 v167, s77, v165")
        a.v(f"v_lshl_add_u32 v{R[1]}, v167, 5, v164")
    a.v("v_lshlrev_b32 v14, 4, v1")
    a.v("v_lshlrev_b32 v11, 3, v1")
    a.v("v_mov_b32 v10, 0")
    a.s(f"s_lshl_b32 s81, s{S_KQ}, 3")
    a.s(f"s_and_b32 s82, s{S_HL}, 4")
    a.s("s_add_u32 s81, s81, s82")
    unit_base(a, 80, S_W, 81)
    a.s(f"s_mov_b32 s83, {f2u(SC)}")
    a.s("s_and_b32 s76, s2, 7")
    a.s("s_lshr_b32 s77, s2, 5")
    a.s("s_lshl_b32 s77, s77, 3")
    a.s("s_or_b32 s76, s76, s77")
    a.s("s_lshl_b32 s76, s76, 2")
    a.s(f"s_add_u32 s76, s76, s{S_W}")
    a.s("s_lshr_b32 s77, s76, 6")
    a.s("s_lshl_b32 s77, s77, 14")
    a.s("s_and_b32 s76, s76, 63")
    a.s("s_lshl_b32 s76, s76, 7")
    a.s("s_add_u32 s76, s76, s77")
    a.s(f"s_add_u32 s84, s76, {WS_FLAG1}")
    a.s(f"s_lshl_b32 s85, 1, s{S_NT}")
    a.s("s_xor_b32 s86, s85, 15")
    tail_ssetup(a, S_W, 1 if cfg.two else 0)
    a.s("s_lshl_b32 s97, 1, s90")
    build_srds(a, ('o',))
    srd(a, S_X, 32, 33, 0)
    if cfg.warmf:
        a.v("v_mov_b32 v7, s84")
        a.s("s_xor_b32 s76, s84, 8192")
        a.raw("    v_writelane_b32 v7, s76, 1")
        a.s("s_lshl_b32 s76, s90, 7")
        a.s("s_add_u32 s76, s76, s96")
        a.raw("    v_writelane_b32 v7, s76, 2")
        a.s("s_xor_b32 s76, s76, 8192")
        a.raw("    v_writelane_b32 v7, s76, 3")
        if cfg.tlb:
            a.s("s_xor_b32 s76, s40, 20480")
            a.s("s_add_u32 s76, s76, s80")
            a.raw("    v_writelane_b32 v7, s76, 4")
            a.s(f"s_add_u32 s76, s92, {15*16384}")
            a.raw("    v_writelane_b32 v7, s76, 5")
        a.s(f"s_mov_b64 exec, {63 if cfg.tlb else 15}")
        a.bload(6, 1, 7, S_WS, "0", flags="sc1")
        if cfg.tlb > 1:
            a.s("s_mov_b64 exec, 1")
            a.bload(8, 1, 10, S_OUT, "s87", flags="nt")
        a.s("s_mov_b64 exec, -1")

    ver = {}
    def rdW(s, t, ks, h):
        def f():
            a.ds_read("ds_read_b64_tr_b16", Wf(t)+2*h, 2, aW((s % 3) >> 1, t), off=((s % 3) & 1)*SL + ks*8192 + h*1024); ver[("W", t, h)] = (s, ks)
        return f
    def rdX(s, mt, ks):
        def f():
            a.ds_read("ds_read_b128", Xf(ks, mt), 4, aX((s % 3) >> 1, ks), off=((s % 3) & 1)*SL + mt*2048); ver[("X", ks, mt)] = s
        return f
    def chk1(s, ks, t, mt):
        assert ver[("W", t, 0)] == (s, ks) and ver[("W", t, 1)] == (s, ks) and ver[("X", ks, mt)] == s, (s, ks, t, mt)
    def readK():
        for kp in range(4):
            for kt in range(3):
                for e in range(2): a.ds_read("ds_read_b64", Kf(kt, kp)+2*e, 2, aK(kp), off=kt*4*KSTR + 32*e)
    def rdK1(kt, kp, e):
        return lambda: a.ds_read("ds_read_b64", Kf(kt, kp)+2*e, 2, aK(kp), off=kt*4*KSTR + 32*e)
    def cvt(d, s0, s1):
        return lambda: a.v(f"v_cvt_pk_bf16_f32 v{d}, v{s0}, v{s1}")
    def cvtQ(kp):
        out = []
        for mt in range(3):
            r = accQ(2*kp, mt); s_ = accQ(2*kp+1, mt)
            out += [cvt(r, r, r+1), cvt(r+1, r+2, r+3), cvt(r+2, s_, s_+1), cvt(r+3, s_+2, s_+3)]
        return out
    F = Fill()
    a.s("s_cmp_lg_u32 s43, 0")
    a.s("s_cbranch_scc1 L_np2")
    a.v("v_mov_b32 v112, s50")
    a.v("v_mov_b32 v113, s51")
    a.s("s_mov_b64 exec, 1")
    a.raw(f"    buffer_atomic_add_x2 v[112:113], v10, s[{S_DBG}:{S_DBG+3}], 0 offen offset:8 sc1")
    a.s("s_mov_b64 exec, -1")
    a.nop(2)
    a.label("L_np2")
    stamp(a, cfg, 1)
    if cfg.el == 1:
        a.s(f"s_cmp_eq_u32 s{S_E}, 0")
        a.s("s_cbranch_scc1 L_noK0")
        a.barrier()
        readK()
        a.waitcnt(lgkm=0)
        a.barrier()
        a.label("L_noK0")
    a.barrier()
    stamp(a, cfg, 2)
    for mt in range(3): rdX(0, mt, 0)()
    for t in range(8): rdW(0, t, 0, 0)(); rdW(0, t, 0, 1)()
    BP = cfg.barpos
    for s in range(9):
        last = s == 8
        for mt in range(3): F.add(rdX(s, mt, 1))
        for t in range(8):
            if last and cfg.kearly: F.add(rdK1(t >> 2, t & 3, 0), rdK1(t >> 2, t & 3, 1))
            for mt in (range(3) if (t % 2 == 0 or not cfg.serp) else (2, 1, 0)):
                chk1(s, 0, t, mt)
                a.mfma(accQ(t, mt), Wf(t), Xf(0, mt), None if s == 0 else accQ(t, mt))
                for b in range(cfg.x_burn): a.raw(f"    v_mad_u32_u24 v{236+(t*3+mt+b*5)%16}, v{Wf(t)+mt}, v{Xf(0,mt)+b}, v{236+(t*3+mt+b*5+7)%16}")
                F.pop(2 if len(F.q) > 2 else 1)
            if cfg.x_pace and s < cfg.pst: a.nop(cfg.x_pace)
            if s < cfg.strict and t % cfg.smod == 0: a.waitcnt(lgkm=0)
            F.add(rdW(s, t, 1, 0), rdW(s, t, 1, 1))
        for t in range(8):
            for mt in (range(3) if (t % 2 == 0 or not cfg.serp) else (2, 1, 0)):
                chk1(s, 1, t, mt)
                a.mfma(accQ(t, mt), Wf(t), Xf(1, mt), accQ(t, mt))
                for b in range(cfg.x_burn): a.raw(f"    v_mad_u32_u24 v{236+(t*3+mt+b*5)%16}, v{Wf(t)+mt}, v{Xf(1,mt)+b}, v{236+(t*3+mt+b*5+7)%16}")
                F.pop(2 if len(F.q) > 2 else 1)
            if cfg.x_pace and s < cfg.pst and cfg.pst < 9: a.nop(cfg.x_pace)
            if s < cfg.strict and t != BP - 1 and t % cfg.smod == 0: a.waitcnt(lgkm=0)
            if last:
                if t in (3, 5, 7): F.add(*cvtQ((t - 3)//2))
            elif t == BP - 1:
                assert not F.q
                a.waitcnt(lgkm=0)
                a.barrier()
                F.add(rdX(s+1, 0, 0), rdW(s+1, 0, 0, 0), rdW(s+1, 0, 0, 1), rdX(s+1, 1, 0), rdX(s+1, 2, 0))
                for tt in range(1, BP): F.add(rdW(s+1, tt, 0, 0), rdW(s+1, tt, 0, 1))
            elif t >= BP:
                F.add(rdW(s+1, t, 0, 0), rdW(s+1, t, 0, 1))
    a.waitcnt(lgkm=0)
    a.barrier()
    stamp(a, cfg, 3)
    if not cfg.att:
        a.bload(8, 2, 10, S_DBG, "0", flags="sc1", tag="nonce")
        if cfg.el:
            a.s(f"s_cmp_eq_u32 s{S_E}, 1")
            a.s("s_cbranch_scc1 L_noK1")
        readK()
        if cfg.el: a.label("L_noK1")
        F.drain()
        for f in cvtQ(3): f()
        for kp in range(4):
            for kt in range(3):
                for mt in range(3):
                    a.mfma(accS(kt, mt), Kf(kt, kp), accQ(2*kp, mt), None if kp == 0 else accS(kt, mt))
        MX = [160, 161, 162]; TM = [163, 164, 165]; SM = [166, 167, 6]
        vals = lambda mt: [accS(kt, mt) + r for kt in range(3) for r in range(4)]
        for mt in range(3):
            v = vals(mt); a.v(f"v_max3_f32 v{MX[mt]}, v{v[0]}, v{v[1]}, v{v[2]}")
        for i in range(3, 11, 2):
            for mt in range(3):
                v = vals(mt); a.v(f"v_max3_f32 v{MX[mt]}, v{MX[mt]}, v{v[i]}, v{v[i+1]}")
        for mt in range(3):
            v = vals(mt); a.v(f"v_max_f32 v{MX[mt]}, v{MX[mt]}, v{v[11]}")
        xlane_reduce(a, "v_max_f32", MX, TM)
        for mt in range(3): a.v(f"v_mul_f32 v{MX[mt]}, s83, v{MX[mt]}")
        for i in range(12):
            for mt in range(3):
                v = vals(mt); a.v(f"v_fma_f32 v{v[i]}, v{v[i]}, s83, -v{MX[mt]}")
        for i in range(12):
            for mt in range(3):
                v = vals(mt); a.v(f"v_exp_f32 v{v[i]}, v{v[i]}")
        for mt in range(3):
            v = vals(mt); a.v(f"v_add_f32 v{SM[mt]}, v{v[0]}, v{v[1]}")
        for i in range(2, 12):
            for mt in range(3):
                v = vals(mt); a.v(f"v_add_f32 v{SM[mt]}, v{SM[mt]}, v{v[i]}")
        xlane_reduce(a, "v_add_f32", SM, TM)
        for mt in range(3): a.v(f"v_rcp_f32 v{SM[mt]}, v{SM[mt]}")
        a.barrier()
        for t in range(8):
            for kt in range(3):
                F.add(lambda t=t, kt=kt: a.ds_read("ds_read_b64_tr_b16", Vf(t) + 2*kt, 2, aV(t >> 1), off=kt*4*VSTR + (t & 1)*32))
        for i in range(12):
            for mt in range(3):
                v = vals(mt); a.v(f"v_mul_f32 v{v[i]}, v{v[i]}, v{SM[mt]}"); F.pop(1)
        for mt in range(3):
            r0, r1, r2 = accS(0, mt), accS(1, mt), accS(2, mt)
            for f in (cvt(r0, r0, r0+1), cvt(r0+1, r0+2, r0+3), cvt(r0+2, r1, r1+1), cvt(r0+3, r1+2, r1+3), cvt(r2, r2, r2+1), cvt(r2+1, r2+2, r2+3)): f()
        stamp(a, cfg, 4)
        nonce_check(a, 10)
        a.s(f"s_lshl_b32 s81, s{S_NT}, 15")
        a.s("s_add_u32 s81, s81, s80")
        def ostore(mt, kp):
            r = accO(mt, 2*kp); s_ = accO(mt, 2*kp+1); d = ofA(kp, mt); f = kp*3 + mt
            return [cvt(d, r, r+1), cvt(d+1, r+2, r+3), cvt(d+2, s_, s_+1), cvt(d+3, s_+2, s_+3),
                    lambda: a.s(f"s_add_u32 s82, s81, s{40 + f//4}"),
                    lambda: a.bstore(d, 4, 14, S_WS, "s82", off=(f % 4)*1024, flags="sc1")]
        for mt in range(3):
            for t in range(8):
                a.mfma(accO(mt, t), Vf(t), accS(0, mt), None); F.pop(2)
            for t in range(8):
                a.mfma(accO(mt, t), Vf(t)+4, accS(2, mt), accO(mt, t), k=16); F.pop(2)
            for kp in range(4): F.add(*ostore(mt, kp))
    else:
        assert cfg.el == 2 and cfg.l_kpos >= 0 and cfg.c_kpos >= 0
        if not cfg.kearly:
            for kp in range(4):
                for kt in range(2): rdK1(kt, kp, 0)(); rdK1(kt, kp, 1)()
        for kp in range(4): rdK1(2, kp, 0)(); rdK1(2, kp, 1)()
        nonce_load(a, 252, 10)
        F.add(*cvtQ(3))
        order = [(kp, kt, mt) for kp in range(3) for kt in range(2) for mt in range(3)]
        order += [(kp, 2, mt) for kp in range(3) for mt in range(3)]
        order += [(3, kt, mt) for mt in range(3) for kt in range(3)]
        for n, (kp, kt, mt) in enumerate(order):
            if kp == 2 and n == 12: F.pop(max(0, len(F.q) - 12))
            if kp == 3: F.drain()
            a.mfma(accS(kt, mt), Kf(kt, kp), accQ(2*kp, mt), None if kp == 0 else accS(kt, mt)); F.pop(2)
        MX = [160, 162, 164]; TM = [161, 163, 165]; SM = [166, 6, 112]
        vals = lambda mt: [accS(kt, mt) + r for kt in range(3) for r in range(4)]
        for mt in range(3):
            v = vals(mt); a.v(f"v_max3_f32 v{MX[mt]}, v{v[0]}, v{v[1]}, v{v[2]}")
        for i in range(3, 11, 2):
            for mt in range(3):
                v = vals(mt); a.v(f"v_max3_f32 v{MX[mt]}, v{MX[mt]}, v{v[i]}, v{v[i+1]}")
        for mt in range(3):
            v = vals(mt); a.v(f"v_max_f32 v{MX[mt]}, v{MX[mt]}, v{v[11]}")
        xlane_reduce(a, "v_max_f32", MX, TM)
        for mt in range(3): a.v(f"v_mul_f32 v{MX[mt]}, s83, v{MX[mt]}")
        for i in range(0, 12, 2):
            for mt in range(3):
                v = vals(mt)
                a.v(f"v_pk_fma_f32 v[{v[i]}:{v[i]+1}], v[{v[i]}:{v[i]+1}], s[82:83], v[{MX[mt]}:{MX[mt]+1}] op_sel:[0,1,0] op_sel_hi:[1,1,0] neg_lo:[0,0,1] neg_hi:[0,0,1]")
        for i in range(12):
            for mt in range(3):
                v = vals(mt); a.v(f"v_exp_f32 v{v[i]}, v{v[i]}")
        for mt in range(3):
            v = vals(mt); a.v(f"v_pk_add_f32 v[{SM[mt]}:{SM[mt]+1}], v[{v[0]}:{v[1]}], v[{v[2]}:{v[3]}]")
        for i in range(4, 12, 2):
            for mt in range(3):
                v = vals(mt); a.v(f"v_pk_add_f32 v[{SM[mt]}:{SM[mt]+1}], v[{SM[mt]}:{SM[mt]+1}], v[{v[i]}:{v[i]+1}]")
        for mt in range(3): a.v(f"v_add_f32 v{MX[mt]}, v{SM[mt]}, v{SM[mt]+1}")
        xlane_reduce(a, "v_add_f32", MX, TM)
        for mt in range(3): a.v(f"v_rcp_f32 v{MX[mt]}, v{MX[mt]}")
        for i in range(0, 12, 2):
            for mt in range(3):
                v = vals(mt); a.v(f"v_pk_mul_f32 v[{v[i]}:{v[i]+1}], v[{v[i]}:{v[i]+1}], v[{MX[mt]}:{MX[mt]+1}] op_sel_hi:[1,0]")
        for mt in range(3):
            r0, r1, r2 = accS(0, mt), accS(1, mt), accS(2, mt)
            for f in (cvt(r0, r0, r0+1), cvt(r0+1, r0+2, r0+3), cvt(r0+2, r1, r1+1), cvt(r0+3, r1+2, r1+3), cvt(r2, r2, r2+1), cvt(r2+1, r2+2, r2+3)): f()
        stamp(a, cfg, 4)
        a.barrier()
        for t in range(8):
            for kt in range(3):
                a.ds_read("ds_read_b64_tr_b16", Vf(t) + 2*kt, 2, aV(t >> 1), off=kt*4*VSTR + (t & 1)*32)
        nonce_check(a, 252, 10)
        apply_c(a, (80, 84, 88))
        a.s("s_mov_b32 s52, s76")
        a.s("s_mov_b32 s53, s75")
        for k in range(4):
            F.add(lambda k=k: a.s(f"s_bitcmp1_b32 s53, {k}") or a.s(f"s_cselect_b32 s{44+k}, 8192, 0"), lambda k=k: a.s(f"s_xor_b32 s{44+k}, s{44+k}, s92"))
        a.s(f"s_lshl_b32 s81, s{S_NT}, 15")
        a.s("s_add_u32 s81, s81, s80")
        def ostore(mt, kp):
            r = accO(mt, 2*kp); s_ = accO(mt, 2*kp+1); d = ofA(kp, mt); f = kp*3 + mt
            return [cvt(d, r, r+1), cvt(d+1, r+2, r+3), cvt(d+2, s_, s_+1), cvt(d+3, s_+2, s_+3),
                    lambda: a.s(f"s_add_u32 s82, s81, s{40 + f//4}"),
                    lambda: a.bstore(d, 4, 14, S_WS, "s82", off=(f % 4)*1024, flags="sc1")]
        for kp in range(4):
            for t in (2*kp, 2*kp+1):
                for mt in range(3):
                    a.mfma(accO(mt, t), Vf(t), accS(0, mt), None); F.pop(2)
            for t in (2*kp, 2*kp+1):
                for mt in range(3):
                    a.mfma(accO(mt, t), Vf(t)+4, accS(2, mt), accO(mt, t), k=16); F.pop(2)
            F.add(lambda: None, lambda: None, lambda: None, lambda: None)
            for mt in range(3): F.add(*ostore(mt, kp))
    F.drain()
    stamp(a, cfg, 5)
    def flagst(off):
        a.s("s_mov_b32 exec_lo, s85"); a.s("s_mov_b32 exec_hi, 0")
        a.bstore(8, 2, 11, S_WS, "s84", off=off, flags="sc1")
        a.s("s_mov_b64 exec, -1")
    def poll_issue(mask, off):
        a.s(f"s_mov_b32 exec_lo, {mask}"); a.s("s_mov_b32 exec_hi, 0")
        a.bload(6, 2, 11, S_WS, "s84", off=off, flags="sc1")
        a.s("s_mov_b64 exec, -1")
    def poll_check(mask, off):
        L = newlabel("pc"); Lb = newlabel("pcb")
        a.s(f"s_mov_b32 exec_lo, {mask}"); a.s("s_mov_b32 exec_hi, 0")
        a.v("v_cmp_ne_u64 vcc, v[6:7], v[8:9]")
        a.s("s_mov_b64 exec, -1")
        a.s(f"s_cbranch_vccnz {L}")
        a.label(Lb)
        o = Asm(); o.label(L); poll_flags(o, 6, 8, 11, 84, mask, 76, off); o.s(f"s_branch {Lb}")
        a.ool += o.L
    if cfg.split:
        a.waitcnt(vm=6)
        flagst(0)
        head_order(a, 1, 75)
        a.s("s_lshl_b32 s75, 1, s75")
    a.waitcnt(lgkm=0)
    a.barrier()
    stamp(a, cfg, 10)
    KO = lambda p, ts: [(p, kp, t) for kp in range(4) for t in ts]
    TO = lambda p, ts: [(p, kp, t) for t in ts for kp in range(4)]
    items = KO(0, range(9)) + KO(1, range(9))
    if cfg.reord: items += KO(2, range(6)) + TO(3, range(6)) + KO(2, range(6, 9)) + TO(3, range(6, 9))
    else: items += KO(2, range(9)) + TO(3, range(9))
    first3 = next(i for i, it in enumerate(items) if it[0] == 3)
    done_at = {}
    for i, (p, kp, t) in enumerate(items): done_at[t//2] = i
    NB = 9
    R3 = [12, 10]
    def rdW2(i, h):
        p, kp, t = items[i]
        def f():
            if cfg.align: a.ds_read("ds_read_b64_tr_b16", Wf2(i % NB)+2*h, 2, 12 if t == 8 else R[t & 1], off=kp*10240 + h*5120 + (0 if t == 8 else 32*(t - (t & 1))))
            else: a.ds_read("ds_read_b64_tr_b16", Wf2(i % NB)+2*h, 2, (R3 if p == 3 else R)[t & 1], off=kp*10240 + h*5120 + 32*(t - (t & 1)))
            ver[("W2", i % NB, h)] = i
        return f
    for kp in range(4):
        for mt in range(3): ver[("O", 0, kp, mt)] = 0
    def headbase(p):
        return [lambda: head_order(a, p, 81), lambda: a.s("s_lshl_b32 s81, s81, 15"), lambda: a.s("s_add_u32 s81, s81, s80")]
    def ldO(p, f, srdb=S_WS):
        kp, mt = divmod(f, 3)
        return [lambda: a.s(f"s_add_u32 s82, s81, s{40 + f//4}"),
                lambda: (a.bload(of(p & 1, kp, mt), 4, 14, srdb, "s82", off=(f % 4)*1024, flags="sc1"), ver.__setitem__(("O", p & 1, kp, mt), p))]
    def publish(mt, pair):
        if pair == 4 and mt == 1: return []
        slot = pair*3 + mt if pair < 4 else 12 + mt//2
        r = acc2(mt, 2*pair)
        out = [cvt(r, r, r+1), cvt(r+1, r+2, r+3)]
        if slot < 13:
            s_ = acc2(mt, 2*pair+1) if pair < 4 else acc2(1, 8)
            out += [cvt(r+2, s_, s_+1), cvt(r+3, s_+2, s_+3)]
        def st_():
            L = newlabel("own"); L2 = newlabel("ownb")
            a.s(f"s_cmp_eq_u32 s90, {slot & 7}")
            a.s(f"s_cbranch_scc1 {L}")
            if slot < 13: a.bstore(r, 4, 14, S_WS, "s82", flags="sc1", tag=("pub", slot))
            else: a.bstore(r, 2, 11, S_WS, "s82", flags="sc1", tag=("pub", slot))
            a.label(L2)
            a.ool += [f"{L}:", f"    ds_write_b128 v2, v[{r}:{r+3}] offset:{(slot >> 3)*4096}",
                      f"    buffer_store_dword v{r}, v14, s[{S_X}:{S_X+3}], 0 offen", f"    s_branch {L2}"]
        out += [lambda: a.s(f"s_add_u32 s82, s{44 + ((slot & 7) >> 1)}, {slot*16384}"), st_]
        return out
    def flag2(off):
        a.s("s_mov_b32 exec_lo, s97"); a.s("s_mov_b32 exec_hi, 0")
        a.bstore(8, 2, 3, S_WS, "s55", off=off, flags="sc1")
        a.s("s_mov_b64 exec, -1")
    def stageA():
        a.wait_vm_tag(("pub", 7))
        flag2(0)
        a.waitcnt(lgkm=0)
        a.barrier()
    for i in range(NB): rdW2(i, 0)(); rdW2(i, 1)()
    seen = set()
    n3 = 0
    assert cfg.q1c > cfg.fb
    for i, (p, kp, t) in enumerate(items):
        if i == cfg.fb:
            F.drain()
            a.waitcnt(vm=0)
            stamp(a, cfg, 6)
            flagst(0)
            if cfg.fbar: a.barrier()
        if cfg.pp1:
            for pz, pi, pc in ((1, cfg.q1i, cfg.q1c), (2, cfg.q2i, cfg.q2i + 7), (3, cfg.q3i, cfg.q3i + 7)):
                if i == pi:
                    F.drain()
                    head_order(a, pz, 75)
                    a.s("s_lshl_b32 s75, 1, s75")
                    poll_issue("s75", 0)
                if i == pc:
                    poll_check("s75", 0)
                    if pz == 1:
                        stamp(a, cfg, 7)
                        F.add(*headbase(1))
                        for fr in range(12): F.add(*ldO(1, fr))
                    if pz == 2: F.add(*headbase(2))
            if cfg.q2i + 7 <= i < cfg.q2i + 19: F.add(*ldO(2, i - cfg.q2i - 7))
        if i == 36:
            F.drain()
            if cfg.p2st: stamp(a, cfg, 1)
            a.barrier()
            if cfg.p2st: stamp(a, cfg, 2)
            for r in R + ([12] if cfg.align else []): a.v(f"v_subrev_u32 v{r}, {3*SL}, v{r}")
            for j in range(36, 36 + NB): rdW2(j, 0)(); rdW2(j, 1)()
            if not cfg.pp1:
                for f in headbase(1): f()
                poll_flags(a, 6, 8, 11, 84, "s86", 76, 0, 4)
                stamp(a, cfg, 7)
                for fr in range(12):
                    for f in ldO(1, fr): f()
                F.add(*headbase(2))
            for r, r3 in ([] if cfg.align else zip(R, R3)): F.add(lambda r=r, r3=r3: a.v(f"v_add_u32 v{r3}, {2*SL}, v{r}"))
        if cfg.p2st and i in (37, 72, 108): stamp(a, cfg, {37: 3, 72: 4, 108: 5}[i])
        if not cfg.pp1 and p == 1 and t in (0, 3, 6): F.add(*ldO(2, kp*3 + t//3))
        if i == 54:
            F.add(*tail_vsetup(a, S_W, 0))
            F.add(*[lambda t=t: a.v(t) for t in ("v_lshrrev_b32 v5, 1, v1", "v_lshrrev_b32 v5, v5, s53", "v_and_b32 v5, 1, v5", "v_lshl_add_u32 v3, v5, 13, v3")])
            F.add(*[lambda t=t: a.s(t) for t in ("s_xor_b32 s97, s97, 0xff", "s_lshl_b32 s55, s90, 3", "s_add_u32 s55, s55, s96",
                                                  "s_lshl_b32 s76, s90, 7", "s_add_u32 s96, s96, s76", "s_add_u32 s96, s96, s52")])
        if i == 64 and cfg.wout: F.add(lambda: (a.bload(7, 1, 4, S_OUT, "s87", flags=cfg.ld_out), a.vm.__setitem__(-1, (None, "touch"))))
        if i == 72: F.add(*headbase(3))
        if i >= 72 and n3 < 12 and (cfg.reord or t < 6): F.add(*ldO(3, n3)); n3 += 1
        if cfg.two and i == done_at[2] + 1 + cfg.fa: F.drain(); stageA()
        for mt in (range(3) if (i % 2 == 0 or not cfg.serp) else (2, 1, 0)):
            assert ver[("W2", i % NB, 0)] == i and ver[("W2", i % NB, 1)] == i and ver[("O", p & 1, kp, mt)] == p, (i, p, kp, t)
            a.mfma(acc2(mt, t), Wf2(i % NB), of(p & 1, kp, mt), acc2(mt, t) if (mt, t) in seen else None)
            seen.add((mt, t))
            F.pop(3 if len(F.q) > 8 else 2 if len(F.q) > 2 else 1)
        j = i + NB
        if j < len(items) and not (p == 0 and j >= 36):
            if j in (72, first3):
                F.drain()
                a.barrier()
                if j == 72 or cfg.align:
                    assert not (cfg.align and cfg.reord)
                    for r in R + ([12] if cfg.align else []): a.v(f"v_add_u32 v{r}, {SL}, v{r}")
            F.q = [rdW2(j, 0), rdW2(j, 1)] + F.q
        for pair in range(4):
            if i == done_at[pair] + 1:
                for mt in range(3): F.add(*publish(mt, pair))
    stamp(a, cfg, 8)
    F.drain()
    for mt in range(3):
        for f in publish(mt, 4): f()
    if cfg.two and done_at[2] + 1 + cfg.fa >= len(items): stageA()
    stamp(a, cfg, 9)
    if cfg.dyn:
        a.waitcnt(lgkm=0)
        a.barrier()
    a.waitcnt(vm=0, lgkm=0)
    stamp(a, cfg, 11)
    flag2(64)
    if cfg.dyn: pass
    elif cfg.two:
        a.v("v_add_u32 v2, 4096, v2")
        a.s("s_add_u32 s96, s96, 64")
    else:
        poll_flags(a, 6, 8, 11, 96, "s97", 76, 64, 62)

def tail(a, cfg, endlabel):
    if cfg.dyn:
        a.s("s_cmp_ge_u32 s89, 14")
        a.s(f"s_cbranch_scc1 {endlabel}")
        for k in range(8):
            L = newlabel("ow")
            a.s(f"s_cmp_lg_u32 s90, {k}")
            a.s(f"s_cbranch_scc1 {L}")
            a.raw(f"    ds_read_b128 v[{16+4*k}:{19+4*k}], v2")
            a.label(L)
        if cfg.coal:
            a.v("v_and_b32 v70, 60, v1")
            a.v("v_and_b32 v71, 1, v1")
            a.v("v_lshl_add_u32 v70, v71, 7, v70")
            a.v("v_and_b32 v71, 2, v1")
            a.v("v_lshl_add_u32 v70, v71, 5, v70")
        a.s("s_add_u32 s77, s88, 4096")
        a.s("s_mov_b32 s76, 0")
        a.s("s_cmp_eq_u32 s89, 13")
        a.s("s_cbranch_scc1 L_dynh")
        def loop(o, name, half):
            o.label(name)
            o.s("s_mov_b32 exec_lo, s97"); o.s("s_mov_b32 exec_hi, 0")
            o.raw(f"    buffer_load_dwordx2 v[6:7], v11, s[{S_WS}:{S_WS+3}], s96 offen offset:64 sc1")
            o.s("s_add_u32 s76, s76, 1")
            o.raw("    s_waitcnt vmcnt(0)")
            o.raw("    v_cmp_eq_u64 vcc, v[6:7], v[8:9]")
            o.s("s_mov_b64 exec, -1")
            o.s(f"s_cmp_gt_u32 s76, {SPIN_MAX}")
            o.s("s_cselect_b32 s75, s97, vcc_lo")
            o.s("s_andn2_b32 s97, s97, s75")
            for k in range(8):
                L = newlabel("dy")
                o.s(f"s_bitcmp0_b32 s75, {k}")
                o.s(f"s_cbranch_scc1 {L}")
                so = "s88" if k < 4 else "s77"
                off = f" offset:{(k % 4)*1024}" if k % 4 else ""
                if half: o.raw(f"    buffer_load_dwordx2 v[{16+4*k}:{17+4*k}], v11, s[{S_WS}:{S_WS+3}], {so} offen{off} sc1")
                else: o.raw(f"    buffer_load_dwordx4 v[{16+4*k}:{19+4*k}], v14, s[{S_WS}:{S_WS+3}], {so} offen{off} sc1")
                o.label(L)
            o.s("s_cmp_lg_u32 s97, 0")
            o.s(f"s_cbranch_scc1 {name}")
        loop(a, "L_dyn", False)
        a.label("L_dynb")
        ool = Asm(); loop(ool, "L_dynh", True); ool.s("s_branch L_dynb"); a.ool += ool.L
        stamp(a, cfg, 12)
        a.raw("    s_waitcnt vmcnt(0) lgkmcnt(0)")
    else:
        if not cfg.two: a.barrier()
        a.s("s_cmp_ge_u32 s89, 14")
        a.s(f"s_cbranch_scc1 {endlabel}")
        if cfg.two: poll_flags(a, 6, 8, 11, 96, "s97", 76, 0, 68)
        stamp(a, cfg, 12)
        a.ds_read("ds_read_b128", 16, 4, 2)
        a.s("s_cmp_eq_u32 s89, 13")
        a.s("s_cbranch_scc1 L_half")
        def srcoff(k):
            a.s(f"s_add_u32 s76, s90, {k}")
            a.s("s_and_b32 s76, s76, 7")
            a.s("s_lshl_b32 s76, s76, 10")
            a.s("s_add_u32 s76, s76, s88")
        for k in range(1, 8):
            srcoff(k); a.bload(16 + 4*k, 4, 14, S_WS, "s76", flags="sc1")
        a.label("L_halfb")
        ool = Asm()
        ool.label("L_half")
        for k in range(1, 8):
            ool.s(f"s_add_u32 s76, s90, {k}"); ool.s("s_and_b32 s76, s76, 7"); ool.s("s_lshl_b32 s76, s76, 10"); ool.s("s_add_u32 s76, s76, s88")
            ool.bload(16 + 4*k, 2, 11, S_WS, "s76", flags="sc1")
        ool.s("s_branch L_halfb")
        a.ool += ool.L
    for k in range(8):
        src = 16 + 4*k
        for i in range(4):
            if k == 0:
                a.v(f"v_lshlrev_b32 v{48+2*i}, 16, v{src+i}")
                a.v(f"v_and_b32 v{49+2*i}, 0xffff0000, v{src+i}")
            else:
                a.v(f"v_lshlrev_b32 v{60+2*(i&1)}, 16, v{src+i}")
                a.v(f"v_and_b32 v{61+2*(i&1)}, 0xffff0000, v{src+i}")
                a.v(f"v_pk_add_f32 v[{48+2*i}:{49+2*i}], v[{48+2*i}:{49+2*i}], v[{60+2*(i&1)}:{61+2*(i&1)}]")
        if k == 1: stamp(a, cfg, 13)
    for i in range(4): a.v(f"v_cvt_pk_bf16_f32 v{64+i}, v{48+2*i}, v{49+2*i}")
    a.v("v_permlane16_swap_b32 v64, v66")
    a.v("v_permlane16_swap_b32 v65, v67")
    if cfg.coal:
        for i in range(4):
            a._emit(f"ds_bpermute_b32 v{64+i}, v70, v{64+i}", "ds", vw=[64+i], vrd=[70, 64+i]); a.lgkm.append(({64+i}, None))
    stamp(a, cfg, 14)
    a.s("s_mov_b64 exec, s[78:79]")
    a.bstore(64, 4, 4, S_OUT, "s87", flags=cfg.st_out)

def kernel(cfg):
    a = Asm()
    a.lcap = cfg.lcap
    ROT[0] = cfg.rot
    PP[0] = cfg.pp
    ALIGN[0] = cfg.align
    COAL[0] = cfg.coal
    a.ool = []
    stamp(a, cfg, 0)
    prologue(a, cfg, "L_end")
    a.s(f"s_cmp_lt_u32 s{S_W}, 4")
    a.s("s_cbranch_scc1 L_compute")
    loader(a, cfg)
    a.label("L_compute")
    a.reset_state()
    compute(a, cfg)
    a.label("L_tail")
    a.reset_state()
    a.nop(2)
    tail(a, cfg, "L_st")
    a.label("L_st")
    if cfg.x_map:
        a.s(f"s_add_u32 s76, s2, s{S_W}")
        a.s("s_cmp_lg_u32 s76, 0")
        a.s("s_cbranch_scc1 L_end")
        a.raw("    s_waitcnt vmcnt(0)")
        for i in range(40): a.raw("    s_sleep 64")
        a.s("s_mov_b64 exec, 1")
        a.v("v_mov_b32 v20, 0")
        a.s("s_mov_b32 s40, 0"); a.s(f"s_mov_b32 s41, {28672}"); a.s("s_mov_b32 s42, 0")
        a.label("L_map")
        for rep in range(2):
            a.raw("    v_mov_b32 v21, 0")
            a.raw("    s_memtime s[44:45]"); a.raw("    s_waitcnt lgkmcnt(0)")
            a.raw(f"    buffer_atomic_add v21, v20, s[{S_WS}:{S_WS+3}], s41 offen sc0 sc1")
            a.raw("    s_waitcnt vmcnt(0)")
            a.raw("    s_memtime s[46:47]"); a.raw("    s_waitcnt lgkmcnt(0)")
        a.s("s_sub_u32 s46, s46, s44")
        a.s("s_cmp_gt_u32 s46, 680")
        a.s("s_cselect_b32 s46, 1, 0")
        a.s("s_lshl_b32 s46, s46, s40")
        a.s("s_or_b32 s42, s42, s46")
        a.s(f"s_add_u32 s41, s41, {2 << 20}")
        a.s("s_add_u32 s40, s40, 1")
        a.s("s_cmp_lt_u32 s40, 24")
        a.s("s_cbranch_scc1 L_map")
        a.v("v_mov_b32 v21, s42")
        a.raw(f"    buffer_store_dword v21, v20, s[{S_DBG}:{S_DBG+3}], 0 offen offset:16")
        a.v(f"v_mov_b32 v22, s{S_WS}")
        a.raw(f"    buffer_store_dword v22, v20, s[{S_DBG}:{S_DBG+3}], 0 offen offset:20")
        a.raw("    s_getreg_b32 s42, hwreg(HW_REG_XCC_ID)")
        a.v("v_mov_b32 v23, s42")
        a.raw(f"    buffer_store_dword v23, v20, s[{S_DBG}:{S_DBG+3}], 0 offen offset:24")
    if cfg.stamps: a.waitcnt(vm=0)
    stamp(a, cfg, 15)
    stamp_out(a, cfg)
    a.label("L_end")
    a.s("s_endpgm")
    for l in a.ool: a.raw(l)
    return a

HEADER = open("cdna_kernels/" + NAME + ".s.ref").read().split("; Override launch")[0]

DOC = '''; ---------------------------------------------------------------------------------------------
; ---------------------------------------------------------------------------------------------
'''

def build(cfg):
    n = NAME + "_kernel"
    a = kernel(cfg)
    return HEADER + DOC + f"""; @launch grid=(256,1,1) block=(512,1,1) lds=163840
.amdgcn_target "amdgcn-amd-amdhsa--gfx950"
.text
.globl {n}
.p2align 8
.type {n},@function
{n}:
{a.text()}
L_code_end:
.section .rodata,"a"
.p2align 6
.amdhsa_kernel {n}
  .amdhsa_next_free_vgpr 256
  .amdhsa_next_free_sgpr 102
  .amdhsa_accum_offset 256
  .amdhsa_group_segment_fixed_size 0
  .amdhsa_kernarg_size 104
  .amdhsa_user_sgpr_count 2
  .amdhsa_user_sgpr_kernarg_segment_ptr 1
  .amdhsa_system_sgpr_workgroup_id_x 1
.end_amdhsa_kernel
"""

if __name__ == "__main__":
    cfg = Cfg()
    for kv in sys.argv[2:]:
        k, v = kv.split("=")
        cur = getattr(cfg, k)
        setattr(cfg, k, (v == "1") if isinstance(cur, bool) else int(v) if isinstance(cur, int) else v.replace("_", " "))
    open(sys.argv[1], "w").write(build(cfg))
```

```python
import sys, struct
from asm import *

NAME = "concat_heads__gqa_block_cached__mha_block_cached__near_ridge"
SL = 40960
KSTR, VSTR = 4112, 4128
KUNIT, VUNIT = 1024, 1024
KBASE = 0
VBASE_L = 12*KSTR
WS_O = 0
WS_FLAG1 = 64 << 20
WS_FLAG2 = 65 << 20
WS_PROBE = 68 << 20
WS_PART = 32 << 20
WS_STAMP = 72 << 20
WS_BYTES = 80 << 20
SC = 0.08838834764831845 * 1.4426950408889634
SPIN_MAX = 1 << 17
def f2u(x): return struct.unpack("<I", struct.pack("<f", x))[0]

S_X, S_K, S_V, S_WQ, S_WO, S_OUT, S_WS, S_DBG = 36, 40, 44, 48, 52, 56, 60, 64
S_BR, S_KQ, S_HL, S_BG, S_W, S_NT, S_E = 68, 69, 70, 71, 72, 98, 99

class Cfg:
    stamps = False; x_clk = False; lst = 0
    ld_x = ""; ld_wq = ""; ld_kv = "nt"; ld_wo = ""; st_out = "sc1"; ld_out = ""
    skew = 3; prio = 3; lcap = 8; barpos = 3
    el = 2; pollpos = 4; ctouch = 3; e_wo = 1; l_wo = 1; prog = 1; touch = 1; tpos = 5; wo2 = 1; flagpos = 1; e_vpos = 4; l_kpos = 2; f2 = 1; c_kpos = 5; c_tpos = 3; swap = 1; own = 1; warmf = 1; p2st = 0; fbar = 1; wo0late = 0; x_enc = -1; x_amp = 4; dbgwg = 0; att = 1; r1first = 1; epoll = 0; cfix = -1; nprobe = 1; split = 0; fb = 9; x_pace = 0; cls = '33,44,55,66'; v7 = 4; v8 = 12; x_burn = 0; x_map = 0; bal = 0; two = 0; reord = 0; fa = 8; serp = 1; pp = 0; tlb = 0; sw = 0; kearly = 1; kfirst = 0; hold = 0; lprio = 0; xfirst = 0; tsh = '2222'; dyn = 1; w3e = 0; o3e = 0; ct0 = 1; wout = 0; align = 1; coal = 1; hq = 0; pp1 = 0; stg = 'ABBA'; nreg = 1; ntst = 9; retouch = 0; vb8 = 6; q1i = 20; q1c = 27; q2i = 40; q3i = 64; strict = 3; smod = 1; pst = 9; pa = 14; pac = 21; rot = 0; pb = 48

NST = 16
def streg(i): return 4 if i == 0 else 8 + 2*(i-1) if i <= 13 else {14: 34, 15: 100}[i]
def stamp(a, cfg, i):
    if cfg.stamps:
        r = streg(i)
        a.raw(f"    {'s_memtime' if cfg.x_clk else 's_memrealtime'} s[{r}:{r+1}]"); a.pos += 1
def stamp_out(a, cfg):
    if not cfg.stamps: return
    if cfg.x_enc >= 0:
        a.raw("    s_waitcnt lgkmcnt(0)")
        a.s("s_lshl_b32 s3, s2, 3")
        a.s(f"s_add_u32 s3, s3, s{S_W}")
        a.s(f"s_cmp_lg_u32 s3, {cfg.dbgwg*8}")
        a.s("s_cbranch_scc1 L_end")
        if cfg.x_enc == 99:
            a.raw("    s_getreg_b32 s76, hwreg(HW_REG_XCC_ID, 0, 4)")
            a.s("s_mul_i32 s76, s76, 1000")
        elif cfg.x_enc == 98:
            a.v("v_readfirstlane_b32 s76, v8")
            a.s("s_sub_u32 s76, s4, s76")
            a.s("s_add_u32 s76, s76, 300")
            a.s("s_mul_i32 s76, s76, 8")
        else:
            a.s(f"s_sub_u32 s76, s{streg(cfg.x_enc)}, s4")
            a.s(f"s_mul_i32 s76, s76, {cfg.x_amp}")
        a.s("s_add_u32 s76, s76, 5000")
        a.label("L_hold")
        a.raw("    s_memrealtime s[78:79]")
        a.raw("    s_waitcnt lgkmcnt(0)")
        a.s("s_sub_u32 s77, s78, s4")
        a.s("s_cmp_lt_u32 s77, s76")
        a.s("s_cbranch_scc1 L_hold")
        return
    a.raw("    s_waitcnt lgkmcnt(0)")
    a.s("s_mov_b64 exec, 1")
    a.s("s_lshl_b32 s3, s2, 3")
    a.s(f"s_add_u32 s3, s3, s{S_W}")
    a.s("s_lshl_b32 s3, s3, 6")
    a.s(f"s_add_u32 s3, s3, {WS_STAMP}")
    a.v("v_mov_b32 v1, 0")
    for i in range(NST):
        a.v(f"v_mov_b32 v2, s{streg(i)}")
        a.bstore(2, 1, 1, S_WS, "s3", off=4*i)
        a.nop(2)

def srd(a, base, lo, hi, size):
    a.s(f"s_mov_b32 s{base}, s{lo}")
    a.s(f"s_mov_b32 s{base+1}, s{hi}")
    a.s(f"s_mov_b32 s{base+2}, {size}")
    a.s(f"s_mov_b32 s{base+3}, 0x20000")

BAL = [0]
def prologue(a, cfg, endlabel):
    a.s("s_cmp_ge_u32 s2, 256")
    a.s(f"s_cbranch_scc1 {endlabel}")
    a.raw("    s_load_dwordx16 s[8:23], s[0:1], 0")
    a.raw("    s_load_dwordx8 s[24:31], s[0:1], 64")
    a.raw("    s_load_dwordx2 s[32:33], s[0:1], 96")
    a.v("v_and_b32 v1, 63, v0")
    a.v("v_lshrrev_b32 v15, 6, v0")
    BAL[0] = cfg.bal
    if cfg.bal:
        a.s(f"s_bfe_u32 s{S_KQ}, s2, 0x10002")
        a.s(f"s_lshl_b32 s{S_KQ}, s{S_KQ}, 1")
        a.s(f"s_and_b32 s{S_BR}, s2, 1")
        a.s(f"s_or_b32 s{S_KQ}, s{S_KQ}, s{S_BR}")
        a.s(f"s_bfe_u32 s{S_BR}, s2, 0x10001")
    else:
        a.s(f"s_and_b32 s{S_KQ}, s2, 3")
        a.s(f"s_bfe_u32 s{S_BR}, s2, 0x10002")
    if cfg.swap: a.s(f"s_xor_b32 s{S_BR}, s{S_BR}, 1")
    a.s(f"s_bfe_u32 s{S_HL}, s2, 0x30003")
    a.s(f"s_lshr_b32 s{S_BG}, s2, 6")
    a.s(f"s_and_b32 s{S_NT}, s{S_HL}, 3")
    a.v(f"v_readfirstlane_b32 s{S_W}, v15")
    if cfg.el:
        a.s(f"s_lshr_b32 s{S_E}, s{S_HL}, 2")
        a.s(f"s_xor_b32 s{S_E}, s{S_E}, s{S_BG}")
        a.s(f"s_and_b32 s{S_E}, s{S_E}, 1")
        a.s(f"s_and_b32 s3, s{S_BG}, 2")
        a.s(f"s_or_b32 s3, s3, s{S_E}")
        if cfg.hq: a.s(f"s_mov_b32 s3, s{S_NT}")
        if cfg.el == 2: a.s(f"s_mov_b32 s{S_E}, 0")
    else:
        a.s(f"s_mov_b32 s{S_E}, 0")

def build_srds(a, keys):
    a.raw("    s_waitcnt lgkmcnt(0)")
    a.s(f"s_cmp_eq_u32 s{S_BR}, 0")
    for (dst, pa, pb, key) in ((S_WQ, 14, 24, 'wq'), (S_X, 8, 18, 'x'), (S_K, 10, 20, 'k'), (S_V, 12, 22, 'v'), (S_WO, 16, 26, 'wo')):
        if key not in keys: continue
        a.s(f"s_cselect_b64 s[{dst}:{dst+1}], s[{pa}:{pa+1}], s[{pb}:{pb+1}]")
        if key in ('k', 'v'):
            a.s(f"s_mov_b32 s{dst+2}, 6291456")
            a.s(f"s_cselect_b32 s{dst+2}, 3145728, s{dst+2}")
        else:
            a.s(f"s_mov_b32 s{dst+2}, {884736 if key == 'x' else 4718592}")
        a.s(f"s_mov_b32 s{dst+3}, 0x20000")
    if 'o' in keys:
        srd(a, S_OUT, 28, 29, 1769472)
        srd(a, S_DBG, 30, 31, 256)
        srd(a, S_WS, 32, 33, WS_BYTES)

ROT = [0]
def head_order(a, p, sd):
    if p == 0: a.s(f"s_mov_b32 s{sd}, s{S_NT}")
    elif ROT[0]:
        a.s(f"s_add_u32 s{sd}, s{S_NT}, {p}"); a.s(f"s_and_b32 s{sd}, s{sd}, 3")
    else:
        a.s(f"s_cmp_le_u32 s{S_NT}, {p-1}"); a.s(f"s_cselect_b32 s{sd}, {p}, {p-1}")

_lbl = [0]
def newlabel(p):
    _lbl[0] += 1
    return f"L{p}_{_lbl[0]}"

PP = [0]
ALIGN = [0]
COAL = [0]
def poll_flags(a, vdata, vnonce, voff, soff, mask, stmp, off=0, v2=None):
    L = newlabel("poll"); X = newlabel("pollx")
    a.s(f"s_mov_b32 exec_lo, {mask}")
    a.s("s_mov_b32 exec_hi, 0")
    a.s(f"s_mov_b32 s{stmp}, 0")
    if PP[0] and v2 is not None:
        o = f" offset:{off}" if off else ""
        ld = lambda v: a.raw(f"    buffer_load_dwordx2 v[{v}:{v+1}], v{voff}, s[{S_WS}:{S_WS+3}], s{soff} offen{o} sc1")
        a.waitcnt(vm=0) if False else None
        ld(vdata)
        a.raw(f"    s_sleep {PP[0]}")
        a.label(L)
        ld(v2)
        a.s(f"s_add_u32 s{stmp}, s{stmp}, 1")
        a.raw("    s_waitcnt vmcnt(1)")
        a.raw(f"    v_cmp_ne_u64 vcc, v[{vdata}:{vdata+1}], v[{vnonce}:{vnonce+1}]")
        a.s(f"s_cbranch_vccz {X}")
        ld(vdata)
        a.s(f"s_cmp_gt_u32 s{stmp}, {SPIN_MAX}")
        a.raw("    s_waitcnt vmcnt(1)")
        a.s(f"s_cbranch_scc1 {X}")
        a.raw(f"    v_cmp_ne_u64 vcc, v[{v2}:{v2+1}], v[{vnonce}:{vnonce+1}]")
        a.s(f"s_cbranch_vccnz {L}")
        a.label(X)
        a.vm = [({vdata, vdata+1, v2, v2+1}, "poll")]
        a.s("s_mov_b64 exec, -1")
        return
    a.label(L)
    a.bload(vdata, 2, voff, S_WS, f"s{soff}", off=off, flags="sc1")
    a.s(f"s_add_u32 s{stmp}, s{stmp}, 1")
    a.s(f"s_cmp_gt_u32 s{stmp}, {SPIN_MAX}")
    a.waitcnt(vm=0)
    a.s(f"s_cbranch_scc1 {X}")
    a.v(f"v_cmp_ne_u64 vcc, v[{vdata}:{vdata+1}], v[{vnonce}:{vnonce+1}]")
    a.s(f"s_cbranch_vccnz {L}")
    a.label(X)
    a.s("s_mov_b64 exec, -1")

NVOTE = 32
CAP = 4095
def nonce_load(a, vn, vzero):
    a.bload(vn, 4, vzero, S_DBG, "0", flags="sc1", tag="nonce")
def nonce_check(a, vn, vzero):
    Lok = newlabel("nok"); Lsp = newlabel("nsp")
    a.s("s_mov_b32 s77, 0")
    a.v(f"v_readfirstlane_b32 s76, v{vn}")
    a.v(f"v_readfirstlane_b32 s75, v{vn+2}")
    a.v(f"v_readfirstlane_b32 s3, v{vn+3}")
    a.label(Lsp)
    a.s("s_cmp_lg_u32 s76, 0")
    a.s("s_cselect_b32 s76, s75, 0")
    a.s(f"s_cmp_ge_u32 s3, {8 << 16}")
    a.s("s_cselect_b32 s76, s76, 0")
    a.s(f"s_cmp_ge_u32 s76, {NVOTE << 24}")
    a.s(f"s_cbranch_scc1 {Lok}")
    a.s("s_add_u32 s77, s77, 1")
    a.s(f"s_cmp_gt_u32 s77, {SPIN_MAX}")
    a.s(f"s_cbranch_scc1 {Lok}")
    a.raw(f"    buffer_load_dwordx4 v[{vn}:{vn+3}], v{vzero}, s[{S_DBG}:{S_DBG+3}], 0 offen sc1")
    a.raw("    s_waitcnt vmcnt(0)")
    a.raw(f"    v_readfirstlane_b32 s76, v{vn}")
    a.raw(f"    v_readfirstlane_b32 s75, v{vn+2}")
    a.raw(f"    v_readfirstlane_b32 s3, v{vn+3}")
    a.raw("    s_nop 0")
    a.s(f"s_branch {Lsp}")
    a.label(Lok)
    a.v(f"v_mov_b32 v8, v{vn}")
    a.v(f"v_mov_b32 v9, v{vn+1}")
    a.s(f"s_cmp_gt_u32 s76, {(NVOTE << 24) + NVOTE*CAP}")
    a.s("s_cselect_b32 s76, 0xff, 0")
    a.s("s_xor_b32 s75, s3, s76")
    if BAL[0]:
        a.s("s_and_b32 s76, s2, 2")
        a.s("s_lshr_b32 s75, s75, s76")
        a.s("s_lshr_b32 s76, s75, 2")
        a.s("s_and_b32 s76, s76, 12")
        a.s("s_and_b32 s75, s75, 3")
        a.s("s_or_b32 s75, s75, s76")
    else:
        a.s("s_and_b32 s76, s2, 4")
        a.s("s_lshr_b32 s75, s75, s76")
    a.s(f"s_lshr_b32 s76, s75, s{S_KQ}")
    a.s("s_and_b32 s76, s76, 1")
    a.s("s_lshl_b32 s76, s76, 13")

def bsel(a, sd):
    a.s(f"s_lshr_b32 s76, s{sd}, 8")
    a.s("s_and_b32 s76, s76, 8192")
    a.s(f"s_or_b32 s{sd}, s{sd}, s76")

def apply_c(a, regs):
    for r in regs: a.s(f"s_xor_b32 s{r}, s{r}, s76")

def unit_base(a, sd, sb_w, shead):
    a.s(f"s_lshl_b32 s76, s{S_BR}, 2")
    a.s(f"s_add_u32 s76, s76, s{S_BG}")
    a.s("s_lshl_b32 s76, s76, 2")
    a.s(f"s_add_u32 s76, s76, s{sb_w}")
    a.s("s_lshl_b32 s76, s76, 5")
    a.s(f"s_add_u32 s76, s76, s{shead}")
    a.s(f"s_lshl_b32 s{sd}, s76, 15")
    bsel(a, sd)
    a.s(f"s_and_b32 s76, s{sb_w}, 1")
    a.s("s_lshl_b32 s40, s76, 12")
    a.s(f"s_and_b32 s76, s{sb_w}, 2")
    a.s("s_lshl_b32 s76, s76, 13")
    a.s("s_or_b32 s40, s40, s76")
    a.s("s_xor_b32 s41, s40, 4096")
    a.s("s_xor_b32 s42, s40, 16384")

def tail_ssetup(a, sw, half):
    a.s(f"s_lshr_b32 s90, s{S_HL}, 2")
    a.s(f"s_lshl_b32 s76, s{S_KQ}, 1")
    a.s("s_add_u32 s90, s90, s76")
    a.s(f"s_add_u32 s89, s90, {8*half}")
    a.s(f"s_lshl_b32 s91, s{S_BR}, 2")
    a.s(f"s_add_u32 s91, s91, s{S_BG}")
    a.s("s_lshl_b32 s91, s91, 2")
    a.s(f"s_add_u32 s91, s91, s{S_NT}")
    a.s("s_lshl_b32 s91, s91, 2")
    a.s(f"s_add_u32 s91, s91, s{sw}")
    a.s("s_lshr_b32 s76, s91, 3")
    a.s("s_lshl_b32 s76, s76, 14")
    a.s("s_and_b32 s77, s91, 7")
    a.s("s_lshl_b32 s77, s77, 10")
    a.s("s_add_u32 s76, s76, s77")
    a.s(f"s_add_u32 s96, s76, {WS_FLAG2}")
    a.s("s_lshl_b32 s92, s91, 18")
    a.s(f"s_add_u32 s92, s92, {WS_PART}")
    bsel(a, 92)
    a.s("s_lshl_b32 s76, s89, 14")
    a.s("s_add_u32 s88, s92, s76")
    a.s("s_lshl_b32 s76, s90, 10")
    a.s("s_add_u32 s92, s92, s76")
    a.s("s_mul_i32 s76, s89, 43")
    a.s("s_lshr_b32 s76, s76, 7")
    a.s("s_mul_i32 s77, s76, 3")
    a.s("s_sub_u32 s77, s89, s77")
    a.s("s_cmp_eq_u32 s89, 13")
    a.s("s_cselect_b32 s77, 2, s77")
    a.s("s_lshl_b32 s87, s76, 6")
    a.s(f"s_mul_i32 s77, s77, {16*2304}")
    a.s("s_add_u32 s87, s87, s77")
    a.s(f"s_lshl_b32 s77, s{S_BG}, 2")
    a.s(f"s_add_u32 s77, s77, s{sw}")
    a.s(f"s_mul_i32 s77, s77, {48*2304}")
    a.s("s_add_u32 s87, s87, s77")
    a.s(f"s_mul_i32 s77, s{S_BR}, 1152")
    a.s("s_add_u32 s87, s87, s77")
    a.s(f"s_mul_i32 s77, s{S_NT}, 288")
    a.s("s_add_u32 s87, s87, s77")
    if ALIGN[0]:
        a.s("s_cmp_lt_u32 s89, 12")
        a.s("s_cselect_b32 s77, 32, -256")
        a.s(f"s_bitcmp1_b32 s{S_NT}, 0")
        a.s("s_cselect_b32 s77, s77, 0")
        a.s("s_add_u32 s87, s87, s77")
    a.s("s_cmp_lt_u32 s89, 12")
    a.s(f"s_cselect_b32 s74, 32, {16*2304}")
    a.s("s_cmp_lt_u32 s89, 13")
    a.s(f"s_cselect_b32 s78, -1, {'0x33333333' if COAL[0] else '0xffff'}")
    a.s("s_mov_b32 s79, s78")
    for u in range(16): assert (u*43) >> 7 == u//3

def tail_vsetup(a, sw=S_W, half=0):
    o1 = ("v_and_b32 v4, 15, v1", "v_mul_u32_u24 v4, 2304, v4", "v_bfe_u32 v5, v1, 4, 1", "v_mad_u32_u24 v4, v5, s74, v4",
          "v_lshrrev_b32 v5, 5, v1", "v_lshl_add_u32 v4, v5, 4, v4")
    o2 = ("v_lshrrev_b32 v4, 2, v1", "v_mul_u32_u24 v4, 2304, v4", "v_bfe_u32 v5, v1, 1, 1", "v_mad_u32_u24 v4, v5, s74, v4",
          "v_and_b32 v5, 1, v1", "v_lshl_add_u32 v4, v5, 4, v4")
    return [lambda t=t: a.v(t) for t in (o2 if COAL[0] else o1) + (
        "v_lshlrev_b32 v3, 7, v1", f"v_lshlrev_b32 v2, 4, v1", f"v_lshl_add_u32 v2, s{sw}, 10, v2", f"v_add_u32 v2, {3*SL + half*4096}, v2")]

def loader(a, cfg):
    if cfg.lprio: a.s(f"s_setprio {cfg.lprio}")
    a.s(f"s_sub_u32 s73, s{S_W}, 4")
    def codetouch():
        a.s("s_mov_b64 exec, 7")
        a.raw("    global_load_dword v125, v[24:25], off"); a.pos += 1
        a.vm.append((None, "touch"))
        a.s("s_mov_b64 exec, -1")
    def ctsetup():
        if cfg.ctouch:
            L = newlabel("pc")
            a.raw("    s_getpc_b64 s[6:7]")
            a.label(L)
            a.s(f"s_sub_u32 s6, s6, {L}-{NAME}_kernel")
            a.s("s_subb_u32 s7, s7, 0")
            a.s("s_lshr_b32 s76, s2, 3")
            a.s("s_lshl_b32 s76, s76, 2")
            a.s("s_add_u32 s76, s76, s73")
            a.s("s_mul_i32 s76, s76, 384")
            a.v("v_lshlrev_b32 v25, 7, v1")
            a.v("v_add_u32 v25, s76, v25")
            a.s("s_mov_b32 s77, L_code_end-" + NAME + "_kernel-4")
            a.v("v_min_u32 v24, s77, v25")
            a.v("v_mov_b32 v25, s7")
            a.raw("    v_add_co_u32 v24, vcc, s6, v24")
            a.raw("    s_nop 1")
            a.raw("    v_addc_co_u32 v25, vcc, 0, v25, vcc")
            codetouch()
    if cfg.ct0: ctsetup()
    a.s("s_and_b32 s74, s73, 1")
    a.s("s_lshr_b32 s75, s73, 1")
    a.s(f"s_lshl_b32 s95, s{S_KQ}, 3")
    a.s(f"s_add_u32 s95, s95, s{S_HL}")
    a.v("v_lshrrev_b32 v4, 4, v1")
    a.s("s_lshl_b32 s76, s75, 2")
    a.v("v_or_b32 v5, s76, v4")
    a.v("v_bfe_u32 v6, v1, 1, 3")
    a.v("v_xor_b32 v6, v6, v5")
    a.v("v_lshlrev_b32 v6, 5, v6")
    a.v("v_and_b32 v7, 1, v1")
    a.v("v_lshl_add_u32 v6, v7, 4, v6")
    a.v("v_lshl_add_u32 v2, v4, 13, v6")
    a.s("s_lshl_b32 s76, s73, 15")
    a.s("s_lshl_b32 s77, s95, 8")
    a.s("s_add_u32 s76, s76, s77")
    a.v("v_add_u32 v2, s76, v2")
    a.v("v_lshlrev_b32 v5, 2, v4")
    a.v("v_and_b32 v6, 15, v1")
    a.v("v_xor_b32 v6, v6, v5")
    a.v("v_lshlrev_b32 v6, 4, v6")
    a.v("v_lshl_add_u32 v10, v4, 8, v6")
    a.s("s_lshl_b32 s76, s74, 2")
    a.v("v_or_b32 v5, s76, v4")
    a.v("v_lshrrev_b32 v4, 3, v1")
    a.v("v_mul_u32_u24 v4, 1152, v4")
    a.v("v_and_b32 v6, 7, v1")
    a.v("v_xor_b32 v6, v6, v5")
    a.v("v_lshl_add_u32 v3, v6, 4, v4")
    a.s(f"s_mul_i32 s76, s{S_BG}, {192*1152}")
    a.s(f"s_mul_i32 s77, s74, {8*1152}")
    a.s("s_add_u32 s76, s76, s77")
    a.s(f"s_mul_i32 s77, s75, {96*1152}")
    a.s("s_add_u32 s76, s76, s77")
    a.v("v_add_u32 v3, s76, v3")
    a.s("s_lshl_b32 s78, s73, 10")
    a.s("s_mul_i32 s79, s75, 12288")
    a.s("s_lshl_b32 s77, s74, 10")
    a.s("s_add_u32 s79, s79, s77")
    a.s("s_add_u32 s79, s79, 16384")
    a.s(f"s_lshl_b32 s76, s{S_BG}, 2")
    a.s("s_add_u32 s76, s76, s73")
    a.s("s_lshl_b32 s76, s76, 5")
    a.s("s_add_u32 s76, s76, s95")
    a.s(f"s_xor_b32 s77, s{S_BR}, 1")
    a.s("s_lshr_b32 s76, s76, s77")
    a.s("s_mul_i32 s80, s76, 12288")
    a.s(f"s_mul_i32 s91, s73, {KUNIT}")
    a.s(f"s_add_u32 s91, s91, {KBASE}")
    a.s(f"s_mul_i32 s92, s73, {VUNIT}")
    if cfg.skew == 3:
        a.s(f"s_add_u32 s84, s{S_HL}, s{S_BG}")
        a.s("s_mul_i32 s85, s84, 43")
        a.s("s_lshr_b32 s85, s85, 7")
        a.s("s_mul_i32 s85, s85, 3")
        a.s("s_sub_u32 s84, s84, s85")
        a.s("s_mul_i32 s84, s84, 3")
    elif cfg.skew == 4:
        a.s(f"s_add_u32 s84, s{S_HL}, s{S_BG}")
        a.s("s_and_b32 s84, s84, 3")
        a.s("s_lshl_b32 s84, s84, 1")
    elif cfg.skew == 2:
        a.s(f"s_lshr_b32 s84, s{S_BG}, 1")
        a.s(f"s_xor_b32 s84, s84, s{S_HL}")
        a.s("s_and_b32 s84, s84, 1")
        a.s("s_lshl_b32 s84, s84, 2")
    elif cfg.skew == 9:
        a.s(f"s_lshl_b32 s84, s{S_BG}, 1")
        a.s(f"s_add_u32 s84, s84, s{S_HL}")
        a.s("s_sub_u32 s85, s84, 9")
        a.s("s_cmp_ge_u32 s84, 9")
        a.s("s_cselect_b32 s84, s85, s84")
    else:
        a.s("s_mov_b32 s84, 0")
    build_srds(a, ('x', 'wq', 'k'))
    def stage(s):
        slot = (1 + s % 3) * SL
        a.s("s_lshl_b32 s85, s84, 7")
        a.s("s_lshl_b32 s86, s84, 19")
        for i in range(4):
            a.s(f"s_add_u32 m0, s78, {slot + i*4096}")
            a.s(f"s_add_u32 s82, s86, {16*i*8192}")
            a.dma(2, S_WQ, "s82", "nt" if s >= cfg.ntst else cfg.ld_wq, tag=("st", s))
        for z in range(6):
            a.s(f"s_add_u32 m0, s79, {slot + z*2048}")
            a.s(f"s_add_u32 s82, s85, {z*16*1152}")
            a.dma(3, S_X, "s82", "nt" if s >= cfg.ntst else cfg.ld_x, tag=("st", s))
        a.s("s_add_u32 s84, s84, 1")
        a.s("s_cmp_eq_u32 s84, 9")
        a.s("s_cselect_b32 s84, 0, s84")
    def kvpart(g, srdb, sm0, stride, lo, hi, base=0):
        for i in range(lo, hi):
            a.s(f"s_add_u32 m0, s{sm0}, {base + i*stride}")
            a.s(f"s_add_u32 s82, s80, {i*1024}")
            a.dma(10, srdb, "s82", cfg.ld_kv, tag=("st", g))
    def setup2():
        if not cfg.ct0: ctsetup()
        build_srds(a, ('v', 'wo', 'o'))
        stamp(a, cfg, 1)
        a.v("v_mov_b32 v16, 0")
        L = newlabel("nw")
        a.s("s_add_u32 s76, s2, s73")
        a.s("s_cmp_lg_u32 s76, 0")
        a.s(f"s_cbranch_scc1 {L}")
        a.raw("    s_memrealtime s[88:89]")
        a.raw("    s_waitcnt lgkmcnt(0)")
        a.s("s_or_b32 s88, s88, 1")
        a.v("v_mov_b32 v18, s88")
        a.v("v_mov_b32 v19, s89")
        a.s("s_mov_b64 exec, 1")
        a.raw(f"    buffer_store_dwordx2 v[18:19], v16, s[{S_DBG}:{S_DBG+3}], 0 offen sc1")
        a.s("s_mov_b64 exec, -1")
        a.label(L)
    def setup3():
        a.s("s_and_b32 s76, s95, 0xfc")
        a.s("s_lshl_b32 s76, s76, 7")
        a.s("s_lshl_b32 s77, s73, 5")
        a.s("s_add_u32 s76, s76, s77")
        a.s("s_mul_i32 s76, s76, 1152")
        a.s(f"s_mul_i32 s77, s{S_NT}, 288")
        a.s("s_and_b32 s77, s77, 0xffffffc0")
        a.s("s_add_u32 s76, s76, s77")
        for y in range(5):
            a.v(f"v_add_u32 v4, {y*64}, v1")
            a.v("v_mul_u32_u24 v5, 3277, v4")
            a.v("v_lshrrev_b32 v5, 16, v5")
            a.v("v_mul_u32_u24 v6, 20, v5")
            a.v("v_sub_u32 v6, v4, v6")
            a.v("v_bfe_u32 v7, v5, 2, 1")
            a.v("v_lshlrev_b32 v7, 1, v7")
            a.v("v_xor_b32 v6, v6, v7")
            a.v("v_mul_u32_u24 v5, 1152, v5")
            a.v("v_lshl_add_u32 v5, v6, 4, v5")
            a.v(f"v_add_u32 v{26+y}, s76, v5")
        a.s("s_mul_i32 s93, s73, 10240")
        a.v("v_lshlrev_b32 v20, 4, v1")
        a.v("v_add_u32 v20, s93, v20")
        a.v("v_lshlrev_b32 v22, 7, v1")
        if cfg.hq:
            a.s("s_lshr_b32 s76, s2, 5")
        else:
            a.s(f"s_and_b32 s76, s{S_BG}, 1")
            a.s("s_lshl_b32 s76, s76, 2")
            a.s(f"s_add_u32 s76, s76, s{S_NT}")
        a.s("s_lshl_b32 s76, s76, 2")
        a.s("s_add_u32 s76, s76, s73")
        a.s(f"s_mul_i32 s76, s76, {8*36*128}")
        a.s(f"s_mul_i32 s94, s{S_KQ}, {1024*1152}")
        a.s("s_add_u32 s94, s94, s76")
        if cfg.tlb > 2:
            a.s("s_mov_b64 exec, 1")
            a.bload(23, 1, 16, S_K, "s80", flags="nt", tag="touch"); a.vm[-1] = (None, "touch")
            a.bload(23, 1, 16, S_V, "s80", flags="nt", tag="touch"); a.vm[-1] = (None, "touch")
            a.bload(23, 1, 26, S_WO, "0", tag="touch"); a.vm[-1] = (None, "touch")
            a.s("s_mov_b64 exec, -1")
    def touches(k):
        sh = [int(c) for c in cfg.tsh]
        assert sum(sh) == 8
        a.s("s_mov_b32 exec_lo, -1"); a.s("s_mov_b32 exec_hi, 15")
        for i in range(sum(sh[:k]), sum(sh[:k+1])):
            a.s(f"s_add_u32 s82, s94, {i*36*128}")
            a.bload(23, 1, 22, S_WO, "s82", tag="touch"); a.vm[-1] = (None, "touch")
        a.s("s_mov_b64 exec, -1")
    def wostage(p, start):
        head_order(a, p, 83)
        a.s(f"s_mul_i32 s83, s83, {128*1152}")
        for z2 in range(2):
            a.s(f"s_add_u32 s82, s83, {z2*16*1152}")
            for y in range(5):
                a.s(f"s_add_u32 m0, s93, {((start + p) % 4)*SL + z2*5120 + y*1024}")
                a.dma(26+y, S_WO, "s82", cfg.ld_wo, tag=("st", 11+p))
    WR = {1: 40, 2: 80}
    def woregs(p, lo=0, hi=10):
        if lo == 0:
            head_order(a, p, 83)
            a.s(f"s_mul_i32 s83, s83, {128*1152}")
            a.s(f"s_add_u32 s87, s83, {16*1152}")
        for i in range(lo, hi):
            a.bload(WR[p] + 4*i, 4, 26 + i % 5, S_WO, "s87" if i >= 5 else "s83", flags=cfg.ld_wo, tag=("wr", p))
    def wowrite(p):
        for i in range(10):
            a.ds_write("ds_write_b128", 20, WR[p] + 4*i, 4, off=((3 + p) % 4)*SL + i*1024)
    cnt = [0]
    def st(i):
        if not cfg.lst: stamp(a, cfg, i)
    W = lambda g: a.wait_vm_tag(("st", g))
    def B():
        k = cnt[0] - cfg.lst
        if cfg.lst and 0 <= k < 5: stamp(a, cfg, 1 + 2*k)
        a.barrier()
        if cfg.lst and 0 <= k < 5: stamp(a, cfg, 2 + 2*k)
        cnt[0] += 1
    start = 3; vb = VBASE_L
    if cfg.kfirst == 1: kvpart(9, S_K, 91, KSTR, 0, 9)
    stage(0); setup2(); stage(1); setup3(); st(2)
    classes = [(int(c[0]), int(c[1])) for c in cfg.cls.split(",")]
    g0 = min(min(c) for c in classes)
    def middle(lo, hi, mid, tpos, nxt, k=0):
        for g in range(lo, hi):
            W(g)
            if g == 0: st(3)
            if g == 3: st(4)
            B()
            if g == 4 and cfg.ctouch > 1: codetouch()
            if g in (mid, tpos):
                while nxt <= (g + 1 if g < 6 else 8): stage(nxt); nxt += 1
                if g == mid and not cfg.kfirst: kvpart(9, S_K, 91, KSTR, 0, 9)
                if g == tpos: touches(k)
                continue
            while nxt <= g + 2: stage(nxt); nxt += 1
        return nxt
    n0 = 2
    if cfg.sw:
        stage(2); n0 = 3
        if cfg.hold:
            a.s(f"s_and_b32 s76, s3, {cfg.hold}")
            a.s("s_cbranch_scc0 L_nohold")
            a.raw("    s_waitcnt vmcnt(0)")
            a.label("L_nohold")
        else: W(cfg.sw)
    nxt = middle(0, g0, -1, -1, n0)
    saved = list(a.vm); c0 = cnt[0]
    nc = len(classes)
    if nc == 2: a.s("s_and_b32 s3, s3, 1")
    for k in range(1, nc):
        a.s(f"s_cmp_eq_u32 s3, {k}")
        a.s(f"s_cbranch_scc1 L_cls{k}")
    for k, (kp_, tp_) in enumerate(classes):
        if k:
            a.label(f"L_cls{k}")
            a.hist = []; a.vm = list(saved); cnt[0] = c0
        assert middle(g0, 7, kp_, tp_, nxt, k) == 9
        W(7)
        B()
        kvpart(9, S_K, 91, KSTR, 9, 12)
        if not cfg.stg:
            kvpart(10, S_V, 92, VSTR, 0, cfg.v7, vb)
            a.wait_vm_tag(("st", 8))
            a.waitcnt(vm=3 + cfg.v7)
        elif cfg.stg[k] == 'A':
            kvpart(10, S_V, 92, VSTR, 0, cfg.v7, vb)
            a.waitcnt(vm=3 + cfg.v7)
            st(5); B()
            kvpart(10, S_V, 92, VSTR, cfg.v7, 12, vb)
            W(9); st(6); B()
            wostage(0, start)
            for p in range(1, cfg.nreg + 1): woregs(p)
            W(10)
        else:
            woregs(1, 0, 5)
            a.waitcnt(vm=8)
            st(5); B()
            woregs(1, 5, 10)
            if cfg.nreg > 1: woregs(2)
            kvpart(10, S_V, 92, VSTR, 0, cfg.vb8, vb)
            W(9); st(6); B()
            kvpart(10, S_V, 92, VSTR, cfg.vb8, 12, vb)
            wostage(0, start)
            W(10)
        if k < nc - 1: a.s("s_branch L_join")
    a.label("L_join")
    if cfg.stg:
        st(7); B()
        a.waitcnt(vm=0)
        wowrite(1)
        st(8); B()
        if cfg.ctouch > 1: codetouch()
        if cfg.nreg > 1: wowrite(2)
        if cfg.fbar: B()
        wostage(cfg.nreg + 1, start)
        a.waitcnt(lgkm=0)
        st(9); B()
        if cfg.nreg == 1: wostage(3, start); W(13)
        B()
    else:
        st(5); B()
        kvpart(10, S_V, 92, VSTR, cfg.v7, cfg.v8, vb)
        W(9); st(6); B()
        kvpart(10, S_V, 92, VSTR, cfg.v8, 12, vb)
        wostage(0, start)
        W(10); st(7); B()
        if cfg.l_wo > 1: wostage(1, start)
        W(11); st(8); B()
        if cfg.ctouch > 1: codetouch()
        if cfg.fbar: B()
        if cfg.l_wo < 2: wostage(1, start)
        if cfg.wo2 > 1: wostage(2, start)
        if cfg.wo2 > 2: wostage(3, start)
        W(12); st(9); B()
        if cfg.wo2 < 3: wostage(2 if cfg.wo2 == 1 else 3, start)
        if cfg.w3e: wostage(3, start)
        W(13); B()
        if cfg.wo2 == 1 and not cfg.w3e: wostage(3, start)
    nonce_load(a, 32, 16)
    if cfg.ctouch > 2: codetouch()
    W(14); st(10); B()
    a.v("v_lshlrev_b32 v14, 4, v1")
    a.v("v_lshlrev_b32 v11, 3, v1")
    tail_ssetup(a, 73, 0 if cfg.two else 1)
    nonce_check(a, 32, 16)
    apply_c(a, (88,))
    if cfg.two or cfg.dyn:
        a.s("s_add_u32 s96, s96, s76")
        a.s("s_lshl_b32 s76, s90, 7")
        a.s("s_add_u32 s96, s96, s76")
        a.s("s_lshl_b32 s97, 1, s90")
        a.s("s_xor_b32 s97, s97, 0xff")
    for f in tail_vsetup(a, 73, 0 if cfg.two else 1): f()
    if cfg.wout: a.bload(7, 1, 4, S_OUT, "s87", flags=cfg.ld_out)
    if cfg.two or cfg.dyn: a.barrier()
    a.s("s_branch L_tail")

def xlane_reduce(a, op, regs, tmps):
    for sw in ("v_permlane32_swap_b32", "v_permlane16_swap_b32"):
        for r, t in zip(regs, tmps): a.v(f"v_mov_b32 v{t}, v{r}")
        for r, t in zip(regs, tmps): a.v(f"{sw} v{r}, v{t}")
        for r, t in zip(regs, tmps): a.v(f"{op} v{r}, v{r}, v{t}")

class Fill:
    def __init__(self): self.q = []
    def add(self, *fs): self.q.extend(fs)
    def pop(self, n):
        for _ in range(n):
            if self.q: self.q.pop(0)()
    def drain(self): self.pop(len(self.q))

def compute(a, cfg):
    ACC = 16; WF = 112; XF = 144; KF = 168; AS = 216; VF = 112
    accQ = lambda t, mt: ACC + (t*3 + mt)*4
    Wf = lambda t: WF + 4*t
    Xf = lambda par, mt: XF + par*12 + mt*4
    Kf = lambda kt, kp: KF + (kt*4 + kp)*4
    accS = lambda kt, mt: AS + (kt*3 + mt)*4
    Vf = lambda t: VF + 6*t
    accO = lambda mt, t: ACC + (mt*8 + t)*4
    aW = lambda st_, t: 216 + st_*10 + t
    aX = lambda st_, ks: 216 + st_*10 + 8 + ks
    aK = lambda kp: 252 + kp
    aV = lambda th: 2 + th
    R = [13, 15]
    ofA = lambda kp, mt: 168 + (kp*3 + mt)*4
    def ofB(kp, mt):
        f = kp*3 + mt
        return 216 + f*4 if f < 10 else 160 + (f - 10)*4
    of = lambda buf, kp, mt: ofB(kp, mt) if buf else ofA(kp, mt)
    acc2 = lambda mt, t: 16 + (mt*9 + t)*4
    Wf2 = lambda i: 124 + 4*i

    if cfg.prio: a.s(f"s_setprio {cfg.prio}")
    a.s("s_and_b32 s43, s2, 0x98")
    a.s(f"s_or_b32 s43, s43, s{S_W}")
    a.s("s_cmp_lg_u32 s43, 0")
    a.s("s_cbranch_scc1 L_np1")
    a.raw("    s_memrealtime s[52:53]")
    a.raw("    s_getreg_b32 s54, hwreg(HW_REG_XCC_ID, 2, 1)")
    a.s("s_lshr_b32 s46, s2, 6")
    a.s("s_lshl_b32 s46, s46, 3")
    a.s("s_and_b32 s47, s2, 7")
    a.s("s_add_u32 s46, s46, s47")
    a.s("s_mul_i32 s46, s46, 448")
    a.s("s_and_b32 s47, s2, 32")
    a.s("s_lshl_b32 s47, s47, 8")
    a.s("s_add_u32 s46, s46, s47")
    a.s(f"s_add_u32 s46, s46, {WS_PROBE}")
    a.raw("    s_waitcnt lgkmcnt(0)")
    a.s("s_add_u32 s44, s32, s46")
    a.s("s_addc_u32 s45, s33, 0")
    a.s("s_and_b32 s55, s52, 0x7f")
    a.s("s_lshl_b32 s55, s55, 14")
    for rep in range(cfg.nprobe):
        a.raw("    s_memtime s[48:49]")
        a.raw("    s_load_dword s46, s[44:45], s55")
        a.raw("    s_waitcnt lgkmcnt(0)")
        a.raw("    s_memtime s[50:51]")
        a.raw("    s_waitcnt lgkmcnt(0)")
    a.s("s_sub_u32 s50, s50, s48")
    a.s(f"s_min_u32 s50, s50, {CAP}")
    a.s("s_sub_u32 s51, 0, s50")
    a.s("s_lshr_b32 s47, s47, 13")
    a.s("s_cmp_eq_u32 s47, s54")
    a.s("s_cselect_b32 s50, s50, s51")
    a.s(f"s_add_u32 s50, s50, {(1 << 24) + CAP}")
    a.s("s_lshl_b32 s51, s54, s2")
    a.s(f"s_add_u32 s51, s51, {1 << 16}")
    a.s("s_cmp_lt_u32 s2, 8")
    a.s("s_cselect_b32 s51, s51, 0")
    a.label("L_np1")
    a.v("v_lshrrev_b32 v160, 4, v1")
    a.v("v_bfe_u32 v161, v1, 2, 2")
    a.v("v_and_b32 v162, 3, v1")
    a.v("v_and_b32 v163, 15, v1")
    a.v("v_and_b32 v165, 1, v160")
    a.s(f"s_mul_i32 s76, s{S_W}, {KUNIT}")
    a.s(f"s_mul_i32 s77, s{S_E}, {2*SL}")
    a.s("s_add_u32 s76, s76, s77")
    a.v(f"v_mul_u32_u24 v164, {KSTR}, v161")
    a.v("v_lshl_add_u32 v164, v162, 8, v164")
    a.v("v_lshl_add_u32 v164, v160, 3, v164")
    a.v("v_add_u32 v164, s76, v164")
    for kp in range(4):
        a.v(f"v_xor_b32 v167, {kp}, v162")
        a.v(f"v_lshl_add_u32 v{aK(kp)}, v167, 6, v164")
    a.v("v_lshl_add_u32 v164, v160, 3, v161")
    a.v("v_lshlrev_b32 v164, 8, v164")
    a.v("v_lshl_or_b32 v166, v165, 2, v161")
    a.v("v_lshl_add_u32 v164, v166, 5, v164")
    a.v("v_lshl_add_u32 v164, v162, 3, v164")
    a.v(f"v_add_u32 v{aW(0,0)}, {SL}, v164")
    for t in range(1, 8): a.v(f"v_xor_b32 v{aW(0,t)}, {32*t}, v{aW(0,0)}")
    a.v("v_lshrrev_b32 v164, 1, v163")
    a.v("v_xor_b32 v164, v164, v160")
    a.v("v_lshlrev_b32 v164, 4, v164")
    a.v("v_lshl_add_u32 v164, v163, 7, v164")
    a.s(f"s_mul_i32 s76, s{S_W}, 6144")
    a.s(f"s_add_u32 s76, s76, {16384 + SL}")
    a.v(f"v_add_u32 v{aX(0,0)}, s76, v164")
    a.v(f"v_xor_b32 v{aX(0,1)}, 64, v{aX(0,0)}")
    for i in range(10): a.v(f"v_add_u32 v{226+i}, {2*SL}, v{216+i}")
    a.s(f"s_mul_i32 s76, s{S_W}, {VUNIT}")
    a.s(f"s_cmp_eq_u32 s{S_E}, 1")
    a.s(f"s_cselect_b32 s77, 0, {VBASE_L}")
    a.s("s_add_u32 s76, s76, s77")
    a.v(f"v_mul_u32_u24 v164, {VSTR}, v160")
    a.v("v_lshl_add_u32 v164, v161, 8, v164")
    a.v("v_lshl_add_u32 v164, v162, 3, v164")
    a.v("v_add_u32 v164, s76, v164")
    for th in range(4):
        a.v(f"v_xor_b32 v167, {th}, v161")
        a.v(f"v_lshl_add_u32 v{aV(th)}, v167, 6, v164")
    a.v("v_lshl_add_u32 v164, v160, 2, v161")
    a.v("v_mul_u32_u24 v164, 320, v164")
    a.v("v_lshl_add_u32 v164, v162, 3, v164")
    a.s(f"s_cmp_eq_u32 s{S_E}, 1")
    a.s(f"s_mov_b32 s76, {3*SL}")
    a.s(f"s_cselect_b32 s76, {2*SL}, s76")
    a.s(f"s_mov_b32 s93, {SL}")
    a.s(f"s_cselect_b32 s93, s93, {(-3*SL) & 0xffffffff}")
    a.s(f"s_mov_b32 s94, {SL}")
    a.s(f"s_cselect_b32 s94, {(-3*SL) & 0xffffffff}, s94")
    a.s(f"s_mov_b32 s95, {SL}")
    a.v("v_add_u32 v164, s76, v164")
    if cfg.align:
        a.s(f"s_and_b32 s77, s{S_NT}, 1")
        a.s("s_cselect_b32 s76, 1, 8")
        a.v("v_xor_b32 v167, s76, v165")
        a.v("v_lshl_add_u32 v12, v167, 5, v164")
        a.s("s_lshl_b32 s77, s77, 6")
        a.v("v_add_u32 v164, s77, v164")
        a.v(f"v_lshl_add_u32 v{R[0]}, v165, 5, v164")
        a.v("v_xor_b32 v167, 1, v165")
        a.v(f"v_lshl_add_u32 v{R[1]}, v167, 5, v164")
    else:
        a.s(f"s_and_b32 s77, s{S_NT}, 1")
        a.v("v_xor_b32 v167, s77, v165")
        a.v(f"v_lshl_add_u32 v{R[0]}, v167, 5, v164")
        a.s("s_add_u32 s77, s77, 1")
        a.v("v_xor_b32 v167, s77, v165")
        a.v(f"v_lshl_add_u32 v{R[1]}, v167, 5, v164")
    a.v("v_lshlrev_b32 v14, 4, v1")
    a.v("v_lshlrev_b32 v11, 3, v1")
    a.v("v_mov_b32 v10, 0")
    a.s(f"s_lshl_b32 s81, s{S_KQ}, 3")
    a.s(f"s_and_b32 s82, s{S_HL}, 4")
    a.s("s_add_u32 s81, s81, s82")
    unit_base(a, 80, S_W, 81)
    a.s(f"s_mov_b32 s83, {f2u(SC)}")
    a.s("s_and_b32 s76, s2, 7")
    a.s("s_lshr_b32 s77, s2, 5")
    a.s("s_lshl_b32 s77, s77, 3")
    a.s("s_or_b32 s76, s76, s77")
    a.s("s_lshl_b32 s76, s76, 2")
    a.s(f"s_add_u32 s76, s76, s{S_W}")
    a.s("s_lshr_b32 s77, s76, 6")
    a.s("s_lshl_b32 s77, s77, 14")
    a.s("s_and_b32 s76, s76, 63")
    a.s("s_lshl_b32 s76, s76, 7")
    a.s("s_add_u32 s76, s76, s77")
    a.s(f"s_add_u32 s84, s76, {WS_FLAG1}")
    a.s(f"s_lshl_b32 s85, 1, s{S_NT}")
    a.s("s_xor_b32 s86, s85, 15")
    tail_ssetup(a, S_W, 1 if cfg.two else 0)
    a.s("s_lshl_b32 s97, 1, s90")
    build_srds(a, ('o',))
    srd(a, S_X, 32, 33, 0)
    if cfg.warmf:
        a.v("v_mov_b32 v7, s84")
        a.s("s_xor_b32 s76, s84, 8192")
        a.raw("    v_writelane_b32 v7, s76, 1")
        a.s("s_lshl_b32 s76, s90, 7")
        a.s("s_add_u32 s76, s76, s96")
        a.raw("    v_writelane_b32 v7, s76, 2")
        a.s("s_xor_b32 s76, s76, 8192")
        a.raw("    v_writelane_b32 v7, s76, 3")
        if cfg.tlb:
            a.s("s_xor_b32 s76, s40, 20480")
            a.s("s_add_u32 s76, s76, s80")
            a.raw("    v_writelane_b32 v7, s76, 4")
            a.s(f"s_add_u32 s76, s92, {15*16384}")
            a.raw("    v_writelane_b32 v7, s76, 5")
        a.s(f"s_mov_b64 exec, {63 if cfg.tlb else 15}")
        a.bload(6, 1, 7, S_WS, "0", flags="sc1")
        if cfg.tlb > 1:
            a.s("s_mov_b64 exec, 1")
            a.bload(8, 1, 10, S_OUT, "s87", flags="nt")
        a.s("s_mov_b64 exec, -1")

    ver = {}
    def rdW(s, t, ks, h):
        def f():
            a.ds_read("ds_read_b64_tr_b16", Wf(t)+2*h, 2, aW((s % 3) >> 1, t), off=((s % 3) & 1)*SL + ks*8192 + h*1024); ver[("W", t, h)] = (s, ks)
        return f
    def rdX(s, mt, ks):
        def f():
            a.ds_read("ds_read_b128", Xf(ks, mt), 4, aX((s % 3) >> 1, ks), off=((s % 3) & 1)*SL + mt*2048); ver[("X", ks, mt)] = s
        return f
    def chk1(s, ks, t, mt):
        assert ver[("W", t, 0)] == (s, ks) and ver[("W", t, 1)] == (s, ks) and ver[("X", ks, mt)] == s, (s, ks, t, mt)
    def readK():
        for kp in range(4):
            for kt in range(3):
                for e in range(2): a.ds_read("ds_read_b64", Kf(kt, kp)+2*e, 2, aK(kp), off=kt*4*KSTR + 32*e)
    def rdK1(kt, kp, e):
        return lambda: a.ds_read("ds_read_b64", Kf(kt, kp)+2*e, 2, aK(kp), off=kt*4*KSTR + 32*e)
    def cvt(d, s0, s1):
        return lambda: a.v(f"v_cvt_pk_bf16_f32 v{d}, v{s0}, v{s1}")
    def cvtQ(kp):
        out = []
        for mt in range(3):
            r = accQ(2*kp, mt); s_ = accQ(2*kp+1, mt)
            out += [cvt(r, r, r+1), cvt(r+1, r+2, r+3), cvt(r+2, s_, s_+1), cvt(r+3, s_+2, s_+3)]
        return out
    F = Fill()
    a.s("s_cmp_lg_u32 s43, 0")
    a.s("s_cbranch_scc1 L_np2")
    a.v("v_mov_b32 v112, s50")
    a.v("v_mov_b32 v113, s51")
    a.s("s_mov_b64 exec, 1")
    a.raw(f"    buffer_atomic_add_x2 v[112:113], v10, s[{S_DBG}:{S_DBG+3}], 0 offen offset:8 sc1")
    a.s("s_mov_b64 exec, -1")
    a.nop(2)
    a.label("L_np2")
    stamp(a, cfg, 1)
    if cfg.el == 1:
        a.s(f"s_cmp_eq_u32 s{S_E}, 0")
        a.s("s_cbranch_scc1 L_noK0")
        a.barrier()
        readK()
        a.waitcnt(lgkm=0)
        a.barrier()
        a.label("L_noK0")
    a.barrier()
    stamp(a, cfg, 2)
    for mt in range(3): rdX(0, mt, 0)()
    for t in range(8): rdW(0, t, 0, 0)(); rdW(0, t, 0, 1)()
    BP = cfg.barpos
    for s in range(9):
        last = s == 8
        for mt in range(3): F.add(rdX(s, mt, 1))
        for t in range(8):
            if last and cfg.kearly: F.add(rdK1(t >> 2, t & 3, 0), rdK1(t >> 2, t & 3, 1))
            for mt in (range(3) if (t % 2 == 0 or not cfg.serp) else (2, 1, 0)):
                chk1(s, 0, t, mt)
                a.mfma(accQ(t, mt), Wf(t), Xf(0, mt), None if s == 0 else accQ(t, mt))
                for b in range(cfg.x_burn): a.raw(f"    v_mad_u32_u24 v{236+(t*3+mt+b*5)%16}, v{Wf(t)+mt}, v{Xf(0,mt)+b}, v{236+(t*3+mt+b*5+7)%16}")
                F.pop(2 if len(F.q) > 2 else 1)
            if cfg.x_pace and s < cfg.pst: a.nop(cfg.x_pace)
            if s < cfg.strict and t % cfg.smod == 0: a.waitcnt(lgkm=0)
            F.add(rdW(s, t, 1, 0), rdW(s, t, 1, 1))
        for t in range(8):
            for mt in (range(3) if (t % 2 == 0 or not cfg.serp) else (2, 1, 0)):
                chk1(s, 1, t, mt)
                a.mfma(accQ(t, mt), Wf(t), Xf(1, mt), accQ(t, mt))
                for b in range(cfg.x_burn): a.raw(f"    v_mad_u32_u24 v{236+(t*3+mt+b*5)%16}, v{Wf(t)+mt}, v{Xf(1,mt)+b}, v{236+(t*3+mt+b*5+7)%16}")
                F.pop(2 if len(F.q) > 2 else 1)
            if cfg.x_pace and s < cfg.pst and cfg.pst < 9: a.nop(cfg.x_pace)
            if s < cfg.strict and t != BP - 1 and t % cfg.smod == 0: a.waitcnt(lgkm=0)
            if last:
                if t in (3, 5, 7): F.add(*cvtQ((t - 3)//2))
            elif t == BP - 1:
                assert not F.q
                a.waitcnt(lgkm=0)
                a.barrier()
                F.add(rdX(s+1, 0, 0), rdW(s+1, 0, 0, 0), rdW(s+1, 0, 0, 1), rdX(s+1, 1, 0), rdX(s+1, 2, 0))
                for tt in range(1, BP): F.add(rdW(s+1, tt, 0, 0), rdW(s+1, tt, 0, 1))
            elif t >= BP:
                F.add(rdW(s+1, t, 0, 0), rdW(s+1, t, 0, 1))
    a.waitcnt(lgkm=0)
    a.barrier()
    stamp(a, cfg, 3)
    if not cfg.att:
        a.bload(8, 2, 10, S_DBG, "0", flags="sc1", tag="nonce")
        if cfg.el:
            a.s(f"s_cmp_eq_u32 s{S_E}, 1")
            a.s("s_cbranch_scc1 L_noK1")
        readK()
        if cfg.el: a.label("L_noK1")
        F.drain()
        for f in cvtQ(3): f()
        for kp in range(4):
            for kt in range(3):
                for mt in range(3):
                    a.mfma(accS(kt, mt), Kf(kt, kp), accQ(2*kp, mt), None if kp == 0 else accS(kt, mt))
        MX = [160, 161, 162]; TM = [163, 164, 165]; SM = [166, 167, 6]
        vals = lambda mt: [accS(kt, mt) + r for kt in range(3) for r in range(4)]
        for mt in range(3):
            v = vals(mt); a.v(f"v_max3_f32 v{MX[mt]}, v{v[0]}, v{v[1]}, v{v[2]}")
        for i in range(3, 11, 2):
            for mt in range(3):
                v = vals(mt); a.v(f"v_max3_f32 v{MX[mt]}, v{MX[mt]}, v{v[i]}, v{v[i+1]}")
        for mt in range(3):
            v = vals(mt); a.v(f"v_max_f32 v{MX[mt]}, v{MX[mt]}, v{v[11]}")
        xlane_reduce(a, "v_max_f32", MX, TM)
        for mt in range(3): a.v(f"v_mul_f32 v{MX[mt]}, s83, v{MX[mt]}")
        for i in range(12):
            for mt in range(3):
                v = vals(mt); a.v(f"v_fma_f32 v{v[i]}, v{v[i]}, s83, -v{MX[mt]}")
        for i in range(12):
            for mt in range(3):
                v = vals(mt); a.v(f"v_exp_f32 v{v[i]}, v{v[i]}")
        for mt in range(3):
            v = vals(mt); a.v(f"v_add_f32 v{SM[mt]}, v{v[0]}, v{v[1]}")
        for i in range(2, 12):
            for mt in range(3):
                v = vals(mt); a.v(f"v_add_f32 v{SM[mt]}, v{SM[mt]}, v{v[i]}")
        xlane_reduce(a, "v_add_f32", SM, TM)
        for mt in range(3): a.v(f"v_rcp_f32 v{SM[mt]}, v{SM[mt]}")
        a.barrier()
        for t in range(8):
            for kt in range(3):
                F.add(lambda t=t, kt=kt: a.ds_read("ds_read_b64_tr_b16", Vf(t) + 2*kt, 2, aV(t >> 1), off=kt*4*VSTR + (t & 1)*32))
        for i in range(12):
            for mt in range(3):
                v = vals(mt); a.v(f"v_mul_f32 v{v[i]}, v{v[i]}, v{SM[mt]}"); F.pop(1)
        for mt in range(3):
            r0, r1, r2 = accS(0, mt), accS(1, mt), accS(2, mt)
            for f in (cvt(r0, r0, r0+1), cvt(r0+1, r0+2, r0+3), cvt(r0+2, r1, r1+1), cvt(r0+3, r1+2, r1+3), cvt(r2, r2, r2+1), cvt(r2+1, r2+2, r2+3)): f()
        stamp(a, cfg, 4)
        nonce_check(a, 10)
        a.s(f"s_lshl_b32 s81, s{S_NT}, 15")
        a.s("s_add_u32 s81, s81, s80")
        def ostore(mt, kp):
            r = accO(mt, 2*kp); s_ = accO(mt, 2*kp+1); d = ofA(kp, mt); f = kp*3 + mt
            return [cvt(d, r, r+1), cvt(d+1, r+2, r+3), cvt(d+2, s_, s_+1), cvt(d+3, s_+2, s_+3),
                    lambda: a.s(f"s_add_u32 s82, s81, s{40 + f//4}"),
                    lambda: a.bstore(d, 4, 14, S_WS, "s82", off=(f % 4)*1024, flags="sc1")]
        for mt in range(3):
            for t in range(8):
                a.mfma(accO(mt, t), Vf(t), accS(0, mt), None); F.pop(2)
            for t in range(8):
                a.mfma(accO(mt, t), Vf(t)+4, accS(2, mt), accO(mt, t), k=16); F.pop(2)
            for kp in range(4): F.add(*ostore(mt, kp))
    else:
        assert cfg.el == 2 and cfg.l_kpos >= 0 and cfg.c_kpos >= 0
        if not cfg.kearly:
            for kp in range(4):
                for kt in range(2): rdK1(kt, kp, 0)(); rdK1(kt, kp, 1)()
        for kp in range(4): rdK1(2, kp, 0)(); rdK1(2, kp, 1)()
        nonce_load(a, 252, 10)
        F.add(*cvtQ(3))
        order = [(kp, kt, mt) for kp in range(3) for kt in range(2) for mt in range(3)]
        order += [(kp, 2, mt) for kp in range(3) for mt in range(3)]
        order += [(3, kt, mt) for mt in range(3) for kt in range(3)]
        for n, (kp, kt, mt) in enumerate(order):
            if kp == 2 and n == 12: F.pop(max(0, len(F.q) - 12))
            if kp == 3: F.drain()
            a.mfma(accS(kt, mt), Kf(kt, kp), accQ(2*kp, mt), None if kp == 0 else accS(kt, mt)); F.pop(2)
        MX = [160, 162, 164]; TM = [161, 163, 165]; SM = [166, 6, 112]
        vals = lambda mt: [accS(kt, mt) + r for kt in range(3) for r in range(4)]
        for mt in range(3):
            v = vals(mt); a.v(f"v_max3_f32 v{MX[mt]}, v{v[0]}, v{v[1]}, v{v[2]}")
        for i in range(3, 11, 2):
            for mt in range(3):
                v = vals(mt); a.v(f"v_max3_f32 v{MX[mt]}, v{MX[mt]}, v{v[i]}, v{v[i+1]}")
        for mt in range(3):
            v = vals(mt); a.v(f"v_max_f32 v{MX[mt]}, v{MX[mt]}, v{v[11]}")
        xlane_reduce(a, "v_max_f32", MX, TM)
        for mt in range(3): a.v(f"v_mul_f32 v{MX[mt]}, s83, v{MX[mt]}")
        for i in range(0, 12, 2):
            for mt in range(3):
                v = vals(mt)
                a.v(f"v_pk_fma_f32 v[{v[i]}:{v[i]+1}], v[{v[i]}:{v[i]+1}], s[82:83], v[{MX[mt]}:{MX[mt]+1}] op_sel:[0,1,0] op_sel_hi:[1,1,0] neg_lo:[0,0,1] neg_hi:[0,0,1]")
        for i in range(12):
            for mt in range(3):
                v = vals(mt); a.v(f"v_exp_f32 v{v[i]}, v{v[i]}")
        for mt in range(3):
            v = vals(mt); a.v(f"v_pk_add_f32 v[{SM[mt]}:{SM[mt]+1}], v[{v[0]}:{v[1]}], v[{v[2]}:{v[3]}]")
        for i in range(4, 12, 2):
            for mt in range(3):
                v = vals(mt); a.v(f"v_pk_add_f32 v[{SM[mt]}:{SM[mt]+1}], v[{SM[mt]}:{SM[mt]+1}], v[{v[i]}:{v[i]+1}]")
        for mt in range(3): a.v(f"v_add_f32 v{MX[mt]}, v{SM[mt]}, v{SM[mt]+1}")
        xlane_reduce(a, "v_add_f32", MX, TM)
        for mt in range(3): a.v(f"v_rcp_f32 v{MX[mt]}, v{MX[mt]}")
        for i in range(0, 12, 2):
            for mt in range(3):
                v = vals(mt); a.v(f"v_pk_mul_f32 v[{v[i]}:{v[i]+1}], v[{v[i]}:{v[i]+1}], v[{MX[mt]}:{MX[mt]+1}] op_sel_hi:[1,0]")
        for mt in range(3):
            r0, r1, r2 = accS(0, mt), accS(1, mt), accS(2, mt)
            for f in (cvt(r0, r0, r0+1), cvt(r0+1, r0+2, r0+3), cvt(r0+2, r1, r1+1), cvt(r0+3, r1+2, r1+3), cvt(r2, r2, r2+1), cvt(r2+1, r2+2, r2+3)): f()
        stamp(a, cfg, 4)
        a.barrier()
        for t in range(8):
            for kt in range(3):
                a.ds_read("ds_read_b64_tr_b16", Vf(t) + 2*kt, 2, aV(t >> 1), off=kt*4*VSTR + (t & 1)*32)
        nonce_check(a, 252, 10)
        apply_c(a, (80, 84, 88))
        a.s("s_mov_b32 s52, s76")
        a.s("s_mov_b32 s53, s75")
        for k in range(4):
            F.add(lambda k=k: a.s(f"s_bitcmp1_b32 s53, {k}") or a.s(f"s_cselect_b32 s{44+k}, 8192, 0"), lambda k=k: a.s(f"s_xor_b32 s{44+k}, s{44+k}, s92"))
        a.s(f"s_lshl_b32 s81, s{S_NT}, 15")
        a.s("s_add_u32 s81, s81, s80")
        def ostore(mt, kp):
            r = accO(mt, 2*kp); s_ = accO(mt, 2*kp+1); d = ofA(kp, mt); f = kp*3 + mt
            return [cvt(d, r, r+1), cvt(d+1, r+2, r+3), cvt(d+2, s_, s_+1), cvt(d+3, s_+2, s_+3),
                    lambda: a.s(f"s_add_u32 s82, s81, s{40 + f//4}"),
                    lambda: a.bstore(d, 4, 14, S_WS, "s82", off=(f % 4)*1024, flags="sc1")]
        for kp in range(4):
            for t in (2*kp, 2*kp+1):
                for mt in range(3):
                    a.mfma(accO(mt, t), Vf(t), accS(0, mt), None); F.pop(2)
            for t in (2*kp, 2*kp+1):
                for mt in range(3):
                    a.mfma(accO(mt, t), Vf(t)+4, accS(2, mt), accO(mt, t), k=16); F.pop(2)
            F.add(lambda: None, lambda: None, lambda: None, lambda: None)
            for mt in range(3): F.add(*ostore(mt, kp))
    F.drain()
    stamp(a, cfg, 5)
    def flagst(off):
        a.s("s_mov_b32 exec_lo, s85"); a.s("s_mov_b32 exec_hi, 0")
        a.bstore(8, 2, 11, S_WS, "s84", off=off, flags="sc1")
        a.s("s_mov_b64 exec, -1")
    def poll_issue(mask, off):
        a.s(f"s_mov_b32 exec_lo, {mask}"); a.s("s_mov_b32 exec_hi, 0")
        a.bload(6, 2, 11, S_WS, "s84", off=off, flags="sc1")
        a.s("s_mov_b64 exec, -1")
    def poll_check(mask, off):
        L = newlabel("pc"); Lb = newlabel("pcb")
        a.s(f"s_mov_b32 exec_lo, {mask}"); a.s("s_mov_b32 exec_hi, 0")
        a.v("v_cmp_ne_u64 vcc, v[6:7], v[8:9]")
        a.s("s_mov_b64 exec, -1")
        a.s(f"s_cbranch_vccnz {L}")
        a.label(Lb)
        o = Asm(); o.label(L); poll_flags(o, 6, 8, 11, 84, mask, 76, off); o.s(f"s_branch {Lb}")
        a.ool += o.L
    if cfg.split:
        a.waitcnt(vm=6)
        flagst(0)
        head_order(a, 1, 75)
        a.s("s_lshl_b32 s75, 1, s75")
    a.waitcnt(lgkm=0)
    a.barrier()
    stamp(a, cfg, 10)
    KO = lambda p, ts: [(p, kp, t) for kp in range(4) for t in ts]
    TO = lambda p, ts: [(p, kp, t) for t in ts for kp in range(4)]
    items = KO(0, range(9)) + KO(1, range(9))
    if cfg.reord: items += KO(2, range(6)) + TO(3, range(6)) + KO(2, range(6, 9)) + TO(3, range(6, 9))
    else: items += KO(2, range(9)) + TO(3, range(9))
    first3 = next(i for i, it in enumerate(items) if it[0] == 3)
    done_at = {}
    for i, (p, kp, t) in enumerate(items): done_at[t//2] = i
    NB = 9
    R3 = [12, 10]
    def rdW2(i, h):
        p, kp, t = items[i]
        def f():
            if cfg.align: a.ds_read("ds_read_b64_tr_b16", Wf2(i % NB)+2*h, 2, 12 if t == 8 else R[t & 1], off=kp*10240 + h*5120 + (0 if t == 8 else 32*(t - (t & 1))))
            else: a.ds_read("ds_read_b64_tr_b16", Wf2(i % NB)+2*h, 2, (R3 if p == 3 else R)[t & 1], off=kp*10240 + h*5120 + 32*(t - (t & 1)))
            ver[("W2", i % NB, h)] = i
        return f
    for kp in range(4):
        for mt in range(3): ver[("O", 0, kp, mt)] = 0
    def headbase(p):
        return [lambda: head_order(a, p, 81), lambda: a.s("s_lshl_b32 s81, s81, 15"), lambda: a.s("s_add_u32 s81, s81, s80")]
    def ldO(p, f, srdb=S_WS):
        kp, mt = divmod(f, 3)
        return [lambda: a.s(f"s_add_u32 s82, s81, s{40 + f//4}"),
                lambda: (a.bload(of(p & 1, kp, mt), 4, 14, srdb, "s82", off=(f % 4)*1024, flags="sc1"), ver.__setitem__(("O", p & 1, kp, mt), p))]
    def publish(mt, pair):
        if pair == 4 and mt == 1: return []
        slot = pair*3 + mt if pair < 4 else 12 + mt//2
        r = acc2(mt, 2*pair)
        out = [cvt(r, r, r+1), cvt(r+1, r+2, r+3)]
        if slot < 13:
            s_ = acc2(mt, 2*pair+1) if pair < 4 else acc2(1, 8)
            out += [cvt(r+2, s_, s_+1), cvt(r+3, s_+2, s_+3)]
        def st_():
            L = newlabel("own"); L2 = newlabel("ownb")
            a.s(f"s_cmp_eq_u32 s90, {slot & 7}")
            a.s(f"s_cbranch_scc1 {L}")
            if slot < 13: a.bstore(r, 4, 14, S_WS, "s82", flags="sc1", tag=("pub", slot))
            else: a.bstore(r, 2, 11, S_WS, "s82", flags="sc1", tag=("pub", slot))
            a.label(L2)
            a.ool += [f"{L}:", f"    ds_write_b128 v2, v[{r}:{r+3}] offset:{(slot >> 3)*4096}",
                      f"    buffer_store_dword v{r}, v14, s[{S_X}:{S_X+3}], 0 offen", f"    s_branch {L2}"]
        out += [lambda: a.s(f"s_add_u32 s82, s{44 + ((slot & 7) >> 1)}, {slot*16384}"), st_]
        return out
    def flag2(off):
        a.s("s_mov_b32 exec_lo, s97"); a.s("s_mov_b32 exec_hi, 0")
        a.bstore(8, 2, 3, S_WS, "s55", off=off, flags="sc1")
        a.s("s_mov_b64 exec, -1")
    def stageA():
        a.wait_vm_tag(("pub", 7))
        flag2(0)
        a.waitcnt(lgkm=0)
        a.barrier()
    for i in range(NB): rdW2(i, 0)(); rdW2(i, 1)()
    seen = set()
    n3 = 0
    assert cfg.q1c > cfg.fb
    for i, (p, kp, t) in enumerate(items):
        if i == cfg.fb:
            F.drain()
            a.waitcnt(vm=0)
            stamp(a, cfg, 6)
            flagst(0)
            if cfg.fbar: a.barrier()
        if cfg.pp1:
            for pz, pi, pc in ((1, cfg.q1i, cfg.q1c), (2, cfg.q2i, cfg.q2i + 7), (3, cfg.q3i, cfg.q3i + 7)):
                if i == pi:
                    F.drain()
                    head_order(a, pz, 75)
                    a.s("s_lshl_b32 s75, 1, s75")
                    poll_issue("s75", 0)
                if i == pc:
                    poll_check("s75", 0)
                    if pz == 1:
                        stamp(a, cfg, 7)
                        F.add(*headbase(1))
                        for fr in range(12): F.add(*ldO(1, fr))
                    if pz == 2: F.add(*headbase(2))
            if cfg.q2i + 7 <= i < cfg.q2i + 19: F.add(*ldO(2, i - cfg.q2i - 7))
        if i == 36:
            F.drain()
            if cfg.p2st: stamp(a, cfg, 1)
            a.barrier()
            if cfg.p2st: stamp(a, cfg, 2)
            for r in R + ([12] if cfg.align else []): a.v(f"v_subrev_u32 v{r}, {3*SL}, v{r}")
            for j in range(36, 36 + NB): rdW2(j, 0)(); rdW2(j, 1)()
            if not cfg.pp1:
                for f in headbase(1): f()
                poll_flags(a, 6, 8, 11, 84, "s86", 76, 0, 4)
                stamp(a, cfg, 7)
                for fr in range(12):
                    for f in ldO(1, fr): f()
                F.add(*headbase(2))
            for r, r3 in ([] if cfg.align else zip(R, R3)): F.add(lambda r=r, r3=r3: a.v(f"v_add_u32 v{r3}, {2*SL}, v{r}"))
        if cfg.p2st and i in (37, 72, 108): stamp(a, cfg, {37: 3, 72: 4, 108: 5}[i])
        if not cfg.pp1 and p == 1 and t in (0, 3, 6): F.add(*ldO(2, kp*3 + t//3))
        if i == 54:
            F.add(*tail_vsetup(a, S_W, 0))
            F.add(*[lambda t=t: a.v(t) for t in ("v_lshrrev_b32 v5, 1, v1", "v_lshrrev_b32 v5, v5, s53", "v_and_b32 v5, 1, v5", "v_lshl_add_u32 v3, v5, 13, v3")])
            F.add(*[lambda t=t: a.s(t) for t in ("s_xor_b32 s97, s97, 0xff", "s_lshl_b32 s55, s90, 3", "s_add_u32 s55, s55, s96",
                                                  "s_lshl_b32 s76, s90, 7", "s_add_u32 s96, s96, s76", "s_add_u32 s96, s96, s52")])
        if i == 64 and cfg.wout: F.add(lambda: (a.bload(7, 1, 4, S_OUT, "s87", flags=cfg.ld_out), a.vm.__setitem__(-1, (None, "touch"))))
        if i == 72: F.add(*headbase(3))
        if i >= 72 and n3 < 12 and (cfg.reord or t < 6): F.add(*ldO(3, n3)); n3 += 1
        if cfg.two and i == done_at[2] + 1 + cfg.fa: F.drain(); stageA()
        for mt in (range(3) if (i % 2 == 0 or not cfg.serp) else (2, 1, 0)):
            assert ver[("W2", i % NB, 0)] == i and ver[("W2", i % NB, 1)] == i and ver[("O", p & 1, kp, mt)] == p, (i, p, kp, t)
            a.mfma(acc2(mt, t), Wf2(i % NB), of(p & 1, kp, mt), acc2(mt, t) if (mt, t) in seen else None)
            seen.add((mt, t))
            F.pop(3 if len(F.q) > 8 else 2 if len(F.q) > 2 else 1)
        j = i + NB
        if j < len(items) and not (p == 0 and j >= 36):
            if j in (72, first3):
                F.drain()
                a.barrier()
                if j == 72 or cfg.align:
                    assert not (cfg.align and cfg.reord)
                    for r in R + ([12] if cfg.align else []): a.v(f"v_add_u32 v{r}, {SL}, v{r}")
            F.q = [rdW2(j, 0), rdW2(j, 1)] + F.q
        for pair in range(4):
            if i == done_at[pair] + 1:
                for mt in range(3): F.add(*publish(mt, pair))
    stamp(a, cfg, 8)
    F.drain()
    for mt in range(3):
        for f in publish(mt, 4): f()
    if cfg.two and done_at[2] + 1 + cfg.fa >= len(items): stageA()
    stamp(a, cfg, 9)
    if cfg.dyn:
        a.waitcnt(lgkm=0)
        a.barrier()
    a.waitcnt(vm=0, lgkm=0)
    stamp(a, cfg, 11)
    flag2(64)
    if cfg.dyn: pass
    elif cfg.two:
        a.v("v_add_u32 v2, 4096, v2")
        a.s("s_add_u32 s96, s96, 64")
    else:
        poll_flags(a, 6, 8, 11, 96, "s97", 76, 64, 62)

def tail(a, cfg, endlabel):
    if cfg.dyn:
        a.s("s_cmp_ge_u32 s89, 14")
        a.s(f"s_cbranch_scc1 {endlabel}")
        for k in range(8):
            L = newlabel("ow")
            a.s(f"s_cmp_lg_u32 s90, {k}")
            a.s(f"s_cbranch_scc1 {L}")
            a.raw(f"    ds_read_b128 v[{16+4*k}:{19+4*k}], v2")
            a.label(L)
        if cfg.coal:
            a.v("v_and_b32 v70, 60, v1")
            a.v("v_and_b32 v71, 1, v1")
            a.v("v_lshl_add_u32 v70, v71, 7, v70")
            a.v("v_and_b32 v71, 2, v1")
            a.v("v_lshl_add_u32 v70, v71, 5, v70")
        a.s("s_add_u32 s77, s88, 4096")
        a.s("s_mov_b32 s76, 0")
        a.s("s_cmp_eq_u32 s89, 13")
        a.s("s_cbranch_scc1 L_dynh")
        def loop(o, name, half):
            o.label(name)
            o.s("s_mov_b32 exec_lo, s97"); o.s("s_mov_b32 exec_hi, 0")
            o.raw(f"    buffer_load_dwordx2 v[6:7], v11, s[{S_WS}:{S_WS+3}], s96 offen offset:64 sc1")
            o.s("s_add_u32 s76, s76, 1")
            o.raw("    s_waitcnt vmcnt(0)")
            o.raw("    v_cmp_eq_u64 vcc, v[6:7], v[8:9]")
            o.s("s_mov_b64 exec, -1")
            o.s(f"s_cmp_gt_u32 s76, {SPIN_MAX}")
            o.s("s_cselect_b32 s75, s97, vcc_lo")
            o.s("s_andn2_b32 s97, s97, s75")
            for k in range(8):
                L = newlabel("dy")
                o.s(f"s_bitcmp0_b32 s75, {k}")
                o.s(f"s_cbranch_scc1 {L}")
                so = "s88" if k < 4 else "s77"
                off = f" offset:{(k % 4)*1024}" if k % 4 else ""
                if half: o.raw(f"    buffer_load_dwordx2 v[{16+4*k}:{17+4*k}], v11, s[{S_WS}:{S_WS+3}], {so} offen{off} sc1")
                else: o.raw(f"    buffer_load_dwordx4 v[{16+4*k}:{19+4*k}], v14, s[{S_WS}:{S_WS+3}], {so} offen{off} sc1")
                o.label(L)
            o.s("s_cmp_lg_u32 s97, 0")
            o.s(f"s_cbranch_scc1 {name}")
        loop(a, "L_dyn", False)
        a.label("L_dynb")
        ool = Asm(); loop(ool, "L_dynh", True); ool.s("s_branch L_dynb"); a.ool += ool.L
        stamp(a, cfg, 12)
        a.raw("    s_waitcnt vmcnt(0) lgkmcnt(0)")
    else:
        if not cfg.two: a.barrier()
        a.s("s_cmp_ge_u32 s89, 14")
        a.s(f"s_cbranch_scc1 {endlabel}")
        if cfg.two: poll_flags(a, 6, 8, 11, 96, "s97", 76, 0, 68)
        stamp(a, cfg, 12)
        a.ds_read("ds_read_b128", 16, 4, 2)
        a.s("s_cmp_eq_u32 s89, 13")
        a.s("s_cbranch_scc1 L_half")
        def srcoff(k):
            a.s(f"s_add_u32 s76, s90, {k}")
            a.s("s_and_b32 s76, s76, 7")
            a.s("s_lshl_b32 s76, s76, 10")
            a.s("s_add_u32 s76, s76, s88")
        for k in range(1, 8):
            srcoff(k); a.bload(16 + 4*k, 4, 14, S_WS, "s76", flags="sc1")
        a.label("L_halfb")
        ool = Asm()
        ool.label("L_half")
        for k in range(1, 8):
            ool.s(f"s_add_u32 s76, s90, {k}"); ool.s("s_and_b32 s76, s76, 7"); ool.s("s_lshl_b32 s76, s76, 10"); ool.s("s_add_u32 s76, s76, s88")
            ool.bload(16 + 4*k, 2, 11, S_WS, "s76", flags="sc1")
        ool.s("s_branch L_halfb")
        a.ool += ool.L
    for k in range(8):
        src = 16 + 4*k
        for i in range(4):
            if k == 0:
                a.v(f"v_lshlrev_b32 v{48+2*i}, 16, v{src+i}")
                a.v(f"v_and_b32 v{49+2*i}, 0xffff0000, v{src+i}")
            else:
                a.v(f"v_lshlrev_b32 v{60+2*(i&1)}, 16, v{src+i}")
                a.v(f"v_and_b32 v{61+2*(i&1)}, 0xffff0000, v{src+i}")
                a.v(f"v_pk_add_f32 v[{48+2*i}:{49+2*i}], v[{48+2*i}:{49+2*i}], v[{60+2*(i&1)}:{61+2*(i&1)}]")
        if k == 1: stamp(a, cfg, 13)
    for i in range(4): a.v(f"v_cvt_pk_bf16_f32 v{64+i}, v{48+2*i}, v{49+2*i}")
    a.v("v_permlane16_swap_b32 v64, v66")
    a.v("v_permlane16_swap_b32 v65, v67")
    if cfg.coal:
        for i in range(4):
            a._emit(f"ds_bpermute_b32 v{64+i}, v70, v{64+i}", "ds", vw=[64+i], vrd=[70, 64+i]); a.lgkm.append(({64+i}, None))
    stamp(a, cfg, 14)
    a.s("s_mov_b64 exec, s[78:79]")
    a.bstore(64, 4, 4, S_OUT, "s87", flags=cfg.st_out)

def kernel(cfg):
    a = Asm()
    a.lcap = cfg.lcap
    ROT[0] = cfg.rot
    PP[0] = cfg.pp
    ALIGN[0] = cfg.align
    COAL[0] = cfg.coal
    a.ool = []
    stamp(a, cfg, 0)
    prologue(a, cfg, "L_end")
    a.s(f"s_cmp_lt_u32 s{S_W}, 4")
    a.s("s_cbranch_scc1 L_compute")
    loader(a, cfg)
    a.label("L_compute")
    a.reset_state()
    compute(a, cfg)
    a.label("L_tail")
    a.reset_state()
    a.nop(2)
    tail(a, cfg, "L_st")
    a.label("L_st")
    if cfg.x_map:
        a.s(f"s_add_u32 s76, s2, s{S_W}")
        a.s("s_cmp_lg_u32 s76, 0")
        a.s("s_cbranch_scc1 L_end")
        a.raw("    s_waitcnt vmcnt(0)")
        for i in range(40): a.raw("    s_sleep 64")
        a.s("s_mov_b64 exec, 1")
        a.v("v_mov_b32 v20, 0")
        a.s("s_mov_b32 s40, 0"); a.s(f"s_mov_b32 s41, {28672}"); a.s("s_mov_b32 s42, 0")
        a.label("L_map")
        for rep in range(2):
            a.raw("    v_mov_b32 v21, 0")
            a.raw("    s_memtime s[44:45]"); a.raw("    s_waitcnt lgkmcnt(0)")
            a.raw(f"    buffer_atomic_add v21, v20, s[{S_WS}:{S_WS+3}], s41 offen sc0 sc1")
            a.raw("    s_waitcnt vmcnt(0)")
            a.raw("    s_memtime s[46:47]"); a.raw("    s_waitcnt lgkmcnt(0)")
        a.s("s_sub_u32 s46, s46, s44")
        a.s("s_cmp_gt_u32 s46, 680")
        a.s("s_cselect_b32 s46, 1, 0")
        a.s("s_lshl_b32 s46, s46, s40")
        a.s("s_or_b32 s42, s42, s46")
        a.s(f"s_add_u32 s41, s41, {2 << 20}")
        a.s("s_add_u32 s40, s40, 1")
        a.s("s_cmp_lt_u32 s40, 24")
        a.s("s_cbranch_scc1 L_map")
        a.v("v_mov_b32 v21, s42")
        a.raw(f"    buffer_store_dword v21, v20, s[{S_DBG}:{S_DBG+3}], 0 offen offset:16")
        a.v(f"v_mov_b32 v22, s{S_WS}")
        a.raw(f"    buffer_store_dword v22, v20, s[{S_DBG}:{S_DBG+3}], 0 offen offset:20")
        a.raw("    s_getreg_b32 s42, hwreg(HW_REG_XCC_ID)")
        a.v("v_mov_b32 v23, s42")
        a.raw(f"    buffer_store_dword v23, v20, s[{S_DBG}:{S_DBG+3}], 0 offen offset:24")
    if cfg.stamps: a.waitcnt(vm=0)
    stamp(a, cfg, 15)
    stamp_out(a, cfg)
    a.label("L_end")
    a.s("s_endpgm")
    for l in a.ool: a.raw(l)
    return a

HEADER = open("cdna_kernels/" + NAME + ".s.ref").read().split("; Override launch")[0]

DOC = '''; ---------------------------------------------------------------------------------------------
; ---------------------------------------------------------------------------------------------
'''

def build(cfg):
    n = NAME + "_kernel"
    a = kernel(cfg)
    return HEADER + DOC + f"""; @launch grid=(256,1,1) block=(512,1,1) lds=163840
.amdgcn_target "amdgcn-amd-amdhsa--gfx950"
.text
.globl {n}
.p2align 8
.type {n},@function
{n}:
{a.text()}
L_code_end:
.section .rodata,"a"
.p2align 6
.amdhsa_kernel {n}
  .amdhsa_next_free_vgpr 256
  .amdhsa_next_free_sgpr 102
  .amdhsa_accum_offset 256
  .amdhsa_group_segment_fixed_size 0
  .amdhsa_kernarg_size 104
  .amdhsa_user_sgpr_count 2
  .amdhsa_user_sgpr_kernarg_segment_ptr 1
  .amdhsa_system_sgpr_workgroup_id_x 1
.end_amdhsa_kernel
"""

if __name__ == "__main__":
    cfg = Cfg()
    for kv in sys.argv[2:]:
        k, v = kv.split("=")
        cur = getattr(cfg, k)
        setattr(cfg, k, (v == "1") if isinstance(cur, bool) else int(v) if isinstance(cur, int) else v.replace("_", " "))
    open(sys.argv[1], "w").write(build(cfg))
```
